```python
import torch

def _softmax(x, axis=-1):
    return torch.softmax(x, dim=axis)
def _gelu(x):
    return torch.nn.functional.gelu(x, approximate="tanh")
def _silu(x):
    return torch.nn.functional.silu(x)
def _sigmoid(x):
    return torch.sigmoid(x)
def _layernorm(x, axis=-1, eps=1e-5):
    m = x.mean(dim=axis, keepdim=True)
    v = x.var(dim=axis, keepdim=True, unbiased=False)
    return (x - m) / torch.sqrt(v + eps)
def _scatter_add(tgt, idx, src, axis=0):
    return tgt.clone().index_add_(axis, idx, src)
def _segment_sum(src, seg, n):
    out = torch.zeros((n,) + src.shape[1:], dtype=src.dtype)
    return out.index_add_(0, seg, src)
def _pad(x, pw):
    flat = tuple(v for pair in reversed(pw) for v in pair)
    return torch.nn.functional.pad(x, flat)

kernel_name = 'concat_heads__mha_block__softmax_full_mha__prompt'

def setup_inputs():

    _w = (lambda a: (lambda t: t.to(torch.bfloat16) if t.is_floating_point() else t)(torch.as_tensor(a)))
    def _A_setup():
        B, S, D, H = 1, 2048, 640, 32
        return {
            "x": _w((lambda *s: torch.randn(*s, dtype=torch.bfloat16) * 0.2)(B, S, D)),
            "wqkv": _w((lambda *s: torch.randn(*s, dtype=torch.bfloat16) * 0.2)(D, 3 * D)),
            "wo": _w((lambda *s: torch.randn(*s, dtype=torch.bfloat16) * 0.05)(D, D)),
        }
    _A_in = _A_setup()

    def _B_setup():
        B, S, D = 1, 2048, 640
        return {
            "x": _w((lambda *s: torch.randn(*s, dtype=torch.bfloat16) * 0.2)(B, S, D)),
            "wqkv": _w((lambda *s: torch.randn(*s, dtype=torch.bfloat16) * 0.2)(D, 3 * D)),
            "wo": _w((lambda *s: torch.randn(*s, dtype=torch.bfloat16) * 0.05)(D, D)),
        }
    _B_in = _B_setup()

    return {
        "A_x": _A_in["x"],
        "A_wqkv": _A_in["wqkv"],
        "A_wo": _A_in["wo"],
        "B_x": _B_in["x"],
        "B_wqkv": _B_in["wqkv"],
        "B_wo": _B_in["wo"],
    }

def reference(A_x, A_wqkv, A_wo, B_x, B_wqkv, B_wo):
    def _A_ref(x, wqkv, wo):
        B, S, D = x.shape
        H = 32
        Dh = D // H
        qkv = (lambda x, *d: x.permute(*d))((x @ wqkv).reshape(B, S, 3, H, Dh), 2, 0, 3, 1, 4)
        q, k, v = qkv[0], qkv[1], qkv[2]
        scores = torch.einsum("bhqd,bhkd->bhqk", q, k) * (Dh ** -0.5)
        p = _softmax(scores, axis=-1)
        o = torch.einsum("bhqk,bhkd->bhqd", p, v)
        return (lambda x, *d: x.permute(*d))(o, 0, 2, 1, 3).reshape(B, S, D) @ wo

    def _B_ref(x, wqkv, wo):
        B, S, D = x.shape
        H = 32; Dh = D // H
        qkv = (lambda x, *d: x.permute(*d))((x @ wqkv).reshape(B, S, 3, H, Dh), 2, 0, 3, 1, 4)
        q, k, v = qkv[0], qkv[1], qkv[2]
        scale = Dh ** -0.5
        scores = torch.einsum("bhqd,bhkd->bhqk", q, k) * scale
        p = _softmax(scores, axis=-1)
        o = torch.einsum("bhqk,bhkd->bhqd", p, v)
        return (lambda x, *d: x.permute(*d))(o, 0, 2, 1, 3).reshape(B, S, D) @ wo

    a = _A_ref(A_x, A_wqkv, A_wo)
    b = _B_ref(B_x, B_wqkv, B_wo)
    return torch.concatenate([a, b], axis=-1)
```

```python
import math, struct, sys

NAME = "concat_heads__mha_block__softmax_full_mha__prompt"
PS = 32768 + 512
QK_BYTES = 160 * PS
V_HEAD = 128 * 640
V_BYTES = 32 * V_HEAD + 8192
O_BYTES = 80 * PS
QK_OFF = 0
V_OFF = QK_OFF + 2 * QK_BYTES
O_OFF = V_OFF + 2 * V_BYTES
WS_USED = O_OFF + 2 * O_BYTES + 65536
CSCALE = math.log2(math.e) / math.sqrt(20.0)

def f32bits(x): return struct.unpack("<I", struct.pack("<f", x))[0]

class A:
    def __init__(self): self.l = []
    def __call__(self, s, *a):
        self.l.append("    " + (s % a if a else s))
    def label(self, s): self.l.append(s + ":")
    def raw(self, s): self.l.append(s)
    def c(self, s): self.l.append("    ; " + s)
    def text(self): return "\n".join(self.l) + "\n"

def vr(b, n): return "v[%d:%d]" % (b, b + n - 1) if n > 1 else "v%d" % b
def sr(b, n): return "s[%d:%d]" % (b, b + n - 1) if n > 1 else "s%d" % b

def kernel_head(a, name):
    a.raw(".globl %s" % name)
    a.raw(".p2align 8")
    a.raw(".type %s,@function" % name)
    a.label(name)

def kd(name, nfv, nsg=96):
    acc = (nfv + 3) // 4 * 4
    return """.p2align 6
.amdhsa_kernel %s
  .amdhsa_next_free_vgpr %d
  .amdhsa_next_free_sgpr %d
  .amdhsa_accum_offset %d
  .amdhsa_group_segment_fixed_size 0
  .amdhsa_kernarg_size 72
  .amdhsa_user_sgpr_count 2
  .amdhsa_user_sgpr_kernarg_segment_ptr 1
  .amdhsa_system_sgpr_workgroup_id_x 1
.end_amdhsa_kernel
""" % (name, nfv, nsg, acc)

def swap23(a, dst, src, t1, t2):
    a("v_and_b32 v%d, 4, v%d", t1, src)
    a("v_lshlrev_b32 v%d, 1, v%d", t1, t1)
    a("v_and_b32 v%d, 8, v%d", t2, src)
    a("v_lshrrev_b32 v%d, 1, v%d", t2, t2)
    a("v_and_b32 v%d, 0x13, v%d", dst, src)
    a("v_or3_b32 v%d, v%d, v%d, v%d", dst, dst, t1, t2)

def gen_qkv(a):
    name = "qkv_kernel"
    kernel_head(a, name)
    XS, WSRD, OS = 8, 12, 16
    sB, sMT, sNT, sW, sWM, sWN = 20, 21, 22, 23, 24, 25
    sXoff, sWoff, sM0x, sM0w, sIt, sT, sT2 = 26, 27, 28, 29, 30, 31, 32
    sXrec, sWrec, sDX, sDW, sSlot, sScale = 33, 34, 35, 36, 37, 38
    WBASE = 98304
    a("s_cmp_ge_u32 s2, 256")
    a("s_cbranch_scc1 L_qkv_end")
    a("s_and_b32 s%d, s2, 7", sT)
    a("s_lshr_b32 s%d, s2, 3", sT2)
    a("s_lshr_b32 s%d, s%d, 2", sB, sT)
    a("s_bfe_u32 s%d, s%d, 0x10001", sMT, sT)
    a("s_lshl_b32 s%d, s%d, 2", sMT, sMT)
    a("s_and_b32 s%d, s%d, 3", sW, sT2)
    a("s_or_b32 s%d, s%d, s%d", sMT, sMT, sW)
    a("s_and_b32 s%d, s%d, 1", sNT, sT)
    a("s_lshl_b32 s%d, s%d, 3", sNT, sNT)
    a("s_lshr_b32 s%d, s%d, 2", sT2, sT2)
    a("s_or_b32 s%d, s%d, s%d", sNT, sNT, sT2)
    a("s_cmp_ge_u32 s%d, 15", sNT)
    a("s_cbranch_scc1 L_qkv_end")
    a("s_mul_i32 s%d, s%d, 24", sT, sB)
    a("s_load_dwordx4 s[4:7], s[0:1], s%d", sT)
    a("s_load_dwordx2 s[%d:%d], s[0:1], 64", OS, OS + 1)
    vLane, vT1, vT2, vT3 = 1, 2, 3, 4
    vXg = 5
    vWg = 9
    vXa = 11
    vWa = 15
    vM, vH = 17, 18
    F = 20
    ACC = 52
    a("v_lshrrev_b32 v%d, 6, v0", vT1)
    a("v_and_b32 v%d, 63, v0", vLane)
    a("v_readfirstlane_b32 s%d, v%d", sW, vT1)
    a("v_and_b32 v%d, 31, v0", vM)
    a("v_bfe_u32 v%d, v0, 5, 1", vH)
    a("s_lshr_b32 s%d, s%d, 1", sWM, sW)
    a("s_and_b32 s%d, s%d, 1", sWN, sW)
    a("v_lshrrev_b32 v%d, 3, v%d", vT1, vLane)
    a("s_lshl_b32 s%d, s%d, 5", sT, sW)
    a("v_add_u32 v%d, s%d, v%d", vT1, sT, vT1)
    a("v_mul_u32_u24 v%d, 1280, v%d", vT1, vT1)
    a("v_lshrrev_b32 v%d, 4, v%d", vT2, vLane)
    a("v_and_b32 v%d, 7, v%d", vT3, vLane)
    a("v_xor_b32 v%d, v%d, v%d", vT2, vT2, vT3)
    a("v_xor_b32 v%d, 4, v%d", vT3, vT2)
    a("v_lshl_add_u32 v%d, v%d, 4, v%d", vXg + 0, vT2, vT1)
    a("v_lshl_add_u32 v%d, v%d, 4, v%d", vXg + 1, vT3, vT1)
    a("v_add_u32 v%d, %d, v%d", vXg + 1, 8 * 1280 - 1024, vXg + 1)
    a("v_add_u32 v%d, %d, v%d", vXg + 2, 16 * 1280 - 2048, vXg + 0)
    a("v_add_u32 v%d, %d, v%d", vXg + 3, 16 * 1280 - 2048, vXg + 1)
    a("v_lshrrev_b32 v%d, 4, v%d", vT1, vLane)
    a("v_lshlrev_b32 v%d, 2, v%d", vT2, vT1)
    a("v_and_b32 v%d, 15, v%d", vT3, vLane)
    a("v_xor_b32 v%d, v%d, v%d", vT2, vT2, vT3)
    a("s_lshl_b32 s%d, s%d, 3", sT, sW)
    a("v_add_u32 v%d, s%d, v%d", vT1, sT, vT1)
    a("v_mul_u32_u24 v%d, 3840, v%d", vT1, vT1)
    a("v_lshl_add_u32 v%d, v%d, 4, v%d", vWg + 0, vT2, vT1)
    a("v_add_u32 v%d, %d, v%d", vWg + 1, 4 * 3840 - 1024, vWg + 0)
    a("s_mul_i32 s%d, s%d, 24576", sM0x, sWM)
    a("s_lshl_b32 s%d, s%d, 12", sT, sWN)
    a("s_add_u32 s%d, s%d, s%d", sM0x, sM0x, sT)
    a("s_lshl_b32 s%d, s%d, 11", sM0w, sW)
    a("s_add_u32 s%d, s%d, %d", sM0w, sM0w, WBASE)
    a("s_waitcnt lgkmcnt(0)")
    a("s_mul_i32 s%d, s%d, %d", sT, sMT, 256 * 1280)
    a("s_add_u32 s%d, s4, s%d", XS, sT)
    a("s_addc_u32 s%d, s5, 0", XS + 1)
    a("s_mov_b32 s%d, %d", sXrec, 256 * 1280)
    a("s_mov_b32 s%d, s%d", XS + 2, sXrec)
    a("s_mov_b32 s%d, 0x20000", XS + 3)
    a("s_lshl_b32 s%d, s%d, 8", sT, sNT)
    a("s_add_u32 s%d, s6, s%d", WSRD, sT)
    a("s_addc_u32 s%d, s7, 0", WSRD + 1)
    a("s_sub_u32 s%d, %d, s%d", sWrec, 640 * 3840, sT)
    a("s_mov_b32 s%d, s%d", WSRD + 2, sWrec)
    a("s_mov_b32 s%d, 0x20000", WSRD + 3)
    a("s_mov_b32 s%d, %d", OS + 2, WS_USED)
    a("s_mov_b32 s%d, 0x20000", OS + 3)
    a("s_mov_b32 s%d, 0", sXoff)
    a("s_mov_b32 s%d, 0", sWoff)

    def dma(slot_x, slot_w):
        a("s_add_u32 m0, s%d, %s", sM0x, slot_x)
        a("s_nop 0")
        for i in range(4):
            a("buffer_load_dwordx4 v%d, s[%d:%d], s%d offen offset:%d lds", vXg + i, XS, XS + 3, sXoff, 1024 * i)
        a("s_add_u32 m0, s%d, %s", sM0w, slot_w)
        a("s_add_u32 s%d, s%d, 128", sXoff, sXoff)
        for i in range(2):
            a("buffer_load_dwordx4 v%d, s[%d:%d], s%d offen offset:%d lds", vWg + i, WSRD, WSRD + 3, sWoff, 1024 * i)
        a("s_add_u32 s%d, s%d, %d", sWoff, sWoff, 64 * 3840)
    for s in range(3):
        dma(str(s * 8192), str(s * 16384))
    a("v_bfe_u32 v%d, v%d, 1, 3", vT1, vM)
    a("v_xor_b32 v%d, v%d, v%d", vT1, vT1, vH)
    a("s_mul_i32 s%d, s%d, 24576", sT, sWM)
    a("v_lshl_add_u32 v%d, v%d, 7, s%d", vT2, vM, sT)
    for ks in range(4):
        a("v_xor_b32 v%d, %d, v%d", vT3, 2 * ks, vT1)
        a("v_lshl_add_u32 v%d, v%d, 4, v%d", vXa + ks, vT3, vT2)
    a("v_bfe_u32 v%d, v%d, 2, 2", vT1, vLane)
    a("v_lshl_add_u32 v%d, v%d, 3, v%d", vT2, vH, vT1)
    a("v_lshlrev_b32 v%d, 8, v%d", vT2, vT2)
    a("v_add_u32 v%d, %d, v%d", vT2, WBASE, vT2)
    a("v_and_b32 v%d, 16, v%d", vT3, vLane)
    a("v_lshl_add_u32 v%d, v%d, 1, v%d", vT2, vT3, vT2)
    a("v_and_b32 v%d, 1, v%d", vT3, vLane)
    a("v_lshl_add_u32 v%d, v%d, 4, v%d", vT2, vT3, vT2)
    a("v_and_b32 v%d, 2, v%d", vT3, vLane)
    a("v_lshl_add_u32 v%d, v%d, 2, v%d", vT2, vT3, vT2)
    a("s_lshl_b32 s%d, s%d, 1", sT, sWN)
    a("v_xor_b32 v%d, s%d, v%d", vT1, sT, vT1)
    a("v_lshl_add_u32 v%d, v%d, 6, v%d", vWa + 0, vT1, vT2)
    a("v_xor_b32 v%d, 1, v%d", vT1, vT1)
    a("v_lshl_add_u32 v%d, v%d, 6, v%d", vWa + 1, vT1, vT2)
    for i in range(64):
        a("v_mov_b32 v%d, 0", ACC + i)
    a("s_mov_b32 s%d, 0", sIt)
    a("s_mov_b32 s%d, 0", sSlot)

    def reads(fb, ks):
        f = F + 16 * fb
        a("ds_read_b128 %s, v%d", vr(f, 4), vXa + ks)
        a("ds_read_b64_tr_b16 %s, v%d offset:%d", vr(f + 8, 2), vWa, ks * 4096)
        a("ds_read_b64_tr_b16 %s, v%d offset:%d", vr(f + 10, 2), vWa, ks * 4096 + 1024)
        a("ds_read_b128 %s, v%d offset:4096", vr(f + 4, 4), vXa + ks)
        a("ds_read_b64_tr_b16 %s, v%d offset:%d", vr(f + 12, 2), vWa + 1, ks * 4096)
        a("ds_read_b64_tr_b16 %s, v%d offset:%d", vr(f + 14, 2), vWa + 1, ks * 4096 + 1024)
    def mfmas(fb, isv):
        f = F + 16 * fb
        for (ft, tt) in ((0, 0), (0, 1), (1, 0), (1, 1)):
            d = ACC + 16 * (2 * ft + tt)
            x, w = vr(f + 4 * tt, 4), vr(f + 8 + 4 * ft, 4)
            if isv: a("v_mfma_f32_32x32x16_bf16 %s, %s, %s, %s", vr(d, 16), x, w, vr(d, 16))
            else:   a("v_mfma_f32_32x32x16_bf16 %s, %s, %s, %s", vr(d, 16), w, x, vr(d, 16))
    a("s_waitcnt vmcnt(12)")
    a("s_barrier")
    reads(0, 0)
    a("s_cmp_ge_u32 s%d, 10", sNT)
    a("s_cbranch_scc1 L_qkv_vloop")
    for isv in (False, True):
        L = "L_qkv_vloop" if isv else "L_qkv_qkloop"
        a.label(L)
        reads(1, 1); a("s_waitcnt lgkmcnt(6)"); mfmas(0, isv)
        reads(0, 2); a("s_waitcnt lgkmcnt(6)"); mfmas(1, isv)
        reads(1, 3); a("s_waitcnt lgkmcnt(6)"); mfmas(0, isv)
        a("s_cmp_lt_u32 s%d, 7", sIt)
        a("s_cselect_b32 s%d, s%d, 0", XS + 2, sXrec)
        a("s_cselect_b32 s%d, s%d, 0", WSRD + 2, sWrec)
        a("s_lshl_b32 s%d, s%d, 13", sT, sSlot)
        a("s_lshl_b32 s%d, s%d, 14", sT2, sSlot)
        a("s_cmp_eq_u32 s%d, 2", sSlot)
        a("s_cselect_b32 s%d, -2, 1", sDX)
        a("s_add_u32 s%d, s%d, s%d", sSlot, sSlot, sDX)
        a("s_lshl_b32 s%d, s%d, 14", sDW, sDX)
        a("s_lshl_b32 s%d, s%d, 13", sDX, sDX)
        for ks in range(4): a("v_add_u32 v%d, s%d, v%d", vXa + ks, sDX, vXa + ks)
        for ft in range(2): a("v_add_u32 v%d, s%d, v%d", vWa + ft, sDW, vWa + ft)
        a("s_waitcnt vmcnt(6) lgkmcnt(0)")
        a("s_barrier")
        reads(0, 0)
        dma("s%d" % sT, "s%d" % sT2)
        mfmas(1, isv)
        a("s_add_u32 s%d, s%d, 1", sIt, sIt)
        a("s_cmp_lt_u32 s%d, 10", sIt)
        a("s_cbranch_scc1 %s", L)
        vA = 5
        if not isv:
            a("s_lshl_b32 s%d, s%d, 4", sT, sNT)
            a("s_lshl_b32 s%d, s%d, 3", sT2, sWN)
            a("s_add_u32 s%d, s%d, s%d", sT, sT, sT2)
            a("s_mul_i32 s%d, s%d, %d", sT, sT, PS)
            a("s_mul_i32 s%d, s%d, %d", sT2, sB, QK_BYTES)
            a("s_add_u32 s%d, s%d, s%d", sT, sT, sT2)
            a("s_lshl_b32 s%d, s%d, 12", sT2, sMT)
            a("s_add_u32 s%d, s%d, s%d", sT, sT, sT2)
            a("s_lshl_b32 s%d, s%d, 10", sT2, sWM)
            a("s_add_u32 s%d, s%d, s%d", sT, sT, sT2)
            a("v_mul_u32_u24 v%d, %d, v%d", vA, PS, vH)
            a("v_lshl_add_u32 v%d, v%d, 4, v%d", vA, vM, vA)
            a("s_cmp_lt_u32 s%d, 5", sNT)
            a("s_cselect_b32 s%d, 0x%x, 1.0", sScale, f32bits(CSCALE))
            a("s_waitcnt lgkmcnt(0)")
            a("s_nop 7")
            for ft in range(2):
                for tt in range(2):
                    d = ACC + 16 * (2 * ft + tt)
                    o = F + 8 * (2 * ft + tt)
                    for i in range(16): a("v_mul_f32 v%d, s%d, v%d", d + i, sScale, d + i)
                    for i in range(8): a("v_cvt_pk_bf16_f32 v%d, v%d, v%d", o + i, d + 2 * i, d + 2 * i + 1)
                    for s in range(2):
                        a("s_add_u32 s%d, s%d, %d", sT2, sT, QK_OFF + (ft * 4 + 2 * s) * PS)
                        a("buffer_store_dwordx4 %s, v%d, s[%d:%d], s%d offen offset:%d", vr(o + 4 * s, 4), vA, OS, OS + 3, sT2, tt * 512)
            a("s_endpgm")
        else:
            swap23(a, vT1, vM, vT2, vT3)
            a("s_sub_u32 s%d, s%d, 10", sT, sNT)
            a("s_lshl_b32 s%d, s%d, 7", sT, sT)
            a("s_lshl_b32 s%d, s%d, 6", sT2, sWN)
            a("s_add_u32 s%d, s%d, s%d", sT, sT, sT2)
            a("v_add_u32 v%d, s%d, v%d", vT1, sT, vT1)
            for ft in range(2):
                if ft: a("v_add_u32 v%d, 32, v%d", vT1, vT1)
                a("v_mul_u32_u24 v%d, 3277, v%d", vT2, vT1)
                a("v_lshrrev_b32 v%d, 16, v%d", vT2, vT2)
                a("v_mul_u32_u24 v%d, %d, v%d", vT2, V_HEAD - 20 * 16, vT2)
                a("v_lshl_add_u32 v%d, v%d, 4, v%d", vT2, vT1, vT2)
                a("v_mul_u32_u24 v%d, 320, v%d", vT3, vH)
                a("v_add_u32 v%d, v%d, v%d", vA + ft, vT2, vT3)
            a("s_lshl_b32 s%d, s%d, 4", sT, sMT)
            a("s_lshl_b32 s%d, s%d, 2", sT2, sWM)
            a("s_add_u32 s%d, s%d, s%d", sT, sT, sT2)
            a("s_mul_i32 s%d, s%d, 640", sT, sT)
            a("s_mul_i32 s%d, s%d, %d", sT2, sB, V_BYTES)
            a("s_add_u32 s%d, s%d, s%d", sT, sT, sT2)
            a("s_add_u32 s%d, s%d, %d", sT, sT, V_OFF)
            a("s_waitcnt lgkmcnt(0)")
            for ft in range(2):
                for tt in range(2):
                    d = ACC + 16 * (2 * ft + tt)
                    o = F + 8 * (2 * ft + tt)
                    for i in range(8): a("v_cvt_pk_bf16_f32 v%d, v%d, v%d", o + i, d + 2 * i, d + 2 * i + 1)
                    for s in range(2):
                        a("buffer_store_dwordx4 %s, v%d, s[%d:%d], s%d offen offset:%d", vr(o + 4 * s, 4), vA + ft, OS, OS + 3, sT, (tt * 2 + s) * 640)
    a.label("L_qkv_end")
    a("s_endpgm")
    return name, 116, 147456

def gen_attn(a):
    name = "attn_kernel"
    kernel_head(a, name)
    WS = 8
    sW, sKH, sQG, sH, sB, sQB, sOdd, sT, sT2 = 12, 13, 14, 15, 16, 17, 18, 19, 20
    sK, sV, sKend, sO = 21, 22, 23, 24
    sMask, sMaskLo = 26, 28
    sC = 30
    sC2 = 32
    sRet = 34
    vLane, vM, vH, vT1, vT2, vT3 = 1, 2, 3, 4, 5, 6
    vQm, vQr, vKm, vKr, vV, vIdx = 7, 8, 9, 10, 11, 12
    vL = 13
    Qm, Qr, Km, Kr, V, S, O = 16, 32, 40, 56, 64, 96, 160
    NFV = 224
    a("s_cmp_ge_u32 s2, 256")
    a("s_cbranch_scc1 L_attn_end")
    a("s_load_dwordx2 s[%d:%d], s[0:1], 64", WS, WS + 1)
    a("v_lshrrev_b32 v%d, 6, v0", vT1)
    a("v_and_b32 v%d, 63, v0", vLane)
    a("v_readfirstlane_b32 s%d, v%d", sW, vT1)
    a("v_and_b32 v%d, 31, v0", vM)
    a("v_bfe_u32 v%d, v0, 5, 1", vH)
    a("s_and_b32 s%d, s2, 7", sT)
    a("s_lshl_b32 s%d, s%d, 3", sT, sT)
    a("s_lshr_b32 s%d, s2, 5", sT2)
    a("s_or_b32 s%d, s%d, s%d", sT, sT, sT2)
    a("s_lshr_b32 s%d, s%d, 5", sB, sT)
    a("s_and_b32 s%d, s%d, 31", sH, sT)
    a("s_bfe_u32 s%d, s2, 0x20003", sQB)
    a("s_and_b32 s%d, s%d, 1", sOdd, sH)
    a("s_lshr_b32 s%d, s%d, 2", sKH, sW)
    a("s_and_b32 s%d, s%d, 3", sQG, sW)
    a("s_mov_b32 s%d, %d", WS + 2, WS_USED)
    a("s_mov_b32 s%d, 0x20000", WS + 3)
    a("s_mov_b32 s%d, 0xfffff", sMask)
    a("s_mov_b32 s%d, 0xfffff", sMask + 1)
    a("s_mov_b32 s%d, -1", sMaskLo)
    a("s_mov_b32 s%d, 0", sMaskLo + 1)
    a("s_lshr_b32 s%d, s%d, 1", sT, sH)
    a("s_mul_i32 s%d, s%d, 5", sT, sT)
    a("s_mul_i32 s%d, s%d, 3", sT2, sOdd)
    a("s_add_u32 s%d, s%d, s%d", sT2, sT2, sT)
    a("s_add_u32 s%d, s%d, 2", sT, sT)
    a("s_mul_i32 s%d, s%d, %d", sT2, sT2, PS)
    a("s_mul_i32 s%d, s%d, %d", sT, sT, PS)
    a("s_lshl_b32 s%d, s%d, 3", sK, sOdd)
    a("s_add_u32 s%d, s%d, s%d", sT, sT, sK)
    a("v_mul_u32_u24 v%d, %d, v%d", vT1, PS, vH)
    a("v_add_u32 v%d, s%d, v%d", vT1, sT2, vT1)
    a("v_lshl_add_u32 v%d, v%d, 4, v%d", vQm, vM, vT1)
    a("v_lshl_add_u32 v%d, v%d, 4, s%d", vQr, vM, sT)
    swap23(a, vL, vM, vT2, vT3)
    a("v_lshl_add_u32 v%d, v%d, 4, v%d", vKm, vL, vT1)
    a("v_lshl_add_u32 v%d, v%d, 4, s%d", vKr, vL, sT)
    a("s_lshl_b32 s%d, s%d, 2", sT, sOdd)
    a("v_add_u32 v%d, s%d, v%d", vT1, sT, vL)
    a("v_subrev_u32 v%d, 20, v%d", vT2, vT1)
    a("v_min_u32 v%d, v%d, v%d", vT1, vT1, vT2)
    a("v_mul_u32_u24 v%d, 320, v%d", vT2, vH)
    a("v_lshl_add_u32 v%d, v%d, 4, v%d", vV, vT1, vT2)
    a("s_mul_i32 s%d, s%d, %d", sT, sB, QK_BYTES)
    a("s_lshl_b32 s%d, s%d, 14", sK, sKH)
    a("s_add_u32 s%d, s%d, s%d", sK, sK, sT)
    a("s_add_u32 s%d, s%d, %d", sK, sK, QK_OFF + 80 * PS)
    a("s_lshl_b32 s%d, s%d, 13", sT2, sQB)
    a("s_lshl_b32 s%d, s%d, 11", sO, sQG)
    a("s_add_u32 s%d, s%d, s%d", sO, sO, sT2)
    a("s_add_u32 s%d, s%d, s%d", sT, sT, sO)
    a("s_lshl_b32 s%d, s%d, 10", sT2, sKH)
    a("s_add_u32 s%d, s%d, s%d", sO, sO, sT2)
    a("s_add_u32 s%d, s%d, s%d", sC, sT, sT2)
    a("s_xor_b32 s%d, s%d, 1024", sT2, sT2)
    a("s_add_u32 s%d, s%d, s%d", sC + 1, sT, sT2)
    a("s_mul_i32 s%d, s%d, %d", sT, sB, O_BYTES)
    a("s_add_u32 s%d, s%d, s%d", sO, sO, sT)
    a("s_add_u32 s%d, s%d, %d", sO, sO, O_OFF)
    a("s_mul_i32 s%d, s%d, %d", sV, sB, V_BYTES)
    a("s_mul_i32 s%d, s%d, %d", sT, sH, V_HEAD)
    a("s_add_u32 s%d, s%d, s%d", sV, sV, sT)
    a("s_mul_i32 s%d, s%d, %d", sT, sKH, 64 * 640)
    a("s_add_u32 s%d, s%d, s%d", sV, sV, sT)
    a("s_add_u32 s%d, s%d, %d", sV, sV, V_OFF)
    for i in range(8): a("v_mov_b32 v%d, 0", Qr + i)
    for i in range(32): a("v_mov_b32 v%d, 0x3f803f80", V + i)
    a("s_waitcnt lgkmcnt(0)")
    srd = "s[%d:%d]" % (WS, WS + 3)
    def loadK(buf, off):
        a("buffer_load_dwordx4 %s, v%d, %s, s%d offen offset:%d", vr(Km + 4 * buf, 4), vKm, srd, sK, off)
        a("buffer_load_dwordx2 %s, v%d, %s, s%d offen offset:%d", vr(Kr + 2 * buf, 2), vKr, srd, sK, off)
    def loadV(buf):
        a("s_mov_b64 exec, s[%d:%d]", sMask, sMask + 1)
        a("buffer_load_dwordx4 %s, v%d, %s, s%d offen", vr(V + 8 * buf, 4), vV, srd, sV)
        a("buffer_load_dwordx4 %s, v%d, %s, s%d offen offset:640", vr(V + 8 * buf + 4, 4), vV, srd, sV)
        a("s_mov_b64 exec, -1")
        a("s_add_u32 s%d, s%d, 1280", sV, sV)
    loadK(0, 0)
    for j in range(4):
        a("buffer_load_dwordx4 %s, v%d, %s, s%d offen offset:%d", vr(Qm + 4 * j, 4), vQm, srd, sC + j // 2, (j % 2) * 512)
    a("s_mov_b64 exec, s[%d:%d]", sMaskLo, sMaskLo + 1)
    for j in range(4):
        a("buffer_load_dwordx2 %s, v%d, %s, s%d offen offset:%d", vr(Qr + 2 * j, 2), vQr, srd, sC + j // 2, (j % 2) * 512)
    loadV(0); loadK(1, 512); loadV(1); loadK(2, 1024); loadV(2); loadK(3, 1536)
    a("s_add_u32 s%d, s%d, 2048", sK, sK)
    a("s_add_u32 s%d, s%d, %d", sKend, sK, 8 * 2048)
    a("v_mov_b32 v%d, 0xdddddddd", vIdx)
    for i in range(64): a("v_mov_b32 v%d, 0", O + i)
    for i in range(16): a("v_mov_b32 v%d, 0", S + 48 + i)
    def qk1(j, kb): a("v_mfma_f32_32x32x16_bf16 %s, %s, %s, 0", vr(S + 16 * j, 16), vr(Km + 4 * kb, 4), vr(Qm + 4 * j, 4))
    def qk2(j, kb): a("v_mfma_f32_32x32x8_bf16 %s, %s, %s, %s", vr(S + 16 * j, 16), vr(Kr + 2 * kb, 2), vr(Qr + 2 * j, 2), vr(S + 16 * j, 16))
    def pv(j, vb, half): a("v_smfmac_f32_32x32x32_bf16 %s, %s, %s, v%d", vr(O + 16 * j, 16), vr(V + 8 * vb + 4 * half, 4), vr(S + 16 * j + 8 * half, 8), vIdx)
    def exps(j, q):
        for i in range(4): a("v_exp_f32 v%d, v%d", S + 16 * j + 4 * q + i, S + 16 * j + 4 * q + i)
    a("s_waitcnt vmcnt(12)")
    qk1(0, 0); qk2(0, 0); qk1(1, 0); qk2(1, 0)
    a("s_nop 9")
    a.raw(".p2align 6")
    a.label("L_attn_loop")
    for tt in range(4):
        for j in range(4):
            pj, pvb = ((3, (tt - 1) % 4) if j == 0 else (j - 1, tt))
            nj, nkb = (j + 2) % 4, (tt if j < 2 else (tt + 1) % 4)
            if j == 1: a("s_waitcnt vmcnt(8)")
            pv(pj, pvb, 0)
            exps(j, 0)
            if j == 1: loadV((tt + 3) % 4)
            if j == 2: loadK(tt, tt * 512)
            pv(pj, pvb, 1)
            exps(j, 1)
            qk1(nj, nkb)
            exps(j, 2)
            qk2(nj, nkb)
            if tt == 3 and j == 3:
                a("s_add_u32 s%d, s%d, 2048", sK, sK)
                a("s_cmp_lt_u32 s%d, s%d", sK, sKend)
            exps(j, 3)
    a("s_cbranch_scc1 L_attn_loop")
    a("s_nop 1")
    pv(3, 3, 0); pv(3, 3, 1)
    a("s_lshl_b32 s%d, s%d, 13", sT, sW)
    a("v_lshl_add_u32 v%d, v%d, 4, s%d", vT1, vLane, sT)
    a("s_xor_b32 s%d, s%d, %d", sT, sT, 4 << 13)
    a("v_lshl_add_u32 v%d, v%d, 4, s%d", vT2, vLane, sT)
    for q in range(4): a("ds_write_b128 v%d, %s offset:%d", vT1, vr(O + 32 + 4 * q, 4), q * 1024)
    a("s_nop 7")
    for q in range(4): a("ds_write_b128 v%d, %s offset:%d", vT1, vr(O + 48 + 4 * q, 4), 4096 + q * 1024)
    a("s_waitcnt vmcnt(0) lgkmcnt(0)")
    a("s_barrier")
    for q in range(8): a("ds_read_b128 %s, v%d offset:%d", vr(S + 4 * q, 4), vT2, q * 1024)
    a("s_waitcnt lgkmcnt(0)")
    for j in range(2):
        for i in range(13): a("v_add_f32 v%d, v%d, v%d", O + 16 * j + i, O + 16 * j + i, S + 16 * j + i)
    a("v_min_f32 v%d, v%d, v%d", vT1, O + 12, O + 28)
    a("v_max_f32 v%d, v%d, v%d", vT2, O + 12, O + 28)
    a("v_mov_b32 v%d, 0", vT3)
    for j in range(2):
        for i in range(13): a("v_fmac_f32 v%d, 0, v%d", vT3, O + 16 * j + i)
    a("s_mov_b32 s%d, 0x%x", sT, f32bits(2.0 ** -30))
    a("s_mov_b32 s%d, 0x%x", sT2, f32bits(2.0 ** 60))
    a("v_cmp_le_f32 s[%d:%d], s%d, v%d", sC, sC + 1, sT, vT1)
    a("v_cmp_ge_f32 s[%d:%d], s%d, v%d", sC2, sC2 + 1, sT2, vT2)
    a("v_cmp_eq_f32 vcc, 0, v%d", vT3)
    a("s_nop 3")
    a("s_and_b64 s[%d:%d], s[%d:%d], s[%d:%d]", sC, sC + 1, sC, sC + 1, sC2, sC2 + 1)
    a("s_and_b64 s[%d:%d], s[%d:%d], vcc", sC, sC + 1, sC, sC + 1)
    a("s_cmp_eq_u64 s[%d:%d], -1", sC, sC + 1)
    a("s_cbranch_scc0 L_attn_slow")
    a.label("L_attn_fin")
    for j in range(2):
        a("v_rcp_f32 v%d, v%d", vT1 + j, O + 16 * j + 12)
    a("s_nop 0")
    for j in range(2):
        for i in range(12): a("v_mul_f32 v%d, v%d, v%d", O + 16 * j + i, O + 16 * j + i, vT1 + j)
        for i in range(6): a("v_cvt_pk_bf16_f32 v%d, v%d, v%d", S + 8 * j + i, O + 16 * j + 2 * i, O + 16 * j + 2 * i + 1)
        a("buffer_store_dwordx4 %s, v%d, %s, s%d offen offset:%d", vr(S + 8 * j, 4), vQm, srd, sO, j * 512)
    a("s_mov_b64 exec, s[%d:%d]", sMaskLo, sMaskLo + 1)
    for j in range(2):
        a("buffer_store_dwordx2 %s, v%d, %s, s%d offen offset:%d", vr(S + 8 * j + 4, 2), vQr, srd, sO, j * 512)
    a.label("L_attn_end")
    a("s_endpgm")
    a.label("L_attn_slow")
    C = S + 32
    MX = O + 32
    a("s_mul_i32 s%d, s%d, %d", sT, sB, QK_BYTES)
    a("s_add_u32 s%d, s%d, %d", sT, sT, QK_OFF + 80 * PS)
    a("s_mov_b32 s%d, s%d", sK, sT)
    a("s_add_u32 s%d, s%d, %d", sKend, sK, 64 * 512)
    a("v_mov_b32 v%d, 0xff800000", MX)
    a("v_mov_b32 v%d, 0xff800000", MX + 1)
    a.label("L_attn_slow1")
    loadK(0, 0)
    a("s_waitcnt vmcnt(0)")
    qk1(0, 0); qk2(0, 0); qk1(1, 0); qk2(1, 0)
    a("s_nop 15")
    for j in range(2):
        for i in range(8): a("v_max3_f32 v%d, v%d, v%d, v%d", MX + j, MX + j, S + 16 * j + 2 * i, S + 16 * j + 2 * i + 1)
    a("s_add_u32 s%d, s%d, 512", sK, sK)
    a("s_cmp_lt_u32 s%d, s%d", sK, sKend)
    a("s_cbranch_scc1 L_attn_slow1")
    for j in range(2):
        a("v_mov_b32 v%d, v%d", vT1, MX + j)
        a("s_nop 1")
        a("v_permlane32_swap_b32 v%d, v%d", vT1, MX + j)
        a("s_nop 1")
        a("v_max_f32 v%d, v%d, v%d", vT1, vT1, MX + j)
        for i in range(16): a("v_sub_f32 v%d, 0, v%d", C + 16 * j + i, vT1)
    for i in range(32): a("v_mov_b32 v%d, 0", O + i)
    a("s_mov_b32 s%d, s%d", sK, sT)
    a("s_mul_i32 s%d, s%d, %d", sV, sB, V_BYTES)
    a("s_mul_i32 s%d, s%d, %d", sT2, sH, V_HEAD)
    a("s_add_u32 s%d, s%d, s%d", sV, sV, sT2)
    a("s_add_u32 s%d, s%d, %d", sV, sV, V_OFF)
    a.label("L_attn_slow2")
    loadK(0, 0); loadV(0)
    a("s_waitcnt vmcnt(0)")
    for j in range(2):
        a("v_mfma_f32_32x32x16_bf16 %s, %s, %s, %s", vr(S + 16 * j, 16), vr(Km, 4), vr(Qm + 4 * j, 4), vr(C + 16 * j, 16))
        qk2(j, 0)
    a("s_nop 15")
    for j in range(2):
        for q in range(4): exps(j, q)
    a("s_nop 1")
    for j in range(2):
        pv(j, 0, 0); pv(j, 0, 1)
    a("s_add_u32 s%d, s%d, 512", sK, sK)
    a("s_cmp_lt_u32 s%d, s%d", sK, sKend)
    a("s_cbranch_scc1 L_attn_slow2")
    a("s_nop 15")
    a("s_branch L_attn_fin")
    return name, NFV, 65536

def gen_oproj(a):
    name = "oproj_kernel"
    kernel_head(a, name)
    WS, WO, OUT = 8, 12, 16
    sW, sB, sMT, sNT, sT, sT2, sOo, sWo = 20, 21, 22, 23, 24, 25, 26, 27
    vLane, vT1, vT2, vT3, vOa, vWa, vSt = 1, 2, 3, 4, 5, 6, 7
    vG = 8
    ACC = 16
    WF = 56
    OF = 96
    a("s_cmp_ge_u32 s2, 256")
    a("s_cbranch_scc1 L_op_end")
    a("s_bfe_u32 s%d, s2, 0x10002", sB)
    a("s_and_b32 s%d, s2, 3", sMT)
    a("s_lshl_b32 s%d, s%d, 2", sMT, sMT)
    a("s_bfe_u32 s%d, s2, 0x20003", sT)
    a("s_or_b32 s%d, s%d, s%d", sMT, sMT, sT)
    a("s_lshr_b32 s%d, s2, 5", sNT)
    a("s_mul_i32 s%d, s%d, 24", sT, sB)
    a("s_add_u32 s%d, s%d, 16", sT, sT)
    a("s_load_dwordx2 s[4:5], s[0:1], s%d", sT)
    a("s_load_dwordx2 s[6:7], s[0:1], 48")
    a("s_load_dwordx2 s[%d:%d], s[0:1], 64", WS, WS + 1)
    a("v_lshrrev_b32 v%d, 6, v0", vT1)
    a("v_and_b32 v%d, 63, v0", vLane)
    a("v_readfirstlane_b32 s%d, v%d", sW, vT1)
    a("v_lshrrev_b32 v%d, 4, v%d", vT1, vLane)
    a("v_mul_u32_u24 v%d, %d, v%d", vT1, PS, vT1)
    a("v_and_b32 v%d, 15, v%d", vT2, vLane)
    a("v_lshl_add_u32 v%d, v%d, 4, v%d", vOa, vT2, vT1)
    a("s_mov_b32 s%d, %d", WS + 2, WS_USED)
    a("s_mov_b32 s%d, 0x20000", WS + 3)
    a("s_mul_i32 s%d, s%d, %d", sOo, sB, O_BYTES)
    a("s_lshl_b32 s%d, s%d, 11", sT, sMT)
    a("s_add_u32 s%d, s%d, s%d", sOo, sOo, sT)
    a("s_lshl_b32 s%d, s%d, 9", sT, sW)
    a("s_add_u32 s%d, s%d, s%d", sOo, sOo, sT)
    a("s_add_u32 s%d, s%d, %d", sOo, sOo, O_OFF)
    for i in range(5):
        a("v_add_u32 v%d, %d, v%d", vT1, 64 * i, vLane)
        a("v_mul_u32_u24 v%d, 6554, v%d", vT2, vT1)
        a("v_lshrrev_b32 v%d, 16, v%d", vT2, vT2)
        a("v_mul_u32_u24 v%d, 10, v%d", vT3, vT2)
        a("v_sub_u32 v%d, v%d, v%d", vT1, vT1, vT3)
        swap23(a, vT2, vT2, vT3, vSt)
        a("v_mul_u32_u24 v%d, 1280, v%d", vT2, vT2)
        a("v_lshl_add_u32 v%d, v%d, 4, v%d", vG + i, vT1, vT2)
    a("s_waitcnt lgkmcnt(0)")
    a("s_mul_i32 s%d, s%d, 160", sT, sNT)
    a("s_add_u32 s%d, s4, s%d", WO, sT)
    a("s_addc_u32 s%d, s5, 0", WO + 1)
    a("s_sub_u32 s%d, %d, s%d", WO + 2, 640 * 1280, sT)
    a("s_mov_b32 s%d, 0x20000", WO + 3)
    a("s_mov_b32 s%d, s6", OUT)
    a("s_mov_b32 s%d, s7", OUT + 1)
    a("s_mov_b32 s%d, %d", OUT + 2, 2048 * 2560)
    a("s_mov_b32 s%d, 0x20000", OUT + 3)
    a("s_mul_i32 s%d, s%d, %d", sWo, sW, 32 * 1280)
    a("s_mul_i32 s%d, s%d, 5120", sT2, sW)
    for g in range(5):
        for i in range(5):
            a("s_add_u32 m0, s%d, %d", sT2, g * 4 * 5120 + i * 1024)
            a("s_nop 0")
            a("buffer_load_dwordx4 v%d, s[%d:%d], s%d offen lds", vG + i, WO, WO + 3, sWo)
        a("s_add_u32 s%d, s%d, %d", sWo, sWo, 4 * 32 * 1280)
        for s in range(4 * g, 4 * g + 4):
            for tt in range(2):
                a("buffer_load_dwordx4 %s, v%d, s[%d:%d], s%d offen offset:%d", vr(OF + 8 * s + 4 * tt, 4), vOa, WS, WS + 3, sOo, tt * 256)
            a("s_add_u32 s%d, s%d, %d", sOo, sOo, 4 * PS)
    a("v_lshrrev_b32 v%d, 5, v%d", vT1, vLane)
    a("v_lshlrev_b32 v%d, 4, v%d", vT1, vT1)
    a("v_bfe_u32 v%d, v%d, 2, 3", vT2, vLane)
    a("v_add_u32 v%d, v%d, v%d", vT1, vT1, vT2)
    a("v_mul_u32_u24 v%d, 160, v%d", vT1, vT1)
    a("v_and_b32 v%d, 3, v%d", vT2, vLane)
    a("v_mul_u32_u24 v%d, 40, v%d", vT2, vT2)
    a("v_add_u32 v%d, v%d, v%d", vWa, vT1, vT2)
    a("v_add_u32 v%d, %d, v%d", vT3, 10 * 5120, vWa)
    a("v_and_b32 v%d, 15, v%d", vT1, vLane)
    a("v_mul_u32_u24 v%d, 2560, v%d", vT1, vT1)
    a("v_lshrrev_b32 v%d, 4, v%d", vT2, vLane)
    a("v_mul_u32_u24 v%d, 40, v%d", vT2, vT2)
    a("v_add_u32 v%d, v%d, v%d", vSt, vT1, vT2)
    for i in range(40): a("v_mov_b32 v%d, 0", ACC + i)
    def reads(s):
        fb = s % 2
        base = vWa if s < 10 else vT3
        so = (s % 10) * 5120
        for j in range(5):
            for q in range(2):
                a("ds_read_b64_tr_b16 %s, v%d offset:%d", vr(WF + 20 * fb + 4 * j + 2 * q, 2), base, so + q * 8 * 160 + 8 * j)
    def mf(s):
        fb = s % 2
        for j in range(5):
            for tt in range(2):
                d = ACC + 4 * (5 * tt + j)
                a("v_mfma_f32_16x16x32_bf16 %s, %s, %s, %s", vr(d, 4), vr(WF + 20 * fb + 4 * j, 4), vr(OF + 8 * s + 4 * tt, 4), vr(d, 4))
    for s in range(20):
        if s % 4 == 0:
            g = s // 4
            a("s_waitcnt vmcnt(%d)", 13 * (4 - g))
            a("s_barrier")
            reads(s)
        if s % 4 != 3:
            reads(s + 1)
            a("s_waitcnt lgkmcnt(10)")
        else:
            a("s_waitcnt lgkmcnt(0)")
        mf(s)
    a("s_lshl_b32 s%d, s%d, 7", sT, sMT)
    a("s_lshl_b32 s%d, s%d, 5", sT2, sW)
    a("s_add_u32 s%d, s%d, s%d", sT, sT, sT2)
    a("s_mul_i32 s%d, s%d, 2560", sT, sT)
    a("s_mul_i32 s%d, s%d, 1280", sT2, sB)
    a("s_add_u32 s%d, s%d, s%d", sT, sT, sT2)
    a("s_mul_i32 s%d, s%d, 160", sT2, sNT)
    a("s_add_u32 s%d, s%d, s%d", sT, sT, sT2)
    a("s_nop 3")
    for tt in range(2):
        o = WF + 12 * tt
        for i in range(10): a("v_cvt_pk_bf16_f32 v%d, v%d, v%d", o + i, ACC + 20 * tt + 2 * i, ACC + 20 * tt + 2 * i + 1)
        a("buffer_store_dwordx4 %s, v%d, s[%d:%d], s%d offen", vr(o, 4), vSt, OUT, OUT + 3, sT)
        a("buffer_store_dwordx4 %s, v%d, s[%d:%d], s%d offen offset:16", vr(o + 4, 4), vSt, OUT, OUT + 3, sT)
        a("buffer_store_dwordx2 %s, v%d, s[%d:%d], s%d offen offset:32", vr(o + 8, 2), vSt, OUT, OUT + 3, sT)
        a("s_add_u32 s%d, s%d, %d", sT, sT, 16 * 2560)
    a.label("L_op_end")
    a("s_endpgm")
    return name, 256, 102400

def main(out):
    a = A()
    ks = []
    for g, blk in ((gen_qkv, 512), (gen_attn, 512), (gen_oproj, 256)):
        n, nfv, lds = g(a)
        ks.append((n, nfv, lds, blk))
    hdr = "; Two independent MHA blocks (S=2048, D=640, H=32, Dh=20), concatenated on the last axis.\n"
    hdr += "; kernarg: 0 A_x, 8 A_wqkv, 16 A_wo, 24 B_x, 32 B_wqkv, 40 B_wo, 48 out, 56 debug, 64 ws\n"
    for n, nfv, lds, blk in ks:
        hdr += "; @launch kernel=%s grid=(256,1,1) block=(%d,1,1) lds=%d\n" % (n, blk, lds)
    s = hdr + '.amdgcn_target "amdgcn-amd-amdhsa--gfx950"\n.text\n' + a.text()
    s += '.section .rodata,"a"\n'
    for n, nfv, lds, blk in ks: s += kd(n, nfv)
    open(out, "w").write(s)

if __name__ == "__main__":
    main(sys.argv[1] if len(sys.argv) > 1 else "cdna_kernels/%s.s" % NAME)
```

```python
import math, struct, sys

NAME = "concat_heads__mha_block__softmax_full_mha__prompt"
PS = 32768 + 512
QK_BYTES = 160 * PS
V_HEAD = 128 * 640
V_BYTES = 32 * V_HEAD + 8192
O_BYTES = 80 * PS
QK_OFF = 0
V_OFF = QK_OFF + 2 * QK_BYTES
O_OFF = V_OFF + 2 * V_BYTES
WS_USED = O_OFF + 2 * O_BYTES + 65536
CSCALE = math.log2(math.e) / math.sqrt(20.0)

def f32bits(x): return struct.unpack("<I", struct.pack("<f", x))[0]

class A:
    def __init__(self): self.l = []
    def __call__(self, s, *a):
        self.l.append("    " + (s % a if a else s))
    def label(self, s): self.l.append(s + ":")
    def raw(self, s): self.l.append(s)
    def c(self, s): self.l.append("    ; " + s)
    def text(self): return "\n".join(self.l) + "\n"

def vr(b, n): return "v[%d:%d]" % (b, b + n - 1) if n > 1 else "v%d" % b
def sr(b, n): return "s[%d:%d]" % (b, b + n - 1) if n > 1 else "s%d" % b

def kernel_head(a, name):
    a.raw(".globl %s" % name)
    a.raw(".p2align 8")
    a.raw(".type %s,@function" % name)
    a.label(name)

def kd(name, nfv, nsg=100):
    acc = (nfv + 3) // 4 * 4
    return """.p2align 6
.amdhsa_kernel %s
  .amdhsa_next_free_vgpr %d
  .amdhsa_next_free_sgpr %d
  .amdhsa_accum_offset %d
  .amdhsa_group_segment_fixed_size 0
  .amdhsa_kernarg_size 72
  .amdhsa_user_sgpr_count 2
  .amdhsa_user_sgpr_kernarg_segment_ptr 1
  .amdhsa_system_sgpr_workgroup_id_x 1
.end_amdhsa_kernel
""" % (name, nfv, nsg, acc)

import os
DIAG = int(os.environ.get("DIAG", "0"))
DIAG_OFF = 64 << 20
PF = int(os.environ.get("PF", "0"))
QV = int(os.environ.get("QV", "0"))
AV = int(os.environ.get("AV", "0"))
class Stamps:
    def __init__(self, a, kidx):
        self.a, self.k, self.n = a, kidx, 0
        if DIAG:
            a("s_memrealtime s[60:61]")
            a("s_mov_b32 s59, s2")
            a("v_mov_b32 v255, v0") if False else None
    def stamp(self, idx=None):
        if not DIAG: return
        i = self.n if idx is None else idx
        if idx is None: self.n += 1
        self.a("s_memtime s[%d:%d]", 64 + 2 * i, 65 + 2 * i)
    def flush(self, swave, vtmp, nst):
        if not DIAG: return
        a = self.a
        a("s_mov_b64 exec, -1")
        a("s_waitcnt vmcnt(0)")
        a("s_memtime s[%d:%d]", 64 + 2 * nst, 65 + 2 * nst)
        a("s_memrealtime s[62:63]")
        a("s_load_dwordx2 s[56:57], s[0:1], 64")
        a("s_lshl_b32 s58, s59, 4")
        a("s_add_u32 s58, s58, s%d", swave)
        a("s_lshl_b32 s58, s58, 7")
        a("s_add_u32 s58, s58, %d", DIAG_OFF + (self.k << 20))
        a("v_mov_b32 v%d, s58", vtmp)
        a("s_waitcnt lgkmcnt(0)")
        for i in range(nst + 3):
            a("v_mov_b32 v%d, s%d", vtmp + 1, 60 + 2 * i)
            a("global_store_dword v%d, v%d, s[56:57] offset:%d", vtmp, vtmp + 1, 4 * i)
        a("s_waitcnt vmcnt(0)")

def swap23(a, dst, src, t1, t2):
    a("v_and_b32 v%d, 4, v%d", t1, src)
    a("v_lshlrev_b32 v%d, 1, v%d", t1, t1)
    a("v_and_b32 v%d, 8, v%d", t2, src)
    a("v_lshrrev_b32 v%d, 1, v%d", t2, t2)
    a("v_and_b32 v%d, 0x13, v%d", dst, src)
    a("v_or3_b32 v%d, v%d, v%d, v%d", dst, dst, t1, t2)

def gen_qkv(a):
    name = "qkv_kernel"
    kernel_head(a, name)
    XS, WSRD, OS = 8, 12, 16
    sB, sMT, sNT, sW, sWM, sWN = 20, 21, 22, 23, 24, 25
    sXoff, sWoff, sM0x, sM0w, sIt, sT, sT2 = 26, 27, 28, 29, 30, 31, 32
    sXrec, sWrec, sDX, sDW, sSlot, sScale = 33, 34, 35, 36, 37, 38
    WBASE = 98304
    a("s_cmp_ge_u32 s2, 256")
    a("s_cbranch_scc1 L_qkv_end")
    a("s_and_b32 s%d, s2, 7", sT)
    a("s_lshr_b32 s%d, s2, 3", sT2)
    a("s_lshr_b32 s%d, s%d, 2", sB, sT)
    a("s_bfe_u32 s%d, s%d, 0x10001", sMT, sT)
    a("s_lshl_b32 s%d, s%d, 2", sMT, sMT)
    a("s_and_b32 s%d, s%d, 3", sW, sT2)
    a("s_or_b32 s%d, s%d, s%d", sMT, sMT, sW)
    a("s_and_b32 s%d, s%d, 1", sNT, sT)
    a("s_lshl_b32 s%d, s%d, 3", sNT, sNT)
    a("s_lshr_b32 s%d, s%d, 2", sT2, sT2)
    a("s_or_b32 s%d, s%d, s%d", sNT, sNT, sT2)
    if not PF:
        a("s_cmp_ge_u32 s%d, 15", sNT)
        a("s_cbranch_scc1 L_qkv_end")
    st = Stamps(a, 0); st.stamp()
    a("s_mul_i32 s%d, s%d, 24", sT, sB)
    a("s_load_dwordx4 s[4:7], s[0:1], s%d", sT)
    a("s_load_dwordx2 s[%d:%d], s[0:1], 64", OS, OS + 1)
    vLane, vT1, vT2, vT3 = 1, 2, 3, 4
    vXg = 5
    vWg = 9
    vXa = 11
    vWa = 15
    vM, vH = 17, 18
    F = 20
    ACC = 52
    a("v_lshrrev_b32 v%d, 6, v0", vT1)
    a("v_and_b32 v%d, 63, v0", vLane)
    a("v_readfirstlane_b32 s%d, v%d", sW, vT1)
    a("v_and_b32 v%d, 31, v0", vM)
    a("v_bfe_u32 v%d, v0, 5, 1", vH)
    a("s_lshr_b32 s%d, s%d, 1", sWM, sW)
    a("s_and_b32 s%d, s%d, 1", sWN, sW)
    a("v_lshrrev_b32 v%d, 3, v%d", vT1, vLane)
    a("s_lshl_b32 s%d, s%d, 5", sT, sW)
    a("v_add_u32 v%d, s%d, v%d", vT1, sT, vT1)
    a("v_mul_u32_u24 v%d, 1280, v%d", vT1, vT1)
    a("v_lshrrev_b32 v%d, 4, v%d", vT2, vLane)
    a("v_and_b32 v%d, 7, v%d", vT3, vLane)
    a("v_xor_b32 v%d, v%d, v%d", vT2, vT2, vT3)
    a("v_xor_b32 v%d, 4, v%d", vT3, vT2)
    a("v_lshl_add_u32 v%d, v%d, 4, v%d", vXg + 0, vT2, vT1)
    a("v_lshl_add_u32 v%d, v%d, 4, v%d", vXg + 1, vT3, vT1)
    a("v_add_u32 v%d, %d, v%d", vXg + 1, 8 * 1280 - 1024, vXg + 1)
    a("v_add_u32 v%d, %d, v%d", vXg + 2, 16 * 1280 - 2048, vXg + 0)
    a("v_add_u32 v%d, %d, v%d", vXg + 3, 16 * 1280 - 2048, vXg + 1)
    a("v_lshrrev_b32 v%d, 4, v%d", vT1, vLane)
    a("v_lshlrev_b32 v%d, 2, v%d", vT2, vT1)
    a("v_and_b32 v%d, 15, v%d", vT3, vLane)
    a("v_xor_b32 v%d, v%d, v%d", vT2, vT2, vT3)
    a("s_lshl_b32 s%d, s%d, 3", sT, sW)
    a("v_add_u32 v%d, s%d, v%d", vT1, sT, vT1)
    a("v_mul_u32_u24 v%d, 3840, v%d", vT1, vT1)
    a("v_lshl_add_u32 v%d, v%d, 4, v%d", vWg + 0, vT2, vT1)
    a("v_add_u32 v%d, %d, v%d", vWg + 1, 4 * 3840 - 1024, vWg + 0)
    a("s_mul_i32 s%d, s%d, 24576", sM0x, sWM)
    a("s_lshl_b32 s%d, s%d, 12", sT, sWN)
    a("s_add_u32 s%d, s%d, s%d", sM0x, sM0x, sT)
    a("s_lshl_b32 s%d, s%d, 11", sM0w, sW)
    a("s_add_u32 s%d, s%d, %d", sM0w, sM0w, WBASE)
    a("s_waitcnt lgkmcnt(0)")
    if PF:
        PX, PW = 40, 44
        a("s_lshr_b32 s%d, s%d, 2", sT, sMT)
        a("s_mul_i32 s%d, s%d, %d", sT, sT, 1024 * 1280)
        a("s_add_u32 s%d, s4, s%d", PX, sT)
        a("s_addc_u32 s%d, s5, 0", PX + 1)
        a("s_mov_b32 s%d, %d", PX + 2, 1024 * 1280)
        a("s_mov_b32 s%d, 0x20000", PX + 3)
        a("s_lshr_b32 s%d, s%d, 3", sT, sNT)
        a("s_lshl_b32 s%d, s%d, 11", sT, sT)
        a("s_add_u32 s%d, s6, s%d", PW, sT)
        a("s_addc_u32 s%d, s7, 0", PW + 1)
        a("s_sub_u32 s%d, %d, s%d", PW + 2, 640 * 3840, sT)
        a("s_mov_b32 s%d, 0x20000", PW + 3)
        a("s_lshr_b32 s%d, s2, 3", sT)
        a("s_mul_i32 s%d, s%d, 320", sT, sT)
        a("v_add_u32 v%d, s%d, v0", vT1, sT)
        a("v_cmp_gt_u32 vcc, 320, v0")
        a("v_lshlrev_b32 v%d, 7, v%d", vT2, vT1)
        a("v_lshrrev_b32 v%d, 4, v%d", vT3, vT1)
        a("v_mul_u32_u24 v%d, 3840, v%d", vT3, vT3)
        a("v_and_b32 v%d, 15, v%d", vT1, vT1)
        a("v_lshl_add_u32 v%d, v%d, 7, v%d", vT3, vT1, vT3)
        a("v_cndmask_b32 v%d, -16, v%d, vcc", vT2, vT2)
        a("v_cndmask_b32 v%d, -16, v%d, vcc", vT3, vT3)
        a("buffer_load_dword v116, v%d, s[%d:%d], 0 offen", vT2, PX, PX + 3)
        a("buffer_load_dword v117, v%d, s[%d:%d], 0 offen", vT3, PW, PW + 3)
        if PF & 4:
            a("buffer_load_dword v118, v%d, s[%d:%d], 0 offen offset:64", vT2, PX, PX + 3)
            a("buffer_load_dword v119, v%d, s[%d:%d], 0 offen offset:64", vT3, PW, PW + 3)
        a("s_cmp_ge_u32 s%d, 15", sNT)
        a("s_cbranch_scc1 L_qkv_end")
        if PF & 2:
            a("s_waitcnt vmcnt(0)")
            a("s_barrier")
        st.stamp(5)
    a("s_mul_i32 s%d, s%d, %d", sT, sMT, 256 * 1280)
    a("s_add_u32 s%d, s4, s%d", XS, sT)
    a("s_addc_u32 s%d, s5, 0", XS + 1)
    a("s_mov_b32 s%d, %d", sXrec, 256 * 1280)
    a("s_mov_b32 s%d, s%d", XS + 2, sXrec)
    a("s_mov_b32 s%d, 0x20000", XS + 3)
    a("s_lshl_b32 s%d, s%d, 8", sT, sNT)
    a("s_add_u32 s%d, s6, s%d", WSRD, sT)
    a("s_addc_u32 s%d, s7, 0", WSRD + 1)
    a("s_sub_u32 s%d, %d, s%d", sWrec, 640 * 3840, sT)
    a("s_mov_b32 s%d, s%d", WSRD + 2, sWrec)
    a("s_mov_b32 s%d, 0x20000", WSRD + 3)
    a("s_mov_b32 s%d, %d", OS + 2, WS_USED)
    a("s_mov_b32 s%d, 0x20000", OS + 3)
    a("s_mov_b32 s%d, 0", sXoff)
    a("s_mov_b32 s%d, 0", sWoff)

    ntx = " nt" if QV & 2 else ""
    ntw = " nt" if QV & 4 else ""
    def dma_ops(slot_x, slot_w):
        ops = []
        def x(i):
            if i == 0:
                a("s_add_u32 m0, s%d, %s", sM0x, slot_x); a("s_nop 0")
            a("buffer_load_dwordx4 v%d, s[%d:%d], s%d offen offset:%d%s lds", vXg + i, XS, XS + 3, sXoff, 1024 * i, ntx)
        def w(i):
            if i == 0:
                a("s_add_u32 m0, s%d, %s", sM0w, slot_w)
                a("s_add_u32 s%d, s%d, 128", sXoff, sXoff)
            a("buffer_load_dwordx4 v%d, s[%d:%d], s%d offen offset:%d%s lds", vWg + i, WSRD, WSRD + 3, sWoff, 1024 * i, ntw)
            if i == 1: a("s_add_u32 s%d, s%d, %d", sWoff, sWoff, 64 * 3840)
        for i in range(4): ops.append(lambda i=i: x(i))
        for i in range(2): ops.append(lambda i=i: w(i))
        return ops
    def dma(slot_x, slot_w):
        for op in dma_ops(slot_x, slot_w): op()
    for s in range(3 if not QV & 1 else 2):
        dma(str(s * 8192), str(s * 16384))
        if QV & 128: a("s_barrier")
    if QV & 8:
        PX, PW = 40, 44
        a("s_lshr_b32 s%d, s%d, 2", sT, sMT)
        a("s_mul_i32 s%d, s%d, %d", sT, sT, 1024 * 1280)
        a("s_add_u32 s%d, s4, s%d", PX, sT)
        a("s_addc_u32 s%d, s5, 0", PX + 1)
        a("s_mov_b32 s%d, %d", PX + 2, 1024 * 1280)
        a("s_mov_b32 s%d, 0x20000", PX + 3)
        a("s_lshr_b32 s%d, s%d, 3", sT, sNT)
        a("s_lshl_b32 s%d, s%d, 11", sT, sT)
        a("s_add_u32 s%d, s6, s%d", PW, sT)
        a("s_addc_u32 s%d, s7, 0", PW + 1)
        a("s_sub_u32 s%d, %d, s%d", PW + 2, 640 * 3840, sT)
        a("s_mov_b32 s%d, 0x20000", PW + 3)
        a("s_lshr_b32 s%d, s2, 3", sT)
        a("s_lshl_b32 s%d, s%d, 5", sT, sT)
        a("v_add_u32 v%d, s%d, v%d", vT1, sT, vM)
        a("s_add_u32 s%d, s%d, 2", sT2, sW)
        a("v_mul_u32_u24 v%d, 1280, v%d", vT2, vT1)
        a("s_lshl_b32 s%d, s%d, 7", sT, sT2)
        a("v_add_u32 v%d, s%d, v%d", vT2, sT, vT2)
        a("v_lshrrev_b32 v%d, 4, v%d", vT3, vT1)
        a("s_lshl_b32 s%d, s%d, 6", sT, sT2)
        a("v_add_u32 v%d, s%d, v%d", vT3, sT, vT3)
        a("v_mul_u32_u24 v%d, 3840, v%d", vT3, vT3)
        a("v_and_b32 v%d, 15, v%d", vT1, vT1)
        a("v_lshl_add_u32 v%d, v%d, 7, v%d", vT3, vT1, vT3)
        a("v_cmp_eq_u32 vcc, 0, v%d", vH)
        a("s_nop 1")
        a("v_cndmask_b32 v%d, -16, v%d, vcc", vT2, vT2)
        a("v_cndmask_b32 v%d, v%d, -16, vcc", vT3, vT3) if False else None
        a("v_mov_b32 v116, -16")
        a("v_cndmask_b32 v%d, v%d, v116, vcc", vT3, vT3)
        a("buffer_load_dword v116, v%d, s[%d:%d], 0 offen%s", vT2, PX, PX + 3, ntx)
        a("buffer_load_dword v117, v%d, s[%d:%d], 0 offen%s", vT3, PW, PW + 3, ntw)
    a("v_bfe_u32 v%d, v%d, 1, 3", vT1, vM)
    a("v_xor_b32 v%d, v%d, v%d", vT1, vT1, vH)
    a("s_mul_i32 s%d, s%d, 24576", sT, sWM)
    a("v_lshl_add_u32 v%d, v%d, 7, s%d", vT2, vM, sT)
    for ks in range(4):
        a("v_xor_b32 v%d, %d, v%d", vT3, 2 * ks, vT1)
        a("v_lshl_add_u32 v%d, v%d, 4, v%d", vXa + ks, vT3, vT2)
    a("v_bfe_u32 v%d, v%d, 2, 2", vT1, vLane)
    a("v_lshl_add_u32 v%d, v%d, 3, v%d", vT2, vH, vT1)
    a("v_lshlrev_b32 v%d, 8, v%d", vT2, vT2)
    a("v_add_u32 v%d, %d, v%d", vT2, WBASE, vT2)
    a("v_and_b32 v%d, 16, v%d", vT3, vLane)
    a("v_lshl_add_u32 v%d, v%d, 1, v%d", vT2, vT3, vT2)
    a("v_and_b32 v%d, 1, v%d", vT3, vLane)
    a("v_lshl_add_u32 v%d, v%d, 4, v%d", vT2, vT3, vT2)
    a("v_and_b32 v%d, 2, v%d", vT3, vLane)
    a("v_lshl_add_u32 v%d, v%d, 2, v%d", vT2, vT3, vT2)
    a("s_lshl_b32 s%d, s%d, 1", sT, sWN)
    a("v_xor_b32 v%d, s%d, v%d", vT1, sT, vT1)
    a("v_lshl_add_u32 v%d, v%d, 6, v%d", vWa + 0, vT1, vT2)
    a("v_xor_b32 v%d, 1, v%d", vT1, vT1)
    a("v_lshl_add_u32 v%d, v%d, 6, v%d", vWa + 1, vT1, vT2)
    for i in range(64):
        a("v_mov_b32 v%d, 0", ACC + i)
    a("s_mov_b32 s%d, 0", sIt)
    a("s_mov_b32 s%d, 0", sSlot)

    def reads(fb, ks):
        f = F + 16 * fb
        if QV & 64: return
        a("ds_read_b128 %s, v%d", vr(f, 4), vXa + ks)
        a("ds_read_b64_tr_b16 %s, v%d offset:%d", vr(f + 8, 2), vWa, ks * 4096)
        a("ds_read_b64_tr_b16 %s, v%d offset:%d", vr(f + 10, 2), vWa, ks * 4096 + 1024)
        a("ds_read_b128 %s, v%d offset:4096", vr(f + 4, 4), vXa + ks)
        a("ds_read_b64_tr_b16 %s, v%d offset:%d", vr(f + 12, 2), vWa + 1, ks * 4096)
        a("ds_read_b64_tr_b16 %s, v%d offset:%d", vr(f + 14, 2), vWa + 1, ks * 4096 + 1024)
    def mfmas(fb, isv):
        f = F + 16 * fb
        for (ft, tt) in ((0, 0), (0, 1), (1, 0), (1, 1)):
            d = ACC + 16 * (2 * ft + tt)
            x, w = vr(f + 4 * tt, 4), vr(f + 8 + 4 * ft, 4)
            if isv: a("v_mfma_f32_32x32x16_bf16 %s, %s, %s, %s", vr(d, 16), x, w, vr(d, 16))
            else:   a("v_mfma_f32_32x32x16_bf16 %s, %s, %s, %s", vr(d, 16), w, x, vr(d, 16))
    st.stamp()
    npf = 2 if QV & 8 else 0
    a("s_waitcnt vmcnt(%d)", (12 if not QV & 1 else 6) + npf)
    st.stamp()
    if DIAG: a("s_waitcnt lgkmcnt(0)")
    a("s_barrier")
    reads(0, 0)
    if QV & 1:
        a("s_mov_b32 s%d, %d", sT, 2 * 8192)
        a("s_mov_b32 s%d, %d", sT2, 2 * 16384)
    a("s_cmp_ge_u32 s%d, 10", sNT)
    a("s_cbranch_scc1 L_qkv_vloop")
    for isv in (False, True):
        L = "L_qkv_vloop" if isv else "L_qkv_qkloop"
        a.label(L)
        def mf1(fb, n):
            f = F + 16 * fb
            ft, tt = n // 2, n % 2
            d = ACC + 16 * (2 * ft + tt)
            x, w = vr(f + 4 * tt, 4), vr(f + 8 + 4 * ft, 4)
            if isv: a("v_mfma_f32_32x32x16_bf16 %s, %s, %s, %s", vr(d, 16), x, w, vr(d, 16))
            else:   a("v_mfma_f32_32x32x16_bf16 %s, %s, %s, %s", vr(d, 16), w, x, vr(d, 16))
        if QV & 1:
            ops = dma_ops("s%d" % sT, "s%d" % sT2)
            for (rb, rk, mb) in ((1, 1, 0), (0, 2, 1), (1, 3, 0)):
                reads(rb, rk); a("s_waitcnt lgkmcnt(6)")
                if QV & 16: ops = [lambda: None] * 6
                mf1(mb, 0); ops.pop(0)(); mf1(mb, 1); mf1(mb, 2); ops.pop(0)(); mf1(mb, 3)
        else:
            reads(1, 1); a("s_waitcnt lgkmcnt(6)"); mfmas(0, isv)
            reads(0, 2); a("s_waitcnt lgkmcnt(6)"); mfmas(1, isv)
            reads(1, 3); a("s_waitcnt lgkmcnt(6)"); mfmas(0, isv)
        a("s_cmp_lt_u32 s%d, 7", sIt)
        a("s_cselect_b32 s%d, s%d, 0", XS + 2, sXrec)
        a("s_cselect_b32 s%d, s%d, 0", WSRD + 2, sWrec)
        a("s_lshl_b32 s%d, s%d, 13", sT, sSlot)
        a("s_lshl_b32 s%d, s%d, 14", sT2, sSlot)
        a("s_cmp_eq_u32 s%d, 2", sSlot)
        a("s_cselect_b32 s%d, -2, 1", sDX)
        a("s_add_u32 s%d, s%d, s%d", sSlot, sSlot, sDX)
        a("s_lshl_b32 s%d, s%d, 14", sDW, sDX)
        a("s_lshl_b32 s%d, s%d, 13", sDX, sDX)
        for ks in range(4): a("v_add_u32 v%d, s%d, v%d", vXa + ks, sDX, vXa + ks)
        for ft in range(2): a("v_add_u32 v%d, s%d, v%d", vWa + ft, sDW, vWa + ft)
        a("s_waitcnt vmcnt(6) lgkmcnt(0)")
        if not QV & 32: a("s_barrier")
        reads(0, 0)
        if not QV & 1: dma("s%d" % sT, "s%d" % sT2)
        mfmas(1, isv)
        a("s_add_u32 s%d, s%d, 1", sIt, sIt)
        a("s_cmp_lt_u32 s%d, 10", sIt)
        a("s_cbranch_scc1 %s", L)
        st.stamp(3)
        vA = 5
        if not isv:
            a("s_lshl_b32 s%d, s%d, 4", sT, sNT)
            a("s_lshl_b32 s%d, s%d, 3", sT2, sWN)
            a("s_add_u32 s%d, s%d, s%d", sT, sT, sT2)
            a("s_mul_i32 s%d, s%d, %d", sT, sT, PS)
            a("s_mul_i32 s%d, s%d, %d", sT2, sB, QK_BYTES)
            a("s_add_u32 s%d, s%d, s%d", sT, sT, sT2)
            a("s_lshl_b32 s%d, s%d, 12", sT2, sMT)
            a("s_add_u32 s%d, s%d, s%d", sT, sT, sT2)
            a("s_lshl_b32 s%d, s%d, 10", sT2, sWM)
            a("s_add_u32 s%d, s%d, s%d", sT, sT, sT2)
            a("v_mul_u32_u24 v%d, %d, v%d", vA, PS, vH)
            a("v_lshl_add_u32 v%d, v%d, 4, v%d", vA, vM, vA)
            a("s_cmp_lt_u32 s%d, 5", sNT)
            a("s_cselect_b32 s%d, 0x%x, 1.0", sScale, f32bits(CSCALE))
            a("s_waitcnt lgkmcnt(0)")
            a("s_nop 7")
            for ft in range(2):
                for tt in range(2):
                    d = ACC + 16 * (2 * ft + tt)
                    o = F + 8 * (2 * ft + tt)
                    for i in range(16): a("v_mul_f32 v%d, s%d, v%d", d + i, sScale, d + i)
                    for i in range(8): a("v_cvt_pk_bf16_f32 v%d, v%d, v%d", o + i, d + 2 * i, d + 2 * i + 1)
                    for s in range(2):
                        a("s_add_u32 s%d, s%d, %d", sT2, sT, QK_OFF + (ft * 4 + 2 * s) * PS)
                        a("buffer_store_dwordx4 %s, v%d, s[%d:%d], s%d offen offset:%d", vr(o + 4 * s, 4), vA, OS, OS + 3, sT2, tt * 512)
            st.stamp(4); st.flush(sW, 1, 6 if PF else 5)
            a("s_endpgm")
        else:
            swap23(a, vT1, vM, vT2, vT3)
            a("s_sub_u32 s%d, s%d, 10", sT, sNT)
            a("s_lshl_b32 s%d, s%d, 7", sT, sT)
            a("s_lshl_b32 s%d, s%d, 6", sT2, sWN)
            a("s_add_u32 s%d, s%d, s%d", sT, sT, sT2)
            a("v_add_u32 v%d, s%d, v%d", vT1, sT, vT1)
            for ft in range(2):
                if ft: a("v_add_u32 v%d, 32, v%d", vT1, vT1)
                a("v_mul_u32_u24 v%d, 3277, v%d", vT2, vT1)
                a("v_lshrrev_b32 v%d, 16, v%d", vT2, vT2)
                a("v_mul_u32_u24 v%d, %d, v%d", vT2, V_HEAD - 20 * 16, vT2)
                a("v_lshl_add_u32 v%d, v%d, 4, v%d", vT2, vT1, vT2)
                a("v_mul_u32_u24 v%d, 320, v%d", vT3, vH)
                a("v_add_u32 v%d, v%d, v%d", vA + ft, vT2, vT3)
            a("s_lshl_b32 s%d, s%d, 4", sT, sMT)
            a("s_lshl_b32 s%d, s%d, 2", sT2, sWM)
            a("s_add_u32 s%d, s%d, s%d", sT, sT, sT2)
            a("s_mul_i32 s%d, s%d, 640", sT, sT)
            a("s_mul_i32 s%d, s%d, %d", sT2, sB, V_BYTES)
            a("s_add_u32 s%d, s%d, s%d", sT, sT, sT2)
            a("s_add_u32 s%d, s%d, %d", sT, sT, V_OFF)
            a("s_waitcnt lgkmcnt(0)")
            for ft in range(2):
                for tt in range(2):
                    d = ACC + 16 * (2 * ft + tt)
                    o = F + 8 * (2 * ft + tt)
                    for i in range(8): a("v_cvt_pk_bf16_f32 v%d, v%d, v%d", o + i, d + 2 * i, d + 2 * i + 1)
                    for s in range(2):
                        a("buffer_store_dwordx4 %s, v%d, s[%d:%d], s%d offen offset:%d", vr(o + 4 * s, 4), vA + ft, OS, OS + 3, sT, (tt * 2 + s) * 640)
    st.stamp(4); st.flush(sW, 1, 6 if PF else 5)
    a.label("L_qkv_end")
    a("s_endpgm")
    return name, 120, 147456

def gen_attn(a):
    name = "attn_kernel"
    kernel_head(a, name)
    WS = 8
    sW, sKH, sQG, sH, sB, sQB, sOdd, sT, sT2 = 12, 13, 14, 15, 16, 17, 18, 19, 20
    sK, sV, sKend, sO = 21, 22, 23, 24
    sMask, sMaskLo = 26, 28
    sC = 30
    sC2 = 32
    sRet = 34
    vLane, vM, vH, vT1, vT2, vT3 = 1, 2, 3, 4, 5, 6
    vQm, vQr, vKm, vKr, vV, vIdx = 7, 8, 9, 10, 11, 12
    vL = 13
    Qm, Qr, Km, Kr, V, S, O = 16, 32, 40, 56, 64, 96, 160
    NFV = 224
    a("s_cmp_ge_u32 s2, 256")
    a("s_cbranch_scc1 L_attn_end")
    st = Stamps(a, 1); st.stamp()
    a("s_load_dwordx2 s[%d:%d], s[0:1], 64", WS, WS + 1)
    a("v_lshrrev_b32 v%d, 6, v0", vT1)
    a("v_and_b32 v%d, 63, v0", vLane)
    a("v_readfirstlane_b32 s%d, v%d", sW, vT1)
    a("v_and_b32 v%d, 31, v0", vM)
    a("v_bfe_u32 v%d, v0, 5, 1", vH)
    a("s_and_b32 s%d, s2, 7", sT)
    a("s_lshl_b32 s%d, s%d, 3", sT, sT)
    a("s_lshr_b32 s%d, s2, 5", sT2)
    a("s_or_b32 s%d, s%d, s%d", sT, sT, sT2)
    a("s_lshr_b32 s%d, s%d, 5", sB, sT)
    a("s_and_b32 s%d, s%d, 31", sH, sT)
    a("s_bfe_u32 s%d, s2, 0x20003", sQB)
    a("s_and_b32 s%d, s%d, 1", sOdd, sH)
    a("s_lshr_b32 s%d, s%d, 2", sKH, sW)
    a("s_and_b32 s%d, s%d, 3", sQG, sW)
    a("s_mov_b32 s%d, %d", WS + 2, WS_USED)
    a("s_mov_b32 s%d, 0x20000", WS + 3)
    a("s_mov_b32 s%d, 0xfffff", sMask)
    a("s_mov_b32 s%d, 0xfffff", sMask + 1)
    a("s_mov_b32 s%d, -1", sMaskLo)
    a("s_mov_b32 s%d, 0", sMaskLo + 1)
    a("s_lshr_b32 s%d, s%d, 1", sT, sH)
    a("s_mul_i32 s%d, s%d, 5", sT, sT)
    a("s_mul_i32 s%d, s%d, 3", sT2, sOdd)
    a("s_add_u32 s%d, s%d, s%d", sT2, sT2, sT)
    a("s_add_u32 s%d, s%d, 2", sT, sT)
    a("s_mul_i32 s%d, s%d, %d", sT2, sT2, PS)
    a("s_mul_i32 s%d, s%d, %d", sT, sT, PS)
    a("s_lshl_b32 s%d, s%d, 3", sK, sOdd)
    a("s_add_u32 s%d, s%d, s%d", sT, sT, sK)
    a("v_mul_u32_u24 v%d, %d, v%d", vT1, PS, vH)
    a("v_add_u32 v%d, s%d, v%d", vT1, sT2, vT1)
    a("v_lshl_add_u32 v%d, v%d, 4, v%d", vQm, vM, vT1)
    a("v_lshl_add_u32 v%d, v%d, 4, s%d", vQr, vM, sT)
    swap23(a, vL, vM, vT2, vT3)
    a("v_lshl_add_u32 v%d, v%d, 4, v%d", vKm, vL, vT1)
    a("v_lshl_add_u32 v%d, v%d, 4, s%d", vKr, vL, sT)
    a("s_lshl_b32 s%d, s%d, 2", sT, sOdd)
    a("v_add_u32 v%d, s%d, v%d", vT1, sT, vL)
    a("v_subrev_u32 v%d, 20, v%d", vT2, vT1)
    a("v_min_u32 v%d, v%d, v%d", vT1, vT1, vT2)
    a("v_mul_u32_u24 v%d, 320, v%d", vT2, vH)
    a("v_lshl_add_u32 v%d, v%d, 4, v%d", vV, vT1, vT2)
    a("s_mul_i32 s%d, s%d, %d", sT, sB, QK_BYTES)
    a("s_lshl_b32 s%d, s%d, 14", sK, sKH)
    a("s_add_u32 s%d, s%d, s%d", sK, sK, sT)
    a("s_add_u32 s%d, s%d, %d", sK, sK, QK_OFF + 80 * PS)
    a("s_lshl_b32 s%d, s%d, 13", sT2, sQB)
    a("s_lshl_b32 s%d, s%d, 11", sO, sQG)
    a("s_add_u32 s%d, s%d, s%d", sO, sO, sT2)
    a("s_add_u32 s%d, s%d, s%d", sT, sT, sO)
    a("s_lshl_b32 s%d, s%d, 10", sT2, sKH)
    a("s_add_u32 s%d, s%d, s%d", sO, sO, sT2)
    a("s_add_u32 s%d, s%d, s%d", sC, sT, sT2)
    a("s_xor_b32 s%d, s%d, 1024", sT2, sT2)
    a("s_add_u32 s%d, s%d, s%d", sC + 1, sT, sT2)
    a("s_mul_i32 s%d, s%d, %d", sT, sB, O_BYTES)
    a("s_add_u32 s%d, s%d, s%d", sO, sO, sT)
    a("s_add_u32 s%d, s%d, %d", sO, sO, O_OFF)
    a("s_mul_i32 s%d, s%d, %d", sV, sB, V_BYTES)
    a("s_mul_i32 s%d, s%d, %d", sT, sH, V_HEAD)
    a("s_add_u32 s%d, s%d, s%d", sV, sV, sT)
    a("s_mul_i32 s%d, s%d, %d", sT, sKH, 64 * 640)
    a("s_add_u32 s%d, s%d, s%d", sV, sV, sT)
    a("s_add_u32 s%d, s%d, %d", sV, sV, V_OFF)
    for i in range(8): a("v_mov_b32 v%d, 0", Qr + i)
    if AV & 1:
        a("v_and_b32 v%d, 0x1b, v%d", vT1, vM)
        a("v_cmp_eq_u32 s[%d:%d], 20, v%d", sC2, sC2 + 1, vM)
        a("v_cmp_eq_u32 vcc, 24, v%d", vM)
        a("s_nop 3")
        a("s_or_b64 vcc, vcc, s[%d:%d]", sC2, sC2 + 1)
        a("v_mov_b32 v%d, 0x3f803f80", vT1)
        a("s_nop 3")
        a("v_cndmask_b32 v%d, 0, v%d, vcc", vT1, vT1)
        for i in range(32): a("v_mov_b32 v%d, v%d", V + i, vT1)
        for i in range(8): a("v_mov_b32 v%d, 0", Kr + i)
    else:
        for i in range(32): a("v_mov_b32 v%d, 0x3f803f80", V + i)
    a("s_waitcnt lgkmcnt(0)")
    srd = "s[%d:%d]" % (WS, WS + 3)
    def loadK(buf, off):
        a("buffer_load_dwordx4 %s, v%d, %s, s%d offen offset:%d", vr(Km + 4 * buf, 4), vKm, srd, sK, off)
        if AV & 1: a("s_mov_b64 exec, s[%d:%d]", sMaskLo, sMaskLo + 1)
        a("buffer_load_dwordx2 %s, v%d, %s, s%d offen offset:%d", vr(Kr + 2 * buf, 2), vKr, srd, sK, off)
        if AV & 1: a("s_mov_b64 exec, -1")
    def loadV(buf):
        a("s_mov_b64 exec, s[%d:%d]", sMask, sMask + 1)
        a("buffer_load_dwordx4 %s, v%d, %s, s%d offen", vr(V + 8 * buf, 4), vV, srd, sV)
        a("buffer_load_dwordx4 %s, v%d, %s, s%d offen offset:640", vr(V + 8 * buf + 4, 4), vV, srd, sV)
        a("s_mov_b64 exec, -1")
        a("s_add_u32 s%d, s%d, 1280", sV, sV)
    loadK(0, 0)
    for j in range(4):
        a("buffer_load_dwordx4 %s, v%d, %s, s%d offen offset:%d", vr(Qm + 4 * j, 4), vQm, srd, sC + j // 2, (j % 2) * 512)
    a("s_mov_b64 exec, s[%d:%d]", sMaskLo, sMaskLo + 1)
    for j in range(4):
        a("buffer_load_dwordx2 %s, v%d, %s, s%d offen offset:%d", vr(Qr + 2 * j, 2), vQr, srd, sC + j // 2, (j % 2) * 512)
    loadV(0); loadK(1, 512); loadV(1); loadK(2, 1024); loadV(2); loadK(3, 1536)
    a("s_add_u32 s%d, s%d, 2048", sK, sK)
    a("s_add_u32 s%d, s%d, %d", sKend, sK, 8 * 2048)
    a("v_mov_b32 v%d, 0xdddddddd", vIdx)
    for i in range(64): a("v_mov_b32 v%d, 0", O + i)
    for i in range(16): a("v_mov_b32 v%d, 0", S + 48 + i)
    def qk1(j, kb): a("v_mfma_f32_32x32x16_bf16 %s, %s, %s, 0", vr(S + 16 * j, 16), vr(Km + 4 * kb, 4), vr(Qm + 4 * j, 4))
    def qk2(j, kb): a("v_mfma_f32_32x32x8_bf16 %s, %s, %s, %s", vr(S + 16 * j, 16), vr(Kr + 2 * kb, 2), vr(Qr + 2 * j, 2), vr(S + 16 * j, 16))
    def pv(j, vb, half): a("v_smfmac_f32_32x32x32_bf16 %s, %s, %s, v%d", vr(O + 16 * j, 16), vr(V + 8 * vb + 4 * half, 4), vr(S + 16 * j + 8 * half, 8), vIdx)
    def exps(j, q):
        for i in range(4): a("v_exp_f32 v%d, v%d", S + 16 * j + 4 * q + i, S + 16 * j + 4 * q + i)
    st.stamp()
    a("s_waitcnt vmcnt(12)")
    st.stamp()
    qk1(0, 0); qk2(0, 0); qk1(1, 0); qk2(1, 0)
    a("s_nop 9")
    a.raw(".p2align 6")
    a.label("L_attn_loop")
    ORD = int(os.environ.get("ORD", "0"))
    for outer in range(8 if DIAG == 2 else 1):
      if DIAG == 2:
        a("s_memtime s[%d:%d]", 70 + 4 * outer - (4 * 8 - 28 if False else 0), 71 + 4 * outer) if outer < 7 else None
        a("s_memrealtime s[%d:%d]", 72 + 4 * outer, 73 + 4 * outer) if outer < 7 else None
      for tt in range(4):
        for j in range(4):
            pj, pvb = ((3, (tt - 1) % 4) if j == 0 else (j - 1, tt))
            nj, nkb = (j + 2) % 4, (tt if j < 2 else (tt + 1) % 4)
            def ld():
                if j == 1: loadV((tt + 3) % 4)
                if j == 2: loadK(tt, tt * 512)
            def endc():
                if tt == 3 and j == 3:
                    a("s_add_u32 s%d, s%d, 2048", sK, sK)
                    a("s_cmp_lt_u32 s%d, s%d", sK, sKend)
            if j == 1: a("s_waitcnt vmcnt(8)")
            if ORD == 0:
                if not AV & 2: pv(pj, pvb, 0)
                if not AV & 8: exps(j, 0)
                ld()
                if not AV & 2: pv(pj, pvb, 1)
                if not AV & 8: exps(j, 1)
                if not AV & 4: qk1(nj, nkb)
                if not AV & 8: exps(j, 2)
                if not AV & 20: qk2(nj, nkb)
                endc()
                if not AV & 8: exps(j, 3)
            elif ORD == 1:
                qk1(nj, nkb) if j != 2 else None
                qk2(nj, nkb) if j != 2 else None
                if j == 2: qk1(nj, nkb); qk2(nj, nkb)
                exps(j, 0); ld(); exps(j, 1)
                pv(pj, pvb, 0); pv(pj, pvb, 1)
                endc()
                exps(j, 2); exps(j, 3)
            elif ORD == 2:
                e = [(S + 16 * j + i) for i in range(16)]
                def ex(n):
                    for _ in range(n):
                        r = e.pop(0); a("v_exp_f32 v%d, v%d", r, r)
                qk1(nj, nkb); ex(3); qk2(nj, nkb); ex(5); ld()
                pv(pj, pvb, 0); ex(3); pv(pj, pvb, 1); endc(); ex(5)
    a("s_cbranch_scc1 L_attn_loop")
    if DIAG == 2: st.n = 17; st.stamp = lambda *x: None
    st.stamp()
    a("s_nop 1")
    pv(3, 3, 0); pv(3, 3, 1)
    a("s_lshl_b32 s%d, s%d, 13", sT, sW)
    a("v_lshl_add_u32 v%d, v%d, 4, s%d", vT1, vLane, sT)
    a("s_xor_b32 s%d, s%d, %d", sT, sT, 4 << 13)
    a("v_lshl_add_u32 v%d, v%d, 4, s%d", vT2, vLane, sT)
    for q in range(4): a("ds_write_b128 v%d, %s offset:%d", vT1, vr(O + 32 + 4 * q, 4), q * 1024)
    a("s_nop 7")
    for q in range(4): a("ds_write_b128 v%d, %s offset:%d", vT1, vr(O + 48 + 4 * q, 4), 4096 + q * 1024)
    a("s_waitcnt vmcnt(0) lgkmcnt(0)")
    a("s_barrier")
    st.stamp()
    for q in range(8): a("ds_read_b128 %s, v%d offset:%d", vr(S + 4 * q, 4), vT2, q * 1024)
    a("s_waitcnt lgkmcnt(0)")
    for j in range(2):
        for i in range(13): a("v_add_f32 v%d, v%d, v%d", O + 16 * j + i, O + 16 * j + i, S + 16 * j + i)
    if AV & 1:
        a("v_cmp_eq_u32 vcc, 1, v%d", vH)
        a("s_nop 3")
        for j in range(2): a("v_cndmask_b32 v%d, v%d, v%d, vcc", O + 16 * j + 12, O + 16 * j + 12, O + 16 * j + 8)
    a("v_min_f32 v%d, v%d, v%d", vT1, O + 12, O + 28)
    a("v_max_f32 v%d, v%d, v%d", vT2, O + 12, O + 28)
    a("v_mov_b32 v%d, 0", vT3)
    for j in range(2):
        for i in range(13): a("v_fmac_f32 v%d, 0, v%d", vT3, O + 16 * j + i)
    a("s_mov_b32 s%d, 0x%x", sT, f32bits(2.0 ** -30))
    a("s_mov_b32 s%d, 0x%x", sT2, f32bits(2.0 ** 60))
    a("v_cmp_le_f32 s[%d:%d], s%d, v%d", sC, sC + 1, sT, vT1)
    a("v_cmp_ge_f32 s[%d:%d], s%d, v%d", sC2, sC2 + 1, sT2, vT2)
    a("v_cmp_eq_f32 vcc, 0, v%d", vT3)
    a("s_nop 3")
    a("s_and_b64 s[%d:%d], s[%d:%d], s[%d:%d]", sC, sC + 1, sC, sC + 1, sC2, sC2 + 1)
    a("s_and_b64 s[%d:%d], s[%d:%d], vcc", sC, sC + 1, sC, sC + 1)
    a("s_cmp_eq_u64 s[%d:%d], -1", sC, sC + 1)
    if not AV & 30: a("s_cbranch_scc0 L_attn_slow")
    a.label("L_attn_fin")
    for j in range(2):
        a("v_rcp_f32 v%d, v%d", vT1 + j, O + 16 * j + 12)
    a("s_nop 0")
    for j in range(2):
        for i in range(12): a("v_mul_f32 v%d, v%d, v%d", O + 16 * j + i, O + 16 * j + i, vT1 + j)
        for i in range(6): a("v_cvt_pk_bf16_f32 v%d, v%d, v%d", S + 8 * j + i, O + 16 * j + 2 * i, O + 16 * j + 2 * i + 1)
        a("buffer_store_dwordx4 %s, v%d, %s, s%d offen offset:%d", vr(S + 8 * j, 4), vQm, srd, sO, j * 512)
    a("s_mov_b64 exec, s[%d:%d]", sMaskLo, sMaskLo + 1)
    for j in range(2):
        a("buffer_store_dwordx2 %s, v%d, %s, s%d offen offset:%d", vr(S + 8 * j + 4, 2), vQr, srd, sO, j * 512)
    st.stamp(); st.flush(sW, 1, 17 if DIAG == 2 else 6)
    a.label("L_attn_end")
    a("s_endpgm")
    a.label("L_attn_slow")
    C = S + 32
    MX = O + 32
    a("s_mul_i32 s%d, s%d, %d", sT, sB, QK_BYTES)
    a("s_add_u32 s%d, s%d, %d", sT, sT, QK_OFF + 80 * PS)
    a("s_mov_b32 s%d, s%d", sK, sT)
    a("s_add_u32 s%d, s%d, %d", sKend, sK, 64 * 512)
    a("v_mov_b32 v%d, 0xff800000", MX)
    a("v_mov_b32 v%d, 0xff800000", MX + 1)
    a.label("L_attn_slow1")
    loadK(0, 0)
    a("s_waitcnt vmcnt(0)")
    qk1(0, 0); qk2(0, 0); qk1(1, 0); qk2(1, 0)
    a("s_nop 15")
    for j in range(2):
        for i in range(8): a("v_max3_f32 v%d, v%d, v%d, v%d", MX + j, MX + j, S + 16 * j + 2 * i, S + 16 * j + 2 * i + 1)
    a("s_add_u32 s%d, s%d, 512", sK, sK)
    a("s_cmp_lt_u32 s%d, s%d", sK, sKend)
    a("s_cbranch_scc1 L_attn_slow1")
    for j in range(2):
        a("v_mov_b32 v%d, v%d", vT1, MX + j)
        a("s_nop 1")
        a("v_permlane32_swap_b32 v%d, v%d", vT1, MX + j)
        a("s_nop 1")
        a("v_max_f32 v%d, v%d, v%d", vT1, vT1, MX + j)
        for i in range(16): a("v_sub_f32 v%d, 0, v%d", C + 16 * j + i, vT1)
    for i in range(32): a("v_mov_b32 v%d, 0", O + i)
    a("s_mov_b32 s%d, s%d", sK, sT)
    a("s_mul_i32 s%d, s%d, %d", sV, sB, V_BYTES)
    a("s_mul_i32 s%d, s%d, %d", sT2, sH, V_HEAD)
    a("s_add_u32 s%d, s%d, s%d", sV, sV, sT2)
    a("s_add_u32 s%d, s%d, %d", sV, sV, V_OFF)
    a.label("L_attn_slow2")
    loadK(0, 0); loadV(0)
    a("s_waitcnt vmcnt(0)")
    for j in range(2):
        a("v_mfma_f32_32x32x16_bf16 %s, %s, %s, %s", vr(S + 16 * j, 16), vr(Km, 4), vr(Qm + 4 * j, 4), vr(C + 16 * j, 16))
        qk2(j, 0)
    a("s_nop 15")
    for j in range(2):
        for q in range(4): exps(j, q)
    a("s_nop 1")
    for j in range(2):
        pv(j, 0, 0); pv(j, 0, 1)
    a("s_add_u32 s%d, s%d, 512", sK, sK)
    a("s_cmp_lt_u32 s%d, s%d", sK, sKend)
    a("s_cbranch_scc1 L_attn_slow2")
    a("s_nop 15")
    a("s_branch L_attn_fin")
    return name, NFV, 65536

def gen_oproj(a):
    name = "oproj_kernel"
    kernel_head(a, name)
    WS, WO, OUT = 8, 12, 16
    sW, sB, sMT, sNT, sT, sT2, sOo, sWo = 20, 21, 22, 23, 24, 25, 26, 27
    vLane, vT1, vT2, vT3, vOa, vWa, vSt = 1, 2, 3, 4, 5, 6, 7
    vG = 8
    ACC = 16
    WF = 56
    OF = 96
    a("s_cmp_ge_u32 s2, 256")
    a("s_cbranch_scc1 L_op_end")
    st = Stamps(a, 2); st.stamp()
    a("s_bfe_u32 s%d, s2, 0x10002", sB)
    a("s_and_b32 s%d, s2, 3", sMT)
    a("s_lshl_b32 s%d, s%d, 2", sMT, sMT)
    a("s_bfe_u32 s%d, s2, 0x20003", sT)
    a("s_or_b32 s%d, s%d, s%d", sMT, sMT, sT)
    a("s_lshr_b32 s%d, s2, 5", sNT)
    a("s_mul_i32 s%d, s%d, 24", sT, sB)
    a("s_add_u32 s%d, s%d, 16", sT, sT)
    a("s_load_dwordx2 s[4:5], s[0:1], s%d", sT)
    a("s_load_dwordx2 s[6:7], s[0:1], 48")
    a("s_load_dwordx2 s[%d:%d], s[0:1], 64", WS, WS + 1)
    a("v_lshrrev_b32 v%d, 6, v0", vT1)
    a("v_and_b32 v%d, 63, v0", vLane)
    a("v_readfirstlane_b32 s%d, v%d", sW, vT1)
    a("v_lshrrev_b32 v%d, 4, v%d", vT1, vLane)
    a("v_mul_u32_u24 v%d, %d, v%d", vT1, PS, vT1)
    a("v_and_b32 v%d, 15, v%d", vT2, vLane)
    a("v_lshl_add_u32 v%d, v%d, 4, v%d", vOa, vT2, vT1)
    a("s_mov_b32 s%d, %d", WS + 2, WS_USED)
    a("s_mov_b32 s%d, 0x20000", WS + 3)
    a("s_mul_i32 s%d, s%d, %d", sOo, sB, O_BYTES)
    a("s_lshl_b32 s%d, s%d, 11", sT, sMT)
    a("s_add_u32 s%d, s%d, s%d", sOo, sOo, sT)
    a("s_lshl_b32 s%d, s%d, 9", sT, sW)
    a("s_add_u32 s%d, s%d, s%d", sOo, sOo, sT)
    a("s_add_u32 s%d, s%d, %d", sOo, sOo, O_OFF)
    for i in range(5):
        a("v_add_u32 v%d, %d, v%d", vT1, 64 * i, vLane)
        a("v_mul_u32_u24 v%d, 6554, v%d", vT2, vT1)
        a("v_lshrrev_b32 v%d, 16, v%d", vT2, vT2)
        a("v_mul_u32_u24 v%d, 10, v%d", vT3, vT2)
        a("v_sub_u32 v%d, v%d, v%d", vT1, vT1, vT3)
        swap23(a, vT2, vT2, vT3, vSt)
        a("v_mul_u32_u24 v%d, 1280, v%d", vT2, vT2)
        a("v_lshl_add_u32 v%d, v%d, 4, v%d", vG + i, vT1, vT2)
    a("s_waitcnt lgkmcnt(0)")
    a("s_mul_i32 s%d, s%d, 160", sT, sNT)
    a("s_add_u32 s%d, s4, s%d", WO, sT)
    a("s_addc_u32 s%d, s5, 0", WO + 1)
    a("s_sub_u32 s%d, %d, s%d", WO + 2, 640 * 1280, sT)
    a("s_mov_b32 s%d, 0x20000", WO + 3)
    a("s_mov_b32 s%d, s6", OUT)
    a("s_mov_b32 s%d, s7", OUT + 1)
    a("s_mov_b32 s%d, %d", OUT + 2, 2048 * 2560)
    a("s_mov_b32 s%d, 0x20000", OUT + 3)
    a("s_mul_i32 s%d, s%d, %d", sWo, sW, 32 * 1280)
    a("s_mul_i32 s%d, s%d, 5120", sT2, sW)
    for g in range(5):
        for i in range(5):
            a("s_add_u32 m0, s%d, %d", sT2, g * 4 * 5120 + i * 1024)
            a("s_nop 0")
            a("buffer_load_dwordx4 v%d, s[%d:%d], s%d offen lds", vG + i, WO, WO + 3, sWo)
        a("s_add_u32 s%d, s%d, %d", sWo, sWo, 4 * 32 * 1280)
        for s in range(4 * g, 4 * g + 4):
            for tt in range(2):
                a("buffer_load_dwordx4 %s, v%d, s[%d:%d], s%d offen offset:%d", vr(OF + 8 * s + 4 * tt, 4), vOa, WS, WS + 3, sOo, tt * 256)
            a("s_add_u32 s%d, s%d, %d", sOo, sOo, 4 * PS)
    a("v_lshrrev_b32 v%d, 5, v%d", vT1, vLane)
    a("v_lshlrev_b32 v%d, 4, v%d", vT1, vT1)
    a("v_bfe_u32 v%d, v%d, 2, 3", vT2, vLane)
    a("v_add_u32 v%d, v%d, v%d", vT1, vT1, vT2)
    a("v_mul_u32_u24 v%d, 160, v%d", vT1, vT1)
    a("v_and_b32 v%d, 3, v%d", vT2, vLane)
    a("v_mul_u32_u24 v%d, 40, v%d", vT2, vT2)
    a("v_add_u32 v%d, v%d, v%d", vWa, vT1, vT2)
    a("v_add_u32 v%d, %d, v%d", vT3, 10 * 5120, vWa)
    a("v_and_b32 v%d, 15, v%d", vT1, vLane)
    a("v_mul_u32_u24 v%d, 2560, v%d", vT1, vT1)
    a("v_lshrrev_b32 v%d, 4, v%d", vT2, vLane)
    a("v_mul_u32_u24 v%d, 40, v%d", vT2, vT2)
    a("v_add_u32 v%d, v%d, v%d", vSt, vT1, vT2)
    for i in range(40): a("v_mov_b32 v%d, 0", ACC + i)
    def reads(s):
        fb = s % 2
        base = vWa if s < 10 else vT3
        so = (s % 10) * 5120
        for j in range(5):
            for q in range(2):
                a("ds_read_b64_tr_b16 %s, v%d offset:%d", vr(WF + 20 * fb + 4 * j + 2 * q, 2), base, so + q * 8 * 160 + 8 * j)
    def mf(s):
        fb = s % 2
        for j in range(5):
            for tt in range(2):
                d = ACC + 4 * (5 * tt + j)
                a("v_mfma_f32_16x16x32_bf16 %s, %s, %s, %s", vr(d, 4), vr(WF + 20 * fb + 4 * j, 4), vr(OF + 8 * s + 4 * tt, 4), vr(d, 4))
    for s in range(20):
        if s % 4 == 0:
            g = s // 4
            st.stamp()
            a("s_waitcnt vmcnt(%d)", 13 * (4 - g))
            if DIAG: a("s_waitcnt lgkmcnt(0)")
            a("s_barrier")
            st.stamp()
            if DIAG: a("s_waitcnt lgkmcnt(0)")
            reads(s)
        if s % 4 != 3:
            reads(s + 1)
            a("s_waitcnt lgkmcnt(10)")
        else:
            a("s_waitcnt lgkmcnt(0)")
        mf(s)
    a("s_lshl_b32 s%d, s%d, 7", sT, sMT)
    a("s_lshl_b32 s%d, s%d, 5", sT2, sW)
    a("s_add_u32 s%d, s%d, s%d", sT, sT, sT2)
    a("s_mul_i32 s%d, s%d, 2560", sT, sT)
    a("s_mul_i32 s%d, s%d, 1280", sT2, sB)
    a("s_add_u32 s%d, s%d, s%d", sT, sT, sT2)
    a("s_mul_i32 s%d, s%d, 160", sT2, sNT)
    a("s_add_u32 s%d, s%d, s%d", sT, sT, sT2)
    a("s_nop 3")
    for tt in range(2):
        o = WF + 12 * tt
        for i in range(10): a("v_cvt_pk_bf16_f32 v%d, v%d, v%d", o + i, ACC + 20 * tt + 2 * i, ACC + 20 * tt + 2 * i + 1)
        a("buffer_store_dwordx4 %s, v%d, s[%d:%d], s%d offen", vr(o, 4), vSt, OUT, OUT + 3, sT)
        a("buffer_store_dwordx4 %s, v%d, s[%d:%d], s%d offen offset:16", vr(o + 4, 4), vSt, OUT, OUT + 3, sT)
        a("buffer_store_dwordx2 %s, v%d, s[%d:%d], s%d offen offset:32", vr(o + 8, 2), vSt, OUT, OUT + 3, sT)
        a("s_add_u32 s%d, s%d, %d", sT, sT, 16 * 2560)
    st.stamp(); st.flush(sW, 1, 12)
    a.label("L_op_end")
    a("s_endpgm")
    return name, 256, 102400

def main(out):
    a = A()
    ks = []
    for g, blk in ((gen_qkv, 512), (gen_attn, 512), (gen_oproj, 256)):
        n, nfv, lds = g(a)
        ks.append((n, nfv, lds, blk))
    hdr = "; Two independent MHA blocks (S=2048, D=640, H=32, Dh=20), concatenated on the last axis.\n"
    hdr += "; kernarg: 0 A_x, 8 A_wqkv, 16 A_wo, 24 B_x, 32 B_wqkv, 40 B_wo, 48 out, 56 debug, 64 ws\n"
    for n, nfv, lds, blk in ks:
        hdr += "; @launch kernel=%s grid=(256,1,1) block=(%d,1,1) lds=%d\n" % (n, blk, lds)
    s = hdr + '.amdgcn_target "amdgcn-amd-amdhsa--gfx950"\n.text\n' + a.text()
    s += '.section .rodata,"a"\n'
    for n, nfv, lds, blk in ks: s += kd(n, nfv)
    open(out, "w").write(s)

if __name__ == "__main__":
    main(sys.argv[1] if len(sys.argv) > 1 else "cdna_kernels/%s.s" % NAME)
```

```python
import math, struct, sys

NAME = "concat_heads__mha_block__softmax_full_mha__prompt"
PS = 32768 + 512
QK_BYTES = 160 * PS
V_HEAD = 128 * 640
V_BYTES = 32 * V_HEAD + 8192
O_BYTES = 80 * PS
QK_OFF = 0
V_OFF = QK_OFF + 2 * QK_BYTES
O_OFF = V_OFF + 2 * V_BYTES
WS_USED = O_OFF + 2 * O_BYTES + 65536
CSCALE = math.log2(math.e) / math.sqrt(20.0)

def f32bits(x): return struct.unpack("<I", struct.pack("<f", x))[0]

class A:
    def __init__(self): self.l = []
    def __call__(self, s, *a):
        self.l.append("    " + (s % a if a else s))
    def label(self, s): self.l.append(s + ":")
    def raw(self, s): self.l.append(s)
    def c(self, s): self.l.append("    ; " + s)
    def text(self): return "\n".join(self.l) + "\n"

def vr(b, n): return "v[%d:%d]" % (b, b + n - 1) if n > 1 else "v%d" % b
def sr(b, n): return "s[%d:%d]" % (b, b + n - 1) if n > 1 else "s%d" % b

def kernel_head(a, name):
    a.raw(".globl %s" % name)
    a.raw(".p2align 8")
    a.raw(".type %s,@function" % name)
    a.label(name)

def kd(name, nfv, nsg=100):
    acc = (nfv + 3) // 4 * 4
    return """.p2align 6
.amdhsa_kernel %s
  .amdhsa_next_free_vgpr %d
  .amdhsa_next_free_sgpr %d
  .amdhsa_accum_offset %d
  .amdhsa_group_segment_fixed_size 0
  .amdhsa_kernarg_size 72
  .amdhsa_user_sgpr_count 2
  .amdhsa_user_sgpr_kernarg_segment_ptr 1
  .amdhsa_system_sgpr_workgroup_id_x 1
.end_amdhsa_kernel
""" % (name, nfv, nsg, acc)

import os
DIAG = int(os.environ.get("DIAG", "0"))
DIAG_OFF = 64 << 20
PF = int(os.environ.get("PF", "0"))
QV = int(os.environ.get("QV", "0"))
AV = int(os.environ.get("AV", "0"))
class Stamps:
    def __init__(self, a, kidx):
        self.a, self.k, self.n = a, kidx, 0
        if DIAG:
            a("s_memrealtime s[60:61]")
            a("s_mov_b32 s59, s2")
            a("v_mov_b32 v255, v0") if False else None
    def stamp(self, idx=None):
        if not DIAG: return
        i = self.n if idx is None else idx
        if idx is None: self.n += 1
        self.a("s_memtime s[%d:%d]", 64 + 2 * i, 65 + 2 * i)
    def flush(self, swave, vtmp, nst):
        if not DIAG: return
        a = self.a
        a("s_mov_b64 exec, -1")
        a("s_waitcnt vmcnt(0)")
        a("s_memtime s[%d:%d]", 64 + 2 * nst, 65 + 2 * nst)
        a("s_memrealtime s[62:63]")
        a("s_load_dwordx2 s[56:57], s[0:1], 64")
        a("s_lshl_b32 s58, s59, 4")
        a("s_add_u32 s58, s58, s%d", swave)
        a("s_lshl_b32 s58, s58, 7")
        a("s_add_u32 s58, s58, %d", DIAG_OFF + (self.k << 20))
        a("v_mov_b32 v%d, s58", vtmp)
        a("s_waitcnt lgkmcnt(0)")
        for i in range(nst + 3):
            a("v_mov_b32 v%d, s%d", vtmp + 1, 60 + 2 * i)
            a("global_store_dword v%d, v%d, s[56:57] offset:%d", vtmp, vtmp + 1, 4 * i)
        a("s_waitcnt vmcnt(0)")

def swap23(a, dst, src, t1, t2):
    a("v_and_b32 v%d, 4, v%d", t1, src)
    a("v_lshlrev_b32 v%d, 1, v%d", t1, t1)
    a("v_and_b32 v%d, 8, v%d", t2, src)
    a("v_lshrrev_b32 v%d, 1, v%d", t2, t2)
    a("v_and_b32 v%d, 0x13, v%d", dst, src)
    a("v_or3_b32 v%d, v%d, v%d, v%d", dst, dst, t1, t2)

def gen_qkv(a):
    name = "qkv_kernel"
    kernel_head(a, name)
    XS, WSRD, OS = 8, 12, 16
    sB, sMT, sNT, sW, sWM, sWN = 20, 21, 22, 23, 24, 25
    sXoff, sWoff, sM0x, sM0w, sIt, sT, sT2 = 26, 27, 28, 29, 30, 31, 32
    sXrec, sWrec, sDX, sDW, sSlot, sScale = 33, 34, 35, 36, 37, 38
    WBASE = 98304
    a("s_cmp_ge_u32 s2, 256")
    a("s_cbranch_scc1 L_qkv_end")
    a("s_and_b32 s%d, s2, 7", sT)
    a("s_lshr_b32 s%d, s2, 3", sT2)
    a("s_lshr_b32 s%d, s%d, 2", sB, sT)
    a("s_bfe_u32 s%d, s%d, 0x10001", sMT, sT)
    a("s_lshl_b32 s%d, s%d, 2", sMT, sMT)
    a("s_and_b32 s%d, s%d, 3", sW, sT2)
    a("s_or_b32 s%d, s%d, s%d", sMT, sMT, sW)
    a("s_and_b32 s%d, s%d, 1", sNT, sT)
    a("s_lshl_b32 s%d, s%d, 3", sNT, sNT)
    a("s_lshr_b32 s%d, s%d, 2", sT2, sT2)
    a("s_or_b32 s%d, s%d, s%d", sNT, sNT, sT2)
    if not PF:
        a("s_cmp_ge_u32 s%d, 15", sNT)
        a("s_cbranch_scc1 L_qkv_end")
    st = Stamps(a, 0); st.stamp()
    a("s_mul_i32 s%d, s%d, 24", sT, sB)
    a("s_load_dwordx4 s[4:7], s[0:1], s%d", sT)
    a("s_load_dwordx2 s[%d:%d], s[0:1], 64", OS, OS + 1)
    vLane, vT1, vT2, vT3 = 1, 2, 3, 4
    vXg = 5
    vWg = 9
    vXa = 11
    vWa = 15
    vM, vH = 17, 18
    F = 20
    ACC = 52
    a("v_lshrrev_b32 v%d, 6, v0", vT1)
    a("v_and_b32 v%d, 63, v0", vLane)
    a("v_readfirstlane_b32 s%d, v%d", sW, vT1)
    a("v_and_b32 v%d, 31, v0", vM)
    a("v_bfe_u32 v%d, v0, 5, 1", vH)
    a("s_lshr_b32 s%d, s%d, 1", sWM, sW)
    a("s_and_b32 s%d, s%d, 1", sWN, sW)
    a("v_lshrrev_b32 v%d, 3, v%d", vT1, vLane)
    a("s_lshl_b32 s%d, s%d, 5", sT, sW)
    a("v_add_u32 v%d, s%d, v%d", vT1, sT, vT1)
    a("v_mul_u32_u24 v%d, 1280, v%d", vT1, vT1)
    a("v_lshrrev_b32 v%d, 4, v%d", vT2, vLane)
    a("v_and_b32 v%d, 7, v%d", vT3, vLane)
    a("v_xor_b32 v%d, v%d, v%d", vT2, vT2, vT3)
    a("v_xor_b32 v%d, 4, v%d", vT3, vT2)
    a("v_lshl_add_u32 v%d, v%d, 4, v%d", vXg + 0, vT2, vT1)
    a("v_lshl_add_u32 v%d, v%d, 4, v%d", vXg + 1, vT3, vT1)
    a("v_add_u32 v%d, %d, v%d", vXg + 1, 8 * 1280 - 1024, vXg + 1)
    a("v_add_u32 v%d, %d, v%d", vXg + 2, 16 * 1280 - 2048, vXg + 0)
    a("v_add_u32 v%d, %d, v%d", vXg + 3, 16 * 1280 - 2048, vXg + 1)
    a("v_lshrrev_b32 v%d, 4, v%d", vT1, vLane)
    a("v_lshlrev_b32 v%d, 2, v%d", vT2, vT1)
    a("v_and_b32 v%d, 15, v%d", vT3, vLane)
    a("v_xor_b32 v%d, v%d, v%d", vT2, vT2, vT3)
    a("s_lshl_b32 s%d, s%d, 3", sT, sW)
    a("v_add_u32 v%d, s%d, v%d", vT1, sT, vT1)
    a("v_mul_u32_u24 v%d, 3840, v%d", vT1, vT1)
    a("v_lshl_add_u32 v%d, v%d, 4, v%d", vWg + 0, vT2, vT1)
    a("v_add_u32 v%d, %d, v%d", vWg + 1, 4 * 3840 - 1024, vWg + 0)
    a("s_mul_i32 s%d, s%d, 24576", sM0x, sWM)
    a("s_lshl_b32 s%d, s%d, 12", sT, sWN)
    a("s_add_u32 s%d, s%d, s%d", sM0x, sM0x, sT)
    a("s_lshl_b32 s%d, s%d, 11", sM0w, sW)
    a("s_add_u32 s%d, s%d, %d", sM0w, sM0w, WBASE)
    a("s_waitcnt lgkmcnt(0)")
    if PF:
        PX, PW = 40, 44
        a("s_lshr_b32 s%d, s%d, 2", sT, sMT)
        a("s_mul_i32 s%d, s%d, %d", sT, sT, 1024 * 1280)
        a("s_add_u32 s%d, s4, s%d", PX, sT)
        a("s_addc_u32 s%d, s5, 0", PX + 1)
        a("s_mov_b32 s%d, %d", PX + 2, 1024 * 1280)
        a("s_mov_b32 s%d, 0x20000", PX + 3)
        a("s_lshr_b32 s%d, s%d, 3", sT, sNT)
        a("s_lshl_b32 s%d, s%d, 11", sT, sT)
        a("s_add_u32 s%d, s6, s%d", PW, sT)
        a("s_addc_u32 s%d, s7, 0", PW + 1)
        a("s_sub_u32 s%d, %d, s%d", PW + 2, 640 * 3840, sT)
        a("s_mov_b32 s%d, 0x20000", PW + 3)
        a("s_lshr_b32 s%d, s2, 3", sT)
        a("s_mul_i32 s%d, s%d, 320", sT, sT)
        a("v_add_u32 v%d, s%d, v0", vT1, sT)
        a("v_cmp_gt_u32 vcc, 320, v0")
        a("v_lshlrev_b32 v%d, 7, v%d", vT2, vT1)
        a("v_lshrrev_b32 v%d, 4, v%d", vT3, vT1)
        a("v_mul_u32_u24 v%d, 3840, v%d", vT3, vT3)
        a("v_and_b32 v%d, 15, v%d", vT1, vT1)
        a("v_lshl_add_u32 v%d, v%d, 7, v%d", vT3, vT1, vT3)
        a("v_cndmask_b32 v%d, -16, v%d, vcc", vT2, vT2)
        a("v_cndmask_b32 v%d, -16, v%d, vcc", vT3, vT3)
        a("buffer_load_dword v116, v%d, s[%d:%d], 0 offen", vT2, PX, PX + 3)
        a("buffer_load_dword v117, v%d, s[%d:%d], 0 offen", vT3, PW, PW + 3)
        if PF & 4:
            a("buffer_load_dword v118, v%d, s[%d:%d], 0 offen offset:64", vT2, PX, PX + 3)
            a("buffer_load_dword v119, v%d, s[%d:%d], 0 offen offset:64", vT3, PW, PW + 3)
        a("s_cmp_ge_u32 s%d, 15", sNT)
        a("s_cbranch_scc1 L_qkv_end")
        if PF & 2:
            a("s_waitcnt vmcnt(0)")
            a("s_barrier")
        st.stamp(5)
    a("s_mul_i32 s%d, s%d, %d", sT, sMT, 256 * 1280)
    a("s_add_u32 s%d, s4, s%d", XS, sT)
    a("s_addc_u32 s%d, s5, 0", XS + 1)
    a("s_mov_b32 s%d, %d", sXrec, 256 * 1280)
    a("s_mov_b32 s%d, s%d", XS + 2, sXrec)
    a("s_mov_b32 s%d, 0x20000", XS + 3)
    a("s_lshl_b32 s%d, s%d, 8", sT, sNT)
    a("s_add_u32 s%d, s6, s%d", WSRD, sT)
    a("s_addc_u32 s%d, s7, 0", WSRD + 1)
    a("s_sub_u32 s%d, %d, s%d", sWrec, 640 * 3840, sT)
    a("s_mov_b32 s%d, s%d", WSRD + 2, sWrec)
    a("s_mov_b32 s%d, 0x20000", WSRD + 3)
    a("s_mov_b32 s%d, %d", OS + 2, WS_USED)
    a("s_mov_b32 s%d, 0x20000", OS + 3)
    a("s_mov_b32 s%d, 0", sXoff)
    a("s_mov_b32 s%d, 0", sWoff)

    ntx = " nt" if QV & 2 else ""
    ntw = " nt" if QV & 4 else ""
    def dma_ops(slot_x, slot_w):
        ops = []
        def x(i):
            if i == 0:
                a("s_add_u32 m0, s%d, %s", sM0x, slot_x); a("s_nop 0")
            a("buffer_load_dwordx4 v%d, s[%d:%d], s%d offen offset:%d%s lds", vXg + i, XS, XS + 3, sXoff, 1024 * i, ntx)
        def w(i):
            if i == 0:
                a("s_add_u32 m0, s%d, %s", sM0w, slot_w)
                a("s_add_u32 s%d, s%d, 128", sXoff, sXoff)
            a("buffer_load_dwordx4 v%d, s[%d:%d], s%d offen offset:%d%s lds", vWg + i, WSRD, WSRD + 3, sWoff, 1024 * i, ntw)
            if i == 1: a("s_add_u32 s%d, s%d, %d", sWoff, sWoff, 64 * 3840)
        for i in range(4): ops.append(lambda i=i: x(i))
        for i in range(2): ops.append(lambda i=i: w(i))
        return ops
    def dma(slot_x, slot_w):
        for op in dma_ops(slot_x, slot_w): op()
    for s in range(3 if not QV & 1 else 2):
        dma(str(s * 8192), str(s * 16384))
        if QV & 128: a("s_barrier")
    if QV & 8:
        PX, PW = 40, 44
        a("s_lshr_b32 s%d, s%d, 2", sT, sMT)
        a("s_mul_i32 s%d, s%d, %d", sT, sT, 1024 * 1280)
        a("s_add_u32 s%d, s4, s%d", PX, sT)
        a("s_addc_u32 s%d, s5, 0", PX + 1)
        a("s_mov_b32 s%d, %d", PX + 2, 1024 * 1280)
        a("s_mov_b32 s%d, 0x20000", PX + 3)
        a("s_lshr_b32 s%d, s%d, 3", sT, sNT)
        a("s_lshl_b32 s%d, s%d, 11", sT, sT)
        a("s_add_u32 s%d, s6, s%d", PW, sT)
        a("s_addc_u32 s%d, s7, 0", PW + 1)
        a("s_sub_u32 s%d, %d, s%d", PW + 2, 640 * 3840, sT)
        a("s_mov_b32 s%d, 0x20000", PW + 3)
        a("s_lshr_b32 s%d, s2, 3", sT)
        a("s_lshl_b32 s%d, s%d, 5", sT, sT)
        a("v_add_u32 v%d, s%d, v%d", vT1, sT, vM)
        a("s_add_u32 s%d, s%d, 2", sT2, sW)
        a("v_mul_u32_u24 v%d, 1280, v%d", vT2, vT1)
        a("s_lshl_b32 s%d, s%d, 7", sT, sT2)
        a("v_add_u32 v%d, s%d, v%d", vT2, sT, vT2)
        a("v_lshrrev_b32 v%d, 4, v%d", vT3, vT1)
        a("s_lshl_b32 s%d, s%d, 6", sT, sT2)
        a("v_add_u32 v%d, s%d, v%d", vT3, sT, vT3)
        a("v_mul_u32_u24 v%d, 3840, v%d", vT3, vT3)
        a("v_and_b32 v%d, 15, v%d", vT1, vT1)
        a("v_lshl_add_u32 v%d, v%d, 7, v%d", vT3, vT1, vT3)
        a("v_cmp_eq_u32 vcc, 0, v%d", vH)
        a("s_nop 1")
        a("v_cndmask_b32 v%d, -16, v%d, vcc", vT2, vT2)
        a("v_cndmask_b32 v%d, v%d, -16, vcc", vT3, vT3) if False else None
        a("v_mov_b32 v116, -16")
        a("v_cndmask_b32 v%d, v%d, v116, vcc", vT3, vT3)
        a("buffer_load_dword v116, v%d, s[%d:%d], 0 offen%s", vT2, PX, PX + 3, ntx)
        a("buffer_load_dword v117, v%d, s[%d:%d], 0 offen%s", vT3, PW, PW + 3, ntw)
    a("v_bfe_u32 v%d, v%d, 1, 3", vT1, vM)
    a("v_xor_b32 v%d, v%d, v%d", vT1, vT1, vH)
    a("s_mul_i32 s%d, s%d, 24576", sT, sWM)
    a("v_lshl_add_u32 v%d, v%d, 7, s%d", vT2, vM, sT)
    for ks in range(4):
        a("v_xor_b32 v%d, %d, v%d", vT3, 2 * ks, vT1)
        a("v_lshl_add_u32 v%d, v%d, 4, v%d", vXa + ks, vT3, vT2)
    a("v_bfe_u32 v%d, v%d, 2, 2", vT1, vLane)
    a("v_lshl_add_u32 v%d, v%d, 3, v%d", vT2, vH, vT1)
    a("v_lshlrev_b32 v%d, 8, v%d", vT2, vT2)
    a("v_add_u32 v%d, %d, v%d", vT2, WBASE, vT2)
    a("v_and_b32 v%d, 16, v%d", vT3, vLane)
    a("v_lshl_add_u32 v%d, v%d, 1, v%d", vT2, vT3, vT2)
    a("v_and_b32 v%d, 1, v%d", vT3, vLane)
    a("v_lshl_add_u32 v%d, v%d, 4, v%d", vT2, vT3, vT2)
    a("v_and_b32 v%d, 2, v%d", vT3, vLane)
    a("v_lshl_add_u32 v%d, v%d, 2, v%d", vT2, vT3, vT2)
    a("s_lshl_b32 s%d, s%d, 1", sT, sWN)
    a("v_xor_b32 v%d, s%d, v%d", vT1, sT, vT1)
    a("v_lshl_add_u32 v%d, v%d, 6, v%d", vWa + 0, vT1, vT2)
    a("v_xor_b32 v%d, 1, v%d", vT1, vT1)
    a("v_lshl_add_u32 v%d, v%d, 6, v%d", vWa + 1, vT1, vT2)
    for i in range(64):
        a("v_mov_b32 v%d, 0", ACC + i)
    a("s_mov_b32 s%d, 0", sIt)
    a("s_mov_b32 s%d, 0", sSlot)

    def reads(fb, ks):
        f = F + 16 * fb
        if QV & 64: return
        a("ds_read_b128 %s, v%d", vr(f, 4), vXa + ks)
        a("ds_read_b64_tr_b16 %s, v%d offset:%d", vr(f + 8, 2), vWa, ks * 4096)
        a("ds_read_b64_tr_b16 %s, v%d offset:%d", vr(f + 10, 2), vWa, ks * 4096 + 1024)
        a("ds_read_b128 %s, v%d offset:4096", vr(f + 4, 4), vXa + ks)
        a("ds_read_b64_tr_b16 %s, v%d offset:%d", vr(f + 12, 2), vWa + 1, ks * 4096)
        a("ds_read_b64_tr_b16 %s, v%d offset:%d", vr(f + 14, 2), vWa + 1, ks * 4096 + 1024)
    def mfmas(fb, isv):
        f = F + 16 * fb
        for (ft, tt) in ((0, 0), (0, 1), (1, 0), (1, 1)):
            d = ACC + 16 * (2 * ft + tt)
            x, w = vr(f + 4 * tt, 4), vr(f + 8 + 4 * ft, 4)
            if isv: a("v_mfma_f32_32x32x16_bf16 %s, %s, %s, %s", vr(d, 16), x, w, vr(d, 16))
            else:   a("v_mfma_f32_32x32x16_bf16 %s, %s, %s, %s", vr(d, 16), w, x, vr(d, 16))
    st.stamp()
    npf = 2 if QV & 8 else 0
    a("s_waitcnt vmcnt(%d)", (12 if not QV & 1 else 6) + npf)
    st.stamp()
    if DIAG: a("s_waitcnt lgkmcnt(0)")
    a("s_barrier")
    reads(0, 0)
    if QV & 1:
        a("s_mov_b32 s%d, %d", sT, 2 * 8192)
        a("s_mov_b32 s%d, %d", sT2, 2 * 16384)
    a("s_cmp_ge_u32 s%d, 10", sNT)
    a("s_cbranch_scc1 L_qkv_vloop")
    for isv in (False, True):
        L = "L_qkv_vloop" if isv else "L_qkv_qkloop"
        a.label(L)
        def mf1(fb, n):
            f = F + 16 * fb
            ft, tt = n // 2, n % 2
            d = ACC + 16 * (2 * ft + tt)
            x, w = vr(f + 4 * tt, 4), vr(f + 8 + 4 * ft, 4)
            if isv: a("v_mfma_f32_32x32x16_bf16 %s, %s, %s, %s", vr(d, 16), x, w, vr(d, 16))
            else:   a("v_mfma_f32_32x32x16_bf16 %s, %s, %s, %s", vr(d, 16), w, x, vr(d, 16))
        if QV & 1:
            ops = dma_ops("s%d" % sT, "s%d" % sT2)
            for (rb, rk, mb) in ((1, 1, 0), (0, 2, 1), (1, 3, 0)):
                reads(rb, rk); a("s_waitcnt lgkmcnt(6)")
                if QV & 16: ops = [lambda: None] * 6
                mf1(mb, 0); ops.pop(0)(); mf1(mb, 1); mf1(mb, 2); ops.pop(0)(); mf1(mb, 3)
        else:
            reads(1, 1); a("s_waitcnt lgkmcnt(6)"); mfmas(0, isv)
            reads(0, 2); a("s_waitcnt lgkmcnt(6)"); mfmas(1, isv)
            reads(1, 3); a("s_waitcnt lgkmcnt(6)"); mfmas(0, isv)
        a("s_cmp_lt_u32 s%d, 7", sIt)
        a("s_cselect_b32 s%d, s%d, 0", XS + 2, sXrec)
        a("s_cselect_b32 s%d, s%d, 0", WSRD + 2, sWrec)
        a("s_lshl_b32 s%d, s%d, 13", sT, sSlot)
        a("s_lshl_b32 s%d, s%d, 14", sT2, sSlot)
        a("s_cmp_eq_u32 s%d, 2", sSlot)
        a("s_cselect_b32 s%d, -2, 1", sDX)
        a("s_add_u32 s%d, s%d, s%d", sSlot, sSlot, sDX)
        a("s_lshl_b32 s%d, s%d, 14", sDW, sDX)
        a("s_lshl_b32 s%d, s%d, 13", sDX, sDX)
        for ks in range(4): a("v_add_u32 v%d, s%d, v%d", vXa + ks, sDX, vXa + ks)
        for ft in range(2): a("v_add_u32 v%d, s%d, v%d", vWa + ft, sDW, vWa + ft)
        a("s_waitcnt vmcnt(6) lgkmcnt(0)")
        if not QV & 32: a("s_barrier")
        reads(0, 0)
        if not QV & 1: dma("s%d" % sT, "s%d" % sT2)
        mfmas(1, isv)
        a("s_add_u32 s%d, s%d, 1", sIt, sIt)
        a("s_cmp_lt_u32 s%d, 10", sIt)
        a("s_cbranch_scc1 %s", L)
        st.stamp(3)
        vA = 5
        if not isv:
            a("s_lshl_b32 s%d, s%d, 4", sT, sNT)
            a("s_lshl_b32 s%d, s%d, 3", sT2, sWN)
            a("s_add_u32 s%d, s%d, s%d", sT, sT, sT2)
            a("s_mul_i32 s%d, s%d, %d", sT, sT, PS)
            a("s_mul_i32 s%d, s%d, %d", sT2, sB, QK_BYTES)
            a("s_add_u32 s%d, s%d, s%d", sT, sT, sT2)
            a("s_lshl_b32 s%d, s%d, 12", sT2, sMT)
            a("s_add_u32 s%d, s%d, s%d", sT, sT, sT2)
            a("s_lshl_b32 s%d, s%d, 10", sT2, sWM)
            a("s_add_u32 s%d, s%d, s%d", sT, sT, sT2)
            a("v_mul_u32_u24 v%d, %d, v%d", vA, PS, vH)
            a("v_lshl_add_u32 v%d, v%d, 4, v%d", vA, vM, vA)
            a("s_cmp_lt_u32 s%d, 5", sNT)
            a("s_cselect_b32 s%d, 0x%x, 1.0", sScale, f32bits(CSCALE))
            a("s_waitcnt lgkmcnt(0)")
            a("s_nop 7")
            for ft in range(2):
                for tt in range(2):
                    d = ACC + 16 * (2 * ft + tt)
                    o = F + 8 * (2 * ft + tt)
                    for i in range(16): a("v_mul_f32 v%d, s%d, v%d", d + i, sScale, d + i)
                    for i in range(8): a("v_cvt_pk_bf16_f32 v%d, v%d, v%d", o + i, d + 2 * i, d + 2 * i + 1)
                    for s in range(2):
                        a("s_add_u32 s%d, s%d, %d", sT2, sT, QK_OFF + (ft * 4 + 2 * s) * PS)
                        a("buffer_store_dwordx4 %s, v%d, s[%d:%d], s%d offen offset:%d", vr(o + 4 * s, 4), vA, OS, OS + 3, sT2, tt * 512)
            st.stamp(4); st.flush(sW, 1, 6 if PF else 5)
            a("s_endpgm")
        else:
            swap23(a, vT1, vM, vT2, vT3)
            a("s_sub_u32 s%d, s%d, 10", sT, sNT)
            a("s_lshl_b32 s%d, s%d, 7", sT, sT)
            a("s_lshl_b32 s%d, s%d, 6", sT2, sWN)
            a("s_add_u32 s%d, s%d, s%d", sT, sT, sT2)
            a("v_add_u32 v%d, s%d, v%d", vT1, sT, vT1)
            for ft in range(2):
                if ft: a("v_add_u32 v%d, 32, v%d", vT1, vT1)
                a("v_mul_u32_u24 v%d, 3277, v%d", vT2, vT1)
                a("v_lshrrev_b32 v%d, 16, v%d", vT2, vT2)
                a("v_mul_u32_u24 v%d, %d, v%d", vT2, V_HEAD - 20 * 16, vT2)
                a("v_lshl_add_u32 v%d, v%d, 4, v%d", vT2, vT1, vT2)
                a("v_mul_u32_u24 v%d, 320, v%d", vT3, vH)
                a("v_add_u32 v%d, v%d, v%d", vA + ft, vT2, vT3)
            a("s_lshl_b32 s%d, s%d, 4", sT, sMT)
            a("s_lshl_b32 s%d, s%d, 2", sT2, sWM)
            a("s_add_u32 s%d, s%d, s%d", sT, sT, sT2)
            a("s_mul_i32 s%d, s%d, 640", sT, sT)
            a("s_mul_i32 s%d, s%d, %d", sT2, sB, V_BYTES)
            a("s_add_u32 s%d, s%d, s%d", sT, sT, sT2)
            a("s_add_u32 s%d, s%d, %d", sT, sT, V_OFF)
            a("s_waitcnt lgkmcnt(0)")
            for ft in range(2):
                for tt in range(2):
                    d = ACC + 16 * (2 * ft + tt)
                    o = F + 8 * (2 * ft + tt)
                    for i in range(8): a("v_cvt_pk_bf16_f32 v%d, v%d, v%d", o + i, d + 2 * i, d + 2 * i + 1)
                    for s in range(2):
                        a("buffer_store_dwordx4 %s, v%d, s[%d:%d], s%d offen offset:%d", vr(o + 4 * s, 4), vA + ft, OS, OS + 3, sT, (tt * 2 + s) * 640)
    st.stamp(4); st.flush(sW, 1, 6 if PF else 5)
    a.label("L_qkv_end")
    a("s_endpgm")
    return name, 120, 147456

def gen_attn(a):
    name = "attn_kernel"
    kernel_head(a, name)
    WS = 8
    sW, sKH, sQG, sH, sB, sQB, sOdd, sT, sT2 = 12, 13, 14, 15, 16, 17, 18, 19, 20
    sK, sV, sKend, sO = 21, 22, 23, 24
    sMask, sMaskLo = 26, 28
    sC = 30
    sC2 = 32
    sRet = 34
    vLane, vM, vH, vT1, vT2, vT3 = 1, 2, 3, 4, 5, 6
    vQm, vQr, vKm, vKr, vV, vIdx = 7, 8, 9, 10, 11, 12
    vL = 13
    Qm, Qr, Km, Kr, V, S, O = 16, 32, 40, 56, 64, 96, 160
    NFV = 224
    a("s_cmp_ge_u32 s2, 256")
    a("s_cbranch_scc1 L_attn_end")
    st = Stamps(a, 1); st.stamp()
    a("s_load_dwordx2 s[%d:%d], s[0:1], 64", WS, WS + 1)
    a("v_lshrrev_b32 v%d, 6, v0", vT1)
    a("v_and_b32 v%d, 63, v0", vLane)
    a("v_readfirstlane_b32 s%d, v%d", sW, vT1)
    a("v_and_b32 v%d, 31, v0", vM)
    a("v_bfe_u32 v%d, v0, 5, 1", vH)
    a("s_and_b32 s%d, s2, 7", sT)
    a("s_lshl_b32 s%d, s%d, 3", sT, sT)
    a("s_lshr_b32 s%d, s2, 5", sT2)
    a("s_or_b32 s%d, s%d, s%d", sT, sT, sT2)
    a("s_lshr_b32 s%d, s%d, 5", sB, sT)
    a("s_and_b32 s%d, s%d, 31", sH, sT)
    a("s_bfe_u32 s%d, s2, 0x20003", sQB)
    a("s_and_b32 s%d, s%d, 1", sOdd, sH)
    a("s_lshr_b32 s%d, s%d, 2", sKH, sW)
    a("s_and_b32 s%d, s%d, 3", sQG, sW)
    a("s_mov_b32 s%d, %d", WS + 2, WS_USED)
    a("s_mov_b32 s%d, 0x20000", WS + 3)
    a("s_mov_b32 s%d, 0xfffff", sMask)
    a("s_mov_b32 s%d, 0xfffff", sMask + 1)
    a("s_mov_b32 s%d, -1", sMaskLo)
    a("s_mov_b32 s%d, 0", sMaskLo + 1)
    a("s_lshr_b32 s%d, s%d, 1", sT, sH)
    a("s_mul_i32 s%d, s%d, 5", sT, sT)
    a("s_mul_i32 s%d, s%d, 3", sT2, sOdd)
    a("s_add_u32 s%d, s%d, s%d", sT2, sT2, sT)
    a("s_add_u32 s%d, s%d, 2", sT, sT)
    a("s_mul_i32 s%d, s%d, %d", sT2, sT2, PS)
    a("s_mul_i32 s%d, s%d, %d", sT, sT, PS)
    a("s_lshl_b32 s%d, s%d, 3", sK, sOdd)
    a("s_add_u32 s%d, s%d, s%d", sT, sT, sK)
    a("v_mul_u32_u24 v%d, %d, v%d", vT1, PS, vH)
    a("v_add_u32 v%d, s%d, v%d", vT1, sT2, vT1)
    a("v_lshl_add_u32 v%d, v%d, 4, v%d", vQm, vM, vT1)
    a("v_lshl_add_u32 v%d, v%d, 4, s%d", vQr, vM, sT)
    swap23(a, vL, vM, vT2, vT3)
    a("v_lshl_add_u32 v%d, v%d, 4, v%d", vKm, vL, vT1)
    a("v_lshl_add_u32 v%d, v%d, 4, s%d", vKr, vL, sT)
    a("s_lshl_b32 s%d, s%d, 2", sT, sOdd)
    a("v_add_u32 v%d, s%d, v%d", vT1, sT, vL)
    a("v_subrev_u32 v%d, 20, v%d", vT2, vT1)
    a("v_min_u32 v%d, v%d, v%d", vT1, vT1, vT2)
    a("v_mul_u32_u24 v%d, 320, v%d", vT2, vH)
    a("v_lshl_add_u32 v%d, v%d, 4, v%d", vV, vT1, vT2)
    a("s_mul_i32 s%d, s%d, %d", sT, sB, QK_BYTES)
    a("s_lshl_b32 s%d, s%d, 14", sK, sKH)
    a("s_add_u32 s%d, s%d, s%d", sK, sK, sT)
    a("s_add_u32 s%d, s%d, %d", sK, sK, QK_OFF + 80 * PS)
    a("s_lshl_b32 s%d, s%d, 13", sT2, sQB)
    a("s_lshl_b32 s%d, s%d, 11", sO, sQG)
    a("s_add_u32 s%d, s%d, s%d", sO, sO, sT2)
    a("s_add_u32 s%d, s%d, s%d", sT, sT, sO)
    a("s_lshl_b32 s%d, s%d, 10", sT2, sKH)
    a("s_add_u32 s%d, s%d, s%d", sO, sO, sT2)
    a("s_add_u32 s%d, s%d, s%d", sC, sT, sT2)
    a("s_xor_b32 s%d, s%d, 1024", sT2, sT2)
    a("s_add_u32 s%d, s%d, s%d", sC + 1, sT, sT2)
    a("s_mul_i32 s%d, s%d, %d", sT, sB, O_BYTES)
    a("s_add_u32 s%d, s%d, s%d", sO, sO, sT)
    a("s_add_u32 s%d, s%d, %d", sO, sO, O_OFF)
    a("s_mul_i32 s%d, s%d, %d", sV, sB, V_BYTES)
    a("s_mul_i32 s%d, s%d, %d", sT, sH, V_HEAD)
    a("s_add_u32 s%d, s%d, s%d", sV, sV, sT)
    a("s_mul_i32 s%d, s%d, %d", sT, sKH, 64 * 640)
    a("s_add_u32 s%d, s%d, s%d", sV, sV, sT)
    a("s_add_u32 s%d, s%d, %d", sV, sV, V_OFF)
    for i in range(8): a("v_mov_b32 v%d, 0", Qr + i)
    if AV & 1:
        a("v_and_b32 v%d, 0x1b, v%d", vT1, vM)
        a("v_cmp_eq_u32 s[%d:%d], 20, v%d", sC2, sC2 + 1, vM)
        a("v_cmp_eq_u32 vcc, 24, v%d", vM)
        a("s_nop 3")
        a("s_or_b64 vcc, vcc, s[%d:%d]", sC2, sC2 + 1)
        a("v_mov_b32 v%d, 0x3f803f80", vT1)
        a("s_nop 3")
        a("v_cndmask_b32 v%d, 0, v%d, vcc", vT1, vT1)
        for i in range(32): a("v_mov_b32 v%d, v%d", V + i, vT1)
        for i in range(8): a("v_mov_b32 v%d, 0", Kr + i)
    else:
        for i in range(32): a("v_mov_b32 v%d, 0x3f803f80", V + i)
    a("s_waitcnt lgkmcnt(0)")
    srd = "s[%d:%d]" % (WS, WS + 3)
    def loadK(buf, off):
        a("buffer_load_dwordx4 %s, v%d, %s, s%d offen offset:%d", vr(Km + 4 * buf, 4), vKm, srd, sK, off)
        if AV & 1: a("s_mov_b64 exec, s[%d:%d]", sMaskLo, sMaskLo + 1)
        a("buffer_load_dwordx2 %s, v%d, %s, s%d offen offset:%d", vr(Kr + 2 * buf, 2), vKr, srd, sK, off)
        if AV & 1: a("s_mov_b64 exec, -1")
    def loadV(buf):
        a("s_mov_b64 exec, s[%d:%d]", sMask, sMask + 1)
        a("buffer_load_dwordx4 %s, v%d, %s, s%d offen", vr(V + 8 * buf, 4), vV, srd, sV)
        a("buffer_load_dwordx4 %s, v%d, %s, s%d offen offset:640", vr(V + 8 * buf + 4, 4), vV, srd, sV)
        a("s_mov_b64 exec, -1")
        a("s_add_u32 s%d, s%d, 1280", sV, sV)
    loadK(0, 0)
    for j in range(4):
        a("buffer_load_dwordx4 %s, v%d, %s, s%d offen offset:%d", vr(Qm + 4 * j, 4), vQm, srd, sC + j // 2, (j % 2) * 512)
    a("s_mov_b64 exec, s[%d:%d]", sMaskLo, sMaskLo + 1)
    for j in range(4):
        a("buffer_load_dwordx2 %s, v%d, %s, s%d offen offset:%d", vr(Qr + 2 * j, 2), vQr, srd, sC + j // 2, (j % 2) * 512)
    loadV(0); loadK(1, 512); loadV(1); loadK(2, 1024); loadV(2); loadK(3, 1536)
    a("s_add_u32 s%d, s%d, 2048", sK, sK)
    a("s_add_u32 s%d, s%d, %d", sKend, sK, 8 * 2048)
    a("v_mov_b32 v%d, 0xdddddddd", vIdx)
    for i in range(64): a("v_mov_b32 v%d, 0", O + i)
    for i in range(16): a("v_mov_b32 v%d, 0", S + 48 + i)
    def qk1(j, kb): a("v_mfma_f32_32x32x16_bf16 %s, %s, %s, 0", vr(S + 16 * j, 16), vr(Km + 4 * kb, 4), vr(Qm + 4 * j, 4))
    def qk2(j, kb): a("v_mfma_f32_32x32x8_bf16 %s, %s, %s, %s", vr(S + 16 * j, 16), vr(Kr + 2 * kb, 2), vr(Qr + 2 * j, 2), vr(S + 16 * j, 16))
    def pv(j, vb, half): a("v_smfmac_f32_32x32x32_bf16 %s, %s, %s, v%d", vr(O + 16 * j, 16), vr(V + 8 * vb + 4 * half, 4), vr(S + 16 * j + 8 * half, 8), vIdx)
    def exps(j, q):
        for i in range(4): a("v_exp_f32 v%d, v%d", S + 16 * j + 4 * q + i, S + 16 * j + 4 * q + i)
    st.stamp()
    a("s_waitcnt vmcnt(12)")
    st.stamp()
    qk1(0, 0); qk2(0, 0); qk1(1, 0); qk2(1, 0)
    a("s_nop 9")
    a.raw(".p2align 6")
    a.label("L_attn_loop")
    ORD = int(os.environ.get("ORD", "0"))
    for outer in range(8 if DIAG == 2 else 1):
      if DIAG == 2:
        a("s_memtime s[%d:%d]", 70 + 4 * outer - (4 * 8 - 28 if False else 0), 71 + 4 * outer) if outer < 7 else None
        a("s_memrealtime s[%d:%d]", 72 + 4 * outer, 73 + 4 * outer) if outer < 7 else None
      for tt in range(4):
        for j in range(4):
            pj, pvb = ((3, (tt - 1) % 4) if j == 0 else (j - 1, tt))
            nj, nkb = (j + 2) % 4, (tt if j < 2 else (tt + 1) % 4)
            def ld():
                if j == 1: loadV((tt + 3) % 4)
                if j == 2: loadK(tt, tt * 512)
            def endc():
                if tt == 3 and j == 3:
                    a("s_add_u32 s%d, s%d, 2048", sK, sK)
                    a("s_cmp_lt_u32 s%d, s%d", sK, sKend)
            if j == 1: a("s_waitcnt vmcnt(8)")
            if ORD == 0:
                if not AV & 2: pv(pj, pvb, 0)
                if not AV & 8: exps(j, 0)
                ld()
                if not AV & 2: pv(pj, pvb, 1)
                if not AV & 8: exps(j, 1)
                if not AV & 4: qk1(nj, nkb)
                if not AV & 8: exps(j, 2)
                if not AV & 20: qk2(nj, nkb)
                endc()
                if not AV & 8: exps(j, 3)
            elif ORD == 1:
                qk1(nj, nkb) if j != 2 else None
                qk2(nj, nkb) if j != 2 else None
                if j == 2: qk1(nj, nkb); qk2(nj, nkb)
                exps(j, 0); ld(); exps(j, 1)
                pv(pj, pvb, 0); pv(pj, pvb, 1)
                endc()
                exps(j, 2); exps(j, 3)
            elif ORD == 2:
                e = [(S + 16 * j + i) for i in range(16)]
                def ex(n):
                    for _ in range(n):
                        r = e.pop(0); a("v_exp_f32 v%d, v%d", r, r)
                qk1(nj, nkb); ex(3); qk2(nj, nkb); ex(5); ld()
                pv(pj, pvb, 0); ex(3); pv(pj, pvb, 1); endc(); ex(5)
    a("s_cbranch_scc1 L_attn_loop")
    if DIAG == 2: st.n = 17; st.stamp = lambda *x: None
    st.stamp()
    a("s_nop 1")
    pv(3, 3, 0); pv(3, 3, 1)
    a("s_lshl_b32 s%d, s%d, 13", sT, sW)
    a("v_lshl_add_u32 v%d, v%d, 4, s%d", vT1, vLane, sT)
    a("s_xor_b32 s%d, s%d, %d", sT, sT, 4 << 13)
    a("v_lshl_add_u32 v%d, v%d, 4, s%d", vT2, vLane, sT)
    for q in range(4): a("ds_write_b128 v%d, %s offset:%d", vT1, vr(O + 32 + 4 * q, 4), q * 1024)
    a("s_nop 7")
    for q in range(4): a("ds_write_b128 v%d, %s offset:%d", vT1, vr(O + 48 + 4 * q, 4), 4096 + q * 1024)
    a("s_waitcnt vmcnt(0) lgkmcnt(0)")
    a("s_barrier")
    st.stamp()
    for q in range(8): a("ds_read_b128 %s, v%d offset:%d", vr(S + 4 * q, 4), vT2, q * 1024)
    a("s_waitcnt lgkmcnt(0)")
    for j in range(2):
        for i in range(13): a("v_add_f32 v%d, v%d, v%d", O + 16 * j + i, O + 16 * j + i, S + 16 * j + i)
    if AV & 1:
        a("v_cmp_eq_u32 vcc, 1, v%d", vH)
        a("s_nop 3")
        for j in range(2): a("v_cndmask_b32 v%d, v%d, v%d, vcc", O + 16 * j + 12, O + 16 * j + 12, O + 16 * j + 8)
    a("v_min_f32 v%d, v%d, v%d", vT1, O + 12, O + 28)
    a("v_max_f32 v%d, v%d, v%d", vT2, O + 12, O + 28)
    a("v_mov_b32 v%d, 0", vT3)
    for j in range(2):
        for i in range(13): a("v_fmac_f32 v%d, 0, v%d", vT3, O + 16 * j + i)
    a("s_mov_b32 s%d, 0x%x", sT, f32bits(2.0 ** -30))
    a("s_mov_b32 s%d, 0x%x", sT2, f32bits(2.0 ** 60))
    a("v_cmp_le_f32 s[%d:%d], s%d, v%d", sC, sC + 1, sT, vT1)
    a("v_cmp_ge_f32 s[%d:%d], s%d, v%d", sC2, sC2 + 1, sT2, vT2)
    a("v_cmp_eq_f32 vcc, 0, v%d", vT3)
    a("s_nop 3")
    a("s_and_b64 s[%d:%d], s[%d:%d], s[%d:%d]", sC, sC + 1, sC, sC + 1, sC2, sC2 + 1)
    a("s_and_b64 s[%d:%d], s[%d:%d], vcc", sC, sC + 1, sC, sC + 1)
    a("s_cmp_eq_u64 s[%d:%d], -1", sC, sC + 1)
    if not AV & 30: a("s_cbranch_scc0 L_attn_slow")
    a.label("L_attn_fin")
    for j in range(2):
        a("v_rcp_f32 v%d, v%d", vT1 + j, O + 16 * j + 12)
    a("s_nop 0")
    for j in range(2):
        for i in range(12): a("v_mul_f32 v%d, v%d, v%d", O + 16 * j + i, O + 16 * j + i, vT1 + j)
        for i in range(6): a("v_cvt_pk_bf16_f32 v%d, v%d, v%d", S + 8 * j + i, O + 16 * j + 2 * i, O + 16 * j + 2 * i + 1)
        a("buffer_store_dwordx4 %s, v%d, %s, s%d offen offset:%d", vr(S + 8 * j, 4), vQm, srd, sO, j * 512)
    a("s_mov_b64 exec, s[%d:%d]", sMaskLo, sMaskLo + 1)
    for j in range(2):
        a("buffer_store_dwordx2 %s, v%d, %s, s%d offen offset:%d", vr(S + 8 * j + 4, 2), vQr, srd, sO, j * 512)
    st.stamp(); st.flush(sW, 1, 17 if DIAG == 2 else 6)
    a.label("L_attn_end")
    a("s_endpgm")
    a.label("L_attn_slow")
    C = S + 32
    MX = O + 32
    a("s_mul_i32 s%d, s%d, %d", sT, sB, QK_BYTES)
    a("s_add_u32 s%d, s%d, %d", sT, sT, QK_OFF + 80 * PS)
    a("s_mov_b32 s%d, s%d", sK, sT)
    a("s_add_u32 s%d, s%d, %d", sKend, sK, 64 * 512)
    a("v_mov_b32 v%d, 0xff800000", MX)
    a("v_mov_b32 v%d, 0xff800000", MX + 1)
    a.label("L_attn_slow1")
    loadK(0, 0)
    a("s_waitcnt vmcnt(0)")
    qk1(0, 0); qk2(0, 0); qk1(1, 0); qk2(1, 0)
    a("s_nop 15")
    for j in range(2):
        for i in range(8): a("v_max3_f32 v%d, v%d, v%d, v%d", MX + j, MX + j, S + 16 * j + 2 * i, S + 16 * j + 2 * i + 1)
    a("s_add_u32 s%d, s%d, 512", sK, sK)
    a("s_cmp_lt_u32 s%d, s%d", sK, sKend)
    a("s_cbranch_scc1 L_attn_slow1")
    for j in range(2):
        a("v_mov_b32 v%d, v%d", vT1, MX + j)
        a("s_nop 1")
        a("v_permlane32_swap_b32 v%d, v%d", vT1, MX + j)
        a("s_nop 1")
        a("v_max_f32 v%d, v%d, v%d", vT1, vT1, MX + j)
        for i in range(16): a("v_sub_f32 v%d, 0, v%d", C + 16 * j + i, vT1)
    for i in range(32): a("v_mov_b32 v%d, 0", O + i)
    a("s_mov_b32 s%d, s%d", sK, sT)
    a("s_mul_i32 s%d, s%d, %d", sV, sB, V_BYTES)
    a("s_mul_i32 s%d, s%d, %d", sT2, sH, V_HEAD)
    a("s_add_u32 s%d, s%d, s%d", sV, sV, sT2)
    a("s_add_u32 s%d, s%d, %d", sV, sV, V_OFF)
    a.label("L_attn_slow2")
    loadK(0, 0); loadV(0)
    a("s_waitcnt vmcnt(0)")
    for j in range(2):
        a("v_mfma_f32_32x32x16_bf16 %s, %s, %s, %s", vr(S + 16 * j, 16), vr(Km, 4), vr(Qm + 4 * j, 4), vr(C + 16 * j, 16))
        qk2(j, 0)
    a("s_nop 15")
    for j in range(2):
        for q in range(4): exps(j, q)
    a("s_nop 1")
    for j in range(2):
        pv(j, 0, 0); pv(j, 0, 1)
    a("s_add_u32 s%d, s%d, 512", sK, sK)
    a("s_cmp_lt_u32 s%d, s%d", sK, sKend)
    a("s_cbranch_scc1 L_attn_slow2")
    a("s_nop 15")
    a("s_branch L_attn_fin")
    return name, NFV, 65536

def gen_oproj(a):
    name = "oproj_kernel"
    kernel_head(a, name)
    WS, WO, OUT = 8, 12, 16
    sW, sB, sMT, sNT, sT, sT2, sOo, sWo = 20, 21, 22, 23, 24, 25, 26, 27
    vLane, vT1, vT2, vT3, vOa, vWa, vSt = 1, 2, 3, 4, 5, 6, 7
    vG = 8
    ACC = 16
    WF = 56
    OF = 96
    a("s_cmp_ge_u32 s2, 256")
    a("s_cbranch_scc1 L_op_end")
    st = Stamps(a, 2); st.stamp()
    a("s_bfe_u32 s%d, s2, 0x10002", sB)
    a("s_and_b32 s%d, s2, 3", sMT)
    a("s_lshl_b32 s%d, s%d, 2", sMT, sMT)
    a("s_bfe_u32 s%d, s2, 0x20003", sT)
    a("s_or_b32 s%d, s%d, s%d", sMT, sMT, sT)
    a("s_lshr_b32 s%d, s2, 5", sNT)
    a("s_mul_i32 s%d, s%d, 24", sT, sB)
    a("s_add_u32 s%d, s%d, 16", sT, sT)
    a("s_load_dwordx2 s[4:5], s[0:1], s%d", sT)
    a("s_load_dwordx2 s[6:7], s[0:1], 48")
    a("s_load_dwordx2 s[%d:%d], s[0:1], 64", WS, WS + 1)
    a("v_lshrrev_b32 v%d, 6, v0", vT1)
    a("v_and_b32 v%d, 63, v0", vLane)
    a("v_readfirstlane_b32 s%d, v%d", sW, vT1)
    a("v_lshrrev_b32 v%d, 4, v%d", vT1, vLane)
    a("v_mul_u32_u24 v%d, %d, v%d", vT1, PS, vT1)
    a("v_and_b32 v%d, 15, v%d", vT2, vLane)
    a("v_lshl_add_u32 v%d, v%d, 4, v%d", vOa, vT2, vT1)
    a("s_mov_b32 s%d, %d", WS + 2, WS_USED)
    a("s_mov_b32 s%d, 0x20000", WS + 3)
    a("s_mul_i32 s%d, s%d, %d", sOo, sB, O_BYTES)
    a("s_lshl_b32 s%d, s%d, 11", sT, sMT)
    a("s_add_u32 s%d, s%d, s%d", sOo, sOo, sT)
    a("s_lshl_b32 s%d, s%d, 9", sT, sW)
    a("s_add_u32 s%d, s%d, s%d", sOo, sOo, sT)
    a("s_add_u32 s%d, s%d, %d", sOo, sOo, O_OFF)
    for i in range(5):
        a("v_add_u32 v%d, %d, v%d", vT1, 64 * i, vLane)
        a("v_mul_u32_u24 v%d, 6554, v%d", vT2, vT1)
        a("v_lshrrev_b32 v%d, 16, v%d", vT2, vT2)
        a("v_mul_u32_u24 v%d, 10, v%d", vT3, vT2)
        a("v_sub_u32 v%d, v%d, v%d", vT1, vT1, vT3)
        swap23(a, vT2, vT2, vT3, vSt)
        a("v_mul_u32_u24 v%d, 1280, v%d", vT2, vT2)
        a("v_lshl_add_u32 v%d, v%d, 4, v%d", vG + i, vT1, vT2)
    a("s_waitcnt lgkmcnt(0)")
    a("s_mul_i32 s%d, s%d, 160", sT, sNT)
    a("s_add_u32 s%d, s4, s%d", WO, sT)
    a("s_addc_u32 s%d, s5, 0", WO + 1)
    a("s_sub_u32 s%d, %d, s%d", WO + 2, 640 * 1280, sT)
    a("s_mov_b32 s%d, 0x20000", WO + 3)
    a("s_mov_b32 s%d, s6", OUT)
    a("s_mov_b32 s%d, s7", OUT + 1)
    a("s_mov_b32 s%d, %d", OUT + 2, 2048 * 2560)
    a("s_mov_b32 s%d, 0x20000", OUT + 3)
    a("s_mul_i32 s%d, s%d, %d", sWo, sW, 32 * 1280)
    a("s_mul_i32 s%d, s%d, 5120", sT2, sW)
    for g in range(5):
        for i in range(5):
            a("s_add_u32 m0, s%d, %d", sT2, g * 4 * 5120 + i * 1024)
            a("s_nop 0")
            a("buffer_load_dwordx4 v%d, s[%d:%d], s%d offen lds", vG + i, WO, WO + 3, sWo)
        a("s_add_u32 s%d, s%d, %d", sWo, sWo, 4 * 32 * 1280)
        for s in range(4 * g, 4 * g + 4):
            for tt in range(2):
                a("buffer_load_dwordx4 %s, v%d, s[%d:%d], s%d offen offset:%d", vr(OF + 8 * s + 4 * tt, 4), vOa, WS, WS + 3, sOo, tt * 256)
            a("s_add_u32 s%d, s%d, %d", sOo, sOo, 4 * PS)
    a("v_lshrrev_b32 v%d, 5, v%d", vT1, vLane)
    a("v_lshlrev_b32 v%d, 4, v%d", vT1, vT1)
    a("v_bfe_u32 v%d, v%d, 2, 3", vT2, vLane)
    a("v_add_u32 v%d, v%d, v%d", vT1, vT1, vT2)
    a("v_mul_u32_u24 v%d, 160, v%d", vT1, vT1)
    a("v_and_b32 v%d, 3, v%d", vT2, vLane)
    a("v_mul_u32_u24 v%d, 40, v%d", vT2, vT2)
    a("v_add_u32 v%d, v%d, v%d", vWa, vT1, vT2)
    a("v_add_u32 v%d, %d, v%d", vT3, 10 * 5120, vWa)
    a("v_and_b32 v%d, 15, v%d", vT1, vLane)
    a("v_mul_u32_u24 v%d, 2560, v%d", vT1, vT1)
    a("v_lshrrev_b32 v%d, 4, v%d", vT2, vLane)
    a("v_mul_u32_u24 v%d, 40, v%d", vT2, vT2)
    a("v_add_u32 v%d, v%d, v%d", vSt, vT1, vT2)
    for i in range(40): a("v_mov_b32 v%d, 0", ACC + i)
    def reads(s):
        fb = s % 2
        base = vWa if s < 10 else vT3
        so = (s % 10) * 5120
        for j in range(5):
            for q in range(2):
                a("ds_read_b64_tr_b16 %s, v%d offset:%d", vr(WF + 20 * fb + 4 * j + 2 * q, 2), base, so + q * 8 * 160 + 8 * j)
    def mf(s):
        fb = s % 2
        for j in range(5):
            for tt in range(2):
                d = ACC + 4 * (5 * tt + j)
                a("v_mfma_f32_16x16x32_bf16 %s, %s, %s, %s", vr(d, 4), vr(WF + 20 * fb + 4 * j, 4), vr(OF + 8 * s + 4 * tt, 4), vr(d, 4))
    for s in range(20):
        if s % 4 == 0:
            g = s // 4
            st.stamp()
            a("s_waitcnt vmcnt(%d)", 13 * (4 - g))
            if DIAG: a("s_waitcnt lgkmcnt(0)")
            a("s_barrier")
            st.stamp()
            if DIAG: a("s_waitcnt lgkmcnt(0)")
            reads(s)
        if s % 4 != 3:
            reads(s + 1)
            a("s_waitcnt lgkmcnt(10)")
        else:
            a("s_waitcnt lgkmcnt(0)")
        mf(s)
    a("s_lshl_b32 s%d, s%d, 7", sT, sMT)
    a("s_lshl_b32 s%d, s%d, 5", sT2, sW)
    a("s_add_u32 s%d, s%d, s%d", sT, sT, sT2)
    a("s_mul_i32 s%d, s%d, 2560", sT, sT)
    a("s_mul_i32 s%d, s%d, 1280", sT2, sB)
    a("s_add_u32 s%d, s%d, s%d", sT, sT, sT2)
    a("s_mul_i32 s%d, s%d, 160", sT2, sNT)
    a("s_add_u32 s%d, s%d, s%d", sT, sT, sT2)
    a("s_nop 3")
    for tt in range(2):
        o = WF + 12 * tt
        for i in range(10): a("v_cvt_pk_bf16_f32 v%d, v%d, v%d", o + i, ACC + 20 * tt + 2 * i, ACC + 20 * tt + 2 * i + 1)
        a("buffer_store_dwordx4 %s, v%d, s[%d:%d], s%d offen", vr(o, 4), vSt, OUT, OUT + 3, sT)
        a("buffer_store_dwordx4 %s, v%d, s[%d:%d], s%d offen offset:16", vr(o + 4, 4), vSt, OUT, OUT + 3, sT)
        a("buffer_store_dwordx2 %s, v%d, s[%d:%d], s%d offen offset:32", vr(o + 8, 2), vSt, OUT, OUT + 3, sT)
        a("s_add_u32 s%d, s%d, %d", sT, sT, 16 * 2560)
    st.stamp(); st.flush(sW, 1, 12)
    a.label("L_op_end")
    a("s_endpgm")
    return name, 256, 102400

SPIN = os.environ.get("SPIN", "")
def gen_spin(a):
    name = "spin_kernel"
    kernel_head(a, name)
    ka, ia, kb, ib, mult = [int(x) for x in SPIN.split(",")]
    a("s_cmp_ge_u32 s2, 1")
    a("s_cbranch_scc1 L_spin_end")
    a("s_load_dwordx2 s[4:5], s[0:1], 64")
    a("s_waitcnt lgkmcnt(0)")
    a("s_add_u32 s4, s4, %d", DIAG_OFF)
    a("s_addc_u32 s5, s5, 0")
    a("v_mov_b32 v1, %d", (ka << 20) + 4 * ia + 128 * 16 * 8)
    a("v_mov_b32 v2, %d", (kb << 20) + 4 * ib + 128 * 16 * 8)
    a("global_load_dword v3, v1, s[4:5]")
    a("global_load_dword v4, v2, s[4:5]")
    a("s_waitcnt vmcnt(0)")
    a("v_sub_u32 v3, v4, v3")
    a("s_nop 1")
    a("v_readfirstlane_b32 s8, v3")
    a("s_memrealtime s[10:11]")
    a("s_nop 3")
    a("s_min_u32 s8, s8, 20000")
    a("s_mul_i32 s8, s8, %d", mult)
    a("s_waitcnt lgkmcnt(0)")
    a.label("L_spin")
    a("s_memrealtime s[12:13]")
    a("s_waitcnt lgkmcnt(0)")
    a("s_sub_u32 s14, s12, s10")
    a("s_cmp_lt_u32 s14, s8")
    a("s_cbranch_scc1 L_spin")
    a.label("L_spin_end")
    a("s_endpgm")
    return name, 8, 0

def main(out):
    a = A()
    ks = []
    for g, blk in ((gen_qkv, 512), (gen_attn, 512), (gen_oproj, 256)) + (((gen_spin, 64),) if SPIN else ()):
        n, nfv, lds = g(a)
        ks.append((n, nfv, lds, blk))
    hdr = "; Two independent MHA blocks (S=2048, D=640, H=32, Dh=20), concatenated on the last axis.\n"
    hdr += "; kernarg: 0 A_x, 8 A_wqkv, 16 A_wo, 24 B_x, 32 B_wqkv, 40 B_wo, 48 out, 56 debug, 64 ws\n"
    for n, nfv, lds, blk in ks:
        hdr += "; @launch kernel=%s grid=(256,1,1) block=(%d,1,1) lds=%d\n" % (n, blk, lds)
    s = hdr + '.amdgcn_target "amdgcn-amd-amdhsa--gfx950"\n.text\n' + a.text()
    s += '.section .rodata,"a"\n'
    for n, nfv, lds, blk in ks: s += kd(n, nfv)
    open(out, "w").write(s)

if __name__ == "__main__":
    main(sys.argv[1] if len(sys.argv) > 1 else "cdna_kernels/%s.s" % NAME)
```

```python
import math, struct, sys, os

NAME = "concat_heads__mha_block__softmax_full_mha__prompt"
PS = 32768 + 512
PAIR = 5248
KV_HEAD = 32 * PAIR
KV_OFF = 0
O_BYTES = 80 * PS
O_OFF = KV_OFF + 64 * KV_HEAD
F1_OFF = O_OFF + 2 * O_BYTES
F2_OFF = F1_OFF + 128 * 256
WS_USED = F2_OFF + 128 * 256
CSCALE = math.log2(math.e) / math.sqrt(20.0)
OOB = 0x40000000
DIAG = int(os.environ.get("DIAG", "0"))
DIAG_OFF = 64 << 20
def env(n, d): return int(os.environ.get(n, str(d)))
NT = env("NT", 0)
SKEW = env("SKEW", 0)
SPIN = os.environ.get("SPIN", "")

def f32bits(x): return struct.unpack("<I", struct.pack("<f", x))[0]

class A:
    def __init__(self): self.l = []
    def __call__(self, s, *a): self.l.append("    " + (s % a if a else s))
    def label(self, s): self.l.append(s + ":")
    def raw(self, s): self.l.append(s)
    def c(self, s): self.l.append("    ; " + s)
    def text(self): return "\n".join(self.l) + "\n"

def vr(b, n): return "v[%d:%d]" % (b, b + n - 1) if n > 1 else "v%d" % b
def sr(b, n): return "s[%d:%d]" % (b, b + n - 1) if n > 1 else "s%d" % b

def kernel_head(a, name):
    a.raw(".globl %s" % name); a.raw(".p2align 8"); a.raw(".type %s,@function" % name); a.label(name)

def kd(name, nfv, nsg=100):
    acc = (nfv + 3) // 4 * 4
    return """.p2align 6
.amdhsa_kernel %s
  .amdhsa_next_free_vgpr %d
  .amdhsa_next_free_sgpr %d
  .amdhsa_accum_offset %d
  .amdhsa_group_segment_fixed_size 0
  .amdhsa_kernarg_size 72
  .amdhsa_user_sgpr_count 2
  .amdhsa_user_sgpr_kernarg_segment_ptr 1
  .amdhsa_system_sgpr_workgroup_id_x 1
.end_amdhsa_kernel
""" % (name, nfv, nsg, acc)

class Stamps:
    def __init__(self, a):
        self.a = a
        if DIAG:
            for i in range(62, 100): a("s_mov_b32 s%d, 0", i)
            a("s_memrealtime s[60:61]")
    def __call__(self, i, wait=True):
        if not DIAG: return
        if DIAG == 1: self.a("s_memrealtime s[%d:%d]", 64 + 2 * i, 65 + 2 * i)
        else: self.a("s_memtime s[%d:%d]", 64 + 2 * i, 65 + 2 * i)
        if wait: self.a("s_waitcnt lgkmcnt(0)")
    def flush(self, swave):
        if not DIAG: return
        a = self.a
        a("s_mov_b64 exec, -1")
        a("s_waitcnt vmcnt(0)")
        self(17)
        a("s_memrealtime s[62:63]")
        a("s_load_dwordx2 s[56:57], s[0:1], 64")
        a("s_lshl_b32 s58, s2, 4")
        a("s_add_u32 s58, s58, s%d", swave)
        a("s_lshl_b32 s58, s58, 7")
        a("s_add_u32 s58, s58, %d", DIAG_OFF)
        a("v_mov_b32 v1, s58")
        a("s_waitcnt lgkmcnt(0)")
        for i in range(20):
            a("v_mov_b32 v2, s%d", 60 + 2 * i)
            a("global_store_dword v1, v2, s[56:57] offset:%d", 4 * i)
        a("s_waitcnt vmcnt(0)")

def gen_fused(a):
    name = NAME + "_kernel"
    kernel_head(a, name)
    WS, XS, WSRD = 8, 12, 16
    sNon = 20
    sB, sTB, sHP, sHH, sW, sE, sKH, sQH = 22, 23, 24, 25, 26, 27, 28, 29
    sT, sT2, sT3 = 30, 31, 32
    sXoff, sWoff, sM0x, sM0w, sIt, sDX, sDW, sSlot, sSx, sSw = 33, 34, 35, 36, 37, 38, 39, 40, 41, 42
    sDbg = 44
    sC, sC2 = 46, 48
    sKV, sCur, sNxt, sCh, sO, sR, sTmo = 33, 34, 35, 36, 38, 39, 40
    srd = sr(WS, 4)
    vLane, vM, vH, vT1, vT2, vT3 = 1, 2, 3, 4, 5, 6
    vXg, vWg, vXa, vWa = 8, 12, 232, 236
    F, ACC = 16, 96
    vK, vKr, vV, vIdx, vFl, vOm, vOr = 8, 9, 10, 11, 12, 13, 14
    vNon = 224
    Qm, Qr, Km, Kr, V, S, O = 16, 32, 40, 56, 64, 96, 160
    NFV = 240
    IMG = 163840 - 256 * 272
    WBASE = 98304
    LFLAG = 0
    WOB = 1024
    CMB = WOB + 102400

    a("s_cmp_ge_u32 s2, 256")
    a("s_cbranch_scc1 L_end")
    st = Stamps(a)
    a("s_bfe_u32 s%d, s2, 0x10002", sB)
    a("s_mul_i32 s%d, s%d, 24", sT, sB)
    a("s_load_dwordx4 s[4:7], s[0:1], s%d", sT)
    a("s_load_dwordx2 s[%d:%d], s[0:1], 64", WS, WS + 1)
    a("s_load_dwordx2 s[%d:%d], s[0:1], 56", sDbg, sDbg + 1)
    a("s_memrealtime s[%d:%d]", sNon, sNon + 1)
    a("v_lshrrev_b32 v%d, 6, v0", vT1)
    a("v_and_b32 v%d, 63, v0", vLane)
    a("v_readfirstlane_b32 s%d, v%d", sW, vT1)
    a("v_and_b32 v%d, 31, v0", vM)
    a("v_bfe_u32 v%d, v0, 5, 1", vH)
    a("s_bfe_u32 s%d, s2, 0x10001", sTB)
    a("s_lshl_b32 s%d, s%d, 2", sTB, sTB)
    a("s_bfe_u32 s%d, s2, 0x20003", sT)
    a("s_or_b32 s%d, s%d, s%d", sTB, sTB, sT)
    a("s_and_b32 s%d, s2, 1", sHH)
    a("s_lshl_b32 s%d, s%d, 3", sHP, sHH)
    a("s_lshr_b32 s%d, s2, 5", sT)
    a("s_or_b32 s%d, s%d, s%d", sHP, sHP, sT)
    a("s_and_b32 s%d, s%d, 1", sE, sW)
    a("s_bfe_u32 s%d, s%d, 0x10001", sKH, sW)
    a("s_lshr_b32 s%d, s%d, 2", sQH, sW)
    a("v_lshrrev_b32 v%d, 3, v%d", vT1, vLane)
    a("s_lshl_b32 s%d, s%d, 5", sT, sW)
    a("v_add_u32 v%d, s%d, v%d", vT1, sT, vT1)
    a("v_mul_u32_u24 v%d, 1280, v%d", vT1, vT1)
    a("v_lshrrev_b32 v%d, 4, v%d", vT2, vLane)
    a("v_and_b32 v%d, 7, v%d", vT3, vLane)
    a("v_xor_b32 v%d, v%d, v%d", vT2, vT2, vT3)
    a("v_xor_b32 v%d, 4, v%d", vT3, vT2)
    a("v_lshl_add_u32 v%d, v%d, 4, v%d", vXg + 0, vT2, vT1)
    a("v_lshl_add_u32 v%d, v%d, 4, v%d", vXg + 1, vT3, vT1)
    a("v_add_u32 v%d, %d, v%d", vXg + 1, 8 * 1280 - 1024, vXg + 1)
    a("v_add_u32 v%d, %d, v%d", vXg + 2, 16 * 1280 - 2048, vXg + 0)
    a("v_add_u32 v%d, %d, v%d", vXg + 3, 16 * 1280 - 2048, vXg + 1)
    a("v_lshrrev_b32 v%d, 4, v%d", vT1, vLane)
    a("v_lshlrev_b32 v%d, 2, v%d", vT2, vT1)
    a("v_and_b32 v%d, 15, v%d", vT3, vLane)
    a("v_xor_b32 v%d, v%d, v%d", vT2, vT2, vT3)
    a("s_lshl_b32 s%d, s%d, 3", sT, sW)
    a("v_add_u32 v%d, s%d, v%d", vT1, sT, vT1)
    a("v_mul_u32_u24 v%d, 3840, v%d", vT1, vT1)
    a("v_mul_u32_u24 v%d, 13, v%d", vT3, vT2)
    a("v_lshrrev_b32 v%d, 6, v%d", vT3, vT3)
    a("v_mul_u32_u24 v%d, %d, v%d", vT3, 1280 - 80, vT3)
    a("v_cmp_eq_u32 vcc, 15, v%d", vT2)
    a("v_lshl_add_u32 v%d, v%d, 4, v%d", vT2, vT2, vT3)
    a("v_add_u32 v%d, v%d, v%d", vT1, vT1, vT2)
    a("v_mov_b32 v%d, 0x%x", vT2, OOB)
    a("v_cndmask_b32 v%d, v%d, v%d, vcc", vWg + 0, vT1, vT2)
    a("v_add_u32 v%d, %d, v%d", vWg + 1, 4 * 3840 - 1024, vWg + 0)
    a("s_lshr_b32 s%d, s%d, 1", sT, sW)
    a("s_mul_i32 s%d, s%d, 24576", sM0x, sT)
    a("s_lshl_b32 s%d, s%d, 12", sT, sE)
    a("s_add_u32 s%d, s%d, s%d", sM0x, sM0x, sT)
    a("s_lshl_b32 s%d, s%d, 11", sM0w, sW)
    a("s_add_u32 s%d, s%d, %d", sM0w, sM0w, WBASE)
    a("s_mov_b32 s%d, %d", XS + 2, 256 * 1280)
    a("s_mov_b32 s%d, 0x20000", XS + 3)
    a("s_mov_b32 s%d, 0x20000", WSRD + 3)
    a("s_mov_b32 s%d, %d", WS + 2, WS_USED)
    a("s_mov_b32 s%d, 0x20000", WS + 3)
    if SKEW:
        a("s_xor_b32 s%d, s%d, s%d", sT, sTB, sHP)
        a("s_and_b32 s%d, s%d, 1", sT, sT)
        a("s_mul_i32 s%d, s%d, %d", sXoff, sT, 5 * 128)
        a("s_mul_i32 s%d, s%d, %d", sWoff, sT, 5 * 64 * 3840)
    else:
        a("s_mov_b32 s%d, 0", sXoff)
        a("s_mov_b32 s%d, 0", sWoff)
    a("s_mul_i32 s%d, s%d, %d", sT, sTB, 256 * 1280)
    a("s_mul_i32 s%d, s%d, 80", sT2, sHP)
    a("s_sub_u32 s%d, %d, s%d", WSRD + 2, 640 * 3840, sT2)
    a("s_or_b32 s%d, s2, s%d", sT3, sW)
    a("s_waitcnt lgkmcnt(0)")
    a("s_add_u32 s%d, s4, s%d", XS, sT)
    a("s_addc_u32 s%d, s5, 0", XS + 1)
    a("s_add_u32 s%d, s6, s%d", WSRD, sT2)
    a("s_addc_u32 s%d, s7, 0", WSRD + 1)
    a("s_cmp_lg_u32 s%d, 0", sT3)
    a("s_cbranch_scc1 L_nononce")
    a("s_or_b32 s%d, s%d, 0x80000000", sNon + 1, sNon + 1)
    a("v_mov_b32 v%d, s%d", vNon, sNon)
    a("v_mov_b32 v%d, s%d", vNon + 1, sNon + 1)
    a("v_mov_b32 v%d, 0", vT1)
    a("global_store_dwordx2 v%d, %s, s[%d:%d] sc0 sc1", vT1, vr(vNon, 2), sDbg, sDbg + 1)
    a.label("L_nononce")

    ntx = " nt" if NT & 1 else ""
    ntw = " nt" if NT & 2 else ""
    def dma_ops(slot_x, slot_w):
        ops = []
        def x(i):
            if i == 0:
                a("s_add_u32 m0, s%d, %s", sM0x, slot_x); a("s_nop 0")
            a("buffer_load_dwordx4 v%d, %s, s%d offen offset:%d%s lds", vXg + i, sr(XS, 4), sXoff, 1024 * i, ntx)
        def w(i):
            if i == 0:
                a("s_add_u32 m0, s%d, %s", sM0w, slot_w)
                a("s_add_u32 s%d, s%d, 128", sXoff, sXoff)
            a("buffer_load_dwordx4 v%d, %s, s%d offen offset:%d%s lds", vWg + i, sr(WSRD, 4), sWoff, 1024 * i, ntw)
            if i == 1:
                a("s_add_u32 s%d, s%d, %d", sWoff, sWoff, 64 * 3840)
                if SKEW:
                    a("s_cmp_eq_u32 s%d, 1280", sXoff)
                    a("s_cselect_b32 s%d, 0, s%d", sXoff, sXoff)
                    a("s_cselect_b32 s%d, 0, s%d", sWoff, sWoff)
        for i in range(4): ops.append(lambda i=i: x(i))
        for i in range(2): ops.append(lambda i=i: w(i))
        return ops
    for op in dma_ops("0", "0"): op()
    a("v_bfe_u32 v%d, v%d, 1, 3", vT1, vM)
    a("v_xor_b32 v%d, v%d, v%d", vT1, vT1, vH)
    a("s_lshr_b32 s%d, s%d, 1", sT, sW)
    a("s_mul_i32 s%d, s%d, 24576", sT, sT)
    a("v_lshl_add_u32 v%d, v%d, 7, s%d", vT2, vM, sT)
    for ks in range(4):
        a("v_xor_b32 v%d, %d, v%d", vT3, 2 * ks, vT1)
        a("v_lshl_add_u32 v%d, v%d, 4, v%d", vXa + ks, vT3, vT2)
    a("v_bfe_u32 v%d, v%d, 2, 2", vT1, vLane)
    a("v_lshl_add_u32 v%d, v%d, 3, v%d", vT2, vH, vT1)
    a("v_lshlrev_b32 v%d, 8, v%d", vT2, vT2)
    a("v_add_u32 v%d, %d, v%d", vT2, WBASE, vT2)
    a("v_and_b32 v%d, 16, v%d", vT3, vLane)
    a("v_lshl_add_u32 v%d, v%d, 1, v%d", vT2, vT3, vT2)
    a("v_and_b32 v%d, 1, v%d", vT3, vLane)
    a("v_lshl_add_u32 v%d, v%d, 4, v%d", vT2, vT3, vT2)
    a("v_and_b32 v%d, 2, v%d", vT3, vLane)
    a("v_lshl_add_u32 v%d, v%d, 2, v%d", vT2, vT3, vT2)
    a("s_lshl_b32 s%d, s%d, 1", sT, sE)
    a("v_xor_b32 v%d, s%d, v%d", vT1, sT, vT1)
    a("v_lshl_add_u32 v%d, v%d, 6, v%d", vWa + 0, vT1, vT2)
    a("v_xor_b32 v%d, 1, v%d", vT1, vT1)
    a("v_lshl_add_u32 v%d, v%d, 6, v%d", vWa + 1, vT1, vT2)
    a("s_barrier")
    for op in dma_ops("8192", "16384"): op()
    for i in range(64): a("v_mov_b32 v%d, 0", ACC + i)
    for i in range(64): a("v_mov_b32 v%d, 0", O + i)
    a("v_and_b32 v%d, s%d, v%d", vT1, sE, vH)
    a("v_cvt_f32_u32 v%d, v%d", ACC + 32 + 8, vT1)
    a("v_cvt_f32_u32 v%d, v%d", ACC + 48 + 8, vT1)
    a("s_mov_b32 s%d, 0", sIt)
    a("s_mov_b32 s%d, 0", sSlot)
    a("s_mov_b32 s%d, %d", sSx, 2 * 8192)
    a("s_mov_b32 s%d, %d", sSw, 2 * 16384)

    def reads(fb, ks):
        f = F + 16 * fb
        a("ds_read_b128 %s, v%d", vr(f, 4), vXa + ks)
        a("ds_read_b64_tr_b16 %s, v%d offset:%d", vr(f + 8, 2), vWa, ks * 4096)
        a("ds_read_b64_tr_b16 %s, v%d offset:%d", vr(f + 10, 2), vWa, ks * 4096 + 1024)
        a("ds_read_b128 %s, v%d offset:4096", vr(f + 4, 4), vXa + ks)
        a("ds_read_b64_tr_b16 %s, v%d offset:%d", vr(f + 12, 2), vWa + 1, ks * 4096)
        a("ds_read_b64_tr_b16 %s, v%d offset:%d", vr(f + 14, 2), vWa + 1, ks * 4096 + 1024)
    def mf1(fb, n):
        f = F + 16 * fb
        ft, tt = n // 2, n % 2
        d = ACC + 16 * (2 * ft + tt)
        a("v_mfma_f32_32x32x16_bf16 %s, %s, %s, %s", vr(d, 16), vr(f + 8 + 4 * ft, 4), vr(f + 4 * tt, 4), vr(d, 16))
    def stage(kind):
        ops = dma_ops("s%d" % sSx, "s%d" % sSw) if kind == 0 else [lambda: None] * 6
        if kind == 2:
            a("v_mov_b32 v%d, 0", vT1)
            a("global_load_dwordx2 %s, v%d, s[%d:%d] sc0 sc1", vr(vNon, 2), vT1, sDbg, sDbg + 1)
        for (rb, rk, mb) in ((1, 1, 0), (0, 2, 1), (1, 3, 0)):
            reads(rb, rk); a("s_waitcnt lgkmcnt(6)")
            mf1(mb, 0); ops.pop(0)(); mf1(mb, 1); mf1(mb, 2); ops.pop(0)(); mf1(mb, 3)
        if kind < 2:
            a("s_lshl_b32 s%d, s%d, 13", sSx, sSlot)
            a("s_lshl_b32 s%d, s%d, 14", sSw, sSlot)
            a("s_cmp_eq_u32 s%d, 2", sSlot)
            a("s_cselect_b32 s%d, -2, 1", sDX)
            a("s_add_u32 s%d, s%d, s%d", sSlot, sSlot, sDX)
            a("s_lshl_b32 s%d, s%d, 14", sDW, sDX)
            a("s_lshl_b32 s%d, s%d, 13", sDX, sDX)
            for ks in range(4): a("v_add_u32 v%d, s%d, v%d", vXa + ks, sDX, vXa + ks)
            for ft in range(2): a("v_add_u32 v%d, s%d, v%d", vWa + ft, sDW, vWa + ft)
            a("s_waitcnt vmcnt(%d) lgkmcnt(0)", 6 if kind == 0 else 0)
            a("s_barrier")
            reads(0, 0)
        else:
            a("s_waitcnt lgkmcnt(0)")
            a("s_barrier")
        for n in range(4): mf1(1, n)
    st(0)
    a("s_waitcnt vmcnt(6)")
    st(1)
    a("s_barrier")
    reads(0, 0)
    a.label("L_gemm")
    stage(0)
    a("s_add_u32 s%d, s%d, 1", sIt, sIt)
    a("s_cmp_lt_u32 s%d, 8", sIt)
    a("s_cbranch_scc1 L_gemm")
    stage(1)
    stage(2)
    st(2)
    vA = 7
    a("s_lshr_b32 s%d, s%d, 1", sT, sW)
    a("s_mul_i32 s%d, s%d, %d", sT, sT, 64 * 272)
    a("s_lshl_b32 s%d, s%d, 7", sT2, sE)
    a("s_add_u32 s%d, s%d, s%d", sT, sT, sT2)
    a("s_add_u32 s%d, s%d, %d", sT, sT, IMG)
    a("v_mul_u32_u24 v%d, 272, v%d", vT3, vM)
    a("v_lshl_add_u32 v%d, v%d, 4, v%d", vA, vH, vT3)
    a("v_add_u32 v%d, s%d, v%d", vA, sT, vA)
    a("s_cmp_eq_u32 s%d, 0", sE)
    a("s_cselect_b32 s%d, 0x%x, 1.0", sT2, f32bits(CSCALE))
    a("v_cmp_eq_u32 vcc, 0, v%d", vH)
    a("v_mov_b32 v%d, s%d", vT1, sT2)
    a("v_mov_b32 v%d, 0xdddddddd", vIdx)
    a("v_cndmask_b32 v%d, 1.0, v%d, vcc", vT1, vT1)
    for ft in range(2):
        for tt in range(2):
            d = ACC + 16 * (2 * ft + tt)
            o = F + 8 * (2 * ft + tt)
            if ft == 0:
                for i in range(16): a("v_mul_f32 v%d, s%d, v%d", d + i, sT2, d + i)
            else:
                for i in range(8): a("v_mul_f32 v%d, v%d, v%d", d + i, vT1, d + i)
            for i in range(8): a("v_cvt_pk_bf16_f32 v%d, v%d, v%d", o + i, d + 2 * i, d + 2 * i + 1)
            for s in range(2):
                a("ds_write_b128 v%d, %s offset:%d", vA, vr(o + 4 * s, 4), tt * 32 * 272 + ft * 64 + s * 32)
    a("s_lshl_b32 s%d, s%d, 5", sT, sW)
    a("v_mov_b32 v%d, s%d", vT2, sT)
    a("ds_write_b128 v%d, %s offset:%d", vT2, vr(O, 4), LFLAG)
    vRm, vRr, vRv = 226, 227, 228
    a("s_mul_i32 s%d, s%d, 48", sT, sE)
    a("s_add_u32 s%d, s%d, %d", sT, sT, IMG)
    a("v_lshl_add_u32 v%d, v%d, 4, v%d", vRm, vH, vT3)
    a("v_add_u32 v%d, s%d, v%d", vRm, sT, vRm)
    a("s_lshl_b32 s%d, s%d, 3", sT2, sE)
    a("s_add_u32 s%d, s%d, 32", sT2, sT2)
    a("v_mov_b32 v%d, s%d", vT1, sT2)
    a("v_add_u32 v%d, 80, v%d", vT2, vT1)
    a("v_mov_b32 v%d, 248", vRr)
    a("v_cndmask_b32 v%d, v%d, v%d, vcc", vT1, vRr, vT1)
    a("v_cndmask_b32 v%d, v%d, v%d, vcc", vT2, vRr, vT2)
    a("v_add_u32 v%d, %d, v%d", vT3, IMG, vT3)
    a("v_add_u32 v%d, v%d, v%d", vRr, vT1, vT3)
    a("v_add_u32 v%d, v%d, v%d", vRr + 2, vT2, vT3)
    a("v_bfe_u32 v%d, v%d, 2, 2", vT1, vLane)
    a("v_lshl_add_u32 v%d, v%d, 3, v%d", vT1, vH, vT1)
    a("v_mul_u32_u24 v%d, 272, v%d", vRv, vT1)
    a("v_and_b32 v%d, 1, v%d", vT1, vLane)
    a("v_lshlrev_b32 v%d, 4, v%d", vT1, vT1)
    a("v_and_b32 v%d, 2, v%d", vT2, vLane)
    a("v_lshl_add_u32 v%d, v%d, 2, v%d", vT1, vT2, vT1)
    a("s_add_u32 s%d, s%d, 160", sT, sT)
    a("v_add_u32 v%d, s%d, v%d", vT1, sT, vT1)
    a("v_and_b32 v%d, 0x13, v%d", vT2, vLane)
    a("s_add_u32 s%d, s%d, %d", sT2, sT2, IMG + 160)
    a("v_mov_b32 v%d, s%d", vT3, sT2)
    a("v_cmp_eq_u32 vcc, 16, v%d", vT2)
    a("v_mov_b32 v%d, %d", vA, IMG + 248)
    a("v_cmp_eq_u32 s[%d:%d], 17, v%d", sC, sC + 1, vT2)
    a("v_cndmask_b32 v%d, v%d, v%d, vcc", vT1, vT1, vT3)
    a("v_cmp_lt_u32 vcc, 17, v%d", vT2)
    a("v_cndmask_b32 v%d, v%d, v%d, s[%d:%d]", vT1, vT1, vA, sC, sC + 1)
    a("v_mov_b32 v%d, %d", vA, IMG + 240)
    a("v_cndmask_b32 v%d, v%d, v%d, vcc", vT1, vT1, vA)
    a("v_add_u32 v%d, v%d, v%d", vRv, vRv, vT1)
    a("s_mul_i32 s%d, s%d, %d", sT, sQH, 128 * 272)
    a("s_mul_i32 s%d, s%d, %d", sT2, sKH, 64 * 272)
    a("s_add_u32 s%d, s%d, s%d", sT3, sT, sT2)
    a("s_sub_u32 s%d, s%d, s%d", sT, sT, sT2)
    a("s_add_u32 s%d, s%d, %d", sT, sT, 64 * 272)
    a("s_lshl_b32 s%d, s%d, 1", sT2, sT2)
    a("v_add_u32 v%d, s%d, v%d", 230, sT3, vRm)
    a("v_add_u32 v%d, s%d, v%d", 231, sT, vRm)
    a("v_add_u32 v%d, s%d, v%d", 232, sT3, vRr)
    a("v_add_u32 v%d, s%d, v%d", 233, sT, vRr)
    a("v_add_u32 v%d, s%d, v%d", vRm, sT2, vRm)
    a("v_add_u32 v%d, s%d, v%d", vRr + 2, sT2, vRr + 2)
    a("v_add_u32 v%d, s%d, v%d", vRv, sT2, vRv)
    a("v_lshlrev_b32 v%d, 4, v%d", vK, vLane)
    a("v_mov_b32 v%d, 0x%x", vT3, OOB)
    a("v_cmp_eq_u32 vcc, 0, v%d", vH)
    a("v_add_u32 v%d, 2048, v%d", vT1, vK)
    a("v_min_u32 v%d, 20, v%d", vT2, vM)
    a("v_cndmask_b32 v%d, v%d, v%d, vcc", vKr, vT3, vT1)
    a("v_mul_u32_u24 v%d, 336, v%d", vT1, vH)
    a("v_lshl_add_u32 v%d, v%d, 4, v%d", vT1, vT2, vT1)
    a("v_add_u32 v%d, 2560, v%d", vT1, vT1)
    a("v_and_b32 v%d, 0x1b, v%d", vT2, vM)
    a("v_cmp_eq_u32 vcc, 24, v%d", vT2)
    a("v_cmp_gt_u32 s[%d:%d], 20, v%d", sC, sC + 1, vM)
    a("s_nop 1")
    a("s_or_b64 vcc, vcc, s[%d:%d]", sC, sC + 1)
    a("v_cndmask_b32 v%d, v%d, v%d, vcc", vV, vT3, vT1)
    a("s_lshl_b32 s%d, s%d, 5", sT, sB)
    a("s_lshl_b32 s%d, s%d, 1", sT2, sHP)
    a("s_add_u32 s%d, s%d, s%d", sT, sT, sT2)
    a("s_add_u32 s%d, s%d, s%d", sT, sT, sE)
    a("s_mul_i32 s%d, s%d, %d", sKV, sT, KV_HEAD)
    a("s_mul_i32 s%d, s%d, %d", sT2, sKH, 2 * PAIR)
    a("s_add_u32 s%d, s%d, s%d", sKV, sKV, sT2)
    if KV_OFF: a("s_add_u32 s%d, s%d, %d", sKV, sKV, KV_OFF)
    a("s_mul_i32 s%d, s%d, %d", sCur, sTB, 4 * PAIR)
    a("s_add_u32 s%d, s%d, s%d", sCur, sCur, sKV)
    a("s_lshl_b32 s%d, s%d, 1", sT, sT)
    a("s_add_u32 s%d, s%d, s%d", sT, sT, sKH)
    a("s_lshl_b32 s%d, s%d, 8", sT, sT)
    a("s_add_u32 s%d, s%d, %d", sO, sT, F1_OFF)
    a("v_cmp_gt_u32 vcc, 16, v%d", vLane)
    a("v_lshlrev_b32 v%d, 3, v%d", vFl, vLane)
    a("s_nop 0")
    a("v_cndmask_b32 v%d, v%d, v%d, vcc", vFl, vT3, vFl)
    a("s_waitcnt lgkmcnt(0)")
    st(3)
    a("s_barrier")
    for b in range(4):
        a("ds_read_b128 %s, v%d offset:%d", vr(Km + 4 * b, 4), vRm, 80 + b * 32 * 272)
        a("ds_read_b64 %s, v%d offset:%d", vr(Kr + 2 * b, 2), vRr + 2, b * 32 * 272)
        if b == 0:
            for j in range(4):
                a("ds_read_b128 %s, v%d offset:%d", vr(Qm + 4 * j, 4), 230 + j // 2, (j % 2) * 32 * 272)
                a("ds_read_b64 %s, v%d offset:%d", vr(Qr + 2 * j, 2), 232 + j // 2, (j % 2) * 32 * 272)
        for g in range(2):
            for q in range(2):
                a("ds_read_b64_tr_b16 %s, v%d offset:%d", vr(V + 8 * b + 4 * g + 2 * q, 2), vRv, (b * 32 + 16 * g + 4 * q) * 272)
    for i in range(16): a("v_mov_b32 v%d, 0", S + 48 + i)
    a("s_waitcnt vmcnt(0)")
    a.label("L_nonce")
    a("v_readfirstlane_b32 s%d, v%d", sNon + 1, vNon + 1)
    a("v_readfirstlane_b32 s%d, v%d", sNon, vNon)
    a("s_mov_b32 s%d, 0", sTmo)
    a("s_cmp_lg_u32 s%d, 0", sNon + 1)
    a("s_cbranch_scc1 L_nonce_ok")
    a.label("L_nonce_retry")
    a("v_mov_b32 v%d, 0", vT1)
    a("global_load_dwordx2 %s, v%d, s[%d:%d] sc0 sc1", vr(vNon, 2), vT1, sDbg, sDbg + 1)
    a("s_add_u32 s%d, s%d, 1", sTmo, sTmo)
    a("s_waitcnt vmcnt(0)")
    a("v_readfirstlane_b32 s%d, v%d", sNon + 1, vNon + 1)
    a("v_readfirstlane_b32 s%d, v%d", sNon, vNon)
    a("s_cmp_gt_u32 s%d, 0x4000", sTmo)
    a("s_cbranch_scc1 L_nonce_ok")
    a("s_cmp_eq_u32 s%d, 0", sNon + 1)
    a("s_cbranch_scc1 L_nonce_retry")
    a.label("L_nonce_ok")
    a("s_waitcnt lgkmcnt(0)")
    a("s_barrier")
    st(4)
    def kvop(kind, what, b, sreg, extra=0):
        op = "buffer_load_dwordx4" if kind == "ld" else "buffer_store_dwordx4"
        p, i = b // 2, b % 2
        if what == "k":   a("%s %s, v%d, %s, s%d offen offset:%d sc1", op, vr(Km + 4 * b, 4), vK, srd, sreg[p], 1024 * i)
        elif what == "r": a("%s %s, v%d, %s, s%d offen sc1", op, vr(Kr + 4 * p, 4), vKr, srd, sreg[p])
        else:             a("%s %s, v%d, %s, s%d offen offset:%d sc1", op, vr(V + 8 * b + 4 * extra, 4), vV, srd, sreg[p], 672 * (2 * i + extra))
    sCur1, sNxt1 = 41, 42
    a("s_add_u32 s%d, s%d, %d", sCur1, sCur, PAIR)
    a("s_cmp_eq_u32 s%d, 0", sQH)
    a("s_cbranch_scc1 L_nopub")
    for b in range(4):
        kvop("st", "k", b, (sCur, sCur1))
        if b % 2 == 0: kvop("st", "r", b, (sCur, sCur1))
        kvop("st", "v", b, (sCur, sCur1), 0); kvop("st", "v", b, (sCur, sCur1), 1)
    a("s_branch L_pubdone")
    a.label("L_nopub")
    a("s_setprio 2")
    a.label("L_pubdone")

    def qk1(j, kb): a("v_mfma_f32_32x32x16_bf16 %s, %s, %s, 0", vr(S + 16 * j, 16), vr(Km + 4 * kb, 4), vr(Qm + 4 * j, 4))
    def qk2(j, kb): a("v_mfma_f32_32x32x8_bf16 %s, %s, %s, %s", vr(S + 16 * j, 16), vr(Kr + 2 * kb, 2), vr(Qr + 2 * j, 2), vr(S + 16 * j, 16))
    def pv(j, vb, half): a("v_smfmac_f32_32x32x32_bf16 %s, %s, %s, v%d", vr(O + 16 * j, 16), vr(V + 8 * vb + 4 * half, 4), vr(S + 16 * j + 8 * half, 8), vIdx)
    def ex(r): a("v_exp_f32 v%d, v%d", r, r)

    def next_chunk():
        return [lambda: a("s_add_u32 s%d, s%d, 1", sCh, sCh),
                lambda: a("s_and_b32 s%d, s%d, 7", sCh, sCh),
                lambda: a("s_mul_i32 s%d, s%d, %d", sNxt, sCh, 4 * PAIR),
                lambda: a("s_add_u32 s%d, s%d, s%d", sNxt, sNxt, sKV),
                lambda: a("s_add_u32 s%d, s%d, %d", sNxt1, sNxt, PAIR)]
    N = (sNxt, sNxt1)
    sched = {
        (0, 1): [("V3a", lambda: kvop("ld", "v", 3, N, 0)), ("V3b", lambda: kvop("ld", "v", 3, N, 1))],
        (0, 2): [("K0", lambda: kvop("ld", "k", 0, N))],
        (1, 1): [("V0a", lambda: kvop("ld", "v", 0, N, 0)), ("V0b", lambda: kvop("ld", "v", 0, N, 1))],
        (1, 2): [("K1", lambda: kvop("ld", "k", 1, N)), ("R0", lambda: kvop("ld", "r", 0, N))],
        (2, 1): [("V1a", lambda: kvop("ld", "v", 1, N, 0)), ("V1b", lambda: kvop("ld", "v", 1, N, 1))],
        (2, 2): [("K2", lambda: kvop("ld", "k", 2, N))],
        (3, 1): [("V2a", lambda: kvop("ld", "v", 2, N, 0)), ("V2b", lambda: kvop("ld", "v", 2, N, 1))],
        (3, 2): [("K3", lambda: kvop("ld", "k", 3, N)), ("R1", lambda: kvop("ld", "r", 2, N))],
    }
    order = [(k, n) for k in sorted(sched) for (n, _) in sched[k]]
    def younger(name, pos):
        names = [n for _, n in order]
        i = names.index(name); cnt = 0
        while True:
            i = (i + 1) % len(order)
            if order[i][0] == pos or (order[i][0] > pos and (order[i - 1][0] < pos or i == 0)): return cnt
            cnt += 1
    def waits(tt, j):
        if j == 1: return younger("V%db" % tt, (tt, 1))
        if j == 2:
            k = (tt + 1) % 4
            return min(younger("K%d" % k, (tt, 2)), younger("R%d" % (k // 2), (tt, 2)))
        return None
    SIGP, POLLP = (2, 0), (3, 0)
    def iteration(first):
        pend = []
        for tt in range(4):
            for j in range(4):
                pj, pvb = ((3, (tt - 1) % 4) if j == 0 else (j - 1, tt))
                nj, nkb = (j + 2) % 4, (tt if j < 2 else (tt + 1) % 4)
                side = []
                w = waits(tt, j)
                if first:
                    if (tt, j) == SIGP:
                        a("s_cmp_eq_u32 s%d, 0", sQH)
                        a("s_cbranch_scc1 L_nosig")
                        a("s_waitcnt vmcnt(0)")
                        a("s_lshl_b32 s%d, s%d, 3", sT, sTB)
                        a("v_mov_b32 v%d, s%d", vT1, sT)
                        a("buffer_store_dwordx2 %s, v%d, %s, s%d offen sc0 sc1", vr(vNon, 2), vT1, srd, sO)
                        a.label("L_nosig")
                        st(5, False)
                    if (tt, j) == POLLP:
                        st(6, False)
                        a("s_mov_b32 s%d, 0", sTmo)
                        a.label("L_poll1")
                        a("buffer_load_dwordx2 %s, v%d, %s, s%d offen sc0 sc1", vr(vT2 - 1 + (vT2 - 1) % 2, 2), vFl, srd, sO)
                        a("s_add_u32 s%d, s%d, 1", sTmo, sTmo)
                        a("s_waitcnt vmcnt(0)")
                        a("v_cmp_eq_u64 vcc, s[%d:%d], %s", sNon, sNon + 1, vr(4, 2))
                        a("s_cmp_gt_u32 s%d, 0x4000", sTmo)
                        a("s_cbranch_scc1 L_poll1_ok")
                        a("s_and_b32 s%d, vcc_lo, 0xff", sT)
                        a("s_cmp_eq_u32 s%d, 0xff", sT)
                        a("s_cbranch_scc1 L_poll1_ok")
                        a("s_sleep 2")
                        a("s_branch L_poll1")
                        a.label("L_poll1_ok")
                        st(7, False)
                        a("s_mov_b32 s%d, s%d", sCh, sTB)
                        for f in next_chunk(): f()
                        for k in sorted(sched):
                            if (0, 1) < k < POLLP:
                                for _, f in sched[k]: f()
                    if (tt, j) > POLLP: side += [f for _, f in sched.get((tt, j), [])]
                    if (tt, j) != (3, 2): w = None
                else:
                    side += [f for _, f in sched.get((tt, j), [])]
                    if (tt, j) == (0, 1): side += next_chunk()
                    if (tt, j) == (3, 3):
                        side += [lambda: a("s_add_u32 s%d, s%d, 1", sIt, sIt), lambda: a("s_cmp_lt_u32 s%d, 7", sIt)]
                if w is not None: a("s_waitcnt vmcnt(%d)", w)
                regs = [S + 16 * j + i for i in range(16)]
                def ex4():
                    for _ in range(4):
                        ex(regs.pop(0))
                        if side: side.pop(0)()
                pv(pj, pvb, 0); ex4(); pv(pj, pvb, 1); ex4(); qk1(nj, nkb); ex4(); qk2(nj, nkb); ex4()
                assert not side
    qk1(0, 0); qk2(0, 0); qk1(1, 0); qk2(1, 0)
    a("s_nop 9")
    iteration(True)
    a("s_mov_b32 s%d, 0", sIt)
    st(8, False)
    a.raw(".p2align 6")
    a.label("L_attn")
    iteration(False)
    a("s_cbranch_scc1 L_attn")
    a("s_nop 1")
    pv(3, 3, 0); pv(3, 3, 1)
    st(9, False)
    a("s_mul_i32 s%d, s%d, 6656", sT, sW)
    a("s_add_u32 s%d, s%d, %d", sT, sT, CMB)
    a("v_lshl_add_u32 v%d, v%d, 4, s%d", vT1, vLane, sT)
    a("v_lshl_add_u32 v%d, v%d, 2, s%d", vT3, vLane, sT)
    a("s_xor_b32 s%d, s%d, 2", sT2, sW)
    a("s_mul_i32 s%d, s%d, 6656", sT, sT2)
    a("s_add_u32 s%d, s%d, %d", sT, sT, CMB)
    a("v_lshl_add_u32 v%d, v%d, 4, s%d", vT2, vLane, sT)
    a("v_lshl_add_u32 v%d, v%d, 2, s%d", 7, vLane, sT)
    for q in range(3): a("ds_write_b128 v%d, %s offset:%d", vT1, vr(O + 32 + 4 * q, 4), q * 1024)
    a("ds_write_b32 v%d, v%d offset:%d", vT3, O + 32 + 12, 6144)
    a("s_lshl_b32 s%d, s%d, 5", sT2, sT2)
    a("s_add_u32 s%d, s%d, %d", sT2, sT2, LFLAG)
    a("v_mov_b32 v%d, s%d", 226, sT2)
    a("s_xor_b32 s%d, s%d, 64", sT2, sT2)
    a("v_mov_b32 v%d, s%d", 227, sT2)
    a("v_mov_b32 v%d, 1", 228)
    for q in range(3): a("ds_write_b128 v%d, %s offset:%d", vT1, vr(O + 48 + 4 * q, 4), 3072 + q * 1024)
    a("ds_write_b32 v%d, v%d offset:%d", vT3, O + 48 + 12, 6400)
    a("s_waitcnt lgkmcnt(0)")
    a("ds_write_b32 v226, v228")
    def lds_wait(lbl, word, val):
        a("s_mov_b32 s%d, 0", sTmo)
        a.label(lbl)
        a("ds_read_b32 v229, v227 offset:%d", 4 * word)
        a("s_add_u32 s%d, s%d, 1", sTmo, sTmo)
        a("s_waitcnt lgkmcnt(0)")
        a("v_readfirstlane_b32 s%d, v229", sT)
        a("s_cmp_gt_u32 s%d, 0x20000", sTmo)
        a("s_cbranch_scc1 %s_ok", lbl)
        a("s_cmp_ge_u32 s%d, %s", sT, val)
        a("s_cbranch_scc1 %s_ok", lbl)
        a("s_sleep 1")
        a("s_branch %s", lbl)
        a.label(lbl + "_ok")
    lds_wait("L_cmb", 0, "1")
    for j in range(2):
        for q in range(3): a("ds_read_b128 %s, v%d offset:%d", vr(S + 16 * j + 4 * q, 4), vT2, j * 3072 + q * 1024)
        a("ds_read_b32 v%d, v7 offset:%d", S + 16 * j + 12, 6144 + 256 * j)
    a("s_mul_i32 s%d, s%d, 5", sT, sHP)
    a("s_mul_i32 s%d, s%d, 3", sT2, sE)
    a("s_add_u32 s%d, s%d, s%d", sT2, sT2, sT)
    a("s_mul_i32 s%d, s%d, %d", sT2, sT2, PS)
    a("s_add_u32 s%d, s%d, 2", sT, sT)
    a("s_mul_i32 s%d, s%d, %d", sT, sT, PS)
    a("s_lshl_b32 s%d, s%d, 3", sT3, sE)
    a("s_add_u32 s%d, s%d, s%d", sT, sT, sT3)
    a("v_mul_u32_u24 v%d, %d, v%d", vT1, PS, vH)
    a("v_lshl_add_u32 v%d, v%d, 4, v%d", vT1, vM, vT1)
    a("v_add_u32 v%d, s%d, v%d", vOm, sT2, vT1)
    a("v_lshl_add_u32 v%d, v%d, 4, s%d", vOr, vM, sT)
    a("v_lshlrev_b32 v%d, 30, v%d", vT1, vH)
    a("v_or_b32 v%d, v%d, v%d", vOr, vOr, vT1)
    a("s_lshl_b32 s%d, s%d, 1", sT, sTB)
    a("s_add_u32 s%d, s%d, s%d", sT, sT, sQH)
    a("s_lshl_b32 s%d, s%d, 1", sT, sT)
    a("s_add_u32 s%d, s%d, s%d", sT, sT, sKH)
    a("s_lshl_b32 s%d, s%d, 10", sO, sT)
    a("s_mul_i32 s%d, s%d, %d", sT2, sB, O_BYTES)
    a("s_add_u32 s%d, s%d, s%d", sO, sO, sT2)
    a("s_add_u32 s%d, s%d, %d", sO, sO, O_OFF)
    a("s_lshl_b32 s%d, s%d, 5", sT2, sB)
    a("s_add_u32 s%d, s%d, s%d", sT, sT, sT2)
    a("s_lshl_b32 s%d, s%d, 1", sT, sT)
    a("s_add_u32 s%d, s%d, s%d", sT, sT, sHH)
    a("s_lshl_b32 s%d, s%d, 8", sT, sT)
    a("s_and_b32 s%d, s%d, 7", sT2, sHP)
    a("s_lshl_b32 s%d, s%d, 1", sT2, sT2)
    a("s_add_u32 s%d, s%d, s%d", sT2, sT2, sE)
    a("s_lshl_b32 s%d, s%d, 3", sT2, sT2)
    a("s_add_u32 s%d, s%d, s%d", sT, sT, sT2)
    a("s_add_u32 s%d, s%d, %d", sNxt, sT, F2_OFF)
    a("s_waitcnt vmcnt(0) lgkmcnt(0)")
    for j in range(2):
        for i in range(13): a("v_add_f32 v%d, v%d, v%d", O + 16 * j + i, O + 16 * j + i, S + 16 * j + i)
    a("v_min_f32 v%d, v%d, v%d", vT1, O + 12, O + 28)
    a("v_max_f32 v%d, v%d, v%d", vT2, O + 12, O + 28)
    a("v_mov_b32 v%d, 0", vT3)
    for j in range(2):
        for i in range(13): a("v_fmac_f32 v%d, 0, v%d", vT3, O + 16 * j + i)
    a("s_mov_b32 s%d, 0x%x", sT, f32bits(2.0 ** -30))
    a("s_mov_b32 s%d, 0x%x", sT2, f32bits(2.0 ** 60))
    a("v_cmp_le_f32 s[%d:%d], s%d, v%d", sC, sC + 1, sT, vT1)
    a("v_cmp_ge_f32 s[%d:%d], s%d, v%d", sC2, sC2 + 1, sT2, vT2)
    a("v_cmp_eq_f32 vcc, 0, v%d", vT3)
    a("s_nop 3")
    a("s_and_b64 s[%d:%d], s[%d:%d], s[%d:%d]", sC, sC + 1, sC, sC + 1, sC2, sC2 + 1)
    a("s_and_b64 s[%d:%d], s[%d:%d], vcc", sC, sC + 1, sC, sC + 1)
    a("s_cmp_eq_u64 s[%d:%d], -1", sC, sC + 1)
    a("s_cbranch_scc0 L_slow")
    a.label("L_fin")
    for j in range(2): a("v_rcp_f32 v%d, v%d", vT1 + j, O + 16 * j + 12)
    a("s_nop 0")
    for j in range(2):
        for i in range(12): a("v_mul_f32 v%d, v%d, v%d", O + 16 * j + i, O + 16 * j + i, vT1 + j)
        for i in range(6): a("v_cvt_pk_bf16_f32 v%d, v%d, v%d", S + 8 * j + i, O + 16 * j + 2 * i, O + 16 * j + 2 * i + 1)
        a("buffer_store_dwordx4 %s, v%d, %s, s%d offen offset:%d sc1", vr(S + 8 * j, 4), vOm, srd, sO, j * 512)
        a("buffer_store_dwordx2 %s, v%d, %s, s%d offen offset:%d sc1", vr(S + 8 * j + 4, 2), vOr, srd, sO, j * 512)
    a("v_mov_b32 v%d, 0", vT1)
    a("s_waitcnt vmcnt(0)")
    a("buffer_store_dwordx2 %s, v%d, %s, s%d offen sc0 sc1", vr(vNon, 2), vT1, srd, sNxt)
    st(10)
    a("s_cmp_eq_u32 s%d, 0", sQH)
    a("s_cbranch_scc0 L_exit")
    WO, OUT = WSRD, XS
    vG, vOa, vWa2, vSt, vBw, vBr = 8, 9, 10, 11, 13, 14
    ACC2, WF, OF = 16, 56, 96
    a("s_mul_i32 s%d, s%d, 24", sT, sB)
    a("s_add_u32 s%d, s%d, 16", sT, sT)
    a("s_load_dwordx2 s[4:5], s[0:1], s%d", sT)
    a("s_load_dwordx2 s[6:7], s[0:1], 48")
    a("v_lshrrev_b32 v%d, 1, v%d", vT1, vLane)
    a("v_and_b32 v%d, 4, v%d", vT2, vT1)
    a("v_lshlrev_b32 v%d, 1, v%d", vT2, vT2)
    a("v_and_b32 v%d, 8, v%d", vT3, vT1)
    a("v_lshrrev_b32 v%d, 1, v%d", vT3, vT3)
    a("v_and_b32 v%d, 0x13, v%d", vT1, vT1)
    a("v_or3_b32 v%d, v%d, v%d, v%d", vT1, vT1, vT2, vT3)
    a("v_mul_u32_u24 v%d, 1280, v%d", vT1, vT1)
    a("v_and_b32 v%d, 1, v%d", vT2, vLane)
    a("v_lshl_add_u32 v%d, v%d, 4, v%d", vG, vT2, vT1)
    a("s_and_b32 s%d, s%d, 7", sT3, sHP)
    a("s_mul_i32 s%d, s%d, 160", sT3, sT3)
    a("s_sub_u32 s%d, %d, s%d", WO + 2, 640 * 1280, sT3)
    a("s_mov_b32 s%d, 0x20000", WO + 3)
    a("s_mov_b32 s%d, %d", OUT + 2, 2048 * 2560)
    a("s_mov_b32 s%d, 0x20000", OUT + 3)
    a("s_mul_i32 s%d, s%d, %d", sCur, sW, 5 * 40960)
    a("s_mul_i32 s%d, s%d, %d", sCh, sW, 5 * 5120)
    a("s_add_u32 s%d, s%d, %d", sCh, sCh, WOB)
    a("s_mov_b32 s%d, 0", sIt)
    a("s_waitcnt lgkmcnt(0)")
    a("s_add_u32 s%d, s4, s%d", WO, sT3)
    a("s_addc_u32 s%d, s5, 0", WO + 1)
    a("s_mov_b32 s%d, s6", OUT)
    a("s_mov_b32 s%d, s7", OUT + 1)
    a.label("L_wo")
    for i in range(5):
        a("s_add_u32 m0, s%d, %d", sCh, 1024 * i)
        a("s_add_u32 s%d, s%d, %d", sT, sCur, 32 * i)
        a("buffer_load_dwordx4 v%d, %s, s%d offen lds", vG, sr(WO, 4), sT)
    a("s_add_u32 s%d, s%d, 40960", sCur, sCur)
    a("s_add_u32 s%d, s%d, 5120", sCh, sCh)
    a("s_add_u32 s%d, s%d, 1", sIt, sIt)
    a("s_waitcnt vmcnt(0)")
    a("s_cmp_lt_u32 s%d, 5", sIt)
    a("s_cbranch_scc1 L_wo")
    a("s_xor_b32 s%d, s%d, 1", sT, sW)
    a("s_lshl_b32 s%d, s%d, 5", sT, sT)
    a("s_add_u32 s%d, s%d, %d", sT, sT, LFLAG)
    a("v_mov_b32 v%d, s%d", vT1, sT)
    a("ds_write_b32 v%d, v228 offset:4", vT1)
    a("v_lshrrev_b32 v%d, 4, v%d", vT1, vLane)
    a("v_mul_u32_u24 v%d, %d, v%d", vT2, PS, vT1)
    a("v_and_b32 v%d, 15, v%d", vT3, vLane)
    a("v_lshl_add_u32 v%d, v%d, 4, v%d", vOa, vT3, vT2)
    a("v_lshlrev_b32 v%d, 9, v%d", vT2, vH)
    a("v_lshl_add_u32 v%d, v%d, 3, v%d", vT2, vM, vT2)
    a("s_mul_i32 s%d, s%d, %d", sT, sKH, 10 * 5120)
    a("s_add_u32 s%d, s%d, %d", sT, sT, WOB)
    a("v_add_u32 v%d, s%d, v%d", vWa2, sT, vT2)
    a("s_mul_i32 s%d, s%d, 6656", sT, sW)
    a("s_add_u32 s%d, s%d, %d", sT, sT, CMB)
    a("v_lshl_add_u32 v%d, v%d, 4, s%d", 231, vLane, sT)
    a("s_xor_b32 s%d, s%d, 2", sT2, sW)
    a("s_mul_i32 s%d, s%d, 6656", sT2, sT2)
    a("s_add_u32 s%d, s%d, %d", sT2, sT2, CMB)
    a("v_lshl_add_u32 v%d, v%d, 4, s%d", 230, vLane, sT2)
    a("v_mul_u32_u24 v%d, 2560, v%d", vT2, vT3)
    a("v_lshl_add_u32 v%d, v%d, 3, v%d", vSt, vT1, vT2)
    lds_wait("L_wol", 1, "1")
    st(11)
    a("s_mov_b32 s%d, 0", sR)
    a.label("L_round")
    a("s_lshl_b32 s%d, s%d, 1", sT, sTB)
    a("s_add_u32 s%d, s%d, s%d", sT, sT, sR)
    a("s_lshl_b32 s%d, s%d, 1", sT, sT)
    a("s_add_u32 s%d, s%d, s%d", sT, sT, sHH)
    a("s_lshl_b32 s%d, s%d, 5", sT2, sB)
    a("s_add_u32 s%d, s%d, s%d", sT2, sT2, sT)
    a("s_lshl_b32 s%d, s%d, 1", sT2, sT2)
    a("s_add_u32 s%d, s%d, s%d", sT2, sT2, sKH)
    a("s_lshl_b32 s%d, s%d, 8", sT2, sT2)
    a("s_add_u32 s%d, s%d, %d", sNxt, sT2, F2_OFF)
    a("s_lshl_b32 s%d, s%d, 1", sT, sT)
    a("s_add_u32 s%d, s%d, s%d", sT, sT, sE)
    a("s_lshl_b32 s%d, s%d, 9", sO, sT)
    a("s_mul_i32 s%d, s%d, %d", sT2, sB, O_BYTES)
    a("s_add_u32 s%d, s%d, s%d", sO, sO, sT2)
    a("s_mul_i32 s%d, s%d, %d", sT2, sKH, 40 * PS)
    a("s_add_u32 s%d, s%d, s%d", sO, sO, sT2)
    a("s_add_u32 s%d, s%d, %d", sO, sO, O_OFF)
    a("s_lshl_b32 s%d, s%d, 1", sT, sT)
    a("s_add_u32 s%d, s%d, s%d", sT, sT, sKH)
    a("s_mul_i32 s%d, s%d, %d", sCur, sT, 16 * 2560)
    a("s_mul_i32 s%d, s%d, 1280", sT2, sB)
    a("s_add_u32 s%d, s%d, s%d", sCur, sCur, sT2)
    a("s_add_u32 s%d, s%d, s%d", sCur, sCur, sT3)
    for i in range(40): a("v_mov_b32 v%d, 0", ACC2 + i)
    def wreads(s):
        fb = s % 2
        for j in range(5):
            for q in range(2):
                a("ds_read_b64_tr_b16 %s, v%d offset:%d", vr(WF + 20 * fb + 4 * j + 2 * q, 2), vWa2, s * 5120 + j * 1024 + q * 256)
    wreads(0)
    a("s_mov_b32 s%d, 0", sTmo)
    a.label("L_poll2")
    a("buffer_load_dwordx2 %s, v%d, %s, s%d offen sc0 sc1", vr(4, 2), vFl, srd, sNxt)
    a("s_add_u32 s%d, s%d, 1", sTmo, sTmo)
    a("s_waitcnt vmcnt(0)")
    a("v_cmp_eq_u64 vcc, s[%d:%d], %s", sNon, sNon + 1, vr(4, 2))
    a("s_cmp_gt_u32 s%d, 0x8000", sTmo)
    a("s_cbranch_scc1 L_poll2_ok")
    a("s_and_b32 s%d, vcc_lo, 0xffff", sT)
    a("s_cmp_eq_u32 s%d, 0xffff", sT)
    a("s_cbranch_scc1 L_poll2_ok")
    a("s_sleep 4")
    a("s_branch L_poll2")
    a.label("L_poll2_ok")
    if DIAG:
        a("s_cmp_eq_u32 s%d, 0", sR); a("s_cbranch_scc1 L_dg1"); st(14, False); a("s_branch L_dg2"); a.label("L_dg1"); st(12, False); a.label("L_dg2")
        a("s_waitcnt lgkmcnt(0)")
    a("s_lshl_b32 s%d, s%d, 8", sT2, sKH)
    a("s_add_u32 s%d, s%d, s%d", sT, sO, sT2)
    a("s_xor_b32 s%d, s%d, 256", sT2, sT2)
    a("s_add_u32 s%d, s%d, s%d", sT2, sO, sT2)
    for s in range(10):
        a("buffer_load_dwordx4 %s, v%d, %s, s%d offen sc1", vr(OF + 8 * s, 4), vOa, srd, sT)
        a("buffer_load_dwordx4 %s, v%d, %s, s%d offen sc1", vr(OF + 8 * s + 4, 4), vOa, srd, sT2)
        if s < 9:
            a("s_add_u32 s%d, s%d, %d", sT, sT, 4 * PS)
            a("s_add_u32 s%d, s%d, %d", sT2, sT2, 4 * PS)
    for s in range(10):
        if s < 9:
            wreads(s + 1)
            a("s_waitcnt vmcnt(%d) lgkmcnt(10)", 2 * (9 - s))
        else:
            a("s_waitcnt vmcnt(0) lgkmcnt(0)")
        for j in range(5):
            for tt in range(2):
                d = ACC2 + 4 * (5 * tt + j)
                a("v_mfma_f32_16x16x32_bf16 %s, %s, %s, %s", vr(d, 4), vr(WF + 20 * (s % 2) + 4 * j, 4), vr(OF + 8 * s + 4 * tt, 4), vr(d, 4))
    a("s_add_u32 s%d, s%d, 1", sT2, sR)
    a("v_mov_b32 v228, s%d", sT2)
    a("s_nop 6")
    for q in range(5): a("ds_write_b128 v230, %s offset:%d", vr(ACC2 + 20 + 4 * q, 4), q * 1024)
    a("s_waitcnt lgkmcnt(0)")
    a("ds_write_b32 v226, v228 offset:8")
    lds_wait("L_xch", 2, "s%d" % sT2)
    for q in range(5): a("ds_read_b128 %s, v231 offset:%d", vr(WF + 4 * q, 4), q * 1024)
    a("s_waitcnt lgkmcnt(0)")
    for i in range(20): a("v_add_f32 v%d, v%d, v%d", ACC2 + i, ACC2 + i, WF + i)
    for i in range(10): a("v_cvt_pk_bf16_f32 v%d, v%d, v%d", WF + 20 + i, ACC2 + 2 * i, ACC2 + 2 * i + 1)
    for j in range(5):
        a("buffer_store_dwordx2 %s, v%d, %s, s%d offen offset:%d", vr(WF + 20 + 2 * j, 2), vSt, sr(OUT, 4), sCur, 32 * j)
    if DIAG:
        a("s_cmp_eq_u32 s%d, 0", sR); a("s_cbranch_scc1 L_dg3"); st(15, False); a("s_branch L_dg4"); a.label("L_dg3"); st(13, False); a.label("L_dg4")
        a("s_waitcnt lgkmcnt(0)")
    a("v_swap_b32 v230, v231")
    a("s_add_u32 s%d, s%d, 1", sR, sR)
    a("s_cmp_lt_u32 s%d, 2", sR)
    a("s_cbranch_scc1 L_round")
    a.label("L_exit")
    st.flush(sW)
    a.label("L_end")
    a("s_endpgm")
    a.label("L_slow")
    C = S + 32
    MX = O + 32
    a("s_mul_i32 s%d, s%d, %d", sT, sKH, 2 * PAIR)
    a("s_sub_u32 s%d, s%d, s%d", sKV, sKV, sT)
    a("s_mov_b32 s%d, s%d", sCur, sKV)
    a("s_add_u32 s%d, s%d, %d", sCh, sKV, KV_HEAD)
    a("v_mov_b32 v%d, 0xff800000", MX)
    a("v_mov_b32 v%d, 0xff800000", MX + 1)
    P = (sCur, sCur)
    a.label("L_slow1")
    kvop("ld", "k", 0, P); kvop("ld", "k", 1, P); kvop("ld", "r", 0, P)
    a("s_waitcnt vmcnt(0)")
    for b in range(2):
        qk1(0, b); qk2(0, b); qk1(1, b); qk2(1, b)
        a("s_nop 15")
        for j in range(2):
            for i in range(8): a("v_max3_f32 v%d, v%d, v%d, v%d", MX + j, MX + j, S + 16 * j + 2 * i, S + 16 * j + 2 * i + 1)
    a("s_add_u32 s%d, s%d, %d", sCur, sCur, PAIR)
    a("s_cmp_lt_u32 s%d, s%d", sCur, sCh)
    a("s_cbranch_scc1 L_slow1")
    for j in range(2):
        a("v_mov_b32 v%d, v%d", vT1, MX + j)
        a("s_nop 1")
        a("v_permlane32_swap_b32 v%d, v%d", vT1, MX + j)
        a("s_nop 1")
        a("v_max_f32 v%d, v%d, v%d", vT1, vT1, MX + j)
        for i in range(16): a("v_sub_f32 v%d, 0, v%d", C + 16 * j + i, vT1)
    for i in range(32): a("v_mov_b32 v%d, 0", O + i)
    a("s_mov_b32 s%d, s%d", sCur, sKV)
    a.label("L_slow2")
    kvop("ld", "k", 0, P); kvop("ld", "k", 1, P); kvop("ld", "r", 0, P)
    for b in range(2):
        kvop("ld", "v", b, P, 0); kvop("ld", "v", b, P, 1)
    a("s_waitcnt vmcnt(0)")
    for b in range(2):
        for j in range(2):
            a("v_mfma_f32_32x32x16_bf16 %s, %s, %s, %s", vr(S + 16 * j, 16), vr(Km + 4 * b, 4), vr(Qm + 4 * j, 4), vr(C + 16 * j, 16))
            qk2(j, b)
        a("s_nop 15")
        for i in range(32): ex(S + i)
        a("s_nop 1")
        for j in range(2):
            pv(j, b, 0); pv(j, b, 1)
    a("s_add_u32 s%d, s%d, %d", sCur, sCur, PAIR)
    a("s_cmp_lt_u32 s%d, s%d", sCur, sCh)
    a("s_cbranch_scc1 L_slow2")
    a("s_nop 15")
    a("s_branch L_fin")
    return name, NFV, 163840

def gen_spin(a):
    name = "spin_kernel"
    kernel_head(a, name)
    wa, ia, wb, ib, mult = [int(x) for x in SPIN.split(",")]
    a("s_cmp_ge_u32 s2, 1")
    a("s_cbranch_scc1 L_spin_end")
    a("s_load_dwordx2 s[4:5], s[0:1], 64")
    a("s_waitcnt lgkmcnt(0)")
    a("s_add_u32 s4, s4, %d", DIAG_OFF)
    a("s_addc_u32 s5, s5, 0")
    a("v_mov_b32 v1, %d", 4 * ia + 128 * (16 * 8 + wa))
    a("v_mov_b32 v2, %d", 4 * ib + 128 * (16 * 8 + wb))
    a("global_load_dword v3, v1, s[4:5]")
    a("global_load_dword v4, v2, s[4:5]")
    a("s_waitcnt vmcnt(0)")
    a("v_sub_u32 v3, v4, v3")
    a("s_nop 1")
    a("v_readfirstlane_b32 s8, v3")
    a("s_memrealtime s[10:11]")
    a("s_nop 3")
    a("s_min_u32 s8, s8, 20000")
    a("s_mul_i32 s8, s8, %d", mult)
    a("s_waitcnt lgkmcnt(0)")
    a.label("L_spin")
    a("s_memrealtime s[12:13]")
    a("s_waitcnt lgkmcnt(0)")
    a("s_sub_u32 s14, s12, s10")
    a("s_cmp_lt_u32 s14, s8")
    a("s_cbranch_scc1 L_spin")
    a.label("L_spin_end")
    a("s_endpgm")
    return name, 8, 0

def main(out):
    a = A()
    ks = []
    for g, blk in ((gen_fused, 512),) + (((gen_spin, 64),) if SPIN else ()):
        n, nfv, lds = g(a)
        ks.append((n, nfv, lds, blk))
    hdr = "; Two independent MHA blocks (S=2048, D=640, H=32, Dh=20), concatenated on the last axis; one fused kernel.\n"
    hdr += "; kernarg: 0 A_x, 8 A_wqkv, 16 A_wo, 24 B_x, 32 B_wqkv, 40 B_wo, 48 out, 56 debug, 64 ws\n"
    if len(ks) == 1:
        hdr += "; @launch grid=(256,1,1) block=(%d,1,1) lds=%d\n" % (ks[0][3], ks[0][2])
    else:
        for n, nfv, lds, blk in ks:
            hdr += "; @launch kernel=%s grid=(256,1,1) block=(%d,1,1) lds=%d\n" % (n, blk, lds)
    s = hdr + '.amdgcn_target "amdgcn-amd-amdhsa--gfx950"\n.text\n' + a.text()
    s += '.section .rodata,"a"\n'
    for n, nfv, lds, blk in ks: s += kd(n, nfv)
    open(out, "w").write(s)

if __name__ == "__main__":
    main(sys.argv[1] if len(sys.argv) > 1 else "cdna_kernels/%s.s" % NAME)
```

```python
import math, struct, sys, os

NAME = "concat_heads__mha_block__softmax_full_mha__prompt"
BLK = 12288
KV_PAIR = 32 * BLK
KV_OFF = 0
OB = 2560
O_OFF = KV_OFF + 32 * KV_PAIR
O_BYTES = 32 * 32 * OB
F1_OFF = O_OFF + 2 * O_BYTES
F2_OFF = F1_OFF + 128 * 256
WS_USED = F2_OFF + 2048 * 128
CSCALE = math.log2(math.e) / math.sqrt(20.0)
OOB = 0x40000000
DIAG = int(os.environ.get("DIAG", "0"))
DIAG_OFF = 64 << 20
def env(n, d): return int(os.environ.get(n, str(d)))
NT = env("NT", 0)
SKEW = env("SKEW", 0)
HELP = env("HELP", 1)
SPIN = os.environ.get("SPIN", "")

def f32bits(x): return struct.unpack("<I", struct.pack("<f", x))[0]

class A:
    def __init__(self): self.l = []
    def __call__(self, s, *a): self.l.append("    " + (s % a if a else s))
    def label(self, s): self.l.append(s + ":")
    def raw(self, s): self.l.append(s)
    def c(self, s): self.l.append("    ; " + s)
    def text(self): return "\n".join(self.l) + "\n"

def vr(b, n): return "v[%d:%d]" % (b, b + n - 1) if n > 1 else "v%d" % b
def sr(b, n): return "s[%d:%d]" % (b, b + n - 1) if n > 1 else "s%d" % b

def kernel_head(a, name):
    a.raw(".globl %s" % name); a.raw(".p2align 8"); a.raw(".type %s,@function" % name); a.label(name)

def kd(name, nfv, nsg=100):
    acc = (nfv + 3) // 4 * 4
    return """.p2align 6
.amdhsa_kernel %s
  .amdhsa_next_free_vgpr %d
  .amdhsa_next_free_sgpr %d
  .amdhsa_accum_offset %d
  .amdhsa_group_segment_fixed_size 0
  .amdhsa_kernarg_size 72
  .amdhsa_user_sgpr_count 2
  .amdhsa_user_sgpr_kernarg_segment_ptr 1
  .amdhsa_system_sgpr_workgroup_id_x 1
.end_amdhsa_kernel
""" % (name, nfv, nsg, acc)

class Stamps:
    def __init__(self, a):
        self.a = a
        if DIAG:
            for i in range(62, 100): a("s_mov_b32 s%d, 0", i)
            a("s_memrealtime s[60:61]")
    def __call__(self, i, wait=True):
        if not DIAG: return
        if DIAG == 1: self.a("s_memrealtime s[%d:%d]", 64 + 2 * i, 65 + 2 * i)
        else: self.a("s_memtime s[%d:%d]", 64 + 2 * i, 65 + 2 * i)
        if wait: self.a("s_waitcnt lgkmcnt(0)")
    def flush(self, swave):
        if not DIAG: return
        a = self.a
        a("s_mov_b64 exec, -1")
        a("s_waitcnt vmcnt(0)")
        self(17)
        a("s_memrealtime s[62:63]")
        a("s_load_dwordx2 s[56:57], s[0:1], 64")
        a("s_lshl_b32 s58, s2, 4")
        a("s_add_u32 s58, s58, s%d", swave)
        a("s_lshl_b32 s58, s58, 7")
        a("s_add_u32 s58, s58, %d", DIAG_OFF)
        a("v_mov_b32 v1, s58")
        a("s_waitcnt lgkmcnt(0)")
        for i in range(20):
            a("v_mov_b32 v2, s%d", 60 + 2 * i)
            a("global_store_dword v1, v2, s[56:57] offset:%d", 4 * i)
        a("s_waitcnt vmcnt(0)")

def gen_fused(a):
    name = NAME + "_kernel"
    kernel_head(a, name)
    WS, XS, WSRD = 8, 12, 16
    sNon = 20
    sB, sTB, sHP, sHH, sW, sE, sKH, sQH = 22, 23, 24, 25, 26, 27, 28, 29
    sT, sT2, sT3 = 30, 31, 32
    sXoff, sWoff, sM0x, sM0w, sIt, sDX, sDW, sSlot, sSx, sSw = 33, 34, 35, 36, 37, 38, 39, 40, 41, 42
    sNxt, sNxt1, sCh, sR, sTmo, sCur = 33, 34, 35, 36, 38, 39
    sDbg = 44
    sC, sC2 = 46, 48
    sKV, sPub, sF1, sO, sF2, sMsk = 50, 51, 52, 53, 54, 55
    srd = sr(WS, 4)
    vLane, vM, vH, vT1, vT2, vT3, vT4 = 1, 2, 3, 4, 5, 6, 7
    vK, vKr, vV, vIdx, vFl, vL16, vOr, vS1 = 8, 9, 10, 11, 12, 13, 14, 15
    vNon = 224
    vXg, vWg, vXa, vWa = 226, 230, 232, 234
    vG0, vG1, vL0, vL1, vSc = 238, 239, 240, 241, 242
    vRk, vRr, vRv, vRq0, vRq1, vRqr0, vRqr1 = 245, 246, 247, 248, 249, 250, 251
    vF1 = 252
    F, ACC = 16, 96
    Qm, Qr, Km, Kr, V, S, O = 16, 32, 40, 56, 64, 96, 160
    NFV = 256
    WBASE = 98304
    LFLAG, WOB = 0, 1024
    CMB = WOB + 102400
    IMG = 1024

    a("s_cmp_ge_u32 s2, 256")
    a("s_cbranch_scc1 L_end")
    st = Stamps(a)
    a("s_bfe_u32 s%d, s2, 0x10002", sB)
    a("s_mul_i32 s%d, s%d, 24", sT, sB)
    a("s_load_dwordx4 s[4:7], s[0:1], s%d", sT)
    a("s_load_dwordx2 s[%d:%d], s[0:1], 64", WS, WS + 1)
    a("s_load_dwordx2 s[%d:%d], s[0:1], 56", sDbg, sDbg + 1)
    a("s_memrealtime s[%d:%d]", sNon, sNon + 1)
    a("v_lshrrev_b32 v%d, 6, v0", vT1)
    a("v_and_b32 v%d, 63, v0", vLane)
    a("v_readfirstlane_b32 s%d, v%d", sW, vT1)
    a("s_bfe_u32 s%d, s2, 0x10001", sTB)
    a("s_lshl_b32 s%d, s%d, 2", sTB, sTB)
    a("s_bfe_u32 s%d, s2, 0x20003", sT)
    a("s_or_b32 s%d, s%d, s%d", sTB, sTB, sT)
    a("s_and_b32 s%d, s2, 1", sHH)
    a("s_lshl_b32 s%d, s%d, 3", sHP, sHH)
    a("s_lshr_b32 s%d, s2, 5", sT)
    a("s_or_b32 s%d, s%d, s%d", sHP, sHP, sT)
    a("s_lshr_b32 s%d, s2, 7", sT)
    a("s_xor_b32 s%d, s%d, s%d", sHP, sHP, sT)
    a("s_and_b32 s%d, s%d, 1", sE, sW)
    a("v_lshrrev_b32 v%d, 3, v0", vT1)
    a("s_mul_i32 s%d, s%d, 24", sT, sW)
    a("v_add_u32 v%d, s%d, v%d", vT1, sT, vT1)
    a("v_mul_u32_u24 v%d, 1280, v%d", vT1, vT1)
    a("v_lshrrev_b32 v%d, 4, v%d", vT4, vLane)
    a("v_and_b32 v%d, 7, v%d", vT3, vLane)
    a("v_xor_b32 v%d, v%d, v%d", vT2, vT4, vT3)
    a("v_xor_b32 v%d, 4, v%d", vT3, vT2)
    a("v_lshl_add_u32 v%d, v%d, 4, v%d", vXg + 0, vT2, vT1)
    a("v_lshl_add_u32 v%d, v%d, 4, v%d", vXg + 1, vT3, vT1)
    a("v_add_u32 v%d, %d, v%d", vXg + 1, 8 * 1280 - 1024, vXg + 1)
    a("v_add_u32 v%d, %d, v%d", vXg + 2, 16 * 1280 - 2048, vXg + 0)
    a("v_add_u32 v%d, %d, v%d", vXg + 3, 16 * 1280 - 2048, vXg + 1)
    TAB = [0, 3, 1, 4, 5, 8, 6, 9, 2, 7, 10, 11, 13, 14, 12, 15]
    tab = sum(v << (4 * i) for i, v in enumerate(TAB))
    a("s_lshl_b32 s%d, s%d, 3", sT, sE)
    a("v_lshl_add_u32 v%d, v%d, 1, s%d", vT2, vT4, sT)
    a("v_and_b32 v%d, 15, v%d", vM, vLane)
    a("v_xor_b32 v%d, v%d, v%d", vT2, vT2, vM)
    a("v_lshlrev_b32 v%d, 2, v%d", vT2, vT2)
    a("s_mov_b32 s%d, 0x%x", sC, tab & 0xffffffff)
    a("s_mov_b32 s%d, 0x%x", sC + 1, tab >> 32)
    a("v_lshrrev_b64 v[16:17], v%d, s[%d:%d]", vT2, sC, sC + 1)
    a("v_and_b32 v%d, 15, v16", vT2)
    a("s_lshl_b32 s%d, s%d, 3", sT, sW)
    a("v_add_u32 v%d, s%d, v%d", vT1, sT, vT4)
    a("v_mul_u32_u24 v%d, 3840, v%d", vT1, vT1)
    a("v_mul_u32_u24 v%d, 13, v%d", vT3, vT2)
    a("v_lshrrev_b32 v%d, 6, v%d", vT3, vT3)
    a("v_mul_u32_u24 v%d, %d, v%d", vT3, 1280 - 80, vT3)
    a("v_cmp_eq_u32 vcc, 15, v%d", vT2)
    a("v_lshl_add_u32 v%d, v%d, 4, v%d", vT2, vT2, vT3)
    a("v_mov_b32 v%d, 0x%x", vS1, OOB)
    if HELP:
        a("s_and_b32 s%d, s%d, 7", sT, sHP)
        a("s_mov_b32 s%d, 0x%x", sT2, OOB)
        for hp, sec in ((0, 0), (2, 1), (5, 2)):
            a("s_cmp_eq_u32 s%d, %d", sT, hp)
            a("s_cselect_b32 s%d, %d, s%d", sT2, sec * 1280 + 256 - 80 * hp + HELP * 64 * 3840 - 64 * 3840 * 0, sT2)
        a("s_and_b32 s%d, s%d, 3", sT, sTB)
        a("v_cmp_eq_u32 s[%d:%d], s%d, v%d", sC, sC + 1, sT, vT4)
        a("v_mov_b32 v%d, s%d", vT3, sT2)
        a("s_nop 0")
        a("v_cndmask_b32 v%d, v%d, v%d, s[%d:%d]", vT3, vS1, vT3, sC, sC + 1)
        a("v_cndmask_b32 v%d, v%d, v%d, vcc", vT2, vT2, vT3)
    else:
        a("v_cndmask_b32 v%d, v%d, v%d, vcc", vT2, vT2, vS1)
    a("v_add_u32 v%d, v%d, v%d", vWg + 0, vT1, vT2)
    a("v_add_u32 v%d, %d, v%d", vWg + 1, 4 * 3840 - 1024, vWg + 0)
    a("s_lshr_b32 s%d, s%d, 1", sT, sW)
    a("s_mul_i32 s%d, s%d, 24576", sM0x, sT)
    a("s_lshl_b32 s%d, s%d, 12", sT, sE)
    a("s_add_u32 s%d, s%d, s%d", sM0x, sM0x, sT)
    a("s_lshl_b32 s%d, s%d, 11", sM0w, sW)
    a("s_add_u32 s%d, s%d, %d", sM0w, sM0w, WBASE)
    a("s_mov_b32 s%d, %d", XS + 2, 256 * 1280)
    a("s_mov_b32 s%d, 0x20000", XS + 3)
    a("s_mov_b32 s%d, 0x20000", WSRD + 3)
    if SKEW:
        a("s_xor_b32 s%d, s%d, s%d", sT, sTB, sHP)
        a("s_and_b32 s%d, s%d, 1", sT, sT)
        a("s_mul_i32 s%d, s%d, %d", sXoff, sT, 5 * 128)
        a("s_mul_i32 s%d, s%d, %d", sWoff, sT, 5 * 64 * 3840)
    else:
        a("s_mov_b32 s%d, 0", sXoff)
        a("s_mov_b32 s%d, 0", sWoff)
    a("s_mul_i32 s%d, s%d, %d", sT, sTB, 256 * 1280)
    a("s_mul_i32 s%d, s%d, 80", sT2, sHP)
    a("s_sub_u32 s%d, %d, s%d", WSRD + 2, 640 * 3840, sT2)
    a("s_waitcnt lgkmcnt(0)")
    a("s_add_u32 s%d, s4, s%d", XS, sT)
    a("s_addc_u32 s%d, s5, 0", XS + 1)
    a("s_add_u32 s%d, s6, s%d", WSRD, sT2)
    a("s_addc_u32 s%d, s7, 0", WSRD + 1)

    ntx = " nt" if NT & 1 else ""
    ntw = " nt" if NT & 2 else ""
    def dma_ops(slot_x, slot_w):
        ops = []
        def x(i):
            if i == 0:
                a("s_add_u32 m0, s%d, %s", sM0x, slot_x); a("s_nop 0")
            a("buffer_load_dwordx4 v%d, %s, s%d offen offset:%d%s lds", vXg + i, sr(XS, 4), sXoff, 1024 * i, ntx)
        def w(i):
            if i == 0:
                a("s_add_u32 m0, s%d, %s", sM0w, slot_w)
                a("s_add_u32 s%d, s%d, %d", sXoff, sXoff, 0 if env("NOADV", 0) & 1 else 128)
            a("buffer_load_dwordx4 v%d, %s, s%d offen offset:%d%s lds", vWg + i, sr(WSRD, 4), sWoff, 1024 * i, ntw)
            if i == 1:
                a("s_add_u32 s%d, s%d, %d", sWoff, sWoff, 0 if env("NOADV", 0) & 2 else 64 * 3840)
                if SKEW:
                    a("s_cmp_eq_u32 s%d, 1280", sXoff)
                    a("s_cselect_b32 s%d, 0, s%d", sXoff, sXoff)
                    a("s_cselect_b32 s%d, 0, s%d", sWoff, sWoff)
        for i in range(4): ops.append(lambda i=i: x(i))
        for i in range(2): ops.append(lambda i=i: w(i))
        return ops
    for op in dma_ops("0", "0"): op()
    a("s_barrier")
    a("s_or_b32 s%d, s2, s%d", sT3, sW)
    a("s_cbranch_scc1 L_nononce")
    a("s_or_b32 s%d, s%d, 0x80000000", sNon + 1, sNon + 1)
    a("v_mov_b32 v%d, s%d", vNon, sNon)
    a("v_mov_b32 v%d, s%d", vNon + 1, sNon + 1)
    a("v_mov_b32 v%d, 0", vT1)
    a("global_store_dwordx2 v%d, %s, s[%d:%d] sc0 sc1", vT1, vr(vNon, 2), sDbg, sDbg + 1)
    a.label("L_nononce")
    d1 = dma_ops("8192", "16384")
    d1.pop(0)(); d1.pop(0)()
    a("s_bfe_u32 s%d, s%d, 0x10001", sKH, sW)
    a("s_lshr_b32 s%d, s%d, 2", sQH, sW)
    a("s_mov_b32 s%d, %d", WS + 2, WS_USED)
    a("s_mov_b32 s%d, 0x20000", WS + 3)
    a("s_and_b32 s%d, s%d, 3", sT3, sW)
    a("v_lshrrev_b32 v%d, 1, v%d", vT1, vM)
    a("v_xor_b32 v%d, v%d, v%d", vT1, vT1, vT4)
    a("s_mul_i32 s%d, s%d, 24576", sT, sT3)
    a("v_lshl_add_u32 v%d, v%d, 7, s%d", vT2, vM, sT)
    a("v_lshl_add_u32 v%d, v%d, 4, v%d", vXa, vT1, vT2)
    a("v_xor_b32 v%d, 64, v%d", vXa + 1, vXa)
    a("v_bfe_u32 v%d, v%d, 2, 2", vT1, vLane)
    a("v_lshl_add_u32 v%d, v%d, 3, v%d", vT2, vT4, vT1)
    a("v_lshlrev_b32 v%d, 8, v%d", vT2, vT2)
    a("v_and_b32 v%d, 3, v%d", vT3, vLane)
    a("v_lshl_add_u32 v%d, v%d, 3, v%d", vT2, vT3, vT2)
    a("v_add_u32 v%d, %d, v%d", vT2, WBASE, vT2)
    a("v_bfe_u32 v%d, v%d, 2, 3", vT1, vLane)
    a("s_lshl_b32 s%d, s%d, 2", sT, sQH)
    a("v_xor_b32 v%d, s%d, v%d", vT1, sT, vT1)
    a("v_lshl_add_u32 v%d, v%d, 5, v%d", vWa, vT1, vT2)
    for xt in range(1, 4): a("v_xor_b32 v%d, %d, v%d", vWa + xt, 32 * xt, vWa)
    d1.pop(0)()
    a("v_lshlrev_b32 v%d, 4, v%d", vL16, vLane)
    a("s_lshl_b32 s%d, s%d, 14", sT, sT3)
    a("s_add_u32 s%d, s%d, %d", sT, sT, IMG)
    a("v_add_u32 v%d, s%d, v%d", vL0, sT, vL16)
    a("v_cmp_lt_u32 vcc, 1, v%d", vT4)
    a("v_add_u32 v%d, 4096, v%d", vT1, vL16)
    a("v_mov_b32 v%d, 0x%x", vT2, f32bits(CSCALE))
    a("v_cndmask_b32 v%d, v%d, v%d, vcc", vG0, vS1, vT1)
    a("v_cndmask_b32 v%d, v%d, 1.0, vcc", vSc, vT2)
    a("v_and_b32 v%d, 4, v%d", vT1, vM)
    a("v_and_b32 v%d, 8, v%d", vT2, vM)
    a("v_lshlrev_b32 v%d, 5, v%d", vT1, vT1)
    a("v_lshl_add_u32 v%d, v%d, 3, v%d", vT1, vT2, vT1)
    a("v_and_b32 v%d, 0x330, v%d", vT2, vL16)
    a("v_add_u32 v%d, v%d, v%d", vT1, vT1, vT2)
    a("v_add_u32 v%d, 6144, v%d", vG1, vT1)
    a("v_add_u32 v%d, s%d, v%d", vL1, sT, vG1)
    d1.pop(0)()
    for i in range(64): a("v_mov_b32 v%d, 0", ACC + i)
    a("v_and_b32 v%d, 11, v%d", vT1, vM)
    a("v_cmp_eq_u32 vcc, 8, v%d", vT1)
    a("v_mov_b32 v%d, 0x3f803f80", vT1)
    a("v_and_b32 v%d, 31, v0", vM)
    a("v_cndmask_b32 v243, 0, v%d, vcc", vT1)
    d1.pop(0)()
    a("v_bfe_u32 v%d, v0, 5, 1", vH)
    for i in range(64): a("v_mov_b32 v%d, 0", O + i)
    d1.pop(0)()
    a("v_mov_b32 v%d, 0xdddddddd", vIdx)
    a("v_and_b32 v%d, 4, v%d", vT1, vM)
    a("v_lshlrev_b32 v%d, 8, v%d", vT1, vT1)
    a("v_and_b32 v%d, 24, v%d", vT2, vM)
    a("v_lshl_add_u32 v%d, v%d, 3, v%d", vT1, vT2, vT1)
    a("v_and_b32 v%d, 3, v%d", vT2, vM)
    a("v_lshl_add_u32 v%d, v%d, 4, v%d", vT1, vT2, vT1)
    a("s_lshl_b32 s%d, s%d, 9", sT, sE)
    a("v_lshl_add_u32 v%d, v%d, 8, s%d", vT2, vH, sT)
    a("v_add_u32 v%d, v%d, v%d", vK, vT1, vT2)
    a("s_lshl_b32 s%d, s%d, 8", sT, sE)
    a("s_add_u32 s%d, s%d, %d", sT, sT, 4096 + 512)
    a("v_cmp_eq_u32 vcc, 0, v%d", vH)
    a("v_add_u32 v%d, s%d, v%d", vRr, sT, vT1)
    a("v_lshlrev_b32 v%d, 3, v%d", vT3, vLane)
    a("v_cndmask_b32 v%d, v%d, v%d, vcc", vKr, vS1, vRr)
    a("v_cndmask_b32 v%d, v%d, v%d, vcc", vFl, vS1, vT3)
    a("v_add_u32 v%d, 2048, v%d", vT3, vL16)
    a("v_cndmask_b32 v%d, v%d, v%d, vcc", vOr, vS1, vT3)
    a("v_min_u32 v%d, 20, v%d", vT1, vM)
    a("v_lshlrev_b32 v%d, 4, v%d", vT1, vT1)
    a("v_lshl_add_u32 v%d, v%d, 8, v%d", vT1, vH, vT1)
    a("s_lshl_b32 s%d, s%d, 10", sT, sE)
    a("s_add_u32 s%d, s%d, 6144", sT, sT)
    a("s_lshl_b32 s%d, s%d, 7", sT2, sE)
    a("s_add_u32 s%d, s%d, %d", sT2, sT2, 6144 + 2048 - 256)
    a("v_cmp_gt_u32 vcc, 16, v%d", vM)
    a("v_add_u32 v%d, s%d, v%d", vT2, sT, vT1)
    a("v_add_u32 v%d, s%d, v%d", vT3, sT2, vT1)
    a("v_cndmask_b32 v%d, v%d, v%d, vcc", vRv, vT3, vT2)
    a("v_and_b32 v%d, 0x1b, v%d", vT2, vM)
    a("v_cmp_eq_u32 vcc, 24, v%d", vT2)
    a("v_cmp_gt_u32 s[%d:%d], 20, v%d", sC, sC + 1, vM)
    a("s_lshl_b32 s%d, s%d, 1", sT2, sQH)
    a("s_add_u32 s%d, s%d, s%d", sT2, sT2, sKH)
    a("s_or_b64 vcc, vcc, s[%d:%d]", sC, sC + 1)
    a("v_cndmask_b32 v%d, v%d, v%d, vcc", vV, vS1, vRv)
    a("s_lshl_b32 s%d, s%d, 14", sC, sT2)
    a("s_add_u32 s%d, s%d, %d", sC, sC, IMG)
    a("s_xor_b32 s%d, s%d, %d", sC + 1, sC, 1 << 14)
    a("v_add_u32 v%d, s%d, v%d", vRq0, sC, vK)
    a("v_add_u32 v%d, s%d, v%d", vRq1, sC + 1, vK)
    a("s_sub_u32 s%d, s%d, 512", sC, sC)
    a("s_sub_u32 s%d, s%d, 512", sC + 1, sC + 1)
    a("v_add_u32 v%d, s%d, v%d", vRqr0, sC, vRr)
    a("v_add_u32 v%d, s%d, v%d", vRqr1, sC + 1, vRr)
    a("s_lshl_b32 s%d, s%d, 15", sT, sKH)
    a("s_add_u32 s%d, s%d, %d", sT, sT, IMG)
    a("v_add_u32 v%d, s%d, v%d", vRk, sT, vK)
    a("v_add_u32 v%d, s%d, v%d", vRr, sT, vRr)
    a("v_add_u32 v%d, s%d, v%d", vRv, sT, vRv)
    a("s_lshl_b32 s%d, s%d, 2", sT, sTB)
    a("s_add_u32 s%d, s%d, s%d", sT2, sT2, sT)
    a("s_lshl_b32 s%d, s%d, 5", sC, sB)
    a("s_add_u32 s%d, s%d, s%d", sT2, sT2, sC)
    a("s_lshl_b32 s%d, s%d, 4", sO, sT2)
    a("s_add_u32 s%d, s%d, s%d", sO, sO, sHP)
    a("s_lshl_b32 s%d, s%d, 1", sO, sO)
    a("s_add_u32 s%d, s%d, s%d", sO, sO, sE)
    a("s_lshl_b32 s%d, s%d, 7", sT2, sO)
    a("s_add_u32 s%d, s%d, %d", sF2, sT2, F2_OFF)
    a("s_mul_i32 s%d, s%d, %d", sO, sO, OB)
    a("s_add_u32 s%d, s%d, %d", sO, sO, O_OFF)
    a("s_lshl_b32 s%d, s%d, 4", sC, sB)
    a("s_add_u32 s%d, s%d, s%d", sC, sC, sHP)
    a("s_mul_i32 s%d, s%d, %d", sKV, sC, KV_PAIR)
    a("s_add_u32 s%d, s%d, s%d", sT, sT, sT3)
    a("s_mul_i32 s%d, s%d, %d", sPub, sT, BLK)
    a("s_add_u32 s%d, s%d, s%d", sPub, sPub, sKV)
    a("s_mul_i32 s%d, s%d, %d", sT2, sKH, 2 * BLK)
    a("s_add_u32 s%d, s%d, s%d", sKV, sKV, sT2)
    a("s_lshl_b32 s%d, s%d, 1", sC, sC)
    a("s_add_u32 s%d, s%d, s%d", sC, sC, sKH)
    a("s_lshl_b32 s%d, s%d, 8", sC, sC)
    a("s_add_u32 s%d, s%d, %d", sF1, sC, F1_OFF)
    a("s_lshl_b32 s%d, s%d, 1", sT, sTB)
    a("s_add_u32 s%d, s%d, s%d", sT, sT, sE)
    a("s_lshl_b32 s%d, s%d, 1", sT, sT)
    a("s_add_u32 s%d, s%d, s%d", sT, sT, sQH)
    a("s_lshl_b32 s%d, s%d, 3", sT, sT)
    a("v_mov_b32 v%d, s%d", vF1, sT)
    a("s_and_b32 s%d, s%d, 4", sT, sTB)
    a("s_lshl_b32 s%d, s%d, 2", sT, sT)
    a("s_lshl_b32 s%d, 0xffff, s%d", sMsk, sT)
    a("s_mov_b32 s%d, 0", sIt)
    a("s_mov_b32 s%d, 0", sSlot)

    def read_ops(fb, ks):
        f = F + 32 * fb
        ops = []
        for t in range(4):
            ops.append(lambda t=t: a("ds_read_b128 %s, v%d offset:%d", vr(f + 4 * t, 4), vXa + ks, t * 2048))
            for q in range(2):
                ops.append(lambda t=t, q=q: a("ds_read_b64_tr_b16 %s, v%d offset:%d", vr(f + 16 + 4 * t + 2 * q, 2), vWa + t, ks * 8192 + q * 1024))
        return ops
    def reads(fb, ks):
        for op in read_ops(fb, ks): op()
    RPM = env("RPM", 1)
    def mfs(fb, isB, rd, dm, misc):
        f = F + 32 * fb
        n = 0
        for (xt, t) in sorted([(x, y) for x in range(4) for y in range(4)], key=lambda p: (max(p), p)):
            d = ACC + 16 * xt + 4 * t
            x, w = vr(f + 4 * t, 4), vr(f + 16 + 4 * xt, 4)
            if isB and xt > 0: a("v_mfma_f32_16x16x32_bf16 %s, %s, %s, %s", vr(d, 4), x, w, vr(d, 4))
            else:              a("v_mfma_f32_16x16x32_bf16 %s, %s, %s, %s", vr(d, 4), w, x, vr(d, 4))
            n += 1
            if rd:
                for _ in range(RPM):
                    if rd: rd.pop(0)()
            elif dm and n % 3 == 1: dm.pop(0)()
            elif misc:
                for _ in range(3):
                    if misc: misc.pop(0)()
        for op in rd + dm + misc: op()
    def stage(kind, isB, ops):
        if kind == 2:
            a("v_mov_b32 v%d, 0", vT1)
            a("global_load_dwordx2 %s, v%d, s[%d:%d] sc0 sc1", vr(vNon, 2), vT1, sDbg, sDbg + 1)
        misc = []
        if kind < 2:
            misc = [lambda: (a("s_cmp_eq_u32 s%d, 2", sSlot), a("s_cselect_b32 s%d, -2, 1", sDX)),
                    lambda: a("s_lshl_b32 s%d, s%d, 14", sDW, sDX),
                    lambda: a("s_lshl_b32 s%d, s%d, 13", sT, sDX)]
            misc += [lambda ks=ks: a("v_add_u32 v%d, s%d, v%d", vXa + ks, sT, vXa + ks) for ks in range(2)]
            misc += [lambda ft=ft: a("v_add_u32 v%d, s%d, v%d", vWa + ft, sDW, vWa + ft) for ft in range(4)]
        a("s_waitcnt lgkmcnt(0)")
        mfs(0, isB, read_ops(1, 1), ops, misc)
        nops, rd, misc = [], [], []
        if kind < 2:
            a("s_lshl_b32 s%d, s%d, 13", sSx, sSlot)
            a("s_lshl_b32 s%d, s%d, 14", sSw, sSlot)
            a("s_waitcnt vmcnt(%d) lgkmcnt(0)", 0 if kind == 1 else 6)
            a("s_barrier")
            rd = read_ops(0, 0)
            misc = [lambda: a("s_add_u32 s%d, s%d, s%d", sSlot, sSlot, sDX)]
            if kind == 0:
                nops = dma_ops("s%d" % sSx, "s%d" % sSw)[:3]
                misc += [lambda: a("s_add_u32 s%d, s%d, 1", sIt, sIt)]
        else:
            a("s_waitcnt lgkmcnt(0)")
            a("s_barrier")
        mfs(1, isB, rd, nops, misc)
    st(0)
    a("s_waitcnt vmcnt(6)")
    st(1)
    a("s_barrier")
    reads(0, 0)
    a("s_mov_b32 s%d, %d", sSx, 2 * 8192)
    a("s_mov_b32 s%d, %d", sSw, 2 * 16384)
    d2 = dma_ops("s%d" % sSx, "s%d" % sSw)
    for i in range(3): d2.pop(0)()
    a("s_cmp_eq_u32 s%d, 0", sQH)
    a("s_cbranch_scc0 L_gemmB")
    CV = F
    for isB in (False, True):
        L = "L_gemmB" if isB else "L_gemmA"
        a.label(L)
        stage(0, isB, dma_ops("s%d" % sSx, "s%d" % sSw)[3:])
        a("s_cmp_lt_u32 s%d, 7", sIt)
        a("s_cbranch_scc1 %s", L)
        stage(-1, isB, dma_ops("s%d" % sSx, "s%d" % sSw)[3:])
        stage(1, isB, [])
        stage(2, isB, [])
        st(2, False)
        def cvt(dst, src):
            a("v_cvt_pk_bf16_f32 v%d, v%d, v%d", dst, src, src + 1)
            a("v_cvt_pk_bf16_f32 v%d, v%d, v%d", dst + 1, src + 2, src + 3)
        if not isB:
            a("s_mov_b32 s%d, 0x%x", sC, f32bits(CSCALE))
            a("s_mov_b32 s%d, s%d", sC + 1, sC)
            a("s_lshl_b32 s%d, s%d, 5", sT, sW)
            a("v_mov_b32 v%d, s%d", vT2, sT)
            a("ds_write_b128 v%d, %s offset:%d", vT2, vr(O, 4), LFLAG)
            a("s_waitcnt vmcnt(0)")
            a("s_nop 2")
            for t in range(4):
                o = CV + 4 * t
                cvt(o, ACC + 32 + 4 * t); cvt(o + 2, ACC + 48 + 4 * t)
                a("ds_write_b128 v%d, %s offset:%d", vL0, vr(o, 4), t * 1024)
                a("buffer_store_dwordx4 %s, v%d, %s, s%d offen offset:%d sc1", vr(o, 4), vL16, srd, sPub, t * 1024)
            for t in range(4):
                o = CV + 16 + 4 * t
                for xt in range(2):
                    for h in range(2):
                        r = ACC + 16 * xt + 4 * t + 2 * h
                        a("v_pk_mul_f32 %s, %s, s[%d:%d]", vr(r, 2), vr(r, 2), sC, sC + 1)
                cvt(o, ACC + 4 * t); cvt(o + 2, ACC + 16 + 4 * t)
                a("ds_write_b128 v%d, %s offset:%d", vL0, vr(o, 4), 12288 + t * 1024)
            a("s_setprio 2")
            for i in range(16): a("v_mov_b32 v%d, 0", S + 48 + i)
            a("s_waitcnt lgkmcnt(0)")
            st(3)
            a("s_barrier")
            a("s_branch L_epi_done")
        else:
            a("s_setprio 3")
            a("s_add_u32 s%d, s%d, 3072", sT2, sPub)
            a("s_mov_b32 s%d, 0xff00ff00", sC)
            a("s_mov_b32 s%d, 0xff00ff00", sC + 1)
            a("s_lshl_b32 s%d, s%d, 5", sT, sW)
            a("v_mov_b32 v%d, s%d", vT2, sT)
            a("ds_write_b128 v%d, %s offset:%d", vT2, vr(O, 4), LFLAG)
            a("s_waitcnt vmcnt(0)")
            a("s_nop 3")
            n = 0
            stores = []
            for xt in (1, 2, 3):
                for kt in range(2):
                    o = CV + 4 * n; n += 1
                    cvt(o, ACC + 16 * xt + 8 * kt); cvt(o + 2, ACC + 16 * xt + 8 * kt + 4)
                    if xt == 3:
                        for i in range(4): a("v_cndmask_b32 v%d, v%d, v243, s[%d:%d]", o + i, o + i, sC, sC + 1)
                    a("ds_write_b128 v%d, %s offset:%d", vL1, vr(o, 4), kt * 3072 + (xt - 1) * 1024)
                    stores.append("buffer_store_dwordx4 %s, v%d, %s, s%d offen offset:%d sc1" % (vr(o, 4), vG1, srd, sT2 if kt else sPub, (xt - 1) * 1024))
            for i in range(16): a("v_mul_f32 v%d, v%d, v%d", ACC + i, vSc, ACC + i)
            for q in range(2):
                o = CV + 4 * n; n += 1
                cvt(o, ACC + 4 * q); cvt(o + 2, ACC + 4 * (q + 2))
                a("ds_write_b128 v%d, %s offset:%d", vL0, vr(o, 4), 4096 + q * 1024)
                stores.append("buffer_store_dwordx4 %s, v%d, %s, s%d offen offset:%d sc1" % (vr(o, 4), vG0, srd, sPub, q * 1024))
            NPRE = env("NPRE", 2)
            for x in stores[:NPRE]: a(x)
            a("s_waitcnt lgkmcnt(0)")
            st(3)
            a("s_barrier")
            for x in stores[NPRE:]: a(x)
            for i in range(16): a("v_mov_b32 v%d, 0", S + 48 + i)
    a.label("L_epi_done")
    def rdK(b): a("ds_read_b128 %s, v%d offset:%d", vr(Km + 4 * b, 4), vRk, (b >> 1) * 16384 + (b & 1) * 2048)
    def rdR(p): a("ds_read_b128 %s, v%d offset:%d", vr(Kr + 4 * p, 4), vRr, p * 16384)
    def rdV(b):
        for g in range(2): a("ds_read_b128 %s, v%d offset:%d", vr(V + 8 * b + 4 * g, 4), vRv, (b >> 1) * 16384 + (b & 1) * 3072 + g * 512)
    def rdQ(p):
        for j in range(2): a("ds_read_b128 %s, v%d offset:%d", vr(Qm + 8 * p + 4 * j, 4), vRq0 + p, 12288 + j * 2048)
    rdK(0); rdR(0); rdQ(0)
    for i in range(8): a("v_mov_b32 v%d, 0", Qr + i)
    a("s_mov_b32 exec_hi, 0")
    a("ds_read_b128 %s, v%d", vr(Qr, 4), vRqr0)
    a("ds_read_b128 %s, v%d", vr(Qr + 4, 4), vRqr1)
    a("s_mov_b32 exec_hi, -1")
    rdQ(1); rdV(3); rdV(0); rdK(1)
    a("v_readfirstlane_b32 s%d, v%d", sNon + 1, vNon + 1)
    a("v_readfirstlane_b32 s%d, v%d", sNon, vNon)
    a("s_mov_b32 s%d, 0", sTmo)
    a("s_cmp_lg_u32 s%d, 0", sNon + 1)
    a("s_cbranch_scc1 L_nonce_ok")
    a.label("L_nonce_retry")
    a("v_mov_b32 v%d, 0", vT1)
    a("global_load_dwordx2 %s, v%d, s[%d:%d] sc0 sc1", vr(vNon, 2), vT1, sDbg, sDbg + 1)
    a("s_add_u32 s%d, s%d, 1", sTmo, sTmo)
    a("s_waitcnt vmcnt(0)")
    a("v_readfirstlane_b32 s%d, v%d", sNon + 1, vNon + 1)
    a("v_readfirstlane_b32 s%d, v%d", sNon, vNon)
    a("s_cmp_gt_u32 s%d, 0x4000", sTmo)
    a("s_cbranch_scc1 L_nonce_ok")
    a("s_cmp_eq_u32 s%d, 0", sNon + 1)
    a("s_cbranch_scc1 L_nonce_retry")
    a.label("L_nonce_ok")

    def kvop(what, b, sreg, extra=0):
        op = "buffer_load_dwordx4"
        p, i = b // 2, b % 2
        if what == "k":   a("%s %s, v%d, %s, s%d offen offset:%d sc1", op, vr(Km + 4 * b, 4), vK, srd, sreg[p], 2048 * i)
        elif what == "r": a("%s %s, v%d, %s, s%d offen sc1", op, vr(Kr + 4 * p, 4), vKr, srd, sreg[p])
        else:             a("%s %s, v%d, %s, s%d offen offset:%d sc1", op, vr(V + 8 * b + 4 * extra, 4), vV, srd, sreg[p], 3072 * i + 512 * extra)
    def qk1(j, kb): a("v_mfma_f32_32x32x16_bf16 %s, %s, %s, 0", vr(S + 16 * j, 16), vr(Km + 4 * kb, 4), vr(Qm + 4 * j, 4))
    def qk2(j, kb): a("v_mfma_f32_32x32x8_bf16 %s, %s, %s, %s", vr(S + 16 * j, 16), vr(Kr + 2 * kb, 2), vr(Qr + 2 * j, 2), vr(S + 16 * j, 16))
    def pv(j, vb, half): a("v_smfmac_f32_32x32x32_bf16 %s, %s, %s, v%d", vr(O + 16 * j, 16), vr(V + 8 * vb + 4 * half, 4), vr(S + 16 * j + 8 * half, 8), vIdx)
    def ex(r): a("v_exp_f32 v%d, v%d", r, r)
    def signal1():
        a("s_waitcnt vmcnt(0)")
        a("buffer_store_dwordx2 %s, v%d, %s, s%d offen sc0 sc1", vr(vNon, 2), vF1, srd, sF1)
    def poll(lbl, sline, mask, tmo, slp):
        a("s_mov_b32 s%d, 0", sTmo)
        a.label(lbl)
        a("buffer_load_dwordx2 v[4:5], v%d, %s, s%d offen sc0 sc1", vFl, srd, sline)
        a("s_add_u32 s%d, s%d, 1", sTmo, sTmo)
        a("s_waitcnt vmcnt(0)")
        a("v_cmp_eq_u64 vcc, s[%d:%d], v[4:5]", sNon, sNon + 1)
        a("s_cmp_gt_u32 s%d, 0x%x", sTmo, tmo)
        a("s_cbranch_scc1 %s_ok", lbl)
        a("s_andn2_b32 s%d, %s, vcc_lo", sT, mask)
        a("s_cbranch_scc0 %s_ok", lbl)
        a("s_sleep %d", slp)
        a("s_branch %s", lbl)
        a.label(lbl + "_ok")

    a("s_waitcnt lgkmcnt(7)")
    qk1(0, 0); qk2(0, 0); qk1(1, 0); qk2(1, 0)
    rdV(1); rdK(2); rdR(1); rdV(2); rdK(3)
    a("s_lshl_b32 s%d, s%d, 5", sT, sW)
    a("v_mov_b32 v226, s%d", sT)
    a("s_xor_b32 s%d, s%d, 64", sT, sT)
    a("v_mov_b32 v227, s%d", sT)
    a("v_mov_b32 v228, 1")
    a("s_mul_i32 s%d, s%d, 6656", sT, sW)
    a("s_add_u32 s%d, s%d, %d", sT, sT, CMB)
    a("v_add_u32 v231, s%d, v%d", sT, vL16)
    a("v_lshl_add_u32 v233, v%d, 2, s%d", vLane, sT)
    a("s_xor_b32 s%d, s%d, 2", sT2, sW)
    a("s_mul_i32 s%d, s%d, 6656", sT, sT2)
    a("s_add_u32 s%d, s%d, %d", sT, sT, CMB)
    a("v_add_u32 v230, s%d, v%d", sT, vL16)
    a("v_lshl_add_u32 v232, v%d, 2, s%d", vLane, sT)
    a("s_waitcnt lgkmcnt(0)")
    a("ds_write_b32 v226, v228 offset:12")
    st(4, False)
    signal1()
    st(5, False)

    def next_chunk():
        return [lambda: a("s_add_u32 s%d, s%d, 1", sCh, sCh),
                lambda: a("s_xor_b32 s%d, s%d, s%d", sNxt, sCh, sTB),
                lambda: a("s_and_b32 s%d, s%d, 7", sNxt, sNxt),
                lambda: a("s_mul_i32 s%d, s%d, %d", sNxt, sNxt, 4 * BLK),
                lambda: a("s_add_u32 s%d, s%d, s%d", sNxt, sNxt, sKV)]
    N = (sNxt, sNxt1)
    sched = {
        (0, 1): [("V3a", lambda: kvop("v", 3, N, 0)), ("V3b", lambda: kvop("v", 3, N, 1))],
        (0, 2): [("K0", lambda: kvop("k", 0, N))],
        (1, 1): [("V0a", lambda: kvop("v", 0, N, 0)), ("V0b", lambda: kvop("v", 0, N, 1))],
        (1, 2): [("K1", lambda: kvop("k", 1, N)), ("R0", lambda: kvop("r", 0, N))],
        (2, 1): [("V1a", lambda: kvop("v", 1, N, 0)), ("V1b", lambda: kvop("v", 1, N, 1))],
        (2, 2): [("K2", lambda: kvop("k", 2, N))],
        (3, 1): [("V2a", lambda: kvop("v", 2, N, 0)), ("V2b", lambda: kvop("v", 2, N, 1))],
        (3, 2): [("K3", lambda: kvop("k", 3, N)), ("R1", lambda: kvop("r", 2, N))],
    }
    order = [(k, n) for k in sorted(sched) for (n, _) in sched[k]]
    def younger(name, pos):
        names = [n for _, n in order]
        i = names.index(name); cnt = 0
        while True:
            i = (i + 1) % len(order)
            if order[i][0] == pos or (order[i][0] > pos and (order[i - 1][0] < pos or i == 0)): return cnt
            cnt += 1
    PA, PB, POLLP = env("PA", 4), env("PB", 5), (3, 0)
    def iteration(first):
        for tt in range(4):
            for j in range(4):
                pj, pvb = ((3, (tt - 1) % 4) if j == 0 else (j - 1, tt))
                nj, nkb = (j + 2) % 4, (tt if j < 2 else (tt + 1) % 4)
                slots = [[], [], []]
                lds = [f for _, f in sched.get((tt, j), [])]
                wv = younger("V%db" % tt, (tt, 1)) if j == 0 else None
                k1 = (tt + 1) % 4
                wk = min(younger("K%d" % k1, (tt, 2)), younger("R%d" % (k1 // 2), (tt, 2))) if j == 2 else None
                if first:
                    if 4 * tt + j == PB:
                        a("s_cmp_eq_u32 s%d, 0", sQH)
                        a("s_cbranch_scc1 L_nosig3")
                        a("s_setprio 1")
                        a.label("L_nosig3")
                    if (tt, j) == POLLP:
                        st(6, False)
                        poll("L_poll1", sF1, "s%d" % sMsk, 0x4000, 2)
                        st(7, False)
                        a("s_not_b32 s%d, vcc_lo", sMsk)
                        a("s_mov_b32 s%d, 0", sCh)
                        for f in next_chunk(): f()
                        a("s_add_u32 s%d, s%d, %d", sNxt1, sNxt, BLK)
                        for k in sorted(sched):
                            if (0, 1) < k < POLLP:
                                for _, f in sched[k]: f()
                    if (tt, j) < POLLP: lds = []
                    wv = None
                    if (tt, j) != (3, 2): wk = None
                else:
                    if (tt, j) == (0, 0):
                        nc = next_chunk()
                        slots[0] += nc[0:2]; slots[1] += nc[2:4]
                    if (tt, j) == (0, 1): slots[2] += nc[4:5]
                    if (tt, j) == (0, 3): slots[0].append(lambda: a("s_add_u32 s%d, s%d, %d", sNxt1, sNxt, BLK))
                    if (tt, j) == (3, 3): slots[0].append(lambda: a("s_cmp_lt_u32 s%d, 8", sCh))
                if wv is not None: slots[2].append(lambda wv=wv: a("s_waitcnt vmcnt(%d)", wv))
                if wk is not None:
                    slots[0].append(lambda wk=wk: a("s_waitcnt vmcnt(%d)", wk))
                    for i, f in enumerate(lds): slots[1 + i].append(f)
                else:
                    for i, f in enumerate(lds): slots[i].append(f)
                regs = [S + 16 * j + i for i in range(16)]
                def ex4():
                    for _ in range(4): ex(regs.pop(0))
                pv(pj, pvb, 0); [f() for f in slots[0]]; ex4()
                pv(pj, pvb, 1); [f() for f in slots[1]]; ex4()
                qk1(nj, nkb);   [f() for f in slots[2]]; ex4()
                qk2(nj, nkb); ex4()
    iteration(True)
    st(8, False)
    a.raw(".p2align 6")
    a.label("L_attn")
    a("s_cmp_eq_u32 s%d, 0", sMsk)
    a("s_cbranch_scc0 L_late")
    a.label("L_attn_go")
    iteration(False)
    a("s_cbranch_scc1 L_attn")
    a("ds_write_b128 v231, %s", vr(O + 32, 4))
    pv(3, 3, 0); pv(3, 3, 1)
    st(9, False)
    for q in range(1, 3): a("ds_write_b128 v231, %s offset:%d", vr(O + 32 + 4 * q, 4), q * 1024)
    a("ds_write_b32 v233, v%d offset:%d", O + 32 + 12, 6144)
    a("s_mov_b32 s%d, 0x%x", sT3, f32bits(2.0 ** -30))
    a("s_mov_b32 s%d, 0x%x", sT2, f32bits(2.0 ** 60))
    a("s_mov_b32 s%d, 0", sTmo)
    a("s_nop 5")
    for q in range(3): a("ds_write_b128 v231, %s offset:%d", vr(O + 48 + 4 * q, 4), 3072 + q * 1024)
    a("ds_write_b32 v233, v%d offset:%d", O + 48 + 12, 6400)
    a("ds_write_b32 v227, v228")
    def lds_wait(lbl, word, val, slp=1):
        a("s_mov_b32 s%d, 0", sTmo)
        a.label(lbl)
        a("ds_read_b32 v229, v226 offset:%d", 4 * word)
        a("s_add_u32 s%d, s%d, 1", sTmo, sTmo)
        a("s_waitcnt lgkmcnt(0)")
        a("v_readfirstlane_b32 s%d, v229", sT)
        a("s_cmp_gt_u32 s%d, 0x20000", sTmo)
        a("s_cbranch_scc1 %s_ok", lbl)
        a("s_cmp_ge_u32 s%d, %s", sT, val)
        a("s_cbranch_scc1 %s_ok", lbl)
        a("s_sleep %d", slp)
        a("s_branch %s", lbl)
        a.label(lbl + "_ok")
    if DIAG: a("s_waitcnt lgkmcnt(0)")
    a.label("L_cmb")
    a("ds_read_b32 v229, v226")
    for j in range(2):
        for q in range(3): a("ds_read_b128 %s, v230 offset:%d", vr(S + 16 * j + 4 * q, 4), j * 3072 + q * 1024)
        a("ds_read_b32 v%d, v232 offset:%d", S + 16 * j + 12, 6144 + 256 * j)
    a("s_add_u32 s%d, s%d, 1", sTmo, sTmo)
    a("s_waitcnt lgkmcnt(8)")
    a("v_readfirstlane_b32 s%d, v229", sT)
    a("s_cmp_gt_u32 s%d, 0x20000", sTmo)
    a("s_cbranch_scc1 L_cmb_ok")
    a("s_cmp_eq_u32 s%d, 0", sT)
    a("s_cbranch_scc0 L_cmb_ok")
    a("s_waitcnt lgkmcnt(0)")
    a("s_branch L_cmb")
    a.label("L_cmb_ok")
    a("s_waitcnt lgkmcnt(4)")
    for j in range(2):
        if j: a("s_waitcnt lgkmcnt(0)")
        for i in range(0, 12, 2): a("v_pk_add_f32 %s, %s, %s", vr(O + 16 * j + i, 2), vr(O + 16 * j + i, 2), vr(S + 16 * j + i, 2))
        a("v_add_f32 v%d, v%d, v%d", O + 16 * j + 12, O + 16 * j + 12, S + 16 * j + 12)
    Z = S + 32
    a("v_pk_mul_f32 %s, %s, 0", vr(Z, 2), vr(O, 2))
    a("v_pk_mul_f32 %s, %s, 0", vr(Z + 2, 2), vr(O + 16, 2))
    for i in range(2, 12, 2):
        for j in range(2): a("v_pk_fma_f32 %s, %s, 0, %s", vr(Z + 2 * j, 2), vr(O + 16 * j + i, 2), vr(Z + 2 * j, 2))
    a("v_cmp_le_f32 s[%d:%d], s%d, v%d", sC, sC + 1, sT3, O + 12)
    a("v_cmp_le_f32 s[%d:%d], s%d, v%d", sC2, sC2 + 1, sT3, O + 28)
    a("v_pk_add_f32 %s, %s, %s", vr(Z, 2), vr(Z, 2), vr(Z + 2, 2))
    a("v_cmp_ge_f32 vcc, s%d, v%d", sT2, O + 12)
    a("s_and_b64 s[%d:%d], s[%d:%d], s[%d:%d]", sC, sC + 1, sC, sC + 1, sC2, sC2 + 1)
    a("v_cmp_ge_f32 s[%d:%d], s%d, v%d", sC2, sC2 + 1, sT2, O + 28)
    a("s_and_b64 s[%d:%d], s[%d:%d], vcc", sC, sC + 1, sC, sC + 1)
    a("v_cmp_o_f32 vcc, v%d, v%d", Z, Z + 1)
    a("s_and_b64 s[%d:%d], s[%d:%d], s[%d:%d]", sC, sC + 1, sC, sC + 1, sC2, sC2 + 1)
    a("s_and_b64 s[%d:%d], s[%d:%d], vcc", sC, sC + 1, sC, sC + 1)
    a("s_cmp_eq_u64 s[%d:%d], -1", sC, sC + 1)
    a("s_cbranch_scc0 L_slow")
    a.label("L_fin")
    for j in range(2): a("v_rcp_f32 v%d, v%d", Z + 2 * j, O + 16 * j + 12)
    a("v_mov_b32 v%d, 0", vT1)
    for j in range(2):
        for i in range(0, 12, 2): a("v_pk_mul_f32 %s, %s, %s op_sel_hi:[1,0]", vr(O + 16 * j + i, 2), vr(O + 16 * j + i, 2), vr(Z + 2 * j, 2))
        for i in range(4): a("v_cvt_pk_bf16_f32 v%d, v%d, v%d", S + 4 * j + i, O + 16 * j + 2 * i, O + 16 * j + 2 * i + 1)
        a("buffer_store_dwordx4 %s, v%d, %s, s%d offen offset:%d sc1", vr(S + 4 * j, 4), vL16, srd, sO, j * 1024)
        for i in range(2): a("v_cvt_pk_bf16_f32 v%d, v%d, v%d", S + 8 + 2 * j + i, O + 16 * j + 8 + 2 * i, O + 16 * j + 9 + 2 * i)
    a("buffer_store_dwordx4 %s, v%d, %s, s%d offen sc1", vr(S + 8, 4), vOr, srd, sO)
    st(16, False)
    a("v_mov_b32 v229, 2")
    a("ds_write_b32 v226, v229 offset:12")
    WO, OUT = WSRD, XS
    vG, vOa, vWa2, vSt, vGr, vOb = 234, 235, 236, 237, 238, 239
    ACC2, WF, OF = 16, 56, 96
    a("s_mul_i32 s%d, s%d, 24", sT, sB)
    a("s_add_u32 s%d, s%d, 16", sT, sT)
    a("s_load_dwordx2 s[4:5], s[0:1], s%d", sT)
    a("s_load_dwordx2 s[6:7], s[0:1], 48")
    a("v_lshrrev_b32 v%d, 4, v%d", vS1, vLane)
    a("v_and_b32 v%d, 15, v%d", vT3, vLane)
    a("s_lshl_b32 s%d, s%d, 8", sT, sE)
    a("v_lshl_add_u32 v%d, v%d, 4, s%d", vT4, vT3, sT)
    a("v_mul_u32_u24 v%d, %d, v%d", vT2, OB, vH)
    a("v_and_b32 v%d, 16, v%d", vOa, vLane)
    a("v_lshl_add_u32 v%d, v%d, 5, v%d", vOa, vOa, vT2)
    a("v_add_u32 v%d, v%d, v%d", vOa, vOa, vT4)
    a("v_mul_u32_u24 v%d, %d, v%d", vT2, 2 * OB, vS1)
    a("v_add_u32 v%d, v%d, v%d", vOb, vT2, vT4)
    a("v_add_u32 v%d, 2048, v%d", vOb, vOb)
    a("s_mul_i32 s%d, s%d, %d", sT, sKH, 10 * 5120)
    a("s_add_u32 s%d, s%d, %d", sT, sT, WOB)
    a("v_lshl_add_u32 v%d, v%d, 9, s%d", vT2, vH, sT)
    a("v_lshl_add_u32 v%d, v%d, 3, v%d", vWa2, vM, vT2)
    a("v_and_b32 v%d, 4, v%d", vT2, vT3)
    a("v_lshlrev_b32 v%d, 2, v%d", vT2, vT2)
    a("v_and_b32 v%d, 8, v%d", vT4, vT3)
    a("v_lshrrev_b32 v%d, 1, v%d", vT4, vT4)
    a("v_and_b32 v%d, 3, v%d", vT3, vT3)
    a("v_or3_b32 v%d, v%d, v%d, v%d", vT2, vT2, vT3, vT4)
    a("v_mul_u32_u24 v%d, 2560, v%d", vT2, vT2)
    a("v_lshl_add_u32 v%d, v%d, 3, v%d", vSt, vS1, vT2)
    a("v_lshlrev_b32 v%d, 7, v%d", vT2, vLane)
    a("v_lshl_or_b32 v%d, v%d, 29, v%d", vFl, vS1, vT2)
    a("s_and_b32 s%d, s%d, 7", sT3, sHP)
    a("s_mul_i32 s%d, s%d, 160", sT3, sT3)
    a("s_sub_u32 s%d, %d, s%d", WO + 2, 640 * 1280, sT3)
    a("s_mov_b32 s%d, 0x20000", WO + 3)
    a("s_mov_b32 s%d, %d", OUT + 2, 2048 * 2560)
    a("s_mov_b32 s%d, 0x20000", OUT + 3)
    a("s_lshl_b32 s%d, s%d, 1", sT, sTB)
    a("s_add_u32 s%d, s%d, s%d", sT, sT, sQH)
    a("s_lshl_b32 s%d, s%d, 1", sT, sT)
    a("s_add_u32 s%d, s%d, s%d", sT, sT, sHH)
    a("s_lshl_b32 s%d, s%d, 5", sT2, sB)
    a("s_add_u32 s%d, s%d, s%d", sT2, sT2, sT)
    a("s_lshl_b32 s%d, s%d, 1", sT2, sT2)
    a("s_add_u32 s%d, s%d, s%d", sT2, sT2, sKH)
    a("s_mul_i32 s%d, s%d, %d", sO, sT2, 16 * OB)
    a("s_add_u32 s%d, s%d, %d", sO, sO, O_OFF)
    a("s_lshl_b32 s%d, s%d, 11", sT2, sT2)
    a("s_add_u32 s%d, s%d, %d", sF1, sT2, F2_OFF)
    a("s_lshl_b32 s%d, s%d, 1", sT, sT)
    a("s_add_u32 s%d, s%d, s%d", sT, sT, sKH)
    a("s_lshl_b32 s%d, s%d, 2", sT, sT)
    a("s_add_u32 s%d, s%d, s%d", sT, sT, sE)
    a("s_mul_i32 s%d, s%d, %d", sPub, sT, 8 * 2560)
    a("s_mul_i32 s%d, s%d, 1280", sT2, sB)
    a("s_add_u32 s%d, s%d, s%d", sPub, sPub, sT2)
    a("s_add_u32 s%d, s%d, s%d", sPub, sPub, sT3)
    a("s_waitcnt vmcnt(0)")
    a("buffer_store_dwordx2 %s, v%d, %s, s%d offen sc0 sc1", vr(vNon, 2), vT1, srd, sF2)
    st(10)
    a("s_waitcnt lgkmcnt(0)")
    a("s_add_u32 s%d, s4, s%d", WO, sT3)
    a("s_addc_u32 s%d, s5, 0", WO + 1)
    a("s_mov_b32 s%d, s6", OUT)
    a("s_mov_b32 s%d, s7", OUT + 1)
    a("s_cmp_eq_u32 s%d, 0", sQH)
    a("s_cbranch_scc0 L_woskip")
    a("v_lshrrev_b32 v%d, 1, v%d", vT1, vLane)
    a("v_and_b32 v%d, 4, v%d", vT2, vT1)
    a("v_lshlrev_b32 v%d, 1, v%d", vT2, vT2)
    a("v_and_b32 v%d, 8, v%d", vT3, vT1)
    a("v_lshrrev_b32 v%d, 1, v%d", vT3, vT3)
    a("v_and_b32 v%d, 0x13, v%d", vT1, vT1)
    a("v_or3_b32 v%d, v%d, v%d, v%d", vT1, vT1, vT2, vT3)
    a("v_lshl_add_u32 v%d, v%d, 3, v%d", vT2, vH, vT1)
    a("v_and_b32 v%d, 24, v%d", vT3, vT1)
    a("v_lshl_add_u32 v%d, v%d, 2, v%d", vT3, vT3, vT1)
    a("v_add_u32 v%d, 16, v%d", vT3, vT3)
    a("v_mul_u32_u24 v%d, 1280, v%d", vT2, vT2)
    a("v_mul_u32_u24 v%d, 1280, v%d", vT3, vT3)
    a("v_and_b32 v%d, 1, v%d", vT1, vLane)
    a("v_lshl_add_u32 v%d, v%d, 4, v%d", vG, vT1, vT2)
    a("v_lshl_add_u32 v%d, v%d, 4, v%d", vGr, vT1, vT3)
    a("s_mul_i32 s%d, s%d, %d", sCur, sW, 160 * 1280)
    a("s_mul_i32 s%d, s%d, %d", sCh, sW, 5 * 5120)
    a("s_add_u32 s%d, s%d, %d", sCh, sCh, WOB)
    a("s_mov_b32 s%d, 0", sIt)
    a("v_and_b32 v%d, 7, v%d", vT1, vLane)
    a("v_lshlrev_b32 v%d, 5, v%d", vT1, vT1)
    a("s_mov_b32 s%d, 0", sTmo)
    a.label("L_img")
    a("ds_read_b32 v229, v%d offset:12", vT1)
    a("s_add_u32 s%d, s%d, 1", sTmo, sTmo)
    a("s_waitcnt lgkmcnt(0)")
    a("v_cmp_le_u32 vcc, 1, v229")
    a("s_cmp_gt_u32 s%d, 0x20000", sTmo)
    a("s_cbranch_scc1 L_wo")
    a("s_cmp_eq_u64 vcc, -1")
    a("s_cbranch_scc0 L_img")
    a.label("L_wo")
    for i in range(5):
        a("s_add_u32 m0, s%d, %d", sCh, 4 * 5120 + 1024 * i)
        a("s_add_u32 s%d, s%d, %d", sT, sCur, 32 * i)
        a("buffer_load_dwordx4 v%d, %s, s%d offen lds", vGr, sr(WO, 4), sT)
    a.label("L_wo2")
    a("s_waitcnt vmcnt(0)")
    for i in range(5):
        a("s_add_u32 m0, s%d, %d", sCh, 1024 * i)
        a("s_add_u32 s%d, s%d, %d", sT, sCur, 32 * i)
        a("buffer_load_dwordx4 v%d, %s, s%d offen lds", vG, sr(WO, 4), sT)
    a("s_add_u32 s%d, s%d, %d", sCur, sCur, 40 * 1280)
    a("s_add_u32 s%d, s%d, 5120", sCh, sCh)
    a("s_add_u32 s%d, s%d, 1", sIt, sIt)
    a("s_cmp_lt_u32 s%d, 4", sIt)
    a("s_cbranch_scc1 L_wo2")
    a("s_waitcnt vmcnt(0)")
    a("ds_write_b32 v226, v228 offset:4")
    a.label("L_woskip")
    a("v_and_b32 v%d, 1, v%d", vT1, vLane)
    a("s_lshl_b32 s%d, s%d, 6", sT, sKH)
    a("v_lshl_add_u32 v%d, v%d, 5, s%d", vT3, vT1, sT)
    a("s_mov_b32 s%d, 0", sTmo)
    a.label("L_wol")
    a("ds_read_b32 v229, v%d offset:4", vT3)
    a("s_add_u32 s%d, s%d, 1", sTmo, sTmo)
    a("s_waitcnt lgkmcnt(0)")
    a("v_cmp_le_u32 vcc, 1, v229")
    a("s_cmp_gt_u32 s%d, 0x20000", sTmo)
    a("s_cbranch_scc1 L_wol_ok")
    a("s_cmp_eq_u64 vcc, -1")
    a("s_cbranch_scc1 L_wol_ok")
    a("s_sleep 1")
    a("s_branch L_wol")
    a.label("L_wol_ok")
    st(11)
    def wreads(s):
        fb = s % 2
        for j in range(5):
            for q in range(2):
                a("ds_read_b64_tr_b16 %s, v%d offset:%d", vr(WF + 20 * fb + 4 * j + 2 * q, 2), vWa2, s * 5120 + j * 1024 + q * 256)
    wreads(0)
    a("s_waitcnt vmcnt(0)")
    poll("L_poll2", sF1, "0xffff", 0x8000, env("SLP2", 2))
    st(12)
    for s in range(10):
        hp0 = 4 * (s // 5)
        if s % 5 < 4:
            a("s_add_u32 s%d, s%d, %d", sNxt, sO, (hp0 + s % 5) * 2 * OB)
            for j in range(2): a("buffer_load_dwordx4 %s, v%d, %s, s%d offen offset:%d sc1", vr(OF + 8 * s + 4 * j, 4), vOa, srd, sNxt, 1024 * j)
        else:
            a("s_add_u32 s%d, s%d, %d", sNxt, sO, hp0 * 2 * OB)
            for e in range(2): a("buffer_load_dwordx4 %s, v%d, %s, s%d offen offset:%d sc1", vr(OF + 8 * s + 4 * e, 4), vOb, srd, sNxt, OB * e)
    a("s_cmp_eq_u32 s%d, 0", sQH)
    a("s_cbranch_scc0 L_bloop_ok")
    a("s_setprio 0")
    lds_wait("L_bloop", 32 + 3, "2", 4)
    st(13)
    for s in range(10):
        if s < 9:
            wreads(s + 1)
            a("s_waitcnt vmcnt(%d) lgkmcnt(10)", 2 * (9 - s))
        else:
            a("s_waitcnt vmcnt(0) lgkmcnt(0)")
        if s % 5 == 4:
            a("v_swap_b32 v%d, v%d", OF + 8 * s + 2, OF + 8 * s + 4)
            a("v_swap_b32 v%d, v%d", OF + 8 * s + 3, OF + 8 * s + 5)
            a("s_nop 1")
        for tt in (1, 0):
            for j in range(5):
                d = ACC2 + 4 * (5 * tt + j)
                a("v_mfma_f32_16x16x32_bf16 %s, %s, %s, %s", vr(d, 4), vr(WF + 20 * (s % 2) + 4 * j, 4), vr(OF + 8 * s + 4 * tt, 4), vr(d, 4) if s else "0")
    st(14, False)
    a("s_mov_b32 s%d, 0", sTmo)
    a("s_cmp_eq_u32 s%d, 0", sKH)
    a("s_cbranch_scc0 L_x1")
    OSC = os.environ.get("OSC", "")
    for kq in range(2):
        keep, send = ACC2 + 20 * kq, ACC2 + 20 * (1 - kq)
        if kq:
            a.label("L_x1")
            a("s_nop 5")
        for q in range(5): a("ds_write_b128 v230, %s offset:%d", vr(send + 4 * q, 4), q * 1024)
        a("ds_write_b32 v227, v228 offset:8")
        if DIAG: a("s_waitcnt lgkmcnt(0)")
        a.label("L_xch%d" % kq)
        a("ds_read_b32 v229, v226 offset:8")
        for q in range(5): a("ds_read_b128 %s, v231 offset:%d", vr(WF + 4 * q, 4), q * 1024)
        a("s_add_u32 s%d, s%d, 1", sTmo, sTmo)
        a("s_waitcnt lgkmcnt(5)")
        a("v_readfirstlane_b32 s%d, v229", sT)
        a("s_cmp_gt_u32 s%d, 0x20000", sTmo)
        a("s_cbranch_scc1 L_xok%d", kq)
        a("s_cmp_eq_u32 s%d, 0", sT)
        a("s_cbranch_scc0 L_xok%d", kq)
        a("s_waitcnt lgkmcnt(0)")
        a("s_branch L_xch%d", kq)
        a.label("L_xok%d" % kq)
        for q in range(5):
            a("s_waitcnt lgkmcnt(%d)", 4 - q)
            for h in range(2): a("v_pk_add_f32 %s, %s, %s", vr(keep + 4 * q + 2 * h, 2), vr(keep + 4 * q + 2 * h, 2), vr(WF + 4 * q + 2 * h, 2))
            for h in range(2): a("v_cvt_pk_bf16_f32 v%d, v%d, v%d", WF + 20 + 2 * q + h, keep + 4 * q + 2 * h, keep + 4 * q + 2 * h + 1)
            a("buffer_store_dwordx2 %s, v%d, %s, s%d offen offset:%d %s", vr(WF + 20 + 2 * q, 2), vSt, sr(OUT, 4), sPub, 32 * q, OSC)
        if not kq: a("s_branch L_xdone") if DIAG else a("s_endpgm")
    a.label("L_xdone")
    st(15)
    a.label("L_exit")
    st.flush(sW)
    a.label("L_end")
    a("s_endpgm")
    a.label("L_late")
    a("s_cmp_lt_u32 s%d, 3", sCh)
    a("s_cbranch_scc1 L_attn_go")
    poll("L_poll3", sF1, "-1", 0x4000, 2)
    a("s_mov_b32 s%d, 0", sMsk)
    a("s_branch L_attn_go")
    a.label("L_slow")
    C = S + 32
    MX = O + 32
    a("s_waitcnt vmcnt(0)")
    a("s_mul_i32 s%d, s%d, %d", sT, sKH, 2 * BLK)
    a("s_sub_u32 s%d, s%d, s%d", sKV, sKV, sT)
    a("s_mov_b32 s%d, s%d", sCur, sKV)
    a("s_add_u32 s%d, s%d, %d", sCh, sKV, KV_PAIR)
    a("v_mov_b32 v%d, 0xff800000", MX)
    a("v_mov_b32 v%d, 0xff800000", MX + 1)
    P = (sCur, sCur)
    a.label("L_slow1")
    kvop("k", 0, P); kvop("k", 1, P); kvop("r", 0, P)
    a("s_waitcnt vmcnt(0)")
    for b in range(2):
        qk1(0, b); qk2(0, b); qk1(1, b); qk2(1, b)
        a("s_nop 15")
        for j in range(2):
            for i in range(8): a("v_max3_f32 v%d, v%d, v%d, v%d", MX + j, MX + j, S + 16 * j + 2 * i, S + 16 * j + 2 * i + 1)
    a("s_add_u32 s%d, s%d, %d", sCur, sCur, BLK)
    a("s_cmp_lt_u32 s%d, s%d", sCur, sCh)
    a("s_cbranch_scc1 L_slow1")
    for j in range(2):
        a("v_mov_b32 v%d, v%d", vT1, MX + j)
        a("s_nop 1")
        a("v_permlane32_swap_b32 v%d, v%d", vT1, MX + j)
        a("s_nop 1")
        a("v_max_f32 v%d, v%d, v%d", vT1, vT1, MX + j)
        for i in range(16): a("v_sub_f32 v%d, 0, v%d", C + 16 * j + i, vT1)
    for i in range(32): a("v_mov_b32 v%d, 0", O + i)
    a("s_mov_b32 s%d, s%d", sCur, sKV)
    a.label("L_slow2")
    kvop("k", 0, P); kvop("k", 1, P); kvop("r", 0, P)
    for b in range(2):
        kvop("v", b, P, 0); kvop("v", b, P, 1)
    a("s_waitcnt vmcnt(0)")
    for b in range(2):
        for j in range(2):
            a("v_mfma_f32_32x32x16_bf16 %s, %s, %s, %s", vr(S + 16 * j, 16), vr(Km + 4 * b, 4), vr(Qm + 4 * j, 4), vr(C + 16 * j, 16))
            qk2(j, b)
        a("s_nop 15")
        for i in range(32): ex(S + i)
        a("s_nop 1")
        for j in range(2):
            pv(j, b, 0); pv(j, b, 1)
    a("s_add_u32 s%d, s%d, %d", sCur, sCur, BLK)
    a("s_cmp_lt_u32 s%d, s%d", sCur, sCh)
    a("s_cbranch_scc1 L_slow2")
    a("s_nop 15")
    a("s_branch L_fin")
    return name, NFV, 163840

def gen_spin(a):
    name = "spin_kernel"
    kernel_head(a, name)
    wa, ia, wb, ib, mult, off = [int(x) for x in SPIN.split(",")]
    a("s_cmp_ge_u32 s2, 1")
    a("s_cbranch_scc1 L_spin_end")
    a("s_load_dwordx2 s[4:5], s[0:1], 64")
    a("s_waitcnt lgkmcnt(0)")
    a("s_add_u32 s4, s4, %d", DIAG_OFF)
    a("s_addc_u32 s5, s5, 0")
    a("v_mov_b32 v1, %d", 4 * ia + 128 * (16 * 8 + wa))
    a("v_mov_b32 v2, %d", 4 * ib + 128 * (16 * 8 + wb))
    a("global_load_dword v3, v1, s[4:5]")
    a("global_load_dword v4, v2, s[4:5]")
    a("s_waitcnt vmcnt(0)")
    a("v_sub_u32 v3, v4, v3")
    a("s_nop 1")
    a("v_readfirstlane_b32 s8, v3")
    a("s_memrealtime s[10:11]")
    a("s_nop 3")
    a("s_max_u32 s8, s8, %d", off)
    a("s_sub_u32 s8, s8, %d", off)
    a("s_min_u32 s8, s8, 20000")
    a("s_mul_i32 s8, s8, %d", mult)
    a("s_waitcnt lgkmcnt(0)")
    a.label("L_spin")
    a("s_memrealtime s[12:13]")
    a("s_waitcnt lgkmcnt(0)")
    a("s_sub_u32 s14, s12, s10")
    a("s_cmp_lt_u32 s14, s8")
    a("s_cbranch_scc1 L_spin")
    a.label("L_spin_end")
    a("s_endpgm")
    return name, 8, 0

def main(out):
    a = A()
    ks = []
    for g, blk in ((gen_fused, 512),) + (((gen_spin, 64),) if SPIN else ()):
        n, nfv, lds = g(a)
        ks.append((n, nfv, lds, blk))
    hdr = "; Two independent MHA blocks (S=2048, D=640, H=32, Dh=20), concatenated on the last axis; one fused kernel.\n"
    hdr += "; kernarg: 0 A_x, 8 A_wqkv, 16 A_wo, 24 B_x, 32 B_wqkv, 40 B_wo, 48 out, 56 debug, 64 ws\n"
    if len(ks) == 1 and not env("LIST", 0):
        hdr += "; @launch grid=(256,1,1) block=(%d,1,1) lds=%d\n" % (ks[0][3], ks[0][2])
    else:
        for n, nfv, lds, blk in ks:
            hdr += "; @launch kernel=%s grid=(256,1,1) block=(%d,1,1) lds=%d\n" % (n, blk, lds)
    s = hdr + '.amdgcn_target "amdgcn-amd-amdhsa--gfx950"\n.text\n' + a.text()
    s += '.section .rodata,"a"\n'
    for n, nfv, lds, blk in ks: s += kd(n, nfv)
    open(out, "w").write(s)

if __name__ == "__main__":
    main(sys.argv[1] if len(sys.argv) > 1 else "cdna_kernels/%s.s" % NAME)
```

```python
import math, struct, sys, os

NAME = "concat_heads__mha_block__softmax_full_mha__prompt"
BLK = 12288
KV_PAIR = 32 * BLK
KV_OFF = 0
OB = 2560
O_OFF = KV_OFF + 32 * KV_PAIR
O_BYTES = 32 * 32 * OB
F1_OFF = O_OFF + 2 * O_BYTES
F2_OFF = F1_OFF + 128 * 256
WS_USED = F2_OFF + 2048 * 128
CSCALE = math.log2(math.e) / math.sqrt(20.0)
OOB = 0x40000000
DIAG = int(os.environ.get("DIAG", "0"))
DIAG_OFF = 64 << 20
def env(n, d): return int(os.environ.get(n, str(d)))
NT = env("NT", 0)
SKEW = env("SKEW", 0)
HELP = env("HELP", 1)
SPIN = os.environ.get("SPIN", "")

def f32bits(x): return struct.unpack("<I", struct.pack("<f", x))[0]

class A:
    def __init__(self): self.l = []
    def __call__(self, s, *a): self.l.append("    " + (s % a if a else s))
    def label(self, s): self.l.append(s + ":")
    def raw(self, s): self.l.append(s)
    def c(self, s): self.l.append("    ; " + s)
    def text(self): return "\n".join(self.l) + "\n"

def vr(b, n): return "v[%d:%d]" % (b, b + n - 1) if n > 1 else "v%d" % b
def sr(b, n): return "s[%d:%d]" % (b, b + n - 1) if n > 1 else "s%d" % b

def kernel_head(a, name):
    a.raw(".globl %s" % name); a.raw(".p2align 8"); a.raw(".type %s,@function" % name); a.label(name)

def kd(name, nfv, nsg=100):
    acc = (nfv + 3) // 4 * 4
    return """.p2align 6
.amdhsa_kernel %s
  .amdhsa_next_free_vgpr %d
  .amdhsa_next_free_sgpr %d
  .amdhsa_accum_offset %d
  .amdhsa_group_segment_fixed_size 0
  .amdhsa_kernarg_size 72
  .amdhsa_user_sgpr_count 2
  .amdhsa_user_sgpr_kernarg_segment_ptr 1
  .amdhsa_system_sgpr_workgroup_id_x 1
.end_amdhsa_kernel
""" % (name, nfv, nsg, acc)

class Stamps:
    def __init__(self, a):
        self.a = a
        if DIAG:
            for i in range(62, 100): a("s_mov_b32 s%d, 0", i)
            a("s_memrealtime s[60:61]")
    def __call__(self, i, wait=True):
        if not DIAG: return
        if DIAG == 1: self.a("s_memrealtime s[%d:%d]", 64 + 2 * i, 65 + 2 * i)
        else: self.a("s_memtime s[%d:%d]", 64 + 2 * i, 65 + 2 * i)
        if wait: self.a("s_waitcnt lgkmcnt(0)")
    def flush(self, swave):
        if not DIAG: return
        a = self.a
        a("s_mov_b64 exec, -1")
        a("s_waitcnt vmcnt(0)")
        self(17)
        a("s_memrealtime s[62:63]")
        a("s_load_dwordx2 s[56:57], s[0:1], 64")
        a("s_lshl_b32 s58, s2, 4")
        a("s_add_u32 s58, s58, s%d", swave)
        a("s_lshl_b32 s58, s58, 7")
        a("s_add_u32 s58, s58, %d", DIAG_OFF)
        a("v_mov_b32 v1, s58")
        a("s_waitcnt lgkmcnt(0)")
        for i in range(20):
            a("v_mov_b32 v2, s%d", 60 + 2 * i)
            a("global_store_dword v1, v2, s[56:57] offset:%d", 4 * i)
        a("s_waitcnt vmcnt(0)")

def gen_fused(a):
    name = NAME + "_kernel"
    kernel_head(a, name)
    WS, XS, WSRD = 8, 12, 16
    sNon = 20
    sB, sTB, sHP, sHH, sW, sE, sKH, sQH = 22, 23, 24, 25, 26, 27, 28, 29
    sT, sT2, sT3 = 30, 31, 32
    sXoff, sWoff, sM0x, sM0w, sIt, sDX, sDW, sSlot, sSx, sSw = 33, 34, 35, 36, 37, 38, 39, 40, 41, 42
    sNxt, sNxt1, sCh, sR, sTmo, sCur = 33, 34, 35, 36, 38, 39
    sDbg = 44
    sC, sC2 = 46, 48
    sKV, sPub, sF1, sO, sF2, sMsk = 50, 51, 52, 53, 54, 55
    srd = sr(WS, 4)
    vLane, vM, vH, vT1, vT2, vT3, vT4 = 1, 2, 3, 4, 5, 6, 7
    vK, vKr, vV, vIdx, vFl, vL16, vOr, vS1 = 8, 9, 10, 11, 12, 13, 14, 15
    vNon = 224
    vXg, vWg, vXa, vWa = 226, 230, 232, 234
    vG0, vG1, vL0, vL1, vSc = 238, 239, 240, 241, 242
    vRk, vRr, vRv, vRq0, vRq1, vRqr0, vRqr1 = 245, 246, 247, 248, 249, 250, 251
    vF1 = 252
    F, ACC = 16, 96
    Qm, Qr, Km, Kr, V, S, O = 16, 32, 40, 56, 64, 96, 160
    NFV = 256
    WBASE = 98304
    LFLAG, WOB = 0, 1024
    CMB = WOB + 102400
    IMG = 1024

    a("s_cmp_ge_u32 s2, 256")
    a("s_cbranch_scc1 L_end")
    st = Stamps(a)
    a("s_bfe_u32 s%d, s2, 0x10002", sB)
    a("s_mul_i32 s%d, s%d, 24", sT, sB)
    a("s_load_dwordx4 s[4:7], s[0:1], s%d", sT)
    a("s_load_dwordx2 s[%d:%d], s[0:1], 64", WS, WS + 1)
    a("s_load_dwordx2 s[%d:%d], s[0:1], 56", sDbg, sDbg + 1)
    a("s_memrealtime s[%d:%d]", sNon, sNon + 1)
    a("v_lshrrev_b32 v%d, 6, v0", vT1)
    a("v_and_b32 v%d, 63, v0", vLane)
    a("v_readfirstlane_b32 s%d, v%d", sW, vT1)
    a("s_bfe_u32 s%d, s2, 0x10001", sTB)
    a("s_lshl_b32 s%d, s%d, 2", sTB, sTB)
    a("s_bfe_u32 s%d, s2, 0x20003", sT)
    a("s_or_b32 s%d, s%d, s%d", sTB, sTB, sT)
    a("s_and_b32 s%d, s2, 1", sHH)
    a("s_lshl_b32 s%d, s%d, 3", sHP, sHH)
    a("s_lshr_b32 s%d, s2, 5", sT)
    a("s_or_b32 s%d, s%d, s%d", sHP, sHP, sT)
    a("s_lshr_b32 s%d, s2, 7", sT)
    a("s_xor_b32 s%d, s%d, s%d", sHP, sHP, sT)
    a("s_and_b32 s%d, s%d, 1", sE, sW)
    a("v_lshrrev_b32 v%d, 3, v0", vT1)
    a("s_mul_i32 s%d, s%d, 24", sT, sW)
    a("v_add_u32 v%d, s%d, v%d", vT1, sT, vT1)
    a("v_mul_u32_u24 v%d, 1280, v%d", vT1, vT1)
    a("v_lshrrev_b32 v%d, 4, v%d", vT4, vLane)
    a("v_and_b32 v%d, 7, v%d", vT3, vLane)
    a("v_xor_b32 v%d, v%d, v%d", vT2, vT4, vT3)
    a("v_xor_b32 v%d, 4, v%d", vT3, vT2)
    a("v_lshl_add_u32 v%d, v%d, 4, v%d", vXg + 0, vT2, vT1)
    a("v_lshl_add_u32 v%d, v%d, 4, v%d", vXg + 1, vT3, vT1)
    a("v_add_u32 v%d, %d, v%d", vXg + 1, 8 * 1280 - 1024, vXg + 1)
    a("v_add_u32 v%d, %d, v%d", vXg + 2, 16 * 1280 - 2048, vXg + 0)
    a("v_add_u32 v%d, %d, v%d", vXg + 3, 16 * 1280 - 2048, vXg + 1)
    TAB = [0, 3, 1, 4, 5, 8, 6, 9, 2, 7, 10, 11, 13, 14, 12, 15]
    tab = sum(v << (4 * i) for i, v in enumerate(TAB))
    a("s_lshl_b32 s%d, s%d, 3", sT, sE)
    a("v_lshl_add_u32 v%d, v%d, 1, s%d", vT2, vT4, sT)
    a("v_and_b32 v%d, 15, v%d", vM, vLane)
    a("v_xor_b32 v%d, v%d, v%d", vT2, vT2, vM)
    a("v_lshlrev_b32 v%d, 2, v%d", vT2, vT2)
    a("s_mov_b32 s%d, 0x%x", sC, tab & 0xffffffff)
    a("s_mov_b32 s%d, 0x%x", sC + 1, tab >> 32)
    a("v_lshrrev_b64 v[16:17], v%d, s[%d:%d]", vT2, sC, sC + 1)
    a("v_and_b32 v%d, 15, v16", vT2)
    a("s_lshl_b32 s%d, s%d, 3", sT, sW)
    a("v_add_u32 v%d, s%d, v%d", vT1, sT, vT4)
    a("v_mul_u32_u24 v%d, 3840, v%d", vT1, vT1)
    a("v_mul_u32_u24 v%d, 13, v%d", vT3, vT2)
    a("v_lshrrev_b32 v%d, 6, v%d", vT3, vT3)
    a("v_mul_u32_u24 v%d, %d, v%d", vT3, 1280 - 80, vT3)
    a("v_cmp_eq_u32 vcc, 15, v%d", vT2)
    a("v_lshl_add_u32 v%d, v%d, 4, v%d", vT2, vT2, vT3)
    a("v_mov_b32 v%d, 0x%x", vS1, OOB)
    if HELP:
        a("s_and_b32 s%d, s%d, 7", sT, sHP)
        a("s_mov_b32 s%d, 0x%x", sT2, OOB)
        for hp, sec in ((0, 0), (2, 1), (5, 2)):
            a("s_cmp_eq_u32 s%d, %d", sT, hp)
            a("s_cselect_b32 s%d, %d, s%d", sT2, sec * 1280 + 256 - 80 * hp + HELP * 64 * 3840 - 64 * 3840 * 0, sT2)
        a("s_and_b32 s%d, s%d, 3", sT, sTB)
        a("v_cmp_eq_u32 s[%d:%d], s%d, v%d", sC, sC + 1, sT, vT4)
        a("v_mov_b32 v%d, s%d", vT3, sT2)
        a("s_nop 0")
        a("v_cndmask_b32 v%d, v%d, v%d, s[%d:%d]", vT3, vS1, vT3, sC, sC + 1)
        a("v_cndmask_b32 v%d, v%d, v%d, vcc", vT2, vT2, vT3)
    else:
        a("v_cndmask_b32 v%d, v%d, v%d, vcc", vT2, vT2, vS1)
    a("v_add_u32 v%d, v%d, v%d", vWg + 0, vT1, vT2)
    a("v_add_u32 v%d, %d, v%d", vWg + 1, 4 * 3840 - 1024, vWg + 0)
    a("s_lshr_b32 s%d, s%d, 1", sT, sW)
    a("s_mul_i32 s%d, s%d, 24576", sM0x, sT)
    a("s_lshl_b32 s%d, s%d, 12", sT, sE)
    a("s_add_u32 s%d, s%d, s%d", sM0x, sM0x, sT)
    a("s_lshl_b32 s%d, s%d, 11", sM0w, sW)
    a("s_add_u32 s%d, s%d, %d", sM0w, sM0w, WBASE)
    a("s_mov_b32 s%d, %d", XS + 2, 256 * 1280)
    a("s_mov_b32 s%d, 0x20000", XS + 3)
    a("s_mov_b32 s%d, 0x20000", WSRD + 3)
    if SKEW:
        a("s_xor_b32 s%d, s%d, s%d", sT, sTB, sHP)
        a("s_and_b32 s%d, s%d, 1", sT, sT)
        a("s_mul_i32 s%d, s%d, %d", sXoff, sT, 5 * 128)
        a("s_mul_i32 s%d, s%d, %d", sWoff, sT, 5 * 64 * 3840)
    else:
        a("s_mov_b32 s%d, 0", sXoff)
        a("s_mov_b32 s%d, 0", sWoff)
    a("s_mul_i32 s%d, s%d, %d", sT, sTB, 256 * 1280)
    a("s_mul_i32 s%d, s%d, 80", sT2, sHP)
    a("s_sub_u32 s%d, %d, s%d", WSRD + 2, 640 * 3840, sT2)
    a("s_waitcnt lgkmcnt(0)")
    a("s_add_u32 s%d, s4, s%d", XS, sT)
    a("s_addc_u32 s%d, s5, 0", XS + 1)
    a("s_add_u32 s%d, s6, s%d", WSRD, sT2)
    a("s_addc_u32 s%d, s7, 0", WSRD + 1)

    ntx = " nt" if NT & 1 else ""
    ntw = " nt" if NT & 2 else ""
    def dma_ops(slot_x, slot_w):
        ops = []
        def x(i):
            if i == 0:
                a("s_add_u32 m0, s%d, %s", sM0x, slot_x); a("s_nop 0")
            a("buffer_load_dwordx4 v%d, %s, s%d offen offset:%d%s lds", vXg + i, sr(XS, 4), sXoff, 1024 * i, ntx)
        def w(i):
            if i == 0:
                a("s_add_u32 m0, s%d, %s", sM0w, slot_w)
                a("s_add_u32 s%d, s%d, %d", sXoff, sXoff, 0 if env("NOADV", 0) & 1 else 128)
            a("buffer_load_dwordx4 v%d, %s, s%d offen offset:%d%s lds", vWg + i, sr(WSRD, 4), sWoff, 1024 * i, ntw)
            if i == 1:
                a("s_add_u32 s%d, s%d, %d", sWoff, sWoff, 0 if env("NOADV", 0) & 2 else 64 * 3840)
                if SKEW:
                    a("s_cmp_eq_u32 s%d, 1280", sXoff)
                    a("s_cselect_b32 s%d, 0, s%d", sXoff, sXoff)
                    a("s_cselect_b32 s%d, 0, s%d", sWoff, sWoff)
        for i in range(4): ops.append(lambda i=i: x(i))
        for i in range(2): ops.append(lambda i=i: w(i))
        return ops
    for op in dma_ops("0", "0"): op()
    a("s_barrier")
    a("s_or_b32 s%d, s2, s%d", sT3, sW)
    a("s_cbranch_scc1 L_nononce")
    a("s_or_b32 s%d, s%d, 0x80000000", sNon + 1, sNon + 1)
    a("v_mov_b32 v%d, s%d", vNon, sNon)
    a("v_mov_b32 v%d, s%d", vNon + 1, sNon + 1)
    a("v_mov_b32 v%d, 0", vT1)
    a("global_store_dwordx2 v%d, %s, s[%d:%d] sc0 sc1", vT1, vr(vNon, 2), sDbg, sDbg + 1)
    a.label("L_nononce")
    d1 = dma_ops("8192", "16384")
    d1.pop(0)(); d1.pop(0)()
    a("s_bfe_u32 s%d, s%d, 0x10001", sKH, sW)
    a("s_lshr_b32 s%d, s%d, 2", sQH, sW)
    a("s_mov_b32 s%d, %d", WS + 2, WS_USED)
    a("s_mov_b32 s%d, 0x20000", WS + 3)
    a("s_and_b32 s%d, s%d, 3", sT3, sW)
    a("v_lshrrev_b32 v%d, 1, v%d", vT1, vM)
    a("v_xor_b32 v%d, v%d, v%d", vT1, vT1, vT4)
    a("s_mul_i32 s%d, s%d, 24576", sT, sT3)
    a("v_lshl_add_u32 v%d, v%d, 7, s%d", vT2, vM, sT)
    a("v_lshl_add_u32 v%d, v%d, 4, v%d", vXa, vT1, vT2)
    a("v_xor_b32 v%d, 64, v%d", vXa + 1, vXa)
    a("v_bfe_u32 v%d, v%d, 2, 2", vT1, vLane)
    a("v_lshl_add_u32 v%d, v%d, 3, v%d", vT2, vT4, vT1)
    a("v_lshlrev_b32 v%d, 8, v%d", vT2, vT2)
    a("v_and_b32 v%d, 3, v%d", vT3, vLane)
    a("v_lshl_add_u32 v%d, v%d, 3, v%d", vT2, vT3, vT2)
    a("v_add_u32 v%d, %d, v%d", vT2, WBASE, vT2)
    a("v_bfe_u32 v%d, v%d, 2, 3", vT1, vLane)
    a("s_lshl_b32 s%d, s%d, 2", sT, sQH)
    a("v_xor_b32 v%d, s%d, v%d", vT1, sT, vT1)
    a("v_lshl_add_u32 v%d, v%d, 5, v%d", vWa, vT1, vT2)
    for xt in range(1, 4): a("v_xor_b32 v%d, %d, v%d", vWa + xt, 32 * xt, vWa)
    d1.pop(0)()
    a("v_lshlrev_b32 v%d, 4, v%d", vL16, vLane)
    a("s_lshl_b32 s%d, s%d, 14", sT, sT3)
    a("s_add_u32 s%d, s%d, %d", sT, sT, IMG)
    a("v_add_u32 v%d, s%d, v%d", vL0, sT, vL16)
    a("v_cmp_lt_u32 vcc, 1, v%d", vT4)
    a("v_add_u32 v%d, 4096, v%d", vT1, vL16)
    a("v_mov_b32 v%d, 0x%x", vT2, f32bits(CSCALE))
    a("v_cndmask_b32 v%d, v%d, v%d, vcc", vG0, vS1, vT1)
    a("v_cndmask_b32 v%d, v%d, 1.0, vcc", vSc, vT2)
    a("v_and_b32 v%d, 4, v%d", vT1, vM)
    a("v_and_b32 v%d, 8, v%d", vT2, vM)
    a("v_lshlrev_b32 v%d, 5, v%d", vT1, vT1)
    a("v_lshl_add_u32 v%d, v%d, 3, v%d", vT1, vT2, vT1)
    a("v_and_b32 v%d, 0x330, v%d", vT2, vL16)
    a("v_add_u32 v%d, v%d, v%d", vT1, vT1, vT2)
    a("v_add_u32 v%d, 6144, v%d", vG1, vT1)
    a("v_add_u32 v%d, s%d, v%d", vL1, sT, vG1)
    d1.pop(0)()
    for i in range(64): a("v_mov_b32 v%d, 0", ACC + i)
    a("v_and_b32 v%d, 11, v%d", vT1, vM)
    a("v_cmp_eq_u32 vcc, 8, v%d", vT1)
    a("v_mov_b32 v%d, 0x3f803f80", vT1)
    a("v_and_b32 v%d, 31, v0", vM)
    a("v_cndmask_b32 v243, 0, v%d, vcc", vT1)
    d1.pop(0)()
    a("v_bfe_u32 v%d, v0, 5, 1", vH)
    for i in range(64): a("v_mov_b32 v%d, 0", O + i)
    d1.pop(0)()
    a("v_mov_b32 v%d, 0xdddddddd", vIdx)
    a("v_and_b32 v%d, 4, v%d", vT1, vM)
    a("v_lshlrev_b32 v%d, 8, v%d", vT1, vT1)
    a("v_and_b32 v%d, 24, v%d", vT2, vM)
    a("v_lshl_add_u32 v%d, v%d, 3, v%d", vT1, vT2, vT1)
    a("v_and_b32 v%d, 3, v%d", vT2, vM)
    a("v_lshl_add_u32 v%d, v%d, 4, v%d", vT1, vT2, vT1)
    a("s_lshl_b32 s%d, s%d, 9", sT, sE)
    a("v_lshl_add_u32 v%d, v%d, 8, s%d", vT2, vH, sT)
    a("v_add_u32 v%d, v%d, v%d", vK, vT1, vT2)
    a("s_lshl_b32 s%d, s%d, 8", sT, sE)
    a("s_add_u32 s%d, s%d, %d", sT, sT, 4096 + 512)
    a("v_cmp_eq_u32 vcc, 0, v%d", vH)
    a("v_add_u32 v%d, s%d, v%d", vRr, sT, vT1)
    a("v_lshlrev_b32 v%d, 3, v%d", vT3, vLane)
    a("v_cndmask_b32 v%d, v%d, v%d, vcc", vKr, vS1, vRr)
    a("v_cndmask_b32 v%d, v%d, v%d, vcc", vFl, vS1, vT3)
    a("v_add_u32 v%d, 2048, v%d", vT3, vL16)
    a("v_cndmask_b32 v%d, v%d, v%d, vcc", vOr, vS1, vT3)
    a("v_min_u32 v%d, 20, v%d", vT1, vM)
    a("v_lshlrev_b32 v%d, 4, v%d", vT1, vT1)
    a("v_lshl_add_u32 v%d, v%d, 8, v%d", vT1, vH, vT1)
    a("s_lshl_b32 s%d, s%d, 10", sT, sE)
    a("s_add_u32 s%d, s%d, 6144", sT, sT)
    a("s_lshl_b32 s%d, s%d, 7", sT2, sE)
    a("s_add_u32 s%d, s%d, %d", sT2, sT2, 6144 + 2048 - 256)
    a("v_cmp_gt_u32 vcc, 16, v%d", vM)
    a("v_add_u32 v%d, s%d, v%d", vT2, sT, vT1)
    a("v_add_u32 v%d, s%d, v%d", vT3, sT2, vT1)
    a("v_cndmask_b32 v%d, v%d, v%d, vcc", vRv, vT3, vT2)
    a("v_and_b32 v%d, 0x1b, v%d", vT2, vM)
    a("v_cmp_eq_u32 vcc, 24, v%d", vT2)
    a("v_cmp_gt_u32 s[%d:%d], 20, v%d", sC, sC + 1, vM)
    a("s_lshl_b32 s%d, s%d, 1", sT2, sQH)
    a("s_add_u32 s%d, s%d, s%d", sT2, sT2, sKH)
    a("s_or_b64 vcc, vcc, s[%d:%d]", sC, sC + 1)
    a("v_cndmask_b32 v%d, v%d, v%d, vcc", vV, vS1, vRv)
    a("s_lshl_b32 s%d, s%d, 14", sC, sT2)
    a("s_add_u32 s%d, s%d, %d", sC, sC, IMG)
    a("s_xor_b32 s%d, s%d, %d", sC + 1, sC, 1 << 14)
    a("v_add_u32 v%d, s%d, v%d", vRq0, sC, vK)
    a("v_add_u32 v%d, s%d, v%d", vRq1, sC + 1, vK)
    a("s_sub_u32 s%d, s%d, 512", sC, sC)
    a("s_sub_u32 s%d, s%d, 512", sC + 1, sC + 1)
    a("v_add_u32 v%d, s%d, v%d", vRqr0, sC, vRr)
    a("v_add_u32 v%d, s%d, v%d", vRqr1, sC + 1, vRr)
    a("s_lshl_b32 s%d, s%d, 15", sT, sKH)
    a("s_add_u32 s%d, s%d, %d", sT, sT, IMG)
    a("v_add_u32 v%d, s%d, v%d", vRk, sT, vK)
    a("v_add_u32 v%d, s%d, v%d", vRr, sT, vRr)
    a("v_add_u32 v%d, s%d, v%d", vRv, sT, vRv)
    a("s_lshl_b32 s%d, s%d, 2", sT, sTB)
    a("s_add_u32 s%d, s%d, s%d", sT2, sT2, sT)
    a("s_lshl_b32 s%d, s%d, 5", sC, sB)
    a("s_add_u32 s%d, s%d, s%d", sT2, sT2, sC)
    a("s_lshl_b32 s%d, s%d, 4", sO, sT2)
    a("s_add_u32 s%d, s%d, s%d", sO, sO, sHP)
    a("s_lshl_b32 s%d, s%d, 1", sO, sO)
    a("s_add_u32 s%d, s%d, s%d", sO, sO, sE)
    a("s_lshl_b32 s%d, s%d, 7", sT2, sO)
    a("s_add_u32 s%d, s%d, %d", sF2, sT2, F2_OFF)
    a("s_mul_i32 s%d, s%d, %d", sO, sO, OB)
    a("s_add_u32 s%d, s%d, %d", sO, sO, O_OFF)
    a("s_lshl_b32 s%d, s%d, 4", sC, sB)
    a("s_add_u32 s%d, s%d, s%d", sC, sC, sHP)
    a("s_mul_i32 s%d, s%d, %d", sKV, sC, KV_PAIR)
    a("s_add_u32 s%d, s%d, s%d", sT, sT, sT3)
    a("s_mul_i32 s%d, s%d, %d", sPub, sT, BLK)
    a("s_add_u32 s%d, s%d, s%d", sPub, sPub, sKV)
    a("s_mul_i32 s%d, s%d, %d", sT2, sKH, 2 * BLK)
    a("s_add_u32 s%d, s%d, s%d", sKV, sKV, sT2)
    a("s_lshl_b32 s%d, s%d, 1", sC, sC)
    a("s_add_u32 s%d, s%d, s%d", sC, sC, sKH)
    a("s_lshl_b32 s%d, s%d, 8", sC, sC)
    a("s_add_u32 s%d, s%d, %d", sF1, sC, F1_OFF)
    a("s_lshl_b32 s%d, s%d, 1", sT, sTB)
    a("s_add_u32 s%d, s%d, s%d", sT, sT, sE)
    a("s_lshl_b32 s%d, s%d, 1", sT, sT)
    a("s_add_u32 s%d, s%d, s%d", sT, sT, sQH)
    a("s_lshl_b32 s%d, s%d, 3", sT, sT)
    a("v_mov_b32 v%d, s%d", vF1, sT)
    a("s_and_b32 s%d, s%d, 4", sT, sTB)
    a("s_lshl_b32 s%d, s%d, 2", sT, sT)
    a("s_lshl_b32 s%d, 0xffff, s%d", sMsk, sT)
    a("s_mov_b32 s%d, 0", sIt)
    a("s_mov_b32 s%d, 0", sSlot)

    def read_ops(fb, ks):
        f = F + 32 * fb
        ops = []
        for t in range(4):
            ops.append(lambda t=t: a("ds_read_b128 %s, v%d offset:%d", vr(f + 4 * t, 4), vXa + ks, t * 2048))
            for q in range(2):
                ops.append(lambda t=t, q=q: a("ds_read_b64_tr_b16 %s, v%d offset:%d", vr(f + 16 + 4 * t + 2 * q, 2), vWa + t, ks * 8192 + q * 1024))
        return ops
    def reads(fb, ks):
        for op in read_ops(fb, ks): op()
    RPM = env("RPM", 1)
    def mfs(fb, isB, rd, dm, misc):
        f = F + 32 * fb
        n = 0
        for (xt, t) in sorted([(x, y) for x in range(4) for y in range(4)], key=lambda p: (max(p), p)):
            d = ACC + 16 * xt + 4 * t
            x, w = vr(f + 4 * t, 4), vr(f + 16 + 4 * xt, 4)
            if isB and xt > 0: a("v_mfma_f32_16x16x32_bf16 %s, %s, %s, %s", vr(d, 4), x, w, vr(d, 4))
            else:              a("v_mfma_f32_16x16x32_bf16 %s, %s, %s, %s", vr(d, 4), w, x, vr(d, 4))
            n += 1
            if rd:
                for _ in range(RPM):
                    if rd: rd.pop(0)()
            elif dm and n % 3 == 1: dm.pop(0)()
            elif misc:
                for _ in range(3):
                    if misc: misc.pop(0)()
        for op in rd + dm + misc: op()
    def stage(kind, isB, ops):
        if kind == 2:
            a("v_mov_b32 v%d, 0", vT1)
            a("global_load_dwordx2 %s, v%d, s[%d:%d] sc0 sc1", vr(vNon, 2), vT1, sDbg, sDbg + 1)
        misc = []
        if kind < 2:
            misc = [lambda: (a("s_cmp_eq_u32 s%d, 2", sSlot), a("s_cselect_b32 s%d, -2, 1", sDX)),
                    lambda: a("s_lshl_b32 s%d, s%d, 14", sDW, sDX),
                    lambda: a("s_lshl_b32 s%d, s%d, 13", sT, sDX)]
            misc += [lambda ks=ks: a("v_add_u32 v%d, s%d, v%d", vXa + ks, sT, vXa + ks) for ks in range(2)]
            misc += [lambda ft=ft: a("v_add_u32 v%d, s%d, v%d", vWa + ft, sDW, vWa + ft) for ft in range(4)]
        a("s_waitcnt lgkmcnt(0)")
        mfs(0, isB, read_ops(1, 1), ops, misc)
        nops, rd, misc = [], [], []
        if kind < 2:
            a("s_lshl_b32 s%d, s%d, 13", sSx, sSlot)
            a("s_lshl_b32 s%d, s%d, 14", sSw, sSlot)
            a("s_waitcnt vmcnt(%d) lgkmcnt(0)", 0 if kind == 1 else 6)
            a("s_barrier")
            rd = read_ops(0, 0)
            misc = [lambda: a("s_add_u32 s%d, s%d, s%d", sSlot, sSlot, sDX)]
            if kind == 0:
                nops = dma_ops("s%d" % sSx, "s%d" % sSw)[:3]
                misc += [lambda: a("s_add_u32 s%d, s%d, 1", sIt, sIt)]
        else:
            a("s_waitcnt lgkmcnt(0)")
            a("s_barrier")
        mfs(1, isB, rd, nops, misc)
    st(0)
    a("s_waitcnt vmcnt(6)")
    st(1)
    a("s_barrier")
    reads(0, 0)
    a("s_mov_b32 s%d, %d", sSx, 2 * 8192)
    a("s_mov_b32 s%d, %d", sSw, 2 * 16384)
    d2 = dma_ops("s%d" % sSx, "s%d" % sSw)
    for i in range(3): d2.pop(0)()
    a("s_cmp_eq_u32 s%d, 0", sQH)
    a("s_cbranch_scc0 L_gemmB")
    CV = F
    for isB in (False, True):
        L = "L_gemmB" if isB else "L_gemmA"
        a.label(L)
        stage(0, isB, dma_ops("s%d" % sSx, "s%d" % sSw)[3:])
        a("s_cmp_lt_u32 s%d, 7", sIt)
        a("s_cbranch_scc1 %s", L)
        stage(-1, isB, dma_ops("s%d" % sSx, "s%d" % sSw)[3:])
        stage(1, isB, [])
        stage(2, isB, [])
        st(2, False)
        def cvt(dst, src):
            a("v_cvt_pk_bf16_f32 v%d, v%d, v%d", dst, src, src + 1)
            a("v_cvt_pk_bf16_f32 v%d, v%d, v%d", dst + 1, src + 2, src + 3)
        if not isB:
            a("s_mov_b32 s%d, 0x%x", sC, f32bits(CSCALE))
            a("s_mov_b32 s%d, s%d", sC + 1, sC)
            a("s_lshl_b32 s%d, s%d, 5", sT, sW)
            a("v_mov_b32 v%d, s%d", vT2, sT)
            a("ds_write_b128 v%d, %s offset:%d", vT2, vr(O, 4), LFLAG)
            a("s_waitcnt vmcnt(0)")
            a("s_nop 2")
            for t in range(4):
                o = CV + 4 * t
                cvt(o, ACC + 32 + 4 * t); cvt(o + 2, ACC + 48 + 4 * t)
                a("ds_write_b128 v%d, %s offset:%d", vL0, vr(o, 4), t * 1024)
                a("buffer_store_dwordx4 %s, v%d, %s, s%d offen offset:%d sc1", vr(o, 4), vL16, srd, sPub, t * 1024)
            for t in range(4):
                o = CV + 16 + 4 * t
                for xt in range(2):
                    for h in range(2):
                        r = ACC + 16 * xt + 4 * t + 2 * h
                        a("v_pk_mul_f32 %s, %s, s[%d:%d]", vr(r, 2), vr(r, 2), sC, sC + 1)
                cvt(o, ACC + 4 * t); cvt(o + 2, ACC + 16 + 4 * t)
                a("ds_write_b128 v%d, %s offset:%d", vL0, vr(o, 4), 12288 + t * 1024)
            a("s_setprio 2")
            for i in range(16): a("v_mov_b32 v%d, 0", S + 48 + i)
            a("s_waitcnt lgkmcnt(0)")
            st(3)
            a("s_barrier")
            a("s_branch L_epi_done")
        else:
            a("s_setprio 3")
            a("s_add_u32 s%d, s%d, 3072", sT2, sPub)
            a("s_mov_b32 s%d, 0xff00ff00", sC)
            a("s_mov_b32 s%d, 0xff00ff00", sC + 1)
            a("s_lshl_b32 s%d, s%d, 5", sT, sW)
            a("v_mov_b32 v%d, s%d", vT2, sT)
            a("ds_write_b128 v%d, %s offset:%d", vT2, vr(O, 4), LFLAG)
            a("s_waitcnt vmcnt(0)")
            a("s_nop 3")
            n = 0
            stores = []
            for xt in (1, 2, 3):
                for kt in range(2):
                    o = CV + 4 * n; n += 1
                    cvt(o, ACC + 16 * xt + 8 * kt); cvt(o + 2, ACC + 16 * xt + 8 * kt + 4)
                    if xt == 3:
                        for i in range(4): a("v_cndmask_b32 v%d, v%d, v243, s[%d:%d]", o + i, o + i, sC, sC + 1)
                    a("ds_write_b128 v%d, %s offset:%d", vL1, vr(o, 4), kt * 3072 + (xt - 1) * 1024)
                    stores.append("buffer_store_dwordx4 %s, v%d, %s, s%d offen offset:%d sc1" % (vr(o, 4), vG1, srd, sT2 if kt else sPub, (xt - 1) * 1024))
            for i in range(16): a("v_mul_f32 v%d, v%d, v%d", ACC + i, vSc, ACC + i)
            for q in range(2):
                o = CV + 4 * n; n += 1
                cvt(o, ACC + 4 * q); cvt(o + 2, ACC + 4 * (q + 2))
                a("ds_write_b128 v%d, %s offset:%d", vL0, vr(o, 4), 4096 + q * 1024)
                stores.append("buffer_store_dwordx4 %s, v%d, %s, s%d offen offset:%d sc1" % (vr(o, 4), vG0, srd, sPub, q * 1024))
            NPRE = env("NPRE", 2)
            for x in stores[:NPRE]: a(x)
            a("s_waitcnt lgkmcnt(0)")
            st(3)
            a("s_barrier")
            for x in stores[NPRE:]: a(x)
            for i in range(16): a("v_mov_b32 v%d, 0", S + 48 + i)
    a.label("L_epi_done")
    def rdK(b): a("ds_read_b128 %s, v%d offset:%d", vr(Km + 4 * b, 4), vRk, (b >> 1) * 16384 + (b & 1) * 2048)
    def rdR(p): a("ds_read_b128 %s, v%d offset:%d", vr(Kr + 4 * p, 4), vRr, p * 16384)
    def rdV(b):
        for g in range(2): a("ds_read_b128 %s, v%d offset:%d", vr(V + 8 * b + 4 * g, 4), vRv, (b >> 1) * 16384 + (b & 1) * 3072 + g * 512)
    def rdQ(p):
        for j in range(2): a("ds_read_b128 %s, v%d offset:%d", vr(Qm + 8 * p + 4 * j, 4), vRq0 + p, 12288 + j * 2048)
    rdK(0); rdR(0); rdQ(0)
    for i in range(8): a("v_mov_b32 v%d, 0", Qr + i)
    a("s_mov_b32 exec_hi, 0")
    a("ds_read_b128 %s, v%d", vr(Qr, 4), vRqr0)
    a("ds_read_b128 %s, v%d", vr(Qr + 4, 4), vRqr1)
    a("s_mov_b32 exec_hi, -1")
    rdQ(1); rdV(3); rdV(0); rdK(1)
    a("v_readfirstlane_b32 s%d, v%d", sNon + 1, vNon + 1)
    a("v_readfirstlane_b32 s%d, v%d", sNon, vNon)
    a("s_mov_b32 s%d, 0", sTmo)
    a("s_cmp_lg_u32 s%d, 0", sNon + 1)
    a("s_cbranch_scc1 L_nonce_ok")
    a.label("L_nonce_retry")
    a("v_mov_b32 v%d, 0", vT1)
    a("global_load_dwordx2 %s, v%d, s[%d:%d] sc0 sc1", vr(vNon, 2), vT1, sDbg, sDbg + 1)
    a("s_add_u32 s%d, s%d, 1", sTmo, sTmo)
    a("s_waitcnt vmcnt(0)")
    a("v_readfirstlane_b32 s%d, v%d", sNon + 1, vNon + 1)
    a("v_readfirstlane_b32 s%d, v%d", sNon, vNon)
    a("s_cmp_gt_u32 s%d, 0x4000", sTmo)
    a("s_cbranch_scc1 L_nonce_ok")
    a("s_cmp_eq_u32 s%d, 0", sNon + 1)
    a("s_cbranch_scc1 L_nonce_retry")
    a.label("L_nonce_ok")

    def kvop(what, b, sreg, extra=0):
        op = "buffer_load_dwordx4"
        p, i = b // 2, b % 2
        if what == "k":   a("%s %s, v%d, %s, s%d offen offset:%d sc1", op, vr(Km + 4 * b, 4), vK, srd, sreg[p], 2048 * i)
        elif what == "r": a("%s %s, v%d, %s, s%d offen sc1", op, vr(Kr + 4 * p, 4), vKr, srd, sreg[p])
        else:             a("%s %s, v%d, %s, s%d offen offset:%d sc1", op, vr(V + 8 * b + 4 * extra, 4), vV, srd, sreg[p], 3072 * i + 512 * extra)
    def qk1(j, kb): a("v_mfma_f32_32x32x16_bf16 %s, %s, %s, 0", vr(S + 16 * j, 16), vr(Km + 4 * kb, 4), vr(Qm + 4 * j, 4))
    def qk2(j, kb): a("v_mfma_f32_32x32x8_bf16 %s, %s, %s, %s", vr(S + 16 * j, 16), vr(Kr + 2 * kb, 2), vr(Qr + 2 * j, 2), vr(S + 16 * j, 16))
    def pv(j, vb, half): a("v_smfmac_f32_32x32x32_bf16 %s, %s, %s, v%d", vr(O + 16 * j, 16), vr(V + 8 * vb + 4 * half, 4), vr(S + 16 * j + 8 * half, 8), vIdx)
    def ex(r): a("v_exp_f32 v%d, v%d", r, r)
    def signal1():
        a("s_waitcnt vmcnt(0)")
        a("buffer_store_dwordx2 %s, v%d, %s, s%d offen sc0 sc1", vr(vNon, 2), vF1, srd, sF1)
    def poll(lbl, sline, mask, tmo, slp):
        a("s_mov_b32 s%d, 0", sTmo)
        a.label(lbl)
        a("buffer_load_dwordx2 v[4:5], v%d, %s, s%d offen sc0 sc1", vFl, srd, sline)
        a("s_add_u32 s%d, s%d, 1", sTmo, sTmo)
        a("s_waitcnt vmcnt(0)")
        a("v_cmp_eq_u64 vcc, s[%d:%d], v[4:5]", sNon, sNon + 1)
        a("s_cmp_gt_u32 s%d, 0x%x", sTmo, tmo)
        a("s_cbranch_scc1 %s_ok", lbl)
        a("s_andn2_b32 s%d, %s, vcc_lo", sT, mask)
        a("s_cbranch_scc0 %s_ok", lbl)
        a("s_sleep %d", slp)
        a("s_branch %s", lbl)
        a.label(lbl + "_ok")

    a("s_waitcnt lgkmcnt(7)")
    qk1(0, 0); qk2(0, 0); qk1(1, 0); qk2(1, 0)
    rdV(1); rdK(2); rdR(1); rdV(2); rdK(3)
    a("s_lshl_b32 s%d, s%d, 5", sT, sW)
    a("v_mov_b32 v226, s%d", sT)
    a("s_xor_b32 s%d, s%d, 64", sT, sT)
    a("v_mov_b32 v227, s%d", sT)
    a("v_mov_b32 v228, 1")
    a("s_mul_i32 s%d, s%d, 6656", sT, sW)
    a("s_add_u32 s%d, s%d, %d", sT, sT, CMB)
    a("v_add_u32 v231, s%d, v%d", sT, vL16)
    a("v_lshl_add_u32 v233, v%d, 2, s%d", vLane, sT)
    a("s_xor_b32 s%d, s%d, 2", sT2, sW)
    a("s_mul_i32 s%d, s%d, 6656", sT, sT2)
    a("s_add_u32 s%d, s%d, %d", sT, sT, CMB)
    a("v_add_u32 v230, s%d, v%d", sT, vL16)
    a("v_lshl_add_u32 v232, v%d, 2, s%d", vLane, sT)
    a("s_waitcnt lgkmcnt(0)")
    a("ds_write_b32 v226, v228 offset:12")
    st(4, False)
    signal1()
    st(5, False)

    def next_chunk():
        return [lambda: a("s_add_u32 s%d, s%d, 1", sCh, sCh),
                lambda: a("s_xor_b32 s%d, s%d, s%d", sNxt, sCh, sTB),
                lambda: a("s_and_b32 s%d, s%d, 7", sNxt, sNxt),
                lambda: a("s_mul_i32 s%d, s%d, %d", sNxt, sNxt, 4 * BLK),
                lambda: a("s_add_u32 s%d, s%d, s%d", sNxt, sNxt, sKV)]
    N = (sNxt, sNxt1)
    sched = {
        (0, 1): [("V3a", lambda: kvop("v", 3, N, 0)), ("V3b", lambda: kvop("v", 3, N, 1))],
        (0, 2): [("K0", lambda: kvop("k", 0, N))],
        (1, 1): [("V0a", lambda: kvop("v", 0, N, 0)), ("V0b", lambda: kvop("v", 0, N, 1))],
        (1, 2): [("K1", lambda: kvop("k", 1, N)), ("R0", lambda: kvop("r", 0, N))],
        (2, 1): [("V1a", lambda: kvop("v", 1, N, 0)), ("V1b", lambda: kvop("v", 1, N, 1))],
        (2, 2): [("K2", lambda: kvop("k", 2, N))],
        (3, 1): [("V2a", lambda: kvop("v", 2, N, 0)), ("V2b", lambda: kvop("v", 2, N, 1))],
        (3, 2): [("K3", lambda: kvop("k", 3, N)), ("R1", lambda: kvop("r", 2, N))],
    }
    order = [(k, n) for k in sorted(sched) for (n, _) in sched[k]]
    def younger(name, pos):
        names = [n for _, n in order]
        i = names.index(name); cnt = 0
        while True:
            i = (i + 1) % len(order)
            if order[i][0] == pos or (order[i][0] > pos and (order[i - 1][0] < pos or i == 0)): return cnt
            cnt += 1
    PA, PB, POLLP = env("PA", 4), env("PB", 5), (3, 0)
    def iteration(first):
        for tt in range(4):
            for j in range(4):
                pj, pvb = ((3, (tt - 1) % 4) if j == 0 else (j - 1, tt))
                nj, nkb = (j + 2) % 4, (tt if j < 2 else (tt + 1) % 4)
                slots = [[], [], []]
                lds = [f for _, f in sched.get((tt, j), [])]
                wv = younger("V%db" % tt, (tt, 1)) if j == 0 else None
                k1 = (tt + 1) % 4
                wk = min(younger("K%d" % k1, (tt, 2)), younger("R%d" % (k1 // 2), (tt, 2))) if j == 2 else None
                if first:
                    if 4 * tt + j == PB:
                        a("s_cmp_eq_u32 s%d, 0", sQH)
                        a("s_cbranch_scc1 L_nosig3")
                        a("s_setprio 1")
                        a.label("L_nosig3")
                    if (tt, j) == POLLP:
                        st(6, False)
                        poll("L_poll1", sF1, "s%d" % sMsk, 0x4000, 2)
                        st(7, False)
                        a("s_not_b32 s%d, vcc_lo", sMsk)
                        a("s_mov_b32 s%d, 0", sCh)
                        for f in next_chunk(): f()
                        a("s_add_u32 s%d, s%d, %d", sNxt1, sNxt, BLK)
                        for k in sorted(sched):
                            if (0, 1) < k < POLLP:
                                for _, f in sched[k]: f()
                    if (tt, j) < POLLP: lds = []
                    wv = None
                    if (tt, j) != (3, 2): wk = None
                else:
                    if (tt, j) == (0, 0):
                        nc = next_chunk()
                        slots[0] += nc[0:2]; slots[1] += nc[2:4]
                    if (tt, j) == (0, 1): slots[2] += nc[4:5]
                    if (tt, j) == (0, 3): slots[0].append(lambda: a("s_add_u32 s%d, s%d, %d", sNxt1, sNxt, BLK))
                    if (tt, j) == (3, 3): slots[0].append(lambda: a("s_cmp_lt_u32 s%d, 8", sCh))
                if wv is not None: slots[2].append(lambda wv=wv: a("s_waitcnt vmcnt(%d)", wv))
                if wk is not None:
                    slots[0].append(lambda wk=wk: a("s_waitcnt vmcnt(%d)", wk))
                    for i, f in enumerate(lds): slots[1 + i].append(f)
                else:
                    for i, f in enumerate(lds): slots[i].append(f)
                regs = [S + 16 * j + i for i in range(16)]
                def ex4():
                    for _ in range(4): ex(regs.pop(0))
                pv(pj, pvb, 0); [f() for f in slots[0]]; ex4()
                pv(pj, pvb, 1); [f() for f in slots[1]]; ex4()
                qk1(nj, nkb);   [f() for f in slots[2]]; ex4()
                qk2(nj, nkb); ex4()
    iteration(True)
    st(8, False)
    a.raw(".p2align 6")
    a.label("L_attn")
    a("s_cmp_eq_u32 s%d, 0", sMsk)
    a("s_cbranch_scc0 L_late")
    a.label("L_attn_go")
    iteration(False)
    a("s_cbranch_scc1 L_attn")
    a("ds_write_b128 v231, %s", vr(O + 32, 4))
    pv(3, 3, 0); pv(3, 3, 1)
    st(9, False)
    for q in range(1, 3): a("ds_write_b128 v231, %s offset:%d", vr(O + 32 + 4 * q, 4), q * 1024)
    a("ds_write_b32 v233, v%d offset:%d", O + 32 + 12, 6144)
    a("s_mov_b32 s%d, 0x%x", sT3, f32bits(2.0 ** -30))
    a("s_mov_b32 s%d, 0x%x", sT2, f32bits(2.0 ** 60))
    a("s_mov_b32 s%d, 0", sTmo)
    a("s_nop 5")
    for q in range(3): a("ds_write_b128 v231, %s offset:%d", vr(O + 48 + 4 * q, 4), 3072 + q * 1024)
    a("ds_write_b32 v233, v%d offset:%d", O + 48 + 12, 6400)
    a("ds_write_b32 v227, v228")
    def lds_wait(lbl, word, val, slp=1):
        a("s_mov_b32 s%d, 0", sTmo)
        a.label(lbl)
        a("ds_read_b32 v229, v226 offset:%d", 4 * word)
        a("s_add_u32 s%d, s%d, 1", sTmo, sTmo)
        a("s_waitcnt lgkmcnt(0)")
        a("v_readfirstlane_b32 s%d, v229", sT)
        a("s_cmp_gt_u32 s%d, 0x20000", sTmo)
        a("s_cbranch_scc1 %s_ok", lbl)
        a("s_cmp_ge_u32 s%d, %s", sT, val)
        a("s_cbranch_scc1 %s_ok", lbl)
        a("s_sleep %d", slp)
        a("s_branch %s", lbl)
        a.label(lbl + "_ok")
    if DIAG: a("s_waitcnt lgkmcnt(0)")
    a.label("L_cmb")
    a("ds_read_b32 v229, v226")
    for j in range(2):
        for q in range(3): a("ds_read_b128 %s, v230 offset:%d", vr(S + 16 * j + 4 * q, 4), j * 3072 + q * 1024)
        a("ds_read_b32 v%d, v232 offset:%d", S + 16 * j + 12, 6144 + 256 * j)
    a("s_add_u32 s%d, s%d, 1", sTmo, sTmo)
    a("s_waitcnt lgkmcnt(8)")
    a("v_readfirstlane_b32 s%d, v229", sT)
    a("s_cmp_gt_u32 s%d, 0x20000", sTmo)
    a("s_cbranch_scc1 L_cmb_ok")
    a("s_cmp_eq_u32 s%d, 0", sT)
    a("s_cbranch_scc0 L_cmb_ok")
    a("s_waitcnt lgkmcnt(0)")
    a("s_branch L_cmb")
    a.label("L_cmb_ok")
    a("s_waitcnt lgkmcnt(4)")
    for j in range(2):
        if j: a("s_waitcnt lgkmcnt(0)")
        for i in range(0, 12, 2): a("v_pk_add_f32 %s, %s, %s", vr(O + 16 * j + i, 2), vr(O + 16 * j + i, 2), vr(S + 16 * j + i, 2))
        a("v_add_f32 v%d, v%d, v%d", O + 16 * j + 12, O + 16 * j + 12, S + 16 * j + 12)
    Z = S + 32
    a("v_pk_mul_f32 %s, %s, 0", vr(Z, 2), vr(O, 2))
    a("v_pk_mul_f32 %s, %s, 0", vr(Z + 2, 2), vr(O + 16, 2))
    for i in range(2, 12, 2):
        for j in range(2): a("v_pk_fma_f32 %s, %s, 0, %s", vr(Z + 2 * j, 2), vr(O + 16 * j + i, 2), vr(Z + 2 * j, 2))
    a("v_cmp_le_f32 s[%d:%d], s%d, v%d", sC, sC + 1, sT3, O + 12)
    a("v_cmp_le_f32 s[%d:%d], s%d, v%d", sC2, sC2 + 1, sT3, O + 28)
    a("v_pk_add_f32 %s, %s, %s", vr(Z, 2), vr(Z, 2), vr(Z + 2, 2))
    a("v_cmp_ge_f32 vcc, s%d, v%d", sT2, O + 12)
    a("s_and_b64 s[%d:%d], s[%d:%d], s[%d:%d]", sC, sC + 1, sC, sC + 1, sC2, sC2 + 1)
    a("v_cmp_ge_f32 s[%d:%d], s%d, v%d", sC2, sC2 + 1, sT2, O + 28)
    a("s_and_b64 s[%d:%d], s[%d:%d], vcc", sC, sC + 1, sC, sC + 1)
    a("v_cmp_o_f32 vcc, v%d, v%d", Z, Z + 1)
    a("s_and_b64 s[%d:%d], s[%d:%d], s[%d:%d]", sC, sC + 1, sC, sC + 1, sC2, sC2 + 1)
    a("s_and_b64 s[%d:%d], s[%d:%d], vcc", sC, sC + 1, sC, sC + 1)
    a("s_cmp_eq_u64 s[%d:%d], -1", sC, sC + 1)
    a("s_cbranch_scc0 L_slow")
    a.label("L_fin")
    for j in range(2): a("v_rcp_f32 v%d, v%d", Z + 2 * j, O + 16 * j + 12)
    a("v_mov_b32 v%d, 0", vT1)
    for j in range(2):
        for i in range(0, 12, 2): a("v_pk_mul_f32 %s, %s, %s op_sel_hi:[1,0]", vr(O + 16 * j + i, 2), vr(O + 16 * j + i, 2), vr(Z + 2 * j, 2))
        for i in range(4): a("v_cvt_pk_bf16_f32 v%d, v%d, v%d", S + 4 * j + i, O + 16 * j + 2 * i, O + 16 * j + 2 * i + 1)
        a("buffer_store_dwordx4 %s, v%d, %s, s%d offen offset:%d sc1", vr(S + 4 * j, 4), vL16, srd, sO, j * 1024)
        for i in range(2): a("v_cvt_pk_bf16_f32 v%d, v%d, v%d", S + 8 + 2 * j + i, O + 16 * j + 8 + 2 * i, O + 16 * j + 9 + 2 * i)
    a("buffer_store_dwordx4 %s, v%d, %s, s%d offen sc1", vr(S + 8, 4), vOr, srd, sO)
    st(16, False)
    a("v_mov_b32 v229, 2")
    a("ds_write_b32 v226, v229 offset:12")
    WO, OUT = WSRD, XS
    vG, vOa, vWa2, vSt, vGr, vOb = 234, 235, 236, 237, 238, 239
    ACC2, WF, OF = 16, 56, 96
    a("s_mul_i32 s%d, s%d, 24", sT, sB)
    a("s_add_u32 s%d, s%d, 16", sT, sT)
    a("s_load_dwordx2 s[4:5], s[0:1], s%d", sT)
    a("s_load_dwordx2 s[6:7], s[0:1], 48")
    a("v_lshrrev_b32 v%d, 4, v%d", vS1, vLane)
    a("v_and_b32 v%d, 15, v%d", vT3, vLane)
    a("s_lshl_b32 s%d, s%d, 8", sT, sE)
    a("v_lshl_add_u32 v%d, v%d, 4, s%d", vT4, vT3, sT)
    a("v_mul_u32_u24 v%d, %d, v%d", vT2, OB, vH)
    a("v_and_b32 v%d, 16, v%d", vOa, vLane)
    a("v_lshl_add_u32 v%d, v%d, 5, v%d", vOa, vOa, vT2)
    a("v_add_u32 v%d, v%d, v%d", vOa, vOa, vT4)
    a("v_mul_u32_u24 v%d, %d, v%d", vT2, 2 * OB, vS1)
    a("v_add_u32 v%d, v%d, v%d", vOb, vT2, vT4)
    a("v_add_u32 v%d, 2048, v%d", vOb, vOb)
    a("s_mul_i32 s%d, s%d, %d", sT, sKH, 10 * 5120)
    a("s_add_u32 s%d, s%d, %d", sT, sT, WOB)
    a("v_lshl_add_u32 v%d, v%d, 9, s%d", vT2, vH, sT)
    a("v_lshl_add_u32 v%d, v%d, 3, v%d", vWa2, vM, vT2)
    a("v_and_b32 v%d, 4, v%d", vT2, vT3)
    a("v_lshlrev_b32 v%d, 2, v%d", vT2, vT2)
    a("v_and_b32 v%d, 8, v%d", vT4, vT3)
    a("v_lshrrev_b32 v%d, 1, v%d", vT4, vT4)
    a("v_and_b32 v%d, 3, v%d", vT3, vT3)
    a("v_or3_b32 v%d, v%d, v%d, v%d", vT2, vT2, vT3, vT4)
    a("v_mul_u32_u24 v%d, 2560, v%d", vT2, vT2)
    a("v_lshl_add_u32 v%d, v%d, 3, v%d", vSt, vS1, vT2)
    a("v_lshlrev_b32 v%d, 7, v%d", vT2, vLane)
    a("v_lshl_or_b32 v%d, v%d, 29, v%d", vFl, vS1, vT2)
    a("s_and_b32 s%d, s%d, 7", sT3, sHP)
    a("s_mul_i32 s%d, s%d, 160", sT3, sT3)
    a("s_sub_u32 s%d, %d, s%d", WO + 2, 640 * 1280, sT3)
    a("s_mov_b32 s%d, 0x20000", WO + 3)
    a("s_mov_b32 s%d, %d", OUT + 2, 2048 * 2560)
    a("s_mov_b32 s%d, 0x20000", OUT + 3)
    a("s_lshl_b32 s%d, s%d, 1", sT, sTB)
    a("s_add_u32 s%d, s%d, s%d", sT, sT, sQH)
    a("s_lshl_b32 s%d, s%d, 1", sT, sT)
    a("s_add_u32 s%d, s%d, s%d", sT, sT, sHH)
    a("s_lshl_b32 s%d, s%d, 5", sT2, sB)
    a("s_add_u32 s%d, s%d, s%d", sT2, sT2, sT)
    a("s_lshl_b32 s%d, s%d, 1", sT2, sT2)
    a("s_add_u32 s%d, s%d, s%d", sT2, sT2, sKH)
    a("s_mul_i32 s%d, s%d, %d", sO, sT2, 16 * OB)
    a("s_add_u32 s%d, s%d, %d", sO, sO, O_OFF)
    a("s_lshl_b32 s%d, s%d, 11", sT2, sT2)
    a("s_add_u32 s%d, s%d, %d", sF1, sT2, F2_OFF)
    a("s_lshl_b32 s%d, s%d, 1", sT, sT)
    a("s_add_u32 s%d, s%d, s%d", sT, sT, sKH)
    a("s_lshl_b32 s%d, s%d, 2", sT, sT)
    a("s_add_u32 s%d, s%d, s%d", sT, sT, sE)
    a("s_mul_i32 s%d, s%d, %d", sPub, sT, 8 * 2560)
    a("s_mul_i32 s%d, s%d, 1280", sT2, sB)
    a("s_add_u32 s%d, s%d, s%d", sPub, sPub, sT2)
    a("s_add_u32 s%d, s%d, s%d", sPub, sPub, sT3)
    a("s_waitcnt vmcnt(0)")
    a("buffer_store_dwordx2 %s, v%d, %s, s%d offen sc0 sc1", vr(vNon, 2), vT1, srd, sF2)
    st(10)
    a("s_waitcnt lgkmcnt(0)")
    a("s_add_u32 s%d, s4, s%d", WO, sT3)
    a("s_addc_u32 s%d, s5, 0", WO + 1)
    a("s_mov_b32 s%d, s6", OUT)
    a("s_mov_b32 s%d, s7", OUT + 1)
    a("s_cmp_eq_u32 s%d, 0", sQH)
    a("s_cbranch_scc0 L_woskip")
    a("v_lshrrev_b32 v%d, 1, v%d", vT1, vLane)
    a("v_and_b32 v%d, 4, v%d", vT2, vT1)
    a("v_lshlrev_b32 v%d, 1, v%d", vT2, vT2)
    a("v_and_b32 v%d, 8, v%d", vT3, vT1)
    a("v_lshrrev_b32 v%d, 1, v%d", vT3, vT3)
    a("v_and_b32 v%d, 0x13, v%d", vT1, vT1)
    a("v_or3_b32 v%d, v%d, v%d, v%d", vT1, vT1, vT2, vT3)
    a("v_lshl_add_u32 v%d, v%d, 3, v%d", vT2, vH, vT1)
    a("v_and_b32 v%d, 24, v%d", vT3, vT1)
    a("v_lshl_add_u32 v%d, v%d, 2, v%d", vT3, vT3, vT1)
    a("v_add_u32 v%d, 16, v%d", vT3, vT3)
    a("v_mul_u32_u24 v%d, 1280, v%d", vT2, vT2)
    a("v_mul_u32_u24 v%d, 1280, v%d", vT3, vT3)
    a("v_and_b32 v%d, 1, v%d", vT1, vLane)
    a("v_lshl_add_u32 v%d, v%d, 4, v%d", vG, vT1, vT2)
    a("v_lshl_add_u32 v%d, v%d, 4, v%d", vGr, vT1, vT3)
    a("s_mul_i32 s%d, s%d, %d", sCur, sW, 160 * 1280)
    a("s_mul_i32 s%d, s%d, %d", sCh, sW, 5 * 5120)
    a("s_add_u32 s%d, s%d, %d", sCh, sCh, WOB)
    a("s_mov_b32 s%d, 0", sIt)
    a("v_and_b32 v%d, 7, v%d", vT1, vLane)
    a("v_lshlrev_b32 v%d, 5, v%d", vT1, vT1)
    a("s_mov_b32 s%d, 0", sTmo)
    a.label("L_img")
    a("ds_read_b32 v229, v%d offset:12", vT1)
    a("s_add_u32 s%d, s%d, 1", sTmo, sTmo)
    a("s_waitcnt lgkmcnt(0)")
    a("v_cmp_le_u32 vcc, 1, v229")
    a("s_cmp_gt_u32 s%d, 0x20000", sTmo)
    a("s_cbranch_scc1 L_wo")
    a("s_cmp_eq_u64 vcc, -1")
    a("s_cbranch_scc0 L_img")
    a.label("L_wo")
    for i in range(5):
        a("s_add_u32 m0, s%d, %d", sCh, 4 * 5120 + 1024 * i)
        a("s_add_u32 s%d, s%d, %d", sT, sCur, 32 * i)
        a("buffer_load_dwordx4 v%d, %s, s%d offen lds", vGr, sr(WO, 4), sT)
    a.label("L_wo2")
    a("s_waitcnt vmcnt(0)")
    for i in range(5):
        a("s_add_u32 m0, s%d, %d", sCh, 1024 * i)
        a("s_add_u32 s%d, s%d, %d", sT, sCur, 32 * i)
        a("buffer_load_dwordx4 v%d, %s, s%d offen lds", vG, sr(WO, 4), sT)
    a("s_add_u32 s%d, s%d, %d", sCur, sCur, 40 * 1280)
    a("s_add_u32 s%d, s%d, 5120", sCh, sCh)
    a("s_add_u32 s%d, s%d, 1", sIt, sIt)
    a("s_cmp_lt_u32 s%d, 4", sIt)
    a("s_cbranch_scc1 L_wo2")
    a("s_waitcnt vmcnt(0)")
    a("ds_write_b32 v226, v228 offset:4")
    a.label("L_woskip")
    a("v_and_b32 v%d, 1, v%d", vT1, vLane)
    a("s_lshl_b32 s%d, s%d, 6", sT, sKH)
    a("v_lshl_add_u32 v%d, v%d, 5, s%d", vT3, vT1, sT)
    a("s_mov_b32 s%d, 0", sTmo)
    a.label("L_wol")
    a("ds_read_b32 v229, v%d offset:4", vT3)
    a("s_add_u32 s%d, s%d, 1", sTmo, sTmo)
    a("s_waitcnt lgkmcnt(0)")
    a("v_cmp_le_u32 vcc, 1, v229")
    a("s_cmp_gt_u32 s%d, 0x20000", sTmo)
    a("s_cbranch_scc1 L_wol_ok")
    a("s_cmp_eq_u64 vcc, -1")
    a("s_cbranch_scc1 L_wol_ok")
    a("s_sleep 1")
    a("s_branch L_wol")
    a.label("L_wol_ok")
    st(11)
    def wreads(s):
        fb = s % 2
        for j in range(5):
            for q in range(2):
                a("ds_read_b64_tr_b16 %s, v%d offset:%d", vr(WF + 20 * fb + 4 * j + 2 * q, 2), vWa2, s * 5120 + j * 1024 + q * 256)
    wreads(0)
    a("s_waitcnt vmcnt(0)")
    poll("L_poll2", sF1, "0xffff", 0x8000, env("SLP2", 2))
    st(12)
    for s in range(10):
        hp0 = 4 * (s // 5)
        if s % 5 < 4:
            a("s_add_u32 s%d, s%d, %d", sNxt, sO, (hp0 + s % 5) * 2 * OB)
            for j in range(2): a("buffer_load_dwordx4 %s, v%d, %s, s%d offen offset:%d sc1", vr(OF + 8 * s + 4 * j, 4), vOa, srd, sNxt, 1024 * j)
        else:
            a("s_add_u32 s%d, s%d, %d", sNxt, sO, hp0 * 2 * OB)
            for e in range(2): a("buffer_load_dwordx4 %s, v%d, %s, s%d offen offset:%d sc1", vr(OF + 8 * s + 4 * e, 4), vOb, srd, sNxt, OB * e)
    a("s_cmp_eq_u32 s%d, 0", sQH)
    a("s_cbranch_scc0 L_bloop_ok")
    a("s_setprio 0")
    lds_wait("L_bloop", 32 + 3, "2", 4)
    st(13)
    for s in range(10):
        if s < 9:
            wreads(s + 1)
            a("s_waitcnt vmcnt(%d) lgkmcnt(10)", 2 * (9 - s))
        else:
            a("s_waitcnt vmcnt(0) lgkmcnt(0)")
        if s % 5 == 4:
            a("v_swap_b32 v%d, v%d", OF + 8 * s + 2, OF + 8 * s + 4)
            a("v_swap_b32 v%d, v%d", OF + 8 * s + 3, OF + 8 * s + 5)
            a("s_nop 1")
        for tt in (1, 0):
            for j in range(5):
                d = ACC2 + 4 * (5 * tt + j)
                a("v_mfma_f32_16x16x32_bf16 %s, %s, %s, %s", vr(d, 4), vr(WF + 20 * (s % 2) + 4 * j, 4), vr(OF + 8 * s + 4 * tt, 4), vr(d, 4) if s else "0")
    st(14, False)
    a("s_mov_b32 s%d, 0", sTmo)
    a("s_cmp_eq_u32 s%d, 0", sKH)
    a("s_cbranch_scc0 L_x1")
    OSC = os.environ.get("OSC", "")
    for kq in range(2):
        keep, send = ACC2 + 20 * kq, ACC2 + 20 * (1 - kq)
        if kq:
            a.label("L_x1")
            a("s_nop 5")
        for q in range(5): a("ds_write_b128 v230, %s offset:%d", vr(send + 4 * q, 4), q * 1024)
        a("ds_write_b32 v227, v228 offset:8")
        if DIAG: a("s_waitcnt lgkmcnt(0)")
        a.label("L_xch%d" % kq)
        a("ds_read_b32 v229, v226 offset:8")
        for q in range(5): a("ds_read_b128 %s, v231 offset:%d", vr(WF + 4 * q, 4), q * 1024)
        a("s_add_u32 s%d, s%d, 1", sTmo, sTmo)
        a("s_waitcnt lgkmcnt(5)")
        a("v_readfirstlane_b32 s%d, v229", sT)
        a("s_cmp_gt_u32 s%d, 0x20000", sTmo)
        a("s_cbranch_scc1 L_xok%d", kq)
        a("s_cmp_eq_u32 s%d, 0", sT)
        a("s_cbranch_scc0 L_xok%d", kq)
        a("s_waitcnt lgkmcnt(0)")
        a("s_branch L_xch%d", kq)
        a.label("L_xok%d" % kq)
        for q in range(5):
            a("s_waitcnt lgkmcnt(%d)", 4 - q)
            for h in range(2): a("v_pk_add_f32 %s, %s, %s", vr(keep + 4 * q + 2 * h, 2), vr(keep + 4 * q + 2 * h, 2), vr(WF + 4 * q + 2 * h, 2))
            for h in range(2): a("v_cvt_pk_bf16_f32 v%d, v%d, v%d", WF + 20 + 2 * q + h, keep + 4 * q + 2 * h, keep + 4 * q + 2 * h + 1)
            a("buffer_store_dwordx2 %s, v%d, %s, s%d offen offset:%d %s", vr(WF + 20 + 2 * q, 2), vSt, sr(OUT, 4), sPub, 32 * q, OSC)
        if not kq: a("s_branch L_xdone") if DIAG else a("s_endpgm")
    a.label("L_xdone")
    st(15)
    a.label("L_exit")
    st.flush(sW)
    a.label("L_end")
    a("s_endpgm")
    a.label("L_late")
    a("s_cmp_lt_u32 s%d, 3", sCh)
    a("s_cbranch_scc1 L_attn_go")
    poll("L_poll3", sF1, "-1", 0x4000, 2)
    a("s_mov_b32 s%d, 0", sMsk)
    a("s_branch L_attn_go")
    a.label("L_slow")
    C = S + 32
    MX = O + 32
    a("s_waitcnt vmcnt(0)")
    a("s_mul_i32 s%d, s%d, %d", sT, sKH, 2 * BLK)
    a("s_sub_u32 s%d, s%d, s%d", sKV, sKV, sT)
    a("s_mov_b32 s%d, s%d", sCur, sKV)
    a("s_add_u32 s%d, s%d, %d", sCh, sKV, KV_PAIR)
    a("v_mov_b32 v%d, 0xff800000", MX)
    a("v_mov_b32 v%d, 0xff800000", MX + 1)
    P = (sCur, sCur)
    a.label("L_slow1")
    kvop("k", 0, P); kvop("k", 1, P); kvop("r", 0, P)
    a("s_waitcnt vmcnt(0)")
    for b in range(2):
        qk1(0, b); qk2(0, b); qk1(1, b); qk2(1, b)
        a("s_nop 15")
        for j in range(2):
            for i in range(8): a("v_max3_f32 v%d, v%d, v%d, v%d", MX + j, MX + j, S + 16 * j + 2 * i, S + 16 * j + 2 * i + 1)
    a("s_add_u32 s%d, s%d, %d", sCur, sCur, BLK)
    a("s_cmp_lt_u32 s%d, s%d", sCur, sCh)
    a("s_cbranch_scc1 L_slow1")
    for j in range(2):
        a("v_mov_b32 v%d, v%d", vT1, MX + j)
        a("s_nop 1")
        a("v_permlane32_swap_b32 v%d, v%d", vT1, MX + j)
        a("s_nop 1")
        a("v_max_f32 v%d, v%d, v%d", vT1, vT1, MX + j)
        for i in range(16): a("v_sub_f32 v%d, 0, v%d", C + 16 * j + i, vT1)
    for i in range(32): a("v_mov_b32 v%d, 0", O + i)
    a("s_mov_b32 s%d, s%d", sCur, sKV)
    a.label("L_slow2")
    kvop("k", 0, P); kvop("k", 1, P); kvop("r", 0, P)
    for b in range(2):
        kvop("v", b, P, 0); kvop("v", b, P, 1)
    a("s_waitcnt vmcnt(0)")
    for b in range(2):
        for j in range(2):
            a("v_mfma_f32_32x32x16_bf16 %s, %s, %s, %s", vr(S + 16 * j, 16), vr(Km + 4 * b, 4), vr(Qm + 4 * j, 4), vr(C + 16 * j, 16))
            qk2(j, b)
        a("s_nop 15")
        for i in range(32): ex(S + i)
        a("s_nop 1")
        for j in range(2):
            pv(j, b, 0); pv(j, b, 1)
    a("s_add_u32 s%d, s%d, %d", sCur, sCur, BLK)
    a("s_cmp_lt_u32 s%d, s%d", sCur, sCh)
    a("s_cbranch_scc1 L_slow2")
    a("s_nop 15")
    a("s_branch L_fin")
    return name, NFV, 163840

def gen_spin(a):
    name = "spin_kernel"
    kernel_head(a, name)
    wa, ia, wb, ib, mult, off = [int(x) for x in SPIN.split(",")]
    a("s_cmp_ge_u32 s2, 1")
    a("s_cbranch_scc1 L_spin_end")
    a("s_load_dwordx2 s[4:5], s[0:1], 64")
    a("s_waitcnt lgkmcnt(0)")
    a("s_add_u32 s4, s4, %d", DIAG_OFF)
    a("s_addc_u32 s5, s5, 0")
    if wa >= 0:
        a("v_mov_b32 v1, %d", 4 * ia + 128 * (16 * 8 + wa))
        a("v_mov_b32 v2, %d", 4 * ib + 128 * (16 * 8 + wb))
        a("global_load_dword v3, v1, s[4:5]")
        a("global_load_dword v4, v2, s[4:5]")
        a("s_waitcnt vmcnt(0)")
        a("v_sub_u32 v3, v4, v3")
        a("s_nop 1")
        a("v_readfirstlane_b32 s8, v3")
    else:
        a("v_lshlrev_b32 v1, 11, v0")
        a("v_mov_b32 v2, 0")
        a("global_load_dword v7, v2, s[4:5]")
        for k in range(4):
            a("global_load_dword v%d, v1, s[4:5] offset:%d", 8 + k, 4 * ia + (0 if wa == -1 else 128 * wb))
            a("global_load_dword v%d, v1, s[4:5] offset:%d", 12 + k, 4 * ib + 128 * wb)
            a("v_add_u32 v1, %d, v1", 64 * 2048)
        a("s_waitcnt vmcnt(0)")
        for k in range(8): a("v_sub_u32 v%d, v%d, v7", 8 + k, 8 + k)
        op = "min" if wa == -1 else "max"
        for k in range(1, 4):
            a("v_%s_i32 v8, v8, v%d", op, 8 + k)
            a("v_max_i32 v12, v12, v%d", 12 + k)
        a("s_nop 1")
        a("v_readlane_b32 s20, v8, 0")
        a("v_readlane_b32 s21, v12, 0")
        for l in range(1, 64):
            a("v_readlane_b32 s22, v8, %d", l)
            a("v_readlane_b32 s23, v12, %d", l)
            a("s_%s_i32 s20, s20, s22", op)
            a("s_max_i32 s21, s21, s23")
        a("s_sub_u32 s8, s21, s20")
    a("s_memrealtime s[10:11]")
    a("s_nop 3")
    a("s_max_u32 s8, s8, %d", off)
    a("s_sub_u32 s8, s8, %d", off)
    a("s_min_u32 s8, s8, 20000")
    a("s_mul_i32 s8, s8, %d", mult)
    a("s_waitcnt lgkmcnt(0)")
    a.label("L_spin")
    a("s_memrealtime s[12:13]")
    a("s_waitcnt lgkmcnt(0)")
    a("s_sub_u32 s14, s12, s10")
    a("s_cmp_lt_u32 s14, s8")
    a("s_cbranch_scc1 L_spin")
    a.label("L_spin_end")
    a("s_endpgm")
    return name, 16, 0

def main(out):
    a = A()
    ks = []
    for g, blk in ((gen_fused, 512),) + (((gen_spin, 64),) if SPIN else ()):
        n, nfv, lds = g(a)
        ks.append((n, nfv, lds, blk))
    hdr = "; Two independent MHA blocks (S=2048, D=640, H=32, Dh=20), concatenated on the last axis; one fused kernel.\n"
    hdr += "; kernarg: 0 A_x, 8 A_wqkv, 16 A_wo, 24 B_x, 32 B_wqkv, 40 B_wo, 48 out, 56 debug, 64 ws\n"
    if len(ks) == 1 and not env("LIST", 0):
        hdr += "; @launch grid=(256,1,1) block=(%d,1,1) lds=%d\n" % (ks[0][3], ks[0][2])
    else:
        for n, nfv, lds, blk in ks:
            hdr += "; @launch kernel=%s grid=(256,1,1) block=(%d,1,1) lds=%d\n" % (n, blk, lds)
    s = hdr + '.amdgcn_target "amdgcn-amd-amdhsa--gfx950"\n.text\n' + a.text()
    s += '.section .rodata,"a"\n'
    for n, nfv, lds, blk in ks: s += kd(n, nfv)
    open(out, "w").write(s)

if __name__ == "__main__":
    main(sys.argv[1] if len(sys.argv) > 1 else "cdna_kernels/%s.s" % NAME)
```

```python
import math, struct, sys, os

NAME = "concat_heads__mha_block__softmax_full_mha__prompt"
BLK = 12288
KV_PAIR = 32 * BLK
KV_OFF = 0
OB = 2560
O_OFF = KV_OFF + 32 * KV_PAIR
O_BYTES = 32 * 32 * OB
F1_OFF = O_OFF + 2 * O_BYTES
F2_OFF = F1_OFF + 128 * 256
WS_USED = F2_OFF + 2048 * 128
CSCALE = math.log2(math.e) / math.sqrt(20.0)
OOB = 0x40000000
DIAG = int(os.environ.get("DIAG", "0"))
DIAG_OFF = 64 << 20
def env(n, d): return int(os.environ.get(n, str(d)))
NT = env("NT", 0)
SKEW = env("SKEW", 0)
HELP = env("HELP", 1)
SPIN = os.environ.get("SPIN", "")

def f32bits(x): return struct.unpack("<I", struct.pack("<f", x))[0]

class A:
    def __init__(self): self.l = []
    def __call__(self, s, *a): self.l.append("    " + (s % a if a else s))
    def label(self, s): self.l.append(s + ":")
    def raw(self, s): self.l.append(s)
    def c(self, s): self.l.append("    ; " + s)
    def text(self): return "\n".join(self.l) + "\n"

def vr(b, n): return "v[%d:%d]" % (b, b + n - 1) if n > 1 else "v%d" % b
def sr(b, n): return "s[%d:%d]" % (b, b + n - 1) if n > 1 else "s%d" % b

def kernel_head(a, name):
    a.raw(".globl %s" % name); a.raw(".p2align 8"); a.raw(".type %s,@function" % name); a.label(name)

def kd(name, nfv, nsg=100):
    acc = (nfv + 3) // 4 * 4
    return """.p2align 6
.amdhsa_kernel %s
  .amdhsa_next_free_vgpr %d
  .amdhsa_next_free_sgpr %d
  .amdhsa_accum_offset %d
  .amdhsa_group_segment_fixed_size 0
  .amdhsa_kernarg_size 72
  .amdhsa_user_sgpr_count 2
  .amdhsa_user_sgpr_kernarg_segment_ptr 1
  .amdhsa_system_sgpr_workgroup_id_x 1
.end_amdhsa_kernel
""" % (name, nfv, nsg, acc)

class Stamps:
    def __init__(self, a):
        self.a = a
        if DIAG:
            for i in range(62, 100): a("s_mov_b32 s%d, 0", i)
            a("s_memrealtime s[60:61]")
    def __call__(self, i, wait=True):
        if not DIAG: return
        if DIAG == 1: self.a("s_memrealtime s[%d:%d]", 64 + 2 * i, 65 + 2 * i)
        else: self.a("s_memtime s[%d:%d]", 64 + 2 * i, 65 + 2 * i)
        if wait: self.a("s_waitcnt lgkmcnt(0)")
    def flush(self, swave):
        if not DIAG: return
        a = self.a
        a("s_mov_b64 exec, -1")
        a("s_waitcnt vmcnt(0)")
        self(17)
        a("s_memrealtime s[62:63]")
        a("s_load_dwordx2 s[56:57], s[0:1], 64")
        a("s_lshl_b32 s58, s2, 4")
        a("s_add_u32 s58, s58, s%d", swave)
        a("s_lshl_b32 s58, s58, 7")
        a("s_add_u32 s58, s58, %d", DIAG_OFF)
        a("v_mov_b32 v1, s58")
        a("s_waitcnt lgkmcnt(0)")
        for i in range(20):
            a("v_mov_b32 v2, s%d", 60 + 2 * i)
            a("global_store_dword v1, v2, s[56:57] offset:%d", 4 * i)
        a("s_waitcnt vmcnt(0)")

def gen_fused(a):
    name = NAME + "_kernel"
    kernel_head(a, name)
    WS, XS, WSRD = 8, 12, 16
    sNon = 20
    sB, sTB, sHP, sHH, sW, sE, sKH, sQH = 22, 23, 24, 25, 26, 27, 28, 29
    sT, sT2, sT3 = 30, 31, 32
    sXoff, sWoff, sM0x, sM0w, sIt, sDX, sDW, sSlot, sSx, sSw = 33, 34, 35, 36, 37, 38, 39, 40, 41, 42
    sNxt, sNxt1, sCh, sR, sTmo, sCur = 33, 34, 35, 36, 38, 39
    sDbg = 44
    sC, sC2 = 46, 48
    sKV, sPub, sF1, sO, sF2, sMsk = 50, 51, 52, 53, 54, 55
    srd = sr(WS, 4)
    vLane, vM, vH, vT1, vT2, vT3, vT4 = 1, 2, 3, 4, 5, 6, 7
    vK, vKr, vV, vIdx, vFl, vL16, vOr, vS1 = 8, 9, 10, 11, 12, 13, 14, 15
    vNon = 224
    vXg, vWg, vXa, vWa = 226, 230, 232, 234
    vG0, vG1, vL0, vL1, vSc = 238, 239, 240, 241, 242
    vRk, vRr, vRv, vRq0, vRq1, vRqr0, vRqr1 = 245, 246, 247, 248, 249, 250, 251
    vF1 = 252
    F, ACC = 16, 96
    Qm, Qr, Km, Kr, V, S, O = 16, 32, 40, 56, 64, 96, 160
    NFV = 256
    WBASE = 98304
    LFLAG, WOB = 0, 1024
    CMB = WOB + 102400
    IMG = 1024

    a("s_cmp_ge_u32 s2, 256")
    a("s_cbranch_scc1 L_end")
    st = Stamps(a)
    a("s_bfe_u32 s%d, s2, 0x10002", sB)
    a("s_mul_i32 s%d, s%d, 24", sT, sB)
    a("s_load_dwordx4 s[4:7], s[0:1], s%d", sT)
    a("s_load_dwordx2 s[%d:%d], s[0:1], 64", WS, WS + 1)
    a("s_load_dwordx2 s[%d:%d], s[0:1], 56", sDbg, sDbg + 1)
    a("s_memrealtime s[%d:%d]", sNon, sNon + 1)
    a("v_lshrrev_b32 v%d, 6, v0", vT1)
    a("v_and_b32 v%d, 63, v0", vLane)
    a("v_readfirstlane_b32 s%d, v%d", sW, vT1)
    a("s_bfe_u32 s%d, s2, 0x10001", sTB)
    a("s_lshl_b32 s%d, s%d, 2", sTB, sTB)
    a("s_bfe_u32 s%d, s2, 0x20003", sT)
    a("s_or_b32 s%d, s%d, s%d", sTB, sTB, sT)
    a("s_and_b32 s%d, s2, 1", sHH)
    a("s_lshl_b32 s%d, s%d, 3", sHP, sHH)
    a("s_lshr_b32 s%d, s2, 5", sT)
    a("s_or_b32 s%d, s%d, s%d", sHP, sHP, sT)
    a("s_lshr_b32 s%d, s2, 7", sT)
    a("s_xor_b32 s%d, s%d, s%d", sHP, sHP, sT)
    a("s_and_b32 s%d, s%d, 1", sE, sW)
    a("v_lshrrev_b32 v%d, 3, v0", vT1)
    a("s_mul_i32 s%d, s%d, 24", sT, sW)
    a("v_add_u32 v%d, s%d, v%d", vT1, sT, vT1)
    a("v_mul_u32_u24 v%d, 1280, v%d", vT1, vT1)
    a("v_lshrrev_b32 v%d, 4, v%d", vT4, vLane)
    a("v_and_b32 v%d, 7, v%d", vT3, vLane)
    a("v_xor_b32 v%d, v%d, v%d", vT2, vT4, vT3)
    a("v_xor_b32 v%d, 4, v%d", vT3, vT2)
    a("v_lshl_add_u32 v%d, v%d, 4, v%d", vXg + 0, vT2, vT1)
    a("v_lshl_add_u32 v%d, v%d, 4, v%d", vXg + 1, vT3, vT1)
    a("v_add_u32 v%d, %d, v%d", vXg + 1, 8 * 1280 - 1024, vXg + 1)
    a("v_add_u32 v%d, %d, v%d", vXg + 2, 16 * 1280 - 2048, vXg + 0)
    a("v_add_u32 v%d, %d, v%d", vXg + 3, 16 * 1280 - 2048, vXg + 1)
    TAB = [0, 3, 1, 4, 5, 8, 6, 9, 2, 7, 10, 11, 13, 14, 12, 15]
    tab = sum(v << (4 * i) for i, v in enumerate(TAB))
    a("s_lshl_b32 s%d, s%d, 3", sT, sE)
    a("v_lshl_add_u32 v%d, v%d, 1, s%d", vT2, vT4, sT)
    a("v_and_b32 v%d, 15, v%d", vM, vLane)
    a("v_xor_b32 v%d, v%d, v%d", vT2, vT2, vM)
    a("v_lshlrev_b32 v%d, 2, v%d", vT2, vT2)
    a("s_mov_b32 s%d, 0x%x", sC, tab & 0xffffffff)
    a("s_mov_b32 s%d, 0x%x", sC + 1, tab >> 32)
    a("v_lshrrev_b64 v[16:17], v%d, s[%d:%d]", vT2, sC, sC + 1)
    a("v_and_b32 v%d, 15, v16", vT2)
    a("s_lshl_b32 s%d, s%d, 3", sT, sW)
    a("v_add_u32 v%d, s%d, v%d", vT1, sT, vT4)
    a("v_mul_u32_u24 v%d, 3840, v%d", vT1, vT1)
    a("v_mul_u32_u24 v%d, 13, v%d", vT3, vT2)
    a("v_lshrrev_b32 v%d, 6, v%d", vT3, vT3)
    a("v_mul_u32_u24 v%d, %d, v%d", vT3, 1280 - 80, vT3)
    a("v_cmp_eq_u32 vcc, 15, v%d", vT2)
    a("v_lshl_add_u32 v%d, v%d, 4, v%d", vT2, vT2, vT3)
    a("v_mov_b32 v%d, 0x%x", vS1, OOB)
    if HELP:
        a("s_and_b32 s%d, s%d, 7", sT, sHP)
        a("s_mov_b32 s%d, 0x%x", sT2, OOB)
        for hp, sec in ((0, 0), (2, 1), (5, 2)):
            a("s_cmp_eq_u32 s%d, %d", sT, hp)
            a("s_cselect_b32 s%d, %d, s%d", sT2, sec * 1280 + 256 - 80 * hp + HELP * 64 * 3840 - 64 * 3840 * 0, sT2)
        a("s_and_b32 s%d, s%d, 3", sT, sTB)
        a("v_cmp_eq_u32 s[%d:%d], s%d, v%d", sC, sC + 1, sT, vT4)
        a("v_mov_b32 v%d, s%d", vT3, sT2)
        a("s_nop 0")
        a("v_cndmask_b32 v%d, v%d, v%d, s[%d:%d]", vT3, vS1, vT3, sC, sC + 1)
        a("v_cndmask_b32 v%d, v%d, v%d, vcc", vT2, vT2, vT3)
    else:
        a("v_cndmask_b32 v%d, v%d, v%d, vcc", vT2, vT2, vS1)
    a("v_add_u32 v%d, v%d, v%d", vWg + 0, vT1, vT2)
    a("v_add_u32 v%d, %d, v%d", vWg + 1, 4 * 3840 - 1024, vWg + 0)
    a("s_lshr_b32 s%d, s%d, 1", sT, sW)
    a("s_mul_i32 s%d, s%d, 24576", sM0x, sT)
    a("s_lshl_b32 s%d, s%d, 12", sT, sE)
    a("s_add_u32 s%d, s%d, s%d", sM0x, sM0x, sT)
    a("s_lshl_b32 s%d, s%d, 11", sM0w, sW)
    a("s_add_u32 s%d, s%d, %d", sM0w, sM0w, WBASE)
    a("s_mov_b32 s%d, %d", XS + 2, 256 * 1280)
    a("s_mov_b32 s%d, 0x20000", XS + 3)
    a("s_mov_b32 s%d, 0x20000", WSRD + 3)
    if SKEW:
        a("s_xor_b32 s%d, s%d, s%d", sT, sTB, sHP)
        a("s_and_b32 s%d, s%d, 1", sT, sT)
        a("s_mul_i32 s%d, s%d, %d", sXoff, sT, 5 * 128)
        a("s_mul_i32 s%d, s%d, %d", sWoff, sT, 5 * 64 * 3840)
    else:
        a("s_mov_b32 s%d, 0", sXoff)
        a("s_mov_b32 s%d, 0", sWoff)
    a("s_mul_i32 s%d, s%d, %d", sT, sTB, 256 * 1280)
    a("s_mul_i32 s%d, s%d, 80", sT2, sHP)
    a("s_sub_u32 s%d, %d, s%d", WSRD + 2, 640 * 3840, sT2)
    a("s_waitcnt lgkmcnt(0)")
    a("s_add_u32 s%d, s4, s%d", XS, sT)
    a("s_addc_u32 s%d, s5, 0", XS + 1)
    a("s_add_u32 s%d, s6, s%d", WSRD, sT2)
    a("s_addc_u32 s%d, s7, 0", WSRD + 1)

    ntx = " nt" if NT & 1 else ""
    ntw = " nt" if NT & 2 else ""
    def dma_ops(slot_x, slot_w):
        ops = []
        def x(i):
            if i == 0:
                a("s_add_u32 m0, s%d, %s", sM0x, slot_x); a("s_nop 0")
            a("buffer_load_dwordx4 v%d, %s, s%d offen offset:%d%s lds", vXg + i, sr(XS, 4), sXoff, 1024 * i, ntx)
        def w(i):
            if i == 0:
                a("s_add_u32 m0, s%d, %s", sM0w, slot_w)
                a("s_add_u32 s%d, s%d, %d", sXoff, sXoff, 0 if env("NOADV", 0) & 1 else 128)
            a("buffer_load_dwordx4 v%d, %s, s%d offen offset:%d%s lds", vWg + i, sr(WSRD, 4), sWoff, 1024 * i, ntw)
            if i == 1:
                a("s_add_u32 s%d, s%d, %d", sWoff, sWoff, 0 if env("NOADV", 0) & 2 else 64 * 3840)
                if SKEW:
                    a("s_cmp_eq_u32 s%d, 1280", sXoff)
                    a("s_cselect_b32 s%d, 0, s%d", sXoff, sXoff)
                    a("s_cselect_b32 s%d, 0, s%d", sWoff, sWoff)
        for i in range(4): ops.append(lambda i=i: x(i))
        for i in range(2): ops.append(lambda i=i: w(i))
        return ops
    for op in dma_ops("0", "0"): op()
    a("s_barrier")
    a("s_or_b32 s%d, s2, s%d", sT3, sW)
    a("s_cbranch_scc1 L_nononce")
    a("s_or_b32 s%d, s%d, 0x80000000", sNon + 1, sNon + 1)
    a("v_mov_b32 v%d, s%d", vNon, sNon)
    a("v_mov_b32 v%d, s%d", vNon + 1, sNon + 1)
    a("v_mov_b32 v%d, 0", vT1)
    a("global_store_dwordx2 v%d, %s, s[%d:%d] sc0 sc1", vT1, vr(vNon, 2), sDbg, sDbg + 1)
    a.label("L_nononce")
    d1 = dma_ops("8192", "16384")
    d1.pop(0)(); d1.pop(0)()
    a("s_bfe_u32 s%d, s%d, 0x10001", sKH, sW)
    a("s_lshr_b32 s%d, s%d, 2", sQH, sW)
    a("s_mov_b32 s%d, %d", WS + 2, WS_USED)
    a("s_mov_b32 s%d, 0x20000", WS + 3)
    a("s_and_b32 s%d, s%d, 3", sT3, sW)
    a("v_lshrrev_b32 v%d, 1, v%d", vT1, vM)
    a("v_xor_b32 v%d, v%d, v%d", vT1, vT1, vT4)
    a("s_mul_i32 s%d, s%d, 24576", sT, sT3)
    a("v_lshl_add_u32 v%d, v%d, 7, s%d", vT2, vM, sT)
    a("v_lshl_add_u32 v%d, v%d, 4, v%d", vXa, vT1, vT2)
    a("v_xor_b32 v%d, 64, v%d", vXa + 1, vXa)
    a("v_bfe_u32 v%d, v%d, 2, 2", vT1, vLane)
    a("v_lshl_add_u32 v%d, v%d, 3, v%d", vT2, vT4, vT1)
    a("v_lshlrev_b32 v%d, 8, v%d", vT2, vT2)
    a("v_and_b32 v%d, 3, v%d", vT3, vLane)
    a("v_lshl_add_u32 v%d, v%d, 3, v%d", vT2, vT3, vT2)
    a("v_add_u32 v%d, %d, v%d", vT2, WBASE, vT2)
    a("v_bfe_u32 v%d, v%d, 2, 3", vT1, vLane)
    a("s_lshl_b32 s%d, s%d, 2", sT, sQH)
    a("v_xor_b32 v%d, s%d, v%d", vT1, sT, vT1)
    a("v_lshl_add_u32 v%d, v%d, 5, v%d", vWa, vT1, vT2)
    for xt in range(1, 4): a("v_xor_b32 v%d, %d, v%d", vWa + xt, 32 * xt, vWa)
    d1.pop(0)()
    a("v_lshlrev_b32 v%d, 4, v%d", vL16, vLane)
    a("s_lshl_b32 s%d, s%d, 14", sT, sT3)
    a("s_add_u32 s%d, s%d, %d", sT, sT, IMG)
    a("v_add_u32 v%d, s%d, v%d", vL0, sT, vL16)
    a("v_cmp_lt_u32 vcc, 1, v%d", vT4)
    a("v_add_u32 v%d, 4096, v%d", vT1, vL16)
    a("v_mov_b32 v%d, 0x%x", vT2, f32bits(CSCALE))
    a("v_cndmask_b32 v%d, v%d, v%d, vcc", vG0, vS1, vT1)
    a("v_cndmask_b32 v%d, v%d, 1.0, vcc", vSc, vT2)
    a("v_and_b32 v%d, 4, v%d", vT1, vM)
    a("v_and_b32 v%d, 8, v%d", vT2, vM)
    a("v_lshlrev_b32 v%d, 5, v%d", vT1, vT1)
    a("v_lshl_add_u32 v%d, v%d, 3, v%d", vT1, vT2, vT1)
    a("v_and_b32 v%d, 0x330, v%d", vT2, vL16)
    a("v_add_u32 v%d, v%d, v%d", vT1, vT1, vT2)
    a("v_add_u32 v%d, 6144, v%d", vG1, vT1)
    a("v_add_u32 v%d, s%d, v%d", vL1, sT, vG1)
    d1.pop(0)()
    for i in range(64): a("v_mov_b32 v%d, 0", ACC + i)
    a("v_and_b32 v%d, 11, v%d", vT1, vM)
    a("v_cmp_eq_u32 vcc, 8, v%d", vT1)
    a("v_mov_b32 v%d, 0x3f803f80", vT1)
    a("v_and_b32 v%d, 31, v0", vM)
    a("v_cndmask_b32 v243, 0, v%d, vcc", vT1)
    d1.pop(0)()
    a("v_bfe_u32 v%d, v0, 5, 1", vH)
    for i in range(64): a("v_mov_b32 v%d, 0", O + i)
    d1.pop(0)()
    CODEPF = env("CODEPF", 1)
    if CODEPF:
        a.label("L_pfbase")
        a("s_getpc_b64 s[%d:%d]", sC, sC + 1)
        a("v_and_b32 v%d, 15, v%d", vT1, vM)
        a("v_lshlrev_b32 v%d, 7, v%d", vT1, vT1)
        a("s_lshl_b32 s%d, s%d, 11", sT, sW)
        a("v_add_u32 v%d, s%d, v%d", vT1, sT, vT1)
        a("v_min_u32 v%d, %s, v%d", vT1, "L_code_end-L_pfbase-8", vT1)
        a("global_load_dword v255, v%d, s[%d:%d]", vT1, sC, sC + 1)
    a("v_mov_b32 v%d, 0xdddddddd", vIdx)
    a("v_and_b32 v%d, 4, v%d", vT1, vM)
    a("v_lshlrev_b32 v%d, 8, v%d", vT1, vT1)
    a("v_and_b32 v%d, 24, v%d", vT2, vM)
    a("v_lshl_add_u32 v%d, v%d, 3, v%d", vT1, vT2, vT1)
    a("v_and_b32 v%d, 3, v%d", vT2, vM)
    a("v_lshl_add_u32 v%d, v%d, 4, v%d", vT1, vT2, vT1)
    a("s_lshl_b32 s%d, s%d, 9", sT, sE)
    a("v_lshl_add_u32 v%d, v%d, 8, s%d", vT2, vH, sT)
    a("v_add_u32 v%d, v%d, v%d", vK, vT1, vT2)
    a("s_lshl_b32 s%d, s%d, 8", sT, sE)
    a("s_add_u32 s%d, s%d, %d", sT, sT, 4096 + 512)
    a("v_cmp_eq_u32 vcc, 0, v%d", vH)
    a("v_add_u32 v%d, s%d, v%d", vRr, sT, vT1)
    a("v_lshlrev_b32 v%d, 3, v%d", vT3, vLane)
    a("v_cndmask_b32 v%d, v%d, v%d, vcc", vKr, vS1, vRr)
    a("v_cndmask_b32 v%d, v%d, v%d, vcc", vFl, vS1, vT3)
    a("v_add_u32 v%d, 2048, v%d", vT3, vL16)
    a("v_cndmask_b32 v%d, v%d, v%d, vcc", vOr, vS1, vT3)
    a("v_min_u32 v%d, 20, v%d", vT1, vM)
    a("v_lshlrev_b32 v%d, 4, v%d", vT1, vT1)
    a("v_lshl_add_u32 v%d, v%d, 8, v%d", vT1, vH, vT1)
    a("s_lshl_b32 s%d, s%d, 10", sT, sE)
    a("s_add_u32 s%d, s%d, 6144", sT, sT)
    a("s_lshl_b32 s%d, s%d, 7", sT2, sE)
    a("s_add_u32 s%d, s%d, %d", sT2, sT2, 6144 + 2048 - 256)
    a("v_cmp_gt_u32 vcc, 16, v%d", vM)
    a("v_add_u32 v%d, s%d, v%d", vT2, sT, vT1)
    a("v_add_u32 v%d, s%d, v%d", vT3, sT2, vT1)
    a("v_cndmask_b32 v%d, v%d, v%d, vcc", vRv, vT3, vT2)
    a("v_and_b32 v%d, 0x1b, v%d", vT2, vM)
    a("v_cmp_eq_u32 vcc, 24, v%d", vT2)
    a("v_cmp_gt_u32 s[%d:%d], 20, v%d", sC, sC + 1, vM)
    a("s_lshl_b32 s%d, s%d, 1", sT2, sQH)
    a("s_add_u32 s%d, s%d, s%d", sT2, sT2, sKH)
    a("s_or_b64 vcc, vcc, s[%d:%d]", sC, sC + 1)
    a("v_cndmask_b32 v%d, v%d, v%d, vcc", vV, vS1, vRv)
    a("s_lshl_b32 s%d, s%d, 14", sC, sT2)
    a("s_add_u32 s%d, s%d, %d", sC, sC, IMG)
    a("s_xor_b32 s%d, s%d, %d", sC + 1, sC, 1 << 14)
    a("v_add_u32 v%d, s%d, v%d", vRq0, sC, vK)
    a("v_add_u32 v%d, s%d, v%d", vRq1, sC + 1, vK)
    a("s_sub_u32 s%d, s%d, 512", sC, sC)
    a("s_sub_u32 s%d, s%d, 512", sC + 1, sC + 1)
    a("v_add_u32 v%d, s%d, v%d", vRqr0, sC, vRr)
    a("v_add_u32 v%d, s%d, v%d", vRqr1, sC + 1, vRr)
    a("s_lshl_b32 s%d, s%d, 15", sT, sKH)
    a("s_add_u32 s%d, s%d, %d", sT, sT, IMG)
    a("v_add_u32 v%d, s%d, v%d", vRk, sT, vK)
    a("v_add_u32 v%d, s%d, v%d", vRr, sT, vRr)
    a("v_add_u32 v%d, s%d, v%d", vRv, sT, vRv)
    a("s_lshl_b32 s%d, s%d, 2", sT, sTB)
    a("s_add_u32 s%d, s%d, s%d", sT2, sT2, sT)
    a("s_lshl_b32 s%d, s%d, 5", sC, sB)
    a("s_add_u32 s%d, s%d, s%d", sT2, sT2, sC)
    a("s_lshl_b32 s%d, s%d, 4", sO, sT2)
    a("s_add_u32 s%d, s%d, s%d", sO, sO, sHP)
    a("s_lshl_b32 s%d, s%d, 1", sO, sO)
    a("s_add_u32 s%d, s%d, s%d", sO, sO, sE)
    a("s_lshl_b32 s%d, s%d, 7", sT2, sO)
    a("s_add_u32 s%d, s%d, %d", sF2, sT2, F2_OFF)
    a("s_mul_i32 s%d, s%d, %d", sO, sO, OB)
    a("s_add_u32 s%d, s%d, %d", sO, sO, O_OFF)
    a("s_lshl_b32 s%d, s%d, 4", sC, sB)
    a("s_add_u32 s%d, s%d, s%d", sC, sC, sHP)
    a("s_mul_i32 s%d, s%d, %d", sKV, sC, KV_PAIR)
    a("s_add_u32 s%d, s%d, s%d", sT, sT, sT3)
    a("s_mul_i32 s%d, s%d, %d", sPub, sT, BLK)
    a("s_add_u32 s%d, s%d, s%d", sPub, sPub, sKV)
    a("s_mul_i32 s%d, s%d, %d", sT2, sKH, 2 * BLK)
    a("s_add_u32 s%d, s%d, s%d", sKV, sKV, sT2)
    a("s_lshl_b32 s%d, s%d, 1", sC, sC)
    a("s_add_u32 s%d, s%d, s%d", sC, sC, sKH)
    a("s_lshl_b32 s%d, s%d, 8", sC, sC)
    a("s_add_u32 s%d, s%d, %d", sF1, sC, F1_OFF)
    a("s_lshl_b32 s%d, s%d, 1", sT, sTB)
    a("s_add_u32 s%d, s%d, s%d", sT, sT, sE)
    a("s_lshl_b32 s%d, s%d, 1", sT, sT)
    a("s_add_u32 s%d, s%d, s%d", sT, sT, sQH)
    a("s_lshl_b32 s%d, s%d, 3", sT, sT)
    a("v_mov_b32 v%d, s%d", vF1, sT)
    a("s_and_b32 s%d, s%d, 4", sT, sTB)
    a("s_lshl_b32 s%d, s%d, 2", sT, sT)
    a("s_lshl_b32 s%d, 0xffff, s%d", sMsk, sT)
    a("s_mov_b32 s%d, 0", sIt)
    a("s_mov_b32 s%d, 0", sSlot)

    def read_ops(fb, ks):
        f = F + 32 * fb
        ops = []
        for t in range(4):
            ops.append(lambda t=t: a("ds_read_b128 %s, v%d offset:%d", vr(f + 4 * t, 4), vXa + ks, t * 2048))
            for q in range(2):
                ops.append(lambda t=t, q=q: a("ds_read_b64_tr_b16 %s, v%d offset:%d", vr(f + 16 + 4 * t + 2 * q, 2), vWa + t, ks * 8192 + q * 1024))
        return ops
    def reads(fb, ks):
        for op in read_ops(fb, ks): op()
    RPM = env("RPM", 1)
    def mfs(fb, isB, rd, dm, misc):
        f = F + 32 * fb
        n = 0
        for (xt, t) in sorted([(x, y) for x in range(4) for y in range(4)], key=lambda p: (max(p), p)):
            d = ACC + 16 * xt + 4 * t
            x, w = vr(f + 4 * t, 4), vr(f + 16 + 4 * xt, 4)
            if isB and xt > 0: a("v_mfma_f32_16x16x32_bf16 %s, %s, %s, %s", vr(d, 4), x, w, vr(d, 4))
            else:              a("v_mfma_f32_16x16x32_bf16 %s, %s, %s, %s", vr(d, 4), w, x, vr(d, 4))
            n += 1
            if rd:
                for _ in range(RPM):
                    if rd: rd.pop(0)()
            elif dm and n % 3 == 1: dm.pop(0)()
            elif misc:
                for _ in range(3):
                    if misc: misc.pop(0)()
        for op in rd + dm + misc: op()
    def stage(kind, isB, ops):
        if kind == 2:
            a("v_mov_b32 v%d, 0", vT1)
            a("global_load_dwordx2 %s, v%d, s[%d:%d] sc0 sc1", vr(vNon, 2), vT1, sDbg, sDbg + 1)
        misc = []
        if kind < 2:
            misc = [lambda: (a("s_cmp_eq_u32 s%d, 2", sSlot), a("s_cselect_b32 s%d, -2, 1", sDX)),
                    lambda: a("s_lshl_b32 s%d, s%d, 14", sDW, sDX),
                    lambda: a("s_lshl_b32 s%d, s%d, 13", sT, sDX)]
            misc += [lambda ks=ks: a("v_add_u32 v%d, s%d, v%d", vXa + ks, sT, vXa + ks) for ks in range(2)]
            misc += [lambda ft=ft: a("v_add_u32 v%d, s%d, v%d", vWa + ft, sDW, vWa + ft) for ft in range(4)]
        a("s_waitcnt lgkmcnt(0)")
        mfs(0, isB, read_ops(1, 1), ops, misc)
        nops, rd, misc = [], [], []
        if kind < 2:
            a("s_lshl_b32 s%d, s%d, 13", sSx, sSlot)
            a("s_lshl_b32 s%d, s%d, 14", sSw, sSlot)
            a("s_waitcnt vmcnt(%d) lgkmcnt(0)", 0 if kind == 1 else 6)
            a("s_barrier")
            rd = read_ops(0, 0)
            misc = [lambda: a("s_add_u32 s%d, s%d, s%d", sSlot, sSlot, sDX)]
            if kind == 0:
                nops = dma_ops("s%d" % sSx, "s%d" % sSw)[:3]
                misc += [lambda: a("s_add_u32 s%d, s%d, 1", sIt, sIt)]
        else:
            a("s_waitcnt lgkmcnt(0)")
            a("s_barrier")
        mfs(1, isB, rd, nops, misc)
    st(0)
    a("s_waitcnt vmcnt(%d)", 7 if CODEPF else 6)
    st(1)
    a("s_barrier")
    reads(0, 0)
    a("s_mov_b32 s%d, %d", sSx, 2 * 8192)
    a("s_mov_b32 s%d, %d", sSw, 2 * 16384)
    d2 = dma_ops("s%d" % sSx, "s%d" % sSw)
    for i in range(3): d2.pop(0)()
    a("s_cmp_eq_u32 s%d, 0", sQH)
    a("s_cbranch_scc0 L_gemmB")
    CV = F
    for isB in (False, True):
        L = "L_gemmB" if isB else "L_gemmA"
        a.label(L)
        stage(0, isB, dma_ops("s%d" % sSx, "s%d" % sSw)[3:])
        a("s_cmp_lt_u32 s%d, 7", sIt)
        a("s_cbranch_scc1 %s", L)
        stage(-1, isB, dma_ops("s%d" % sSx, "s%d" % sSw)[3:])
        stage(1, isB, [])
        stage(2, isB, [])
        st(2, False)
        def cvt(dst, src):
            a("v_cvt_pk_bf16_f32 v%d, v%d, v%d", dst, src, src + 1)
            a("v_cvt_pk_bf16_f32 v%d, v%d, v%d", dst + 1, src + 2, src + 3)
        if not isB:
            a("s_mov_b32 s%d, 0x%x", sC, f32bits(CSCALE))
            a("s_mov_b32 s%d, s%d", sC + 1, sC)
            a("s_lshl_b32 s%d, s%d, 5", sT, sW)
            a("v_mov_b32 v%d, s%d", vT2, sT)
            a("ds_write_b128 v%d, %s offset:%d", vT2, vr(O, 4), LFLAG)
            a("s_waitcnt vmcnt(0)")
            a("s_nop 2")
            for t in range(4):
                o = CV + 4 * t
                cvt(o, ACC + 32 + 4 * t); cvt(o + 2, ACC + 48 + 4 * t)
                a("ds_write_b128 v%d, %s offset:%d", vL0, vr(o, 4), t * 1024)
                a("buffer_store_dwordx4 %s, v%d, %s, s%d offen offset:%d sc1", vr(o, 4), vL16, srd, sPub, t * 1024)
            for t in range(4):
                o = CV + 16 + 4 * t
                for xt in range(2):
                    for h in range(2):
                        r = ACC + 16 * xt + 4 * t + 2 * h
                        a("v_pk_mul_f32 %s, %s, s[%d:%d]", vr(r, 2), vr(r, 2), sC, sC + 1)
                cvt(o, ACC + 4 * t); cvt(o + 2, ACC + 16 + 4 * t)
                a("ds_write_b128 v%d, %s offset:%d", vL0, vr(o, 4), 12288 + t * 1024)
            a("s_setprio 2")
            for i in range(16): a("v_mov_b32 v%d, 0", S + 48 + i)
            a("s_waitcnt lgkmcnt(0)")
            st(3)
            a("s_barrier")
            a("s_branch L_epi_done")
        else:
            a("s_setprio 3")
            a("s_add_u32 s%d, s%d, 3072", sT2, sPub)
            a("s_mov_b32 s%d, 0xff00ff00", sC)
            a("s_mov_b32 s%d, 0xff00ff00", sC + 1)
            a("s_lshl_b32 s%d, s%d, 5", sT, sW)
            a("v_mov_b32 v%d, s%d", vT2, sT)
            a("ds_write_b128 v%d, %s offset:%d", vT2, vr(O, 4), LFLAG)
            a("s_waitcnt vmcnt(0)")
            a("s_nop 3")
            n = 0
            stores = []
            for xt in (1, 2, 3):
                for kt in range(2):
                    o = CV + 4 * n; n += 1
                    cvt(o, ACC + 16 * xt + 8 * kt); cvt(o + 2, ACC + 16 * xt + 8 * kt + 4)
                    if xt == 3:
                        for i in range(4): a("v_cndmask_b32 v%d, v%d, v243, s[%d:%d]", o + i, o + i, sC, sC + 1)
                    a("ds_write_b128 v%d, %s offset:%d", vL1, vr(o, 4), kt * 3072 + (xt - 1) * 1024)
                    stores.append("buffer_store_dwordx4 %s, v%d, %s, s%d offen offset:%d sc1" % (vr(o, 4), vG1, srd, sT2 if kt else sPub, (xt - 1) * 1024))
            for i in range(16): a("v_mul_f32 v%d, v%d, v%d", ACC + i, vSc, ACC + i)
            for q in range(2):
                o = CV + 4 * n; n += 1
                cvt(o, ACC + 4 * q); cvt(o + 2, ACC + 4 * (q + 2))
                a("ds_write_b128 v%d, %s offset:%d", vL0, vr(o, 4), 4096 + q * 1024)
                stores.append("buffer_store_dwordx4 %s, v%d, %s, s%d offen offset:%d sc1" % (vr(o, 4), vG0, srd, sPub, q * 1024))
            NPRE = env("NPRE", 2)
            for x in stores[:NPRE]: a(x)
            a("s_waitcnt lgkmcnt(0)")
            st(3)
            a("s_barrier")
            for x in stores[NPRE:]: a(x)
            for i in range(16): a("v_mov_b32 v%d, 0", S + 48 + i)
    a.label("L_epi_done")
    def rdK(b): a("ds_read_b128 %s, v%d offset:%d", vr(Km + 4 * b, 4), vRk, (b >> 1) * 16384 + (b & 1) * 2048)
    def rdR(p): a("ds_read_b128 %s, v%d offset:%d", vr(Kr + 4 * p, 4), vRr, p * 16384)
    def rdV(b):
        for g in range(2): a("ds_read_b128 %s, v%d offset:%d", vr(V + 8 * b + 4 * g, 4), vRv, (b >> 1) * 16384 + (b & 1) * 3072 + g * 512)
    def rdQ(p):
        for j in range(2): a("ds_read_b128 %s, v%d offset:%d", vr(Qm + 8 * p + 4 * j, 4), vRq0 + p, 12288 + j * 2048)
    rdK(0); rdR(0); rdQ(0)
    for i in range(8): a("v_mov_b32 v%d, 0", Qr + i)
    a("s_mov_b32 exec_hi, 0")
    a("ds_read_b128 %s, v%d", vr(Qr, 4), vRqr0)
    a("ds_read_b128 %s, v%d", vr(Qr + 4, 4), vRqr1)
    a("s_mov_b32 exec_hi, -1")
    rdQ(1); rdV(3); rdV(0); rdK(1)
    a("v_readfirstlane_b32 s%d, v%d", sNon + 1, vNon + 1)
    a("v_readfirstlane_b32 s%d, v%d", sNon, vNon)
    a("s_mov_b32 s%d, 0", sTmo)
    a("s_cmp_lg_u32 s%d, 0", sNon + 1)
    a("s_cbranch_scc1 L_nonce_ok")
    a.label("L_nonce_retry")
    a("v_mov_b32 v%d, 0", vT1)
    a("global_load_dwordx2 %s, v%d, s[%d:%d] sc0 sc1", vr(vNon, 2), vT1, sDbg, sDbg + 1)
    a("s_add_u32 s%d, s%d, 1", sTmo, sTmo)
    a("s_waitcnt vmcnt(0)")
    a("v_readfirstlane_b32 s%d, v%d", sNon + 1, vNon + 1)
    a("v_readfirstlane_b32 s%d, v%d", sNon, vNon)
    a("s_cmp_gt_u32 s%d, 0x4000", sTmo)
    a("s_cbranch_scc1 L_nonce_ok")
    a("s_cmp_eq_u32 s%d, 0", sNon + 1)
    a("s_cbranch_scc1 L_nonce_retry")
    a.label("L_nonce_ok")

    def kvop(what, b, sreg, extra=0):
        op = "buffer_load_dwordx4"
        p, i = b // 2, b % 2
        if what == "k":   a("%s %s, v%d, %s, s%d offen offset:%d sc1", op, vr(Km + 4 * b, 4), vK, srd, sreg[p], 2048 * i)
        elif what == "r": a("%s %s, v%d, %s, s%d offen sc1", op, vr(Kr + 4 * p, 4), vKr, srd, sreg[p])
        else:             a("%s %s, v%d, %s, s%d offen offset:%d sc1", op, vr(V + 8 * b + 4 * extra, 4), vV, srd, sreg[p], 3072 * i + 512 * extra)
    def qk1(j, kb): a("v_mfma_f32_32x32x16_bf16 %s, %s, %s, 0", vr(S + 16 * j, 16), vr(Km + 4 * kb, 4), vr(Qm + 4 * j, 4))
    def qk2(j, kb): a("v_mfma_f32_32x32x8_bf16 %s, %s, %s, %s", vr(S + 16 * j, 16), vr(Kr + 2 * kb, 2), vr(Qr + 2 * j, 2), vr(S + 16 * j, 16))
    def pv(j, vb, half): a("v_smfmac_f32_32x32x32_bf16 %s, %s, %s, v%d", vr(O + 16 * j, 16), vr(V + 8 * vb + 4 * half, 4), vr(S + 16 * j + 8 * half, 8), vIdx)
    def ex(r): a("v_exp_f32 v%d, v%d", r, r)
    def signal1():
        a("s_waitcnt vmcnt(0)")
        a("buffer_store_dwordx2 %s, v%d, %s, s%d offen sc0 sc1", vr(vNon, 2), vF1, srd, sF1)
    def poll(lbl, sline, mask, tmo, slp):
        a("s_mov_b32 s%d, 0", sTmo)
        a.label(lbl)
        a("buffer_load_dwordx2 v[4:5], v%d, %s, s%d offen sc0 sc1", vFl, srd, sline)
        a("s_add_u32 s%d, s%d, 1", sTmo, sTmo)
        a("s_waitcnt vmcnt(0)")
        a("v_cmp_eq_u64 vcc, s[%d:%d], v[4:5]", sNon, sNon + 1)
        a("s_cmp_gt_u32 s%d, 0x%x", sTmo, tmo)
        a("s_cbranch_scc1 %s_ok", lbl)
        a("s_andn2_b32 s%d, %s, vcc_lo", sT, mask)
        a("s_cbranch_scc0 %s_ok", lbl)
        a("s_sleep %d", slp)
        a("s_branch %s", lbl)
        a.label(lbl + "_ok")

    a("s_waitcnt lgkmcnt(7)")
    qk1(0, 0); qk2(0, 0); qk1(1, 0); qk2(1, 0)
    rdV(1); rdK(2); rdR(1); rdV(2); rdK(3)
    a("s_lshl_b32 s%d, s%d, 5", sT, sW)
    a("v_mov_b32 v226, s%d", sT)
    a("s_xor_b32 s%d, s%d, 64", sT, sT)
    a("v_mov_b32 v227, s%d", sT)
    a("v_mov_b32 v228, 1")
    a("s_mul_i32 s%d, s%d, 6656", sT, sW)
    a("s_add_u32 s%d, s%d, %d", sT, sT, CMB)
    a("v_add_u32 v231, s%d, v%d", sT, vL16)
    a("v_lshl_add_u32 v233, v%d, 2, s%d", vLane, sT)
    a("s_xor_b32 s%d, s%d, 2", sT2, sW)
    a("s_mul_i32 s%d, s%d, 6656", sT, sT2)
    a("s_add_u32 s%d, s%d, %d", sT, sT, CMB)
    a("v_add_u32 v230, s%d, v%d", sT, vL16)
    a("v_lshl_add_u32 v232, v%d, 2, s%d", vLane, sT)
    a("s_waitcnt lgkmcnt(0)")
    a("ds_write_b32 v226, v228 offset:12")
    st(4, False)
    signal1()
    st(5, False)

    def next_chunk():
        return [lambda: a("s_add_u32 s%d, s%d, 1", sCh, sCh),
                lambda: a("s_xor_b32 s%d, s%d, s%d", sNxt, sCh, sTB),
                lambda: a("s_and_b32 s%d, s%d, 7", sNxt, sNxt),
                lambda: a("s_mul_i32 s%d, s%d, %d", sNxt, sNxt, 4 * BLK),
                lambda: a("s_add_u32 s%d, s%d, s%d", sNxt, sNxt, sKV)]
    N = (sNxt, sNxt1)
    sched = {
        (0, 1): [("V3a", lambda: kvop("v", 3, N, 0)), ("V3b", lambda: kvop("v", 3, N, 1))],
        (0, 2): [("K0", lambda: kvop("k", 0, N))],
        (1, 1): [("V0a", lambda: kvop("v", 0, N, 0)), ("V0b", lambda: kvop("v", 0, N, 1))],
        (1, 2): [("K1", lambda: kvop("k", 1, N)), ("R0", lambda: kvop("r", 0, N))],
        (2, 1): [("V1a", lambda: kvop("v", 1, N, 0)), ("V1b", lambda: kvop("v", 1, N, 1))],
        (2, 2): [("K2", lambda: kvop("k", 2, N))],
        (3, 1): [("V2a", lambda: kvop("v", 2, N, 0)), ("V2b", lambda: kvop("v", 2, N, 1))],
        (3, 2): [("K3", lambda: kvop("k", 3, N)), ("R1", lambda: kvop("r", 2, N))],
    }
    order = [(k, n) for k in sorted(sched) for (n, _) in sched[k]]
    def younger(name, pos):
        names = [n for _, n in order]
        i = names.index(name); cnt = 0
        while True:
            i = (i + 1) % len(order)
            if order[i][0] == pos or (order[i][0] > pos and (order[i - 1][0] < pos or i == 0)): return cnt
            cnt += 1
    PA, PB, POLLP = env("PA", 4), env("PB", 5), (3, 0)
    def iteration(first):
        for tt in range(4):
            for j in range(4):
                pj, pvb = ((3, (tt - 1) % 4) if j == 0 else (j - 1, tt))
                nj, nkb = (j + 2) % 4, (tt if j < 2 else (tt + 1) % 4)
                slots = [[], [], []]
                lds = [f for _, f in sched.get((tt, j), [])]
                wv = younger("V%db" % tt, (tt, 1)) if j == 0 else None
                k1 = (tt + 1) % 4
                wk = min(younger("K%d" % k1, (tt, 2)), younger("R%d" % (k1 // 2), (tt, 2))) if j == 2 else None
                if first:
                    if 4 * tt + j == PB:
                        a("s_cmp_eq_u32 s%d, 0", sQH)
                        a("s_cbranch_scc1 L_nosig3")
                        a("s_setprio 1")
                        a.label("L_nosig3")
                    if (tt, j) == POLLP:
                        st(6, False)
                        poll("L_poll1", sF1, "s%d" % sMsk, 0x4000, 2)
                        st(7, False)
                        a("s_not_b32 s%d, vcc_lo", sMsk)
                        a("s_mov_b32 s%d, 0", sCh)
                        for f in next_chunk(): f()
                        a("s_add_u32 s%d, s%d, %d", sNxt1, sNxt, BLK)
                        for k in sorted(sched):
                            if (0, 1) < k < POLLP:
                                for _, f in sched[k]: f()
                    if (tt, j) < POLLP: lds = []
                    wv = None
                    if (tt, j) != (3, 2): wk = None
                else:
                    if (tt, j) == (0, 0):
                        nc = next_chunk()
                        slots[0] += nc[0:2]; slots[1] += nc[2:4]
                    if (tt, j) == (0, 1): slots[2] += nc[4:5]
                    if (tt, j) == (0, 3): slots[0].append(lambda: a("s_add_u32 s%d, s%d, %d", sNxt1, sNxt, BLK))
                    if (tt, j) == (3, 3): slots[0].append(lambda: a("s_cmp_lt_u32 s%d, 8", sCh))
                if wv is not None: slots[2].append(lambda wv=wv: a("s_waitcnt vmcnt(%d)", wv))
                if wk is not None:
                    slots[0].append(lambda wk=wk: a("s_waitcnt vmcnt(%d)", wk))
                    for i, f in enumerate(lds): slots[1 + i].append(f)
                else:
                    for i, f in enumerate(lds): slots[i].append(f)
                regs = [S + 16 * j + i for i in range(16)]
                def ex4():
                    for _ in range(4): ex(regs.pop(0))
                pv(pj, pvb, 0); [f() for f in slots[0]]; ex4()
                pv(pj, pvb, 1); [f() for f in slots[1]]; ex4()
                qk1(nj, nkb);   [f() for f in slots[2]]; ex4()
                qk2(nj, nkb); ex4()
    iteration(True)
    st(8, False)
    a.raw(".p2align 6")
    a.label("L_attn")
    a("s_cmp_eq_u32 s%d, 0", sMsk)
    a("s_cbranch_scc0 L_late")
    a.label("L_attn_go")
    iteration(False)
    a("s_cbranch_scc1 L_attn")
    a("ds_write_b128 v231, %s", vr(O + 32, 4))
    pv(3, 3, 0); pv(3, 3, 1)
    st(9, False)
    for q in range(1, 3): a("ds_write_b128 v231, %s offset:%d", vr(O + 32 + 4 * q, 4), q * 1024)
    a("ds_write_b32 v233, v%d offset:%d", O + 32 + 12, 6144)
    a("s_mov_b32 s%d, 0x%x", sT3, f32bits(2.0 ** -30))
    a("s_mov_b32 s%d, 0x%x", sT2, f32bits(2.0 ** 60))
    a("s_mov_b32 s%d, 0", sTmo)
    a("s_nop 5")
    for q in range(3): a("ds_write_b128 v231, %s offset:%d", vr(O + 48 + 4 * q, 4), 3072 + q * 1024)
    a("ds_write_b32 v233, v%d offset:%d", O + 48 + 12, 6400)
    a("ds_write_b32 v227, v228")
    def lds_wait(lbl, word, val, slp=1):
        a("s_mov_b32 s%d, 0", sTmo)
        a.label(lbl)
        a("ds_read_b32 v229, v226 offset:%d", 4 * word)
        a("s_add_u32 s%d, s%d, 1", sTmo, sTmo)
        a("s_waitcnt lgkmcnt(0)")
        a("v_readfirstlane_b32 s%d, v229", sT)
        a("s_cmp_gt_u32 s%d, 0x20000", sTmo)
        a("s_cbranch_scc1 %s_ok", lbl)
        a("s_cmp_ge_u32 s%d, %s", sT, val)
        a("s_cbranch_scc1 %s_ok", lbl)
        a("s_sleep %d", slp)
        a("s_branch %s", lbl)
        a.label(lbl + "_ok")
    if DIAG: a("s_waitcnt lgkmcnt(0)")
    a.label("L_cmb")
    a("ds_read_b32 v229, v226")
    for j in range(2):
        for q in range(3): a("ds_read_b128 %s, v230 offset:%d", vr(S + 16 * j + 4 * q, 4), j * 3072 + q * 1024)
        a("ds_read_b32 v%d, v232 offset:%d", S + 16 * j + 12, 6144 + 256 * j)
    a("s_add_u32 s%d, s%d, 1", sTmo, sTmo)
    a("s_waitcnt lgkmcnt(8)")
    a("v_readfirstlane_b32 s%d, v229", sT)
    a("s_cmp_gt_u32 s%d, 0x20000", sTmo)
    a("s_cbranch_scc1 L_cmb_ok")
    a("s_cmp_eq_u32 s%d, 0", sT)
    a("s_cbranch_scc0 L_cmb_ok")
    a("s_waitcnt lgkmcnt(0)")
    a("s_branch L_cmb")
    a.label("L_cmb_ok")
    a("s_waitcnt lgkmcnt(4)")
    for j in range(2):
        if j: a("s_waitcnt lgkmcnt(0)")
        for i in range(0, 12, 2): a("v_pk_add_f32 %s, %s, %s", vr(O + 16 * j + i, 2), vr(O + 16 * j + i, 2), vr(S + 16 * j + i, 2))
        a("v_add_f32 v%d, v%d, v%d", O + 16 * j + 12, O + 16 * j + 12, S + 16 * j + 12)
    Z = S + 32
    a("v_pk_mul_f32 %s, %s, 0", vr(Z, 2), vr(O, 2))
    a("v_pk_mul_f32 %s, %s, 0", vr(Z + 2, 2), vr(O + 16, 2))
    for i in range(2, 12, 2):
        for j in range(2): a("v_pk_fma_f32 %s, %s, 0, %s", vr(Z + 2 * j, 2), vr(O + 16 * j + i, 2), vr(Z + 2 * j, 2))
    a("v_cmp_le_f32 s[%d:%d], s%d, v%d", sC, sC + 1, sT3, O + 12)
    a("v_cmp_le_f32 s[%d:%d], s%d, v%d", sC2, sC2 + 1, sT3, O + 28)
    a("v_pk_add_f32 %s, %s, %s", vr(Z, 2), vr(Z, 2), vr(Z + 2, 2))
    a("v_cmp_ge_f32 vcc, s%d, v%d", sT2, O + 12)
    a("s_and_b64 s[%d:%d], s[%d:%d], s[%d:%d]", sC, sC + 1, sC, sC + 1, sC2, sC2 + 1)
    a("v_cmp_ge_f32 s[%d:%d], s%d, v%d", sC2, sC2 + 1, sT2, O + 28)
    a("s_and_b64 s[%d:%d], s[%d:%d], vcc", sC, sC + 1, sC, sC + 1)
    a("v_cmp_o_f32 vcc, v%d, v%d", Z, Z + 1)
    a("s_and_b64 s[%d:%d], s[%d:%d], s[%d:%d]", sC, sC + 1, sC, sC + 1, sC2, sC2 + 1)
    a("s_and_b64 s[%d:%d], s[%d:%d], vcc", sC, sC + 1, sC, sC + 1)
    a("s_cmp_eq_u64 s[%d:%d], -1", sC, sC + 1)
    a("s_cbranch_scc0 L_slow")
    a.label("L_fin")
    for j in range(2): a("v_rcp_f32 v%d, v%d", Z + 2 * j, O + 16 * j + 12)
    a("v_mov_b32 v%d, 0", vT1)
    for j in range(2):
        for i in range(0, 12, 2): a("v_pk_mul_f32 %s, %s, %s op_sel_hi:[1,0]", vr(O + 16 * j + i, 2), vr(O + 16 * j + i, 2), vr(Z + 2 * j, 2))
        for i in range(4): a("v_cvt_pk_bf16_f32 v%d, v%d, v%d", S + 4 * j + i, O + 16 * j + 2 * i, O + 16 * j + 2 * i + 1)
        a("buffer_store_dwordx4 %s, v%d, %s, s%d offen offset:%d sc1", vr(S + 4 * j, 4), vL16, srd, sO, j * 1024)
        for i in range(2): a("v_cvt_pk_bf16_f32 v%d, v%d, v%d", S + 8 + 2 * j + i, O + 16 * j + 8 + 2 * i, O + 16 * j + 9 + 2 * i)
    a("buffer_store_dwordx4 %s, v%d, %s, s%d offen sc1", vr(S + 8, 4), vOr, srd, sO)
    st(16, False)
    a("v_mov_b32 v229, 2")
    a("ds_write_b32 v226, v229 offset:12")
    WO, OUT = WSRD, XS
    vG, vOa, vWa2, vSt, vGr, vOb = 234, 235, 236, 237, 238, 239
    ACC2, WF, OF = 16, 56, 96
    a("s_mul_i32 s%d, s%d, 24", sT, sB)
    a("s_add_u32 s%d, s%d, 16", sT, sT)
    a("s_load_dwordx2 s[4:5], s[0:1], s%d", sT)
    a("s_load_dwordx2 s[6:7], s[0:1], 48")
    a("v_lshrrev_b32 v%d, 4, v%d", vS1, vLane)
    a("v_and_b32 v%d, 15, v%d", vT3, vLane)
    a("s_lshl_b32 s%d, s%d, 8", sT, sE)
    a("v_lshl_add_u32 v%d, v%d, 4, s%d", vT4, vT3, sT)
    a("v_mul_u32_u24 v%d, %d, v%d", vT2, OB, vH)
    a("v_and_b32 v%d, 16, v%d", vOa, vLane)
    a("v_lshl_add_u32 v%d, v%d, 5, v%d", vOa, vOa, vT2)
    a("v_add_u32 v%d, v%d, v%d", vOa, vOa, vT4)
    a("v_mul_u32_u24 v%d, %d, v%d", vT2, 2 * OB, vS1)
    a("v_add_u32 v%d, v%d, v%d", vOb, vT2, vT4)
    a("v_add_u32 v%d, 2048, v%d", vOb, vOb)
    a("s_mul_i32 s%d, s%d, %d", sT, sKH, 10 * 5120)
    a("s_add_u32 s%d, s%d, %d", sT, sT, WOB)
    a("v_lshl_add_u32 v%d, v%d, 9, s%d", vT2, vH, sT)
    a("v_lshl_add_u32 v%d, v%d, 3, v%d", vWa2, vM, vT2)
    a("v_and_b32 v%d, 4, v%d", vT2, vT3)
    a("v_lshlrev_b32 v%d, 2, v%d", vT2, vT2)
    a("v_and_b32 v%d, 8, v%d", vT4, vT3)
    a("v_lshrrev_b32 v%d, 1, v%d", vT4, vT4)
    a("v_and_b32 v%d, 3, v%d", vT3, vT3)
    a("v_or3_b32 v%d, v%d, v%d, v%d", vT2, vT2, vT3, vT4)
    a("v_mul_u32_u24 v%d, 2560, v%d", vT2, vT2)
    a("v_lshl_add_u32 v%d, v%d, 3, v%d", vSt, vS1, vT2)
    a("v_lshlrev_b32 v%d, 7, v%d", vT2, vLane)
    a("v_lshl_or_b32 v%d, v%d, 29, v%d", vFl, vS1, vT2)
    a("s_and_b32 s%d, s%d, 7", sT3, sHP)
    a("s_mul_i32 s%d, s%d, 160", sT3, sT3)
    a("s_sub_u32 s%d, %d, s%d", WO + 2, 640 * 1280, sT3)
    a("s_mov_b32 s%d, 0x20000", WO + 3)
    a("s_mov_b32 s%d, %d", OUT + 2, 2048 * 2560)
    a("s_mov_b32 s%d, 0x20000", OUT + 3)
    a("s_lshl_b32 s%d, s%d, 1", sT, sTB)
    a("s_add_u32 s%d, s%d, s%d", sT, sT, sQH)
    a("s_lshl_b32 s%d, s%d, 1", sT, sT)
    a("s_add_u32 s%d, s%d, s%d", sT, sT, sHH)
    a("s_lshl_b32 s%d, s%d, 5", sT2, sB)
    a("s_add_u32 s%d, s%d, s%d", sT2, sT2, sT)
    a("s_lshl_b32 s%d, s%d, 1", sT2, sT2)
    a("s_add_u32 s%d, s%d, s%d", sT2, sT2, sKH)
    a("s_mul_i32 s%d, s%d, %d", sO, sT2, 16 * OB)
    a("s_add_u32 s%d, s%d, %d", sO, sO, O_OFF)
    a("s_lshl_b32 s%d, s%d, 11", sT2, sT2)
    a("s_add_u32 s%d, s%d, %d", sF1, sT2, F2_OFF)
    a("s_lshl_b32 s%d, s%d, 1", sT, sT)
    a("s_add_u32 s%d, s%d, s%d", sT, sT, sKH)
    a("s_lshl_b32 s%d, s%d, 2", sT, sT)
    a("s_add_u32 s%d, s%d, s%d", sT, sT, sE)
    a("s_mul_i32 s%d, s%d, %d", sPub, sT, 8 * 2560)
    a("s_mul_i32 s%d, s%d, 1280", sT2, sB)
    a("s_add_u32 s%d, s%d, s%d", sPub, sPub, sT2)
    a("s_add_u32 s%d, s%d, s%d", sPub, sPub, sT3)
    a("s_waitcnt vmcnt(0)")
    a("buffer_store_dwordx2 %s, v%d, %s, s%d offen sc0 sc1", vr(vNon, 2), vT1, srd, sF2)
    st(10)
    a("s_waitcnt lgkmcnt(0)")
    a("s_add_u32 s%d, s4, s%d", WO, sT3)
    a("s_addc_u32 s%d, s5, 0", WO + 1)
    a("s_mov_b32 s%d, s6", OUT)
    a("s_mov_b32 s%d, s7", OUT + 1)
    a("s_cmp_eq_u32 s%d, 0", sQH)
    a("s_cbranch_scc0 L_woskip")
    a("v_lshrrev_b32 v%d, 1, v%d", vT1, vLane)
    a("v_and_b32 v%d, 4, v%d", vT2, vT1)
    a("v_lshlrev_b32 v%d, 1, v%d", vT2, vT2)
    a("v_and_b32 v%d, 8, v%d", vT3, vT1)
    a("v_lshrrev_b32 v%d, 1, v%d", vT3, vT3)
    a("v_and_b32 v%d, 0x13, v%d", vT1, vT1)
    a("v_or3_b32 v%d, v%d, v%d, v%d", vT1, vT1, vT2, vT3)
    a("v_lshl_add_u32 v%d, v%d, 3, v%d", vT2, vH, vT1)
    a("v_and_b32 v%d, 24, v%d", vT3, vT1)
    a("v_lshl_add_u32 v%d, v%d, 2, v%d", vT3, vT3, vT1)
    a("v_add_u32 v%d, 16, v%d", vT3, vT3)
    a("v_mul_u32_u24 v%d, 1280, v%d", vT2, vT2)
    a("v_mul_u32_u24 v%d, 1280, v%d", vT3, vT3)
    a("v_and_b32 v%d, 1, v%d", vT1, vLane)
    a("v_lshl_add_u32 v%d, v%d, 4, v%d", vG, vT1, vT2)
    a("v_lshl_add_u32 v%d, v%d, 4, v%d", vGr, vT1, vT3)
    a("s_mul_i32 s%d, s%d, %d", sCur, sW, 160 * 1280)
    a("s_mul_i32 s%d, s%d, %d", sCh, sW, 5 * 5120)
    a("s_add_u32 s%d, s%d, %d", sCh, sCh, WOB)
    a("s_mov_b32 s%d, 0", sIt)
    a("v_and_b32 v%d, 7, v%d", vT1, vLane)
    a("v_lshlrev_b32 v%d, 5, v%d", vT1, vT1)
    a("s_mov_b32 s%d, 0", sTmo)
    a.label("L_img")
    a("ds_read_b32 v229, v%d offset:12", vT1)
    a("s_add_u32 s%d, s%d, 1", sTmo, sTmo)
    a("s_waitcnt lgkmcnt(0)")
    a("v_cmp_le_u32 vcc, 1, v229")
    a("s_cmp_gt_u32 s%d, 0x20000", sTmo)
    a("s_cbranch_scc1 L_wo")
    a("s_cmp_eq_u64 vcc, -1")
    a("s_cbranch_scc0 L_img")
    a.label("L_wo")
    for i in range(5):
        a("s_add_u32 m0, s%d, %d", sCh, 4 * 5120 + 1024 * i)
        a("s_add_u32 s%d, s%d, %d", sT, sCur, 32 * i)
        a("buffer_load_dwordx4 v%d, %s, s%d offen lds", vGr, sr(WO, 4), sT)
    a.label("L_wo2")
    a("s_waitcnt vmcnt(0)")
    for i in range(5):
        a("s_add_u32 m0, s%d, %d", sCh, 1024 * i)
        a("s_add_u32 s%d, s%d, %d", sT, sCur, 32 * i)
        a("buffer_load_dwordx4 v%d, %s, s%d offen lds", vG, sr(WO, 4), sT)
    a("s_add_u32 s%d, s%d, %d", sCur, sCur, 40 * 1280)
    a("s_add_u32 s%d, s%d, 5120", sCh, sCh)
    a("s_add_u32 s%d, s%d, 1", sIt, sIt)
    a("s_cmp_lt_u32 s%d, 4", sIt)
    a("s_cbranch_scc1 L_wo2")
    a("s_waitcnt vmcnt(0)")
    a("ds_write_b32 v226, v228 offset:4")
    a.label("L_woskip")
    a("v_and_b32 v%d, 1, v%d", vT1, vLane)
    a("s_lshl_b32 s%d, s%d, 6", sT, sKH)
    a("v_lshl_add_u32 v%d, v%d, 5, s%d", vT3, vT1, sT)
    a("s_mov_b32 s%d, 0", sTmo)
    a.label("L_wol")
    a("ds_read_b32 v229, v%d offset:4", vT3)
    a("s_add_u32 s%d, s%d, 1", sTmo, sTmo)
    a("s_waitcnt lgkmcnt(0)")
    a("v_cmp_le_u32 vcc, 1, v229")
    a("s_cmp_gt_u32 s%d, 0x20000", sTmo)
    a("s_cbranch_scc1 L_wol_ok")
    a("s_cmp_eq_u64 vcc, -1")
    a("s_cbranch_scc1 L_wol_ok")
    a("s_sleep 1")
    a("s_branch L_wol")
    a.label("L_wol_ok")
    st(11)
    def wreads(s):
        fb = s % 2
        for j in range(5):
            for q in range(2):
                a("ds_read_b64_tr_b16 %s, v%d offset:%d", vr(WF + 20 * fb + 4 * j + 2 * q, 2), vWa2, s * 5120 + j * 1024 + q * 256)
    wreads(0)
    a("s_waitcnt vmcnt(0)")
    poll("L_poll2", sF1, "0xffff", 0x8000, env("SLP2", 2))
    st(12)
    for s in range(10):
        hp0 = 4 * (s // 5)
        if s % 5 < 4:
            a("s_add_u32 s%d, s%d, %d", sNxt, sO, (hp0 + s % 5) * 2 * OB)
            for j in range(2): a("buffer_load_dwordx4 %s, v%d, %s, s%d offen offset:%d sc1", vr(OF + 8 * s + 4 * j, 4), vOa, srd, sNxt, 1024 * j)
        else:
            a("s_add_u32 s%d, s%d, %d", sNxt, sO, hp0 * 2 * OB)
            for e in range(2): a("buffer_load_dwordx4 %s, v%d, %s, s%d offen offset:%d sc1", vr(OF + 8 * s + 4 * e, 4), vOb, srd, sNxt, OB * e)
    a("s_cmp_eq_u32 s%d, 0", sQH)
    a("s_cbranch_scc0 L_bloop_ok")
    a("s_setprio 0")
    lds_wait("L_bloop", 32 + 3, "2", 4)
    st(13)
    for s in range(10):
        if s < 9:
            wreads(s + 1)
            a("s_waitcnt vmcnt(%d) lgkmcnt(10)", 2 * (9 - s))
        else:
            a("s_waitcnt vmcnt(0) lgkmcnt(0)")
        if s % 5 == 4:
            a("v_swap_b32 v%d, v%d", OF + 8 * s + 2, OF + 8 * s + 4)
            a("v_swap_b32 v%d, v%d", OF + 8 * s + 3, OF + 8 * s + 5)
            a("s_nop 1")
        for tt in (1, 0):
            for j in range(5):
                d = ACC2 + 4 * (5 * tt + j)
                a("v_mfma_f32_16x16x32_bf16 %s, %s, %s, %s", vr(d, 4), vr(WF + 20 * (s % 2) + 4 * j, 4), vr(OF + 8 * s + 4 * tt, 4), vr(d, 4) if s else "0")
    st(14, False)
    a("s_mov_b32 s%d, 0", sTmo)
    a("s_cmp_eq_u32 s%d, 0", sKH)
    a("s_cbranch_scc0 L_x1")
    OSC = os.environ.get("OSC", "")
    for kq in range(2):
        keep, send = ACC2 + 20 * kq, ACC2 + 20 * (1 - kq)
        if kq:
            a.label("L_x1")
            a("s_nop 5")
        for q in range(5): a("ds_write_b128 v230, %s offset:%d", vr(send + 4 * q, 4), q * 1024)
        a("ds_write_b32 v227, v228 offset:8")
        if DIAG: a("s_waitcnt lgkmcnt(0)")
        a.label("L_xch%d" % kq)
        a("ds_read_b32 v229, v226 offset:8")
        for q in range(5): a("ds_read_b128 %s, v231 offset:%d", vr(WF + 4 * q, 4), q * 1024)
        a("s_add_u32 s%d, s%d, 1", sTmo, sTmo)
        a("s_waitcnt lgkmcnt(5)")
        a("v_readfirstlane_b32 s%d, v229", sT)
        a("s_cmp_gt_u32 s%d, 0x20000", sTmo)
        a("s_cbranch_scc1 L_xok%d", kq)
        a("s_cmp_eq_u32 s%d, 0", sT)
        a("s_cbranch_scc0 L_xok%d", kq)
        a("s_waitcnt lgkmcnt(0)")
        a("s_branch L_xch%d", kq)
        a.label("L_xok%d" % kq)
        for q in range(5):
            a("s_waitcnt lgkmcnt(%d)", 4 - q)
            for h in range(2): a("v_pk_add_f32 %s, %s, %s", vr(keep + 4 * q + 2 * h, 2), vr(keep + 4 * q + 2 * h, 2), vr(WF + 4 * q + 2 * h, 2))
            for h in range(2): a("v_cvt_pk_bf16_f32 v%d, v%d, v%d", WF + 20 + 2 * q + h, keep + 4 * q + 2 * h, keep + 4 * q + 2 * h + 1)
            a("buffer_store_dwordx2 %s, v%d, %s, s%d offen offset:%d %s", vr(WF + 20 + 2 * q, 2), vSt, sr(OUT, 4), sPub, 32 * q, OSC)
        if not kq: a("s_branch L_xdone") if DIAG else a("s_endpgm")
    a.label("L_xdone")
    st(15)
    a.label("L_exit")
    st.flush(sW)
    a.label("L_end")
    a("s_endpgm")
    a.label("L_late")
    a("s_cmp_lt_u32 s%d, 3", sCh)
    a("s_cbranch_scc1 L_attn_go")
    poll("L_poll3", sF1, "-1", 0x4000, 2)
    a("s_mov_b32 s%d, 0", sMsk)
    a("s_branch L_attn_go")
    a.label("L_slow")
    C = S + 32
    MX = O + 32
    a("s_waitcnt vmcnt(0)")
    a("s_mul_i32 s%d, s%d, %d", sT, sKH, 2 * BLK)
    a("s_sub_u32 s%d, s%d, s%d", sKV, sKV, sT)
    a("s_mov_b32 s%d, s%d", sCur, sKV)
    a("s_add_u32 s%d, s%d, %d", sCh, sKV, KV_PAIR)
    a("v_mov_b32 v%d, 0xff800000", MX)
    a("v_mov_b32 v%d, 0xff800000", MX + 1)
    P = (sCur, sCur)
    a.label("L_slow1")
    kvop("k", 0, P); kvop("k", 1, P); kvop("r", 0, P)
    a("s_waitcnt vmcnt(0)")
    for b in range(2):
        qk1(0, b); qk2(0, b); qk1(1, b); qk2(1, b)
        a("s_nop 15")
        for j in range(2):
            for i in range(8): a("v_max3_f32 v%d, v%d, v%d, v%d", MX + j, MX + j, S + 16 * j + 2 * i, S + 16 * j + 2 * i + 1)
    a("s_add_u32 s%d, s%d, %d", sCur, sCur, BLK)
    a("s_cmp_lt_u32 s%d, s%d", sCur, sCh)
    a("s_cbranch_scc1 L_slow1")
    for j in range(2):
        a("v_mov_b32 v%d, v%d", vT1, MX + j)
        a("s_nop 1")
        a("v_permlane32_swap_b32 v%d, v%d", vT1, MX + j)
        a("s_nop 1")
        a("v_max_f32 v%d, v%d, v%d", vT1, vT1, MX + j)
        for i in range(16): a("v_sub_f32 v%d, 0, v%d", C + 16 * j + i, vT1)
    for i in range(32): a("v_mov_b32 v%d, 0", O + i)
    a("s_mov_b32 s%d, s%d", sCur, sKV)
    a.label("L_slow2")
    kvop("k", 0, P); kvop("k", 1, P); kvop("r", 0, P)
    for b in range(2):
        kvop("v", b, P, 0); kvop("v", b, P, 1)
    a("s_waitcnt vmcnt(0)")
    for b in range(2):
        for j in range(2):
            a("v_mfma_f32_32x32x16_bf16 %s, %s, %s, %s", vr(S + 16 * j, 16), vr(Km + 4 * b, 4), vr(Qm + 4 * j, 4), vr(C + 16 * j, 16))
            qk2(j, b)
        a("s_nop 15")
        for i in range(32): ex(S + i)
        a("s_nop 1")
        for j in range(2):
            pv(j, b, 0); pv(j, b, 1)
    a("s_add_u32 s%d, s%d, %d", sCur, sCur, BLK)
    a("s_cmp_lt_u32 s%d, s%d", sCur, sCh)
    a("s_cbranch_scc1 L_slow2")
    a("s_nop 15")
    a("s_branch L_fin")
    a.label("L_code_end")
    return name, NFV, 163840

def gen_spin(a):
    name = "spin_kernel"
    kernel_head(a, name)
    wa, ia, wb, ib, mult, off = [int(x) for x in SPIN.split(",")]
    a("s_cmp_ge_u32 s2, 1")
    a("s_cbranch_scc1 L_spin_end")
    a("s_load_dwordx2 s[4:5], s[0:1], 64")
    a("s_waitcnt lgkmcnt(0)")
    a("s_add_u32 s4, s4, %d", DIAG_OFF)
    a("s_addc_u32 s5, s5, 0")
    if wa >= 0:
        a("v_mov_b32 v1, %d", 4 * ia + 128 * (16 * 8 + wa))
        a("v_mov_b32 v2, %d", 4 * ib + 128 * (16 * 8 + wb))
        a("global_load_dword v3, v1, s[4:5]")
        a("global_load_dword v4, v2, s[4:5]")
        a("s_waitcnt vmcnt(0)")
        a("v_sub_u32 v3, v4, v3")
        a("s_nop 1")
        a("v_readfirstlane_b32 s8, v3")
    else:
        a("v_lshlrev_b32 v1, 11, v0")
        a("v_mov_b32 v2, 0")
        a("global_load_dword v7, v2, s[4:5]")
        for k in range(4):
            a("global_load_dword v%d, v1, s[4:5] offset:%d", 8 + k, 4 * ia + (0 if wa == -1 else 128 * wb))
            a("global_load_dword v%d, v1, s[4:5] offset:%d", 12 + k, 4 * ib + 128 * wb)
            a("v_add_u32 v1, %d, v1", 64 * 2048)
        a("s_waitcnt vmcnt(0)")
        for k in range(8): a("v_sub_u32 v%d, v%d, v7", 8 + k, 8 + k)
        op = "min" if wa == -1 else "max"
        for k in range(1, 4):
            a("v_%s_i32 v8, v8, v%d", op, 8 + k)
            a("v_max_i32 v12, v12, v%d", 12 + k)
        a("s_nop 1")
        a("v_readlane_b32 s20, v8, 0")
        a("v_readlane_b32 s21, v12, 0")
        for l in range(1, 64):
            a("v_readlane_b32 s22, v8, %d", l)
            a("v_readlane_b32 s23, v12, %d", l)
            a("s_%s_i32 s20, s20, s22", op)
            a("s_max_i32 s21, s21, s23")
        a("s_sub_u32 s8, s21, s20")
    a("s_memrealtime s[10:11]")
    a("s_nop 3")
    a("s_max_u32 s8, s8, %d", off)
    a("s_sub_u32 s8, s8, %d", off)
    a("s_min_u32 s8, s8, 20000")
    a("s_mul_i32 s8, s8, %d", mult)
    a("s_waitcnt lgkmcnt(0)")
    a.label("L_spin")
    a("s_memrealtime s[12:13]")
    a("s_waitcnt lgkmcnt(0)")
    a("s_sub_u32 s14, s12, s10")
    a("s_cmp_lt_u32 s14, s8")
    a("s_cbranch_scc1 L_spin")
    a.label("L_spin_end")
    a("s_endpgm")
    return name, 16, 0

def main(out):
    a = A()
    ks = []
    for g, blk in ((gen_fused, 512),) + (((gen_spin, 64),) if SPIN else ()):
        n, nfv, lds = g(a)
        ks.append((n, nfv, lds, blk))
    hdr = "; Two independent MHA blocks (S=2048, D=640, H=32, Dh=20), concatenated on the last axis; one fused kernel.\n"
    hdr += "; kernarg: 0 A_x, 8 A_wqkv, 16 A_wo, 24 B_x, 32 B_wqkv, 40 B_wo, 48 out, 56 debug, 64 ws\n"
    if len(ks) == 1 and not env("LIST", 0):
        hdr += "; @launch grid=(256,1,1) block=(%d,1,1) lds=%d\n" % (ks[0][3], ks[0][2])
    else:
        for n, nfv, lds, blk in ks:
            hdr += "; @launch kernel=%s grid=(256,1,1) block=(%d,1,1) lds=%d\n" % (n, blk, lds)
    s = hdr + '.amdgcn_target "amdgcn-amd-amdhsa--gfx950"\n.text\n' + a.text()
    s += '.section .rodata,"a"\n'
    for n, nfv, lds, blk in ks: s += kd(n, nfv)
    open(out, "w").write(s)

if __name__ == "__main__":
    main(sys.argv[1] if len(sys.argv) > 1 else "cdna_kernels/%s.s" % NAME)
```

```python
import math, struct, sys, os

NAME = "concat_heads__mha_block__softmax_full_mha__prompt"
BLK = 12288
KV_PAIR = 32 * BLK
KV_OFF = 0
OB = 2560
O_OFF = KV_OFF + 32 * KV_PAIR
O_BYTES = 32 * 32 * OB
F1_OFF = O_OFF + 2 * O_BYTES
F2_OFF = F1_OFF + 128 * 256
WS_USED = F2_OFF + 2048 * 128
CSCALE = math.log2(math.e) / math.sqrt(20.0)
OOB = 0x40000000
DIAG = int(os.environ.get("DIAG", "0"))
DIAG_OFF = 64 << 20
def env(n, d): return int(os.environ.get(n, str(d)))
NT = env("NT", 0)
SKEW = env("SKEW", 2)
HELP = env("HELP", 1)
SPIN = os.environ.get("SPIN", "")

def f32bits(x): return struct.unpack("<I", struct.pack("<f", x))[0]

class A:
    def __init__(self): self.l = []
    def __call__(self, s, *a): self.l.append("    " + (s % a if a else s))
    def label(self, s): self.l.append(s + ":")
    def raw(self, s): self.l.append(s)
    def c(self, s): self.l.append("    ; " + s)
    def text(self): return "\n".join(self.l) + "\n"

def vr(b, n): return "v[%d:%d]" % (b, b + n - 1) if n > 1 else "v%d" % b
def sr(b, n): return "s[%d:%d]" % (b, b + n - 1) if n > 1 else "s%d" % b

def kernel_head(a, name):
    a.raw(".globl %s" % name); a.raw(".p2align 8"); a.raw(".type %s,@function" % name); a.label(name)

def kd(name, nfv, nsg=100):
    acc = (nfv + 3) // 4 * 4
    return """.p2align 6
.amdhsa_kernel %s
  .amdhsa_next_free_vgpr %d
  .amdhsa_next_free_sgpr %d
  .amdhsa_accum_offset %d
  .amdhsa_group_segment_fixed_size 0
  .amdhsa_kernarg_size 72
  .amdhsa_user_sgpr_count 2
  .amdhsa_user_sgpr_kernarg_segment_ptr 1
  .amdhsa_system_sgpr_workgroup_id_x 1
.end_amdhsa_kernel
""" % (name, nfv, nsg, acc)

class Stamps:
    def __init__(self, a):
        self.a = a
        if DIAG:
            for i in range(62, 100): a("s_mov_b32 s%d, 0", i)
            a("s_memrealtime s[60:61]")
    def __call__(self, i, wait=True):
        if not DIAG: return
        if DIAG == 1: self.a("s_memrealtime s[%d:%d]", 64 + 2 * i, 65 + 2 * i)
        else: self.a("s_memtime s[%d:%d]", 64 + 2 * i, 65 + 2 * i)
        if wait: self.a("s_waitcnt lgkmcnt(0)")
    def flush(self, swave):
        if not DIAG: return
        a = self.a
        a("s_mov_b64 exec, -1")
        a("s_waitcnt vmcnt(0)")
        self(17)
        a("s_memrealtime s[62:63]")
        a("s_load_dwordx2 s[56:57], s[0:1], 64")
        a("s_lshl_b32 s58, s2, 4")
        a("s_add_u32 s58, s58, s%d", swave)
        a("s_lshl_b32 s58, s58, 7")
        a("s_add_u32 s58, s58, %d", DIAG_OFF)
        a("v_mov_b32 v1, s58")
        a("s_waitcnt lgkmcnt(0)")
        for i in range(20):
            a("v_mov_b32 v2, s%d", 60 + 2 * i)
            a("global_store_dword v1, v2, s[56:57] offset:%d", 4 * i)
        a("s_waitcnt vmcnt(0)")

def gen_fused(a):
    name = NAME + "_kernel"
    kernel_head(a, name)
    WS, XS, WSRD = 8, 12, 16
    sNon = 20
    sB, sTB, sHP, sHH, sW, sE, sKH, sQH = 22, 23, 24, 25, 26, 27, 28, 29
    sT, sT2, sT3 = 30, 31, 32
    sXoff, sWoff, sM0x, sM0w, sIt, sDX, sDW, sSlot, sSx, sSw = 33, 34, 35, 36, 37, 38, 39, 40, 41, 42
    sNxt, sNxt1, sCh, sR, sTmo, sCur = 33, 34, 35, 36, 38, 39
    sDbg = 44
    sC, sC2 = 46, 48
    sKV, sPub, sF1, sO, sF2, sMsk = 50, 51, 52, 53, 54, 55
    sOc, sPend, sTrig = 40, 41, 43
    sGo, sLo, sGs, sLs, sGd = 36, 37, 42, 44, 45
    WO, OUT = WSRD, XS
    vG, vOa, vOb, vWa2, vSt = 244, 253, 254, 0, 15
    ACC2, WF, OF = 16, 56, 96
    srd = sr(WS, 4)
    vLane, vM, vH, vT1, vT2, vT3, vT4 = 1, 2, 3, 4, 5, 6, 7
    vK, vKr, vV, vIdx, vFl, vL16, vOr, vS1 = 8, 9, 10, 11, 12, 13, 14, 15
    vNon = 224
    vXg, vWg, vXa, vWa = 226, 230, 232, 234
    vG0, vG1, vL0, vL1, vSc = 238, 239, 240, 241, 242
    vRk, vRr, vRv, vRq0, vRq1, vRqr0, vRqr1 = 245, 246, 247, 248, 249, 250, 251
    vF1 = 252
    F, ACC = 16, 96
    Qm, Qr, Km, Kr, V, S, O = 16, 32, 40, 56, 64, 96, 160
    NFV = 256
    WBASE = 98304
    LFLAG, WOB = 0, 1024
    CMB = WOB + 102400
    IMG = 1024

    a("s_cmp_ge_u32 s2, 256")
    a("s_cbranch_scc1 L_end")
    st = Stamps(a)
    a("s_bfe_u32 s%d, s2, 0x10002", sB)
    a("s_mul_i32 s%d, s%d, 24", sT, sB)
    a("s_load_dwordx4 s[4:7], s[0:1], s%d", sT)
    a("s_load_dwordx2 s[%d:%d], s[0:1], 64", WS, WS + 1)
    a("s_load_dwordx2 s[%d:%d], s[0:1], 56", sDbg, sDbg + 1)
    a("s_memrealtime s[%d:%d]", sNon, sNon + 1)
    a("v_lshrrev_b32 v%d, 6, v0", vT1)
    a("v_and_b32 v%d, 63, v0", vLane)
    a("v_readfirstlane_b32 s%d, v%d", sW, vT1)
    a("s_bfe_u32 s%d, s2, 0x10001", sTB)
    a("s_lshl_b32 s%d, s%d, 2", sTB, sTB)
    a("s_bfe_u32 s%d, s2, 0x20003", sT)
    a("s_or_b32 s%d, s%d, s%d", sTB, sTB, sT)
    a("s_and_b32 s%d, s2, 1", sHH)
    a("s_lshl_b32 s%d, s%d, 3", sHP, sHH)
    a("s_lshr_b32 s%d, s2, 5", sT)
    a("s_or_b32 s%d, s%d, s%d", sHP, sHP, sT)
    a("s_lshr_b32 s%d, s2, 7", sT)
    a("s_xor_b32 s%d, s%d, s%d", sHP, sHP, sT)
    a("s_and_b32 s%d, s%d, 1", sE, sW)
    a("v_lshrrev_b32 v%d, 3, v0", vT1)
    a("s_mul_i32 s%d, s%d, 24", sT, sW)
    a("v_add_u32 v%d, s%d, v%d", vT1, sT, vT1)
    a("v_mul_u32_u24 v%d, 1280, v%d", vT1, vT1)
    a("v_lshrrev_b32 v%d, 4, v%d", vT4, vLane)
    a("v_and_b32 v%d, 7, v%d", vT3, vLane)
    a("v_xor_b32 v%d, v%d, v%d", vT2, vT4, vT3)
    a("v_xor_b32 v%d, 4, v%d", vT3, vT2)
    a("v_lshl_add_u32 v%d, v%d, 4, v%d", vXg + 0, vT2, vT1)
    a("v_lshl_add_u32 v%d, v%d, 4, v%d", vXg + 1, vT3, vT1)
    a("v_add_u32 v%d, %d, v%d", vXg + 1, 8 * 1280 - 1024, vXg + 1)
    a("v_add_u32 v%d, %d, v%d", vXg + 2, 16 * 1280 - 2048, vXg + 0)
    a("v_add_u32 v%d, %d, v%d", vXg + 3, 16 * 1280 - 2048, vXg + 1)
    TAB = [0, 3, 1, 4, 5, 8, 6, 9, 2, 7, 10, 11, 13, 14, 12, 15]
    tab = sum(v << (4 * i) for i, v in enumerate(TAB))
    a("s_lshl_b32 s%d, s%d, 3", sT, sE)
    a("v_lshl_add_u32 v%d, v%d, 1, s%d", vT2, vT4, sT)
    a("v_and_b32 v%d, 15, v%d", vM, vLane)
    a("v_xor_b32 v%d, v%d, v%d", vT2, vT2, vM)
    a("v_lshlrev_b32 v%d, 2, v%d", vT2, vT2)
    a("s_mov_b32 s%d, 0x%x", sC, tab & 0xffffffff)
    a("s_mov_b32 s%d, 0x%x", sC + 1, tab >> 32)
    a("v_lshrrev_b64 v[16:17], v%d, s[%d:%d]", vT2, sC, sC + 1)
    a("v_and_b32 v%d, 15, v16", vT2)
    a("s_lshl_b32 s%d, s%d, 3", sT, sW)
    a("v_add_u32 v%d, s%d, v%d", vT1, sT, vT4)
    a("v_mul_u32_u24 v%d, 3840, v%d", vT1, vT1)
    a("v_mul_u32_u24 v%d, 13, v%d", vT3, vT2)
    a("v_lshrrev_b32 v%d, 6, v%d", vT3, vT3)
    a("v_mul_u32_u24 v%d, %d, v%d", vT3, 1280 - 80, vT3)
    a("v_cmp_eq_u32 vcc, 15, v%d", vT2)
    a("v_lshl_add_u32 v%d, v%d, 4, v%d", vT2, vT2, vT3)
    a("v_mov_b32 v%d, 0x%x", vS1, OOB)
    if HELP:
        a("s_and_b32 s%d, s%d, 7", sT, sHP)
        a("s_mov_b32 s%d, 0x%x", sT2, OOB)
        for hp, sec in ((0, 0), (2, 1), (5, 2)):
            a("s_cmp_eq_u32 s%d, %d", sT, hp)
            a("s_cselect_b32 s%d, %d, s%d", sT2, sec * 1280 + 256 - 80 * hp + (HELP - 1) * 64 * 3840, sT2)
        a("s_bfe_u32 s%d, s%d, 0x10001", sT, sTB)
        a("v_lshrrev_b32 v%d, 1, v%d", vT3, vT4)
        a("v_cmp_eq_u32 s[%d:%d], s%d, v%d", sC, sC + 1, sT, vT3)
        a("v_mov_b32 v%d, s%d", vT3, sT2)
        a("s_nop 0")
        a("v_cndmask_b32 v%d, v%d, v%d, s[%d:%d]", vT3, vS1, vT3, sC, sC + 1)
        a("v_cndmask_b32 v%d, v%d, v%d, vcc", vT2, vT2, vT3)
    else:
        a("v_cndmask_b32 v%d, v%d, v%d, vcc", vT2, vT2, vS1)
    a("v_add_u32 v%d, v%d, v%d", vWg + 0, vT1, vT2)
    a("v_add_u32 v%d, %d, v%d", vWg + 1, 4 * 3840 - 1024, vWg + 0)
    a("s_lshr_b32 s%d, s%d, 1", sT, sW)
    a("s_mul_i32 s%d, s%d, 24576", sM0x, sT)
    a("s_lshl_b32 s%d, s%d, 12", sT, sE)
    a("s_add_u32 s%d, s%d, s%d", sM0x, sM0x, sT)
    a("s_lshl_b32 s%d, s%d, 11", sM0w, sW)
    a("s_add_u32 s%d, s%d, %d", sM0w, sM0w, WBASE)
    a("s_mov_b32 s%d, %d", XS + 2, 256 * 1280)
    a("s_mov_b32 s%d, 0x20000", XS + 3)
    a("s_mov_b32 s%d, 0x20000", WSRD + 3)
    if SKEW:
        a("s_xor_b32 s%d, s%d, s%d", sT, sTB, sHP)
        a("s_and_b32 s%d, s%d, 1", sT, sT)
        a("s_mul_i32 s%d, s%d, 5", sT, sT)
        if SKEW > 1:
            a("s_lshr_b32 s%d, s2, 1", sT2)
            a("s_xor_b32 s%d, s%d, s2", sT2, sT2)
            a("s_and_b32 s%d, s%d, 1", sT2, sT2)
            a("s_mul_i32 s%d, s%d, %d", sT2, sT2, SKEW)
            a("s_add_u32 s%d, s%d, s%d", sT, sT, sT2)
        FOL = env("FOL", 1)
        if FOL:
            a("s_bfe_u32 s%d, s2, 0x10005", sT2)
            a("s_mul_i32 s%d, s%d, %d", sT2, sT2, 10 - FOL)
            a("s_add_u32 s%d, s%d, s%d", sT, sT, sT2)
            a("s_cmp_ge_u32 s%d, 10", sT)
            a("s_cselect_b32 s%d, 10, 0", sT2)
            a("s_sub_u32 s%d, s%d, s%d", sT, sT, sT2)
        a("s_lshl_b32 s%d, s%d, 7", sXoff, sT)
        a("s_mul_i32 s%d, s%d, %d", sWoff, sT, 64 * 3840)
    else:
        a("s_mov_b32 s%d, 0", sXoff)
        a("s_mov_b32 s%d, 0", sWoff)
    a("s_mul_i32 s%d, s%d, %d", sT, sTB, 256 * 1280)
    a("s_mul_i32 s%d, s%d, 80", sT2, sHP)
    a("s_sub_u32 s%d, %d, s%d", WSRD + 2, 640 * 3840, sT2)
    a("s_waitcnt lgkmcnt(0)")
    a("s_add_u32 s%d, s4, s%d", XS, sT)
    a("s_addc_u32 s%d, s5, 0", XS + 1)
    a("s_add_u32 s%d, s6, s%d", WSRD, sT2)
    a("s_addc_u32 s%d, s7, 0", WSRD + 1)

    ntx = " nt" if NT & 1 else ""
    ntw = " nt" if NT & 2 else ""
    def dma_ops(slot_x, slot_w):
        ops = []
        def x(i):
            if i == 0:
                a("s_add_u32 m0, s%d, %s", sM0x, slot_x); a("s_nop 0")
            a("buffer_load_dwordx4 v%d, %s, s%d offen offset:%d%s lds", vXg + i, sr(XS, 4), sXoff, 1024 * i, ntx)
        def w(i):
            if i == 0:
                a("s_add_u32 m0, s%d, %s", sM0w, slot_w)
                a("s_add_u32 s%d, s%d, %d", sXoff, sXoff, 0 if env("NOADV", 0) & 1 else 128)
            a("buffer_load_dwordx4 v%d, %s, s%d offen offset:%d%s lds", vWg + i, sr(WSRD, 4), sWoff, 1024 * i, ntw)
            if i == 1:
                a("s_add_u32 s%d, s%d, %d", sWoff, sWoff, 0 if env("NOADV", 0) & 2 else 64 * 3840)
                if SKEW:
                    a("s_cmp_eq_u32 s%d, 1280", sXoff)
                    a("s_cselect_b32 s%d, 0, s%d", sXoff, sXoff)
                    a("s_cselect_b32 s%d, 0, s%d", sWoff, sWoff)
        for i in range(4): ops.append(lambda i=i: x(i))
        for i in range(2): ops.append(lambda i=i: w(i))
        return ops
    for op in dma_ops("0", "0"): op()
    a("s_barrier")
    a("s_or_b32 s%d, s2, s%d", sT3, sW)
    a("s_cbranch_scc1 L_nononce")
    a("s_or_b32 s%d, s%d, 0x80000000", sNon + 1, sNon + 1)
    a("v_mov_b32 v%d, s%d", vNon, sNon)
    a("v_mov_b32 v%d, s%d", vNon + 1, sNon + 1)
    a("v_mov_b32 v%d, 0", vT1)
    a("global_store_dwordx2 v%d, %s, s[%d:%d] sc0 sc1", vT1, vr(vNon, 2), sDbg, sDbg + 1)
    a.label("L_nononce")
    d1 = dma_ops("8192", "16384")
    d1.pop(0)(); d1.pop(0)()
    a("s_bfe_u32 s%d, s%d, 0x10001", sKH, sW)
    a("s_lshr_b32 s%d, s%d, 2", sQH, sW)
    a("s_mov_b32 s%d, %d", WS + 2, WS_USED)
    a("s_mov_b32 s%d, 0x20000", WS + 3)
    a("s_and_b32 s%d, s%d, 3", sT3, sW)
    a("v_lshrrev_b32 v%d, 1, v%d", vT1, vM)
    a("v_xor_b32 v%d, v%d, v%d", vT1, vT1, vT4)
    a("s_mul_i32 s%d, s%d, 24576", sT, sT3)
    a("v_lshl_add_u32 v%d, v%d, 7, s%d", vT2, vM, sT)
    a("v_lshl_add_u32 v%d, v%d, 4, v%d", vXa, vT1, vT2)
    a("v_xor_b32 v%d, 64, v%d", vXa + 1, vXa)
    a("v_bfe_u32 v%d, v%d, 2, 2", vT1, vLane)
    a("v_lshl_add_u32 v%d, v%d, 3, v%d", vT2, vT4, vT1)
    a("v_lshlrev_b32 v%d, 8, v%d", vT2, vT2)
    a("v_and_b32 v%d, 3, v%d", vT3, vLane)
    a("v_lshl_add_u32 v%d, v%d, 3, v%d", vT2, vT3, vT2)
    a("v_add_u32 v%d, %d, v%d", vT2, WBASE, vT2)
    a("v_bfe_u32 v%d, v%d, 2, 3", vT1, vLane)
    a("s_lshl_b32 s%d, s%d, 2", sT, sQH)
    a("v_xor_b32 v%d, s%d, v%d", vT1, sT, vT1)
    a("v_lshl_add_u32 v%d, v%d, 5, v%d", vWa, vT1, vT2)
    for xt in range(1, 4): a("v_xor_b32 v%d, %d, v%d", vWa + xt, 32 * xt, vWa)
    d1.pop(0)()
    a("v_lshlrev_b32 v%d, 4, v%d", vL16, vLane)
    a("s_lshl_b32 s%d, s%d, 14", sT, sT3)
    a("s_add_u32 s%d, s%d, %d", sT, sT, IMG)
    a("v_add_u32 v%d, s%d, v%d", vL0, sT, vL16)
    a("v_cmp_lt_u32 vcc, 1, v%d", vT4)
    a("v_add_u32 v%d, 4096, v%d", vT1, vL16)
    a("v_mov_b32 v%d, 0x%x", vT2, f32bits(CSCALE))
    a("v_cndmask_b32 v%d, v%d, v%d, vcc", vG0, vS1, vT1)
    a("v_cndmask_b32 v%d, v%d, 1.0, vcc", vSc, vT2)
    a("v_and_b32 v%d, 4, v%d", vT1, vM)
    a("v_and_b32 v%d, 8, v%d", vT2, vM)
    a("v_lshlrev_b32 v%d, 5, v%d", vT1, vT1)
    a("v_lshl_add_u32 v%d, v%d, 3, v%d", vT1, vT2, vT1)
    a("v_and_b32 v%d, 0x330, v%d", vT2, vL16)
    a("v_add_u32 v%d, v%d, v%d", vT1, vT1, vT2)
    a("v_add_u32 v%d, 6144, v%d", vG1, vT1)
    a("v_add_u32 v%d, s%d, v%d", vL1, sT, vG1)
    d1.pop(0)()
    for i in range(64): a("v_mov_b32 v%d, 0", ACC + i)
    a("v_and_b32 v%d, 11, v%d", vT1, vM)
    a("v_cmp_eq_u32 vcc, 8, v%d", vT1)
    a("v_mov_b32 v%d, 0x3f803f80", vT1)
    a("v_and_b32 v%d, 31, v0", vM)
    a("v_cndmask_b32 v243, 0, v%d, vcc", vT1)
    d1.pop(0)()
    a("v_bfe_u32 v%d, v0, 5, 1", vH)
    for i in range(64): a("v_mov_b32 v%d, 0", O + i)
    d1.pop(0)()
    CODEPF = env("CODEPF", 1)
    if CODEPF:
        a.label("L_pfbase")
        a("s_getpc_b64 s[%d:%d]", sC, sC + 1)
        a("v_and_b32 v%d, 15, v%d", vT1, vM)
        a("v_lshlrev_b32 v%d, 7, v%d", vT1, vT1)
        a("s_lshl_b32 s%d, s%d, 11", sT, sW)
        a("v_add_u32 v%d, s%d, v%d", vT1, sT, vT1)
        a("v_min_u32 v%d, %s, v%d", vT1, "L_code_end-L_pfbase-8", vT1)
        a("global_load_dword v255, v%d, s[%d:%d]", vT1, sC, sC + 1)
    a("v_mov_b32 v%d, 0xdddddddd", vIdx)
    a("v_and_b32 v%d, 4, v%d", vT1, vM)
    a("v_lshlrev_b32 v%d, 8, v%d", vT1, vT1)
    a("v_and_b32 v%d, 24, v%d", vT2, vM)
    a("v_lshl_add_u32 v%d, v%d, 3, v%d", vT1, vT2, vT1)
    a("v_and_b32 v%d, 3, v%d", vT2, vM)
    a("v_lshl_add_u32 v%d, v%d, 4, v%d", vT1, vT2, vT1)
    a("s_lshl_b32 s%d, s%d, 9", sT, sE)
    a("v_lshl_add_u32 v%d, v%d, 8, s%d", vT2, vH, sT)
    a("v_add_u32 v%d, v%d, v%d", vK, vT1, vT2)
    a("s_lshl_b32 s%d, s%d, 8", sT, sE)
    a("s_add_u32 s%d, s%d, %d", sT, sT, 4096 + 512)
    a("v_cmp_eq_u32 vcc, 0, v%d", vH)
    a("v_add_u32 v%d, s%d, v%d", vRr, sT, vT1)
    a("v_lshlrev_b32 v%d, 3, v%d", vT3, vLane)
    a("v_cndmask_b32 v%d, v%d, v%d, vcc", vKr, vS1, vRr)
    a("v_cndmask_b32 v%d, v%d, v%d, vcc", vFl, vS1, vT3)
    a("v_add_u32 v%d, 2048, v%d", vT3, vL16)
    a("v_cndmask_b32 v%d, v%d, v%d, vcc", vOr, vS1, vT3)
    a("v_min_u32 v%d, 20, v%d", vT1, vM)
    a("v_lshlrev_b32 v%d, 4, v%d", vT1, vT1)
    a("v_lshl_add_u32 v%d, v%d, 8, v%d", vT1, vH, vT1)
    a("s_lshl_b32 s%d, s%d, 10", sT, sE)
    a("s_add_u32 s%d, s%d, 6144", sT, sT)
    a("s_lshl_b32 s%d, s%d, 7", sT2, sE)
    a("s_add_u32 s%d, s%d, %d", sT2, sT2, 6144 + 2048 - 256)
    a("v_cmp_gt_u32 vcc, 16, v%d", vM)
    a("v_add_u32 v%d, s%d, v%d", vT2, sT, vT1)
    a("v_add_u32 v%d, s%d, v%d", vT3, sT2, vT1)
    a("v_cndmask_b32 v%d, v%d, v%d, vcc", vRv, vT3, vT2)
    a("v_and_b32 v%d, 0x1b, v%d", vT2, vM)
    a("v_cmp_eq_u32 vcc, 24, v%d", vT2)
    a("v_cmp_gt_u32 s[%d:%d], 20, v%d", sC, sC + 1, vM)
    a("s_lshl_b32 s%d, s%d, 1", sT2, sQH)
    a("s_add_u32 s%d, s%d, s%d", sT2, sT2, sKH)
    a("s_or_b64 vcc, vcc, s[%d:%d]", sC, sC + 1)
    a("v_cndmask_b32 v%d, v%d, v%d, vcc", vV, vS1, vRv)
    a("s_lshl_b32 s%d, s%d, 14", sC, sT2)
    a("s_add_u32 s%d, s%d, %d", sC, sC, IMG)
    a("s_xor_b32 s%d, s%d, %d", sC + 1, sC, 1 << 14)
    a("v_add_u32 v%d, s%d, v%d", vRq0, sC, vK)
    a("v_add_u32 v%d, s%d, v%d", vRq1, sC + 1, vK)
    a("s_sub_u32 s%d, s%d, 512", sC, sC)
    a("s_sub_u32 s%d, s%d, 512", sC + 1, sC + 1)
    a("v_add_u32 v%d, s%d, v%d", vRqr0, sC, vRr)
    a("v_add_u32 v%d, s%d, v%d", vRqr1, sC + 1, vRr)
    a("s_lshl_b32 s%d, s%d, 15", sT, sKH)
    a("s_add_u32 s%d, s%d, %d", sT, sT, IMG)
    a("v_add_u32 v%d, s%d, v%d", vRk, sT, vK)
    a("v_add_u32 v%d, s%d, v%d", vRr, sT, vRr)
    a("v_add_u32 v%d, s%d, v%d", vRv, sT, vRv)
    a("s_lshl_b32 s%d, s%d, 2", sT, sTB)
    a("s_add_u32 s%d, s%d, s%d", sT2, sT2, sT)
    a("s_lshl_b32 s%d, s%d, 5", sC, sB)
    a("s_add_u32 s%d, s%d, s%d", sT2, sT2, sC)
    a("s_lshl_b32 s%d, s%d, 4", sO, sT2)
    a("s_add_u32 s%d, s%d, s%d", sO, sO, sHP)
    a("s_lshl_b32 s%d, s%d, 1", sO, sO)
    a("s_add_u32 s%d, s%d, s%d", sO, sO, sE)
    a("s_lshl_b32 s%d, s%d, 7", sT2, sO)
    a("s_add_u32 s%d, s%d, %d", sF2, sT2, F2_OFF)
    a("s_mul_i32 s%d, s%d, %d", sO, sO, OB)
    a("s_add_u32 s%d, s%d, %d", sO, sO, O_OFF)
    a("s_lshl_b32 s%d, s%d, 4", sC, sB)
    a("s_add_u32 s%d, s%d, s%d", sC, sC, sHP)
    a("s_mul_i32 s%d, s%d, %d", sKV, sC, KV_PAIR)
    a("s_add_u32 s%d, s%d, s%d", sT, sT, sT3)
    a("s_mul_i32 s%d, s%d, %d", sPub, sT, BLK)
    a("s_add_u32 s%d, s%d, s%d", sPub, sPub, sKV)
    a("s_mul_i32 s%d, s%d, %d", sT2, sKH, 2 * BLK)
    a("s_add_u32 s%d, s%d, s%d", sKV, sKV, sT2)
    a("s_lshl_b32 s%d, s%d, 1", sC, sC)
    a("s_add_u32 s%d, s%d, s%d", sC, sC, sKH)
    a("s_lshl_b32 s%d, s%d, 8", sC, sC)
    a("s_add_u32 s%d, s%d, %d", sF1, sC, F1_OFF)
    a("s_lshl_b32 s%d, s%d, 1", sT, sTB)
    a("s_add_u32 s%d, s%d, s%d", sT, sT, sE)
    a("s_lshl_b32 s%d, s%d, 1", sT, sT)
    a("s_add_u32 s%d, s%d, s%d", sT, sT, sQH)
    a("s_lshl_b32 s%d, s%d, 3", sT, sT)
    a("v_mov_b32 v%d, s%d", vF1, sT)
    a("s_and_b32 s%d, s%d, 4", sT, sTB)
    a("s_lshl_b32 s%d, s%d, 2", sT, sT)
    a("s_lshl_b32 s%d, 0xffff, s%d", sMsk, sT)
    a("s_mov_b32 s%d, 0", sIt)
    a("s_mov_b32 s%d, 0", sSlot)
    a("v_and_b32 v%d, 15, v%d", vT3, vLane)
    a("s_lshl_b32 s%d, s%d, 8", sT, sE)
    a("v_lshl_add_u32 v%d, v%d, 4, s%d", vT1, vT3, sT)
    a("v_mul_u32_u24 v%d, %d, v%d", vT2, OB, vH)
    a("v_and_b32 v%d, 16, v%d", vOa, vLane)
    a("v_lshl_add_u32 v%d, v%d, 5, v%d", vOa, vOa, vT2)
    a("v_add_u32 v%d, v%d, v%d", vOa, vOa, vT1)
    a("v_mul_u32_u24 v%d, %d, v%d", vT2, 2 * OB, vT4)
    a("v_add_u32 v%d, v%d, v%d", vOb, vT2, vT1)
    a("v_add_u32 v%d, 2048, v%d", vOb, vOb)
    a("s_mul_i32 s%d, s%d, %d", sT, sKH, 8 * 5120)
    a("s_add_u32 s%d, s%d, %d", sT, sT, WOB)
    a("v_lshl_add_u32 v%d, v%d, 9, s%d", vT2, vH, sT)
    a("v_lshl_add_u32 v%d, v%d, 3, v%d", vWa2, vM, vT2)
    a("v_and_b32 v%d, 4, v%d", vT2, vT3)
    a("v_lshlrev_b32 v%d, 2, v%d", vT2, vT2)
    a("v_and_b32 v%d, 8, v%d", vT1, vT3)
    a("v_lshrrev_b32 v%d, 1, v%d", vT1, vT1)
    a("v_and_b32 v%d, 3, v%d", vT3, vT3)
    a("v_or3_b32 v%d, v%d, v%d, v%d", vT2, vT2, vT3, vT1)
    a("v_mul_u32_u24 v%d, 2560, v%d", vT2, vT2)
    a("v_lshl_add_u32 v%d, v%d, 3, v%d", vSt, vT4, vT2)
    a("v_lshrrev_b32 v%d, 1, v%d", vT1, vLane)
    a("v_and_b32 v%d, 4, v%d", vT2, vT1)
    a("v_lshlrev_b32 v%d, 1, v%d", vT2, vT2)
    a("v_and_b32 v%d, 8, v%d", vT3, vT1)
    a("v_lshrrev_b32 v%d, 1, v%d", vT3, vT3)
    a("v_and_b32 v%d, 0x13, v%d", vT1, vT1)
    a("v_or3_b32 v%d, v%d, v%d, v%d", vT1, vT1, vT2, vT3)
    a("v_lshl_add_u32 v%d, v%d, 3, v%d", vT2, vH, vT1)
    a("v_and_b32 v%d, 24, v%d", vT3, vT1)
    a("v_lshl_add_u32 v%d, v%d, 2, v%d", vT3, vT3, vT1)
    a("v_add_u32 v%d, 16, v%d", vT3, vT3)
    a("s_cmp_ge_u32 s%d, 6", sW)
    a("s_cselect_b64 vcc, -1, 0")
    a("v_cndmask_b32 v%d, v%d, v%d, vcc", vT2, vT2, vT3)
    a("v_mul_u32_u24 v%d, 1280, v%d", vT2, vT2)
    a("v_and_b32 v%d, 1, v%d", vT1, vLane)
    a("v_lshl_add_u32 v%d, v%d, 4, v%d", vG, vT1, vT2)

    def read_ops(fb, ks):
        f = F + 32 * fb
        ops = []
        for t in range(4):
            ops.append(lambda t=t: a("ds_read_b128 %s, v%d offset:%d", vr(f + 4 * t, 4), vXa + ks, t * 2048))
            for q in range(2):
                ops.append(lambda t=t, q=q: a("ds_read_b64_tr_b16 %s, v%d offset:%d", vr(f + 16 + 4 * t + 2 * q, 2), vWa + t, ks * 8192 + q * 1024))
        return ops
    def reads(fb, ks):
        for op in read_ops(fb, ks): op()
    RPM = env("RPM", 1)
    def mfs(fb, isB, rd, dm, misc):
        f = F + 32 * fb
        n = 0
        for (xt, t) in sorted([(x, y) for x in range(4) for y in range(4)], key=lambda p: (max(p), p)):
            d = ACC + 16 * xt + 4 * t
            x, w = vr(f + 4 * t, 4), vr(f + 16 + 4 * xt, 4)
            if isB and xt > 0: a("v_mfma_f32_16x16x32_bf16 %s, %s, %s, %s", vr(d, 4), x, w, vr(d, 4))
            else:              a("v_mfma_f32_16x16x32_bf16 %s, %s, %s, %s", vr(d, 4), w, x, vr(d, 4))
            n += 1
            if rd:
                for _ in range(RPM):
                    if rd: rd.pop(0)()
            elif dm and n % 3 == 1: dm.pop(0)()
            elif misc:
                for _ in range(3):
                    if misc: misc.pop(0)()
        for op in rd + dm + misc: op()
    def stage(kind, isB, ops):
        if kind == 2:
            a("v_mov_b32 v%d, 0", vT1)
            a("global_load_dwordx2 %s, v%d, s[%d:%d] sc0 sc1", vr(vNon, 2), vT1, sDbg, sDbg + 1)
        misc = []
        if kind < 2:
            misc = [lambda: (a("s_cmp_eq_u32 s%d, 2", sSlot), a("s_cselect_b32 s%d, -2, 1", sDX)),
                    lambda: a("s_lshl_b32 s%d, s%d, 14", sDW, sDX),
                    lambda: a("s_lshl_b32 s%d, s%d, 13", sT, sDX)]
            misc += [lambda ks=ks: a("v_add_u32 v%d, s%d, v%d", vXa + ks, sT, vXa + ks) for ks in range(2)]
            misc += [lambda ft=ft: a("v_add_u32 v%d, s%d, v%d", vWa + ft, sDW, vWa + ft) for ft in range(4)]
        a("s_waitcnt lgkmcnt(0)")
        mfs(0, isB, read_ops(1, 1), ops, misc)
        nops, rd, misc = [], [], []
        if kind < 2:
            a("s_lshl_b32 s%d, s%d, 13", sSx, sSlot)
            a("s_lshl_b32 s%d, s%d, 14", sSw, sSlot)
            a("s_waitcnt vmcnt(%d) lgkmcnt(0)", 0 if kind == 1 else 6)
            a("s_barrier")
            rd = read_ops(0, 0)
            misc = [lambda: a("s_add_u32 s%d, s%d, s%d", sSlot, sSlot, sDX)]
            if kind == 0:
                nops = dma_ops("s%d" % sSx, "s%d" % sSw)[:3]
                misc += [lambda: a("s_add_u32 s%d, s%d, 1", sIt, sIt)]
        else:
            a("s_waitcnt lgkmcnt(0)")
            a("s_barrier")
        mfs(1, isB, rd, nops, misc)
    st(0)
    a("s_waitcnt vmcnt(%d)", 7 if CODEPF else 6)
    st(1)
    a("s_barrier")
    reads(0, 0)
    a("s_mov_b32 s%d, %d", sSx, 2 * 8192)
    a("s_mov_b32 s%d, %d", sSw, 2 * 16384)
    d2 = dma_ops("s%d" % sSx, "s%d" % sSw)
    for i in range(3): d2.pop(0)()
    a("s_cmp_eq_u32 s%d, 0", sQH)
    a("s_cbranch_scc0 L_gemmB")
    CV = F
    for isB in (False, True):
        L = "L_gemmB" if isB else "L_gemmA"
        a.label(L)
        stage(0, isB, dma_ops("s%d" % sSx, "s%d" % sSw)[3:])
        a("s_cmp_lt_u32 s%d, 7", sIt)
        a("s_cbranch_scc1 %s", L)
        stage(-1, isB, dma_ops("s%d" % sSx, "s%d" % sSw)[3:])
        stage(1, isB, [])
        stage(2, isB, [])
        st(2, False)
        def cvt(dst, src):
            a("v_cvt_pk_bf16_f32 v%d, v%d, v%d", dst, src, src + 1)
            a("v_cvt_pk_bf16_f32 v%d, v%d, v%d", dst + 1, src + 2, src + 3)
        if not isB:
            a("s_mov_b32 s%d, 0x%x", sC, f32bits(CSCALE))
            a("s_mov_b32 s%d, s%d", sC + 1, sC)
            a("s_lshl_b32 s%d, s%d, 5", sT, sW)
            a("v_mov_b32 v%d, s%d", vT2, sT)
            a("ds_write_b128 v%d, %s offset:%d", vT2, vr(O, 4), LFLAG)
            a("s_waitcnt vmcnt(0)")
            a("s_nop 2")
            for t in range(4):
                o = CV + 4 * t
                cvt(o, ACC + 32 + 4 * t); cvt(o + 2, ACC + 48 + 4 * t)
                a("ds_write_b128 v%d, %s offset:%d", vL0, vr(o, 4), t * 1024)
                a("buffer_store_dwordx4 %s, v%d, %s, s%d offen offset:%d sc1", vr(o, 4), vL16, srd, sPub, t * 1024)
            for t in range(4):
                o = CV + 16 + 4 * t
                for xt in range(2):
                    for h in range(2):
                        r = ACC + 16 * xt + 4 * t + 2 * h
                        a("v_pk_mul_f32 %s, %s, s[%d:%d]", vr(r, 2), vr(r, 2), sC, sC + 1)
                cvt(o, ACC + 4 * t); cvt(o + 2, ACC + 16 + 4 * t)
                a("ds_write_b128 v%d, %s offset:%d", vL0, vr(o, 4), 12288 + t * 1024)
            a("s_setprio 2")
            for i in range(16): a("v_mov_b32 v%d, 0", S + 48 + i)
            a("s_waitcnt lgkmcnt(0)")
            st(3)
            a("s_barrier")
            a("s_branch L_epi_done")
        else:
            a("s_setprio 3")
            a("s_add_u32 s%d, s%d, 3072", sT2, sPub)
            a("s_mov_b32 s%d, 0xff00ff00", sC)
            a("s_mov_b32 s%d, 0xff00ff00", sC + 1)
            a("s_lshl_b32 s%d, s%d, 5", sT, sW)
            a("v_mov_b32 v%d, s%d", vT2, sT)
            a("ds_write_b128 v%d, %s offset:%d", vT2, vr(O, 4), LFLAG)
            a("s_waitcnt vmcnt(0)")
            a("s_nop 3")
            n = 0
            stores = []
            for xt in (1, 2, 3):
                for kt in range(2):
                    o = CV + 4 * n; n += 1
                    cvt(o, ACC + 16 * xt + 8 * kt); cvt(o + 2, ACC + 16 * xt + 8 * kt + 4)
                    if xt == 3:
                        for i in range(4): a("v_cndmask_b32 v%d, v%d, v243, s[%d:%d]", o + i, o + i, sC, sC + 1)
                    a("ds_write_b128 v%d, %s offset:%d", vL1, vr(o, 4), kt * 3072 + (xt - 1) * 1024)
                    stores.append("buffer_store_dwordx4 %s, v%d, %s, s%d offen offset:%d sc1" % (vr(o, 4), vG1, srd, sT2 if kt else sPub, (xt - 1) * 1024))
            for i in range(16): a("v_mul_f32 v%d, v%d, v%d", ACC + i, vSc, ACC + i)
            for q in range(2):
                o = CV + 4 * n; n += 1
                cvt(o, ACC + 4 * q); cvt(o + 2, ACC + 4 * (q + 2))
                a("ds_write_b128 v%d, %s offset:%d", vL0, vr(o, 4), 4096 + q * 1024)
                stores.append("buffer_store_dwordx4 %s, v%d, %s, s%d offen offset:%d sc1" % (vr(o, 4), vG0, srd, sPub, q * 1024))
            NPRE = env("NPRE", 2)
            for x in stores[:NPRE]: a(x)
            a("s_waitcnt lgkmcnt(0)")
            st(3)
            a("s_barrier")
            for x in stores[NPRE:]: a(x)
            for i in range(16): a("v_mov_b32 v%d, 0", S + 48 + i)
    a.label("L_epi_done")
    def rdK(b): a("ds_read_b128 %s, v%d offset:%d", vr(Km + 4 * b, 4), vRk, (b >> 1) * 16384 + (b & 1) * 2048)
    def rdR(p): a("ds_read_b128 %s, v%d offset:%d", vr(Kr + 4 * p, 4), vRr, p * 16384)
    def rdV(b):
        for g in range(2): a("ds_read_b128 %s, v%d offset:%d", vr(V + 8 * b + 4 * g, 4), vRv, (b >> 1) * 16384 + (b & 1) * 3072 + g * 512)
    def rdQ(p):
        for j in range(2): a("ds_read_b128 %s, v%d offset:%d", vr(Qm + 8 * p + 4 * j, 4), vRq0 + p, 12288 + j * 2048)
    rdK(0); rdR(0); rdQ(0)
    for i in range(8): a("v_mov_b32 v%d, 0", Qr + i)
    a("s_mov_b32 exec_hi, 0")
    a("ds_read_b128 %s, v%d", vr(Qr, 4), vRqr0)
    a("ds_read_b128 %s, v%d", vr(Qr + 4, 4), vRqr1)
    a("s_mov_b32 exec_hi, -1")
    rdQ(1); rdV(3); rdV(0); rdK(1)
    a("v_readfirstlane_b32 s%d, v%d", sNon + 1, vNon + 1)
    a("v_readfirstlane_b32 s%d, v%d", sNon, vNon)
    a("s_mov_b32 s%d, 0", sTmo)
    a("s_cmp_lg_u32 s%d, 0", sNon + 1)
    a("s_cbranch_scc1 L_nonce_ok")
    a.label("L_nonce_retry")
    a("v_mov_b32 v%d, 0", vT1)
    a("global_load_dwordx2 %s, v%d, s[%d:%d] sc0 sc1", vr(vNon, 2), vT1, sDbg, sDbg + 1)
    a("s_add_u32 s%d, s%d, 1", sTmo, sTmo)
    a("s_waitcnt vmcnt(0)")
    a("v_readfirstlane_b32 s%d, v%d", sNon + 1, vNon + 1)
    a("v_readfirstlane_b32 s%d, v%d", sNon, vNon)
    a("s_cmp_gt_u32 s%d, 0x4000", sTmo)
    a("s_cbranch_scc1 L_nonce_ok")
    a("s_cmp_eq_u32 s%d, 0", sNon + 1)
    a("s_cbranch_scc1 L_nonce_retry")
    a.label("L_nonce_ok")

    def kvop(what, b, sreg, extra=0):
        op = "buffer_load_dwordx4"
        p, i = b // 2, b % 2
        if what == "k":   a("%s %s, v%d, %s, s%d offen offset:%d sc1", op, vr(Km + 4 * b, 4), vK, srd, sreg[p], 2048 * i)
        elif what == "r": a("%s %s, v%d, %s, s%d offen sc1", op, vr(Kr + 4 * p, 4), vKr, srd, sreg[p])
        else:             a("%s %s, v%d, %s, s%d offen offset:%d sc1", op, vr(V + 8 * b + 4 * extra, 4), vV, srd, sreg[p], 3072 * i + 512 * extra)
    def qk1(j, kb): a("v_mfma_f32_32x32x16_bf16 %s, %s, %s, 0", vr(S + 16 * j, 16), vr(Km + 4 * kb, 4), vr(Qm + 4 * j, 4))
    def qk2(j, kb): a("v_mfma_f32_32x32x8_bf16 %s, %s, %s, %s", vr(S + 16 * j, 16), vr(Kr + 2 * kb, 2), vr(Qr + 2 * j, 2), vr(S + 16 * j, 16))
    def pv(j, vb, half): a("v_smfmac_f32_32x32x32_bf16 %s, %s, %s, v%d", vr(O + 16 * j, 16), vr(V + 8 * vb + 4 * half, 4), vr(S + 16 * j + 8 * half, 8), vIdx)
    def ex(r): a("v_exp_f32 v%d, v%d", r, r)
    def signal1():
        a("s_waitcnt vmcnt(0)")
        a("buffer_store_dwordx2 %s, v%d, %s, s%d offen sc0 sc1", vr(vNon, 2), vF1, srd, sF1)
    def poll(lbl, sline, mask, tmo, slp):
        a("s_mov_b32 s%d, 0", sTmo)
        a.label(lbl)
        a("buffer_load_dwordx2 v[4:5], v%d, %s, s%d offen sc0 sc1", vFl, srd, sline)
        a("s_add_u32 s%d, s%d, 1", sTmo, sTmo)
        a("s_waitcnt vmcnt(0)")
        a("v_cmp_eq_u64 vcc, s[%d:%d], v[4:5]", sNon, sNon + 1)
        a("s_cmp_gt_u32 s%d, 0x%x", sTmo, tmo)
        a("s_cbranch_scc1 %s_ok", lbl)
        a("s_andn2_b32 s%d, %s, vcc_lo", sT, mask)
        a("s_cbranch_scc0 %s_ok", lbl)
        a("s_sleep %d", slp)
        a("s_branch %s", lbl)
        a.label(lbl + "_ok")

    a("s_waitcnt lgkmcnt(7)")
    qk1(0, 0); qk2(0, 0); qk1(1, 0); qk2(1, 0)
    rdV(1); rdK(2); rdR(1); rdV(2); rdK(3)
    a("s_lshl_b32 s%d, s%d, 5", sT, sW)
    a("v_mov_b32 v226, s%d", sT)
    a("s_xor_b32 s%d, s%d, 64", sT, sT)
    a("v_mov_b32 v227, s%d", sT)
    a("v_mov_b32 v228, 1")
    a("s_mul_i32 s%d, s%d, 6656", sT, sW)
    a("s_add_u32 s%d, s%d, %d", sT, sT, CMB)
    a("v_add_u32 v231, s%d, v%d", sT, vL16)
    a("v_lshl_add_u32 v233, v%d, 2, s%d", vLane, sT)
    a("s_xor_b32 s%d, s%d, 2", sT2, sW)
    a("s_mul_i32 s%d, s%d, 6656", sT, sT2)
    a("s_add_u32 s%d, s%d, %d", sT, sT, CMB)
    a("v_add_u32 v230, s%d, v%d", sT, vL16)
    a("v_lshl_add_u32 v232, v%d, 2, s%d", vLane, sT)
    a("s_waitcnt lgkmcnt(0)")
    a("ds_write_b32 v226, v228 offset:12")
    st(4, False)
    signal1()
    st(5, False)
    a("s_mul_i32 s%d, s%d, 24", sT, sB)
    a("s_add_u32 s%d, s%d, 16", sT, sT)
    a("s_load_dwordx2 s[4:5], s[0:1], s%d", sT)
    a("s_load_dwordx2 s[%d:%d], s[0:1], 48", OUT, OUT + 1)
    a("s_lshr_b32 s%d, s2, 3", sT)
    a("s_lshl_b32 s%d, s%d, 3", sT, sT)
    a("s_add_u32 s%d, s%d, s%d", sT, sT, sW)
    a("s_mul_i32 s%d, s%d, %d", sT, sT, 25 * 128)
    a("v_min_u32 v%d, 24, v%d", vT1, vLane)
    a("v_lshl_add_u32 v%d, v%d, 7, s%d", vT1, vT1, sT)
    a("s_and_b32 s%d, s%d, 7", sT3, sHP)
    a("s_mul_i32 s%d, s%d, 160", sT3, sT3)
    a("s_sub_u32 s%d, %d, s%d", WO + 2, 640 * 1280, sT3)
    a("s_mov_b32 s%d, %d", OUT + 2, 2048 * 2560)
    a("s_waitcnt lgkmcnt(0)")
    a("global_load_dword v255, v%d, s[4:5]", vT1)
    a("s_add_u32 s%d, s4, s%d", WO, sT3)
    a("s_addc_u32 s%d, s5, 0", WO + 1)

    def wo_setup():
        MB, RB = 40 * 1280, 160 * 1280
        a("s_lshl_b32 s%d, s%d, 5", sGo, sW)
        a("s_lshl_b32 s%d, s%d, 10", sLo, sW)
        a("s_mov_b32 s%d, %d", sGs, MB)
        a("s_mov_b32 s%d, %d", sLs, 2 * 5120)
        a("s_mov_b32 s%d, %d", sGd, MB)
        a("s_cmp_lt_u32 s%d, 5", sW)
        a("s_cbranch_scc1 L_wos")
        a("s_mul_i32 s%d, s%d, %d", sLo, sW, 2 * 5120)
        a("s_add_u32 s%d, s%d, %d", sLo, sLo, 4 * 5120)
        a("s_mov_b32 s%d, 1024", sLs)
        a("s_mov_b32 s%d, %d", sGo, 14 * MB)
        a("s_mov_b32 s%d, %d", sGs, 32 - MB)
        a("s_cmp_eq_u32 s%d, 5", sW)
        a("s_cbranch_scc1 L_wos")
        a("s_mul_i32 s%d, s%d, %d", sGo, sE, 2 * RB)
        a("s_mov_b32 s%d, %d", sGd, RB)
        a("s_mov_b32 s%d, %d", sGs, 32 - RB)
        a.label("L_wos")
        a("s_add_u32 s%d, s%d, %d", sLo, sLo, WOB)
    def all8(lbl, val):
        a("v_and_b32 v%d, 7, v%d", vT3, vLane)
        a("v_lshlrev_b32 v%d, 5, v%d", vT3, vT3)
        a("s_mov_b32 s%d, 0", sTmo)
        a.label(lbl)
        a("ds_read_b32 v229, v%d offset:12", vT3)
        a("s_add_u32 s%d, s%d, 1", sTmo, sTmo)
        a("s_waitcnt lgkmcnt(0)")
        a("v_cmp_le_u32 vcc, %d, v229", val)
        a("s_cmp_gt_u32 s%d, 0x20000", sTmo)
        a("s_cbranch_scc1 %s_ok", lbl)
        a("s_cmp_eq_u64 vcc, -1")
        a("s_cbranch_scc1 %s_ok", lbl)
        a("s_sleep 2")
        a("s_branch %s", lbl)
        a.label(lbl + "_ok")

    def next_chunk():
        return [lambda: a("s_add_u32 s%d, s%d, 1", sCh, sCh),
                lambda: a("s_xor_b32 s%d, s%d, s%d", sNxt, sCh, sTB),
                lambda: a("s_and_b32 s%d, s%d, 7", sNxt, sNxt),
                lambda: a("s_mul_i32 s%d, s%d, %d", sNxt, sNxt, 4 * BLK),
                lambda: a("s_add_u32 s%d, s%d, s%d", sNxt, sNxt, sKV)]
    N = (sNxt, sNxt1)
    sched = {
        (0, 1): [("V3a", lambda: kvop("v", 3, N, 0)), ("V3b", lambda: kvop("v", 3, N, 1))],
        (0, 2): [("K0", lambda: kvop("k", 0, N))],
        (0, 3): [("Wa", lambda: a("buffer_load_dwordx4 v%d, %s, s%d offen lds", vG, sr(WO, 4), sGo)), ("Wb", lambda: a("buffer_load_dwordx4 v%d, %s, s%d offen lds", vG, sr(WO, 4), sGo))],
        (1, 1): [("V0a", lambda: kvop("v", 0, N, 0)), ("V0b", lambda: kvop("v", 0, N, 1))],
        (1, 2): [("K1", lambda: kvop("k", 1, N)), ("R0", lambda: kvop("r", 0, N))],
        (2, 1): [("V1a", lambda: kvop("v", 1, N, 0)), ("V1b", lambda: kvop("v", 1, N, 1))],
        (2, 2): [("K2", lambda: kvop("k", 2, N))],
        (3, 1): [("V2a", lambda: kvop("v", 2, N, 0)), ("V2b", lambda: kvop("v", 2, N, 1))],
        (3, 2): [("K3", lambda: kvop("k", 3, N)), ("R1", lambda: kvop("r", 2, N))],
    }
    order = [(k, n) for k in sorted(sched) for (n, _) in sched[k]]
    def younger(name, pos):
        names = [n for _, n in order]
        i = names.index(name); cnt = 0
        while True:
            i = (i + 1) % len(order)
            if order[i][0] == pos or (order[i][0] > pos and (order[i - 1][0] < pos or i == 0)): return cnt
            cnt += 1
    PA, PB, POLLP = env("PA", 4), env("PB", 5), (3, 0)
    def iteration(first):
        for tt in range(4):
            for j in range(4):
                pj, pvb = ((3, (tt - 1) % 4) if j == 0 else (j - 1, tt))
                nj, nkb = (j + 2) % 4, (tt if j < 2 else (tt + 1) % 4)
                slots = [[], [], []]
                lds = [f for _, f in sched.get((tt, j), [])]
                wv = younger("V%db" % tt, (tt, 1)) if j == 0 else None
                k1 = (tt + 1) % 4
                wk = min(younger("K%d" % k1, (tt, 2)), younger("R%d" % (k1 // 2), (tt, 2))) if j == 2 else None
                if first:
                    if 4 * tt + j == PB:
                        a("s_cmp_eq_u32 s%d, 0", sQH)
                        a("s_cbranch_scc1 L_nosig3")
                        a("s_setprio 1")
                        a.label("L_nosig3")
                    if (tt, j) == POLLP:
                        st(6, False)
                        poll("L_poll1", sF1, "s%d" % sMsk, 0x4000, 2)
                        st(7, False)
                        a("s_not_b32 s%d, vcc_lo", sMsk)
                        a("s_mov_b32 s%d, 0", sCh)
                        for f in next_chunk(): f()
                        a("s_add_u32 s%d, s%d, %d", sNxt1, sNxt, BLK)
                        for k in sorted(sched):
                            if (0, 1) < k < POLLP and k != (0, 3):
                                for _, f in sched[k]: f()
                        wo_setup()
                        all8("L_img", 1)
                    if (tt, j) < POLLP: lds = []
                    wv = None
                    if (tt, j) != (3, 2): wk = None
                else:
                    if (tt, j) == (0, 0):
                        nc = next_chunk()
                        slots[0] += nc[0:2]; slots[1] += nc[2:4]
                    if (tt, j) == (0, 1): slots[2] += nc[4:5]
                    if (tt, j) == (0, 2): slots[2].append(lambda: a("s_mov_b32 m0, s%d", sLo))
                    if (tt, j) == (0, 3):
                        slots[0].append(lds[0]); slots[2].append(lds[1]); lds = []
                        slots[1] += [lambda: a("s_add_u32 m0, s%d, 5120", sLo), lambda: a("s_add_u32 s%d, s%d, s%d", sGo, sGo, sGd)]
                    if (tt, j) == (1, 0):
                        slots[0] += [lambda: a("s_add_u32 s%d, s%d, s%d", sGo, sGo, sGs), lambda: a("s_add_u32 s%d, s%d, s%d", sLo, sLo, sLs)]
                        slots[1].append(lambda: a("s_add_u32 s%d, s%d, %d", sNxt1, sNxt, BLK))
                    if (tt, j) == (3, 3): slots[0].append(lambda: a("s_cmp_lt_u32 s%d, 8", sCh))
                if wv is not None: slots[2].append(lambda wv=wv: a("s_waitcnt vmcnt(%d)", wv))
                if wk is not None:
                    slots[0].append(lambda wk=wk: a("s_waitcnt vmcnt(%d)", wk))
                    for i, f in enumerate(lds): slots[1 + i].append(f)
                else:
                    for i, f in enumerate(lds): slots[i].append(f)
                regs = [S + 16 * j + i for i in range(16)]
                def ex4():
                    for _ in range(4): ex(regs.pop(0))
                pv(pj, pvb, 0); [f() for f in slots[0]]; ex4()
                pv(pj, pvb, 1); [f() for f in slots[1]]; ex4()
                qk1(nj, nkb);   [f() for f in slots[2]]; ex4()
                qk2(nj, nkb); ex4()
    iteration(True)
    BLEAD = env("BLEAD", 3)
    a("s_mov_b32 s%d, 3", sTrig)
    if BLEAD:
        a("s_cmp_eq_u32 s%d, 0", sQH)
        a("s_cbranch_scc1 L_nolead")
        a("s_setprio 3")
        a.label("L_nolead")
    st(8, False)
    a.raw(".p2align 6")
    a.label("L_attn")
    a("s_cmp_eq_u32 s%d, s%d", sCh, sTrig)
    a("s_cbranch_scc1 L_mid")
    a.label("L_attn_go")
    iteration(False)
    a("s_cbranch_scc1 L_attn")
    a("ds_write_b128 v231, %s", vr(O + 32, 4))
    pv(3, 3, 0); pv(3, 3, 1)
    st(9, False)
    for q in range(1, 3): a("ds_write_b128 v231, %s offset:%d", vr(O + 32 + 4 * q, 4), q * 1024)
    a("ds_write_b32 v233, v%d offset:%d", O + 32 + 12, 6144)
    a("s_mov_b32 s%d, 0x%x", sT3, f32bits(2.0 ** -30))
    a("s_mov_b32 s%d, 0x%x", sT2, f32bits(2.0 ** 60))
    a("s_mov_b32 s%d, 0", sTmo)
    a("s_nop 5")
    for q in range(3): a("ds_write_b128 v231, %s offset:%d", vr(O + 48 + 4 * q, 4), 3072 + q * 1024)
    a("ds_write_b32 v233, v%d offset:%d", O + 48 + 12, 6400)
    a("ds_write_b32 v227, v228")
    def lds_wait(lbl, word, val, slp=1):
        a("s_mov_b32 s%d, 0", sTmo)
        a.label(lbl)
        a("ds_read_b32 v229, v226 offset:%d", 4 * word)
        a("s_add_u32 s%d, s%d, 1", sTmo, sTmo)
        a("s_waitcnt lgkmcnt(0)")
        a("v_readfirstlane_b32 s%d, v229", sT)
        a("s_cmp_gt_u32 s%d, 0x20000", sTmo)
        a("s_cbranch_scc1 %s_ok", lbl)
        a("s_cmp_ge_u32 s%d, %s", sT, val)
        a("s_cbranch_scc1 %s_ok", lbl)
        a("s_sleep %d", slp)
        a("s_branch %s", lbl)
        a.label(lbl + "_ok")
    if DIAG: a("s_waitcnt lgkmcnt(0)")
    a.label("L_cmb")
    a("ds_read_b32 v229, v226")
    for j in range(2):
        for q in range(3): a("ds_read_b128 %s, v230 offset:%d", vr(S + 16 * j + 4 * q, 4), j * 3072 + q * 1024)
        a("ds_read_b32 v%d, v232 offset:%d", S + 16 * j + 12, 6144 + 256 * j)
    a("s_add_u32 s%d, s%d, 1", sTmo, sTmo)
    a("s_waitcnt lgkmcnt(8)")
    a("v_readfirstlane_b32 s%d, v229", sT)
    a("s_cmp_gt_u32 s%d, 0x20000", sTmo)
    a("s_cbranch_scc1 L_cmb_ok")
    a("s_cmp_eq_u32 s%d, 0", sT)
    a("s_cbranch_scc0 L_cmb_ok")
    a("s_waitcnt lgkmcnt(0)")
    a("s_sleep 1")
    a("s_branch L_cmb")
    a.label("L_cmb_ok")
    a("s_waitcnt lgkmcnt(4)")
    for j in range(2):
        if j: a("s_waitcnt lgkmcnt(0)")
        for i in range(0, 12, 2): a("v_pk_add_f32 %s, %s, %s", vr(O + 16 * j + i, 2), vr(O + 16 * j + i, 2), vr(S + 16 * j + i, 2))
        a("v_add_f32 v%d, v%d, v%d", O + 16 * j + 12, O + 16 * j + 12, S + 16 * j + 12)
    Z = S + 32
    a("v_pk_mul_f32 %s, %s, 0", vr(Z, 2), vr(O, 2))
    a("v_pk_mul_f32 %s, %s, 0", vr(Z + 2, 2), vr(O + 16, 2))
    for i in range(2, 12, 2):
        for j in range(2): a("v_pk_fma_f32 %s, %s, 0, %s", vr(Z + 2 * j, 2), vr(O + 16 * j + i, 2), vr(Z + 2 * j, 2))
    a("v_cmp_le_f32 s[%d:%d], s%d, v%d", sC, sC + 1, sT3, O + 12)
    a("v_cmp_le_f32 s[%d:%d], s%d, v%d", sC2, sC2 + 1, sT3, O + 28)
    a("v_pk_add_f32 %s, %s, %s", vr(Z, 2), vr(Z, 2), vr(Z + 2, 2))
    a("v_cmp_ge_f32 vcc, s%d, v%d", sT2, O + 12)
    a("s_and_b64 s[%d:%d], s[%d:%d], s[%d:%d]", sC, sC + 1, sC, sC + 1, sC2, sC2 + 1)
    a("v_cmp_ge_f32 s[%d:%d], s%d, v%d", sC2, sC2 + 1, sT2, O + 28)
    a("s_and_b64 s[%d:%d], s[%d:%d], vcc", sC, sC + 1, sC, sC + 1)
    a("v_cmp_o_f32 vcc, v%d, v%d", Z, Z + 1)
    a("s_and_b64 s[%d:%d], s[%d:%d], s[%d:%d]", sC, sC + 1, sC, sC + 1, sC2, sC2 + 1)
    a("s_and_b64 s[%d:%d], s[%d:%d], vcc", sC, sC + 1, sC, sC + 1)
    a("s_cmp_eq_u64 s[%d:%d], -1", sC, sC + 1)
    a("s_cbranch_scc0 L_slow")
    a.label("L_fin")
    for j in range(2): a("v_rcp_f32 v%d, v%d", Z + 2 * j, O + 16 * j + 12)
    a("v_mov_b32 v%d, 0", vT1)
    for j in range(2):
        for i in range(0, 12, 2): a("v_pk_mul_f32 %s, %s, %s op_sel_hi:[1,0]", vr(O + 16 * j + i, 2), vr(O + 16 * j + i, 2), vr(Z + 2 * j, 2))
        for i in range(4): a("v_cvt_pk_bf16_f32 v%d, v%d, v%d", S + 4 * j + i, O + 16 * j + 2 * i, O + 16 * j + 2 * i + 1)
        a("buffer_store_dwordx4 %s, v%d, %s, s%d offen offset:%d sc1", vr(S + 4 * j, 4), vL16, srd, sO, j * 1024)
        for i in range(2): a("v_cvt_pk_bf16_f32 v%d, v%d, v%d", S + 8 + 2 * j + i, O + 16 * j + 8 + 2 * i, O + 16 * j + 9 + 2 * i)
    a("buffer_store_dwordx4 %s, v%d, %s, s%d offen sc1", vr(S + 8, 4), vOr, srd, sO)
    st(16, False)
    a("v_mov_b32 v229, 2")
    a("ds_write_b32 v226, v229 offset:12")
    a("s_mul_i32 s%d, s%d, %d", sT, sKH, 6 * 5120)
    a("s_sub_u32 s%d, %d, s%d", sT, 16 * 5120, sT)
    a("v_add_u32 v%d, s%d, v%d", vK, sT, vWa2)
    a("s_waitcnt vmcnt(0)")
    a("buffer_store_dwordx2 %s, off, %s, s%d sc0 sc1", vr(vNon, 2), srd, sF2)
    st(10)
    def wread_ops(s):
        fb = s % 2
        base, blk = (vWa2, 4 * (s // 5) + s % 5) if s % 5 < 4 else (vK, s // 5)
        return ["ds_read_b64_tr_b16 %s, v%d offset:%d" % (vr(WF + 20 * fb + 4 * j + 2 * q, 2), base, blk * 5120 + j * 1024 + q * 256) for j in range(5) for q in range(2)]
    def oloads(s):
        hp0 = 4 * (s // 5)
        if s % 5 < 4:
            return ["s_add_u32 s%d, s%d, %d" % (sNxt, sOc, (hp0 + s % 5) * 2 * OB)] + \
                   ["buffer_load_dwordx4 %s, v%d, %s, s%d offen offset:%d sc1" % (vr(OF + 8 * s + 4 * j, 4), vOa, srd, sNxt, 1024 * j) for j in range(2)]
        return ["s_add_u32 s%d, s%d, %d" % (sNxt, sOc, hp0 * 2 * OB)] + \
               ["buffer_load_dwordx4 %s, v%d, %s, s%d offen offset:%d sc1" % (vr(OF + 8 * s + 4 * e, 4), vOb, srd, sNxt, OB * e) for e in range(2)]
    a("s_waitcnt vmcnt(0)")
    st(11)
    poll("L_poll2", sPend, "0xffff", 0x8000, env("SLP2", 2))
    st(12)
    NL = 10
    a("s_cmp_eq_u32 s%d, 0", sQH)
    a("s_cbranch_scc1 L_aload")
    for s in range(10):
        for x in oloads(s): a(x)
    a.label("L_aback")
    all8("L_wdone", 2)
    st(13)
    for x in wread_ops(0): a(x)
    for s in range(10):
        o = OF + 8 * s
        rd = wread_ops(s + 1) if s < 9 else []
        issued = min(10, NL + s)
        a("s_waitcnt vmcnt(%d) lgkmcnt(0)", 2 * (issued - 1 - s))
        if s % 5 == 4:
            a("v_swap_b32 v%d, v%d", o + 2, o + 4)
            a("v_swap_b32 v%d, v%d", o + 3, o + 5)
            a("s_nop 1")
        n = 0
        for tt in (1, 0):
            for j in range(5):
                d = ACC2 + 4 * (5 * tt + j)
                a("v_mfma_f32_16x16x32_bf16 %s, %s, %s, %s", vr(d, 4), vr(WF + 20 * (s % 2) + 4 * j, 4), vr(o + 4 * tt, 4), vr(d, 4) if s else "0")
                n += 1
                for _ in range(2):
                    if rd: a(rd.pop(0))
                if n == 6 and NL + s < 10:
                    a("s_cmp_eq_u32 s%d, 0", sQH)
                    a("s_cbranch_scc1 L_nold%d", s)
                    for x in oloads(NL + s): a(x)
                    a.label("L_nold%d" % s)
    st(14, False)
    a("s_mov_b32 s%d, 0", sTmo)
    a("s_cmp_eq_u32 s%d, 0", sKH)
    a("s_cbranch_scc0 L_x1")
    OSC = os.environ.get("OSC", "")
    for kq in range(2):
        keep, send = ACC2 + 20 * kq, ACC2 + 20 * (1 - kq)
        if kq:
            a.label("L_x1")
            a("s_nop 5")
        for q in range(5): a("ds_write_b128 v230, %s offset:%d", vr(send + 4 * q, 4), q * 1024)
        a("ds_write_b32 v227, v228 offset:8")
        if DIAG: a("s_waitcnt lgkmcnt(0)")
        a.label("L_xch%d" % kq)
        a("ds_read_b32 v229, v226 offset:8")
        for q in range(5): a("ds_read_b128 %s, v231 offset:%d", vr(WF + 4 * q, 4), q * 1024)
        a("s_add_u32 s%d, s%d, 1", sTmo, sTmo)
        a("s_waitcnt lgkmcnt(5)")
        a("v_readfirstlane_b32 s%d, v229", sT)
        a("s_cmp_gt_u32 s%d, 0x20000", sTmo)
        a("s_cbranch_scc1 L_xok%d", kq)
        a("s_cmp_eq_u32 s%d, 0", sT)
        a("s_cbranch_scc0 L_xok%d", kq)
        a("s_waitcnt lgkmcnt(0)")
        a("s_branch L_xch%d", kq)
        a.label("L_xok%d" % kq)
        for q in range(5):
            a("s_waitcnt lgkmcnt(%d)", 4 - q)
            for h in range(2): a("v_pk_add_f32 %s, %s, %s", vr(keep + 4 * q + 2 * h, 2), vr(keep + 4 * q + 2 * h, 2), vr(WF + 4 * q + 2 * h, 2))
            for h in range(2): a("v_cvt_pk_bf16_f32 v%d, v%d, v%d", WF + 20 + 2 * q + h, keep + 4 * q + 2 * h, keep + 4 * q + 2 * h + 1)
            a("buffer_store_dwordx2 %s, v%d, %s, s%d offen offset:%d %s", vr(WF + 20 + 2 * q, 2), vSt, sr(OUT, 4), sPub, 32 * q, OSC)
        if not kq and env("WB", 0):
            a("s_cmp_eq_u32 s%d, 0", sW)
            a("s_cbranch_scc0 L_xdone")
            a("s_waitcnt vmcnt(0)")
            a("buffer_wbl2 sc1")
        if not kq: a("s_branch L_xdone") if DIAG else a("s_endpgm")
    a.label("L_xdone")
    st(15)
    a.label("L_exit")
    st.flush(sW)
    a.label("L_end")
    a("s_endpgm")
    a.label("L_mid")
    a("s_add_u32 s%d, s%d, 1", sTrig, sTrig)
    a("s_cmp_eq_u32 s%d, 3", sCh)
    a("s_cbranch_scc0 L_mid2")
    a("s_lshl_b32 s%d, s%d, 1", sT3, sTB)
    a("s_add_u32 s%d, s%d, s%d", sT3, sT3, sQH)
    a("s_lshl_b32 s%d, s%d, 1", sT3, sT3)
    a("s_add_u32 s%d, s%d, s%d", sT3, sT3, sHH)
    a("s_lshl_b32 s%d, s%d, 5", sT2, sB)
    a("s_add_u32 s%d, s%d, s%d", sT2, sT2, sT3)
    a("s_lshl_b32 s%d, s%d, 1", sT2, sT2)
    a("s_add_u32 s%d, s%d, s%d", sT2, sT2, sKH)
    a("s_mul_i32 s%d, s%d, %d", sOc, sT2, 16 * OB)
    a("s_add_u32 s%d, s%d, %d", sOc, sOc, O_OFF)
    a("s_lshl_b32 s%d, s%d, 11", sT2, sT2)
    a("s_add_u32 s%d, s%d, %d", sPend, sT2, F2_OFF)
    a("s_lshl_b32 s%d, s%d, 1", sT3, sT3)
    a("s_add_u32 s%d, s%d, s%d", sT3, sT3, sKH)
    a("s_lshl_b32 s%d, s%d, 2", sT3, sT3)
    a("s_add_u32 s%d, s%d, s%d", sT3, sT3, sE)
    a("s_mul_i32 s%d, s%d, %d", sPub, sT3, 8 * 2560)
    a("s_mul_i32 s%d, s%d, 1280", sT2, sB)
    a("s_add_u32 s%d, s%d, s%d", sPub, sPub, sT2)
    a("s_and_b32 s%d, s%d, 7", sT2, sHP)
    a("s_mul_i32 s%d, s%d, 160", sT2, sT2)
    a("s_add_u32 s%d, s%d, s%d", sPub, sPub, sT2)
    a("s_cmp_eq_u32 s%d, 0", sMsk)
    a("s_cbranch_scc1 L_poll3_ok")
    poll("L_poll3", sF1, "-1", 0x4000, 2)
    a("v_lshlrev_b32 v%d, 7, v%d", vT2, vLane)
    a("v_lshl_or_b32 v%d, v%d, 29, v%d", vFl, vT4, vT2)
    a.label("L_mid2")
    a("s_cmp_eq_u32 s%d, 0", sQH)
    a("s_cselect_b32 s%d, 0, s%d", sTrig, sTrig)
    a("s_cbranch_scc1 L_attn_go")
    a("s_cmp_eq_u32 s%d, %d", sCh, max(BLEAD + 1, 3))
    a("s_cbranch_scc0 L_mid3")
    a("s_setprio 1")
    a.label("L_mid3")
    a("s_cmp_eq_u32 s%d, 5", sCh)
    a("s_cbranch_scc0 L_attn_go")
    a("s_mov_b32 s%d, 0", sTrig)
    a("s_cmp_lt_u32 s%d, 5", sW)
    a("s_cbranch_scc1 L_attn_go")
    a("s_sub_u32 s%d, 0, s%d", sGs, sGd)
    a("s_mov_b32 s%d, 0", sLs)
    a("s_branch L_attn_go")
    a.label("L_aload")
    for s_ in range(10):
        for x in oloads(s_): a(x)
        a("s_waitcnt vmcnt(%d)", env("AW", 0))
    a("s_setprio 0")
    a("s_branch L_aback")
    a.label("L_slow")
    C = S + 32
    MX = O + 32
    a("s_waitcnt vmcnt(0)")
    a("s_mul_i32 s%d, s%d, %d", sT, sKH, 2 * BLK)
    a("s_sub_u32 s%d, s%d, s%d", sKV, sKV, sT)
    a("s_mov_b32 s%d, s%d", sCur, sKV)
    a("s_add_u32 s%d, s%d, %d", sCh, sKV, KV_PAIR)
    a("v_mov_b32 v%d, 0xff800000", MX)
    a("v_mov_b32 v%d, 0xff800000", MX + 1)
    P = (sCur, sCur)
    a.label("L_slow1")
    kvop("k", 0, P); kvop("k", 1, P); kvop("r", 0, P)
    a("s_waitcnt vmcnt(0)")
    for b in range(2):
        qk1(0, b); qk2(0, b); qk1(1, b); qk2(1, b)
        a("s_nop 15")
        for j in range(2):
            for i in range(8): a("v_max3_f32 v%d, v%d, v%d, v%d", MX + j, MX + j, S + 16 * j + 2 * i, S + 16 * j + 2 * i + 1)
    a("s_add_u32 s%d, s%d, %d", sCur, sCur, BLK)
    a("s_cmp_lt_u32 s%d, s%d", sCur, sCh)
    a("s_cbranch_scc1 L_slow1")
    for j in range(2):
        a("v_mov_b32 v%d, v%d", vT1, MX + j)
        a("s_nop 1")
        a("v_permlane32_swap_b32 v%d, v%d", vT1, MX + j)
        a("s_nop 1")
        a("v_max_f32 v%d, v%d, v%d", vT1, vT1, MX + j)
        for i in range(16): a("v_sub_f32 v%d, 0, v%d", C + 16 * j + i, vT1)
    for i in range(32): a("v_mov_b32 v%d, 0", O + i)
    a("s_mov_b32 s%d, s%d", sCur, sKV)
    a.label("L_slow2")
    kvop("k", 0, P); kvop("k", 1, P); kvop("r", 0, P)
    for b in range(2):
        kvop("v", b, P, 0); kvop("v", b, P, 1)
    a("s_waitcnt vmcnt(0)")
    for b in range(2):
        for j in range(2):
            a("v_mfma_f32_32x32x16_bf16 %s, %s, %s, %s", vr(S + 16 * j, 16), vr(Km + 4 * b, 4), vr(Qm + 4 * j, 4), vr(C + 16 * j, 16))
            qk2(j, b)
        a("s_nop 15")
        for i in range(32): ex(S + i)
        a("s_nop 1")
        for j in range(2):
            pv(j, b, 0); pv(j, b, 1)
    a("s_add_u32 s%d, s%d, %d", sCur, sCur, BLK)
    a("s_cmp_lt_u32 s%d, s%d", sCur, sCh)
    a("s_cbranch_scc1 L_slow2")
    a("s_nop 15")
    a("s_branch L_fin")
    a.label("L_code_end")
    return name, NFV, 163840

def gen_spin(a):
    name = "spin_kernel"
    kernel_head(a, name)
    wa, ia, wb, ib, mult, off = [int(x) for x in SPIN.split(",")]
    a("s_cmp_ge_u32 s2, 1")
    a("s_cbranch_scc1 L_spin_end")
    a("s_load_dwordx2 s[4:5], s[0:1], 64")
    a("s_waitcnt lgkmcnt(0)")
    a("s_add_u32 s4, s4, %d", DIAG_OFF)
    a("s_addc_u32 s5, s5, 0")
    if wa >= 0:
        a("v_mov_b32 v1, %d", 4 * ia + 128 * (16 * 8 + wa))
        a("v_mov_b32 v2, %d", 4 * ib + 128 * (16 * 8 + wb))
        a("global_load_dword v3, v1, s[4:5]")
        a("global_load_dword v4, v2, s[4:5]")
        a("s_waitcnt vmcnt(0)")
        a("v_sub_u32 v3, v4, v3")
        a("s_nop 1")
        a("v_readfirstlane_b32 s8, v3")
    else:
        a("v_lshlrev_b32 v1, 11, v0")
        a("v_mov_b32 v2, 0")
        a("global_load_dword v7, v2, s[4:5]")
        for k in range(4):
            a("global_load_dword v%d, v1, s[4:5] offset:%d", 8 + k, 4 * ia + (0 if wa == -1 else 128 * wb))
            a("global_load_dword v%d, v1, s[4:5] offset:%d", 12 + k, 4 * ib + 128 * wb)
            a("v_add_u32 v1, %d, v1", 64 * 2048)
        a("s_waitcnt vmcnt(0)")
        for k in range(8): a("v_sub_u32 v%d, v%d, v7", 8 + k, 8 + k)
        op = "min" if wa == -1 else "max"
        for k in range(1, 4):
            a("v_%s_i32 v8, v8, v%d", op, 8 + k)
            a("v_max_i32 v12, v12, v%d", 12 + k)
        a("s_nop 1")
        a("v_readlane_b32 s20, v8, 0")
        a("v_readlane_b32 s21, v12, 0")
        for l in range(1, 64):
            a("v_readlane_b32 s22, v8, %d", l)
            a("v_readlane_b32 s23, v12, %d", l)
            a("s_%s_i32 s20, s20, s22", op)
            a("s_max_i32 s21, s21, s23")
        a("s_sub_u32 s8, s21, s20")
    a("s_memrealtime s[10:11]")
    a("s_nop 3")
    a("s_max_u32 s8, s8, %d", off)
    a("s_sub_u32 s8, s8, %d", off)
    a("s_min_u32 s8, s8, 20000")
    a("s_mul_i32 s8, s8, %d", mult)
    a("s_waitcnt lgkmcnt(0)")
    a.label("L_spin")
    a("s_memrealtime s[12:13]")
    a("s_waitcnt lgkmcnt(0)")
    a("s_sub_u32 s14, s12, s10")
    a("s_cmp_lt_u32 s14, s8")
    a("s_cbranch_scc1 L_spin")
    a.label("L_spin_end")
    a("s_endpgm")
    return name, 16, 0

def main(out):
    a = A()
    ks = []
    for g, blk in ((gen_fused, 512),) + (((gen_spin, 64),) if SPIN else ()):
        n, nfv, lds = g(a)
        ks.append((n, nfv, lds, blk))
    hdr = "; Two independent MHA blocks (S=2048, D=640, H=32, Dh=20), concatenated on the last axis; one fused kernel.\n"
    hdr += "; kernarg: 0 A_x, 8 A_wqkv, 16 A_wo, 24 B_x, 32 B_wqkv, 40 B_wo, 48 out, 56 debug, 64 ws\n"
    if len(ks) == 1 and not env("LIST", 0):
        hdr += "; @launch grid=(256,1,1) block=(%d,1,1) lds=%d\n" % (ks[0][3], ks[0][2])
    else:
        for n, nfv, lds, blk in ks:
            hdr += "; @launch kernel=%s grid=(256,1,1) block=(%d,1,1) lds=%d\n" % (n, blk, lds)
    s = hdr + '.amdgcn_target "amdgcn-amd-amdhsa--gfx950"\n.text\n' + a.text()
    s += '.section .rodata,"a"\n'
    for n, nfv, lds, blk in ks: s += kd(n, nfv)
    open(out, "w").write(s)

if __name__ == "__main__":
    main(sys.argv[1] if len(sys.argv) > 1 else "cdna_kernels/%s.s" % NAME)
```

```python
import math, struct, sys, os

NAME = "concat_heads__mha_block__softmax_full_mha__prompt"
BLK = 12288
KV_PAIR = 32 * BLK
KV_OFF = 0
OB = 2560
O_OFF = KV_OFF + 32 * KV_PAIR
O_BYTES = 32 * 32 * OB
F1_OFF = O_OFF + 2 * O_BYTES
F2_OFF = F1_OFF + 128 * 1024
WS_USED = F2_OFF + 2048 * 128
CSCALE = math.log2(math.e) / math.sqrt(20.0)
OOB = 0x40000000
DIAG = int(os.environ.get("DIAG", "0"))
DIAG_OFF = 64 << 20
def env(n, d): return int(os.environ.get(n, str(d)))
NT = env("NT", 0)
SKEW = env("SKEW", 2)
HELP = env("HELP", 1)
SPIN = os.environ.get("SPIN", "")

def f32bits(x): return struct.unpack("<I", struct.pack("<f", x))[0]

class A:
    def __init__(self): self.l = []
    def __call__(self, s, *a): self.l.append("    " + (s % a if a else s))
    def label(self, s): self.l.append(s + ":")
    def raw(self, s): self.l.append(s)
    def c(self, s): self.l.append("    ; " + s)
    def text(self): return "\n".join(self.l) + "\n"

def vr(b, n): return "v[%d:%d]" % (b, b + n - 1) if n > 1 else "v%d" % b
def sr(b, n): return "s[%d:%d]" % (b, b + n - 1) if n > 1 else "s%d" % b

def kernel_head(a, name):
    a.raw(".globl %s" % name); a.raw(".p2align 8"); a.raw(".type %s,@function" % name); a.label(name)

def kd(name, nfv, nsg=100):
    acc = (nfv + 3) // 4 * 4
    return """.p2align 6
.amdhsa_kernel %s
  .amdhsa_next_free_vgpr %d
  .amdhsa_next_free_sgpr %d
  .amdhsa_accum_offset %d
  .amdhsa_group_segment_fixed_size 0
  .amdhsa_kernarg_size 72
  .amdhsa_user_sgpr_count 2
  .amdhsa_user_sgpr_kernarg_segment_ptr 1
  .amdhsa_system_sgpr_workgroup_id_x 1
.end_amdhsa_kernel
""" % (name, nfv, nsg, acc)

class Stamps:
    def __init__(self, a):
        self.a = a
        if DIAG:
            for i in range(62, 100): a("s_mov_b32 s%d, 0", i)
            a("s_memrealtime s[60:61]")
    def __call__(self, i, wait=True):
        if not DIAG: return
        if DIAG == 1: self.a("s_memrealtime s[%d:%d]", 64 + 2 * i, 65 + 2 * i)
        else: self.a("s_memtime s[%d:%d]", 64 + 2 * i, 65 + 2 * i)
        if wait: self.a("s_waitcnt lgkmcnt(0)")
    def flush(self, swave):
        if not DIAG: return
        a = self.a
        a("s_mov_b64 exec, -1")
        a("s_waitcnt vmcnt(0)")
        self(17)
        a("s_memrealtime s[62:63]")
        a("s_load_dwordx2 s[56:57], s[0:1], 64")
        a("s_lshl_b32 s58, s2, 4")
        a("s_add_u32 s58, s58, s%d", swave)
        a("s_lshl_b32 s58, s58, 7")
        a("s_add_u32 s58, s58, %d", DIAG_OFF)
        a("v_mov_b32 v1, s58")
        a("s_waitcnt lgkmcnt(0)")
        for i in range(20):
            a("v_mov_b32 v2, s%d", 60 + 2 * i)
            a("global_store_dword v1, v2, s[56:57] offset:%d", 4 * i)
        a("s_waitcnt vmcnt(0)")

def gen_fused(a):
    name = NAME + "_kernel"
    kernel_head(a, name)
    WS, XS, WSRD = 8, 12, 16
    sNon = 20
    sB, sTB, sHP, sHH, sW, sE, sKH, sQH = 22, 23, 24, 25, 26, 27, 28, 29
    sT, sT2, sT3 = 30, 31, 32
    sXoff, sWoff, sM0x, sM0w, sIt, sDX, sDW, sSlot, sSx, sSw = 33, 34, 35, 36, 37, 38, 39, 40, 41, 42
    sNxt, sNxt1, sCh, sR, sTmo, sCur = 33, 34, 35, 36, 38, 39
    sDbg = 44
    sC, sC2 = 46, 48
    sKV, sPub, sF1, sO, sF2, sMsk = 50, 51, 52, 53, 54, 55
    sOc, sPend, sTrig = 40, 41, 43
    sLd, sGx = 3, 34
    sGo, sLo, sGs, sLs, sGd = 36, 37, 42, 44, 45
    WO, OUT = WSRD, XS
    ACC2, WF, OF = 16, 56, 96
    PART = 176
    vOa, vOb, vWa2, vWa3, vSt = 216, 217, 218, 219, 220
    srd = sr(WS, 4)
    vLane, vM, vH, vT1, vT2, vT3, vT4 = 1, 2, 3, 4, 5, 6, 7
    vK, vKr, vV, vIdx, vFl, vL16, vOr, vS1 = 8, 9, 10, 11, 12, 13, 14, 15
    vG, vGb, vFo, vAr = 0, 2, 3, 15
    vNon, vTch = 252, 255
    vXg, vWg, vXa, vWa = 80, 84, 86, 88
    vG0, vG1, vL0, vL1, vSc, vOne = 243, 244, 245, 246, 248, 249
    vRk, vRr, vRv = 247, 250, 251
    F, ACC = 16, 92
    Qm, Qr, Km, Kr, V, S, O = 16, 48, 64, 72, 76, 92, 156
    NFV = 256
    WBASE = 98304
    LFLAG, WOB = 0, 1024
    CMB = WOB + 102400
    IMG = 1024

    a("s_cmp_ge_u32 s2, 256")
    a("s_cbranch_scc1 L_end")
    st = Stamps(a)
    a("s_bfe_u32 s%d, s2, 0x10002", sB)
    a("s_mul_i32 s%d, s%d, 24", sT, sB)
    a("s_load_dwordx4 s[4:7], s[0:1], s%d", sT)
    a("s_load_dwordx2 s[%d:%d], s[0:1], 64", WS, WS + 1)
    a("s_load_dwordx2 s[%d:%d], s[0:1], 56", sDbg, sDbg + 1)
    a("s_add_u32 s%d, s%d, 16", sT, sT)
    a("s_load_dwordx2 s[56:57], s[0:1], s%d", sT)
    a("s_load_dwordx2 s[58:59], s[0:1], 48")
    a("s_memrealtime s[%d:%d]", sNon, sNon + 1)
    a("v_lshrrev_b32 v%d, 6, v0", vT1)
    a("v_and_b32 v%d, 63, v0", vLane)
    a("v_readfirstlane_b32 s%d, v%d", sW, vT1)
    a("s_bfe_u32 s%d, s2, 0x10001", sTB)
    a("s_lshl_b32 s%d, s%d, 2", sTB, sTB)
    a("s_bfe_u32 s%d, s2, 0x20003", sT)
    a("s_or_b32 s%d, s%d, s%d", sTB, sTB, sT)
    a("s_and_b32 s%d, s2, 1", sHH)
    a("s_lshl_b32 s%d, s%d, 3", sHP, sHH)
    a("s_lshr_b32 s%d, s2, 5", sT)
    a("s_or_b32 s%d, s%d, s%d", sHP, sHP, sT)
    a("s_lshr_b32 s%d, s2, 7", sT)
    a("s_xor_b32 s%d, s%d, s%d", sHP, sHP, sT)
    a("s_and_b32 s%d, s%d, 1", sE, sW)
    a("v_lshrrev_b32 v%d, 3, v0", vT1)
    a("s_mul_i32 s%d, s%d, 24", sT, sW)
    a("v_add_u32 v%d, s%d, v%d", vT1, sT, vT1)
    a("v_mul_u32_u24 v%d, 1280, v%d", vT1, vT1)
    a("v_lshrrev_b32 v%d, 4, v%d", vT4, vLane)
    a("v_and_b32 v%d, 7, v%d", vT3, vLane)
    a("v_xor_b32 v%d, v%d, v%d", vT2, vT4, vT3)
    a("v_xor_b32 v%d, 4, v%d", vT3, vT2)
    a("v_lshl_add_u32 v%d, v%d, 4, v%d", vXg + 0, vT2, vT1)
    a("v_lshl_add_u32 v%d, v%d, 4, v%d", vXg + 1, vT3, vT1)
    a("v_add_u32 v%d, %d, v%d", vXg + 1, 8 * 1280 - 1024, vXg + 1)
    a("v_add_u32 v%d, %d, v%d", vXg + 2, 16 * 1280 - 2048, vXg + 0)
    a("v_add_u32 v%d, %d, v%d", vXg + 3, 16 * 1280 - 2048, vXg + 1)
    TAB = [0, 3, 1, 4, 5, 8, 6, 9, 2, 7, 10, 11, 13, 14, 12, 15]
    tab = sum(v << (4 * i) for i, v in enumerate(TAB))
    a("s_lshl_b32 s%d, s%d, 3", sT, sE)
    a("v_lshl_add_u32 v%d, v%d, 1, s%d", vT2, vT4, sT)
    a("v_and_b32 v%d, 15, v%d", vM, vLane)
    a("v_xor_b32 v%d, v%d, v%d", vT2, vT2, vM)
    a("v_lshlrev_b32 v%d, 2, v%d", vT2, vT2)
    a("s_mov_b32 s%d, 0x%x", sC, tab & 0xffffffff)
    a("s_mov_b32 s%d, 0x%x", sC + 1, tab >> 32)
    a("v_lshrrev_b64 v[16:17], v%d, s[%d:%d]", vT2, sC, sC + 1)
    a("v_and_b32 v%d, 15, v16", vT2)
    a("s_lshl_b32 s%d, s%d, 3", sT, sW)
    a("v_add_u32 v%d, s%d, v%d", vT1, sT, vT4)
    a("v_mul_u32_u24 v%d, 3840, v%d", vT1, vT1)
    a("v_mul_u32_u24 v%d, 13, v%d", vT3, vT2)
    a("v_lshrrev_b32 v%d, 6, v%d", vT3, vT3)
    a("v_mul_u32_u24 v%d, %d, v%d", vT3, 1280 - 80, vT3)
    a("v_cmp_eq_u32 vcc, 15, v%d", vT2)
    a("v_lshl_add_u32 v%d, v%d, 4, v%d", vT2, vT2, vT3)
    a("v_mov_b32 v%d, 0x%x", vS1, OOB)
    if HELP:
        a("s_and_b32 s%d, s%d, 7", sT, sHP)
        a("s_mov_b32 s%d, 0x%x", sT2, OOB)
        for hp, sec in ((0, 0), (2, 1), (5, 2)):
            a("s_cmp_eq_u32 s%d, %d", sT, hp)
            a("s_cselect_b32 s%d, %d, s%d", sT2, sec * 1280 + 256 - 80 * hp + (HELP - 1) * 64 * 3840, sT2)
        a("s_bfe_u32 s%d, s%d, 0x10001", sT, sTB)
        a("v_lshrrev_b32 v%d, 1, v%d", vT3, vT4)
        a("v_cmp_eq_u32 s[%d:%d], s%d, v%d", sC, sC + 1, sT, vT3)
        a("v_mov_b32 v%d, s%d", vT3, sT2)
        a("s_nop 0")
        a("v_cndmask_b32 v%d, v%d, v%d, s[%d:%d]", vT3, vS1, vT3, sC, sC + 1)
        a("v_cndmask_b32 v%d, v%d, v%d, vcc", vT2, vT2, vT3)
    else:
        a("v_cndmask_b32 v%d, v%d, v%d, vcc", vT2, vT2, vS1)
    a("v_add_u32 v%d, v%d, v%d", vWg + 0, vT1, vT2)
    a("v_add_u32 v%d, %d, v%d", vWg + 1, 4 * 3840 - 1024, vWg + 0)
    a("s_lshr_b32 s%d, s%d, 1", sT, sW)
    a("s_mul_i32 s%d, s%d, 24576", sM0x, sT)
    a("s_lshl_b32 s%d, s%d, 12", sT, sE)
    a("s_add_u32 s%d, s%d, s%d", sM0x, sM0x, sT)
    a("s_lshl_b32 s%d, s%d, 11", sM0w, sW)
    a("s_add_u32 s%d, s%d, %d", sM0w, sM0w, WBASE)
    a("s_mov_b32 s%d, %d", XS + 2, 256 * 1280)
    a("s_mov_b32 s%d, 0x20000", XS + 3)
    a("s_mov_b32 s%d, 0x20000", WSRD + 3)
    if SKEW:
        a("s_xor_b32 s%d, s%d, s%d", sT, sTB, sHP)
        a("s_and_b32 s%d, s%d, 1", sT, sT)
        a("s_mul_i32 s%d, s%d, 5", sT, sT)
        if SKEW > 1:
            a("s_lshr_b32 s%d, s2, 1", sT2)
            a("s_xor_b32 s%d, s%d, s2", sT2, sT2)
            a("s_and_b32 s%d, s%d, 1", sT2, sT2)
            a("s_mul_i32 s%d, s%d, %d", sT2, sT2, SKEW)
            a("s_add_u32 s%d, s%d, s%d", sT, sT, sT2)
        FOL = env("FOL", 1)
        if FOL:
            a("s_bfe_u32 s%d, s2, 0x10005", sT2)
            a("s_mul_i32 s%d, s%d, %d", sT2, sT2, 10 - FOL)
            a("s_add_u32 s%d, s%d, s%d", sT, sT, sT2)
            a("s_cmp_ge_u32 s%d, 10", sT)
            a("s_cselect_b32 s%d, 10, 0", sT2)
            a("s_sub_u32 s%d, s%d, s%d", sT, sT, sT2)
        a("s_lshl_b32 s%d, s%d, 7", sXoff, sT)
        a("s_mul_i32 s%d, s%d, %d", sWoff, sT, 64 * 3840)
    else:
        a("s_mov_b32 s%d, 0", sXoff)
        a("s_mov_b32 s%d, 0", sWoff)
    a("s_mul_i32 s%d, s%d, %d", sT, sTB, 256 * 1280)
    a("s_mul_i32 s%d, s%d, 80", sT2, sHP)
    a("s_sub_u32 s%d, %d, s%d", WSRD + 2, 640 * 3840, sT2)
    a("s_waitcnt lgkmcnt(0)")
    a("s_add_u32 s%d, s4, s%d", XS, sT)
    a("s_addc_u32 s%d, s5, 0", XS + 1)
    a("s_add_u32 s%d, s6, s%d", WSRD, sT2)
    a("s_addc_u32 s%d, s7, 0", WSRD + 1)

    ntx = " nt" if NT & 1 else ""
    ntw = " nt" if NT & 2 else ""
    def dma_ops(slot_x, slot_w):
        ops = []
        def x(i):
            if i == 0:
                a("s_add_u32 m0, s%d, %s", sM0x, slot_x); a("s_nop 0")
            a("buffer_load_dwordx4 v%d, %s, s%d offen offset:%d%s lds", vXg + i, sr(XS, 4), sXoff, 1024 * i, ntx)
        def w(i):
            if i == 0:
                a("s_add_u32 m0, s%d, %s", sM0w, slot_w)
                a("s_add_u32 s%d, s%d, %d", sXoff, sXoff, 0 if env("NOADV", 0) & 1 else 128)
            a("buffer_load_dwordx4 v%d, %s, s%d offen offset:%d%s lds", vWg + i, sr(WSRD, 4), sWoff, 1024 * i, ntw)
            if i == 1:
                a("s_add_u32 s%d, s%d, %d", sWoff, sWoff, 0 if env("NOADV", 0) & 2 else 64 * 3840)
                if SKEW:
                    a("s_cmp_eq_u32 s%d, 1280", sXoff)
                    a("s_cselect_b32 s%d, 0, s%d", sXoff, sXoff)
                    a("s_cselect_b32 s%d, 0, s%d", sWoff, sWoff)
        for i in range(4): ops.append(lambda i=i: x(i))
        for i in range(2): ops.append(lambda i=i: w(i))
        return ops
    for op in dma_ops("0", "0"): op()
    a("s_bfe_u32 s%d, s%d, 0x10001", sKH, sW)
    a("s_lshr_b32 s%d, s%d, 2", sQH, sW)
    a("s_mov_b32 s%d, %d", WS + 2, WS_USED)
    a("s_mov_b32 s%d, 0x20000", WS + 3)
    a("s_and_b32 s%d, s%d, 3", sT3, sW)
    a("v_lshrrev_b32 v%d, 1, v%d", vT1, vM)
    a("v_xor_b32 v%d, v%d, v%d", vT1, vT1, vT4)
    a("s_mul_i32 s%d, s%d, 24576", sT, sT3)
    a("v_lshl_add_u32 v%d, v%d, 7, s%d", vT2, vM, sT)
    a("v_lshl_add_u32 v%d, v%d, 4, v%d", vXa, vT1, vT2)
    a("v_xor_b32 v%d, 64, v%d", vXa + 1, vXa)
    a("v_bfe_u32 v%d, v%d, 2, 2", vT1, vLane)
    a("v_lshl_add_u32 v%d, v%d, 3, v%d", vT2, vT4, vT1)
    a("v_lshlrev_b32 v%d, 8, v%d", vT2, vT2)
    a("v_and_b32 v%d, 3, v%d", vT3, vLane)
    a("v_lshl_add_u32 v%d, v%d, 3, v%d", vT2, vT3, vT2)
    a("v_add_u32 v%d, %d, v%d", vT2, WBASE, vT2)
    a("v_bfe_u32 v%d, v%d, 2, 3", vT1, vLane)
    a("s_lshl_b32 s%d, s%d, 2", sT, sQH)
    a("v_xor_b32 v%d, s%d, v%d", vT1, sT, vT1)
    a("v_lshl_add_u32 v%d, v%d, 5, v%d", vWa, vT1, vT2)
    for xt in range(1, 4): a("v_xor_b32 v%d, %d, v%d", vWa + xt, 32 * xt, vWa)
    mark = len(a.l)
    a("v_lshlrev_b32 v%d, 4, v%d", vL16, vLane)
    a("s_lshl_b32 s%d, s%d, 14", sT, sT3)
    a("s_add_u32 s%d, s%d, %d", sT, sT, IMG)
    a("v_add_u32 v%d, s%d, v%d", vL0, sT, vL16)
    a("v_cmp_lt_u32 vcc, 1, v%d", vT4)
    a("v_lshlrev_b32 v%d, 3, v%d", vT1, vLane)
    a("v_add_u32 v%d, 4096, v%d", vT1, vT1)
    a("v_mov_b32 v%d, 0x%x", vT2, f32bits(CSCALE))
    a("v_cndmask_b32 v%d, v%d, v%d, vcc", vG0, vS1, vT1)
    a("v_cndmask_b32 v%d, v%d, 1.0, vcc", vSc, vT2)
    a("v_and_b32 v%d, 4, v%d", vT1, vM)
    a("v_and_b32 v%d, 8, v%d", vT2, vM)
    a("v_lshlrev_b32 v%d, 5, v%d", vT1, vT1)
    a("v_lshl_add_u32 v%d, v%d, 3, v%d", vT1, vT2, vT1)
    a("v_and_b32 v%d, 0x330, v%d", vT2, vL16)
    a("v_add_u32 v%d, v%d, v%d", vT1, vT1, vT2)
    a("v_add_u32 v%d, 6144, v%d", vG1, vT1)
    a("v_add_u32 v%d, s%d, v%d", vL1, sT, vG1)
    if not env("PEEL", 1):
        for i in range(64): a("v_mov_b32 v%d, 0", ACC + i)
    a("v_and_b32 v%d, 11, v%d", vT1, vM)
    a("v_cmp_eq_u32 vcc, 8, v%d", vT1)
    a("v_mov_b32 v%d, 0x3f803f80", vT1)
    a("v_and_b32 v%d, 31, v0", vM)
    a("v_cndmask_b32 v%d, 0, v%d, vcc", vOne, vT1)
    a("v_bfe_u32 v%d, v0, 5, 1", vH)
    for i in range(O, 243): a("v_mov_b32 v%d, 0", i)
    a("v_mov_b32 v%d, 0xdddddddd", vIdx)
    a("v_and_b32 v%d, 4, v%d", vT1, vM)
    a("v_lshlrev_b32 v%d, 8, v%d", vT1, vT1)
    a("v_and_b32 v%d, 24, v%d", vT2, vM)
    a("v_lshl_add_u32 v%d, v%d, 3, v%d", vT1, vT2, vT1)
    a("v_and_b32 v%d, 3, v%d", vT2, vM)
    a("v_lshl_add_u32 v%d, v%d, 4, v%d", vT1, vT2, vT1)
    a("s_lshl_b32 s%d, s%d, 9", sT, sQH)
    a("v_lshl_add_u32 v%d, v%d, 8, s%d", vT2, vH, sT)
    a("v_add_u32 v%d, v%d, v%d", vK, vT1, vT2)
    a("s_lshl_b32 s%d, s%d, 14", sC, sT3)
    a("v_add_u32 v%d, s%d, v%d", vRk, sC, vK)
    a("s_lshl_b32 s%d, s%d, 8", sT, sQH)
    a("s_add_u32 s%d, s%d, s%d", sT, sT, sC)
    a("v_add_u32 v%d, s%d, v%d", vRr, sT, vT1)
    a("s_lshl_b32 s%d, s%d, 7", sT, sQH)
    a("s_add_u32 s%d, s%d, %d", sT, sT, 4096 + 256)
    a("v_lshrrev_b32 v%d, 1, v%d", vT1, vT1)
    a("v_cmp_eq_u32 vcc, 0, v%d", vH)
    a("v_add_u32 v%d, s%d, v%d", vT1, sT, vT1)
    a("v_add_u32 v%d, 2048, v%d", vT3, vL16)
    a("v_cndmask_b32 v%d, v%d, v%d, vcc", vKr, vS1, vT1)
    a("v_cndmask_b32 v%d, v%d, v%d, vcc", vOr, vS1, vT3)
    a("v_and_b32 v%d, 14, v%d", vT2, vLane)
    a("v_mul_u32_u24 v%d, 56, v%d", vT2, vT2)
    a("v_lshl_add_u32 v%d, v%d, 3, v%d", vT2, vLane, vT2)
    a("v_lshl_or_b32 v%d, v%d, 29, v%d", vFl, vT4, vT2)
    a("v_min_u32 v%d, 21, v%d", vT1, vM)
    a("v_lshlrev_b32 v%d, 4, v%d", vT1, vT1)
    a("v_lshl_add_u32 v%d, v%d, 8, v%d", vT1, vH, vT1)
    a("s_lshl_b32 s%d, s%d, 10", sT, sQH)
    a("s_add_u32 s%d, s%d, 6144", sT, sT)
    a("s_lshl_b32 s%d, s%d, 7", sT2, sQH)
    a("s_add_u32 s%d, s%d, %d", sT2, sT2, 6144 + 2048 - 256)
    a("v_cmp_gt_u32 vcc, 16, v%d", vM)
    a("v_add_u32 v%d, s%d, v%d", vT2, sT, vT1)
    a("v_add_u32 v%d, s%d, v%d", vT3, sT2, vT1)
    a("v_cndmask_b32 v%d, v%d, v%d, vcc", vT1, vT3, vT2)
    a("v_cmp_gt_u32 vcc, 21, v%d", vM)
    a("v_add_u32 v%d, s%d, v%d", vRv, sC, vT1)
    a("s_lshl_b32 s%d, s%d, 2", sT, sTB)
    a("v_cndmask_b32 v%d, v%d, v%d, vcc", vV, vS1, vT1)
    a("s_add_u32 s%d, s%d, s%d", sT, sT, sT3)
    a("s_lshl_b32 s%d, s%d, 5", sC, sB)
    a("s_add_u32 s%d, s%d, s%d", sT2, sT, sC)
    a("s_lshl_b32 s%d, s%d, 1", sT2, sT2)
    a("s_add_u32 s%d, s%d, s%d", sT2, sT2, sQH)
    a("s_lshl_b32 s%d, s%d, 4", sO, sT2)
    a("s_add_u32 s%d, s%d, s%d", sO, sO, sHP)
    a("s_lshl_b32 s%d, s%d, 7", sT2, sO)
    a("s_add_u32 s%d, s%d, %d", sF2, sT2, F2_OFF)
    a("s_mul_i32 s%d, s%d, %d", sO, sO, OB)
    a("s_add_u32 s%d, s%d, %d", sO, sO, O_OFF)
    a("s_lshl_b32 s%d, s%d, 4", sC, sB)
    a("s_add_u32 s%d, s%d, s%d", sC, sC, sHP)
    a("s_mul_i32 s%d, s%d, %d", sKV, sC, KV_PAIR)
    a("s_mul_i32 s%d, s%d, %d", sPub, sT, BLK)
    a("s_add_u32 s%d, s%d, s%d", sPub, sPub, sKV)
    a("s_mul_i32 s%d, s%d, %d", sT2, sT3, BLK)
    a("s_add_u32 s%d, s%d, s%d", sKV, sKV, sT2)
    a("s_lshl_b32 s%d, s%d, 2", sC, sC)
    a("s_add_u32 s%d, s%d, s%d", sC, sC, sT3)
    a("s_lshl_b32 s%d, s%d, 10", sC, sC)
    a("s_add_u32 s%d, s%d, %d", sF1, sC, F1_OFF)
    a("s_and_b32 s%d, s%d, 4", sT, sTB)
    a("s_lshl_b32 s%d, s%d, 1", sT, sT)
    a("s_lshl_b32 s%d, 0xff, s%d", sMsk, sT)
    a("s_mul_i32 s%d, s%d, 12288", sT, sT3)
    a("s_add_u32 s%d, s%d, %d", sT, sT, CMB)
    a("v_add_u32 v%d, s%d, v%d", vAr, sT, vL16)
    a("s_lshl_b32 s%d, s%d, 5", sT, sW)
    a("v_mov_b32 v%d, s%d", vFo, sT)
    a("s_cmp_ge_u32 s%d, 5", sW)
    a("s_cselect_b64 vcc, -1, 0")
    a("s_cselect_b32 s%d, 1, 0", sT2)
    a("s_lshl_b32 s%d, s%d, s%d", sT, sW, sT2)
    a("s_mul_i32 s%d, s%d, 10", sC, sT2)
    a("s_sub_u32 s%d, s%d, s%d", sT, sT, sC)
    a("s_add_u32 s%d, s%d, s%d", sT2, sT2, sT)
    a("s_min_u32 s%d, s%d, 4", sT2, sT2)
    for dst, sp in ((vG, sT), (vGb, sT2)):
        a("s_lshl_b32 s%d, s%d, 6", sC, sp)
        a("v_add_u32 v%d, s%d, v%d", vT1, sC, vLane)
        a("v_mul_u32_u24 v%d, 6554, v%d", vT2, vT1)
        a("v_lshrrev_b32 v%d, 16, v%d", vT2, vT2)
        a("v_mul_u32_u24 v%d, 10, v%d", vT3, vT2)
        a("v_sub_u32 v%d, v%d, v%d", dst, vT1, vT3)
        a("v_and_b32 v%d, 4, v%d", vT1, vT2)
        a("v_lshlrev_b32 v%d, 1, v%d", vT1, vT1)
        a("v_and_b32 v%d, 8, v%d", vT3, vT2)
        a("v_lshrrev_b32 v%d, 1, v%d", vT3, vT3)
        a("v_and_b32 v%d, 0x13, v%d", vT2, vT2)
        a("v_or3_b32 v%d, v%d, v%d, v%d", vT1, vT1, vT2, vT3)
        a("v_lshrrev_b32 v%d, 4, v%d", vT2, vT1)
        a("v_mul_u32_u24 v%d, 24, v%d", vT2, vT2)
        a("v_and_b32 v%d, 28, v%d", vT3, vT1)
        a("v_mad_u32_u24 v%d, v%d, 9, 16", vT3, vT3)
        a("v_cndmask_b32 v%d, v%d, v%d, vcc", vT2, vT2, vT3)
        a("v_add_u32 v%d, v%d, v%d", vT1, vT1, vT2)
        a("v_mul_u32_u24 v%d, 1280, v%d", vT1, vT1)
        a("v_lshl_add_u32 v%d, v%d, 4, v%d", dst, dst, vT1)

    SPLIT = env("SPLIT", 10000) if env("PEEL", 1) else 10000
    part2 = a.l[mark + SPLIT:]
    del a.l[mark + SPLIT:]
    a("s_barrier")
    a("s_or_b32 s%d, s2, s%d", sDX, sW)
    a("s_cbranch_scc1 L_nononce")
    a("s_or_b32 s%d, s%d, 0x80000000", sNon + 1, sNon + 1)
    a("v_mov_b32 v%d, s%d", vNon, sNon)
    a("v_mov_b32 v%d, s%d", vNon + 1, sNon + 1)
    a("v_mov_b32 v%d, 0", 255)
    a("global_store_dwordx2 v%d, %s, s[%d:%d] sc0 sc1", 255, vr(vNon, 2), sDbg, sDbg + 1)
    a.label("L_nononce")
    d1 = dma_ops("8192", "16384")
    for _ in range(env("D1PRE", 1)): d1.pop(0)()
    PEEL = env("PEEL", 1)
    D1PRE = env("D1PRE", 1)
    if not PEEL:
        for op in d1: op()
    CODEPF = env("CODEPF", 1)
    if CODEPF:
        a.label("L_pfbase")
        a("s_getpc_b64 s[%d:%d]", sC2, sC2 + 1)
        a("v_min_u32 v%d, 21, v%d", 255, vLane)
        a("v_lshlrev_b32 v%d, 7, v%d", 255, 255)
        a("s_mul_i32 s%d, s%d, 2816", sDX, sW)
        a("v_add_u32 v%d, s%d, v%d", 255, sDX, 255)
        a("v_min_u32 v%d, %s, v%d", 255, "L_code_end-L_pfbase-8", 255)
        a("global_load_dword v255, v%d, s[%d:%d]", 255, sC2, sC2 + 1)
    def read_ops(fb, ks):
        f = F + 32 * fb
        ops = []
        for t in range(4):
            ops.append(lambda t=t: a("ds_read_b128 %s, v%d offset:%d", vr(f + 4 * t, 4), vXa + ks, t * 2048))
            for q in range(2):
                ops.append(lambda t=t, q=q: a("ds_read_b64_tr_b16 %s, v%d offset:%d", vr(f + 16 + 4 * t + 2 * q, 2), vWa + t, ks * 8192 + q * 1024))
        return ops
    def reads(fb, ks):
        for op in read_ops(fb, ks): op()
    RPM = env("RPM", 1)
    def mfs(fb, isB, rd, dm, misc, zero=False):
        f = F + 32 * fb
        ABL = env("ABL", 0)
        if ABL & 1: f = F; rd = []
        if ABL & 2: dm = []
        if ABL & 4: rd = rd[:9]
        n = 0
        for (xt, t) in sorted([(x, y) for x in range(4) for y in range(4)], key=lambda p: (max(p), p)):
            d = ACC + 16 * xt + 4 * t
            x, w = vr(f + 4 * t, 4), vr(f + 16 + 4 * xt, 4)
            c = "0" if zero else vr(d, 4)
            if isB and xt > 0: a("v_mfma_f32_16x16x32_bf16 %s, %s, %s, %s", vr(d, 4), x, w, c)
            else:              a("v_mfma_f32_16x16x32_bf16 %s, %s, %s, %s", vr(d, 4), w, x, c)
            n += 1
            if rd:
                for _ in range(RPM):
                    if rd: rd.pop(0)()
            elif dm and n % 3 == 1: dm.pop(0)()
            elif misc:
                for _ in range(3):
                    if misc: misc.pop(0)()
        for op in rd + dm + misc: op()
    def stage(kind, isB, ops):
        if kind == 1:
            a("v_mov_b32 v%d, 0", vT1)
            a("global_load_dwordx2 %s, v%d, s[%d:%d] sc0 sc1", vr(vNon, 2), vT1, sDbg, sDbg + 1)
        misc = []
        if kind < 2:
            misc = [lambda: (a("s_cmp_eq_u32 s%d, 2", sSlot), a("s_cselect_b32 s%d, -2, 1", sDX)),
                    lambda: a("s_lshl_b32 s%d, s%d, 14", sDW, sDX),
                    lambda: a("s_lshl_b32 s%d, s%d, 13", sT, sDX)]
            misc += [lambda ks=ks: a("v_add_u32 v%d, s%d, v%d", vXa + ks, sT, vXa + ks) for ks in range(2)]
            misc += [lambda ft=ft: a("v_add_u32 v%d, s%d, v%d", vWa + ft, sDW, vWa + ft) for ft in range(4)]
        if kind == 2:
            misc = [lambda: a("v_readfirstlane_b32 s%d, v%d", sNon + 1, vNon + 1),
                    lambda: a("v_readfirstlane_b32 s%d, v%d", sNon, vNon),
                    lambda: a("s_add_u32 s%d, s%d, 3072", sT2, sPub),
                    lambda: a("s_mov_b32 s%d, 0x%x", sC, 0xff00ff00 if isB else f32bits(CSCALE)),
                    lambda: a("s_mov_b32 s%d, s%d", sC + 1, sC),
                    lambda: (a("s_cmp_eq_u32 s%d, 0", sNon + 1), a("s_cbranch_scc1 L_nonce%d", isB), a.label("L_nonce_ok%d" % isB))]
        a("s_waitcnt lgkmcnt(0)")
        mfs(0, isB, read_ops(1, 1), ops, misc)
        nops, rd, misc = [], [], []
        if kind < 2:
            if kind == 0:
                a("s_lshl_b32 s%d, s%d, 13", sSx, sSlot)
                a("s_lshl_b32 s%d, s%d, 14", sSw, sSlot)
            a("s_waitcnt vmcnt(%d) lgkmcnt(0)", 0 if kind == 1 else 6)
            a("s_barrier")
            rd = read_ops(0, 0)
            misc = [lambda: a("s_add_u32 s%d, s%d, s%d", sSlot, sSlot, sDX)]
            if kind == 0:
                nops = dma_ops("s%d" % sSx, "s%d" % sSw)[:3]
                misc += [lambda: a("s_add_u32 s%d, s%d, 1", sIt, sIt)]
            if kind == 1:
                I = lambda f, *x: (lambda: a(f, *x))
                misc += [I("s_and_b32 s%d, s2, -8", sT2), I("s_add_u32 s%d, s%d, s%d", sT2, sT2, sW), I("s_mul_i32 s%d, s%d, %d", sT2, sT2, 25 * 128),
                         I("v_min_u32 v255, 24, v%d", vLane), I("v_lshl_add_u32 v255, v255, 7, s%d", sT2),
                         I("s_lshl_b32 s%d, s%d, 4", sT2, sTB), I("s_add_u32 s%d, s%d, s%d", sT2, sT2, sQH), I("s_lshl_b32 s%d, s%d, 3", sT2, sT2),
                         I("s_add_u32 s%d, s%d, s%d", sTrig, sT2, sF1),
                         I("s_and_b32 s%d, s%d, 7", sT3, sHP), I("s_mul_i32 s%d, s%d, 160", sT3, sT3), I("s_sub_u32 s%d, %d, s%d", WO + 2, 640 * 1280, sT3),
                         lambda: (a("s_add_u32 s%d, s56, s%d", WO, sT3), a("s_addc_u32 s%d, s57, 0", WO + 1)),
                         I("s_mov_b32 s%d, %d", OUT + 2, 2048 * 2560), I("s_mov_b64 s[%d:%d], s[58:59]", OUT, OUT + 1)]
        else:
            a("s_waitcnt lgkmcnt(0)")
            a("s_barrier")
            return
        mfs(1, isB, rd, nops, misc)
    if env("IDLE0", 0): a("s_sleep %d", env("IDLE0", 0))
    st(0)
    a("s_waitcnt vmcnt(%d)", (D1PRE if PEEL else 6) + (1 if CODEPF else 0))
    st(1)
    a("s_barrier")
    reads(0, 0)
    if not PEEL:
        a("s_mov_b32 s%d, %d", sSx, 2 * 8192)
        a("s_mov_b32 s%d, %d", sSw, 2 * 16384)
        d2 = dma_ops("s%d" % sSx, "s%d" % sSw)
        for i in range(3): d2.pop(0)()
    if PEEL:
        a("s_cmp_eq_u32 s%d, 0", sQH)
        a("s_cbranch_scc0 L_st0B")
        for isB in (False, True):
            if isB: a.label("L_st0B")
            a("s_waitcnt lgkmcnt(0)")
            mfs(0, isB, read_ops(1, 1), dma_ops("8192", "16384")[D1PRE:], [], True)
            a("s_waitcnt lgkmcnt(0)")
            misc = [lambda ks=ks: a("v_add_u32 v%d, 8192, v%d", vXa + ks, vXa + ks) for ks in range(2)]
            misc += [lambda ft=ft: a("v_add_u32 v%d, 16384, v%d", vWa + ft, vWa + ft) for ft in range(4)]
            mfs(1, isB, [], [], misc)
            if not isB: a("s_branch L_st0done")
        a.label("L_st0done")
        d2 = dma_ops("16384", "32768")
        for _ in range(env("D2PRE", 2)): d2.pop(0)()
        a.l += part2
        for op in d2: op()
        a("s_mov_b32 s%d, 1", sSlot)
        a("s_mov_b32 s%d, 1", sIt)
        a("s_waitcnt vmcnt(6)")
        a("s_barrier")
        reads(0, 0)
    a("s_cmp_eq_u32 s%d, 0", sQH)
    a("s_cbranch_scc0 L_gemmB0")
    CV = F
    for isB in (False, True):
        L = "L_gemmB" if isB else "L_gemmA"
        a.label(L + "0")
        if PEEL: stage(0, isB, dma_ops("0", "0"))
        a.label(L)
        stage(0, isB, dma_ops("s%d" % sSx, "s%d" % sSw)[3:])
        a("s_cmp_lt_u32 s%d, 7", sIt)
        a("s_cbranch_scc1 %s", L)
        stage(-1, isB, dma_ops("s%d" % sSx, "s%d" % sSw)[3:])
        stage(1, isB, [])
        stage(2, isB, [])
        st(2, False)
        def cvt(dst, src):
            return ["v_cvt_pk_bf16_f32 v%d, v%d, v%d" % (dst, src, src + 1), "v_cvt_pk_bf16_f32 v%d, v%d, v%d" % (dst + 1, src + 2, src + 3)]
        units, late, pre = [], [], []
        if not isB:
            for t in range(4):
                o = CV + 4 * t
                units.append(([(2, t), (3, t)], cvt(o, ACC + 32 + 4 * t) + cvt(o + 2, ACC + 48 + 4 * t) +
                              ["ds_write_b128 v%d, %s offset:%d" % (vL0, vr(o, 4), t * 1024)]))
                stx = "buffer_store_dwordx4 %s, v%d, %s, s%d offen offset:%d sc1" % (vr(o, 4), vL16, srd, sPub, t * 1024)
                if env("AEARLY", 1): units[-1][1].append(stx)
                else: pre.append(stx)
            for t in range(4):
                o = CV + 16 + 4 * t
                ins = ["v_pk_mul_f32 %s, %s, s[%d:%d]" % (vr(ACC + 16 * xt + 4 * t + 2 * h, 2), vr(ACC + 16 * xt + 4 * t + 2 * h, 2), sC, sC + 1) for xt in range(2) for h in range(2)]
                units.append(([(0, t), (1, t)], ins + cvt(o, ACC + 4 * t) + cvt(o + 2, ACC + 16 + 4 * t) +
                              ["ds_write_b128 v%d, %s offset:%d" % (vL0, vr(o, 4), 12288 + t * 1024)]))
        else:
            n = 0
            NPRE = env("NPRE", 2)
            for xt in (1, 2, 3):
                for kt in range(2):
                    o = CV + 4 * n; n += 1
                    ins = cvt(o, ACC + 16 * xt + 8 * kt) + cvt(o + 2, ACC + 16 * xt + 8 * kt + 4)
                    if xt == 3: ins += ["v_cndmask_b32 v%d, v%d, v%d, s[%d:%d]" % (o + i, o + i, vOne, sC, sC + 1) for i in range(4)]
                    ins.append("ds_write_b128 v%d, %s offset:%d" % (vL1, vr(o, 4), kt * 3072 + (xt - 1) * 1024))
                    stx = "buffer_store_dwordx4 %s, v%d, %s, s%d offen offset:%d sc1" % (vr(o, 4), vG1, srd, sT2 if kt else sPub, (xt - 1) * 1024)
                    if n <= env("NIN", 0): ins.append(stx)
                    elif n <= NPRE: pre.append(stx)
                    else: late.append(stx)
                    units.append(([(xt, 2 * kt), (xt, 2 * kt + 1)], ins))
            for q in range(2):
                o = CV + 4 * n; n += 1
                ins = ["v_pk_mul_f32 %s, %s, %s op_sel_hi:[1,0]" % (vr(ACC + 4 * t + 2 * h, 2), vr(ACC + 4 * t + 2 * h, 2), vr(vSc, 2)) for t in (q, q + 2) for h in range(2)]
                ins += cvt(o, ACC + 4 * q) + cvt(o + 2, ACC + 4 * (q + 2)) + ["ds_write_b128 v%d, %s offset:%d" % (vL0, vr(o, 4), 4096 + q * 1024)]
                for kt in range(2): late.append("buffer_store_dwordx2 %s, v%d, %s, s%d offen offset:%d sc1" % (vr(o + 2 * kt, 2), vG0, srd, sPub, (2 * kt + q) * 512))
                units.append(([(0, q), (0, q + 2)], ins))
        f = F + 32
        cnt, done_at, nxt = 0, [], 0
        def emit(x):
            nonlocal cnt
            a(x); cnt += 1
        LAG = env("LAG", 3)
        for u in range(len(units) + LAG):
            if u < len(units):
                for (xt, t) in units[u][0]:
                    d = ACC + 16 * xt + 4 * t
                    x, w = vr(f + 4 * t, 4), vr(f + 16 + 4 * xt, 4)
                    emit("v_mfma_f32_16x16x32_bf16 %s, %s, %s, %s" % ((vr(d, 4), x, w, vr(d, 4)) if isB and xt > 0 else (vr(d, 4), w, x, vr(d, 4))))
                done_at.append(cnt)
                if u == 0: emit("ds_write_b128 v%d, %s offset:%d" % (vFo, vr(O, 4), LFLAG))
            if u >= LAG:
                gap = cnt - done_at[u - LAG]
                if gap < 8:
                    a("s_nop %d", 7 - gap); cnt += 8 - gap
                for x in units[u - LAG][1]: emit(x)
        for x in pre: a(x)
        a("s_setprio %d", 3 if isB else 2)
        for i in range(16): a("v_mov_b32 v%d, 0", Qr + i)
        a("s_waitcnt lgkmcnt(0)")
        st(3)
        a("s_barrier")
        for x in late: a(x)
        if not isB: a("s_branch L_epi_done")
    a.label("L_epi_done")
    if env("IDLE", 0): a("s_sleep %d", env("IDLE", 0))
    def rdK(b): a("ds_read_b128 %s, v%d offset:%d", vr(Km + 4 * b, 4), vRk, IMG + b * 2048)
    def rdV(b):
        for g in range(2): a("ds_read_b128 %s, v%d offset:%d", vr(V + 8 * b + 4 * g, 4), vRv, IMG + b * 3072 + g * 512)
    def rdQ(p):
        r = vRk
        if p != 3:
            r = vT1; a("v_xor_b32 v%d, %d, v%d", r, (p ^ 3) << 14, vRk)
        for j in range(2): a("ds_read_b128 %s, v%d offset:%d", vr(Qm + 8 * p + 4 * j, 4), r, IMG + 12288 + j * 2048)
    rdK(0)
    a("ds_read_b128 %s, v%d offset:%d", vr(Kr, 4), vRr, IMG + 4096 + 512)
    rdQ(0)
    for p in range(3): a("v_xor_b32 v%d, %d, v%d", vT2 + p, (p ^ 3) << 14, vRr)
    a("s_mov_b32 exec_hi, 0")
    for p in range(4): a("ds_read_b128 %s, v%d offset:%d", vr(Qr + 4 * p, 4), vT2 + p if p < 3 else vRr, IMG + 4096)
    a("s_mov_b32 exec_hi, -1")
    rdQ(1); rdV(0)

    def kvop(what, b, sreg, extra=0):
        if env("NOKV", 0) == 1: return
        if what == "k":   a("buffer_load_dwordx4 %s, v%d, %s, s%d offen offset:%d sc1", vr(Km + 4 * b, 4), vK, srd, sreg, 2048 * b)
        elif what == "r": a("buffer_load_dwordx2 %s, v%d, %s, s%d offen offset:%d sc1", vr(Kr + 2 * b, 2), vKr, srd, sreg, 1024 * b)
        else:             a("buffer_load_dwordx4 %s, v%d, %s, s%d offen offset:%d sc1", vr(V + 8 * b + 4 * extra, 4), vV, srd, sreg, 3072 * b + 512 * extra)
    def qk1(j, kb): a("v_mfma_f32_32x32x16_bf16 %s, %s, %s, 0", vr(S + 16 * (j % 4), 16), vr(Km + 4 * kb, 4), vr(Qm + 4 * j, 4))
    def qk2(j, kb): a("v_mfma_f32_32x32x8_bf16 %s, %s, %s, %s", vr(S + 16 * (j % 4), 16), vr(Kr + 2 * kb, 2), vr(Qr + 2 * j, 2), vr(S + 16 * (j % 4), 16))
    def pv(j, vb, half): a("v_smfmac_f32_32x32x32_bf16 %s, %s, %s, v%d", vr(O + 12 * j, 16), vr(V + 8 * vb + 4 * half, 4), vr(S + 16 * (j % 4) + 8 * half, 8), vIdx)
    def ex(r): a("v_exp_f32 v%d, v%d", r, r)
    def signal1():
        a("s_waitcnt vmcnt(0)")
        a("buffer_store_dwordx2 %s, off, %s, s%d sc0 sc1", vr(vNon, 2), srd, sTrig)
        a("global_load_dword v255, v255, s[56:57]")
    def poll(lbl, sline, mask, tmo, slp):
        a("s_mov_b32 s%d, 0", sTmo)
        a.label(lbl)
        a("buffer_load_dwordx2 v[4:5], v%d, %s, s%d offen sc0 sc1", vFl, srd, sline)
        a("s_add_u32 s%d, s%d, 1", sTmo, sTmo)
        a("s_waitcnt vmcnt(0)")
        a("v_cmp_eq_u64 vcc, s[%d:%d], v[4:5]", sNon, sNon + 1)
        a("s_cmp_gt_u32 s%d, 0x%x", sTmo, tmo)
        a("s_cbranch_scc1 %s_ok", lbl)
        a("s_andn2_b32 s%d, %s, vcc_lo", sT, mask)
        a("s_cbranch_scc0 %s_ok", lbl)
        a("s_sleep %d", slp)
        a("s_branch %s", lbl)
        a.label(lbl + "_ok")

    a("s_waitcnt lgkmcnt(7)")
    qk1(0, 0); qk2(0, 0); qk1(1, 0); qk2(1, 0)
    rdQ(2); rdQ(3); rdK(1); rdV(1)
    a("v_mov_b32 v%d, 1", vT2)
    a("ds_write_b32 v%d, v%d offset:12", vFo, vT2)
    for i in range(243, 252): a("v_mov_b32 v%d, 0", i)
    st(4, False)
    a("s_cmp_eq_u32 s%d, 0", sQH)
    a("s_cbranch_scc1 L_nosig")
    signal1()
    st(5, False)
    a.label("L_nosig")

    def wo_setup():
        R = 1280
        a("s_mov_b32 s%d, 0", sGo)
        a("s_lshl_b32 s%d, s%d, 10", sLo, sW)
        a("s_add_u32 s%d, s%d, %d", sLo, sLo, WOB)
        a("s_mov_b32 s%d, %d", sGs, 56 * R)
        a("s_mov_b32 s%d, 5120", sLs)
        a("s_mov_b32 s%d, %d", sGd, 24 * R)
        a("s_mov_b32 s%d, %d", sLd, 8 * 5120)
        a("s_mov_b32 s%d, 0", sGx)
        a("s_cmp_lt_u32 s%d, 5", sW)
        a("s_cbranch_scc1 L_wos")
        a("s_lshl_b32 s%d, s%d, 11", sLo, sW)
        a("s_add_u32 s%d, s%d, %d", sLo, sLo, WOB + 16 * 5120 - 5 * 2048)
        a("s_mov_b32 s%d, %d", sGs, 4 * R)
        a("s_mov_b32 s%d, %d", sGx, (4 * R) ^ (316 * R))
        a("s_mov_b32 s%d, 0", sGd)
        a("s_cmp_eq_u32 s%d, 7", sW)
        a("s_cselect_b32 s%d, 0, 1024", sLd)
        a.label("L_wos")
    def all8(lbl, val, n=8):
        a("v_and_b32 v%d, %d, v%d", vT3, n - 1, vLane)
        a("v_lshlrev_b32 v%d, 5, v%d", vT3, vT3)
        a("s_mov_b32 s%d, 0", sTmo)
        a.label(lbl)
        a("ds_read_b32 v%d, v%d offset:12", vT2, vT3)
        a("s_add_u32 s%d, s%d, 1", sTmo, sTmo)
        a("s_waitcnt lgkmcnt(0)")
        a("v_cmp_le_u32 vcc, %d, v%d", val, vT2)
        a("s_cmp_gt_u32 s%d, 0x20000", sTmo)
        a("s_cbranch_scc1 %s_ok", lbl)
        a("s_cmp_eq_u64 vcc, -1")
        a("s_cbranch_scc1 %s_ok", lbl)
        a("s_sleep 2")
        a("s_branch %s", lbl)
        a.label(lbl + "_ok")

    def next_chunk():
        return [lambda: a("s_add_u32 s%d, s%d, 1", sCh, sCh),
                lambda: a("s_xor_b32 s%d, s%d, s%d", sNxt, sCh, sTB),
                lambda: a("s_and_b32 s%d, s%d, 7", sNxt, sNxt),
                lambda: a("s_mul_i32 s%d, s%d, %d", sNxt, sNxt, 4 * BLK),
                lambda: a("s_add_u32 s%d, s%d, s%d", sNxt, sNxt, sKV)]
    N = sNxt
    sched = {
        (0, 1): [("V1a", lambda: kvop("v", 1, N, 0)), ("V1b", lambda: kvop("v", 1, N, 1))],
        (0, 3): [("Wa", lambda: a("buffer_load_dwordx4 v%d, %s, s%d offen lds", vG, sr(WO, 4), sGo)), ("Wb", lambda: a("buffer_load_dwordx4 v%d, %s, s%d offen lds", vGb, sr(WO, 4), sGo))],
        (0, 6): [("K0", lambda: kvop("k", 0, N)), ("R0", lambda: kvop("r", 0, N))],
        (1, 1): [("V0a", lambda: kvop("v", 0, N, 0)), ("V0b", lambda: kvop("v", 0, N, 1))],
        (1, 6): [("K1", lambda: kvop("k", 1, N)), ("R1", lambda: kvop("r", 1, N))],
    }
    order = [(k, n) for k in sorted(sched) for (n, _) in sched[k]]
    def younger(name, pos):
        names = [n for _, n in order]
        i = names.index(name); cnt = 0
        while True:
            i = (i + 1) % len(order)
            if order[i][0] == pos or (order[i][0] > pos and (order[i - 1][0] < pos or i == 0)): return cnt
            cnt += 1
    PA, PB, POLLP = env("PA", 3), env("PB", 5), (1, 4)
    def spin(lbl, word):
        def f():
            a.label(lbl + "_w")
            a("s_add_u32 s%d, s%d, 1", sTmo, sTmo)
            a("s_cmp_gt_u32 s%d, 0x20000", sTmo)
            a("s_cbranch_scc1 %s_ok", lbl)
            a("s_sleep 1")
            a("ds_read_b32 v%d, v%d offset:%d", vT1, vFo, 4 * word)
            a("s_waitcnt lgkmcnt(0)")
            a("v_readfirstlane_b32 s%d, v%d", sT, vT1)
            a("s_cmp_eq_u32 s%d, 0", sT)
            a("s_cbranch_scc1 %s_w", lbl)
            a("s_branch %s", lbl)
        stubs.append(f)
    stubs = []
    def xreads(word, area, n, dst):
        return [lambda: a("ds_read_b32 v%d, v%d offset:%d", vT1, vFo, 4 * word)] + \
               [lambda q=q: a("ds_read_b128 %s, v%d offset:%d", vr(dst + 4 * q, 4), area, q * 1024) for q in range(n)]
    def xcheck(lbl, word, area, n, dst):
        a("s_waitcnt lgkmcnt(%d)", n)
        a("v_readfirstlane_b32 s%d, v%d", sT, vT1)
        a("s_cmp_eq_u32 s%d, 0", sT)
        a("s_cbranch_scc1 %s_w", lbl)
        a.label(lbl + "_ok")
        spin(lbl, word)
        def g():
            a.label(lbl)
            for f in xreads(word, area, n, dst)[1:]: f()
            a("s_branch %s_ok", lbl)
        stubs.append(g)
    def padd(d, x): a("v_pk_add_f32 %s, %s, %s", vr(d, 2), vr(d, 2), vr(x, 2))
    def iteration(first, last=False):
        for tt in range(2):
            for j in range(8):
                pj, pvb = ((7, 1 - tt) if j == 0 else (j - 1, tt))
                nj, nkb = (j + 2) % 8, (tt if j < 6 else 1 - tt)
                slots = [[], [], []]
                lds = [f for _, f in sched.get((tt, j), [])]
                wv = younger("V%db" % tt, (tt, 1)) if j == 0 else None
                wk = younger("R%d" % (1 - tt), (tt, 6)) if j == 6 else None
                if first:
                    if 8 * tt + j == PA:
                        a("s_cmp_eq_u32 s%d, 0", sQH)
                        a("s_cbranch_scc0 L_nosig2")
                        signal1()
                        st(5, False)
                        a.label("L_nosig2")
                    if 8 * tt + j == PB:
                        a("s_cmp_eq_u32 s%d, 0", sQH)
                        a("s_cbranch_scc1 L_nosig3")
                        a("s_setprio 1")
                        a.label("L_nosig3")
                    if (tt, j) == POLLP:
                        wo_setup()
                        all8("L_img", 1)
                        st(6, False)
                        poll("L_poll1", sF1, "s%d" % sMsk, 0x4000, 2)
                        st(7, False)
                        a("s_andn2_b32 s%d, 0xffff, vcc_lo", sMsk)
                        a("s_mov_b32 s%d, 0", sCh)
                        for f in next_chunk(): f()
                        for k in sorted(sched):
                            if k == (0, 3):
                                a("s_mov_b32 m0, s%d", sLo); a("s_nop 0"); sched[k][0][1]()
                                a("s_add_u32 m0, s%d, s%d", sLo, sLd); a("s_add_u32 s%d, s%d, s%d", sGo, sGo, sGd); sched[k][1][1]()
                                a("s_add_u32 s%d, s%d, s%d", sGo, sGo, sGs); a("s_add_u32 s%d, s%d, s%d", sLo, sLo, sLs); a("s_xor_b32 s%d, s%d, s%d", sGs, sGs, sGx)
                            elif (0, 1) < k < POLLP:
                                for _, f in sched[k]: f()
                    if (tt, j) < POLLP: lds = []
                    wv = None
                    if (tt, j) != (1, 6): wk = None
                else:
                    if (tt, j) == (0, 2): slots[2].append(lambda: a("s_mov_b32 m0, s%d", sLo))
                    if (tt, j) == (0, 3):
                        slots[0].append(lds[0]); slots[2].append(lds[1])
                        lds = []
                        slots[1] += [lambda: a("s_add_u32 m0, s%d, s%d", sLo, sLd), lambda: a("s_add_u32 s%d, s%d, s%d", sGo, sGo, sGd)]
                    if (tt, j) == (0, 4):
                        nc = next_chunk()
                        slots[0] += nc[0:2]; slots[1] += nc[2:4]; slots[2] += nc[4:5]
                    if (tt, j) == (0, 5):
                        slots[0] += [lambda: a("s_add_u32 s%d, s%d, s%d", sGo, sGo, sGs), lambda: a("s_add_u32 s%d, s%d, s%d", sLo, sLo, sLs)]
                        slots[1].append(lambda: a("s_xor_b32 s%d, s%d, s%d", sGs, sGs, sGx))
                    if (tt, j) == (1, 7): slots[0].append(lambda: a("s_cmp_lt_u32 s%d, 7", sCh))
                if last:
                    I = lambda f, *x: (lambda: a(f, *x))
                    if (tt, j) >= (0, 4):
                        slots = [[], [], []]; lds = []
                    if (tt, j) == (1, 0): wv = 0
                    if (tt, j) == (1, 6): wk = None
                    if (tt, j) == (0, 4):
                        slots[0] += [I("s_and_b32 s%d, s%d, 3", sT3, sW), I("s_xor_b32 s%d, s%d, 2", sT, sT3)]
                        slots[1] += [I("s_xor_b32 s%d, s%d, 3", sT2, sT3), I("s_mul_i32 s%d, s%d, 12288", sT, sT)]
                        slots[2] += [I("s_mul_i32 s%d, s%d, 12288", sT2, sT2)]
                    if (tt, j) == (0, 5):
                        slots[0] += [I("s_add_u32 s%d, s%d, %d", sCur, sT, CMB), I("s_add_u32 s%d, s%d, %d", sNxt, sT2, CMB)]
                        slots[1] += [I("s_mov_b32 s%d, 0x%x", sT3, f32bits(2.0 ** -30)), I("s_mov_b32 s%d, 0x%x", sT2, f32bits(2.0 ** 60))]
                    if (tt, j) == (1, 1):
                        a("s_cmp_eq_u32 s%d, 0", sQH)
                        a("s_cbranch_scc1 L_afree_ok")
                        all8("L_afree", 2, 4)
                        a("v_add_u32 v%d, s%d, v%d", vT3, sCur, vL16)
                        a("v_add_u32 v%d, s%d, v%d", vT4, sNxt, vL16)
                        a("v_mov_b32 v%d, 1", vT2)
                        a("v_xor_b32 v%d, 64, v%d", vT1, vFo)
                        a("s_mov_b32 s%d, 0", sTmo)
                    if tt == 1 and 2 <= j <= 5:
                        for i in range(3):
                            q = 3 * (j - 2) + i
                            slots[i].append(I("ds_write_b128 v%d, %s offset:%d", vAr, vr(O + 4 * q, 4), q * 1024))
                        if j == 5: slots[2].append(I("ds_write_b32 v%d, v%d", vT1, vT2))
                    if (tt, j) == (1, 6):
                        xr = xreads(0, vT3, 12, O)
                        slots[1] += xr[:7]; slots[2] += xr[7:]
                if wv is not None: slots[2].append(lambda wv=wv: a("s_waitcnt vmcnt(%d)", wv))
                if wk is not None:
                    slots[0].append(lambda wk=wk: a("s_waitcnt vmcnt(%d)", wk))
                    for i, f in enumerate(lds): slots[1 + i].append(f)
                else:
                    for i, f in enumerate(lds): slots[i].append(f)
                regs = [S + 16 * (j % 4) + i for i in range(16)]
                def ex4():
                    for _ in range(4): ex(regs.pop(0))
                if first and (tt, j) == (0, 0):
                    ex4(); ex4(); a("s_waitcnt lgkmcnt(0)")
                else:
                    pv(pj, pvb, 0); [f() for f in slots[0]]; ex4()
                    pv(pj, pvb, 1); [f() for f in slots[1]]; ex4()
                if last and (tt, j) == (1, 7):
                    if DIAG: a("s_waitcnt lgkmcnt(0)")
                    xcheck("L_cmb", 0, vT3, 12, O)
                    a("s_waitcnt lgkmcnt(6)")
                    for i in range(0, 24, 2): padd(O + 48 + i, O + i)
                    for k in range(6): a("ds_write_b128 v%d, %s offset:%d", vT3, vr(O + 48 + 4 * k, 4), k * 1024)
                    a("v_xor_b32 v%d, 32, v%d", vT1, vFo)
                    a("ds_write_b32 v%d, v%d offset:4", vT1, vT2)
                    ex4(); ex4()
                elif last and (tt, j) == (1, 6):
                    [f() for f in slots[2]]; ex4(); ex4()
                else:
                    qk1(nj, nkb);   [f() for f in slots[2]]; ex4()
                    qk2(nj, nkb); ex4()
    iteration(True)
    BLEAD = env("BLEAD", 2)
    a("s_mov_b32 s%d, 3", sTrig)
    if BLEAD:
        a("s_cmp_eq_u32 s%d, 0", sQH)
        a("s_cbranch_scc1 L_nolead")
        a("s_setprio 3")
        a.label("L_nolead")
    st(8, False)
    a.raw(".p2align 6")
    a.label("L_attn")
    a("s_cmp_eq_u32 s%d, s%d", sCh, sTrig)
    a("s_cbranch_scc1 L_mid")
    a.label("L_attn_go")
    iteration(False)
    a("s_cbranch_scc1 L_attn")
    iteration(False, True)
    K0 = O + 72
    xr = xreads(1, vT4, 6, S)
    xr[0](); xr[1]()
    pv(7, 1, 0); pv(7, 1, 1)
    st(9, False)
    for f in xr[2:]: f()
    a("s_waitcnt lgkmcnt(14)")
    for i in range(0, 12, 2): padd(K0 + i, O + 24 + i)
    a("s_mov_b32 s%d, 0", sTmo)
    if DIAG: a("s_waitcnt lgkmcnt(0)")
    xcheck("L_cmb2", 1, vT4, 6, S)
    a("s_waitcnt lgkmcnt(3)")
    for i in range(0, 12, 2): padd(K0 + i, S + i)
    for i in range(12, 24, 2): padd(K0 + i, O + 24 + i)
    a("s_waitcnt lgkmcnt(0)")
    for i in range(12, 24, 2): padd(K0 + i, S + i)
    Z = S + 32
    def get_l():
        for j in range(2):
            a("v_mov_b32 v%d, v%d", Z + 4 + 2 * j, K0 + 12 * j + 8)
            a("v_mov_b32 v%d, v%d", Z + 5 + 2 * j, K0 + 12 * j + 8)
    get_l()
    a("v_pk_mul_f32 %s, %s, 0", vr(Z, 2), vr(K0, 2))
    a("v_pk_mul_f32 %s, %s, 0", vr(Z + 2, 2), vr(K0 + 12, 2))
    for j in range(2): a("v_permlane32_swap_b32 v%d, v%d", Z + 5 + 2 * j, Z + 4 + 2 * j)
    for i in range(2, 12, 2):
        for j in range(2): a("v_pk_fma_f32 %s, %s, 0, %s", vr(Z + 2 * j, 2), vr(K0 + 12 * j + i, 2), vr(Z + 2 * j, 2))
    a("v_cmp_le_f32 s[%d:%d], s%d, v%d", sC, sC + 1, sT3, Z + 4)
    a("v_cmp_le_f32 s[%d:%d], s%d, v%d", sC2, sC2 + 1, sT3, Z + 6)
    a("v_pk_add_f32 %s, %s, %s", vr(Z, 2), vr(Z, 2), vr(Z + 2, 2))
    a("v_cmp_ge_f32 vcc, s%d, v%d", sT2, Z + 4)
    a("s_and_b64 s[%d:%d], s[%d:%d], s[%d:%d]", sC, sC + 1, sC, sC + 1, sC2, sC2 + 1)
    a("v_cmp_ge_f32 s[%d:%d], s%d, v%d", sC2, sC2 + 1, sT2, Z + 6)
    a("s_and_b64 s[%d:%d], s[%d:%d], vcc", sC, sC + 1, sC, sC + 1)
    a("v_cmp_o_f32 vcc, v%d, v%d", Z, Z + 1)
    a("s_and_b64 s[%d:%d], s[%d:%d], s[%d:%d]", sC, sC + 1, sC, sC + 1, sC2, sC2 + 1)
    a("s_and_b64 s[%d:%d], s[%d:%d], vcc", sC, sC + 1, sC, sC + 1)
    a("s_cmp_eq_u64 s[%d:%d], -1", sC, sC + 1)
    a("s_cbranch_scc0 L_slow")
    a.label("L_fin")
    for j in range(2): a("v_rcp_f32 v%d, v%d", Z + 2 * j, Z + 4 + 2 * j)
    a("v_mov_b32 v%d, 2", vT2)
    for j in range(2):
        k = K0 + 12 * j
        for i in range(0, 12, 2): a("v_pk_mul_f32 %s, %s, %s op_sel_hi:[1,0]", vr(k + i, 2), vr(k + i, 2), vr(Z + 2 * j, 2))
        for i in range(4): a("v_cvt_pk_bf16_f32 v%d, v%d, v%d", S + 4 * j + i, k + 2 * i, k + 2 * i + 1)
        a("buffer_store_dwordx4 %s, v%d, %s, s%d offen offset:%d sc1", vr(S + 4 * j, 4), vL16, srd, sO, j * 1024)
        for i in range(2): a("v_cvt_pk_bf16_f32 v%d, v%d, v%d", S + 8 + 2 * j + i, k + 8 + 2 * i, k + 9 + 2 * i)
    a("buffer_store_dwordx4 %s, v%d, %s, s%d offen sc1", vr(S + 8, 4), vOr, srd, sO)
    st(16, False)
    a("ds_write_b32 v%d, v%d offset:12", vFo, vT2)
    a("v_mov_b32 v%d, s%d", vNon, sNon)
    a("v_mov_b32 v%d, s%d", vNon + 1, sNon + 1)
    a("v_lshrrev_b32 v%d, 4, v%d", vT4, vLane)
    a("v_and_b32 v%d, 15, v%d", vT3, vLane)
    a("s_lshl_b32 s%d, s%d, 8", sT, sE)
    a("v_lshl_add_u32 v%d, v%d, 4, s%d", vT1, vT3, sT)
    a("v_lshrrev_b32 v%d, 5, v%d", vT2, vLane)
    a("v_mul_u32_u24 v%d, 2560, v%d", vT2, vT2)
    a("v_and_b32 v%d, 16, v%d", vOa, vLane)
    a("v_lshl_add_u32 v%d, v%d, 5, v%d", vOa, vOa, vT2)
    a("v_add_u32 v%d, v%d, v%d", vOa, vOa, vT1)
    a("v_mul_u32_u24 v%d, %d, v%d", vOb, 2 * OB, vT4)
    a("v_add_u32 v%d, v%d, v%d", vOb, vOb, vT1)
    a("v_add_u32 v%d, 2048, v%d", vOb, vOb)
    a("s_mul_i32 s%d, s%d, %d", sT, sQH, 8 * 5120)
    a("s_add_u32 s%d, s%d, %d", sT, sT, WOB)
    a("v_and_b32 v%d, 31, v%d", vT1, vLane)
    a("v_mul_u32_u24 v%d, 40, v%d", vT1, vT1)
    a("v_add3_u32 v%d, v%d, v%d, s%d", vWa2, vT1, vT2, sT)
    a("s_mul_i32 s%d, s%d, %d", sT, sQH, 7 * 5120)
    a("s_sub_u32 s%d, %d, s%d", sT, 16 * 5120, sT)
    a("v_add_u32 v%d, s%d, v%d", vWa3, sT, vWa2)
    a("v_and_b32 v%d, 4, v%d", vT2, vT3)
    a("v_lshlrev_b32 v%d, 2, v%d", vT2, vT2)
    a("v_and_b32 v%d, 8, v%d", vT1, vT3)
    a("v_lshrrev_b32 v%d, 1, v%d", vT1, vT1)
    a("v_and_b32 v%d, 3, v%d", vT3, vT3)
    a("v_or3_b32 v%d, v%d, v%d, v%d", vT2, vT2, vT3, vT1)
    a("v_mul_u32_u24 v%d, 2560, v%d", vT2, vT2)
    a("v_mad_u32_u24 v%d, v%d, 40, v%d", vSt, vT4, vT2)
    a("v_lshlrev_b32 v%d, 7, v%d", vT2, vLane)
    a("v_lshl_or_b32 v%d, v%d, 29, v%d", vFl, vT4, vT2)
    a("s_waitcnt vmcnt(0)")
    a("buffer_store_dwordx2 %s, off, %s, s%d sc0 sc1", vr(vNon, 2), srd, sF2)
    st(10)
    def wread_ops(s):
        fb = s % 2
        base, blk = (vWa2, 4 * (s // 5) + s % 5) if s % 5 < 4 else (vWa3, 2 * (s // 5))
        return ["ds_read_b64_tr_b16 %s, v%d offset:%d" % (vr(WF + 20 * fb + 4 * j + 2 * q, 2), base, blk * 5120 + j * 8 + q * 1280) for j in range(5) for q in range(2)]
    def oloads(s):
        hp0 = 4 * (s // 5)
        if s % 5 < 4:
            return ["s_add_u32 s%d, s%d, %d" % (sNxt, sOc, (hp0 + s % 5) * 2 * OB)] + \
                   ["buffer_load_dwordx4 %s, v%d, %s, s%d offen offset:%d sc1" % (vr(OF + 8 * s + 4 * j, 4), vOa, srd, sNxt, 1024 * j) for j in range(2)]
        return ["s_add_u32 s%d, s%d, %d" % (sNxt, sOc, hp0 * 2 * OB)] + \
               ["buffer_load_dwordx4 %s, v%d, %s, s%d offen offset:%d sc1" % (vr(OF + 8 * s + 4 * e, 4), vOb, srd, sNxt, OB * e) for e in range(2)]
    a("s_waitcnt vmcnt(0)")
    st(11)
    poll("L_poll2", sPend, "0xffff", 0x8000, env("SLP2", 2))
    st(12)
    NL = 10
    a("s_cmp_eq_u32 s%d, 0", sQH)
    a("s_cbranch_scc1 L_aload")
    for s in range(10):
        for x in oloads(s): a(x)
    a.label("L_aback")
    all8("L_wdone", 2)
    st(13)
    for x in wread_ops(0): a(x)
    for s in range(10):
        o = OF + 8 * s
        rd = wread_ops(s + 1) if s < 9 else []
        issued = min(10, NL + s)
        a("s_waitcnt vmcnt(%d) lgkmcnt(0)", 2 * (issued - 1 - s))
        if s % 5 == 4:
            a("v_swap_b32 v%d, v%d", o + 2, o + 4)
            a("v_swap_b32 v%d, v%d", o + 3, o + 5)
            a("s_nop 1")
        n = 0
        for tt in (1, 0):
            for j in range(5):
                d = ACC2 + 4 * (5 * tt + j)
                a("v_mfma_f32_16x16x32_bf16 %s, %s, %s, %s", vr(d, 4), vr(WF + 20 * (s % 2) + 4 * j, 4), vr(o + 4 * tt, 4), vr(d, 4) if s else "0")
                n += 1
                for _ in range(2):
                    if rd: a(rd.pop(0))
                if n == 6 and NL + s < 10:
                    a("s_cmp_eq_u32 s%d, 0", sQH)
                    a("s_cbranch_scc1 L_nold%d", s)
                    for x in oloads(NL + s): a(x)
                    a.label("L_nold%d" % s)
    st(14, False)
    a("s_cmp_eq_u32 s%d, 0", sQH)
    a("s_cbranch_scc0 L_x1")
    a("v_mov_b32 v%d, 1", vT2)
    a("s_nop 4")
    for q in (5, 6, 7, 8, 9, 0, 1, 2, 3, 4): a("ds_write_b128 v%d, %s offset:%d", vAr, vr(ACC2 + 4 * q, 4), q * 1024)
    a("ds_write_b32 v%d, v%d offset:%d", vFo, vT2, 128 + 8)
    a("s_waitcnt lgkmcnt(0)")
    a("s_branch L_xdone") if DIAG else a("s_endpgm")
    a.label("L_x1")
    a("s_mov_b32 s%d, 0", sTmo)
    if DIAG: a("s_waitcnt lgkmcnt(0)")
    for f in xreads(2, vAr, 10, PART): f()
    xcheck("L_xch", 2, vAr, 10, PART)
    a("s_add_u32 s%d, s%d, %d", sT2, sPub, 32 * 2560)
    for tt in range(2):
        for q in range(5):
            r = ACC2 + 20 * tt + 4 * q
            o = WF + 12 * tt
            a("s_waitcnt lgkmcnt(%d)", 9 - 5 * tt - q)
            for h in range(2): a("v_pk_add_f32 %s, %s, %s", vr(r + 2 * h, 2), vr(r + 2 * h, 2), vr(PART + 20 * tt + 4 * q + 2 * h, 2))
            for h in range(2): a("v_cvt_pk_bf16_f32 v%d, v%d, v%d", o + 2 * q + h, r + 2 * h, r + 2 * h + 1)
            if q in (1, 3): a("buffer_store_dwordx4 %s, v%d, %s, s%d offen offset:%d", vr(o + 2 * q - 2, 4), vSt, sr(OUT, 4), sT2 if tt else sPub, 8 * (q - 1))
            if q == 4: a("buffer_store_dwordx2 %s, v%d, %s, s%d offen offset:32", vr(o + 8, 2), vSt, sr(OUT, 4), sT2 if tt else sPub)
    a.label("L_xdone")
    st(15)
    a.label("L_exit")
    st.flush(sW)
    a.label("L_end")
    a("s_endpgm")
    a.label("L_mid")
    a("s_add_u32 s%d, s%d, 1", sTrig, sTrig)
    a("s_cmp_eq_u32 s%d, 3", sCh)
    a("s_cbranch_scc0 L_mid2")
    a("s_lshl_b32 s%d, s%d, 1", sT3, sTB)
    a("s_add_u32 s%d, s%d, s%d", sT3, sT3, sHH)
    a("s_lshl_b32 s%d, s%d, 1", sT3, sT3)
    a("s_add_u32 s%d, s%d, s%d", sT3, sT3, sKH)
    a("s_lshl_b32 s%d, s%d, 5", sT2, sB)
    a("s_add_u32 s%d, s%d, s%d", sT2, sT2, sT3)
    a("s_lshl_b32 s%d, s%d, 1", sT2, sT2)
    a("s_add_u32 s%d, s%d, s%d", sT2, sT2, sQH)
    a("s_mul_i32 s%d, s%d, %d", sOc, sT2, 16 * OB)
    a("s_add_u32 s%d, s%d, %d", sOc, sOc, O_OFF)
    a("s_lshl_b32 s%d, s%d, 11", sT2, sT2)
    a("s_add_u32 s%d, s%d, %d", sPend, sT2, F2_OFF)
    a("s_lshl_b32 s%d, s%d, 3", sT3, sT3)
    a("s_add_u32 s%d, s%d, s%d", sT3, sT3, sE)
    a("s_mul_i32 s%d, s%d, %d", sPub, sT3, 8 * 2560)
    a("s_mul_i32 s%d, s%d, 1280", sT2, sB)
    a("s_add_u32 s%d, s%d, s%d", sPub, sPub, sT2)
    a("s_and_b32 s%d, s%d, 7", sT2, sHP)
    a("s_mul_i32 s%d, s%d, 160", sT2, sT2)
    a("s_add_u32 s%d, s%d, s%d", sPub, sPub, sT2)
    a("s_cmp_eq_u32 s%d, 0", sMsk)
    a("s_cbranch_scc1 L_poll3_ok")
    poll("L_poll3", sF1, "0xffff", 0x4000, 2)
    a.label("L_mid2")
    a("s_cmp_eq_u32 s%d, 0", sQH)
    a("s_cselect_b32 s%d, 0, s%d", sTrig, sTrig)
    a("s_cbranch_scc1 L_attn_go")
    a("s_cmp_eq_u32 s%d, %d", sCh, max(BLEAD + 1, 3))
    a("s_cbranch_scc0 L_mid3")
    a("s_setprio 1")
    a.label("L_mid3")
    a("s_cmp_ge_u32 s%d, %d", sCh, max(BLEAD + 1, 4))
    a("s_cselect_b32 s%d, 0, s%d", sTrig, sTrig)
    a("s_cmp_eq_u32 s%d, 4", sCh)
    a("s_cbranch_scc0 L_attn_go")
    a("s_cmp_lt_u32 s%d, 5", sW)
    a("s_cbranch_scc1 L_attn_go")
    a("v_mov_b32 v%d, 2.0", vG)
    a("v_mov_b32 v%d, 2.0", vGb)
    a("s_mov_b32 s%d, %d", sLo, CMB + 8 * 7168)
    a("s_mov_b32 s%d, 0", sLs)
    a("s_mov_b32 s%d, 0", sGs)
    a("s_mov_b32 s%d, 0", sGx)
    a("s_mov_b32 s%d, 0", sGo)
    a("s_branch L_attn_go")
    a.label("L_aload")
    for s_ in range(10):
        for x in oloads(s_): a(x)
        a("s_waitcnt vmcnt(%d)", env("AW", 4))
    a("s_setprio 0")
    a("s_branch L_aback")
    for v in range(2):
        a.label("L_nonce%d" % v)
        a("s_mov_b32 s%d, 0", sT)
        a.label("L_nonce_retry%d" % v)
        a("v_mov_b32 v%d, 0", vT1)
        a("global_load_dwordx2 %s, v%d, s[%d:%d] sc0 sc1", vr(vNon, 2), vT1, sDbg, sDbg + 1)
        a("s_add_u32 s%d, s%d, 1", sT, sT)
        a("s_waitcnt vmcnt(0)")
        a("v_readfirstlane_b32 s%d, v%d", sNon + 1, vNon + 1)
        a("v_readfirstlane_b32 s%d, v%d", sNon, vNon)
        a("s_cmp_gt_u32 s%d, 0x4000", sT)
        a("s_cbranch_scc1 L_nonce_ok%d", v)
        a("s_cmp_eq_u32 s%d, 0", sNon + 1)
        a("s_cbranch_scc1 L_nonce_retry%d", v)
        a("s_branch L_nonce_ok%d", v)
    for f in stubs: f()
    a.label("L_slow")
    C = S
    MX = O
    a("s_waitcnt vmcnt(0)")
    a("s_and_b32 s%d, s%d, 3", sT, sW)
    a("s_mul_i32 s%d, s%d, %d", sT, sT, BLK)
    a("s_sub_u32 s%d, s%d, s%d", sKV, sKV, sT)
    a("s_mov_b32 s%d, s%d", sCur, sKV)
    a("s_add_u32 s%d, s%d, %d", sCh, sKV, KV_PAIR)
    a("v_mov_b32 v%d, 0xff800000", MX)
    a("v_mov_b32 v%d, 0xff800000", MX + 1)
    a.label("L_slow1")
    for b in range(2): kvop("k", b, sCur); kvop("r", b, sCur)
    a("s_waitcnt vmcnt(0)")
    for b in range(2):
        qk1(6, b); qk2(6, b); qk1(7, b); qk2(7, b)
        a("s_nop 15")
        for j in range(2):
            for i in range(8): a("v_max3_f32 v%d, v%d, v%d, v%d", MX + j, MX + j, S + 32 + 16 * j + 2 * i, S + 32 + 16 * j + 2 * i + 1)
    a("s_add_u32 s%d, s%d, %d", sCur, sCur, BLK)
    a("s_cmp_lt_u32 s%d, s%d", sCur, sCh)
    a("s_cbranch_scc1 L_slow1")
    for j in range(2):
        a("v_mov_b32 v%d, v%d", vT1, MX + j)
        a("s_nop 1")
        a("v_permlane32_swap_b32 v%d, v%d", vT1, MX + j)
        a("s_nop 1")
        a("v_max_f32 v%d, v%d, v%d", vT1, vT1, MX + j)
        for i in range(16): a("v_sub_f32 v%d, 0, v%d", C + 16 * j + i, vT1)
    for i in range(24): a("v_mov_b32 v%d, 0", K0 + i)
    a("s_mov_b32 s%d, s%d", sCur, sKV)
    a.label("L_slow2")
    for b in range(2):
        kvop("k", b, sCur); kvop("r", b, sCur); kvop("v", b, sCur, 0); kvop("v", b, sCur, 1)
    a("s_waitcnt vmcnt(0)")
    for b in range(2):
        for j in range(2):
            a("v_mfma_f32_32x32x16_bf16 %s, %s, %s, %s", vr(S + 32 + 16 * j, 16), vr(Km + 4 * b, 4), vr(Qm + 4 * (6 + j), 4), vr(C + 16 * j, 16))
            qk2(6 + j, b)
        a("s_nop 15")
        for i in range(32): ex(S + 32 + i)
        a("s_nop 1")
        pv(6, b, 0); pv(6, b, 1)
        a("s_nop 10")
        pv(7, b, 0); pv(7, b, 1)
    a("s_add_u32 s%d, s%d, %d", sCur, sCur, BLK)
    a("s_cmp_lt_u32 s%d, s%d", sCur, sCh)
    a("s_cbranch_scc1 L_slow2")
    a("s_nop 15")
    get_l()
    a("s_nop 1")
    for j in range(2): a("v_permlane32_swap_b32 v%d, v%d", Z + 5 + 2 * j, Z + 4 + 2 * j)
    a("s_nop 1")
    a("s_branch L_fin")
    a.label("L_code_end")
    return name, NFV, 163840

def gen_spin(a):
    name = "spin_kernel"
    kernel_head(a, name)
    wa, ia, wb, ib, mult, off = [int(x) for x in SPIN.split(",")]
    a("s_cmp_ge_u32 s2, 1")
    a("s_cbranch_scc1 L_spin_end")
    a("s_load_dwordx2 s[4:5], s[0:1], 64")
    a("s_waitcnt lgkmcnt(0)")
    a("s_add_u32 s4, s4, %d", DIAG_OFF)
    a("s_addc_u32 s5, s5, 0")
    if wa >= 0:
        a("v_mov_b32 v1, %d", 4 * ia + 128 * (16 * 8 + wa))
        a("v_mov_b32 v2, %d", 4 * ib + 128 * (16 * 8 + wb))
        a("global_load_dword v3, v1, s[4:5]")
        a("global_load_dword v4, v2, s[4:5]")
        a("s_waitcnt vmcnt(0)")
        a("v_sub_u32 v3, v4, v3")
        a("s_nop 1")
        a("v_readfirstlane_b32 s8, v3")
    else:
        a("v_lshlrev_b32 v1, 11, v0")
        a("v_mov_b32 v2, 0")
        a("global_load_dword v7, v2, s[4:5]")
        for k in range(4):
            a("global_load_dword v%d, v1, s[4:5] offset:%d", 8 + k, 4 * ia + (0 if wa == -1 else 128 * wb))
            a("global_load_dword v%d, v1, s[4:5] offset:%d", 12 + k, 4 * ib + 128 * wb)
            a("v_add_u32 v1, %d, v1", 64 * 2048)
        a("s_waitcnt vmcnt(0)")
        for k in range(8): a("v_sub_u32 v%d, v%d, v7", 8 + k, 8 + k)
        op = "min" if wa == -1 else "max"
        for k in range(1, 4):
            a("v_%s_i32 v8, v8, v%d", op, 8 + k)
            a("v_max_i32 v12, v12, v%d", 12 + k)
        a("s_nop 1")
        a("v_readlane_b32 s20, v8, 0")
        a("v_readlane_b32 s21, v12, 0")
        for l in range(1, 64):
            a("v_readlane_b32 s22, v8, %d", l)
            a("v_readlane_b32 s23, v12, %d", l)
            a("s_%s_i32 s20, s20, s22", op)
            a("s_max_i32 s21, s21, s23")
        a("s_sub_u32 s8, s21, s20")
    a("s_memrealtime s[10:11]")
    a("s_nop 3")
    a("s_max_u32 s8, s8, %d", off)
    a("s_sub_u32 s8, s8, %d", off)
    a("s_min_u32 s8, s8, 20000")
    a("s_mul_i32 s8, s8, %d", mult)
    a("s_waitcnt lgkmcnt(0)")
    a.label("L_spin")
    a("s_memrealtime s[12:13]")
    a("s_waitcnt lgkmcnt(0)")
    a("s_sub_u32 s14, s12, s10")
    a("s_cmp_lt_u32 s14, s8")
    a("s_cbranch_scc1 L_spin")
    a.label("L_spin_end")
    a("s_endpgm")
    return name, 16, 0

def main(out):
    a = A()
    ks = []
    for g, blk in ((gen_fused, 512),) + (((gen_spin, 64),) if SPIN else ()):
        n, nfv, lds = g(a)
        ks.append((n, nfv, lds, blk))
    hdr = "; Two independent MHA blocks (S=2048, D=640, H=32, Dh=20), concatenated on the last axis; one fused kernel.\n"
    hdr += "; kernarg: 0 A_x, 8 A_wqkv, 16 A_wo, 24 B_x, 32 B_wqkv, 40 B_wo, 48 out, 56 debug, 64 ws\n"
    if len(ks) == 1 and not env("LIST", 0):
        hdr += "; @launch grid=(256,1,1) block=(%d,1,1) lds=%d\n" % (ks[0][3], ks[0][2])
    else:
        for n, nfv, lds, blk in ks:
            hdr += "; @launch kernel=%s grid=(256,1,1) block=(%d,1,1) lds=%d\n" % (n, blk, lds)
    s = hdr + '.amdgcn_target "amdgcn-amd-amdhsa--gfx950"\n.text\n' + a.text()
    s += '.section .rodata,"a"\n'
    for n, nfv, lds, blk in ks: s += kd(n, nfv)
    open(out, "w").write(s)

if __name__ == "__main__":
    main(sys.argv[1] if len(sys.argv) > 1 else "cdna_kernels/%s.s" % NAME)
```

```python
import math, struct, sys, os

NAME = "concat_heads__mha_block__softmax_full_mha__prompt"
BLK = 12288
KV_PAIR = 32 * BLK
KV_OFF = 0
OB = 2560
O_OFF = KV_OFF + 32 * KV_PAIR
O_BYTES = 32 * 32 * OB
F1_OFF = O_OFF + 2 * O_BYTES
F2_OFF = F1_OFF + 128 * 1024
WS_USED = F2_OFF + 2048 * 128
CSCALE = math.log2(math.e) / math.sqrt(20.0)
OOB = 0x40000000
DIAG = int(os.environ.get("DIAG", "0"))
DIAG_OFF = 64 << 20
def env(n, d): return int(os.environ.get(n, str(d)))
NT = env("NT", 0)
SKEW = env("SKEW", 2)
HELP = env("HELP", 1)
SPIN = os.environ.get("SPIN", "")

def f32bits(x): return struct.unpack("<I", struct.pack("<f", x))[0]

class A:
    def __init__(self): self.l = []
    def __call__(self, s, *a): self.l.append("    " + (s % a if a else s))
    def label(self, s): self.l.append(s + ":")
    def raw(self, s): self.l.append(s)
    def c(self, s): self.l.append("    ; " + s)
    def text(self): return "\n".join(self.l) + "\n"

def vr(b, n): return "v[%d:%d]" % (b, b + n - 1) if n > 1 else "v%d" % b
def sr(b, n): return "s[%d:%d]" % (b, b + n - 1) if n > 1 else "s%d" % b

def kernel_head(a, name):
    a.raw(".globl %s" % name); a.raw(".p2align 8"); a.raw(".type %s,@function" % name); a.label(name)

def kd(name, nfv, nsg=100):
    acc = (nfv + 3) // 4 * 4
    return """.p2align 6
.amdhsa_kernel %s
  .amdhsa_next_free_vgpr %d
  .amdhsa_next_free_sgpr %d
  .amdhsa_accum_offset %d
  .amdhsa_group_segment_fixed_size 0
  .amdhsa_kernarg_size 72
  .amdhsa_user_sgpr_count 2
  .amdhsa_user_sgpr_kernarg_segment_ptr 1
  .amdhsa_system_sgpr_workgroup_id_x 1
.end_amdhsa_kernel
""" % (name, nfv, nsg, acc)

class Stamps:
    def __init__(self, a):
        self.a = a
        if DIAG:
            for i in range(62, 100): a("s_mov_b32 s%d, 0", i)
            a("s_memrealtime s[60:61]")
    def g(self, i):
        if DIAG and env("GD", 0): self.a("s_memrealtime s[%d:%d]", 64 + 2 * i, 65 + 2 * i)
    def __call__(self, i, wait=True):
        if not DIAG: return
        if env("GD", 0) and 3 <= i <= 16: return
        if DIAG == 1: self.a("s_memrealtime s[%d:%d]", 64 + 2 * i, 65 + 2 * i)
        else: self.a("s_memtime s[%d:%d]", 64 + 2 * i, 65 + 2 * i)
        if wait: self.a("s_waitcnt lgkmcnt(0)")
    def flush(self, swave):
        if not DIAG: return
        a = self.a
        a("s_mov_b64 exec, -1")
        a("s_waitcnt vmcnt(0)")
        self(17)
        a("s_memrealtime s[62:63]")
        a("s_load_dwordx2 s[56:57], s[0:1], 64")
        a("s_lshl_b32 s58, s2, 4")
        a("s_add_u32 s58, s58, s%d", swave)
        a("s_lshl_b32 s58, s58, 7")
        a("s_add_u32 s58, s58, %d", DIAG_OFF)
        a("v_mov_b32 v1, s58")
        a("s_waitcnt lgkmcnt(0)")
        for i in range(20):
            a("v_mov_b32 v2, s%d", 60 + 2 * i)
            a("global_store_dword v1, v2, s[56:57] offset:%d", 4 * i)
        a("s_waitcnt vmcnt(0)")

def gen_fused(a):
    name = NAME + "_kernel"
    kernel_head(a, name)
    WS, XS, WSRD = 8, 12, 16
    sNon = 20
    sB, sTB, sHP, sHH, sW, sE, sKH, sQH = 22, 23, 24, 25, 26, 27, 28, 29
    sT, sT2, sT3 = 30, 31, 32
    sXoff, sWoff, sM0x, sM0w, sIt, sDX, sDW, sSlot, sSx, sSw = 33, 34, 35, 36, 37, 38, 39, 40, 41, 42
    sNxt, sNxt1, sCh, sR, sTmo, sCur = 33, 34, 35, 36, 38, 39
    sDbg = 44
    sC, sC2 = 46, 48
    sKV, sPub, sF1, sO, sF2, sMsk = 50, 51, 52, 53, 54, 55
    sOc, sPend, sTrig = 40, 41, 43
    sLd, sGx = 3, 34
    sGo, sLo, sGs, sLs, sGd = 36, 37, 42, 44, 45
    WO, OUT = WSRD, XS
    ACC2, WF, OF = 16, 56, 96
    PART = 176
    vOa, vOb, vWa2, vWa3, vSt, vWb2, vWb3, vFl2 = 8, 9, 10, 11, 0, 2, 13, 14
    ACC3 = 216
    sO2, sP2, sM2 = 36, 37, 42
    srd = sr(WS, 4)
    vLane, vM, vH, vT1, vT2, vT3, vT4 = 1, 2, 3, 4, 5, 6, 7
    vK, vKr, vV, vIdx, vFl, vL16, vOr, vS1 = 8, 9, 10, 11, 12, 13, 14, 15
    vG, vGb, vFo, vAr = 0, 2, 3, 15
    vNon, vTch = 252, 255
    vXg, vWg, vXa, vWa = 80, 84, 86, 88
    vG0, vG1, vL0, vL1, vSc, vOne = 243, 244, 245, 246, 248, 249
    vRk, vRr, vRv = 247, 250, 251
    F, ACC = 16, 92
    Qm, Qr, Km, Kr, V, S, O = 16, 48, 64, 72, 76, 92, 156
    NFV = 256
    WBASE = 98304
    LFLAG, WOB = 0, 1024
    CMB = WOB + 102400
    IMG = 1024

    a("s_cmp_ge_u32 s2, 256")
    a("s_cbranch_scc1 L_end")
    st = Stamps(a)
    a("s_bfe_u32 s%d, s2, 0x10002", sB)
    a("s_mul_i32 s%d, s%d, 24", sT, sB)
    a("s_load_dwordx4 s[4:7], s[0:1], s%d", sT)
    a("s_load_dwordx2 s[%d:%d], s[0:1], 64", WS, WS + 1)
    a("s_load_dwordx2 s[%d:%d], s[0:1], 56", sDbg, sDbg + 1)
    a("s_add_u32 s%d, s%d, 16", sT, sT)
    a("s_load_dwordx2 s[56:57], s[0:1], s%d", sT)
    a("s_load_dwordx2 s[58:59], s[0:1], 48")
    a("s_memrealtime s[%d:%d]", sNon, sNon + 1)
    a("v_lshrrev_b32 v%d, 6, v0", vT1)
    a("v_and_b32 v%d, 63, v0", vLane)
    a("v_readfirstlane_b32 s%d, v%d", sW, vT1)
    a("s_bfe_u32 s%d, s2, 0x10001", sTB)
    a("s_lshl_b32 s%d, s%d, 2", sTB, sTB)
    a("s_bfe_u32 s%d, s2, 0x20003", sT)
    a("s_or_b32 s%d, s%d, s%d", sTB, sTB, sT)
    a("s_and_b32 s%d, s2, 1", sHH)
    a("s_lshl_b32 s%d, s%d, 3", sHP, sHH)
    a("s_lshr_b32 s%d, s2, 5", sT)
    a("s_or_b32 s%d, s%d, s%d", sHP, sHP, sT)
    a("s_lshr_b32 s%d, s2, 7", sT)
    a("s_xor_b32 s%d, s%d, s%d", sHP, sHP, sT)
    a("s_and_b32 s%d, s%d, 1", sE, sW)
    a("v_lshrrev_b32 v%d, 3, v0", vT1)
    a("s_mul_i32 s%d, s%d, 24", sT, sW)
    a("v_add_u32 v%d, s%d, v%d", vT1, sT, vT1)
    a("v_mul_u32_u24 v%d, 1280, v%d", vT1, vT1)
    a("v_lshrrev_b32 v%d, 4, v%d", vT4, vLane)
    a("v_and_b32 v%d, 7, v%d", vT3, vLane)
    a("v_xor_b32 v%d, v%d, v%d", vT2, vT4, vT3)
    a("v_xor_b32 v%d, 4, v%d", vT3, vT2)
    a("v_lshl_add_u32 v%d, v%d, 4, v%d", vXg + 0, vT2, vT1)
    a("v_lshl_add_u32 v%d, v%d, 4, v%d", vXg + 1, vT3, vT1)
    a("v_add_u32 v%d, %d, v%d", vXg + 1, 8 * 1280 - 1024, vXg + 1)
    a("v_add_u32 v%d, %d, v%d", vXg + 2, 16 * 1280 - 2048, vXg + 0)
    a("v_add_u32 v%d, %d, v%d", vXg + 3, 16 * 1280 - 2048, vXg + 1)
    TAB = [0, 3, 1, 4, 5, 8, 6, 9, 2, 7, 10, 11, 13, 14, 12, 15]
    tab = sum(v << (4 * i) for i, v in enumerate(TAB))
    a("s_lshl_b32 s%d, s%d, 3", sT, sE)
    a("v_lshl_add_u32 v%d, v%d, 1, s%d", vT2, vT4, sT)
    a("v_and_b32 v%d, 15, v%d", vM, vLane)
    a("v_xor_b32 v%d, v%d, v%d", vT2, vT2, vM)
    a("v_lshlrev_b32 v%d, 2, v%d", vT2, vT2)
    a("s_mov_b32 s%d, 0x%x", sC, tab & 0xffffffff)
    a("s_mov_b32 s%d, 0x%x", sC + 1, tab >> 32)
    a("v_lshrrev_b64 v[16:17], v%d, s[%d:%d]", vT2, sC, sC + 1)
    a("v_and_b32 v%d, 15, v16", vT2)
    a("s_lshl_b32 s%d, s%d, 3", sT, sW)
    a("v_add_u32 v%d, s%d, v%d", vT1, sT, vT4)
    a("v_mul_u32_u24 v%d, 3840, v%d", vT1, vT1)
    a("v_mul_u32_u24 v%d, 13, v%d", vT3, vT2)
    a("v_lshrrev_b32 v%d, 6, v%d", vT3, vT3)
    a("v_mul_u32_u24 v%d, %d, v%d", vT3, 1280 - 80, vT3)
    a("v_cmp_eq_u32 vcc, 15, v%d", vT2)
    a("v_lshl_add_u32 v%d, v%d, 4, v%d", vT2, vT2, vT3)
    a("v_mov_b32 v%d, 0x%x", vS1, OOB)
    if HELP:
        a("s_and_b32 s%d, s%d, 7", sT, sHP)
        a("s_mov_b32 s%d, 0x%x", sT2, OOB)
        for hp, sec in ((0, 0), (2, 1), (5, 2)):
            a("s_cmp_eq_u32 s%d, %d", sT, hp)
            a("s_cselect_b32 s%d, %d, s%d", sT2, sec * 1280 + 256 - 80 * hp + (HELP - 1) * 64 * 3840, sT2)
        a("s_bfe_u32 s%d, s%d, 0x10001", sT, sTB)
        a("v_lshrrev_b32 v%d, 1, v%d", vT3, vT4)
        a("v_cmp_eq_u32 s[%d:%d], s%d, v%d", sC, sC + 1, sT, vT3)
        a("v_mov_b32 v%d, s%d", vT3, sT2)
        a("s_nop 0")
        a("v_cndmask_b32 v%d, v%d, v%d, s[%d:%d]", vT3, vS1, vT3, sC, sC + 1)
        a("v_cndmask_b32 v%d, v%d, v%d, vcc", vT2, vT2, vT3)
    else:
        a("v_cndmask_b32 v%d, v%d, v%d, vcc", vT2, vT2, vS1)
    a("v_add_u32 v%d, v%d, v%d", vWg + 0, vT1, vT2)
    a("v_add_u32 v%d, %d, v%d", vWg + 1, 4 * 3840 - 1024, vWg + 0)
    a("s_lshr_b32 s%d, s%d, 1", sT, sW)
    a("s_mul_i32 s%d, s%d, 24576", sM0x, sT)
    a("s_lshl_b32 s%d, s%d, 12", sT, sE)
    a("s_add_u32 s%d, s%d, s%d", sM0x, sM0x, sT)
    a("s_lshl_b32 s%d, s%d, 11", sM0w, sW)
    a("s_add_u32 s%d, s%d, %d", sM0w, sM0w, WBASE)
    a("s_mov_b32 s%d, %d", XS + 2, 256 * 1280)
    a("s_mov_b32 s%d, 0x20000", XS + 3)
    a("s_mov_b32 s%d, 0x20000", WSRD + 3)
    if SKEW:
        a("s_xor_b32 s%d, s%d, s%d", sT, sTB, sHP)
        a("s_and_b32 s%d, s%d, 1", sT, sT)
        a("s_mul_i32 s%d, s%d, 5", sT, sT)
        if SKEW > 1:
            a("s_lshr_b32 s%d, s2, 1", sT2)
            a("s_xor_b32 s%d, s%d, s2", sT2, sT2)
            a("s_and_b32 s%d, s%d, 1", sT2, sT2)
            a("s_mul_i32 s%d, s%d, %d", sT2, sT2, SKEW)
            a("s_add_u32 s%d, s%d, s%d", sT, sT, sT2)
        FOL = env("FOL", 1)
        if FOL:
            a("s_bfe_u32 s%d, s2, 0x10005", sT2)
            a("s_mul_i32 s%d, s%d, %d", sT2, sT2, 10 - FOL)
            a("s_add_u32 s%d, s%d, s%d", sT, sT, sT2)
            a("s_cmp_ge_u32 s%d, 10", sT)
            a("s_cselect_b32 s%d, 10, 0", sT2)
            a("s_sub_u32 s%d, s%d, s%d", sT, sT, sT2)
        a("s_lshl_b32 s%d, s%d, 7", sXoff, sT)
        a("s_mul_i32 s%d, s%d, %d", sWoff, sT, 64 * 3840)
    else:
        a("s_mov_b32 s%d, 0", sXoff)
        a("s_mov_b32 s%d, 0", sWoff)
    a("s_mul_i32 s%d, s%d, %d", sT, sTB, 256 * 1280)
    a("s_mul_i32 s%d, s%d, 80", sT2, sHP)
    a("s_sub_u32 s%d, %d, s%d", WSRD + 2, 640 * 3840, sT2)
    a("s_waitcnt lgkmcnt(0)")
    a("s_add_u32 s%d, s4, s%d", XS, sT)
    a("s_addc_u32 s%d, s5, 0", XS + 1)
    a("s_add_u32 s%d, s6, s%d", WSRD, sT2)
    a("s_addc_u32 s%d, s7, 0", WSRD + 1)

    ntx = " nt" if NT & 1 else ""
    ntw = " nt" if NT & 2 else ""
    def dma_ops(slot_x, slot_w):
        ops = []
        def x(i):
            if i == 0:
                a("s_add_u32 m0, s%d, %s", sM0x, slot_x); a("s_nop 0")
            a("buffer_load_dwordx4 v%d, %s, s%d offen offset:%d%s lds", vXg + i, sr(XS, 4), sXoff, 1024 * i, ntx)
        def w(i):
            if i == 0:
                a("s_add_u32 m0, s%d, %s", sM0w, slot_w)
                a("s_add_u32 s%d, s%d, %d", sXoff, sXoff, 0 if env("NOADV", 0) & 1 else 128)
            a("buffer_load_dwordx4 v%d, %s, s%d offen offset:%d%s lds", vWg + i, sr(WSRD, 4), sWoff, 1024 * i, ntw)
            if i == 1:
                a("s_add_u32 s%d, s%d, %d", sWoff, sWoff, 0 if env("NOADV", 0) & 2 else 64 * 3840)
                if SKEW:
                    a("s_cmp_eq_u32 s%d, 1280", sXoff)
                    a("s_cselect_b32 s%d, 0, s%d", sXoff, sXoff)
                    a("s_cselect_b32 s%d, 0, s%d", sWoff, sWoff)
        for i in range(4): ops.append(lambda i=i: x(i))
        for i in range(2): ops.append(lambda i=i: w(i))
        return ops
    for op in dma_ops("0", "0"): op()
    a("s_bfe_u32 s%d, s%d, 0x10001", sKH, sW)
    a("s_lshr_b32 s%d, s%d, 2", sQH, sW)
    a("s_mov_b32 s%d, %d", WS + 2, WS_USED)
    a("s_mov_b32 s%d, 0x20000", WS + 3)
    a("s_and_b32 s%d, s%d, 3", sT3, sW)
    a("v_lshrrev_b32 v%d, 1, v%d", vT1, vM)
    a("v_xor_b32 v%d, v%d, v%d", vT1, vT1, vT4)
    a("s_mul_i32 s%d, s%d, 24576", sT, sT3)
    a("v_lshl_add_u32 v%d, v%d, 7, s%d", vT2, vM, sT)
    a("v_lshl_add_u32 v%d, v%d, 4, v%d", vXa, vT1, vT2)
    a("v_xor_b32 v%d, 64, v%d", vXa + 1, vXa)
    a("v_bfe_u32 v%d, v%d, 2, 2", vT1, vLane)
    a("v_lshl_add_u32 v%d, v%d, 3, v%d", vT2, vT4, vT1)
    a("v_lshlrev_b32 v%d, 8, v%d", vT2, vT2)
    a("v_and_b32 v%d, 3, v%d", vT3, vLane)
    a("v_lshl_add_u32 v%d, v%d, 3, v%d", vT2, vT3, vT2)
    a("v_add_u32 v%d, %d, v%d", vT2, WBASE, vT2)
    a("v_bfe_u32 v%d, v%d, 2, 3", vT1, vLane)
    a("s_lshl_b32 s%d, s%d, 2", sT, sQH)
    a("v_xor_b32 v%d, s%d, v%d", vT1, sT, vT1)
    a("v_lshl_add_u32 v%d, v%d, 5, v%d", vWa, vT1, vT2)
    for xt in range(1, 4): a("v_xor_b32 v%d, %d, v%d", vWa + xt, 32 * xt, vWa)
    mark = len(a.l)
    a("v_lshlrev_b32 v%d, 4, v%d", vL16, vLane)
    a("s_lshl_b32 s%d, s%d, 14", sT, sT3)
    a("s_add_u32 s%d, s%d, %d", sT, sT, IMG)
    a("v_add_u32 v%d, s%d, v%d", vL0, sT, vL16)
    a("v_cmp_lt_u32 vcc, 1, v%d", vT4)
    a("v_lshlrev_b32 v%d, 3, v%d", vT1, vLane)
    a("v_add_u32 v%d, 4096, v%d", vT1, vT1)
    a("v_mov_b32 v%d, 0x%x", vT2, f32bits(CSCALE))
    a("v_cndmask_b32 v%d, v%d, v%d, vcc", vG0, vS1, vT1)
    a("v_cndmask_b32 v%d, v%d, 1.0, vcc", vSc, vT2)
    a("v_and_b32 v%d, 4, v%d", vT1, vM)
    a("v_and_b32 v%d, 8, v%d", vT2, vM)
    a("v_lshlrev_b32 v%d, 5, v%d", vT1, vT1)
    a("v_lshl_add_u32 v%d, v%d, 3, v%d", vT1, vT2, vT1)
    a("v_and_b32 v%d, 0x330, v%d", vT2, vL16)
    a("v_add_u32 v%d, v%d, v%d", vT1, vT1, vT2)
    a("v_add_u32 v%d, 6144, v%d", vG1, vT1)
    a("v_add_u32 v%d, s%d, v%d", vL1, sT, vG1)
    if not env("PEEL", 1):
        for i in range(64): a("v_mov_b32 v%d, 0", ACC + i)
    a("v_and_b32 v%d, 11, v%d", vT1, vM)
    a("v_cmp_eq_u32 vcc, 8, v%d", vT1)
    a("v_mov_b32 v%d, 0x3f803f80", vT1)
    a("v_and_b32 v%d, 31, v0", vM)
    a("v_cndmask_b32 v%d, 0, v%d, vcc", vOne, vT1)
    a("v_bfe_u32 v%d, v0, 5, 1", vH)
    for i in range(O, 243): a("v_mov_b32 v%d, 0", i)
    a("v_mov_b32 v%d, 0xdddddddd", vIdx)
    a("v_and_b32 v%d, 4, v%d", vT1, vM)
    a("v_lshlrev_b32 v%d, 8, v%d", vT1, vT1)
    a("v_and_b32 v%d, 24, v%d", vT2, vM)
    a("v_lshl_add_u32 v%d, v%d, 3, v%d", vT1, vT2, vT1)
    a("v_and_b32 v%d, 3, v%d", vT2, vM)
    a("v_lshl_add_u32 v%d, v%d, 4, v%d", vT1, vT2, vT1)
    a("s_lshl_b32 s%d, s%d, 9", sT, sQH)
    a("v_lshl_add_u32 v%d, v%d, 8, s%d", vT2, vH, sT)
    a("v_add_u32 v%d, v%d, v%d", vK, vT1, vT2)
    a("s_lshl_b32 s%d, s%d, 14", sC, sT3)
    a("v_add_u32 v%d, s%d, v%d", vRk, sC, vK)
    a("s_lshl_b32 s%d, s%d, 8", sT, sQH)
    a("s_add_u32 s%d, s%d, s%d", sT, sT, sC)
    a("v_add_u32 v%d, s%d, v%d", vRr, sT, vT1)
    a("s_lshl_b32 s%d, s%d, 7", sT, sQH)
    a("s_add_u32 s%d, s%d, %d", sT, sT, 4096 + 256)
    a("v_lshrrev_b32 v%d, 1, v%d", vT1, vT1)
    a("v_cmp_eq_u32 vcc, 0, v%d", vH)
    a("v_add_u32 v%d, s%d, v%d", vT1, sT, vT1)
    a("v_add_u32 v%d, 2048, v%d", vT3, vL16)
    a("v_cndmask_b32 v%d, v%d, v%d, vcc", vKr, vS1, vT1)
    a("v_cndmask_b32 v%d, v%d, v%d, vcc", vOr, vS1, vT3)
    a("v_and_b32 v%d, 14, v%d", vT2, vLane)
    a("v_mul_u32_u24 v%d, 56, v%d", vT2, vT2)
    a("v_lshl_add_u32 v%d, v%d, 3, v%d", vT2, vLane, vT2)
    a("v_lshl_or_b32 v%d, v%d, 29, v%d", vFl, vT4, vT2)
    a("v_min_u32 v%d, 21, v%d", vT1, vM)
    a("v_lshlrev_b32 v%d, 4, v%d", vT1, vT1)
    a("v_lshl_add_u32 v%d, v%d, 8, v%d", vT1, vH, vT1)
    a("s_lshl_b32 s%d, s%d, 10", sT, sQH)
    a("s_add_u32 s%d, s%d, 6144", sT, sT)
    a("s_lshl_b32 s%d, s%d, 7", sT2, sQH)
    a("s_add_u32 s%d, s%d, %d", sT2, sT2, 6144 + 2048 - 256)
    a("v_cmp_gt_u32 vcc, 16, v%d", vM)
    a("v_add_u32 v%d, s%d, v%d", vT2, sT, vT1)
    a("v_add_u32 v%d, s%d, v%d", vT3, sT2, vT1)
    a("v_cndmask_b32 v%d, v%d, v%d, vcc", vT1, vT3, vT2)
    a("v_cmp_gt_u32 vcc, 21, v%d", vM)
    a("v_add_u32 v%d, s%d, v%d", vRv, sC, vT1)
    a("s_lshl_b32 s%d, s%d, 2", sT, sTB)
    a("v_cndmask_b32 v%d, v%d, v%d, vcc", vV, vS1, vT1)
    a("s_add_u32 s%d, s%d, s%d", sT, sT, sT3)
    a("s_lshl_b32 s%d, s%d, 5", sC, sB)
    a("s_add_u32 s%d, s%d, s%d", sT2, sT, sC)
    a("s_lshl_b32 s%d, s%d, 1", sT2, sT2)
    a("s_add_u32 s%d, s%d, s%d", sT2, sT2, sQH)
    a("s_lshl_b32 s%d, s%d, 4", sO, sT2)
    a("s_add_u32 s%d, s%d, s%d", sO, sO, sHP)
    a("s_lshl_b32 s%d, s%d, 7", sT2, sO)
    a("s_add_u32 s%d, s%d, %d", sF2, sT2, F2_OFF)
    a("s_mul_i32 s%d, s%d, %d", sO, sO, OB)
    a("s_add_u32 s%d, s%d, %d", sO, sO, O_OFF)
    a("s_lshl_b32 s%d, s%d, 4", sC, sB)
    a("s_add_u32 s%d, s%d, s%d", sC, sC, sHP)
    a("s_mul_i32 s%d, s%d, %d", sKV, sC, KV_PAIR)
    a("s_mul_i32 s%d, s%d, %d", sPub, sT, BLK)
    a("s_add_u32 s%d, s%d, s%d", sPub, sPub, sKV)
    a("s_mul_i32 s%d, s%d, %d", sT2, sT3, BLK)
    a("s_add_u32 s%d, s%d, s%d", sKV, sKV, sT2)
    a("s_lshl_b32 s%d, s%d, 2", sC, sC)
    a("s_add_u32 s%d, s%d, s%d", sC, sC, sT3)
    a("s_lshl_b32 s%d, s%d, 10", sC, sC)
    a("s_add_u32 s%d, s%d, %d", sF1, sC, F1_OFF)
    a("s_and_b32 s%d, s%d, 4", sT, sTB)
    a("s_lshl_b32 s%d, s%d, 1", sT, sT)
    a("s_lshl_b32 s%d, 0xff, s%d", sMsk, sT)
    a("s_mul_i32 s%d, s%d, 12288", sT, sT3)
    a("s_add_u32 s%d, s%d, %d", sT, sT, CMB)
    a("v_add_u32 v%d, s%d, v%d", vAr, sT, vL16)
    a("s_lshl_b32 s%d, s%d, 5", sT, sW)
    a("v_mov_b32 v%d, s%d", vFo, sT)
    a("s_cmp_ge_u32 s%d, 5", sW)
    a("s_cselect_b64 vcc, -1, 0")
    a("s_cselect_b32 s%d, 1, 0", sT2)
    a("s_lshl_b32 s%d, s%d, s%d", sT, sW, sT2)
    a("s_mul_i32 s%d, s%d, 10", sC, sT2)
    a("s_sub_u32 s%d, s%d, s%d", sT, sT, sC)
    a("s_add_u32 s%d, s%d, s%d", sT2, sT2, sT)
    a("s_min_u32 s%d, s%d, 4", sT2, sT2)
    for dst, sp in ((vG, sT), (vGb, sT2)):
        a("s_lshl_b32 s%d, s%d, 6", sC, sp)
        a("v_add_u32 v%d, s%d, v%d", vT1, sC, vLane)
        a("v_mul_u32_u24 v%d, 6554, v%d", vT2, vT1)
        a("v_lshrrev_b32 v%d, 16, v%d", vT2, vT2)
        a("v_mul_u32_u24 v%d, 10, v%d", vT3, vT2)
        a("v_sub_u32 v%d, v%d, v%d", dst, vT1, vT3)
        a("v_and_b32 v%d, 4, v%d", vT1, vT2)
        a("v_lshlrev_b32 v%d, 1, v%d", vT1, vT1)
        a("v_and_b32 v%d, 8, v%d", vT3, vT2)
        a("v_lshrrev_b32 v%d, 1, v%d", vT3, vT3)
        a("v_and_b32 v%d, 0x13, v%d", vT2, vT2)
        a("v_or3_b32 v%d, v%d, v%d, v%d", vT1, vT1, vT2, vT3)
        a("v_lshrrev_b32 v%d, 4, v%d", vT2, vT1)
        a("v_mul_u32_u24 v%d, 24, v%d", vT2, vT2)
        a("v_and_b32 v%d, 28, v%d", vT3, vT1)
        a("v_mad_u32_u24 v%d, v%d, 9, 16", vT3, vT3)
        a("v_cndmask_b32 v%d, v%d, v%d, vcc", vT2, vT2, vT3)
        a("v_add_u32 v%d, v%d, v%d", vT1, vT1, vT2)
        a("v_mul_u32_u24 v%d, 1280, v%d", vT1, vT1)
        a("v_lshl_add_u32 v%d, v%d, 4, v%d", dst, dst, vT1)

    SPLIT = env("SPLIT", 10000) if env("PEEL", 1) else 10000
    part2 = a.l[mark + SPLIT:]
    del a.l[mark + SPLIT:]
    a("s_barrier")
    a("s_or_b32 s%d, s2, s%d", sDX, sW)
    a("s_cbranch_scc1 L_nononce")
    a("s_or_b32 s%d, s%d, 0x80000000", sNon + 1, sNon + 1)
    a("v_mov_b32 v%d, s%d", vNon, sNon)
    a("v_mov_b32 v%d, s%d", vNon + 1, sNon + 1)
    a("v_mov_b32 v%d, 0", 255)
    a("global_store_dwordx2 v%d, %s, s[%d:%d] sc0 sc1", 255, vr(vNon, 2), sDbg, sDbg + 1)
    a.label("L_nononce")
    d1 = dma_ops("8192", "16384")
    for _ in range(env("D1PRE", 4)): d1.pop(0)()
    PEEL = env("PEEL", 1)
    D1PRE = env("D1PRE", 4)
    if not PEEL:
        for op in d1: op()
    CODEPF = env("CODEPF", 1)
    if CODEPF:
        a.label("L_pfbase")
        a("s_getpc_b64 s[%d:%d]", sC2, sC2 + 1)
        a("v_min_u32 v%d, 21, v%d", 255, vLane)
        a("v_lshlrev_b32 v%d, 7, v%d", 255, 255)
        a("s_mul_i32 s%d, s%d, 2816", sDX, sW)
        a("v_add_u32 v%d, s%d, v%d", 255, sDX, 255)
        a("v_min_u32 v%d, %s, v%d", 255, "L_code_end-L_pfbase-8", 255)
        a("global_load_dword v255, v%d, s[%d:%d]", 255, sC2, sC2 + 1)
    def read_ops(fb, ks):
        f = F + 32 * fb
        ops = []
        for t in range(4):
            ops.append(lambda t=t: a("ds_read_b128 %s, v%d offset:%d", vr(f + 4 * t, 4), vXa + ks, t * 2048))
            for q in range(2):
                ops.append(lambda t=t, q=q: a("ds_read_b64_tr_b16 %s, v%d offset:%d", vr(f + 16 + 4 * t + 2 * q, 2), vWa + t, ks * 8192 + q * 1024))
        return ops
    def reads(fb, ks):
        for op in read_ops(fb, ks): op()
    extra = []
    RPM = env("RPM", 1)
    def mfs(fb, isB, rd, dm, misc, zero=False):
        f = F + 32 * fb
        ABL = env("ABL", 0)
        if ABL & 1: f = F; rd = []
        if ABL & 2: dm = []
        if ABL & 4: rd = rd[:9]
        n = 0
        for (xt, t) in sorted([(x, y) for x in range(4) for y in range(4)], key=lambda p: (max(p), p)):
            d = ACC + 16 * xt + 4 * t
            x, w = vr(f + 4 * t, 4), vr(f + 16 + 4 * xt, 4)
            c = "0" if zero else vr(d, 4)
            if isB and xt > 0: a("v_mfma_f32_16x16x32_bf16 %s, %s, %s, %s", vr(d, 4), x, w, c)
            else:              a("v_mfma_f32_16x16x32_bf16 %s, %s, %s, %s", vr(d, 4), w, x, c)
            n += 1
            if rd:
                for _ in range(RPM):
                    if rd: rd.pop(0)()
            elif dm and n % 3 == 1: dm.pop(0)()
            elif misc:
                for _ in range(3):
                    if misc: misc.pop(0)()
        for op in rd + dm + misc: op()
    SH = env("SH", 4)
    def stage(kind, isB, ops):
        if SH: ops = dma_ops("s%d" % sSx, "s%d" % sSw)[:SH] if kind <= 0 else []
        if SH and extra: ops = [extra.pop(0) for _ in range(len(extra))] + ops
        if kind == 1:
            a("v_mov_b32 v%d, 0", vT1)
            a("global_load_dwordx2 %s, v%d, s[%d:%d] sc0 sc1", vr(vNon, 2), vT1, sDbg, sDbg + 1)
        misc = []
        if kind < 2:
            misc = [lambda: (a("s_cmp_eq_u32 s%d, 2", sSlot), a("s_cselect_b32 s%d, -2, 1", sDX)),
                    lambda: a("s_lshl_b32 s%d, s%d, 14", sDW, sDX),
                    lambda: a("s_lshl_b32 s%d, s%d, 13", sT, sDX)]
            misc += [lambda ks=ks: a("v_add_u32 v%d, s%d, v%d", vXa + ks, sT, vXa + ks) for ks in range(2)]
            misc += [lambda ft=ft: a("v_add_u32 v%d, s%d, v%d", vWa + ft, sDW, vWa + ft) for ft in range(4)]
        if kind == 2:
            misc = [lambda: a("v_readfirstlane_b32 s%d, v%d", sNon + 1, vNon + 1),
                    lambda: a("v_readfirstlane_b32 s%d, v%d", sNon, vNon),
                    lambda: a("s_add_u32 s%d, s%d, 3072", sT2, sPub),
                    lambda: a("s_mov_b32 s%d, 0x%x", sC, 0xff00ff00 if isB else f32bits(CSCALE)),
                    lambda: a("s_mov_b32 s%d, s%d", sC + 1, sC),
                    lambda: (a("s_cmp_eq_u32 s%d, 0", sNon + 1), a("s_cbranch_scc1 L_nonce%d", isB), a.label("L_nonce_ok%d" % isB))]
        a("s_waitcnt lgkmcnt(0)")
        mfs(0, isB, read_ops(1, 1), ops, misc)
        nops, rd, misc = [], [], []
        if kind < 2:
            if kind == 0 and not SH:
                a("s_lshl_b32 s%d, s%d, 13", sSx, sSlot)
                a("s_lshl_b32 s%d, s%d, 14", sSw, sSlot)
            a("s_waitcnt vmcnt(%d) lgkmcnt(0)", 0 if kind == 1 else (SH if SH else 6))
            a("s_barrier")
            rd = read_ops(0, 0)
            misc = [lambda: a("s_add_u32 s%d, s%d, s%d", sSlot, sSlot, sDX)]
            if SH and kind <= 0:
                nops = dma_ops("s%d" % sSx, "s%d" % sSw)[SH:]
                nops.append(lambda: (a("s_lshl_b32 s%d, s%d, 13", sSx, sSlot), a("s_lshl_b32 s%d, s%d, 14", sSw, sSlot), a("s_add_u32 s%d, s%d, s%d", sSlot, sSlot, sDX)))
                misc = [lambda: a("s_add_u32 s%d, s%d, 1", sIt, sIt)]
            elif kind == 0:
                nops = dma_ops("s%d" % sSx, "s%d" % sSw)[:3]
                misc += [lambda: a("s_add_u32 s%d, s%d, 1", sIt, sIt)]
            if kind == 1:
                I = lambda f, *x: (lambda: a(f, *x))
                misc += [I("s_and_b32 s%d, s2, -8", sT2), I("s_add_u32 s%d, s%d, s%d", sT2, sT2, sW), I("s_mul_i32 s%d, s%d, %d", sT2, sT2, 25 * 128),
                         I("v_min_u32 v255, 24, v%d", vLane), I("v_lshl_add_u32 v255, v255, 7, s%d", sT2),
                         I("s_lshl_b32 s%d, s%d, 4", sT2, sTB), I("s_add_u32 s%d, s%d, s%d", sT2, sT2, sQH), I("s_lshl_b32 s%d, s%d, 3", sT2, sT2),
                         I("s_add_u32 s%d, s%d, s%d", sTrig, sT2, sF1),
                         I("s_and_b32 s%d, s%d, 7", sT3, sHP), I("s_mul_i32 s%d, s%d, 160", sT3, sT3), I("s_sub_u32 s%d, %d, s%d", WO + 2, 640 * 1280, sT3),
                         lambda: (a("s_add_u32 s%d, s56, s%d", WO, sT3), a("s_addc_u32 s%d, s57, 0", WO + 1)),
                         I("s_mov_b32 s%d, %d", OUT + 2, 2048 * 2560), I("s_mov_b64 s[%d:%d], s[58:59]", OUT, OUT + 1)]
        else:
            a("s_waitcnt lgkmcnt(0)")
            a("s_barrier")
            return
        mfs(1, isB, rd, nops, misc)
    if env("IDLE0", 0): a("s_sleep %d", env("IDLE0", 0))
    st(0)
    a("s_waitcnt vmcnt(%d)", (D1PRE if PEEL else 6) + (1 if CODEPF else 0))
    st(1)
    a("s_barrier")
    reads(0, 0)
    if not PEEL:
        a("s_mov_b32 s%d, %d", sSx, 2 * 8192)
        a("s_mov_b32 s%d, %d", sSw, 2 * 16384)
        d2 = dma_ops("s%d" % sSx, "s%d" % sSw)
        for i in range(3): d2.pop(0)()
    if PEEL:
        a("s_cmp_eq_u32 s%d, 0", sQH)
        a("s_cbranch_scc0 L_st0B")
        for isB in (False, True):
            if isB: a.label("L_st0B")
            a("s_waitcnt lgkmcnt(0)")
            D2A, D2B = env("D2A", 0), env("D2B", 0)
            dd = dma_ops("16384", "32768")
            mfs(0, isB, read_ops(1, 1), dma_ops("8192", "16384")[D1PRE:] + dd[:D2A], [], True)
            a("s_waitcnt lgkmcnt(0)")
            misc = [lambda ks=ks: a("v_add_u32 v%d, 8192, v%d", vXa + ks, vXa + ks) for ks in range(2)]
            misc += [lambda ft=ft: a("v_add_u32 v%d, 16384, v%d", vWa + ft, vWa + ft) for ft in range(4)]
            mfs(1, isB, [], dd[D2A:D2A + D2B], misc)
            if not isB: a("s_branch L_st0done")
        a.label("L_st0done")
        d2 = dma_ops("16384", "32768")[D2A + D2B:]
        a.l += part2
        ND2 = env("ND2", 2) if SH else 6
        for op in d2[:ND2 - D2A - D2B]: op()
        a("s_mov_b32 s%d, 1", sSlot)
        a("s_mov_b32 s%d, 1", sIt)
        a("s_mov_b32 s%d, 0", sSx)
        a("s_mov_b32 s%d, 0", sSw)
        st.g(3)
        a("s_waitcnt vmcnt(%d)", ND2)
        a("s_barrier")
        st.g(4)
        reads(0, 0)
    a("s_cmp_eq_u32 s%d, 0", sQH)
    a("s_cbranch_scc0 L_gemmB0")
    CV = F
    for isB in (False, True):
        L = "L_gemmB" if isB else "L_gemmA"
        a.label(L + "0")
        if SH: extra += dma_ops("16384", "32768")[ND2:]
        if PEEL: stage(0, isB, dma_ops("0", "0"))
        a.label(L)
        if DIAG and env("GD", 0):
            for k in range(5):
                st.g(5 + k)
                stage(0, isB, dma_ops("s%d" % sSx, "s%d" % sSw)[3:])
        else:
            stage(0, isB, dma_ops("s%d" % sSx, "s%d" % sSw)[3:])
            a("s_cmp_lt_u32 s%d, 7", sIt)
            a("s_cbranch_scc1 %s", L)
        st.g(10)
        stage(-1, isB, dma_ops("s%d" % sSx, "s%d" % sSw)[3:])
        st.g(11)
        stage(1, isB, [])
        st.g(12)
        stage(2, isB, [])
        st(2, False)
        def cvt(dst, src):
            return ["v_cvt_pk_bf16_f32 v%d, v%d, v%d" % (dst, src, src + 1), "v_cvt_pk_bf16_f32 v%d, v%d, v%d" % (dst + 1, src + 2, src + 3)]
        units, late, pre = [], [], []
        if not isB:
            for t in range(4):
                o = CV + 4 * t
                units.append(([(2, t), (3, t)], cvt(o, ACC + 32 + 4 * t) + cvt(o + 2, ACC + 48 + 4 * t) +
                              ["ds_write_b128 v%d, %s offset:%d" % (vL0, vr(o, 4), t * 1024)]))
                stx = "buffer_store_dwordx4 %s, v%d, %s, s%d offen offset:%d sc1" % (vr(o, 4), vL16, srd, sPub, t * 1024)
                if env("AEARLY", 1): units[-1][1].append(stx)
                else: pre.append(stx)
            for t in range(4):
                o = CV + 16 + 4 * t
                ins = ["v_pk_mul_f32 %s, %s, s[%d:%d]" % (vr(ACC + 16 * xt + 4 * t + 2 * h, 2), vr(ACC + 16 * xt + 4 * t + 2 * h, 2), sC, sC + 1) for xt in range(2) for h in range(2)]
                units.append(([(0, t), (1, t)], ins + cvt(o, ACC + 4 * t) + cvt(o + 2, ACC + 16 + 4 * t) +
                              ["ds_write_b128 v%d, %s offset:%d" % (vL0, vr(o, 4), 12288 + t * 1024)]))
        else:
            n = 0
            NPRE = env("NPRE", 2)
            for xt in (1, 2, 3):
                for kt in range(2):
                    o = CV + 4 * n; n += 1
                    ins = cvt(o, ACC + 16 * xt + 8 * kt) + cvt(o + 2, ACC + 16 * xt + 8 * kt + 4)
                    if xt == 3: ins += ["v_cndmask_b32 v%d, v%d, v%d, s[%d:%d]" % (o + i, o + i, vOne, sC, sC + 1) for i in range(4)]
                    ins.append("ds_write_b128 v%d, %s offset:%d" % (vL1, vr(o, 4), kt * 3072 + (xt - 1) * 1024))
                    stx = "buffer_store_dwordx4 %s, v%d, %s, s%d offen offset:%d sc1" % (vr(o, 4), vG1, srd, sT2 if kt else sPub, (xt - 1) * 1024)
                    if n <= env("NIN", 0): ins.append(stx)
                    elif n <= NPRE: pre.append(stx)
                    else: late.append(stx)
                    units.append(([(xt, 2 * kt), (xt, 2 * kt + 1)], ins))
            for q in range(2):
                o = CV + 4 * n; n += 1
                ins = ["v_pk_mul_f32 %s, %s, %s op_sel_hi:[1,0]" % (vr(ACC + 4 * t + 2 * h, 2), vr(ACC + 4 * t + 2 * h, 2), vr(vSc, 2)) for t in (q, q + 2) for h in range(2)]
                ins += cvt(o, ACC + 4 * q) + cvt(o + 2, ACC + 4 * (q + 2)) + ["ds_write_b128 v%d, %s offset:%d" % (vL0, vr(o, 4), 4096 + q * 1024)]
                for kt in range(2): late.append("buffer_store_dwordx2 %s, v%d, %s, s%d offen offset:%d sc1" % (vr(o + 2 * kt, 2), vG0, srd, sPub, (2 * kt + q) * 512))
                units.append(([(0, q), (0, q + 2)], ins))
        f = F + 32
        cnt, done_at, nxt = 0, [], 0
        def emit(x):
            nonlocal cnt
            a(x); cnt += 1
        LAG = env("LAG", 3)
        for u in range(len(units) + LAG):
            if u < len(units):
                for (xt, t) in units[u][0]:
                    d = ACC + 16 * xt + 4 * t
                    x, w = vr(f + 4 * t, 4), vr(f + 16 + 4 * xt, 4)
                    emit("v_mfma_f32_16x16x32_bf16 %s, %s, %s, %s" % ((vr(d, 4), x, w, vr(d, 4)) if isB and xt > 0 else (vr(d, 4), w, x, vr(d, 4))))
                done_at.append(cnt)
                if u == 0: emit("ds_write_b128 v%d, %s offset:%d" % (vFo, vr(O, 4), LFLAG))
            if u >= LAG:
                gap = cnt - done_at[u - LAG]
                if gap < 8:
                    a("s_nop %d", 7 - gap); cnt += 8 - gap
                for x in units[u - LAG][1]: emit(x)
        for x in pre: a(x)
        a("s_setprio %d", 3 if isB else 2)
        for i in range(16): a("v_mov_b32 v%d, 0", Qr + i)
        a("s_waitcnt lgkmcnt(0)")
        st(3)
        a("s_barrier")
        for x in late: a(x)
        if not isB: a("s_branch L_epi_done")
    a.label("L_epi_done")
    if env("IDLE", 0): a("s_sleep %d", env("IDLE", 0))
    def rdK(b): a("ds_read_b128 %s, v%d offset:%d", vr(Km + 4 * b, 4), vRk, IMG + b * 2048)
    def rdV(b):
        for g in range(2): a("ds_read_b128 %s, v%d offset:%d", vr(V + 8 * b + 4 * g, 4), vRv, IMG + b * 3072 + g * 512)
    def rdQ(p):
        r = vRk
        if p != 3:
            r = vT1; a("v_xor_b32 v%d, %d, v%d", r, (p ^ 3) << 14, vRk)
        for j in range(2): a("ds_read_b128 %s, v%d offset:%d", vr(Qm + 8 * p + 4 * j, 4), r, IMG + 12288 + j * 2048)
    rdK(0)
    a("ds_read_b128 %s, v%d offset:%d", vr(Kr, 4), vRr, IMG + 4096 + 512)
    rdQ(0)
    for p in range(3): a("v_xor_b32 v%d, %d, v%d", vT2 + p, (p ^ 3) << 14, vRr)
    a("s_mov_b32 exec_hi, 0")
    for p in range(4): a("ds_read_b128 %s, v%d offset:%d", vr(Qr + 4 * p, 4), vT2 + p if p < 3 else vRr, IMG + 4096)
    a("s_mov_b32 exec_hi, -1")
    rdQ(1); rdV(0)

    def kvop(what, b, sreg, extra=0):
        if env("NOKV", 0) == 1: return
        if what == "k":   a("buffer_load_dwordx4 %s, v%d, %s, s%d offen offset:%d sc1", vr(Km + 4 * b, 4), vK, srd, sreg, 2048 * b)
        elif what == "r": a("buffer_load_dwordx2 %s, v%d, %s, s%d offen offset:%d sc1", vr(Kr + 2 * b, 2), vKr, srd, sreg, 1024 * b)
        else:             a("buffer_load_dwordx4 %s, v%d, %s, s%d offen offset:%d sc1", vr(V + 8 * b + 4 * extra, 4), vV, srd, sreg, 3072 * b + 512 * extra)
    def qk1(j, kb): a("v_mfma_f32_32x32x16_bf16 %s, %s, %s, 0", vr(S + 16 * (j % 4), 16), vr(Km + 4 * kb, 4), vr(Qm + 4 * j, 4))
    def qk2(j, kb): a("v_mfma_f32_32x32x8_bf16 %s, %s, %s, %s", vr(S + 16 * (j % 4), 16), vr(Kr + 2 * kb, 2), vr(Qr + 2 * j, 2), vr(S + 16 * (j % 4), 16))
    def pv(j, vb, half): a("v_smfmac_f32_32x32x32_bf16 %s, %s, %s, v%d", vr(O + 12 * j, 16), vr(V + 8 * vb + 4 * half, 4), vr(S + 16 * (j % 4) + 8 * half, 8), vIdx)
    def ex(r): a("v_exp_f32 v%d, v%d", r, r)
    def signal1():
        a("s_waitcnt vmcnt(0)")
        a("buffer_store_dwordx2 %s, off, %s, s%d sc0 sc1", vr(vNon, 2), srd, sTrig)
        a("global_load_dword v255, v255, s[56:57]")
    def poll(lbl, sline, mask, tmo, slp):
        a("s_mov_b32 s%d, 0", sTmo)
        a.label(lbl)
        a("buffer_load_dwordx2 v[4:5], v%d, %s, s%d offen sc0 sc1", vFl, srd, sline)
        a("s_add_u32 s%d, s%d, 1", sTmo, sTmo)
        a("s_waitcnt vmcnt(0)")
        a("v_cmp_eq_u64 vcc, s[%d:%d], v[4:5]", sNon, sNon + 1)
        a("s_cmp_gt_u32 s%d, 0x%x", sTmo, tmo)
        a("s_cbranch_scc1 %s_ok", lbl)
        a("s_andn2_b32 s%d, %s, vcc_lo", sT, mask)
        a("s_cbranch_scc0 %s_ok", lbl)
        a("s_sleep %d", slp)
        a("s_branch %s", lbl)
        a.label(lbl + "_ok")

    a("s_waitcnt lgkmcnt(7)")
    qk1(0, 0); qk2(0, 0); qk1(1, 0); qk2(1, 0)
    rdQ(2); rdQ(3); rdK(1); rdV(1)
    a("v_mov_b32 v%d, 1", vT2)
    a("ds_write_b32 v%d, v%d offset:12", vFo, vT2)
    for i in range(243, 252): a("v_mov_b32 v%d, 0", i)
    st(4, False)
    a("s_cmp_eq_u32 s%d, 0", sQH)
    a("s_cbranch_scc1 L_nosig")
    signal1()
    st(5, False)
    a.label("L_nosig")

    def wo_setup():
        R = 1280
        a("s_mov_b32 s%d, 0", sGo)
        a("s_lshl_b32 s%d, s%d, 10", sLo, sW)
        a("s_add_u32 s%d, s%d, %d", sLo, sLo, WOB)
        a("s_mov_b32 s%d, %d", sGs, 56 * R)
        a("s_mov_b32 s%d, 5120", sLs)
        a("s_mov_b32 s%d, %d", sGd, 24 * R)
        a("s_mov_b32 s%d, %d", sLd, 8 * 5120)
        a("s_mov_b32 s%d, 0", sGx)
        a("s_cmp_lt_u32 s%d, 5", sW)
        a("s_cbranch_scc1 L_wos")
        a("s_lshl_b32 s%d, s%d, 11", sLo, sW)
        a("s_add_u32 s%d, s%d, %d", sLo, sLo, WOB + 16 * 5120 - 5 * 2048)
        a("s_mov_b32 s%d, %d", sGs, 4 * R)
        a("s_mov_b32 s%d, %d", sGx, (4 * R) ^ (316 * R))
        a("s_mov_b32 s%d, 0", sGd)
        a("s_cmp_eq_u32 s%d, 7", sW)
        a("s_cselect_b32 s%d, 0, 1024", sLd)
        a.label("L_wos")
    def all8(lbl, val, n=8):
        a("v_and_b32 v%d, %d, v%d", vT3, n - 1, vLane)
        a("v_lshlrev_b32 v%d, 5, v%d", vT3, vT3)
        a("s_mov_b32 s%d, 0", sTmo)
        a.label(lbl)
        a("ds_read_b32 v%d, v%d offset:12", vT2, vT3)
        a("s_add_u32 s%d, s%d, 1", sTmo, sTmo)
        a("s_waitcnt lgkmcnt(0)")
        a("v_cmp_le_u32 vcc, %d, v%d", val, vT2)
        a("s_cmp_gt_u32 s%d, 0x20000", sTmo)
        a("s_cbranch_scc1 %s_ok", lbl)
        a("s_cmp_eq_u64 vcc, -1")
        a("s_cbranch_scc1 %s_ok", lbl)
        a("s_sleep 2")
        a("s_branch %s", lbl)
        a.label(lbl + "_ok")

    def next_chunk():
        return [lambda: a("s_add_u32 s%d, s%d, 1", sCh, sCh),
                lambda: a("s_xor_b32 s%d, s%d, s%d", sNxt, sCh, sTB),
                lambda: a("s_and_b32 s%d, s%d, 7", sNxt, sNxt),
                lambda: a("s_mul_i32 s%d, s%d, %d", sNxt, sNxt, 4 * BLK),
                lambda: a("s_add_u32 s%d, s%d, s%d", sNxt, sNxt, sKV)]
    N = sNxt
    sched = {
        (0, 1): [("V1a", lambda: kvop("v", 1, N, 0)), ("V1b", lambda: kvop("v", 1, N, 1))],
        (0, 3): [("Wa", lambda: a("buffer_load_dwordx4 v%d, %s, s%d offen lds", vG, sr(WO, 4), sGo)), ("Wb", lambda: a("buffer_load_dwordx4 v%d, %s, s%d offen lds", vGb, sr(WO, 4), sGo))],
        (0, 6): [("K0", lambda: kvop("k", 0, N)), ("R0", lambda: kvop("r", 0, N))],
        (1, 1): [("V0a", lambda: kvop("v", 0, N, 0)), ("V0b", lambda: kvop("v", 0, N, 1))],
        (1, 6): [("K1", lambda: kvop("k", 1, N)), ("R1", lambda: kvop("r", 1, N))],
    }
    order = [(k, n) for k in sorted(sched) for (n, _) in sched[k]]
    def younger(name, pos):
        names = [n for _, n in order]
        i = names.index(name); cnt = 0
        while True:
            i = (i + 1) % len(order)
            if order[i][0] == pos or (order[i][0] > pos and (order[i - 1][0] < pos or i == 0)): return cnt
            cnt += 1
    PA, PB, POLLP = env("PA", 3), env("PB", 5), (1, 4)
    def spin(lbl, word):
        def f():
            a.label(lbl + "_w")
            a("s_add_u32 s%d, s%d, 1", sTmo, sTmo)
            a("s_cmp_gt_u32 s%d, 0x20000", sTmo)
            a("s_cbranch_scc1 %s_ok", lbl)
            a("s_sleep 1")
            a("ds_read_b32 v%d, v%d offset:%d", vT1, vFo, 4 * word)
            a("s_waitcnt lgkmcnt(0)")
            a("v_readfirstlane_b32 s%d, v%d", sT, vT1)
            a("s_cmp_eq_u32 s%d, 0", sT)
            a("s_cbranch_scc1 %s_w", lbl)
            a("s_branch %s", lbl)
        stubs.append(f)
    stubs = []
    def xreads(word, area, n, dst):
        return [lambda: a("ds_read_b32 v%d, v%d offset:%d", vT1, vFo, 4 * word)] + \
               [lambda q=q: a("ds_read_b128 %s, v%d offset:%d", vr(dst + 4 * q, 4), area, q * 1024) for q in range(n)]
    def xcheck(lbl, word, area, n, dst):
        a("s_waitcnt lgkmcnt(%d)", n)
        a("v_readfirstlane_b32 s%d, v%d", sT, vT1)
        a("s_cmp_eq_u32 s%d, 0", sT)
        a("s_cbranch_scc1 %s_w", lbl)
        a.label(lbl + "_ok")
        spin(lbl, word)
        def g():
            a.label(lbl)
            for f in xreads(word, area, n, dst)[1:]: f()
            a("s_branch %s_ok", lbl)
        stubs.append(g)
    def padd(d, x): a("v_pk_add_f32 %s, %s, %s", vr(d, 2), vr(d, 2), vr(x, 2))
    def iteration(first, last=False):
        for tt in range(2):
            for j in range(8):
                pj, pvb = ((7, 1 - tt) if j == 0 else (j - 1, tt))
                nj, nkb = (j + 2) % 8, (tt if j < 6 else 1 - tt)
                slots = [[], [], []]
                lds = [f for _, f in sched.get((tt, j), [])]
                wv = younger("V%db" % tt, (tt, 1)) if j == 0 else None
                wk = younger("R%d" % (1 - tt), (tt, 6)) if j == 6 else None
                if first:
                    if 8 * tt + j == PA:
                        a("s_cmp_eq_u32 s%d, 0", sQH)
                        a("s_cbranch_scc0 L_nosig2")
                        signal1()
                        st(5, False)
                        a.label("L_nosig2")
                    if 8 * tt + j == PB:
                        a("s_cmp_eq_u32 s%d, 0", sQH)
                        a("s_cbranch_scc1 L_nosig3")
                        a("s_setprio 1")
                        a.label("L_nosig3")
                    if (tt, j) == POLLP:
                        wo_setup()
                        all8("L_img", 1)
                        st(6, False)
                        poll("L_poll1", sF1, "s%d" % sMsk, 0x4000, 2)
                        st(7, False)
                        a("s_andn2_b32 s%d, 0xffff, vcc_lo", sMsk)
                        a("s_mov_b32 s%d, 0", sCh)
                        for f in next_chunk(): f()
                        for k in sorted(sched):
                            if k == (0, 3):
                                a("s_mov_b32 m0, s%d", sLo); a("s_nop 0"); sched[k][0][1]()
                                a("s_add_u32 m0, s%d, s%d", sLo, sLd); a("s_add_u32 s%d, s%d, s%d", sGo, sGo, sGd); sched[k][1][1]()
                                a("s_add_u32 s%d, s%d, s%d", sGo, sGo, sGs); a("s_add_u32 s%d, s%d, s%d", sLo, sLo, sLs); a("s_xor_b32 s%d, s%d, s%d", sGs, sGs, sGx)
                            elif (0, 1) < k < POLLP:
                                for _, f in sched[k]: f()
                    if (tt, j) < POLLP: lds = []
                    wv = None
                    if (tt, j) != (1, 6): wk = None
                else:
                    if (tt, j) == (0, 2): slots[2].append(lambda: a("s_mov_b32 m0, s%d", sLo))
                    if (tt, j) == (0, 3):
                        slots[0].append(lds[0]); slots[2].append(lds[1])
                        lds = []
                        slots[1] += [lambda: a("s_add_u32 m0, s%d, s%d", sLo, sLd), lambda: a("s_add_u32 s%d, s%d, s%d", sGo, sGo, sGd)]
                    if (tt, j) == (0, 4):
                        nc = next_chunk()
                        slots[0] += nc[0:2]; slots[1] += nc[2:4]; slots[2] += nc[4:5]
                    if (tt, j) == (0, 5):
                        slots[0] += [lambda: a("s_add_u32 s%d, s%d, s%d", sGo, sGo, sGs), lambda: a("s_add_u32 s%d, s%d, s%d", sLo, sLo, sLs)]
                        slots[1].append(lambda: a("s_xor_b32 s%d, s%d, s%d", sGs, sGs, sGx))
                    if (tt, j) == (1, 7): slots[0].append(lambda: a("s_cmp_lt_u32 s%d, 7", sCh))
                if last:
                    I = lambda f, *x: (lambda: a(f, *x))
                    if (tt, j) >= (0, 4):
                        slots = [[], [], []]; lds = []
                    if (tt, j) == (1, 0): wv = 0
                    if (tt, j) == (1, 6): wk = None
                    if (tt, j) == (0, 4):
                        slots[0] += [I("s_and_b32 s%d, s%d, 3", sT3, sW), I("s_xor_b32 s%d, s%d, 2", sT, sT3)]
                        slots[1] += [I("s_xor_b32 s%d, s%d, 3", sT2, sT3), I("s_mul_i32 s%d, s%d, 12288", sT, sT)]
                        slots[2] += [I("s_mul_i32 s%d, s%d, 12288", sT2, sT2)]
                    if (tt, j) == (0, 5):
                        slots[0] += [I("s_add_u32 s%d, s%d, %d", sCur, sT, CMB), I("s_add_u32 s%d, s%d, %d", sNxt, sT2, CMB)]
                        slots[1] += [I("s_mov_b32 s%d, 0x%x", sT3, f32bits(2.0 ** -30)), I("s_mov_b32 s%d, 0x%x", sT2, f32bits(2.0 ** 60))]
                    if (tt, j) == (1, 1):
                        a("s_cmp_eq_u32 s%d, 0", sQH)
                        a("s_cbranch_scc1 L_afree_ok")
                        all8("L_afree", 2, 4)
                        a("v_add_u32 v%d, s%d, v%d", vT3, sCur, vL16)
                        a("v_add_u32 v%d, s%d, v%d", vT4, sNxt, vL16)
                        a("v_mov_b32 v%d, 1", vT2)
                        a("v_xor_b32 v%d, 64, v%d", vT1, vFo)
                        a("s_mov_b32 s%d, 0", sTmo)
                    if tt == 1 and 2 <= j <= 5:
                        for i in range(3):
                            q = 3 * (j - 2) + i
                            slots[i].append(I("ds_write_b128 v%d, %s offset:%d", vAr, vr(O + 4 * q, 4), q * 1024))
                        if j == 5: slots[2].append(I("ds_write_b32 v%d, v%d", vT1, vT2))
                    if (tt, j) == (1, 6):
                        xr = xreads(0, vT3, 12, O)
                        slots[1] += xr[:7]; slots[2] += xr[7:]
                if wv is not None: slots[2].append(lambda wv=wv: a("s_waitcnt vmcnt(%d)", wv))
                if wk is not None:
                    slots[0].append(lambda wk=wk: a("s_waitcnt vmcnt(%d)", wk))
                    for i, f in enumerate(lds): slots[1 + i].append(f)
                else:
                    for i, f in enumerate(lds): slots[i].append(f)
                regs = [S + 16 * (j % 4) + i for i in range(16)]
                def ex4():
                    for _ in range(4): ex(regs.pop(0))
                if first and (tt, j) == (0, 0):
                    ex4(); ex4(); a("s_waitcnt lgkmcnt(0)")
                else:
                    pv(pj, pvb, 0); [f() for f in slots[0]]; ex4()
                    pv(pj, pvb, 1); [f() for f in slots[1]]; ex4()
                if last and (tt, j) == (1, 7):
                    if DIAG: a("s_waitcnt lgkmcnt(0)")
                    xcheck("L_cmb", 0, vT3, 12, O)
                    a("s_waitcnt lgkmcnt(6)")
                    for i in range(0, 24, 2): padd(O + 48 + i, O + i)
                    for k in range(6): a("ds_write_b128 v%d, %s offset:%d", vT3, vr(O + 48 + 4 * k, 4), k * 1024)
                    a("v_xor_b32 v%d, 32, v%d", vT1, vFo)
                    a("ds_write_b32 v%d, v%d offset:4", vT1, vT2)
                    ex4(); ex4()
                elif last and (tt, j) == (1, 6):
                    [f() for f in slots[2]]; ex4(); ex4()
                else:
                    qk1(nj, nkb);   [f() for f in slots[2]]; ex4()
                    qk2(nj, nkb); ex4()
    iteration(True)
    BLEAD = env("BLEAD", 2)
    a("s_mov_b32 s%d, 3", sTrig)
    if BLEAD:
        a("s_cmp_eq_u32 s%d, 0", sQH)
        a("s_cbranch_scc1 L_nolead")
        a("s_setprio 3")
        a.label("L_nolead")
    st(8, False)
    a.raw(".p2align 6")
    a.label("L_attn")
    a("s_cmp_eq_u32 s%d, s%d", sCh, sTrig)
    a("s_cbranch_scc1 L_mid")
    a.label("L_attn_go")
    iteration(False)
    a("s_cbranch_scc1 L_attn")
    iteration(False, True)
    K0 = O + 72
    xr = xreads(1, vT4, 6, S)
    xr[0](); xr[1]()
    pv(7, 1, 0); pv(7, 1, 1)
    st(9, False)
    for f in xr[2:]: f()
    a("s_waitcnt lgkmcnt(14)")
    for i in range(0, 12, 2): padd(K0 + i, O + 24 + i)
    a("s_mov_b32 s%d, 0", sTmo)
    if DIAG: a("s_waitcnt lgkmcnt(0)")
    xcheck("L_cmb2", 1, vT4, 6, S)
    a("s_waitcnt lgkmcnt(3)")
    for i in range(0, 12, 2): padd(K0 + i, S + i)
    for i in range(12, 24, 2): padd(K0 + i, O + 24 + i)
    a("s_waitcnt lgkmcnt(0)")
    for i in range(12, 24, 2): padd(K0 + i, S + i)
    Z = S + 32
    def get_l():
        for j in range(2):
            a("v_mov_b32 v%d, v%d", Z + 4 + 2 * j, K0 + 12 * j + 8)
            a("v_mov_b32 v%d, v%d", Z + 5 + 2 * j, K0 + 12 * j + 8)
    get_l()
    a("v_pk_mul_f32 %s, %s, 0", vr(Z, 2), vr(K0, 2))
    a("v_pk_mul_f32 %s, %s, 0", vr(Z + 2, 2), vr(K0 + 12, 2))
    for j in range(2): a("v_permlane32_swap_b32 v%d, v%d", Z + 5 + 2 * j, Z + 4 + 2 * j)
    for i in range(2, 12, 2):
        for j in range(2): a("v_pk_fma_f32 %s, %s, 0, %s", vr(Z + 2 * j, 2), vr(K0 + 12 * j + i, 2), vr(Z + 2 * j, 2))
    a("v_cmp_le_f32 s[%d:%d], s%d, v%d", sC, sC + 1, sT3, Z + 4)
    a("v_cmp_le_f32 s[%d:%d], s%d, v%d", sC2, sC2 + 1, sT3, Z + 6)
    a("v_pk_add_f32 %s, %s, %s", vr(Z, 2), vr(Z, 2), vr(Z + 2, 2))
    a("v_cmp_ge_f32 vcc, s%d, v%d", sT2, Z + 4)
    a("s_and_b64 s[%d:%d], s[%d:%d], s[%d:%d]", sC, sC + 1, sC, sC + 1, sC2, sC2 + 1)
    a("v_cmp_ge_f32 s[%d:%d], s%d, v%d", sC2, sC2 + 1, sT2, Z + 6)
    a("s_and_b64 s[%d:%d], s[%d:%d], vcc", sC, sC + 1, sC, sC + 1)
    a("v_cmp_o_f32 vcc, v%d, v%d", Z, Z + 1)
    a("s_and_b64 s[%d:%d], s[%d:%d], s[%d:%d]", sC, sC + 1, sC, sC + 1, sC2, sC2 + 1)
    a("s_and_b64 s[%d:%d], s[%d:%d], vcc", sC, sC + 1, sC, sC + 1)
    a("s_cmp_eq_u64 s[%d:%d], -1", sC, sC + 1)
    a("s_cbranch_scc0 L_slow")
    a.label("L_fin")
    for j in range(2): a("v_rcp_f32 v%d, v%d", Z + 2 * j, Z + 4 + 2 * j)
    a("v_mov_b32 v%d, 2", vT2)
    for j in range(2):
        k = K0 + 12 * j
        for i in range(0, 12, 2): a("v_pk_mul_f32 %s, %s, %s op_sel_hi:[1,0]", vr(k + i, 2), vr(k + i, 2), vr(Z + 2 * j, 2))
        for i in range(4): a("v_cvt_pk_bf16_f32 v%d, v%d, v%d", S + 4 * j + i, k + 2 * i, k + 2 * i + 1)
        a("buffer_store_dwordx4 %s, v%d, %s, s%d offen offset:%d sc1", vr(S + 4 * j, 4), vL16, srd, sO, j * 1024)
        for i in range(2): a("v_cvt_pk_bf16_f32 v%d, v%d, v%d", S + 8 + 2 * j + i, k + 8 + 2 * i, k + 9 + 2 * i)
    a("buffer_store_dwordx4 %s, v%d, %s, s%d offen sc1", vr(S + 8, 4), vOr, srd, sO)
    st(16, False)
    a("ds_write_b32 v%d, v%d offset:12", vFo, vT2)
    a("v_mov_b32 v%d, s%d", vNon, sNon)
    a("v_mov_b32 v%d, s%d", vNon + 1, sNon + 1)
    a("v_lshrrev_b32 v%d, 4, v%d", vT4, vLane)
    a("v_and_b32 v%d, 15, v%d", vT3, vLane)
    a("s_lshl_b32 s%d, s%d, 8", sT, sE)
    a("v_lshl_add_u32 v%d, v%d, 4, s%d", vT1, vT3, sT)
    a("v_lshrrev_b32 v%d, 5, v%d", vT2, vLane)
    a("v_mul_u32_u24 v%d, 2560, v%d", vT2, vT2)
    a("v_and_b32 v%d, 16, v%d", vOa, vLane)
    a("v_lshl_add_u32 v%d, v%d, 5, v%d", vOa, vOa, vT2)
    a("v_add_u32 v%d, v%d, v%d", vOa, vOa, vT1)
    a("v_mul_u32_u24 v%d, %d, v%d", vOb, 2 * OB, vT4)
    a("v_add_u32 v%d, v%d, v%d", vOb, vOb, vT1)
    a("v_add_u32 v%d, 2048, v%d", vOb, vOb)
    a("s_mul_i32 s%d, s%d, %d", sT, sQH, 8 * 5120)
    a("s_add_u32 s%d, s%d, %d", sT, sT, WOB)
    a("v_and_b32 v%d, 31, v%d", vT1, vLane)
    a("v_mul_u32_u24 v%d, 40, v%d", vT1, vT1)
    a("v_add3_u32 v%d, v%d, v%d, s%d", vWa2, vT1, vT2, sT)
    a("s_mul_i32 s%d, s%d, %d", sT, sQH, 7 * 5120)
    a("s_sub_u32 s%d, %d, s%d", sT, 16 * 5120, sT)
    a("v_add_u32 v%d, s%d, v%d", vWa3, sT, vWa2)
    COAL = env("COAL", 1)
    a("v_and_b32 v%d, 4, v%d", vT2, vT3)
    a("v_lshlrev_b32 v%d, %d, v%d", vT2, 1 if COAL else 2, vT2)
    a("v_and_b32 v%d, 8, v%d", vT1, vT3)
    a("v_lshrrev_b32 v%d, 1, v%d", vT1, vT1)
    a("v_and_b32 v%d, 3, v%d", vT3, vT3)
    a("v_or3_b32 v%d, v%d, v%d, v%d", vT2, vT2, vT3, vT1)
    a("v_mul_u32_u24 v%d, %d, v%d", vT2, 176 if COAL else 2560, vT2)
    a("v_mad_u32_u24 v%d, v%d, 40, v%d", vSt, vT4, vT2)
    if COAL:
        a("s_and_b32 s%d, s%d, 3", sT, sW)
        a("s_mul_i32 s%d, s%d, 12288", sT, sT)
        a("s_add_u32 s%d, s%d, %d", sCur, sT, CMB)
        a("v_add_u32 v%d, s%d, v%d", vSt, sCur, vSt)
    a("v_lshlrev_b32 v%d, 7, v%d", vT2, vLane)
    a("v_lshl_or_b32 v%d, v%d, 29, v%d", vFl, vT4, vT2)
    a("v_lshrrev_b32 v%d, 3, v%d", vT2, vLane)
    a("v_xor_b32 v%d, s%d, v%d", vT2, sHH, vT2)
    a("v_xor_b32 v%d, 1, v%d", vT2, vT2)
    a("v_lshl_or_b32 v%d, v%d, 28, v%d", vFl2, vT2, vFl)
    a("s_lshl_b32 s%d, s%d, 3", sT, sHH)
    a("s_lshl_b32 s%d, 0xff, s%d", sM2, sT)
    a("s_waitcnt vmcnt(0)")
    a("buffer_store_dwordx2 %s, off, %s, s%d sc0 sc1", vr(vNon, 2), srd, sF2)
    st(10)
    def wread_ops(s):
        fb, g, i = s % 2, s // 5, s % 5
        base, blk = ((vWb2 if g else vWa2), i) if i < 4 else ((vWb3 if g else vWa3), 0)
        return ["ds_read_b64_tr_b16 %s, v%d offset:%d" % (vr(WF + 20 * fb + 4 * j + 2 * q, 2), base, blk * 5120 + j * 8 + q * 1280) for j in range(5) for q in range(2)]
    def oloads(s):
        b_, i = (sO2 if s >= 5 else sOc), s % 5
        if i < 4:
            return ["s_add_u32 s%d, s%d, %d" % (sNxt, b_, i * 2 * OB)] + \
                   ["buffer_load_dwordx4 %s, v%d, %s, s%d offen offset:%d sc1" % (vr(OF + 8 * s + 4 * j, 4), vOa, srd, sNxt, 1024 * j) for j in range(2)]
        return ["buffer_load_dwordx4 %s, v%d, %s, s%d offen offset:%d sc1" % (vr(OF + 8 * s + 4 * e, 4), vOb, srd, b_, OB * e) for e in range(2)]
    def choose():
        a("s_lshr_b32 s%d, s%d, 15", sT, sM2)
        a("s_xor_b32 s%d, s%d, 1", sT2, sT)
        a("s_mul_i32 s%d, s%d, %d", sO2, sT, 8 * OB)
        a("s_add_u32 s%d, s%d, s%d", sO2, sO2, sOc)
        a("s_mul_i32 s%d, s%d, %d", sT3, sT2, 8 * OB)
        a("s_add_u32 s%d, s%d, s%d", sOc, sOc, sT3)
    def choose2():
        a("s_mul_i32 s%d, s%d, 10240", sT, sT)
        a("s_mul_i32 s%d, s%d, 10240", sT2, sT2)
        a("v_add_u32 v%d, s%d, v%d", vWb3, sT, vWa3)
        a("v_add_u32 v%d, s%d, v%d", vWa3, sT2, vWa3)
        a("v_lshl_add_u32 v%d, s%d, 1, v%d", vWb2, sT, vWa2)
        a("v_lshl_add_u32 v%d, s%d, 1, v%d", vWa2, sT2, vWa2)
    a("s_cmp_eq_u32 s%d, 0", sQH)
    a("s_cbranch_scc1 L_aload")
    a("buffer_load_dwordx2 v[16:17], v%d, %s, s%d offen sc0 sc1", vFl2, srd, sPend)
    all8("L_wdoneB", 2)
    a("s_mov_b32 s%d, 0", sTmo)
    a("s_waitcnt vmcnt(0)")
    st(11)
    a("v_cmp_eq_u64 vcc, s[%d:%d], v[16:17]", sNon, sNon + 1)
    a("buffer_load_dwordx2 v[4:5], v%d, %s, s%d offen sc0 sc1", vFl, srd, sPend)
    a("s_or_b32 s%d, vcc_lo, s%d", sT, sM2)
    a("s_andn2_b32 s%d, 0xffff, s%d", sT, sT)
    a("s_cbranch_scc0 L_first")
    a.label("L_poll2")
    a("s_add_u32 s%d, s%d, 1", sTmo, sTmo)
    a("s_waitcnt vmcnt(0)")
    a("v_cmp_eq_u64 vcc, s[%d:%d], v[4:5]", sNon, sNon + 1)
    a("s_cmp_gt_u32 s%d, 0x8000", sTmo)
    a("s_cbranch_scc1 L_first")
    a("s_or_b32 s%d, vcc_lo, s%d", sT, sM2)
    a("s_andn2_b32 s%d, 0xffff, s%d", sT, sT)
    a("s_cbranch_scc0 L_first")
    a("s_xor_b32 s%d, s%d, 0xffff", sM2, sM2)
    a("s_or_b32 s%d, vcc_lo, s%d", sT, sM2)
    a("s_andn2_b32 s%d, 0xffff, s%d", sT, sT)
    a("s_cbranch_scc0 L_first")
    a("s_sleep %d", env("SLP2", 2))
    a("buffer_load_dwordx2 v[4:5], v%d, %s, s%d offen sc0 sc1", vFl, srd, sPend)
    a("s_branch L_poll2")
    a.label("L_first")
    st(12)
    choose()
    for s in range(5):
        for x in oloads(s): a(x)
    choose2()
    for x in wread_ops(0): a(x)
    a("s_waitcnt vmcnt(10)")
    a("v_cmp_eq_u64 vcc, s[%d:%d], v[4:5]", sNon, sNon + 1)
    a("s_andn2_b32 s%d, s%d, vcc_lo", sP2, sM2)
    a("s_cbranch_scc1 L_aback")
    for s in range(5, 10):
        for x in oloads(s): a(x)
    a.label("L_aback")
    st(13)
    for s in range(10):
        o = OF + 8 * s
        acc = ACC2 if s < 5 else ACC3
        rd = wread_ops(s + 1) if s < 9 else []
        if s <= 5:
            a("s_cmp_eq_u32 s%d, 0", sP2)
            if s < 5:
                a("s_cbranch_scc1 L_both%d", s)
                a("s_waitcnt vmcnt(%d)", 2 * (4 - s))
            else:
                a("s_cbranch_scc0 L_second")
            a.label("L_both%d" % s)
        a("s_waitcnt vmcnt(%d) lgkmcnt(0)", 2 * (9 - s))
        if s % 5 == 4:
            a("v_swap_b32 v%d, v%d", o + 2, o + 4)
            a("v_swap_b32 v%d, v%d", o + 3, o + 5)
            a("s_nop 1")
        if s == 7 and COAL:
            R = OF
            rd += ["v_lshrrev_b32 v%d, 3, v%d" % (R + 4, vLane), "v_and_b32 v%d, 7, v%d" % (R + 5, vLane),
                   "v_mul_u32_u24 v%d, 176, v%d" % (R, R + 4), "v_mul_u32_u24 v%d, 2560, v%d" % (R + 1, R + 4),
                   "v_lshl_add_u32 v%d, v%d, 4, v%d" % (R, R + 5, R), "v_lshl_add_u32 v%d, v%d, 4, v%d" % (R + 1, R + 5, R + 1),
                   "v_add_u32 v%d, s%d, v%d" % (R, sCur, R),
                   "v_lshrrev_b32 v%d, 1, v%d" % (R + 4, vLane), "v_and_b32 v%d, 1, v%d" % (R + 5, vLane),
                   "v_mul_u32_u24 v%d, 176, v%d" % (R + 2, R + 4)]
        if s == 8 and COAL:
            rd += ["v_and_b32 v%d, 24, v%d" % (R + 6, R + 4), "v_add_u32 v%d, v%d, v%d" % (R + 4, R + 4, R + 6),
                   "v_mul_u32_u24 v%d, 2560, v%d" % (R + 3, R + 4),
                   "v_lshl_add_u32 v%d, v%d, 4, v%d" % (R + 2, R + 5, R + 2), "v_lshl_add_u32 v%d, v%d, 4, v%d" % (R + 3, R + 5, R + 3),
                   "v_add_u32 v%d, s%d, v%d" % (R + 2, sCur, R + 2)]
        if s == 9:
            xr = xreads(2, vAr, 10, PART)
        for tt in (0, 1):
            for j in range(5):
                d = acc + 4 * (5 * tt + j)
                a("v_mfma_f32_16x16x32_bf16 %s, %s, %s, %s", vr(d, 4), vr(WF + 20 * (s % 2) + 4 * j, 4), vr(o + 4 * tt, 4), vr(d, 4) if s % 5 else "0")
                for _ in range(2):
                    if rd: a(rd.pop(0))
                    elif s == 9 and xr: xr.pop(0)()
    st(14, False)
    a("s_mov_b32 s%d, 0", sTmo)
    a("s_add_u32 s%d, s%d, %d", sT2, sPub, 32 * 2560)
    a("v_mov_b32 v%d, 1", vT2)
    a("s_cmp_eq_u32 s%d, 0", sQH)
    a("s_cbranch_scc0 L_x1")
    for q in range(10):
        for h in range(2): padd(ACC2 + 4 * q + 2 * h, ACC3 + 4 * q + 2 * h)
        a("ds_write_b128 v%d, %s offset:%d", vAr, vr(ACC2 + 4 * q, 4), q * 1024)
    a("ds_write_b32 v%d, v%d offset:%d", vFo, vT2, 128 + 8)
    a("s_waitcnt lgkmcnt(0)")
    a("s_branch L_xdone") if DIAG else a("s_endpgm")
    a.label("L_x1")
    if DIAG: a("s_waitcnt lgkmcnt(0)")
    xcheck("L_xch", 2, vAr, 10, PART)
    if COAL:
        for i in range(0, 40, 2): padd(ACC2 + i, ACC3 + i)
        a("s_waitcnt lgkmcnt(0)")
    for tt in range(2):
        for q in range(5):
            r = ACC2 + 20 * tt + 4 * q
            o = WF + 12 * tt
            if not COAL:
                for h in range(2): padd(r + 2 * h, ACC3 + 20 * tt + 4 * q + 2 * h)
                a("s_waitcnt lgkmcnt(%d)", 9 - 5 * tt - q)
            for h in range(2): padd(r + 2 * h, PART + 20 * tt + 4 * q + 2 * h)
            for h in range(2): a("v_cvt_pk_bf16_f32 v%d, v%d, v%d", o + 2 * q + h, r + 2 * h, r + 2 * h + 1)
            if COAL:
                a("ds_write_b64 v%d, %s offset:%d", vSt, vr(o + 2 * q, 2), tt * 16 * 176 + 8 * q)
            else:
                if q in (1, 3): a("buffer_store_dwordx4 %s, v%d, %s, s%d offen offset:%d", vr(o + 2 * q - 2, 4), vSt, sr(OUT, 4), sT2 if tt else sPub, 8 * (q - 1))
                if q == 4: a("buffer_store_dwordx2 %s, v%d, %s, s%d offen offset:32", vr(o + 8, 2), vSt, sr(OUT, 4), sT2 if tt else sPub)
        if COAL:
            for i in (2 * tt, 2 * tt + 1): a("ds_read_b128 %s, v%d offset:%d", vr(OF + 8 + 4 * i, 4), R, i * 8 * 176)
    if COAL:
        a("ds_read_b128 %s, v%d offset:128", vr(OF + 24, 4), R + 2)
        for i in range(4):
            a("s_add_u32 s%d, s%d, %d", sT2, sPub, i * 16 * 2560)
            a("s_waitcnt lgkmcnt(%d)", (9, 8, 2, 1)[i])
            a("buffer_store_dwordx4 %s, v%d, %s, s%d offen %s", vr(OF + 8 + 4 * i, 4), R + 1, sr(OUT, 4), sT2, os.environ.get("OSC", ""))
        a("s_waitcnt lgkmcnt(0)")
        a("buffer_store_dwordx4 %s, v%d, %s, s%d offen offset:128 %s", vr(OF + 24, 4), R + 3, sr(OUT, 4), sPub, os.environ.get("OSC", ""))
    a.label("L_xdone")
    st(15)
    a.label("L_exit")
    st.flush(sW)
    a.label("L_end")
    a("s_endpgm")
    a.label("L_mid")
    a("s_add_u32 s%d, s%d, 1", sTrig, sTrig)
    a("s_cmp_eq_u32 s%d, 3", sCh)
    a("s_cbranch_scc0 L_mid2")
    a("s_lshl_b32 s%d, s%d, 1", sT3, sTB)
    a("s_add_u32 s%d, s%d, s%d", sT3, sT3, sHH)
    a("s_lshl_b32 s%d, s%d, 1", sT3, sT3)
    a("s_add_u32 s%d, s%d, s%d", sT3, sT3, sKH)
    a("s_lshl_b32 s%d, s%d, 5", sT2, sB)
    a("s_add_u32 s%d, s%d, s%d", sT2, sT2, sT3)
    a("s_lshl_b32 s%d, s%d, 1", sT2, sT2)
    a("s_add_u32 s%d, s%d, s%d", sT2, sT2, sQH)
    a("s_mul_i32 s%d, s%d, %d", sOc, sT2, 16 * OB)
    a("s_add_u32 s%d, s%d, %d", sOc, sOc, O_OFF)
    a("s_lshl_b32 s%d, s%d, 11", sT2, sT2)
    a("s_add_u32 s%d, s%d, %d", sPend, sT2, F2_OFF)
    a("s_lshl_b32 s%d, s%d, 3", sT3, sT3)
    a("s_add_u32 s%d, s%d, s%d", sT3, sT3, sE)
    a("s_mul_i32 s%d, s%d, %d", sPub, sT3, 8 * 2560)
    a("s_mul_i32 s%d, s%d, 1280", sT2, sB)
    a("s_add_u32 s%d, s%d, s%d", sPub, sPub, sT2)
    a("s_and_b32 s%d, s%d, 7", sT2, sHP)
    a("s_mul_i32 s%d, s%d, 160", sT2, sT2)
    a("s_add_u32 s%d, s%d, s%d", sPub, sPub, sT2)
    a("s_cmp_eq_u32 s%d, 0", sMsk)
    a("s_cbranch_scc1 L_poll3_ok")
    poll("L_poll3", sF1, "0xffff", 0x4000, 2)
    a.label("L_mid2")
    a("s_cmp_eq_u32 s%d, 0", sQH)
    a("s_cselect_b32 s%d, 0, s%d", sTrig, sTrig)
    a("s_cbranch_scc1 L_attn_go")
    a("s_cmp_eq_u32 s%d, %d", sCh, max(BLEAD + 1, 3))
    a("s_cbranch_scc0 L_mid3")
    a("s_setprio 1")
    a.label("L_mid3")
    a("s_cmp_ge_u32 s%d, %d", sCh, max(BLEAD + 1, 4))
    a("s_cselect_b32 s%d, 0, s%d", sTrig, sTrig)
    a("s_cmp_eq_u32 s%d, 4", sCh)
    a("s_cbranch_scc0 L_attn_go")
    a("s_cmp_lt_u32 s%d, 5", sW)
    a("s_cbranch_scc1 L_attn_go")
    a("v_mov_b32 v%d, 2.0", vG)
    a("v_mov_b32 v%d, 2.0", vGb)
    a("s_mov_b32 s%d, %d", sLo, CMB + 8 * 7168)
    a("s_mov_b32 s%d, 0", sLs)
    a("s_mov_b32 s%d, 0", sGs)
    a("s_mov_b32 s%d, 0", sGx)
    a("s_mov_b32 s%d, 0", sGo)
    a("s_branch L_attn_go")
    a.label("L_second")
    poll("L_poll5", sPend, "s%d" % sM2, 0x8000, env("SLP2", 2))
    for s_ in range(5, 10):
        for x in oloads(s_): a(x)
    a("s_branch L_both5")
    a.label("L_aload")
    a("s_waitcnt vmcnt(0)")
    poll("L_poll4", sPend, "0xffff", 0x8000, env("SLP2", 2))
    choose(); choose2()
    a("s_mov_b32 s%d, 0", sP2)
    for s_ in range(10):
        for x in oloads(s_): a(x)
        a("s_waitcnt vmcnt(%d)", env("AW", 4))
    a("s_setprio 0")
    all8("L_wdone", 2)
    for x in wread_ops(0): a(x)
    a("s_branch L_aback")
    for v in range(2):
        a.label("L_nonce%d" % v)
        a("s_mov_b32 s%d, 0", sT)
        a.label("L_nonce_retry%d" % v)
        a("v_mov_b32 v%d, 0", vT1)
        a("global_load_dwordx2 %s, v%d, s[%d:%d] sc0 sc1", vr(vNon, 2), vT1, sDbg, sDbg + 1)
        a("s_add_u32 s%d, s%d, 1", sT, sT)
        a("s_waitcnt vmcnt(0)")
        a("v_readfirstlane_b32 s%d, v%d", sNon + 1, vNon + 1)
        a("v_readfirstlane_b32 s%d, v%d", sNon, vNon)
        a("s_cmp_gt_u32 s%d, 0x4000", sT)
        a("s_cbranch_scc1 L_nonce_ok%d", v)
        a("s_cmp_eq_u32 s%d, 0", sNon + 1)
        a("s_cbranch_scc1 L_nonce_retry%d", v)
        a("s_branch L_nonce_ok%d", v)
    for f in stubs: f()
    a.label("L_slow")
    C = S
    MX = O
    a("s_waitcnt vmcnt(0)")
    a("s_and_b32 s%d, s%d, 3", sT, sW)
    a("s_mul_i32 s%d, s%d, %d", sT, sT, BLK)
    a("s_sub_u32 s%d, s%d, s%d", sKV, sKV, sT)
    a("s_mov_b32 s%d, s%d", sCur, sKV)
    a("s_add_u32 s%d, s%d, %d", sCh, sKV, KV_PAIR)
    a("v_mov_b32 v%d, 0xff800000", MX)
    a("v_mov_b32 v%d, 0xff800000", MX + 1)
    a.label("L_slow1")
    for b in range(2): kvop("k", b, sCur); kvop("r", b, sCur)
    a("s_waitcnt vmcnt(0)")
    for b in range(2):
        qk1(6, b); qk2(6, b); qk1(7, b); qk2(7, b)
        a("s_nop 15")
        for j in range(2):
            for i in range(8): a("v_max3_f32 v%d, v%d, v%d, v%d", MX + j, MX + j, S + 32 + 16 * j + 2 * i, S + 32 + 16 * j + 2 * i + 1)
    a("s_add_u32 s%d, s%d, %d", sCur, sCur, BLK)
    a("s_cmp_lt_u32 s%d, s%d", sCur, sCh)
    a("s_cbranch_scc1 L_slow1")
    for j in range(2):
        a("v_mov_b32 v%d, v%d", vT1, MX + j)
        a("s_nop 1")
        a("v_permlane32_swap_b32 v%d, v%d", vT1, MX + j)
        a("s_nop 1")
        a("v_max_f32 v%d, v%d, v%d", vT1, vT1, MX + j)
        for i in range(16): a("v_sub_f32 v%d, 0, v%d", C + 16 * j + i, vT1)
    for i in range(24): a("v_mov_b32 v%d, 0", K0 + i)
    a("s_mov_b32 s%d, s%d", sCur, sKV)
    a.label("L_slow2")
    for b in range(2):
        kvop("k", b, sCur); kvop("r", b, sCur); kvop("v", b, sCur, 0); kvop("v", b, sCur, 1)
    a("s_waitcnt vmcnt(0)")
    for b in range(2):
        for j in range(2):
            a("v_mfma_f32_32x32x16_bf16 %s, %s, %s, %s", vr(S + 32 + 16 * j, 16), vr(Km + 4 * b, 4), vr(Qm + 4 * (6 + j), 4), vr(C + 16 * j, 16))
            qk2(6 + j, b)
        a("s_nop 15")
        for i in range(32): ex(S + 32 + i)
        a("s_nop 1")
        pv(6, b, 0); pv(6, b, 1)
        a("s_nop 10")
        pv(7, b, 0); pv(7, b, 1)
    a("s_add_u32 s%d, s%d, %d", sCur, sCur, BLK)
    a("s_cmp_lt_u32 s%d, s%d", sCur, sCh)
    a("s_cbranch_scc1 L_slow2")
    a("s_nop 15")
    get_l()
    a("s_nop 1")
    for j in range(2): a("v_permlane32_swap_b32 v%d, v%d", Z + 5 + 2 * j, Z + 4 + 2 * j)
    a("s_nop 1")
    a("s_branch L_fin")
    a.label("L_code_end")
    return name, NFV, 163840

def gen_spin(a):
    name = "spin_kernel"
    kernel_head(a, name)
    wa, ia, wb, ib, mult, off = [int(x) for x in SPIN.split(",")]
    a("s_cmp_ge_u32 s2, 1")
    a("s_cbranch_scc1 L_spin_end")
    a("s_load_dwordx2 s[4:5], s[0:1], 64")
    a("s_waitcnt lgkmcnt(0)")
    a("s_add_u32 s4, s4, %d", DIAG_OFF)
    a("s_addc_u32 s5, s5, 0")
    if wa >= 0:
        a("v_mov_b32 v1, %d", 4 * ia + 128 * (16 * 8 + wa))
        a("v_mov_b32 v2, %d", 4 * ib + 128 * (16 * 8 + wb))
        a("global_load_dword v3, v1, s[4:5]")
        a("global_load_dword v4, v2, s[4:5]")
        a("s_waitcnt vmcnt(0)")
        a("v_sub_u32 v3, v4, v3")
        a("s_nop 1")
        a("v_readfirstlane_b32 s8, v3")
    else:
        a("v_lshlrev_b32 v1, 11, v0")
        a("v_mov_b32 v2, 0")
        a("global_load_dword v7, v2, s[4:5]")
        for k in range(4):
            a("global_load_dword v%d, v1, s[4:5] offset:%d", 8 + k, 4 * ia + (0 if wa == -1 else 128 * wb))
            a("global_load_dword v%d, v1, s[4:5] offset:%d", 12 + k, 4 * ib + 128 * wb)
            a("v_add_u32 v1, %d, v1", 64 * 2048)
        a("s_waitcnt vmcnt(0)")
        for k in range(8): a("v_sub_u32 v%d, v%d, v7", 8 + k, 8 + k)
        op = "min" if wa == -1 else "max"
        for k in range(1, 4):
            a("v_%s_i32 v8, v8, v%d", op, 8 + k)
            a("v_max_i32 v12, v12, v%d", 12 + k)
        a("s_nop 1")
        a("v_readlane_b32 s20, v8, 0")
        a("v_readlane_b32 s21, v12, 0")
        for l in range(1, 64):
            a("v_readlane_b32 s22, v8, %d", l)
            a("v_readlane_b32 s23, v12, %d", l)
            a("s_%s_i32 s20, s20, s22", op)
            a("s_max_i32 s21, s21, s23")
        a("s_sub_u32 s8, s21, s20")
    a("s_memrealtime s[10:11]")
    a("s_nop 3")
    a("s_max_u32 s8, s8, %d", off)
    a("s_sub_u32 s8, s8, %d", off)
    a("s_min_u32 s8, s8, 20000")
    a("s_mul_i32 s8, s8, %d", mult)
    a("s_waitcnt lgkmcnt(0)")
    a.label("L_spin")
    a("s_memrealtime s[12:13]")
    a("s_waitcnt lgkmcnt(0)")
    a("s_sub_u32 s14, s12, s10")
    a("s_cmp_lt_u32 s14, s8")
    a("s_cbranch_scc1 L_spin")
    a.label("L_spin_end")
    a("s_endpgm")
    return name, 16, 0

def main(out):
    a = A()
    ks = []
    for g, blk in ((gen_fused, 512),) + (((gen_spin, 64),) if SPIN else ()):
        n, nfv, lds = g(a)
        ks.append((n, nfv, lds, blk))
    hdr = "; Two independent MHA blocks (S=2048, D=640, H=32, Dh=20), concatenated on the last axis; one fused kernel.\n"
    hdr += "; kernarg: 0 A_x, 8 A_wqkv, 16 A_wo, 24 B_x, 32 B_wqkv, 40 B_wo, 48 out, 56 debug, 64 ws\n"
    if len(ks) == 1 and not env("LIST", 0):
        hdr += "; @launch grid=(256,1,1) block=(%d,1,1) lds=%d\n" % (ks[0][3], ks[0][2])
    else:
        for n, nfv, lds, blk in ks:
            hdr += "; @launch kernel=%s grid=(256,1,1) block=(%d,1,1) lds=%d\n" % (n, blk, lds)
    s = hdr + '.amdgcn_target "amdgcn-amd-amdhsa--gfx950"\n.text\n' + a.text()
    s += '.section .rodata,"a"\n'
    for n, nfv, lds, blk in ks: s += kd(n, nfv)
    open(out, "w").write(s)

if __name__ == "__main__":
    main(sys.argv[1] if len(sys.argv) > 1 else "cdna_kernels/%s.s" % NAME)
```

```python
import math, struct, sys, os

NAME = "concat_heads__mha_block__softmax_full_mha__prompt"
BLK = 12288
KV_PAIR = 32 * BLK
KV_OFF = 0
OB = 2560
O_OFF = KV_OFF + 32 * KV_PAIR
O_BYTES = 32 * 32 * OB
F1_OFF = O_OFF + 2 * O_BYTES
F2_OFF = F1_OFF + 128 * 1024
WS_USED = F2_OFF + 2048 * 128
CSCALE = math.log2(math.e) / math.sqrt(20.0)
OOB = 0x40000000
DIAG = int(os.environ.get("DIAG", "0"))
DIAG_OFF = 64 << 20
def env(n, d): return int(os.environ.get(n, str(d)))
NT = env("NT", 0)
SKEW = env("SKEW", 2)
HELP = env("HELP", 1)
SPIN = os.environ.get("SPIN", "")

def f32bits(x): return struct.unpack("<I", struct.pack("<f", x))[0]

class A:
    def __init__(self): self.l = []
    def __call__(self, s, *a): self.l.append("    " + (s % a if a else s))
    def label(self, s): self.l.append(s + ":")
    def raw(self, s): self.l.append(s)
    def c(self, s): self.l.append("    ; " + s)
    def text(self): return "\n".join(self.l) + "\n"

def vr(b, n): return "v[%d:%d]" % (b, b + n - 1) if n > 1 else "v%d" % b
def sr(b, n): return "s[%d:%d]" % (b, b + n - 1) if n > 1 else "s%d" % b

def kernel_head(a, name):
    a.raw(".globl %s" % name); a.raw(".p2align 8"); a.raw(".type %s,@function" % name); a.label(name)

def kd(name, nfv, nsg=102):
    acc = (nfv + 3) // 4 * 4
    return """.p2align 6
.amdhsa_kernel %s
  .amdhsa_next_free_vgpr %d
  .amdhsa_next_free_sgpr %d
  .amdhsa_accum_offset %d
  .amdhsa_group_segment_fixed_size 0
  .amdhsa_kernarg_size 72
  .amdhsa_user_sgpr_count 2
  .amdhsa_user_sgpr_kernarg_segment_ptr 1
  .amdhsa_system_sgpr_workgroup_id_x 1
.end_amdhsa_kernel
""" % (name, nfv, nsg, acc)

class Stamps:
    def __init__(self, a):
        self.a = a
        if DIAG:
            for i in range(62, 100): a("s_mov_b32 s%d, 0", i)
            a("s_memrealtime s[60:61]")
    def g(self, i):
        if DIAG and env("GD", 0): self.a("s_memrealtime s[%d:%d]", 64 + 2 * i, 65 + 2 * i)
    def __call__(self, i, wait=True):
        if not DIAG: return
        if env("GD", 0) and 3 <= i <= 16: return
        if env("AD", 0) and i in (1, 2, 3, 5, 10, 11, 12, 13, 14, 15): return
        if DIAG == 1: self.a("s_memrealtime s[%d:%d]", 64 + 2 * i, 65 + 2 * i)
        else: self.a("s_memtime s[%d:%d]", 64 + 2 * i, 65 + 2 * i)
        if wait: self.a("s_waitcnt lgkmcnt(0)")
    def flush(self, swave):
        if not DIAG: return
        a = self.a
        a("s_mov_b64 exec, -1")
        a("s_waitcnt vmcnt(0)")
        self(17)
        a("s_memrealtime s[62:63]")
        a("s_load_dwordx2 s[56:57], s[0:1], 64")
        a("s_lshl_b32 s58, s2, 4")
        a("s_add_u32 s58, s58, s%d", swave)
        a("s_lshl_b32 s58, s58, 7")
        a("s_add_u32 s58, s58, %d", DIAG_OFF)
        a("v_mov_b32 v1, s58")
        a("s_waitcnt lgkmcnt(0)")
        for i in range(20):
            a("v_mov_b32 v2, s%d", 60 + 2 * i)
            a("global_store_dword v1, v2, s[56:57] offset:%d", 4 * i)
        a("s_waitcnt vmcnt(0)")

def gen_fused(a):
    name = NAME + "_kernel"
    kernel_head(a, name)
    WS, XS, WSRD = 8, 12, 16
    sNon = 20
    sB, sTB, sHP, sHH, sW, sE, sKH, sQH = 22, 23, 24, 25, 26, 27, 28, 29
    sT, sT2, sT3 = 30, 31, 32
    sXoff, sWoff, sM0x, sM0w, sIt, sDX, sDW, sSlot, sSx, sSw = 33, 34, 35, 36, 37, 38, 39, 40, 41, 42
    sNxt, sNxt1, sCh, sR, sTmo, sCur = 33, 34, 35, 36, 38, 39
    sDbg = 44
    sC, sC2 = 46, 48
    sKV, sPub, sF1, sO, sF2, sMsk = 50, 51, 52, 53, 54, 55
    sOc, sPend, sTrig = 40, 41, 43
    sLd, sGx = 3, 34
    sGo, sLo, sGs, sLs, sGd = 36, 37, 42, 44, 45
    WO, OUT = WSRD, XS
    ACC2, WF, OF = 16, 56, 96
    PART = 176
    vOa, vOb, vWa2, vWa3, vSt, vWb2, vWb3, vFl2 = 8, 9, 10, 11, 0, 2, 13, 14
    ACC3 = 216
    sO2, sP2, sM2 = 36, 37, 42
    srd = sr(WS, 4)
    vLane, vM, vH, vT1, vT2, vT3, vT4 = 1, 2, 3, 4, 5, 6, 7
    vK, vKr, vV, vIdx, vFl, vL16, vOr, vS1 = 8, 9, 10, 11, 12, 13, 14, 15
    vG, vGb, vFo, vAr = 0, 2, 3, 15
    vNon, vTch = 252, 255
    vXg, vWg, vXa, vWa = 80, 84, 86, 88
    vG0, vG1, vL0, vL1, vSc, vOne = 243, 244, 245, 246, 248, 249
    vRk, vRr, vRv = 247, 250, 251
    F, ACC = 16, 92
    Qm, Qr, Km, Kr, V, S, O = 16, 48, 64, 72, 76, 92, 156
    NFV = 256
    WBASE = 98304
    LFLAG, WOB = 0, 1024
    CMB = WOB + 102400
    IMG = 1024

    a("s_cmp_ge_u32 s2, 256")
    a("s_cbranch_scc1 L_end")
    st = Stamps(a)
    a("s_bfe_u32 s%d, s2, 0x10002", sB)
    a("s_mul_i32 s%d, s%d, 24", sT, sB)
    a("s_load_dwordx4 s[4:7], s[0:1], s%d", sT)
    a("s_load_dwordx2 s[%d:%d], s[0:1], 64", WS, WS + 1)
    a("s_load_dwordx2 s[%d:%d], s[0:1], 56", sDbg, sDbg + 1)
    a("s_add_u32 s%d, s%d, 16", sT, sT)
    a("s_load_dwordx2 s[56:57], s[0:1], s%d", sT)
    a("s_load_dwordx2 s[58:59], s[0:1], 48")
    a("s_memrealtime s[%d:%d]", sNon, sNon + 1)
    a("v_lshrrev_b32 v%d, 6, v0", vT1)
    a("v_and_b32 v%d, 63, v0", vLane)
    a("v_readfirstlane_b32 s%d, v%d", sW, vT1)
    a("s_bfe_u32 s%d, s2, 0x10001", sTB)
    a("s_lshl_b32 s%d, s%d, 2", sTB, sTB)
    a("s_bfe_u32 s%d, s2, 0x20003", sT)
    a("s_or_b32 s%d, s%d, s%d", sTB, sTB, sT)
    a("s_and_b32 s%d, s2, 1", sHH)
    a("s_lshl_b32 s%d, s%d, 3", sHP, sHH)
    a("s_lshr_b32 s%d, s2, 5", sT)
    a("s_or_b32 s%d, s%d, s%d", sHP, sHP, sT)
    a("s_lshr_b32 s%d, s2, 7", sT)
    a("s_xor_b32 s%d, s%d, s%d", sHP, sHP, sT)
    a("s_and_b32 s%d, s%d, 1", sE, sW)
    if env("CODEPF", 2) & 2:
        a.label("L_pfbase0")
        a("s_getpc_b64 s[%d:%d]", sC2, sC2 + 1)
        a("s_and_b32 s%d, s2, -8", sT)
        a("s_add_u32 s%d, s%d, s%d", sT, sT, sW)
        a("s_lshl_b32 s%d, s%d, 7", sT, sT)
        a("s_min_u32 s%d, s%d, %s", sT, sT, "L_code_end-L_pfbase0-8")
        a("v_mov_b32 v254, s%d", sT)
        a("global_load_dword v254, v254, s[%d:%d]", sC2, sC2 + 1)
    a("v_lshrrev_b32 v%d, 3, v0", vT1)
    a("s_mul_i32 s%d, s%d, 24", sT, sW)
    a("v_add_u32 v%d, s%d, v%d", vT1, sT, vT1)
    a("v_mul_u32_u24 v%d, 1280, v%d", vT1, vT1)
    a("v_lshrrev_b32 v%d, 4, v%d", vT4, vLane)
    a("v_and_b32 v%d, 7, v%d", vT3, vLane)
    a("v_xor_b32 v%d, v%d, v%d", vT2, vT4, vT3)
    a("v_xor_b32 v%d, 4, v%d", vT3, vT2)
    a("v_lshl_add_u32 v%d, v%d, 4, v%d", vXg + 0, vT2, vT1)
    a("v_lshl_add_u32 v%d, v%d, 4, v%d", vXg + 1, vT3, vT1)
    a("v_add_u32 v%d, %d, v%d", vXg + 1, 8 * 1280 - 1024, vXg + 1)
    a("v_add_u32 v%d, %d, v%d", vXg + 2, 16 * 1280 - 2048, vXg + 0)
    a("v_add_u32 v%d, %d, v%d", vXg + 3, 16 * 1280 - 2048, vXg + 1)
    TAB = [0, 3, 1, 4, 5, 8, 6, 9, 2, 7, 10, 11, 13, 14, 12, 15]
    tab = sum(v << (4 * i) for i, v in enumerate(TAB))
    a("s_lshl_b32 s%d, s%d, 3", sT, sE)
    a("v_lshl_add_u32 v%d, v%d, 1, s%d", vT2, vT4, sT)
    a("v_and_b32 v%d, 15, v%d", vM, vLane)
    a("v_xor_b32 v%d, v%d, v%d", vT2, vT2, vM)
    a("v_lshlrev_b32 v%d, 2, v%d", vT2, vT2)
    a("s_mov_b32 s%d, 0x%x", sC, tab & 0xffffffff)
    a("s_mov_b32 s%d, 0x%x", sC + 1, tab >> 32)
    a("v_lshrrev_b64 v[16:17], v%d, s[%d:%d]", vT2, sC, sC + 1)
    a("v_and_b32 v%d, 15, v16", vT2)
    a("s_lshl_b32 s%d, s%d, 3", sT, sW)
    a("v_add_u32 v%d, s%d, v%d", vT1, sT, vT4)
    a("v_mul_u32_u24 v%d, 3840, v%d", vT1, vT1)
    a("v_mul_u32_u24 v%d, 13, v%d", vT3, vT2)
    a("v_lshrrev_b32 v%d, 6, v%d", vT3, vT3)
    a("v_mul_u32_u24 v%d, %d, v%d", vT3, 1280 - 80, vT3)
    a("v_cmp_eq_u32 vcc, 15, v%d", vT2)
    a("v_lshl_add_u32 v%d, v%d, 4, v%d", vT2, vT2, vT3)
    a("v_mov_b32 v%d, 0x%x", vS1, OOB)
    if HELP:
        a("s_and_b32 s%d, s%d, 7", sT, sHP)
        a("s_mov_b32 s%d, 0x%x", sT2, OOB)
        for hp, sec in ((0, 0), (2, 1), (5, 2)):
            a("s_cmp_eq_u32 s%d, %d", sT, hp)
            a("s_cselect_b32 s%d, %d, s%d", sT2, sec * 1280 + 256 - 80 * hp + (HELP - 1) * 64 * 3840, sT2)
        a("s_bfe_u32 s%d, s%d, 0x10001", sT, sTB)
        a("v_lshrrev_b32 v%d, 1, v%d", vT3, vT4)
        a("v_cmp_eq_u32 s[%d:%d], s%d, v%d", sC, sC + 1, sT, vT3)
        a("v_mov_b32 v%d, s%d", vT3, sT2)
        a("s_nop 0")
        a("v_cndmask_b32 v%d, v%d, v%d, s[%d:%d]", vT3, vS1, vT3, sC, sC + 1)
        a("v_cndmask_b32 v%d, v%d, v%d, vcc", vT2, vT2, vT3)
    else:
        a("v_cndmask_b32 v%d, v%d, v%d, vcc", vT2, vT2, vS1)
    a("v_add_u32 v%d, v%d, v%d", vWg + 0, vT1, vT2)
    a("v_add_u32 v%d, %d, v%d", vWg + 1, 4 * 3840 - 1024, vWg + 0)
    a("s_lshr_b32 s%d, s%d, 1", sT, sW)
    a("s_mul_i32 s%d, s%d, 24576", sM0x, sT)
    a("s_lshl_b32 s%d, s%d, 12", sT, sE)
    a("s_add_u32 s%d, s%d, s%d", sM0x, sM0x, sT)
    a("s_lshl_b32 s%d, s%d, 11", sM0w, sW)
    a("s_add_u32 s%d, s%d, %d", sM0w, sM0w, WBASE)
    a("s_mov_b32 s%d, %d", XS + 2, 256 * 1280)
    a("s_mov_b32 s%d, 0x20000", XS + 3)
    a("s_mov_b32 s%d, 0x20000", WSRD + 3)
    if SKEW:
        a("s_xor_b32 s%d, s%d, s%d", sT, sTB, sHP)
        a("s_and_b32 s%d, s%d, 1", sT, sT)
        a("s_mul_i32 s%d, s%d, 5", sT, sT)
        if SKEW > 1:
            a("s_lshr_b32 s%d, s2, 1", sT2)
            a("s_xor_b32 s%d, s%d, s2", sT2, sT2)
            a("s_and_b32 s%d, s%d, 1", sT2, sT2)
            a("s_mul_i32 s%d, s%d, %d", sT2, sT2, SKEW)
            a("s_add_u32 s%d, s%d, s%d", sT, sT, sT2)
        XS1 = env("XS1", 0)
        if XS1:
            a("s_lshr_b32 s%d, s2, 2", sT2)
            a("s_xor_b32 s%d, s%d, s2", sT2, sT2)
            a("s_bfe_u32 s%d, s%d, 0x10004", sT2, sT2)
            if XS1 == 2:
                a("s_bfe_u32 s%d, s2, 0x10005", sC)
                a("s_andn2_b32 s%d, s%d, s%d", sT2, sT2, sC)
            a("s_add_u32 s%d, s%d, s%d", sT, sT, sT2)
        FOL = env("FOL", 1)
        if FOL:
            a("s_bfe_u32 s%d, s2, 0x10005", sT2)
            a("s_mul_i32 s%d, s%d, %d", sT2, sT2, 10 - FOL)
            a("s_add_u32 s%d, s%d, s%d", sT, sT, sT2)
            a("s_cmp_ge_u32 s%d, 10", sT)
            a("s_cselect_b32 s%d, 10, 0", sT2)
            a("s_sub_u32 s%d, s%d, s%d", sT, sT, sT2)
        a("s_lshl_b32 s%d, s%d, 7", sXoff, sT)
        a("s_mul_i32 s%d, s%d, %d", sWoff, sT, 64 * 3840)
    else:
        a("s_mov_b32 s%d, 0", sXoff)
        a("s_mov_b32 s%d, 0", sWoff)
    a("s_mul_i32 s%d, s%d, %d", sT, sTB, 256 * 1280)
    a("s_mul_i32 s%d, s%d, 80", sT2, sHP)
    a("s_sub_u32 s%d, %d, s%d", WSRD + 2, 640 * 3840, sT2)
    a("s_waitcnt lgkmcnt(0)")
    a("s_add_u32 s%d, s4, s%d", XS, sT)
    a("s_addc_u32 s%d, s5, 0", XS + 1)
    a("s_add_u32 s%d, s6, s%d", WSRD, sT2)
    a("s_addc_u32 s%d, s7, 0", WSRD + 1)

    ntx = " nt" if NT & 1 else ""
    ntw = " nt" if NT & 2 else ""
    def dma_ops(slot_x, slot_w):
        ops = []
        def x(i):
            if i == 0:
                a("s_add_u32 m0, s%d, %s", sM0x, slot_x); a("s_nop 0")
            a("buffer_load_dwordx4 v%d, %s, s%d offen offset:%d%s lds", vXg + i, sr(XS, 4), sXoff, 1024 * i, ntx)
        def w(i):
            if i == 0:
                a("s_add_u32 m0, s%d, %s", sM0w, slot_w)
                a("s_add_u32 s%d, s%d, %d", sXoff, sXoff, 0 if env("NOADV", 0) & 1 else 128)
            a("buffer_load_dwordx4 v%d, %s, s%d offen offset:%d%s lds", vWg + i, sr(WSRD, 4), sWoff, 1024 * i, ntw)
            if i == 1:
                a("s_add_u32 s%d, s%d, %d", sWoff, sWoff, 0 if env("NOADV", 0) & 2 else 64 * 3840)
                if SKEW:
                    a("s_cmp_eq_u32 s%d, 1280", sXoff)
                    a("s_cselect_b32 s%d, 0, s%d", sXoff, sXoff)
                    a("s_cselect_b32 s%d, 0, s%d", sWoff, sWoff)
        for i in range(4): ops.append(lambda i=i: x(i))
        for i in range(2): ops.append(lambda i=i: w(i))
        return ops
    for op in dma_ops("0", "0"): op()
    a("s_bfe_u32 s%d, s%d, 0x10001", sKH, sW)
    a("s_lshr_b32 s%d, s%d, 2", sQH, sW)
    a("s_mov_b32 s%d, %d", WS + 2, WS_USED)
    a("s_mov_b32 s%d, 0x20000", WS + 3)
    a("s_and_b32 s%d, s%d, 3", sT3, sW)
    a("v_lshrrev_b32 v%d, 1, v%d", vT1, vM)
    a("v_xor_b32 v%d, v%d, v%d", vT1, vT1, vT4)
    a("s_mul_i32 s%d, s%d, 24576", sT, sT3)
    a("v_lshl_add_u32 v%d, v%d, 7, s%d", vT2, vM, sT)
    a("v_lshl_add_u32 v%d, v%d, 4, v%d", vXa, vT1, vT2)
    a("v_xor_b32 v%d, 64, v%d", vXa + 1, vXa)
    a("v_bfe_u32 v%d, v%d, 2, 2", vT1, vLane)
    a("v_lshl_add_u32 v%d, v%d, 3, v%d", vT2, vT4, vT1)
    a("v_lshlrev_b32 v%d, 8, v%d", vT2, vT2)
    a("v_and_b32 v%d, 3, v%d", vT3, vLane)
    a("v_lshl_add_u32 v%d, v%d, 3, v%d", vT2, vT3, vT2)
    a("v_add_u32 v%d, %d, v%d", vT2, WBASE, vT2)
    a("v_bfe_u32 v%d, v%d, 2, 3", vT1, vLane)
    a("s_lshl_b32 s%d, s%d, 2", sT, sQH)
    a("v_xor_b32 v%d, s%d, v%d", vT1, sT, vT1)
    a("v_lshl_add_u32 v%d, v%d, 5, v%d", vWa, vT1, vT2)
    for xt in range(1, 4): a("v_xor_b32 v%d, %d, v%d", vWa + xt, 32 * xt, vWa)
    mark = len(a.l)
    a("v_lshlrev_b32 v%d, 4, v%d", vL16, vLane)
    a("s_lshl_b32 s%d, s%d, 14", sT, sT3)
    a("s_add_u32 s%d, s%d, %d", sT, sT, IMG)
    a("v_add_u32 v%d, s%d, v%d", vL0, sT, vL16)
    a("v_cmp_lt_u32 vcc, 1, v%d", vT4)
    a("v_lshlrev_b32 v%d, 3, v%d", vT1, vLane)
    a("v_add_u32 v%d, 4096, v%d", vT1, vT1)
    a("v_mov_b32 v%d, 0x%x", vT2, f32bits(CSCALE))
    a("v_cndmask_b32 v%d, v%d, v%d, vcc", vG0, vS1, vT1)
    a("v_cndmask_b32 v%d, v%d, 1.0, vcc", vSc, vT2)
    a("v_and_b32 v%d, 4, v%d", vT1, vM)
    a("v_and_b32 v%d, 8, v%d", vT2, vM)
    a("v_lshlrev_b32 v%d, 5, v%d", vT1, vT1)
    a("v_lshl_add_u32 v%d, v%d, 3, v%d", vT1, vT2, vT1)
    a("v_and_b32 v%d, 0x330, v%d", vT2, vL16)
    a("v_add_u32 v%d, v%d, v%d", vT1, vT1, vT2)
    a("v_add_u32 v%d, 6144, v%d", vG1, vT1)
    a("v_add_u32 v%d, s%d, v%d", vL1, sT, vG1)
    if not env("PEEL", 1):
        for i in range(64): a("v_mov_b32 v%d, 0", ACC + i)
    a("v_and_b32 v%d, 11, v%d", vT1, vM)
    a("v_cmp_eq_u32 vcc, 8, v%d", vT1)
    a("v_mov_b32 v%d, 0x3f803f80", vT1)
    a("v_and_b32 v%d, 31, v0", vM)
    a("v_cndmask_b32 v%d, 0, v%d, vcc", vOne, vT1)
    a("v_bfe_u32 v%d, v0, 5, 1", vH)
    for i in range(O, 243): a("v_mov_b32 v%d, 0", i)
    a("v_mov_b32 v%d, 0xdddddddd", vIdx)
    a("v_and_b32 v%d, 4, v%d", vT1, vM)
    a("v_lshlrev_b32 v%d, 8, v%d", vT1, vT1)
    a("v_and_b32 v%d, 24, v%d", vT2, vM)
    a("v_lshl_add_u32 v%d, v%d, 3, v%d", vT1, vT2, vT1)
    a("v_and_b32 v%d, 3, v%d", vT2, vM)
    a("v_lshl_add_u32 v%d, v%d, 4, v%d", vT1, vT2, vT1)
    a("s_lshl_b32 s%d, s%d, 9", sT, sQH)
    a("v_lshl_add_u32 v%d, v%d, 8, s%d", vT2, vH, sT)
    a("v_add_u32 v%d, v%d, v%d", vK, vT1, vT2)
    a("s_lshl_b32 s%d, s%d, 14", sC, sT3)
    a("v_add_u32 v%d, s%d, v%d", vRk, sC, vK)
    a("s_lshl_b32 s%d, s%d, 8", sT, sQH)
    a("s_add_u32 s%d, s%d, s%d", sT, sT, sC)
    a("v_add_u32 v%d, s%d, v%d", vRr, sT, vT1)
    a("s_lshl_b32 s%d, s%d, 7", sT, sQH)
    a("s_add_u32 s%d, s%d, %d", sT, sT, 4096 + 256)
    a("v_lshrrev_b32 v%d, 1, v%d", vT1, vT1)
    a("v_cmp_eq_u32 vcc, 0, v%d", vH)
    a("v_add_u32 v%d, s%d, v%d", vT1, sT, vT1)
    a("v_add_u32 v%d, 2048, v%d", vT3, vL16)
    a("v_cndmask_b32 v%d, v%d, v%d, vcc", vKr, vS1, vT1)
    a("v_cndmask_b32 v%d, v%d, v%d, vcc", vOr, vS1, vT3)
    a("v_and_b32 v%d, 14, v%d", vT2, vLane)
    a("v_mul_u32_u24 v%d, 56, v%d", vT2, vT2)
    a("v_lshl_add_u32 v%d, v%d, 3, v%d", vT2, vLane, vT2)
    a("v_lshl_or_b32 v%d, v%d, 29, v%d", vFl, vT4, vT2)
    a("v_min_u32 v%d, 21, v%d", vT1, vM)
    a("v_lshlrev_b32 v%d, 4, v%d", vT1, vT1)
    a("v_lshl_add_u32 v%d, v%d, 8, v%d", vT1, vH, vT1)
    a("s_lshl_b32 s%d, s%d, 10", sT, sQH)
    a("s_add_u32 s%d, s%d, 6144", sT, sT)
    a("s_lshl_b32 s%d, s%d, 7", sT2, sQH)
    a("s_add_u32 s%d, s%d, %d", sT2, sT2, 6144 + 2048 - 256)
    a("v_cmp_gt_u32 vcc, 16, v%d", vM)
    a("v_add_u32 v%d, s%d, v%d", vT2, sT, vT1)
    a("v_add_u32 v%d, s%d, v%d", vT3, sT2, vT1)
    a("v_cndmask_b32 v%d, v%d, v%d, vcc", vT1, vT3, vT2)
    a("v_cmp_gt_u32 vcc, 21, v%d", vM)
    a("v_add_u32 v%d, s%d, v%d", vRv, sC, vT1)
    a("s_lshl_b32 s%d, s%d, 2", sT, sTB)
    a("v_cndmask_b32 v%d, v%d, v%d, vcc", vV, vS1, vT1)
    a("s_add_u32 s%d, s%d, s%d", sT, sT, sT3)
    a("s_lshl_b32 s%d, s%d, 5", sC, sB)
    a("s_add_u32 s%d, s%d, s%d", sT2, sT, sC)
    a("s_lshl_b32 s%d, s%d, 1", sT2, sT2)
    a("s_add_u32 s%d, s%d, s%d", sT2, sT2, sQH)
    a("s_lshl_b32 s%d, s%d, 4", sO, sT2)
    a("s_add_u32 s%d, s%d, s%d", sO, sO, sHP)
    a("s_lshl_b32 s%d, s%d, 7", sT2, sO)
    a("s_add_u32 s%d, s%d, %d", sF2, sT2, F2_OFF)
    a("s_mul_i32 s%d, s%d, %d", sO, sO, OB)
    a("s_add_u32 s%d, s%d, %d", sO, sO, O_OFF)
    a("s_lshl_b32 s%d, s%d, 4", sC, sB)
    a("s_add_u32 s%d, s%d, s%d", sC, sC, sHP)
    a("s_mul_i32 s%d, s%d, %d", sKV, sC, KV_PAIR)
    a("s_mul_i32 s%d, s%d, %d", sPub, sT, BLK)
    a("s_add_u32 s%d, s%d, s%d", sPub, sPub, sKV)
    a("s_mul_i32 s%d, s%d, %d", sT2, sT3, BLK)
    a("s_add_u32 s%d, s%d, s%d", sKV, sKV, sT2)
    a("s_lshl_b32 s%d, s%d, 2", sC, sC)
    a("s_add_u32 s%d, s%d, s%d", sC, sC, sT3)
    a("s_lshl_b32 s%d, s%d, 10", sC, sC)
    a("s_add_u32 s%d, s%d, %d", sF1, sC, F1_OFF)
    a("s_and_b32 s%d, s%d, 4", sT, sTB)
    a("s_lshl_b32 s%d, s%d, 1", sT, sT)
    a("s_lshl_b32 s%d, 0xff, s%d", sMsk, sT)
    a("s_mul_i32 s%d, s%d, 12288", sT, sT3)
    a("s_add_u32 s%d, s%d, %d", sT, sT, CMB)
    a("v_add_u32 v%d, s%d, v%d", vAr, sT, vL16)
    a("s_lshl_b32 s%d, s%d, 5", sT, sW)
    a("v_mov_b32 v%d, s%d", vFo, sT)
    a("s_cmp_ge_u32 s%d, 5", sW)
    a("s_cselect_b64 vcc, -1, 0")
    a("s_cselect_b32 s%d, 1, 0", sT2)
    a("s_lshl_b32 s%d, s%d, s%d", sT, sW, sT2)
    a("s_mul_i32 s%d, s%d, 10", sC, sT2)
    a("s_sub_u32 s%d, s%d, s%d", sT, sT, sC)
    a("s_add_u32 s%d, s%d, s%d", sT2, sT2, sT)
    a("s_min_u32 s%d, s%d, 4", sT2, sT2)
    for dst, sp in ((vG, sT), (vGb, sT2)):
        a("s_lshl_b32 s%d, s%d, 6", sC, sp)
        a("v_add_u32 v%d, s%d, v%d", vT1, sC, vLane)
        a("v_mul_u32_u24 v%d, 6554, v%d", vT2, vT1)
        a("v_lshrrev_b32 v%d, 16, v%d", vT2, vT2)
        a("v_mul_u32_u24 v%d, 10, v%d", vT3, vT2)
        a("v_sub_u32 v%d, v%d, v%d", dst, vT1, vT3)
        a("v_and_b32 v%d, 4, v%d", vT1, vT2)
        a("v_lshlrev_b32 v%d, 1, v%d", vT1, vT1)
        a("v_and_b32 v%d, 8, v%d", vT3, vT2)
        a("v_lshrrev_b32 v%d, 1, v%d", vT3, vT3)
        a("v_and_b32 v%d, 0x13, v%d", vT2, vT2)
        a("v_or3_b32 v%d, v%d, v%d, v%d", vT1, vT1, vT2, vT3)
        a("v_lshrrev_b32 v%d, 4, v%d", vT2, vT1)
        a("v_mul_u32_u24 v%d, 24, v%d", vT2, vT2)
        a("v_and_b32 v%d, 28, v%d", vT3, vT1)
        a("v_mad_u32_u24 v%d, v%d, 9, 16", vT3, vT3)
        a("v_cndmask_b32 v%d, v%d, v%d, vcc", vT2, vT2, vT3)
        a("v_add_u32 v%d, v%d, v%d", vT1, vT1, vT2)
        a("v_mul_u32_u24 v%d, 1280, v%d", vT1, vT1)
        a("v_lshl_add_u32 v%d, v%d, 4, v%d", dst, dst, vT1)

    SPLIT = env("SPLIT", 10000) if env("PEEL", 1) else 10000
    part2 = a.l[mark + SPLIT:]
    del a.l[mark + SPLIT:]
    a("s_barrier")
    a("s_or_b32 s%d, s2, s%d", sDX, sW)
    a("s_cbranch_scc1 L_nononce")
    a("s_or_b32 s%d, s%d, 0x80000000", sNon + 1, sNon + 1)
    a("v_mov_b32 v%d, s%d", vNon, sNon)
    a("v_mov_b32 v%d, s%d", vNon + 1, sNon + 1)
    a("v_mov_b32 v%d, 0", 255)
    a("global_store_dwordx2 v%d, %s, s[%d:%d] sc0 sc1", 255, vr(vNon, 2), sDbg, sDbg + 1)
    a.label("L_nononce")
    d1 = dma_ops("8192", "16384")
    for _ in range(env("D1PRE", 4)): d1.pop(0)()
    PEEL = env("PEEL", 1)
    D1PRE = env("D1PRE", 4)
    if not PEEL:
        for op in d1: op()
    CODEPF = env("CODEPF", 2) & 1
    if CODEPF:
        a.label("L_pfbase")
        a("s_getpc_b64 s[%d:%d]", sC2, sC2 + 1)
        a("v_min_u32 v%d, 21, v%d", 255, vLane)
        a("v_lshlrev_b32 v%d, 7, v%d", 255, 255)
        a("s_mul_i32 s%d, s%d, 2816", sDX, sW)
        a("v_add_u32 v%d, s%d, v%d", 255, sDX, 255)
        a("v_min_u32 v%d, %s, v%d", 255, "L_code_end-L_pfbase-8", 255)
        a("global_load_dword v255, v%d, s[%d:%d]", 255, sC2, sC2 + 1)
    def read_ops(fb, ks):
        f = F + 32 * fb
        ops = []
        for t in range(4):
            ops.append(lambda t=t: a("ds_read_b128 %s, v%d offset:%d", vr(f + 4 * t, 4), vXa + ks, t * 2048))
            for q in range(2):
                ops.append(lambda t=t, q=q: a("ds_read_b64_tr_b16 %s, v%d offset:%d", vr(f + 16 + 4 * t + 2 * q, 2), vWa + t, ks * 8192 + q * 1024))
        return ops
    def reads(fb, ks):
        for op in read_ops(fb, ks): op()
    extra = []
    RPM = env("RPM", 1)
    def mfs(fb, isB, rd, dm, misc, zero=False):
        f = F + 32 * fb
        ABL = env("ABL", 0)
        if ABL & 1: f = F; rd = []
        if ABL & 2: dm = []
        if ABL & 4: rd = rd[:9]
        n = 0
        for (xt, t) in sorted([(x, y) for x in range(4) for y in range(4)], key=lambda p: (max(p), p)):
            d = ACC + 16 * xt + 4 * t
            x, w = vr(f + 4 * t, 4), vr(f + 16 + 4 * xt, 4)
            c = "0" if zero else vr(d, 4)
            if isB and xt > 0: a("v_mfma_f32_16x16x32_bf16 %s, %s, %s, %s", vr(d, 4), x, w, c)
            else:              a("v_mfma_f32_16x16x32_bf16 %s, %s, %s, %s", vr(d, 4), w, x, c)
            n += 1
            DP = env("DP", 2)
            if DP and dm and n % DP == env("DO", 1) and not zero: dm.pop(0)()
            if rd:
                for _ in range(RPM):
                    if rd: rd.pop(0)()
            elif dm and n % 3 == 1: dm.pop(0)()
            elif misc:
                for _ in range(3):
                    if misc: misc.pop(0)()
        for op in rd + dm + misc: op()
    SH = env("SH", 4)
    def stage(kind, isB, ops):
        if SH: ops = dma_ops("s%d" % sSx, "s%d" % sSw)[:SH] if kind <= 0 else []
        if SH and extra: ops = [extra.pop(0) for _ in range(len(extra))] + ops
        if kind == 1:
            a("v_mov_b32 v%d, 0", vT1)
            a("global_load_dwordx2 %s, v%d, s[%d:%d] sc0 sc1", vr(vNon, 2), vT1, sDbg, sDbg + 1)
        misc = []
        if kind < 2:
            misc = [lambda: (a("s_cmp_eq_u32 s%d, 2", sSlot), a("s_cselect_b32 s%d, -2, 1", sDX)),
                    lambda: a("s_lshl_b32 s%d, s%d, 14", sDW, sDX),
                    lambda: a("s_lshl_b32 s%d, s%d, 13", sT, sDX)]
            misc += [lambda ks=ks: a("v_add_u32 v%d, s%d, v%d", vXa + ks, sT, vXa + ks) for ks in range(2)]
            misc += [lambda ft=ft: a("v_add_u32 v%d, s%d, v%d", vWa + ft, sDW, vWa + ft) for ft in range(4)]
        if kind == 2:
            misc = [lambda: a("v_readfirstlane_b32 s%d, v%d", sNon + 1, vNon + 1),
                    lambda: a("v_readfirstlane_b32 s%d, v%d", sNon, vNon),
                    lambda: a("s_add_u32 s%d, s%d, 3072", sT2, sPub),
                    lambda: a("s_mov_b32 s%d, 0x%x", sC, 0xff00ff00 if isB else f32bits(CSCALE)),
                    lambda: a("s_mov_b32 s%d, s%d", sC + 1, sC),
                    lambda: (a("s_cmp_eq_u32 s%d, 0", sNon + 1), a("s_cbranch_scc1 L_nonce%d", isB), a.label("L_nonce_ok%d" % isB))]
        a("s_waitcnt lgkmcnt(0)")
        mfs(0, isB, read_ops(1, 1), ops, misc)
        nops, rd, misc = [], [], []
        if kind < 2:
            if kind == 0 and not SH:
                a("s_lshl_b32 s%d, s%d, 13", sSx, sSlot)
                a("s_lshl_b32 s%d, s%d, 14", sSw, sSlot)
            a("s_waitcnt vmcnt(%d) lgkmcnt(0)", 0 if kind == 1 else (SH if SH else 6))
            a("s_barrier")
            rd = read_ops(0, 0)
            misc = [lambda: a("s_add_u32 s%d, s%d, s%d", sSlot, sSlot, sDX)]
            if SH and kind <= 0:
                nops = dma_ops("s%d" % sSx, "s%d" % sSw)[SH:]
                nops.append(lambda: (a("s_lshl_b32 s%d, s%d, 13", sSx, sSlot), a("s_lshl_b32 s%d, s%d, 14", sSw, sSlot), a("s_add_u32 s%d, s%d, s%d", sSlot, sSlot, sDX)))
                misc = [lambda: a("s_add_u32 s%d, s%d, 1", sIt, sIt)]
            elif kind == 0:
                nops = dma_ops("s%d" % sSx, "s%d" % sSw)[:3]
                misc += [lambda: a("s_add_u32 s%d, s%d, 1", sIt, sIt)]
            if kind == 1:
                I = lambda f, *x: (lambda: a(f, *x))
                misc += [I("s_and_b32 s%d, s2, -8", sT2), I("s_add_u32 s%d, s%d, s%d", sT2, sT2, sW), I("s_mul_i32 s%d, s%d, %d", sT2, sT2, 25 * 128),
                         I("v_min_u32 v255, 24, v%d", vLane), I("v_lshl_add_u32 v255, v255, 7, s%d", sT2),
                         I("s_lshl_b32 s%d, s%d, 4", sT2, sTB), I("s_add_u32 s%d, s%d, s%d", sT2, sT2, sQH), I("s_lshl_b32 s%d, s%d, 3", sT2, sT2),
                         I("s_add_u32 s%d, s%d, s%d", sTrig, sT2, sF1),
                         I("s_and_b32 s%d, s%d, 7", sT3, sHP), I("s_mul_i32 s%d, s%d, 160", sT3, sT3), I("s_sub_u32 s%d, %d, s%d", WO + 2, 640 * 1280, sT3),
                         lambda: (a("s_add_u32 s%d, s56, s%d", WO, sT3), a("s_addc_u32 s%d, s57, 0", WO + 1)),
                         I("s_mov_b32 s%d, %d", OUT + 2, 2048 * 2560), I("s_mov_b64 s[%d:%d], s[58:59]", OUT, OUT + 1)]
        else:
            a("s_waitcnt lgkmcnt(0)")
            a("s_barrier")
            return
        mfs(1, isB, rd, nops, misc)
    if env("IDLE0", 0): a("s_sleep %d", env("IDLE0", 0))
    st(0)
    a("s_waitcnt vmcnt(%d)", (D1PRE if PEEL else 6) + (1 if CODEPF else 0))
    st(1)
    a("s_barrier")
    reads(0, 0)
    if not PEEL:
        a("s_mov_b32 s%d, %d", sSx, 2 * 8192)
        a("s_mov_b32 s%d, %d", sSw, 2 * 16384)
        d2 = dma_ops("s%d" % sSx, "s%d" % sSw)
        for i in range(3): d2.pop(0)()
    if PEEL:
        a("s_cmp_eq_u32 s%d, 0", sQH)
        a("s_cbranch_scc0 L_st0B")
        for isB in (False, True):
            if isB: a.label("L_st0B")
            a("s_waitcnt lgkmcnt(0)")
            D2A, D2B = env("D2A", 0), env("D2B", 0)
            dd = dma_ops("16384", "32768")
            mfs(0, isB, read_ops(1, 1), dma_ops("8192", "16384")[D1PRE:] + dd[:D2A], [], True)
            a("s_waitcnt lgkmcnt(0)")
            misc = [lambda ks=ks: a("v_add_u32 v%d, 8192, v%d", vXa + ks, vXa + ks) for ks in range(2)]
            misc += [lambda ft=ft: a("v_add_u32 v%d, 16384, v%d", vWa + ft, vWa + ft) for ft in range(4)]
            mfs(1, isB, [], dd[D2A:D2A + D2B], misc)
            if not isB: a("s_branch L_st0done")
        a.label("L_st0done")
        d2 = dma_ops("16384", "32768")[D2A + D2B:]
        a.l += part2
        ND2 = env("ND2", 2) if SH else 6
        for op in d2[:ND2 - D2A - D2B]: op()
        a("s_mov_b32 s%d, 1", sSlot)
        a("s_mov_b32 s%d, 1", sIt)
        a("s_mov_b32 s%d, 0", sSx)
        a("s_mov_b32 s%d, 0", sSw)
        st.g(3)
        a("s_waitcnt vmcnt(%d)", ND2)
        a("s_barrier")
        st.g(4)
        reads(0, 0)
    a("s_cmp_eq_u32 s%d, 0", sQH)
    a("s_cbranch_scc0 L_gemmB0")
    CV = F
    for isB in (False, True):
        L = "L_gemmB" if isB else "L_gemmA"
        a.label(L + "0")
        if SH: extra += dma_ops("16384", "32768")[ND2:]
        if PEEL: stage(0, isB, dma_ops("0", "0"))
        a.label(L)
        if DIAG and env("GD", 0):
            for k in range(5):
                st.g(5 + k)
                stage(0, isB, dma_ops("s%d" % sSx, "s%d" % sSw)[3:])
        else:
            stage(0, isB, dma_ops("s%d" % sSx, "s%d" % sSw)[3:])
            a("s_cmp_lt_u32 s%d, 7", sIt)
            a("s_cbranch_scc1 %s", L)
        st.g(10)
        stage(-1, isB, dma_ops("s%d" % sSx, "s%d" % sSw)[3:])
        st.g(11)
        stage(1, isB, [])
        st.g(12)
        stage(2, isB, [])
        st(2, False)
        def cvt(dst, src):
            return ["v_cvt_pk_bf16_f32 v%d, v%d, v%d" % (dst, src, src + 1), "v_cvt_pk_bf16_f32 v%d, v%d, v%d" % (dst + 1, src + 2, src + 3)]
        units, late, pre = [], [], []
        if not isB:
            for t in range(4):
                o = CV + 4 * t
                units.append(([(2, t), (3, t)], cvt(o, ACC + 32 + 4 * t) + cvt(o + 2, ACC + 48 + 4 * t) +
                              ["ds_write_b128 v%d, %s offset:%d" % (vL0, vr(o, 4), t * 1024)]))
                stx = "buffer_store_dwordx4 %s, v%d, %s, s%d offen offset:%d sc1" % (vr(o, 4), vL16, srd, sPub, t * 1024)
                if env("AEARLY", 1): units[-1][1].append(stx)
                else: pre.append(stx)
            for t in range(4):
                o = CV + 16 + 4 * t
                ins = ["v_pk_mul_f32 %s, %s, s[%d:%d]" % (vr(ACC + 16 * xt + 4 * t + 2 * h, 2), vr(ACC + 16 * xt + 4 * t + 2 * h, 2), sC, sC + 1) for xt in range(2) for h in range(2)]
                if env("NOPK", 0) & 1: ins = ["v_mul_f32 v%d, s%d, v%d" % (ACC + 16 * xt + 4 * t + h, sC, ACC + 16 * xt + 4 * t + h) for xt in range(2) for h in range(4)]
                units.append(([(0, t), (1, t)], ins + cvt(o, ACC + 4 * t) + cvt(o + 2, ACC + 16 + 4 * t) +
                              ["ds_write_b128 v%d, %s offset:%d" % (vL0, vr(o, 4), 12288 + t * 1024)]))
        else:
            n = 0
            NPRE = env("NPRE", 2)
            for xt in (1, 2, 3):
                for kt in range(2):
                    o = CV + 4 * n; n += 1
                    ins = cvt(o, ACC + 16 * xt + 8 * kt) + cvt(o + 2, ACC + 16 * xt + 8 * kt + 4)
                    if xt == 3: ins += ["v_cndmask_b32 v%d, v%d, v%d, s[%d:%d]" % (o + i, o + i, vOne, sC, sC + 1) for i in range(4)]
                    ins.append("ds_write_b128 v%d, %s offset:%d" % (vL1, vr(o, 4), kt * 3072 + (xt - 1) * 1024))
                    stx = "buffer_store_dwordx4 %s, v%d, %s, s%d offen offset:%d sc1" % (vr(o, 4), vG1, srd, sT2 if kt else sPub, (xt - 1) * 1024)
                    if n <= env("NIN", 0): ins.append(stx)
                    elif n <= NPRE: pre.append(stx)
                    else: late.append(stx)
                    units.append(([(xt, 2 * kt), (xt, 2 * kt + 1)], ins))
            for q in range(2):
                o = CV + 4 * n; n += 1
                ins = ["v_pk_mul_f32 %s, %s, %s op_sel_hi:[1,0]" % (vr(ACC + 4 * t + 2 * h, 2), vr(ACC + 4 * t + 2 * h, 2), vr(vSc, 2)) for t in (q, q + 2) for h in range(2)]
                if env("NOPK", 0) & 1: ins = ["v_mul_f32 v%d, v%d, v%d" % (ACC + 4 * t + h, vSc, ACC + 4 * t + h) for t in (q, q + 2) for h in range(4)]
                ins += cvt(o, ACC + 4 * q) + cvt(o + 2, ACC + 4 * (q + 2)) + ["ds_write_b128 v%d, %s offset:%d" % (vL0, vr(o, 4), 4096 + q * 1024)]
                for kt in range(2): late.append("buffer_store_dwordx2 %s, v%d, %s, s%d offen offset:%d sc1" % (vr(o + 2 * kt, 2), vG0, srd, sPub, (2 * kt + q) * 512))
                units.append(([(0, q), (0, q + 2)], ins))
        f = F + 32
        cnt, done_at, nxt = 0, [], 0
        def emit(x):
            nonlocal cnt
            a(x); cnt += 1
        LAG = env("LAG", 3)
        for u in range(len(units) + LAG):
            if u < len(units):
                for (xt, t) in units[u][0]:
                    d = ACC + 16 * xt + 4 * t
                    x, w = vr(f + 4 * t, 4), vr(f + 16 + 4 * xt, 4)
                    emit("v_mfma_f32_16x16x32_bf16 %s, %s, %s, %s" % ((vr(d, 4), x, w, vr(d, 4)) if isB and xt > 0 else (vr(d, 4), w, x, vr(d, 4))))
                done_at.append(cnt)
                if u == 0: emit("ds_write_b128 v%d, %s offset:%d" % (vFo, vr(O, 4), LFLAG))
            if u >= LAG:
                gap = cnt - done_at[u - LAG]
                if gap < 8:
                    a("s_nop %d", 7 - gap); cnt += 8 - gap
                for x in units[u - LAG][1]: emit(x)
        for x in pre: a(x)
        a("s_setprio %d", 3 if isB else 2)
        for i in range(16): a("v_mov_b32 v%d, 0", Qr + i)
        a("s_waitcnt lgkmcnt(0)")
        st(3)
        a("s_barrier")
        for x in late: a(x)
        if not isB: a("s_branch L_epi_done")
    a.label("L_epi_done")
    if env("IDLE", 0): a("s_sleep %d", env("IDLE", 0))
    def rdK(b): a("ds_read_b128 %s, v%d offset:%d", vr(Km + 4 * b, 4), vRk, IMG + b * 2048)
    def rdV(b):
        for g in range(2): a("ds_read_b128 %s, v%d offset:%d", vr(V + 8 * b + 4 * g, 4), vRv, IMG + b * 3072 + g * 512)
    def rdQ(p):
        r = vRk
        if p != 3:
            r = vT1; a("v_xor_b32 v%d, %d, v%d", r, (p ^ 3) << 14, vRk)
        for j in range(2): a("ds_read_b128 %s, v%d offset:%d", vr(Qm + 8 * p + 4 * j, 4), r, IMG + 12288 + j * 2048)
    rdK(0)
    a("ds_read_b128 %s, v%d offset:%d", vr(Kr, 4), vRr, IMG + 4096 + 512)
    rdQ(0)
    for p in range(3): a("v_xor_b32 v%d, %d, v%d", vT2 + p, (p ^ 3) << 14, vRr)
    a("s_mov_b32 exec_hi, 0")
    for p in range(4): a("ds_read_b128 %s, v%d offset:%d", vr(Qr + 4 * p, 4), vT2 + p if p < 3 else vRr, IMG + 4096)
    a("s_mov_b32 exec_hi, -1")
    rdQ(1); rdV(0)

    def kvop(what, b, sreg, extra=0):
        if env("NOKV", 0) == 1: return
        if what == "k":   a("buffer_load_dwordx4 %s, v%d, %s, s%d offen offset:%d sc1", vr(Km + 4 * b, 4), vK, srd, sreg, 2048 * b)
        elif what == "r": a("buffer_load_dwordx2 %s, v%d, %s, s%d offen offset:%d sc1", vr(Kr + 2 * b, 2), vKr, srd, sreg, 1024 * b)
        else:             a("buffer_load_dwordx4 %s, v%d, %s, s%d offen offset:%d sc1", vr(V + 8 * b + 4 * extra, 4), vV, srd, sreg, 3072 * b + 512 * extra)
    def qk1(j, kb, c="0"): a("v_mfma_f32_32x32x8_bf16 %s, %s, %s, %s", vr(S + 16 * (j % 4), 16), vr(Kr + 2 * kb, 2), vr(Qr + 2 * j, 2), c)
    def qk2(j, kb): a("v_mfma_f32_32x32x16_bf16 %s, %s, %s, %s", vr(S + 16 * (j % 4), 16), vr(Km + 4 * kb, 4), vr(Qm + 4 * j, 4), vr(S + 16 * (j % 4), 16))
    def pv(j, vb, half): a("v_smfmac_f32_32x32x32_bf16 %s, %s, %s, v%d", vr(O + 12 * j, 16), vr(V + 8 * vb + 4 * half, 4), vr(S + 16 * (j % 4) + 8 * half, 8), vIdx)
    def ex(r): a("v_exp_f32 v%d, v%d", r, r)
    def signal1():
        a("s_waitcnt vmcnt(0)")
        a("buffer_store_dwordx2 %s, off, %s, s%d sc0 sc1", vr(vNon, 2), srd, sTrig)
        a("global_load_dword v255, v255, s[56:57]")
    def poll(lbl, sline, mask, tmo, slp):
        a("s_mov_b32 s%d, 0", sTmo)
        a.label(lbl)
        a("buffer_load_dwordx2 v[4:5], v%d, %s, s%d offen sc0 sc1", vFl, srd, sline)
        a("s_add_u32 s%d, s%d, 1", sTmo, sTmo)
        a("s_waitcnt vmcnt(0)")
        a("v_cmp_eq_u64 vcc, s[%d:%d], v[4:5]", sNon, sNon + 1)
        a("s_cmp_gt_u32 s%d, 0x%x", sTmo, tmo)
        a("s_cbranch_scc1 %s_ok", lbl)
        a("s_andn2_b32 s%d, %s, vcc_lo", sT, mask)
        a("s_cbranch_scc0 %s_ok", lbl)
        a("s_sleep %d", slp)
        a("s_branch %s", lbl)
        a.label(lbl + "_ok")

    a("s_waitcnt lgkmcnt(7)")
    qk1(0, 0); qk2(0, 0); qk1(1, 0); qk2(1, 0)
    rdQ(2); rdQ(3); rdK(1); rdV(1)
    a("v_mov_b32 v%d, 1", vT2)
    a("ds_write_b32 v%d, v%d offset:12", vFo, vT2)
    for i in range(243, 252): a("v_mov_b32 v%d, 0", i)
    st(4, False)
    a("s_cmp_eq_u32 s%d, 0", sQH)
    a("s_cbranch_scc1 L_nosig")
    signal1()
    st(5, False)
    a.label("L_nosig")

    def wo_setup():
        R = 1280
        a("s_mov_b32 s%d, 0", sGo)
        a("s_lshl_b32 s%d, s%d, 10", sLo, sW)
        a("s_add_u32 s%d, s%d, %d", sLo, sLo, WOB)
        a("s_mov_b32 s%d, %d", sGs, 56 * R)
        a("s_mov_b32 s%d, 5120", sLs)
        a("s_mov_b32 s%d, %d", sGd, 24 * R)
        a("s_mov_b32 s%d, %d", sLd, 8 * 5120)
        a("s_mov_b32 s%d, 0", sGx)
        a("s_cmp_lt_u32 s%d, 5", sW)
        a("s_cbranch_scc1 L_wos")
        a("s_lshl_b32 s%d, s%d, 11", sLo, sW)
        a("s_add_u32 s%d, s%d, %d", sLo, sLo, WOB + 16 * 5120 - 5 * 2048)
        a("s_mov_b32 s%d, %d", sGs, 4 * R)
        a("s_mov_b32 s%d, %d", sGx, (4 * R) ^ (316 * R))
        a("s_mov_b32 s%d, 0", sGd)
        a("s_cmp_eq_u32 s%d, 7", sW)
        a("s_cselect_b32 s%d, 0, 1024", sLd)
        a.label("L_wos")
    def all8(lbl, val, n=8):
        a("v_and_b32 v%d, %d, v%d", vT3, n - 1, vLane)
        a("v_lshlrev_b32 v%d, 5, v%d", vT3, vT3)
        a("s_mov_b32 s%d, 0", sTmo)
        a.label(lbl)
        a("ds_read_b32 v%d, v%d offset:12", vT2, vT3)
        a("s_add_u32 s%d, s%d, 1", sTmo, sTmo)
        a("s_waitcnt lgkmcnt(0)")
        a("v_cmp_le_u32 vcc, %d, v%d", val, vT2)
        a("s_cmp_gt_u32 s%d, 0x20000", sTmo)
        a("s_cbranch_scc1 %s_ok", lbl)
        a("s_cmp_eq_u64 vcc, -1")
        a("s_cbranch_scc1 %s_ok", lbl)
        a("s_sleep %d", env("SL8", 2))
        a("s_branch %s", lbl)
        a.label(lbl + "_ok")

    def next_chunk():
        return [lambda: a("s_add_u32 s%d, s%d, 1", sCh, sCh),
                lambda: a("s_xor_b32 s%d, s%d, s%d", sNxt, sCh, sTB),
                lambda: a("s_and_b32 s%d, s%d, 7", sNxt, sNxt),
                lambda: a("s_mul_i32 s%d, s%d, %d", sNxt, sNxt, 4 * BLK),
                lambda: a("s_add_u32 s%d, s%d, s%d", sNxt, sNxt, sKV)]
    N = sNxt
    sched = {
        (0, 1): [("V1a", lambda: kvop("v", 1, N, 0)), ("V1b", lambda: kvop("v", 1, N, 1))],
        (0, 3): [("Wa", lambda: a("buffer_load_dwordx4 v%d, %s, s%d offen lds", vG, sr(WO, 4), sGo)), ("Wb", lambda: a("buffer_load_dwordx4 v%d, %s, s%d offen lds", vGb, sr(WO, 4), sGo))],
        (0, 6): [("K0", lambda: kvop("k", 0, N)), ("R0", lambda: kvop("r", 0, N))],
        (1, 1): [("V0a", lambda: kvop("v", 0, N, 0)), ("V0b", lambda: kvop("v", 0, N, 1))],
        (1, 6): [("K1", lambda: kvop("k", 1, N)), ("R1", lambda: kvop("r", 1, N))],
    }
    order = [(k, n) for k in sorted(sched) for (n, _) in sched[k]]
    def younger(name, pos):
        names = [n for _, n in order]
        i = names.index(name); cnt = 0
        while True:
            i = (i + 1) % len(order)
            if order[i][0] == pos or (order[i][0] > pos and (order[i - 1][0] < pos or i == 0)): return cnt
            cnt += 1
    PA, PB, POLLP = env("PA", 3), env("PB", 5), (1, 4)
    def spin(lbl, word):
        def f():
            a.label(lbl + "_w")
            a("s_add_u32 s%d, s%d, 1", sTmo, sTmo)
            a("s_cmp_gt_u32 s%d, 0x20000", sTmo)
            a("s_cbranch_scc1 %s_ok", lbl)
            a("s_sleep 1")
            a("ds_read_b32 v%d, v%d offset:%d", vT1, vFo, 4 * word)
            a("s_waitcnt lgkmcnt(0)")
            a("v_readfirstlane_b32 s%d, v%d", sT, vT1)
            a("s_cmp_eq_u32 s%d, 0", sT)
            a("s_cbranch_scc1 %s_w", lbl)
            a("s_branch %s", lbl)
        stubs.append(f)
    stubs = []
    def xreads(word, area, n, dst):
        return [lambda: a("ds_read_b32 v%d, v%d offset:%d", vT1, vFo, 4 * word)] + \
               [lambda q=q: a("ds_read_b128 %s, v%d offset:%d", vr(dst + 4 * q, 4), area, q * 1024) for q in range(n)]
    def xcheck(lbl, word, area, n, dst):
        a("s_waitcnt lgkmcnt(%d)", n)
        a("v_readfirstlane_b32 s%d, v%d", sT, vT1)
        a("s_cmp_eq_u32 s%d, 0", sT)
        a("s_cbranch_scc1 %s_w", lbl)
        a.label(lbl + "_ok")
        spin(lbl, word)
        def g():
            a.label(lbl)
            for f in xreads(word, area, n, dst)[1:]: f()
            a("s_branch %s_ok", lbl)
        stubs.append(g)
    def padd(d, x): a("v_pk_add_f32 %s, %s, %s", vr(d, 2), vr(d, 2), vr(x, 2))
    def iteration(first, last=False):
        for tt in range(2):
            for j in range(8):
                pj, pvb = ((7, 1 - tt) if j == 0 else (j - 1, tt))
                nj, nkb = (j + 2) % 8, (tt if j < 6 else 1 - tt)
                slots = [[], [], []]
                lds = [f for _, f in sched.get((tt, j), [])]
                wv = younger("V%db" % tt, (tt, 1)) if j == 0 else None
                wk = younger("R%d" % (1 - tt), (tt, 6)) if j == 6 else None
                if first:
                    if 8 * tt + j == PA:
                        a("s_cmp_eq_u32 s%d, 0", sQH)
                        a("s_cbranch_scc0 L_nosig2")
                        signal1()
                        st(5, False)
                        a.label("L_nosig2")
                    if 8 * tt + j == PB:
                        a("s_cmp_eq_u32 s%d, 0", sQH)
                        a("s_cbranch_scc1 L_nosig3")
                        a("s_setprio 1")
                        a.label("L_nosig3")
                    if (tt, j) == POLLP:
                        wo_setup()
                        all8("L_img", 1)
                        st(6, False)
                        poll("L_poll1", sF1, "s%d" % sMsk, 0x4000, 2)
                        st(7, False)
                        a("s_andn2_b32 s%d, 0xffff, vcc_lo", sMsk)
                        a("s_mov_b32 s%d, 0", sCh)
                        for f in next_chunk(): f()
                        for k in sorted(sched):
                            if k == (0, 3):
                                a("s_mov_b32 m0, s%d", sLo); a("s_nop 0"); sched[k][0][1]()
                                a("s_add_u32 m0, s%d, s%d", sLo, sLd); a("s_add_u32 s%d, s%d, s%d", sGo, sGo, sGd); sched[k][1][1]()
                                a("s_add_u32 s%d, s%d, s%d", sGo, sGo, sGs); a("s_add_u32 s%d, s%d, s%d", sLo, sLo, sLs); a("s_xor_b32 s%d, s%d, s%d", sGs, sGs, sGx)
                            elif (0, 1) < k < POLLP:
                                for _, f in sched[k]: f()
                    if (tt, j) < POLLP: lds = []
                    wv = None
                    if (tt, j) != (1, 6): wk = None
                else:
                    if (tt, j) == (0, 2): slots[2].append(lambda: a("s_mov_b32 m0, s%d", sLo))
                    if (tt, j) == (0, 3):
                        slots[0].append(lds[0]); slots[2].append(lds[1])
                        lds = []
                        slots[1] += [lambda: a("s_add_u32 m0, s%d, s%d", sLo, sLd), lambda: a("s_add_u32 s%d, s%d, s%d", sGo, sGo, sGd)]
                    if (tt, j) == (0, 4):
                        nc = next_chunk()
                        slots[0] += nc[0:2]; slots[1] += nc[2:4]; slots[2] += nc[4:5]
                    if (tt, j) == (0, 5):
                        slots[0] += [lambda: a("s_add_u32 s%d, s%d, s%d", sGo, sGo, sGs), lambda: a("s_add_u32 s%d, s%d, s%d", sLo, sLo, sLs)]
                        slots[1].append(lambda: a("s_xor_b32 s%d, s%d, s%d", sGs, sGs, sGx))
                    if (tt, j) == (1, 7): slots[0].append(lambda: a("s_cmp_lt_u32 s%d, 7", sCh))
                if last:
                    I = lambda f, *x: (lambda: a(f, *x))
                    if (tt, j) >= (0, 4):
                        slots = [[], [], []]; lds = []
                    if (tt, j) == (1, 0): wv = 0
                    if (tt, j) == (1, 6): wk = None
                    if (tt, j) == (0, 4):
                        slots[0] += [I("s_and_b32 s%d, s%d, 3", sT3, sW), I("s_xor_b32 s%d, s%d, 2", sT, sT3)]
                        slots[1] += [I("s_xor_b32 s%d, s%d, 3", sT2, sT3), I("s_mul_i32 s%d, s%d, 12288", sT, sT)]
                        slots[2] += [I("s_mul_i32 s%d, s%d, 12288", sT2, sT2)]
                    if (tt, j) == (0, 5):
                        slots[0] += [I("s_add_u32 s%d, s%d, %d", sCur, sT, CMB), I("s_add_u32 s%d, s%d, %d", sNxt, sT2, CMB)]
                        slots[1] += [I("s_mov_b32 s%d, 0x%x", sT3, f32bits(2.0 ** -30)), I("s_mov_b32 s%d, 0x%x", sT2, f32bits(2.0 ** 60))]
                    if (tt, j) == (0, 7):
                        a("v_and_b32 v%d, 3, v%d", vT3, vLane)
                        a("v_lshlrev_b32 v%d, 5, v%d", vT3, vT3)
                        slots[0] += [I("ds_read_b32 v%d, v%d offset:12", vT2, vT3), I("s_lshl_b32 s%d, s%d, 1", sT, sQH)]
                    if (tt, j) == (1, 1):
                        a("s_waitcnt lgkmcnt(0)")
                        a("v_cmp_le_u32 vcc, s%d, v%d", sT, vT2)
                        a("s_cmp_eq_u64 vcc, -1")
                        a("s_cbranch_scc0 L_afree0")
                        a.label("L_afree_back")
                        def afs():
                            a.label("L_afree0")
                            all8("L_afree", 2, 4)
                            a("s_branch L_afree_back")
                        stubs.append(afs)
                        a("v_add_u32 v%d, s%d, v%d", vT3, sCur, vL16)
                        a("v_add_u32 v%d, s%d, v%d", vT4, sNxt, vL16)
                        a("v_mov_b32 v%d, 1", vT2)
                        a("v_xor_b32 v%d, 64, v%d", vT1, vFo)
                        a("s_mov_b32 s%d, 0", sTmo)
                    if tt == 1 and 2 <= j <= 5:
                        for i in range(3):
                            q = 3 * (j - 2) + i
                            slots[i].append(I("ds_write_b128 v%d, %s offset:%d", vAr, vr(O + 4 * q, 4), q * 1024))
                        if j == 5: slots[2].append(I("ds_write_b32 v%d, v%d", vT1, vT2))
                    if (tt, j) == (1, 6):
                        xr = xreads(0, vT3, 12, O)
                        slots[1] += xr[:7]; slots[2] += xr[7:]
                if wv is not None: slots[2].append(lambda wv=wv: a("s_waitcnt vmcnt(%d)", wv))
                if wk is not None:
                    slots[0].append(lambda wk=wk: a("s_waitcnt vmcnt(%d)", wk))
                    for i, f in enumerate(lds): slots[1 + i].append(f)
                else:
                    for i, f in enumerate(lds): slots[i].append(f)
                regs = [S + 16 * (j % 4) + i for i in range(16)]
                def ex4():
                    for _ in range(4): ex(regs.pop(0))
                if first and (tt, j) == (0, 0):
                    ex4(); ex4(); a("s_waitcnt lgkmcnt(0)")
                else:
                    pv(pj, pvb, 0); [f() for f in slots[0]]; ex4()
                    pv(pj, pvb, 1); [f() for f in slots[1]]; ex4()
                if last and (tt, j) == (1, 7):
                    if DIAG and env("AD", 0): a("s_memtime s[74:75]")
                    if DIAG: a("s_waitcnt lgkmcnt(0)")
                    xcheck("L_cmb", 0, vT3, 12, O)
                    a("s_waitcnt lgkmcnt(6)")
                    for i in range(0, 24, 2): padd(O + 48 + i, O + i)
                    for k in range(6): a("ds_write_b128 v%d, %s offset:%d", vT3, vr(O + 48 + 4 * k, 4), k * 1024)
                    a("v_xor_b32 v%d, 32, v%d", vT1, vFo)
                    a("ds_write_b32 v%d, v%d offset:4", vT1, vT2)
                    ex4(); ex4()
                elif last and (tt, j) == (1, 6):
                    [f() for f in slots[2]]; ex4(); ex4()
                else:
                    qk1(nj, nkb); ex4()
                    qk2(nj, nkb); [f() for f in slots[2]]; ex4()
    iteration(True)
    BLEAD = env("BLEAD", 2)
    a("s_mov_b32 s%d, 3", sTrig)
    if BLEAD:
        a("s_cmp_eq_u32 s%d, 0", sQH)
        a("s_cbranch_scc1 L_nolead")
        a("s_setprio 3")
        a.label("L_nolead")
    st(8, False)
    a.raw(".p2align 6")
    a.label("L_attn")
    if DIAG and env("AD", 0):
        a("s_memtime s[100:101]")
        a("s_waitcnt lgkmcnt(0)")
        for k in range(2, 7):
            a("s_cmp_eq_u32 s%d, %d", sCh, k)
            a("s_cselect_b32 s%d, s100, s%d", 64 + 2 * (8 + k), 64 + 2 * (8 + k))
    a("s_cmp_eq_u32 s%d, s%d", sCh, sTrig)
    a("s_cbranch_scc1 L_mid")
    a.label("L_attn_go")
    iteration(False)
    a("s_cbranch_scc1 L_attn")
    if DIAG and env("AD", 0): a("s_memtime s[94:95]")
    iteration(False, True)
    K0 = O + 72
    xr = xreads(1, vT4, 6, S)
    xr[0](); xr[1]()
    pv(7, 1, 0); pv(7, 1, 1)
    st(9, False)
    for f in xr[2:]: f()
    a("s_waitcnt lgkmcnt(14)")
    for i in range(0, 12, 2): padd(K0 + i, O + 24 + i)
    a("s_mov_b32 s%d, 0", sTmo)
    if DIAG: a("s_waitcnt lgkmcnt(0)")
    xcheck("L_cmb2", 1, vT4, 6, S)
    a("s_waitcnt lgkmcnt(3)")
    for i in range(0, 12, 2): padd(K0 + i, S + i)
    for i in range(12, 24, 2): padd(K0 + i, O + 24 + i)
    a("s_waitcnt lgkmcnt(0)")
    for i in range(12, 24, 2): padd(K0 + i, S + i)
    Z = S + 32
    def get_l():
        for j in range(2):
            a("v_mov_b32 v%d, v%d", Z + 4 + 2 * j, K0 + 12 * j + 8)
            a("v_mov_b32 v%d, v%d", Z + 5 + 2 * j, K0 + 12 * j + 8)
    get_l()
    a("s_mov_b32 s%d, 1", sCh)
    a("v_mov_b32 v%d, 2", vT2)
    for j in range(2): a("v_permlane32_swap_b32 v%d, v%d", Z + 5 + 2 * j, Z + 4 + 2 * j)
    a.label("L_fin")
    for j in range(2): a("v_rcp_f32 v%d, v%d", Z + 2 * j, Z + 4 + 2 * j)
    a("s_nop 0")
    for j in range(2):
        k = K0 + 12 * j
        for i in range(0, 12, 2): a("v_pk_mul_f32 %s, %s, %s op_sel_hi:[1,0]", vr(k + i, 2), vr(k + i, 2), vr(Z + 2 * j, 2))
        for i in range(4): a("v_cvt_pk_bf16_f32 v%d, v%d, v%d", S + 4 * j + i, k + 2 * i, k + 2 * i + 1)
        a("buffer_store_dwordx4 %s, v%d, %s, s%d offen offset:%d sc1", vr(S + 4 * j, 4), vL16, srd, sO, j * 1024)
        for i in range(2): a("v_cvt_pk_bf16_f32 v%d, v%d, v%d", S + 8 + 2 * j + i, k + 8 + 2 * i, k + 9 + 2 * i)
    a("buffer_store_dwordx4 %s, v%d, %s, s%d offen sc1", vr(S + 8, 4), vOr, srd, sO)
    st(16, False)
    a("s_cmp_eq_u32 s%d, 0", sCh)
    a("s_cbranch_scc1 L_guard_ok")
    a("v_pk_mul_f32 %s, %s, 0", vr(Z, 2), vr(K0, 2))
    a("v_pk_mul_f32 %s, %s, 0", vr(Z + 2, 2), vr(K0 + 12, 2))
    for i in range(2, 12, 2):
        for j in range(2): a("v_pk_fma_f32 %s, %s, 0, %s", vr(Z + 2 * j, 2), vr(K0 + 12 * j + i, 2), vr(Z + 2 * j, 2))
    a("v_cmp_le_f32 s[%d:%d], s%d, v%d", sC, sC + 1, sT3, Z + 4)
    a("v_cmp_le_f32 s[%d:%d], s%d, v%d", sC2, sC2 + 1, sT3, Z + 6)
    a("v_pk_add_f32 %s, %s, %s", vr(Z, 2), vr(Z, 2), vr(Z + 2, 2))
    a("v_cmp_ge_f32 vcc, s%d, v%d", sT2, Z + 4)
    a("s_and_b64 s[%d:%d], s[%d:%d], s[%d:%d]", sC, sC + 1, sC, sC + 1, sC2, sC2 + 1)
    a("v_cmp_ge_f32 s[%d:%d], s%d, v%d", sC2, sC2 + 1, sT2, Z + 6)
    a("s_and_b64 s[%d:%d], s[%d:%d], vcc", sC, sC + 1, sC, sC + 1)
    a("v_cmp_o_f32 vcc, v%d, v%d", Z, Z + 1)
    a("s_and_b64 s[%d:%d], s[%d:%d], s[%d:%d]", sC, sC + 1, sC, sC + 1, sC2, sC2 + 1)
    a("s_and_b64 s[%d:%d], s[%d:%d], vcc", sC, sC + 1, sC, sC + 1)
    a("s_cmp_eq_u64 s[%d:%d], -1", sC, sC + 1)
    a("s_cbranch_scc0 L_slow")
    a.label("L_guard_ok")
    a("ds_write_b32 v%d, v%d offset:12", vFo, vT2)
    a("v_mov_b32 v%d, s%d", vNon, sNon)
    a("v_mov_b32 v%d, s%d", vNon + 1, sNon + 1)
    a("v_lshrrev_b32 v%d, 4, v%d", vT4, vLane)
    a("v_and_b32 v%d, 15, v%d", vT3, vLane)
    a("s_lshl_b32 s%d, s%d, 8", sT, sE)
    a("v_lshl_add_u32 v%d, v%d, 4, s%d", vT1, vT3, sT)
    a("v_lshrrev_b32 v%d, 5, v%d", vT2, vLane)
    a("v_mul_u32_u24 v%d, 2560, v%d", vT2, vT2)
    a("v_and_b32 v%d, 16, v%d", vOa, vLane)
    a("v_lshl_add_u32 v%d, v%d, 5, v%d", vOa, vOa, vT2)
    a("v_add_u32 v%d, v%d, v%d", vOa, vOa, vT1)
    a("v_mul_u32_u24 v%d, %d, v%d", vOb, 2 * OB, vT4)
    a("v_add_u32 v%d, v%d, v%d", vOb, vOb, vT1)
    a("v_add_u32 v%d, 2048, v%d", vOb, vOb)
    a("s_mul_i32 s%d, s%d, %d", sT, sQH, 8 * 5120)
    a("s_add_u32 s%d, s%d, %d", sT, sT, WOB)
    a("v_and_b32 v%d, 31, v%d", vT1, vLane)
    a("v_mul_u32_u24 v%d, 40, v%d", vT1, vT1)
    a("v_add3_u32 v%d, v%d, v%d, s%d", vWa2, vT1, vT2, sT)
    a("s_mul_i32 s%d, s%d, %d", sT, sQH, 7 * 5120)
    a("s_sub_u32 s%d, %d, s%d", sT, 16 * 5120, sT)
    a("v_add_u32 v%d, s%d, v%d", vWa3, sT, vWa2)
    COAL = env("COAL", 1)
    a("v_and_b32 v%d, 4, v%d", vT2, vT3)
    a("v_lshlrev_b32 v%d, %d, v%d", vT2, 1 if COAL else 2, vT2)
    a("v_and_b32 v%d, 8, v%d", vT1, vT3)
    a("v_lshrrev_b32 v%d, 1, v%d", vT1, vT1)
    a("v_and_b32 v%d, 3, v%d", vT3, vT3)
    a("v_or3_b32 v%d, v%d, v%d, v%d", vT2, vT2, vT3, vT1)
    a("v_mul_u32_u24 v%d, %d, v%d", vT2, 176 if COAL else 2560, vT2)
    a("v_mad_u32_u24 v%d, v%d, 40, v%d", vSt, vT4, vT2)
    if COAL:
        a("s_and_b32 s%d, s%d, 3", sT, sW)
        a("s_mul_i32 s%d, s%d, 12288", sT, sT)
        a("s_add_u32 s%d, s%d, %d", sCur, sT, CMB)
        a("v_add_u32 v%d, s%d, v%d", vSt, sCur, vSt)
    a("v_lshlrev_b32 v%d, 7, v%d", vT2, vLane)
    a("v_lshl_or_b32 v%d, v%d, 29, v%d", vFl, vT4, vT2)
    a("v_lshrrev_b32 v%d, 3, v%d", vT2, vLane)
    a("v_xor_b32 v%d, s%d, v%d", vT2, sHH, vT2)
    a("v_xor_b32 v%d, 1, v%d", vT2, vT2)
    a("v_lshl_or_b32 v%d, v%d, 28, v%d", vFl2, vT2, vFl)
    a("s_lshl_b32 s%d, s%d, 3", sT, sHH)
    a("s_lshl_b32 s%d, 0xff, s%d", sM2, sT)
    a("s_waitcnt vmcnt(0)")
    a("buffer_store_dwordx2 %s, off, %s, s%d sc0 sc1", vr(vNon, 2), srd, sF2)
    st(10)
    def wread_ops(s):
        fb, g, i = s % 2, s // 5, s % 5
        base, blk = ((vWb2 if g else vWa2), i) if i < 4 else ((vWb3 if g else vWa3), 0)
        return ["ds_read_b64_tr_b16 %s, v%d offset:%d" % (vr(WF + 20 * fb + 4 * j + 2 * q, 2), base, blk * 5120 + j * 8 + q * 1280) for j in range(5) for q in range(2)]
    def oloads(s):
        b_, i = (sO2 if s >= 5 else sOc), s % 5
        if i < 4:
            return ["s_add_u32 s%d, s%d, %d" % (sNxt, b_, i * 2 * OB)] + \
                   ["buffer_load_dwordx4 %s, v%d, %s, s%d offen offset:%d sc1" % (vr(OF + 8 * s + 4 * j, 4), vOa, srd, sNxt, 1024 * j) for j in range(2)]
        return ["buffer_load_dwordx4 %s, v%d, %s, s%d offen offset:%d sc1" % (vr(OF + 8 * s + 4 * e, 4), vOb, srd, b_, OB * e) for e in range(2)]
    def choose():
        a("s_lshr_b32 s%d, s%d, 15", sT, sM2)
        a("s_xor_b32 s%d, s%d, 1", sT2, sT)
        a("s_mul_i32 s%d, s%d, %d", sO2, sT, 8 * OB)
        a("s_add_u32 s%d, s%d, s%d", sO2, sO2, sOc)
        a("s_mul_i32 s%d, s%d, %d", sT3, sT2, 8 * OB)
        a("s_add_u32 s%d, s%d, s%d", sOc, sOc, sT3)
    def choose2():
        a("s_mul_i32 s%d, s%d, 10240", sT, sT)
        a("s_mul_i32 s%d, s%d, 10240", sT2, sT2)
        a("v_add_u32 v%d, s%d, v%d", vWb3, sT, vWa3)
        a("v_add_u32 v%d, s%d, v%d", vWa3, sT2, vWa3)
        a("v_lshl_add_u32 v%d, s%d, 1, v%d", vWb2, sT, vWa2)
        a("v_lshl_add_u32 v%d, s%d, 1, v%d", vWa2, sT2, vWa2)
    a("s_cmp_eq_u32 s%d, 0", sQH)
    a("s_cbranch_scc1 L_aload")
    a("buffer_load_dwordx2 v[16:17], v%d, %s, s%d offen sc0 sc1", vFl2, srd, sPend)
    all8("L_wdoneB", 2)
    a("s_mov_b32 s%d, 0", sTmo)
    a("s_waitcnt vmcnt(0)")
    st(11)
    a("v_cmp_eq_u64 vcc, s[%d:%d], v[16:17]", sNon, sNon + 1)
    a("buffer_load_dwordx2 v[4:5], v%d, %s, s%d offen sc0 sc1", vFl, srd, sPend)
    a("s_or_b32 s%d, vcc_lo, s%d", sT, sM2)
    a("s_andn2_b32 s%d, 0xffff, s%d", sT, sT)
    a("s_cbranch_scc0 L_first")
    a.label("L_poll2")
    a("s_add_u32 s%d, s%d, 1", sTmo, sTmo)
    a("s_waitcnt vmcnt(0)")
    a("v_cmp_eq_u64 vcc, s[%d:%d], v[4:5]", sNon, sNon + 1)
    a("s_cmp_gt_u32 s%d, 0x8000", sTmo)
    a("s_cbranch_scc1 L_first")
    a("s_or_b32 s%d, vcc_lo, s%d", sT, sM2)
    a("s_andn2_b32 s%d, 0xffff, s%d", sT, sT)
    a("s_cbranch_scc0 L_first")
    a("s_xor_b32 s%d, s%d, 0xffff", sM2, sM2)
    a("s_or_b32 s%d, vcc_lo, s%d", sT, sM2)
    a("s_andn2_b32 s%d, 0xffff, s%d", sT, sT)
    a("s_cbranch_scc0 L_first")
    a("s_sleep %d", env("SLP2", 2))
    a("buffer_load_dwordx2 v[4:5], v%d, %s, s%d offen sc0 sc1", vFl, srd, sPend)
    a("s_branch L_poll2")
    a.label("L_first")
    st(12)
    choose()
    for s in range(5):
        for x in oloads(s): a(x)
    choose2()
    for x in wread_ops(0): a(x)
    a("s_waitcnt vmcnt(10)")
    a("v_cmp_eq_u64 vcc, s[%d:%d], v[4:5]", sNon, sNon + 1)
    a("s_andn2_b32 s%d, s%d, vcc_lo", sP2, sM2)
    a("s_cbranch_scc1 L_aback")
    for s in range(5, 10):
        for x in oloads(s): a(x)
    a.label("L_aback")
    st(13)
    for s in range(10):
        o = OF + 8 * s
        acc = ACC2 if s < 5 else ACC3
        rd = wread_ops(s + 1) if s < 9 else []
        if s <= 5:
            a("s_cmp_eq_u32 s%d, 0", sP2)
            if s < 5:
                a("s_cbranch_scc1 L_both%d", s)
                a("s_waitcnt vmcnt(%d)", 2 * (4 - s))
            else:
                a("s_cbranch_scc0 L_second")
            a.label("L_both%d" % s)
        a("s_waitcnt vmcnt(%d) lgkmcnt(0)", 2 * (9 - s))
        if s % 5 == 4:
            a("v_swap_b32 v%d, v%d", o + 2, o + 4)
            a("v_swap_b32 v%d, v%d", o + 3, o + 5)
            a("s_nop 1")
        if s == 7 and COAL:
            R = OF
            rd += ["v_lshrrev_b32 v%d, 3, v%d" % (R + 4, vLane), "v_and_b32 v%d, 7, v%d" % (R + 5, vLane),
                   "v_mul_u32_u24 v%d, 176, v%d" % (R, R + 4), "v_mul_u32_u24 v%d, 2560, v%d" % (R + 1, R + 4),
                   "v_lshl_add_u32 v%d, v%d, 4, v%d" % (R, R + 5, R), "v_lshl_add_u32 v%d, v%d, 4, v%d" % (R + 1, R + 5, R + 1),
                   "v_add_u32 v%d, s%d, v%d" % (R, sCur, R),
                   "v_lshrrev_b32 v%d, 1, v%d" % (R + 4, vLane), "v_and_b32 v%d, 1, v%d" % (R + 5, vLane),
                   "v_mul_u32_u24 v%d, 176, v%d" % (R + 2, R + 4)]
        if s == 8 and COAL:
            rd += ["v_and_b32 v%d, 24, v%d" % (R + 6, R + 4), "v_add_u32 v%d, v%d, v%d" % (R + 4, R + 4, R + 6),
                   "v_mul_u32_u24 v%d, 2560, v%d" % (R + 3, R + 4),
                   "v_lshl_add_u32 v%d, v%d, 4, v%d" % (R + 2, R + 5, R + 2), "v_lshl_add_u32 v%d, v%d, 4, v%d" % (R + 3, R + 5, R + 3),
                   "v_add_u32 v%d, s%d, v%d" % (R + 2, sCur, R + 2)]
        if s == 9:
            xr = xreads(2, vAr, 10, PART)
        for tt in (0, 1):
            for j in range(5):
                d = acc + 4 * (5 * tt + j)
                a("v_mfma_f32_16x16x32_bf16 %s, %s, %s, %s", vr(d, 4), vr(WF + 20 * (s % 2) + 4 * j, 4), vr(o + 4 * tt, 4), vr(d, 4) if s % 5 else "0")
                for _ in range(2):
                    if rd: a(rd.pop(0))
                    elif s == 9 and xr: xr.pop(0)()
    st(14, False)
    a("s_mov_b32 s%d, 0", sTmo)
    a("s_add_u32 s%d, s%d, %d", sT2, sPub, 32 * 2560)
    a("v_mov_b32 v%d, 1", vT2)
    a("s_cmp_eq_u32 s%d, 0", sQH)
    a("s_cbranch_scc0 L_x1")
    for q in range(10):
        for h in range(4): a("v_add_f32 v%d, v%d, v%d", ACC2 + 4 * q + h, ACC2 + 4 * q + h, ACC3 + 4 * q + h)
        a("ds_write_b128 v%d, %s offset:%d", vAr, vr(ACC2 + 4 * q, 4), q * 1024)
    a("ds_write_b32 v%d, v%d offset:%d", vFo, vT2, 128 + 8)
    a("s_waitcnt lgkmcnt(0)")
    a("s_branch L_xdone") if DIAG else a("s_endpgm")
    a.label("L_x1")
    if DIAG: a("s_waitcnt lgkmcnt(0)")
    xcheck("L_xch", 2, vAr, 10, PART)
    if COAL:
        for i in range(0, 40, 2): padd(ACC2 + i, ACC3 + i)
        a("s_waitcnt lgkmcnt(0)")
    for tt in range(2):
        for q in range(5):
            r = ACC2 + 20 * tt + 4 * q
            o = WF + 12 * tt
            if not COAL:
                for h in range(2): padd(r + 2 * h, ACC3 + 20 * tt + 4 * q + 2 * h)
                a("s_waitcnt lgkmcnt(%d)", 9 - 5 * tt - q)
            for h in range(2): padd(r + 2 * h, PART + 20 * tt + 4 * q + 2 * h)
            for h in range(2): a("v_cvt_pk_bf16_f32 v%d, v%d, v%d", o + 2 * q + h, r + 2 * h, r + 2 * h + 1)
            if COAL:
                a("ds_write_b64 v%d, %s offset:%d", vSt, vr(o + 2 * q, 2), tt * 16 * 176 + 8 * q)
            else:
                if q in (1, 3): a("buffer_store_dwordx4 %s, v%d, %s, s%d offen offset:%d", vr(o + 2 * q - 2, 4), vSt, sr(OUT, 4), sT2 if tt else sPub, 8 * (q - 1))
                if q == 4: a("buffer_store_dwordx2 %s, v%d, %s, s%d offen offset:32", vr(o + 8, 2), vSt, sr(OUT, 4), sT2 if tt else sPub)
        if COAL:
            for i in (2 * tt, 2 * tt + 1): a("ds_read_b128 %s, v%d offset:%d", vr(OF + 8 + 4 * i, 4), R, i * 8 * 176)
    if COAL:
        a("ds_read_b128 %s, v%d offset:128", vr(OF + 24, 4), R + 2)
        for i in range(4):
            a("s_add_u32 s%d, s%d, %d", sT2, sPub, i * 16 * 2560)
            a("s_waitcnt lgkmcnt(%d)", (9, 8, 2, 1)[i])
            a("buffer_store_dwordx4 %s, v%d, %s, s%d offen %s", vr(OF + 8 + 4 * i, 4), R + 1, sr(OUT, 4), sT2, os.environ.get("OSC", ""))
        a("s_waitcnt lgkmcnt(0)")
        a("buffer_store_dwordx4 %s, v%d, %s, s%d offen offset:128 %s", vr(OF + 24, 4), R + 3, sr(OUT, 4), sPub, os.environ.get("OSC", ""))
    a.label("L_xdone")
    st(15)
    a.label("L_exit")
    st.flush(sW)
    a.label("L_end")
    a("s_endpgm")
    a.label("L_mid")
    a("s_add_u32 s%d, s%d, 1", sTrig, sTrig)
    a("s_cmp_eq_u32 s%d, 3", sCh)
    a("s_cbranch_scc0 L_mid2")
    a("s_lshl_b32 s%d, s%d, 1", sT3, sTB)
    a("s_add_u32 s%d, s%d, s%d", sT3, sT3, sHH)
    a("s_lshl_b32 s%d, s%d, 1", sT3, sT3)
    a("s_add_u32 s%d, s%d, s%d", sT3, sT3, sKH)
    a("s_lshl_b32 s%d, s%d, 5", sT2, sB)
    a("s_add_u32 s%d, s%d, s%d", sT2, sT2, sT3)
    a("s_lshl_b32 s%d, s%d, 1", sT2, sT2)
    a("s_add_u32 s%d, s%d, s%d", sT2, sT2, sQH)
    a("s_mul_i32 s%d, s%d, %d", sOc, sT2, 16 * OB)
    a("s_add_u32 s%d, s%d, %d", sOc, sOc, O_OFF)
    a("s_lshl_b32 s%d, s%d, 11", sT2, sT2)
    a("s_add_u32 s%d, s%d, %d", sPend, sT2, F2_OFF)
    a("s_lshl_b32 s%d, s%d, 3", sT3, sT3)
    a("s_add_u32 s%d, s%d, s%d", sT3, sT3, sE)
    a("s_mul_i32 s%d, s%d, %d", sPub, sT3, 8 * 2560)
    a("s_mul_i32 s%d, s%d, 1280", sT2, sB)
    a("s_add_u32 s%d, s%d, s%d", sPub, sPub, sT2)
    a("s_and_b32 s%d, s%d, 7", sT2, sHP)
    a("s_mul_i32 s%d, s%d, 160", sT2, sT2)
    a("s_add_u32 s%d, s%d, s%d", sPub, sPub, sT2)
    a("s_cmp_eq_u32 s%d, 0", sMsk)
    a("s_cbranch_scc1 L_poll3_ok")
    poll("L_poll3", sF1, "0xffff", 0x4000, 2)
    a.label("L_mid2")
    a("s_cmp_eq_u32 s%d, 0", sQH)
    a("s_cselect_b32 s%d, 0, s%d", sTrig, sTrig)
    a("s_cbranch_scc1 L_attn_go")
    a("s_cmp_eq_u32 s%d, %d", sCh, max(BLEAD + 1, 3))
    a("s_cbranch_scc0 L_mid3")
    a("s_setprio 1")
    a.label("L_mid3")
    a("s_cmp_ge_u32 s%d, %d", sCh, max(BLEAD + 1, 4))
    a("s_cselect_b32 s%d, 0, s%d", sTrig, sTrig)
    a("s_cmp_eq_u32 s%d, 4", sCh)
    a("s_cbranch_scc0 L_attn_go")
    a("s_cmp_lt_u32 s%d, 5", sW)
    a("s_cbranch_scc1 L_attn_go")
    a("v_mov_b32 v%d, 2.0", vG)
    a("v_mov_b32 v%d, 2.0", vGb)
    a("s_mov_b32 s%d, %d", sLo, CMB + 8 * 7168)
    a("s_mov_b32 s%d, 0", sLs)
    a("s_mov_b32 s%d, 0", sGs)
    a("s_mov_b32 s%d, 0", sGx)
    a("s_mov_b32 s%d, 0", sGo)
    a("s_branch L_attn_go")
    a.label("L_second")
    poll("L_poll5", sPend, "s%d" % sM2, 0x8000, env("SLP2", 2))
    for s_ in range(5, 10):
        for x in oloads(s_): a(x)
    a("s_branch L_both5")
    a.label("L_aload")
    a("s_waitcnt vmcnt(0)")
    poll("L_poll4", sPend, "0xffff", 0x8000, env("SLP2", 2))
    choose(); choose2()
    a("s_mov_b32 s%d, 0", sP2)
    for s_ in range(10):
        for x in oloads(s_): a(x)
        a("s_waitcnt vmcnt(%d)", env("AW", 4))
    a("s_setprio 0")
    all8("L_wdone", 2)
    for x in wread_ops(0): a(x)
    a("s_branch L_aback")
    for v in range(2):
        a.label("L_nonce%d" % v)
        a("s_mov_b32 s%d, 0", sT)
        a.label("L_nonce_retry%d" % v)
        a("v_mov_b32 v%d, 0", vT1)
        a("global_load_dwordx2 %s, v%d, s[%d:%d] sc0 sc1", vr(vNon, 2), vT1, sDbg, sDbg + 1)
        a("s_add_u32 s%d, s%d, 1", sT, sT)
        a("s_waitcnt vmcnt(0)")
        a("v_readfirstlane_b32 s%d, v%d", sNon + 1, vNon + 1)
        a("v_readfirstlane_b32 s%d, v%d", sNon, vNon)
        a("s_cmp_gt_u32 s%d, 0x4000", sT)
        a("s_cbranch_scc1 L_nonce_ok%d", v)
        a("s_cmp_eq_u32 s%d, 0", sNon + 1)
        a("s_cbranch_scc1 L_nonce_retry%d", v)
        a("s_branch L_nonce_ok%d", v)
    for f in stubs: f()
    a.label("L_slow")
    C = S
    MX = O
    a("s_waitcnt vmcnt(0)")
    a("s_and_b32 s%d, s%d, 3", sT, sW)
    a("s_mul_i32 s%d, s%d, %d", sT, sT, BLK)
    a("s_sub_u32 s%d, s%d, s%d", sKV, sKV, sT)
    a("s_mov_b32 s%d, s%d", sCur, sKV)
    a("s_add_u32 s%d, s%d, %d", sCh, sKV, KV_PAIR)
    a("v_mov_b32 v%d, 0xff800000", MX)
    a("v_mov_b32 v%d, 0xff800000", MX + 1)
    a.label("L_slow1")
    for b in range(2): kvop("k", b, sCur); kvop("r", b, sCur)
    a("s_waitcnt vmcnt(0)")
    for b in range(2):
        qk1(6, b); qk2(6, b); qk1(7, b); qk2(7, b)
        a("s_nop 15")
        for j in range(2):
            for i in range(8): a("v_max3_f32 v%d, v%d, v%d, v%d", MX + j, MX + j, S + 32 + 16 * j + 2 * i, S + 32 + 16 * j + 2 * i + 1)
    a("s_add_u32 s%d, s%d, %d", sCur, sCur, BLK)
    a("s_cmp_lt_u32 s%d, s%d", sCur, sCh)
    a("s_cbranch_scc1 L_slow1")
    for j in range(2):
        a("v_mov_b32 v%d, v%d", vT1, MX + j)
        a("s_nop 1")
        a("v_permlane32_swap_b32 v%d, v%d", vT1, MX + j)
        a("s_nop 1")
        a("v_max_f32 v%d, v%d, v%d", vT1, vT1, MX + j)
        for i in range(16): a("v_sub_f32 v%d, 0, v%d", C + 16 * j + i, vT1)
    for i in range(24): a("v_mov_b32 v%d, 0", K0 + i)
    a("s_mov_b32 s%d, s%d", sCur, sKV)
    a.label("L_slow2")
    for b in range(2):
        kvop("k", b, sCur); kvop("r", b, sCur); kvop("v", b, sCur, 0); kvop("v", b, sCur, 1)
    a("s_waitcnt vmcnt(0)")
    for b in range(2):
        for j in range(2):
            qk1(6 + j, b, vr(C + 16 * j, 16))
            qk2(6 + j, b)
        a("s_nop 15")
        for i in range(32): ex(S + 32 + i)
        a("s_nop 1")
        pv(6, b, 0); pv(6, b, 1)
        a("s_nop 10")
        pv(7, b, 0); pv(7, b, 1)
    a("s_add_u32 s%d, s%d, %d", sCur, sCur, BLK)
    a("s_cmp_lt_u32 s%d, s%d", sCur, sCh)
    a("s_cbranch_scc1 L_slow2")
    a("s_nop 15")
    get_l()
    a("s_nop 1")
    for j in range(2): a("v_permlane32_swap_b32 v%d, v%d", Z + 5 + 2 * j, Z + 4 + 2 * j)
    a("s_mov_b32 s%d, 0", sCh)
    a("s_branch L_fin")
    a.label("L_code_end")
    return name, NFV, 163840

def gen_spin(a):
    name = "spin_kernel"
    kernel_head(a, name)
    wa, ia, wb, ib, mult, off = [int(x) for x in SPIN.split(",")]
    a("s_cmp_ge_u32 s2, 1")
    a("s_cbranch_scc1 L_spin_end")
    a("s_load_dwordx2 s[4:5], s[0:1], 64")
    a("s_waitcnt lgkmcnt(0)")
    a("s_add_u32 s4, s4, %d", DIAG_OFF)
    a("s_addc_u32 s5, s5, 0")
    if wa >= 0:
        a("v_mov_b32 v1, %d", 4 * ia + 128 * (16 * 8 + wa))
        a("v_mov_b32 v2, %d", 4 * ib + 128 * (16 * 8 + wb))
        a("global_load_dword v3, v1, s[4:5]")
        a("global_load_dword v4, v2, s[4:5]")
        a("s_waitcnt vmcnt(0)")
        a("v_sub_u32 v3, v4, v3")
        a("s_nop 1")
        a("v_readfirstlane_b32 s8, v3")
    else:
        a("v_lshlrev_b32 v1, 11, v0")
        a("v_mov_b32 v2, 0")
        a("global_load_dword v7, v2, s[4:5]")
        for k in range(4):
            a("global_load_dword v%d, v1, s[4:5] offset:%d", 8 + k, 4 * ia + (0 if wa == -1 else 128 * wb))
            a("global_load_dword v%d, v1, s[4:5] offset:%d", 12 + k, 4 * ib + 128 * wb)
            a("v_add_u32 v1, %d, v1", 64 * 2048)
        a("s_waitcnt vmcnt(0)")
        for k in range(8): a("v_sub_u32 v%d, v%d, v7", 8 + k, 8 + k)
        op = "min" if wa == -1 else "max"
        for k in range(1, 4):
            a("v_%s_i32 v8, v8, v%d", op, 8 + k)
            a("v_max_i32 v12, v12, v%d", 12 + k)
        a("s_nop 1")
        a("v_readlane_b32 s20, v8, 0")
        a("v_readlane_b32 s21, v12, 0")
        for l in range(1, 64):
            a("v_readlane_b32 s22, v8, %d", l)
            a("v_readlane_b32 s23, v12, %d", l)
            a("s_%s_i32 s20, s20, s22", op)
            a("s_max_i32 s21, s21, s23")
        a("s_sub_u32 s8, s21, s20")
    a("s_memrealtime s[10:11]")
    a("s_nop 3")
    a("s_max_u32 s8, s8, %d", off)
    a("s_sub_u32 s8, s8, %d", off)
    a("s_min_u32 s8, s8, 20000")
    a("s_mul_i32 s8, s8, %d", mult)
    a("s_waitcnt lgkmcnt(0)")
    a.label("L_spin")
    a("s_memrealtime s[12:13]")
    a("s_waitcnt lgkmcnt(0)")
    a("s_sub_u32 s14, s12, s10")
    a("s_cmp_lt_u32 s14, s8")
    a("s_cbranch_scc1 L_spin")
    a.label("L_spin_end")
    a("s_endpgm")
    return name, 16, 0

def gen_pre(a):
    name = "pre_kernel"
    kernel_head(a, name)
    PRE = env("PREK", 0)
    if PRE == 2:
        a("s_cmp_ge_u32 s2, 256")
        a("s_cbranch_scc1 L_pre_end")
        a("s_bfe_u32 s22, s2, 0x10002")
        a("s_mul_i32 s30, s22, 24")
        a("s_load_dwordx4 s[4:7], s[0:1], s30")
        a("s_lshr_b32 s30, s2, 3")
        a("s_mul_i32 s30, s30, 320")
        a("v_add_u32 v1, s30, v0")
        a("s_bfe_u32 s23, s2, 0x10001")
        a("s_mul_i32 s23, s23, %d", 1024 * 1280)
        a("v_lshl_add_u32 v2, v1, 7, s23")
        a("v_lshrrev_b32 v3, 4, v1")
        a("v_and_b32 v4, 15, v1")
        a("v_min_u32 v4, 14, v4")
        a("v_mul_u32_u24 v5, 13, v4")
        a("v_lshrrev_b32 v5, 6, v5")
        a("v_mul_u32_u24 v5, 640, v5")
        a("v_lshl_add_u32 v4, v4, 7, v5")
        a("v_mul_u32_u24 v3, 3840, v3")
        a("s_and_b32 s24, s2, 1")
        a("s_mul_i32 s24, s24, 640")
        a("v_add3_u32 v3, v3, v4, s24")
        a("s_waitcnt lgkmcnt(0)")
        a("global_load_dword v6, v2, s[4:5]")
        a("global_load_dword v7, v3, s[6:7]")
        a.label("L_pre_end")
    a("s_endpgm")
    return name, 8, 0

def main(out):
    a = A()
    ks = []
    for g, blk in (((gen_pre, 320),) if env("PREK", 0) else ()) + ((gen_fused, 512),) + (((gen_spin, 64),) if SPIN else ()):
        n, nfv, lds = g(a)
        ks.append((n, nfv, lds, blk))
    hdr = """; Two independent MHA blocks (S=2048, D=640, H=32, Dh=20), concatenated on the last axis; one fused kernel.
"""
    if len(ks) == 1 and not env("LIST", 0):
        hdr += "; @launch grid=(256,1,1) block=(%d,1,1) lds=%d\n" % (ks[0][3], ks[0][2])
    else:
        for n, nfv, lds, blk in ks:
            hdr += "; @launch kernel=%s grid=(256,1,1) block=(%d,1,1) lds=%d\n" % (n, blk, lds)
    s = hdr + '.amdgcn_target "amdgcn-amd-amdhsa--gfx950"\n.text\n' + a.text()
    s += '.section .rodata,"a"\n'
    for n, nfv, lds, blk in ks: s += kd(n, nfv)
    open(out, "w").write(s)

if __name__ == "__main__":
    main(sys.argv[1] if len(sys.argv) > 1 else "cdna_kernels/%s.s" % NAME)
```

```python
import math, struct, sys, os

NAME = "concat_heads__mha_block__softmax_full_mha__prompt"
BLK = 12288
KV_PAIR = 32 * BLK
KV_OFF = 0
OB = 2560
O_OFF = KV_OFF + 32 * KV_PAIR
O_BYTES = 32 * 32 * OB
F1_OFF = O_OFF + 2 * O_BYTES
F2_OFF = F1_OFF + 128 * 1024
WS_USED = F2_OFF + 2048 * 128
CSCALE = math.log2(math.e) / math.sqrt(20.0)
OOB = 0x40000000
DIAG = int(os.environ.get("DIAG", "0"))
DIAG_OFF = 64 << 20
def env(n, d): return int(os.environ.get(n, str(d)))
NT = env("NT", 0)
SKEW = env("SKEW", 2)
HELP = env("HELP", 1)
SPIN = os.environ.get("SPIN", "")

def f32bits(x): return struct.unpack("<I", struct.pack("<f", x))[0]

class A:
    def __init__(self): self.l = []
    def __call__(self, s, *a): self.l.append("    " + (s % a if a else s))
    def label(self, s): self.l.append(s + ":")
    def raw(self, s): self.l.append(s)
    def c(self, s): self.l.append("    ; " + s)
    def text(self): return "\n".join(self.l) + "\n"

def vr(b, n): return "v[%d:%d]" % (b, b + n - 1) if n > 1 else "v%d" % b
def sr(b, n): return "s[%d:%d]" % (b, b + n - 1) if n > 1 else "s%d" % b

def kernel_head(a, name):
    a.raw(".globl %s" % name); a.raw(".p2align 8"); a.raw(".type %s,@function" % name); a.label(name)

def kd(name, nfv, nsg=102):
    acc = (nfv + 3) // 4 * 4
    return """.p2align 6
.amdhsa_kernel %s
  .amdhsa_next_free_vgpr %d
  .amdhsa_next_free_sgpr %d
  .amdhsa_accum_offset %d
  .amdhsa_group_segment_fixed_size 0
  .amdhsa_kernarg_size 72
  .amdhsa_user_sgpr_count 2
  .amdhsa_user_sgpr_kernarg_segment_ptr 1
  .amdhsa_system_sgpr_workgroup_id_x 1
.end_amdhsa_kernel
""" % (name, nfv, nsg, acc)

class Stamps:
    def __init__(self, a):
        self.a = a
        if DIAG:
            for i in range(62, 100): a("s_mov_b32 s%d, 0", i)
            a("s_memrealtime s[60:61]")
    def g(self, i):
        if DIAG and env("GD", 0): self.a("s_mem%stime s[%d:%d]", "real" if DIAG == 1 else "", 64 + 2 * i, 65 + 2 * i)
    def __call__(self, i, wait=True):
        if not DIAG: return
        if env("GD", 0) and 3 <= i <= 16: return
        if env("AD", 0) and i in (1, 2, 3, 5, 10, 11, 12, 13, 14, 15): return
        if DIAG == 1: self.a("s_memrealtime s[%d:%d]", 64 + 2 * i, 65 + 2 * i)
        else: self.a("s_memtime s[%d:%d]", 64 + 2 * i, 65 + 2 * i)
        if wait: self.a("s_waitcnt lgkmcnt(0)")
    def flush(self, swave):
        if not DIAG: return
        a = self.a
        a("s_mov_b64 exec, -1")
        a("s_waitcnt vmcnt(0)")
        self(17)
        a("s_memrealtime s[62:63]")
        a("s_load_dwordx2 s[56:57], s[0:1], 64")
        a("s_lshl_b32 s58, s2, 4")
        a("s_add_u32 s58, s58, s%d", swave)
        a("s_lshl_b32 s58, s58, 7")
        a("s_add_u32 s58, s58, %d", DIAG_OFF)
        a("v_mov_b32 v1, s58")
        a("s_waitcnt lgkmcnt(0)")
        for i in range(20):
            a("v_mov_b32 v2, s%d", 60 + 2 * i)
            a("global_store_dword v1, v2, s[56:57] offset:%d", 4 * i)
        a("s_waitcnt vmcnt(0)")

def gen_fused(a):
    name = NAME + "_kernel"
    kernel_head(a, name)
    WS, XS, WSRD = 8, 12, 16
    sNon = 20
    sB, sTB, sHP, sHH, sW, sE, sKH, sQH = 22, 23, 24, 25, 26, 27, 28, 29
    sT, sT2, sT3 = 30, 31, 32
    sXoff, sWoff, sM0x, sM0w, sIt, sDX, sDW, sSlot, sSx, sSw = 33, 34, 35, 36, 37, 38, 39, 40, 41, 42
    sNxt, sNxt1, sCh, sR, sTmo, sCur = 33, 34, 35, 36, 38, 39
    sDbg = 44
    sC, sC2 = 46, 48
    sKV, sPub, sF1, sO, sF2, sMsk = 50, 51, 52, 53, 54, 55
    sOc, sPend, sTrig = 40, 41, 43
    sLd, sGx = 3, 34
    sGo, sLo, sGs, sLs, sGd = 36, 37, 42, 44, 45
    WO, OUT = WSRD, XS
    ACC2, WF, OF = 16, 56, 96
    PART = 176
    vOa, vOb, vWa2, vWa3, vSt, vWb2, vWb3, vFl2 = 8, 9, 10, 11, 0, 2, 13, 14
    ACC3 = 216
    sO2, sP2, sM2 = 36, 37, 42
    srd = sr(WS, 4)
    vLane, vM, vH, vT1, vT2, vT3, vT4 = 1, 2, 3, 4, 5, 6, 7
    vK, vKr, vV, vIdx, vFl, vL16, vOr, vS1 = 8, 9, 10, 11, 12, 13, 14, 15
    vG, vGb, vFo, vAr = 0, 2, 3, 15
    vNon, vTch = 252, 255
    vXg, vWg, vXa, vWa = 80, 84, 86, 88
    vG0, vG1, vL0, vL1, vSc, vOne = 243, 244, 245, 246, 248, 249
    vRk, vRr, vRv = 247, 250, 251
    F, ACC = 16, 92
    Qm, Qr, Km, Kr, V, S, O = 16, 48, 64, 72, 76, 92, 156
    NFV = 256
    WBASE = 98304
    LFLAG, WOB = 0, 1024
    CMB = WOB + 102400
    IMG = 1024

    a("s_cmp_ge_u32 s2, 256")
    a("s_cbranch_scc1 L_end")
    st = Stamps(a)
    a("s_bfe_u32 s%d, s2, 0x10002", sB)
    a("s_mul_i32 s%d, s%d, 24", sT, sB)
    a("s_load_dwordx4 s[4:7], s[0:1], s%d", sT)
    a("v_lshrrev_b32 v%d, 6, v0", vT1)
    a("v_and_b32 v%d, 63, v0", vLane)
    a("v_readfirstlane_b32 s%d, v%d", sW, vT1)
    a("s_bfe_u32 s%d, s2, 0x10001", sTB)
    a("s_lshl_b32 s%d, s%d, 2", sTB, sTB)
    a("s_bfe_u32 s%d, s2, 0x20003", sT)
    a("s_or_b32 s%d, s%d, s%d", sTB, sTB, sT)
    a("s_and_b32 s%d, s2, 1", sHH)
    a("s_lshl_b32 s%d, s%d, 3", sHP, sHH)
    a("s_lshr_b32 s%d, s2, 5", sT)
    a("s_or_b32 s%d, s%d, s%d", sHP, sHP, sT)
    a("s_lshr_b32 s%d, s2, 7", sT)
    a("s_xor_b32 s%d, s%d, s%d", sHP, sHP, sT)
    a("s_and_b32 s%d, s%d, 1", sE, sW)
    a("v_lshrrev_b32 v%d, 3, v0", vT1)
    a("s_mul_i32 s%d, s%d, 24", sT, sW)
    a("v_add_u32 v%d, s%d, v%d", vT1, sT, vT1)
    a("v_mul_u32_u24 v%d, 1280, v%d", vT1, vT1)
    a("v_lshrrev_b32 v%d, 4, v%d", vT4, vLane)
    a("v_and_b32 v%d, 7, v%d", vT3, vLane)
    a("v_xor_b32 v%d, v%d, v%d", vT2, vT4, vT3)
    a("v_xor_b32 v%d, 4, v%d", vT3, vT2)
    a("v_lshl_add_u32 v%d, v%d, 4, v%d", vXg + 0, vT2, vT1)
    a("v_lshl_add_u32 v%d, v%d, 4, v%d", vXg + 1, vT3, vT1)
    a("v_add_u32 v%d, %d, v%d", vXg + 1, 8 * 1280 - 1024, vXg + 1)
    a("v_add_u32 v%d, %d, v%d", vXg + 2, 16 * 1280 - 2048, vXg + 0)
    a("v_add_u32 v%d, %d, v%d", vXg + 3, 16 * 1280 - 2048, vXg + 1)
    wmark = len(a.l)
    a("s_load_dwordx2 s[%d:%d], s[0:1], 64", WS, WS + 1)
    a("s_load_dwordx2 s[%d:%d], s[0:1], 56", sDbg, sDbg + 1)
    a("s_mul_i32 s%d, s%d, 24", sT, sB)
    a("s_add_u32 s%d, s%d, 16", sT, sT)
    a("s_load_dwordx2 s[56:57], s[0:1], s%d", sT)
    a("s_load_dwordx2 s[58:59], s[0:1], 48")
    a("s_memrealtime s[%d:%d]", sNon, sNon + 1)
    if env("CODEPF", 2) & 2:
        a.label("L_pfbase0")
        a("s_getpc_b64 s[%d:%d]", sC2, sC2 + 1)
        a("s_and_b32 s%d, s2, -8", sT)
        a("s_add_u32 s%d, s%d, s%d", sT, sT, sW)
        a("s_lshl_b32 s%d, s%d, 7", sT, sT)
        a("s_min_u32 s%d, s%d, %s", sT, sT, "L_code_end-L_pfbase0-8")
        a("v_mov_b32 v254, s%d", sT)
        a("global_load_dword v254, v254, s[%d:%d]", sC2, sC2 + 1)
    TAB = [0, 3, 1, 4, 5, 8, 6, 9, 2, 7, 10, 11, 13, 14, 12, 15]
    tab = sum(v << (4 * i) for i, v in enumerate(TAB))
    a("s_lshl_b32 s%d, s%d, 3", sT, sE)
    a("v_lshl_add_u32 v%d, v%d, 1, s%d", vT2, vT4, sT)
    a("v_and_b32 v%d, 15, v%d", vM, vLane)
    a("v_xor_b32 v%d, v%d, v%d", vT2, vT2, vM)
    a("v_lshlrev_b32 v%d, 2, v%d", vT2, vT2)
    a("s_mov_b32 s%d, 0x%x", sC, tab & 0xffffffff)
    a("s_mov_b32 s%d, 0x%x", sC + 1, tab >> 32)
    a("v_lshrrev_b64 v[16:17], v%d, s[%d:%d]", vT2, sC, sC + 1)
    a("v_and_b32 v%d, 15, v16", vT2)
    a("s_lshl_b32 s%d, s%d, 3", sT, sW)
    a("v_add_u32 v%d, s%d, v%d", vT1, sT, vT4)
    a("v_mul_u32_u24 v%d, 3840, v%d", vT1, vT1)
    a("v_mul_u32_u24 v%d, 13, v%d", vT3, vT2)
    a("v_lshrrev_b32 v%d, 6, v%d", vT3, vT3)
    a("v_mul_u32_u24 v%d, %d, v%d", vT3, 1280 - 80, vT3)
    a("v_cmp_eq_u32 vcc, 15, v%d", vT2)
    a("v_lshl_add_u32 v%d, v%d, 4, v%d", vT2, vT2, vT3)
    a("v_mov_b32 v%d, 0x%x", vS1, OOB)
    if HELP:
        a("s_and_b32 s%d, s%d, 7", sT, sHP)
        a("s_mov_b32 s%d, 0x%x", sT2, OOB)
        for hp, sec in ((0, 0), (2, 1), (5, 2)):
            a("s_cmp_eq_u32 s%d, %d", sT, hp)
            a("s_cselect_b32 s%d, %d, s%d", sT2, sec * 1280 + 256 - 80 * hp + (HELP - 1) * 64 * 3840, sT2)
        a("s_bfe_u32 s%d, s%d, 0x10001", sT, sTB)
        a("v_lshrrev_b32 v%d, 1, v%d", vT3, vT4)
        a("v_cmp_eq_u32 s[%d:%d], s%d, v%d", sC, sC + 1, sT, vT3)
        a("v_mov_b32 v%d, s%d", vT3, sT2)
        a("s_nop 0")
        a("v_cndmask_b32 v%d, v%d, v%d, s[%d:%d]", vT3, vS1, vT3, sC, sC + 1)
        a("v_cndmask_b32 v%d, v%d, v%d, vcc", vT2, vT2, vT3)
    else:
        a("v_cndmask_b32 v%d, v%d, v%d, vcc", vT2, vT2, vS1)
    a("v_add_u32 v%d, v%d, v%d", vWg + 0, vT1, vT2)
    a("v_add_u32 v%d, %d, v%d", vWg + 1, 4 * 3840 - 1024, vWg + 0)
    a("s_lshl_b32 s%d, s%d, 11", sM0w, sW)
    a("s_add_u32 s%d, s%d, %d", sM0w, sM0w, WBASE)
    a("s_mov_b32 s%d, 0x20000", WSRD + 3)
    a("s_mul_i32 s%d, s%d, 80", sT2, sHP)
    a("s_sub_u32 s%d, %d, s%d", WSRD + 2, 640 * 3840, sT2)
    a("s_add_u32 s%d, s6, s%d", WSRD, sT2)
    a("s_addc_u32 s%d, s7, 0", WSRD + 1)
    wblk = []
    if True:
        wblk = a.l[wmark:]; del a.l[wmark:]
    a("s_lshr_b32 s%d, s%d, 1", sT, sW)
    a("s_mul_i32 s%d, s%d, 24576", sM0x, sT)
    a("s_lshl_b32 s%d, s%d, 12", sT, sE)
    a("s_add_u32 s%d, s%d, s%d", sM0x, sM0x, sT)
    a("s_mov_b32 s%d, %d", XS + 2, 256 * 1280)
    a("s_mov_b32 s%d, 0x20000", XS + 3)
    if SKEW:
        a("s_xor_b32 s%d, s%d, s%d", sT, sTB, sHP)
        a("s_and_b32 s%d, s%d, 1", sT, sT)
        a("s_mul_i32 s%d, s%d, 5", sT, sT)
        if SKEW > 1:
            a("s_lshr_b32 s%d, s2, 1", sT2)
            a("s_xor_b32 s%d, s%d, s2", sT2, sT2)
            a("s_and_b32 s%d, s%d, 1", sT2, sT2)
            a("s_mul_i32 s%d, s%d, %d", sT2, sT2, SKEW)
            a("s_add_u32 s%d, s%d, s%d", sT, sT, sT2)
        XS1 = env("XS1", 0)
        if XS1:
            a("s_lshr_b32 s%d, s2, 2", sT2)
            a("s_xor_b32 s%d, s%d, s2", sT2, sT2)
            a("s_bfe_u32 s%d, s%d, 0x10004", sT2, sT2)
            if XS1 == 2:
                a("s_bfe_u32 s%d, s2, 0x10005", sC)
                a("s_andn2_b32 s%d, s%d, s%d", sT2, sT2, sC)
            a("s_add_u32 s%d, s%d, s%d", sT, sT, sT2)
        FOL = env("FOL", 1)
        if FOL:
            a("s_bfe_u32 s%d, s2, 0x10005", sT2)
            a("s_mul_i32 s%d, s%d, %d", sT2, sT2, 10 - FOL)
            a("s_add_u32 s%d, s%d, s%d", sT, sT, sT2)
            a("s_cmp_ge_u32 s%d, 10", sT)
            a("s_cselect_b32 s%d, 10, 0", sT2)
            a("s_sub_u32 s%d, s%d, s%d", sT, sT, sT2)
        a("s_lshl_b32 s%d, s%d, 7", sXoff, sT)
        a("s_mul_i32 s%d, s%d, %d", sWoff, sT, 64 * 3840)
    else:
        a("s_mov_b32 s%d, 0", sXoff)
        a("s_mov_b32 s%d, 0", sWoff)
    a("s_mul_i32 s%d, s%d, %d", sT, sTB, 256 * 1280)
    a("s_waitcnt lgkmcnt(0)")
    a("s_add_u32 s%d, s4, s%d", XS, sT)
    a("s_addc_u32 s%d, s5, 0", XS + 1)

    ntx = " nt" if NT & 1 else ""
    ntw = " nt" if NT & 2 else ""
    def dma_ops(slot_x, slot_w):
        ops = []
        def x(i):
            if i == 0:
                a("s_add_u32 m0, s%d, %s", sM0x, slot_x); a("s_nop 0")
            a("buffer_load_dwordx4 v%d, %s, s%d offen offset:%d%s lds", vXg + i, sr(XS, 4), sXoff, 1024 * i, ntx)
        def w(i):
            if i == 0:
                a("s_add_u32 m0, s%d, %s", sM0w, slot_w)
                a("s_add_u32 s%d, s%d, %d", sXoff, sXoff, 0 if env("NOADV", 0) & 1 else 128)
            a("buffer_load_dwordx4 v%d, %s, s%d offen offset:%d%s lds", vWg + i, sr(WSRD, 4), sWoff, 1024 * i, ntw)
            if i == 1:
                a("s_add_u32 s%d, s%d, %d", sWoff, sWoff, 0 if env("NOADV", 0) & 2 else 64 * 3840)
                if SKEW:
                    a("s_cmp_eq_u32 s%d, 1280", sXoff)
                    a("s_cselect_b32 s%d, 0, s%d", sXoff, sXoff)
                    a("s_cselect_b32 s%d, 0, s%d", sWoff, sWoff)
        for i in range(4): ops.append(lambda i=i: x(i))
        for i in range(2): ops.append(lambda i=i: w(i))
        return ops
    for i, op in enumerate(dma_ops("0", "0")):
        if i == 4: a.l += wblk
        op()
    a("s_bfe_u32 s%d, s%d, 0x10001", sKH, sW)
    a("s_lshr_b32 s%d, s%d, 2", sQH, sW)
    a("s_mov_b32 s%d, %d", WS + 2, WS_USED)
    a("s_mov_b32 s%d, 0x20000", WS + 3)
    a("s_and_b32 s%d, s%d, 3", sT3, sW)
    a("v_lshrrev_b32 v%d, 1, v%d", vT1, vM)
    a("v_xor_b32 v%d, v%d, v%d", vT1, vT1, vT4)
    a("s_mul_i32 s%d, s%d, 24576", sT, sT3)
    a("v_lshl_add_u32 v%d, v%d, 7, s%d", vT2, vM, sT)
    a("v_lshl_add_u32 v%d, v%d, 4, v%d", vXa, vT1, vT2)
    a("v_xor_b32 v%d, 64, v%d", vXa + 1, vXa)
    a("v_bfe_u32 v%d, v%d, 2, 2", vT1, vLane)
    a("v_lshl_add_u32 v%d, v%d, 3, v%d", vT2, vT4, vT1)
    a("v_lshlrev_b32 v%d, 8, v%d", vT2, vT2)
    a("v_and_b32 v%d, 3, v%d", vT3, vLane)
    a("v_lshl_add_u32 v%d, v%d, 3, v%d", vT2, vT3, vT2)
    a("v_add_u32 v%d, %d, v%d", vT2, WBASE, vT2)
    a("v_bfe_u32 v%d, v%d, 2, 3", vT1, vLane)
    a("s_lshl_b32 s%d, s%d, 2", sT, sQH)
    a("v_xor_b32 v%d, s%d, v%d", vT1, sT, vT1)
    a("v_lshl_add_u32 v%d, v%d, 5, v%d", vWa, vT1, vT2)
    for xt in range(1, 4): a("v_xor_b32 v%d, %d, v%d", vWa + xt, 32 * xt, vWa)
    mark = len(a.l)
    a("v_lshlrev_b32 v%d, 4, v%d", vL16, vLane)
    a("s_lshl_b32 s%d, s%d, 14", sT, sT3)
    a("s_add_u32 s%d, s%d, %d", sT, sT, IMG)
    a("v_add_u32 v%d, s%d, v%d", vL0, sT, vL16)
    a("v_cmp_lt_u32 vcc, 1, v%d", vT4)
    a("v_lshlrev_b32 v%d, 3, v%d", vT1, vLane)
    a("v_add_u32 v%d, 4096, v%d", vT1, vT1)
    a("v_mov_b32 v%d, 0x%x", vT2, f32bits(CSCALE))
    a("v_cndmask_b32 v%d, v%d, v%d, vcc", vG0, vS1, vT1)
    a("v_cndmask_b32 v%d, v%d, 1.0, vcc", vSc, vT2)
    a("v_and_b32 v%d, 4, v%d", vT1, vM)
    a("v_and_b32 v%d, 8, v%d", vT2, vM)
    a("v_lshlrev_b32 v%d, 5, v%d", vT1, vT1)
    a("v_lshl_add_u32 v%d, v%d, 3, v%d", vT1, vT2, vT1)
    a("v_and_b32 v%d, 0x330, v%d", vT2, vL16)
    a("v_add_u32 v%d, v%d, v%d", vT1, vT1, vT2)
    a("v_add_u32 v%d, 6144, v%d", vG1, vT1)
    a("v_add_u32 v%d, s%d, v%d", vL1, sT, vG1)
    if not env("PEEL", 1):
        for i in range(64): a("v_mov_b32 v%d, 0", ACC + i)
    a("v_and_b32 v%d, 11, v%d", vT1, vM)
    a("v_cmp_eq_u32 vcc, 8, v%d", vT1)
    a("v_mov_b32 v%d, 0x3f803f80", vT1)
    a("v_and_b32 v%d, 31, v0", vM)
    a("v_cndmask_b32 v%d, 0, v%d, vcc", vOne, vT1)
    a("v_bfe_u32 v%d, v0, 5, 1", vH)
    for i in range(O, 243): a("v_mov_b32 v%d, 0", i)
    a("v_mov_b32 v%d, 0xdddddddd", vIdx)
    a("v_and_b32 v%d, 4, v%d", vT1, vM)
    a("v_lshlrev_b32 v%d, 8, v%d", vT1, vT1)
    a("v_and_b32 v%d, 24, v%d", vT2, vM)
    a("v_lshl_add_u32 v%d, v%d, 3, v%d", vT1, vT2, vT1)
    a("v_and_b32 v%d, 3, v%d", vT2, vM)
    a("v_lshl_add_u32 v%d, v%d, 4, v%d", vT1, vT2, vT1)
    a("s_lshl_b32 s%d, s%d, 9", sT, sQH)
    a("v_lshl_add_u32 v%d, v%d, 8, s%d", vT2, vH, sT)
    a("v_add_u32 v%d, v%d, v%d", vK, vT1, vT2)
    a("s_lshl_b32 s%d, s%d, 14", sC, sT3)
    a("v_add_u32 v%d, s%d, v%d", vRk, sC, vK)
    a("s_lshl_b32 s%d, s%d, 8", sT, sQH)
    a("s_add_u32 s%d, s%d, s%d", sT, sT, sC)
    a("v_add_u32 v%d, s%d, v%d", vRr, sT, vT1)
    a("s_lshl_b32 s%d, s%d, 7", sT, sQH)
    a("s_add_u32 s%d, s%d, %d", sT, sT, 4096 + 256)
    a("v_lshrrev_b32 v%d, 1, v%d", vT1, vT1)
    a("v_cmp_eq_u32 vcc, 0, v%d", vH)
    a("v_add_u32 v%d, s%d, v%d", vT1, sT, vT1)
    a("v_add_u32 v%d, 2048, v%d", vT3, vL16)
    a("v_cndmask_b32 v%d, v%d, v%d, vcc", vKr, vS1, vT1)
    a("v_cndmask_b32 v%d, v%d, v%d, vcc", vOr, vS1, vT3)
    a("v_lshlrev_b32 v%d, 3, v%d", vT2, vLane)
    a("v_lshl_or_b32 v%d, v%d, 29, v%d", vFl, vT4, vT2)
    a("v_min_u32 v%d, 21, v%d", vT1, vM)
    a("v_lshlrev_b32 v%d, 4, v%d", vT1, vT1)
    a("v_lshl_add_u32 v%d, v%d, 8, v%d", vT1, vH, vT1)
    a("s_lshl_b32 s%d, s%d, 10", sT, sQH)
    a("s_add_u32 s%d, s%d, 6144", sT, sT)
    a("s_lshl_b32 s%d, s%d, 7", sT2, sQH)
    a("s_add_u32 s%d, s%d, %d", sT2, sT2, 6144 + 2048 - 256)
    a("v_cmp_gt_u32 vcc, 16, v%d", vM)
    a("v_add_u32 v%d, s%d, v%d", vT2, sT, vT1)
    a("v_add_u32 v%d, s%d, v%d", vT3, sT2, vT1)
    a("v_cndmask_b32 v%d, v%d, v%d, vcc", vT1, vT3, vT2)
    a("v_cmp_gt_u32 vcc, 21, v%d", vM)
    a("v_add_u32 v%d, s%d, v%d", vRv, sC, vT1)
    a("s_lshl_b32 s%d, s%d, 2", sT, sTB)
    a("v_cndmask_b32 v%d, v%d, v%d, vcc", vV, vS1, vT1)
    a("s_add_u32 s%d, s%d, s%d", sT, sT, sT3)
    a("s_lshl_b32 s%d, s%d, 5", sC, sB)
    a("s_add_u32 s%d, s%d, s%d", sT2, sT, sC)
    a("s_lshl_b32 s%d, s%d, 1", sT2, sT2)
    a("s_add_u32 s%d, s%d, s%d", sT2, sT2, sQH)
    a("s_lshl_b32 s%d, s%d, 4", sO, sT2)
    a("s_add_u32 s%d, s%d, s%d", sO, sO, sHP)
    a("s_lshl_b32 s%d, s%d, 8", sT2, sT2)
    a("s_lshl_b32 s%d, s%d, 3", sF2, sHP)
    a("s_add_u32 s%d, s%d, s%d", sT2, sT2, sF2)
    a("s_add_u32 s%d, s%d, %d", sF2, sT2, F2_OFF)
    a("s_mul_i32 s%d, s%d, %d", sO, sO, OB)
    a("s_add_u32 s%d, s%d, %d", sO, sO, O_OFF)
    a("s_lshl_b32 s%d, s%d, 4", sC, sB)
    a("s_add_u32 s%d, s%d, s%d", sC, sC, sHP)
    a("s_mul_i32 s%d, s%d, %d", sKV, sC, KV_PAIR)
    a("s_mul_i32 s%d, s%d, %d", sPub, sT, BLK)
    a("s_add_u32 s%d, s%d, s%d", sPub, sPub, sKV)
    a("s_mul_i32 s%d, s%d, %d", sT2, sT3, BLK)
    a("s_add_u32 s%d, s%d, s%d", sKV, sKV, sT2)
    a("s_lshl_b32 s%d, s%d, 2", sC, sC)
    a("s_add_u32 s%d, s%d, s%d", sC, sC, sT3)
    a("s_lshl_b32 s%d, s%d, 8", sC, sC)
    a("s_add_u32 s%d, s%d, %d", sF1, sC, F1_OFF)
    a("s_and_b32 s%d, s%d, 4", sT, sTB)
    a("s_lshl_b32 s%d, s%d, 1", sT, sT)
    a("s_lshl_b32 s%d, 0xff, s%d", sMsk, sT)
    a("s_mul_i32 s%d, s%d, 12288", sT, sT3)
    a("s_add_u32 s%d, s%d, %d", sT, sT, CMB)
    a("v_add_u32 v%d, s%d, v%d", vAr, sT, vL16)
    a("s_lshl_b32 s%d, s%d, 5", sT, sW)
    a("v_mov_b32 v%d, s%d", vFo, sT)
    a("s_cmp_ge_u32 s%d, 5", sW)
    a("s_cselect_b64 vcc, -1, 0")
    a("s_cselect_b32 s%d, 1, 0", sT2)
    a("s_lshl_b32 s%d, s%d, s%d", sT, sW, sT2)
    a("s_mul_i32 s%d, s%d, 10", sC, sT2)
    a("s_sub_u32 s%d, s%d, s%d", sT, sT, sC)
    a("s_add_u32 s%d, s%d, s%d", sT2, sT2, sT)
    a("s_min_u32 s%d, s%d, 4", sT2, sT2)
    for dst, sp in ((vG, sT), (vGb, sT2)):
        a("s_lshl_b32 s%d, s%d, 6", sC, sp)
        a("v_add_u32 v%d, s%d, v%d", vT1, sC, vLane)
        a("v_mul_u32_u24 v%d, 6554, v%d", vT2, vT1)
        a("v_lshrrev_b32 v%d, 16, v%d", vT2, vT2)
        a("v_mul_u32_u24 v%d, 10, v%d", vT3, vT2)
        a("v_sub_u32 v%d, v%d, v%d", dst, vT1, vT3)
        a("v_and_b32 v%d, 4, v%d", vT1, vT2)
        a("v_lshlrev_b32 v%d, 1, v%d", vT1, vT1)
        a("v_and_b32 v%d, 8, v%d", vT3, vT2)
        a("v_lshrrev_b32 v%d, 1, v%d", vT3, vT3)
        a("v_and_b32 v%d, 0x13, v%d", vT2, vT2)
        a("v_or3_b32 v%d, v%d, v%d, v%d", vT1, vT1, vT2, vT3)
        a("v_lshrrev_b32 v%d, 4, v%d", vT2, vT1)
        a("v_mul_u32_u24 v%d, 24, v%d", vT2, vT2)
        a("v_and_b32 v%d, 28, v%d", vT3, vT1)
        a("v_mad_u32_u24 v%d, v%d, 9, 16", vT3, vT3)
        a("v_cndmask_b32 v%d, v%d, v%d, vcc", vT2, vT2, vT3)
        a("v_add_u32 v%d, v%d, v%d", vT1, vT1, vT2)
        a("v_mul_u32_u24 v%d, 1280, v%d", vT1, vT1)
        a("v_lshl_add_u32 v%d, v%d, 4, v%d", dst, dst, vT1)

    SPLIT = env("SPLIT", 10000) if env("PEEL", 1) else 10000
    part2 = a.l[mark + SPLIT:]
    del a.l[mark + SPLIT:]
    a("s_waitcnt lgkmcnt(0)")
    a("s_barrier")
    a("s_or_b32 s%d, s2, s%d", sDX, sW)
    a("s_cbranch_scc1 L_nononce")
    a("s_or_b32 s%d, s%d, 0x80000000", sNon + 1, sNon + 1)
    a("v_mov_b32 v%d, s%d", vNon, sNon)
    a("v_mov_b32 v%d, s%d", vNon + 1, sNon + 1)
    a("v_mov_b32 v%d, 0", 255)
    a("global_store_dwordx2 v%d, %s, s[%d:%d] sc0 sc1", 255, vr(vNon, 2), sDbg, sDbg + 1)
    a.label("L_nononce")
    d1 = dma_ops("8192", "16384")
    for _ in range(env("D1PRE", 4)): d1.pop(0)()
    PEEL = env("PEEL", 1)
    D1PRE = env("D1PRE", 4)
    if not PEEL:
        for op in d1: op()
    CODEPF = env("CODEPF", 2) & 1
    if CODEPF:
        a.label("L_pfbase")
        a("s_getpc_b64 s[%d:%d]", sC2, sC2 + 1)
        a("v_min_u32 v%d, 21, v%d", 255, vLane)
        a("v_lshlrev_b32 v%d, 7, v%d", 255, 255)
        a("s_mul_i32 s%d, s%d, 2816", sDX, sW)
        a("v_add_u32 v%d, s%d, v%d", 255, sDX, 255)
        a("v_min_u32 v%d, %s, v%d", 255, "L_code_end-L_pfbase-8", 255)
        a("global_load_dword v255, v%d, s[%d:%d]", 255, sC2, sC2 + 1)
    def read_ops(fb, ks):
        f = F + 32 * fb
        ops = []
        for t in range(4):
            ops.append(lambda t=t: a("ds_read_b128 %s, v%d offset:%d", vr(f + 4 * t, 4), vXa + ks, t * 2048))
            for q in range(2):
                ops.append(lambda t=t, q=q: a("ds_read_b64_tr_b16 %s, v%d offset:%d", vr(f + 16 + 4 * t + 2 * q, 2), vWa + t, ks * 8192 + q * 1024))
        return ops
    def reads(fb, ks):
        for op in read_ops(fb, ks): op()
    extra = []
    RPM = env("RPM", 1)
    def mfs(fb, isB, rd, dm, misc, zero=False):
        f = F + 32 * fb
        ABL = env("ABL", 0)
        if ABL & 1: f = F; rd = []
        if ABL & 2: dm = []
        if ABL & 4: rd = rd[:9]
        n = 0
        for (xt, t) in sorted([(x, y) for x in range(4) for y in range(4)], key=lambda p: (max(p), p)):
            d = ACC + 16 * xt + 4 * t
            x, w = vr(f + 4 * t, 4), vr(f + 16 + 4 * xt, 4)
            c = "0" if zero else vr(d, 4)
            if ABL & 16 and not zero: pass
            elif isB and xt > 0: a("v_mfma_f32_16x16x32_bf16 %s, %s, %s, %s", vr(d, 4), x, w, c)
            else:              a("v_mfma_f32_16x16x32_bf16 %s, %s, %s, %s", vr(d, 4), w, x, c)
            n += 1
            DP = env("DP", 3)
            if DP and dm and n % DP == env("DO", 1) and not zero: dm.pop(0)()
            if rd:
                for _ in range(RPM):
                    if rd: rd.pop(0)()
            elif dm and n % 3 == 1: dm.pop(0)()
            elif misc:
                for _ in range(3):
                    if misc: misc.pop(0)()
        for op in rd + dm + misc: op()
    SH = env("SH", 5)
    def stage(kind, isB, ops):
        XE = env("XE", 3)
        if SH: ops = dma_ops("s%d" % sSx, "s%d" % sSw)[(0 if extra else XE):SH] if kind <= 0 else []
        if SH and extra: ops = [extra.pop(0) for _ in range(len(extra))] + ops
        if kind == 1:
            a("v_mov_b32 v%d, 0", vT1)
            a("global_load_dwordx2 %s, v%d, s[%d:%d] sc0 sc1", vr(vNon, 2), vT1, sDbg, sDbg + 1)
        misc = []
        if kind < 2:
            misc = [lambda: (a("s_cmp_eq_u32 s%d, 2", sSlot), a("s_cselect_b32 s%d, -2, 1", sDX)),
                    lambda: a("s_lshl_b32 s%d, s%d, 14", sDW, sDX),
                    lambda: a("s_lshl_b32 s%d, s%d, 13", sT, sDX)]
            misc += [lambda ks=ks: a("v_add_u32 v%d, s%d, v%d", vXa + ks, sT, vXa + ks) for ks in range(2)]
            misc += [lambda ft=ft: a("v_add_u32 v%d, s%d, v%d", vWa + ft, sDW, vWa + ft) for ft in range(4)]
        if kind == 2:
            misc = [lambda: a("v_readfirstlane_b32 s%d, v%d", sNon + 1, vNon + 1),
                    lambda: a("v_readfirstlane_b32 s%d, v%d", sNon, vNon),
                    lambda: a("s_add_u32 s%d, s%d, 3072", sT2, sPub),
                    lambda: a("s_mov_b32 s%d, 0x%x", sC, 0xff00ff00 if isB else f32bits(CSCALE)),
                    lambda: a("s_mov_b32 s%d, s%d", sC + 1, sC),
                    lambda: (a("s_cmp_eq_u32 s%d, 0", sNon + 1), a("s_cbranch_scc1 L_nonce%d", isB), a.label("L_nonce_ok%d" % isB))]
        a("s_waitcnt lgkmcnt(0)")
        mfs(0, isB, read_ops(1, 1), ops, misc)
        nops, rd, misc = [], [], []
        if kind < 2:
            if kind == 0 and not SH:
                a("s_lshl_b32 s%d, s%d, 13", sSx, sSlot)
                a("s_lshl_b32 s%d, s%d, 14", sSw, sSlot)
            a("s_waitcnt vmcnt(%d) lgkmcnt(0)", 0 if kind == 1 else (SH if SH else 6))
            a("s_barrier")
            rd = read_ops(0, 0)
            misc = [lambda: a("s_add_u32 s%d, s%d, s%d", sSlot, sSlot, sDX)]
            if SH and kind <= 0:
                nops = dma_ops("s%d" % sSx, "s%d" % sSw)[SH:]
                nops.append(lambda: (a("s_lshl_b32 s%d, s%d, 13", sSx, sSlot), a("s_lshl_b32 s%d, s%d, 14", sSw, sSlot), a("s_add_u32 s%d, s%d, s%d", sSlot, sSlot, sDX)))
                if kind == 0 and XE:
                    bk = nops.pop(); nx = dma_ops("s%d" % sSx, "s%d" % sSw)[:XE]
                    nops += [lambda: (bk(), nx[0]())] + nx[1:]
                misc = [lambda: a("s_add_u32 s%d, s%d, 1", sIt, sIt)]
            elif kind == 0:
                nops = dma_ops("s%d" % sSx, "s%d" % sSw)[:3]
                misc += [lambda: a("s_add_u32 s%d, s%d, 1", sIt, sIt)]
            if kind == 1:
                I = lambda f, *x: (lambda: a(f, *x))
                misc += [I("s_and_b32 s%d, s2, -8", sT2), I("s_add_u32 s%d, s%d, s%d", sT2, sT2, sW), I("s_mul_i32 s%d, s%d, %d", sT2, sT2, 25 * 128),
                         I("v_min_u32 v255, 24, v%d", vLane), I("v_lshl_add_u32 v255, v255, 7, s%d", sT2),
                         I("s_lshl_b32 s%d, s%d, 1", sT2, sTB), I("s_add_u32 s%d, s%d, s%d", sT2, sT2, sQH), I("s_lshl_b32 s%d, s%d, 3", sT2, sT2),
                         I("s_add_u32 s%d, s%d, s%d", sTrig, sT2, sF1),
                         I("s_and_b32 s%d, s%d, 7", sT3, sHP), I("s_mul_i32 s%d, s%d, 160", sT3, sT3), I("s_sub_u32 s%d, %d, s%d", WO + 2, 640 * 1280, sT3),
                         lambda: (a("s_add_u32 s%d, s56, s%d", WO, sT3), a("s_addc_u32 s%d, s57, 0", WO + 1)),
                         I("s_mov_b32 s%d, %d", OUT + 2, 2048 * 2560), I("s_mov_b64 s[%d:%d], s[58:59]", OUT, OUT + 1)]
        else:
            a("s_waitcnt lgkmcnt(0)")
            a("s_barrier")
            return
        mfs(1, isB, rd, nops, misc)
    if env("IDLE0", 0): a("s_sleep %d", env("IDLE0", 0))
    st(0)
    a("s_waitcnt vmcnt(%d)", (D1PRE if PEEL else 6) + (1 if CODEPF else 0))
    st(1)
    a("s_barrier")
    reads(0, 0)
    if not PEEL:
        a("s_mov_b32 s%d, %d", sSx, 2 * 8192)
        a("s_mov_b32 s%d, %d", sSw, 2 * 16384)
        d2 = dma_ops("s%d" % sSx, "s%d" % sSw)
        for i in range(3): d2.pop(0)()
    if PEEL:
        a("s_cmp_eq_u32 s%d, 0", sQH)
        a("s_cbranch_scc0 L_st0B")
        for isB in (False, True):
            if isB: a.label("L_st0B")
            a("s_waitcnt lgkmcnt(0)")
            D2A, D2B = env("D2A", 0), env("D2B", 0)
            dd = dma_ops("16384", "32768")
            mfs(0, isB, read_ops(1, 1), dma_ops("8192", "16384")[D1PRE:] + dd[:D2A], [], True)
            a("s_waitcnt lgkmcnt(0)")
            misc = [lambda ks=ks: a("v_add_u32 v%d, 8192, v%d", vXa + ks, vXa + ks) for ks in range(2)]
            misc += [lambda ft=ft: a("v_add_u32 v%d, 16384, v%d", vWa + ft, vWa + ft) for ft in range(4)]
            mfs(1, isB, [], dd[D2A:D2A + D2B], misc)
            if not isB: a("s_branch L_st0done")
        a.label("L_st0done")
        d2 = dma_ops("16384", "32768")[D2A + D2B:]
        a.l += part2
        ND2 = env("ND2", 4) if SH else 6
        for op in d2[:ND2 - D2A - D2B]: op()
        a("s_mov_b32 s%d, 1", sSlot)
        a("s_mov_b32 s%d, 1", sIt)
        a("s_mov_b32 s%d, 0", sSx)
        a("s_mov_b32 s%d, 0", sSw)
        st.g(3)
        a("s_waitcnt vmcnt(%d)", ND2)
        a("s_barrier")
        st.g(4)
        reads(0, 0)
    a("s_cmp_eq_u32 s%d, 0", sQH)
    a("s_cbranch_scc0 L_gemmB0")
    CV = F
    for isB in (False, True):
        L = "L_gemmB" if isB else "L_gemmA"
        a.label(L + "0")
        if SH: extra += dma_ops("16384", "32768")[ND2:]
        if PEEL: stage(0, isB, dma_ops("0", "0"))
        a.label(L)
        if DIAG and env("GD", 0):
            for k in range(5):
                st.g(5 + k)
                stage(0, isB, dma_ops("s%d" % sSx, "s%d" % sSw)[3:])
        else:
            stage(0, isB, dma_ops("s%d" % sSx, "s%d" % sSw)[3:])
            a("s_cmp_lt_u32 s%d, 7", sIt)
            a("s_cbranch_scc1 %s", L)
        st.g(10)
        stage(-1, isB, dma_ops("s%d" % sSx, "s%d" % sSw)[3:])
        st.g(11)
        stage(1, isB, [])
        st.g(12)
        stage(2, isB, [])
        st(2, False)
        def cvt(dst, src):
            return ["v_cvt_pk_bf16_f32 v%d, v%d, v%d" % (dst, src, src + 1), "v_cvt_pk_bf16_f32 v%d, v%d, v%d" % (dst + 1, src + 2, src + 3)]
        units, late, pre = [], [], []
        if not isB:
            for t in range(4):
                o = CV + 4 * t
                units.append(([(2, t), (3, t)], cvt(o, ACC + 32 + 4 * t) + cvt(o + 2, ACC + 48 + 4 * t) +
                              ["ds_write_b128 v%d, %s offset:%d" % (vL0, vr(o, 4), t * 1024)]))
                stx = "buffer_store_dwordx4 %s, v%d, %s, s%d offen offset:%d sc1" % (vr(o, 4), vL16, srd, sPub, t * 1024)
                if env("AEARLY", 1): units[-1][1].append(stx)
                else: pre.append(stx)
            for t in range(4):
                o = CV + 16 + 4 * t
                ins = ["v_pk_mul_f32 %s, %s, s[%d:%d]" % (vr(ACC + 16 * xt + 4 * t + 2 * h, 2), vr(ACC + 16 * xt + 4 * t + 2 * h, 2), sC, sC + 1) for xt in range(2) for h in range(2)]
                if env("NOPK", 0) & 1: ins = ["v_mul_f32 v%d, s%d, v%d" % (ACC + 16 * xt + 4 * t + h, sC, ACC + 16 * xt + 4 * t + h) for xt in range(2) for h in range(4)]
                units.append(([(0, t), (1, t)], ins + cvt(o, ACC + 4 * t) + cvt(o + 2, ACC + 16 + 4 * t) +
                              ["ds_write_b128 v%d, %s offset:%d" % (vL0, vr(o, 4), 12288 + t * 1024)]))
        else:
            n = 0
            NPRE = env("NPRE", 2)
            for xt in (1, 2, 3):
                for kt in range(2):
                    o = CV + 4 * n; n += 1
                    ins = cvt(o, ACC + 16 * xt + 8 * kt) + cvt(o + 2, ACC + 16 * xt + 8 * kt + 4)
                    if xt == 3: ins += ["v_cndmask_b32 v%d, v%d, v%d, s[%d:%d]" % (o + i, o + i, vOne, sC, sC + 1) for i in range(4)]
                    ins.append("ds_write_b128 v%d, %s offset:%d" % (vL1, vr(o, 4), kt * 3072 + (xt - 1) * 1024))
                    stx = "buffer_store_dwordx4 %s, v%d, %s, s%d offen offset:%d sc1" % (vr(o, 4), vG1, srd, sT2 if kt else sPub, (xt - 1) * 1024)
                    if n <= env("NIN", 0): ins.append(stx)
                    elif n <= NPRE: pre.append(stx)
                    else: late.append(stx)
                    units.append(([(xt, 2 * kt), (xt, 2 * kt + 1)], ins))
            for q in range(2):
                o = CV + 4 * n; n += 1
                ins = ["v_pk_mul_f32 %s, %s, %s op_sel_hi:[1,0]" % (vr(ACC + 4 * t + 2 * h, 2), vr(ACC + 4 * t + 2 * h, 2), vr(vSc, 2)) for t in (q, q + 2) for h in range(2)]
                if env("NOPK", 0) & 1: ins = ["v_mul_f32 v%d, v%d, v%d" % (ACC + 4 * t + h, vSc, ACC + 4 * t + h) for t in (q, q + 2) for h in range(4)]
                ins += cvt(o, ACC + 4 * q) + cvt(o + 2, ACC + 4 * (q + 2)) + ["ds_write_b128 v%d, %s offset:%d" % (vL0, vr(o, 4), 4096 + q * 1024)]
                for kt in range(2): late.append("buffer_store_dwordx2 %s, v%d, %s, s%d offen offset:%d sc1" % (vr(o + 2 * kt, 2), vG0, srd, sPub, (2 * kt + q) * 512))
                units.append(([(0, q), (0, q + 2)], ins))
        f = F + 32
        cnt, done_at, nxt = 0, [], 0
        def emit(x):
            nonlocal cnt
            a(x); cnt += 1
        LAG = env("LAG", 3)
        for u in range(len(units) + LAG):
            if u < len(units):
                for (xt, t) in units[u][0]:
                    d = ACC + 16 * xt + 4 * t
                    x, w = vr(f + 4 * t, 4), vr(f + 16 + 4 * xt, 4)
                    emit("v_mfma_f32_16x16x32_bf16 %s, %s, %s, %s" % ((vr(d, 4), x, w, vr(d, 4)) if isB and xt > 0 else (vr(d, 4), w, x, vr(d, 4))))
                done_at.append(cnt)
                if u == 0: emit("ds_write_b128 v%d, %s offset:%d" % (vFo, vr(O, 4), LFLAG))
            if u >= LAG:
                gap = cnt - done_at[u - LAG]
                if gap < 8:
                    a("s_nop %d", 7 - gap); cnt += 8 - gap
                for x in units[u - LAG][1]: emit(x)
        for x in pre: a(x)
        a("s_setprio %d", 3 if isB else 2)
        for i in range(16): a("v_mov_b32 v%d, 0", Qr + i)
        a("s_waitcnt lgkmcnt(0)")
        st(3)
        a("s_barrier")
        for x in late: a(x)
        if not isB: a("s_branch L_epi_done")
    a.label("L_epi_done")
    if env("IDLE", 0): a("s_sleep %d", env("IDLE", 0))
    def rdK(b): a("ds_read_b128 %s, v%d offset:%d", vr(Km + 4 * b, 4), vRk, IMG + b * 2048)
    def rdV(b):
        for g in range(2): a("ds_read_b128 %s, v%d offset:%d", vr(V + 8 * b + 4 * g, 4), vRv, IMG + b * 3072 + g * 512)
    def rdQ(p):
        r = vRk
        if p != 3:
            r = vT1; a("v_xor_b32 v%d, %d, v%d", r, (p ^ 3) << 14, vRk)
        for j in range(2): a("ds_read_b128 %s, v%d offset:%d", vr(Qm + 8 * p + 4 * j, 4), r, IMG + 12288 + j * 2048)
    rdK(0)
    a("ds_read_b128 %s, v%d offset:%d", vr(Kr, 4), vRr, IMG + 4096 + 512)
    rdQ(0)
    for p in range(3): a("v_xor_b32 v%d, %d, v%d", vT2 + p, (p ^ 3) << 14, vRr)
    a("s_mov_b32 exec_hi, 0")
    for p in range(4): a("ds_read_b128 %s, v%d offset:%d", vr(Qr + 4 * p, 4), vT2 + p if p < 3 else vRr, IMG + 4096)
    a("s_mov_b32 exec_hi, -1")
    rdQ(1); rdV(0)

    def kvop(what, b, sreg, extra=0):
        if env("NOKV", 0) == 1: return
        if what == "k":   a("buffer_load_dwordx4 %s, v%d, %s, s%d offen offset:%d sc1", vr(Km + 4 * b, 4), vK, srd, sreg, 2048 * b)
        elif what == "r": a("buffer_load_dwordx2 %s, v%d, %s, s%d offen offset:%d sc1", vr(Kr + 2 * b, 2), vKr, srd, sreg, 1024 * b)
        else:             a("buffer_load_dwordx4 %s, v%d, %s, s%d offen offset:%d sc1", vr(V + 8 * b + 4 * extra, 4), vV, srd, sreg, 3072 * b + 512 * extra)
    def qk1(j, kb, c="0"): a("v_mfma_f32_32x32x8_bf16 %s, %s, %s, %s", vr(S + 16 * (j % 4), 16), vr(Kr + 2 * kb, 2), vr(Qr + 2 * j, 2), c)
    def qk2(j, kb): a("v_mfma_f32_32x32x16_bf16 %s, %s, %s, %s", vr(S + 16 * (j % 4), 16), vr(Km + 4 * kb, 4), vr(Qm + 4 * j, 4), vr(S + 16 * (j % 4), 16))
    def pv(j, vb, half): a("v_smfmac_f32_32x32x32_bf16 %s, %s, %s, v%d", vr(O + 12 * j, 16), vr(V + 8 * vb + 4 * half, 4), vr(S + 16 * (j % 4) + 8 * half, 8), vIdx)
    def ex(r): a("v_exp_f32 v%d, v%d", r, r)
    def flagop(sreg):
        if env("FSW", 1):
            a("s_mov_b64 exec, 1")
            a("buffer_atomic_swap_x2 %s, off, %s, s%d sc1", vr(vNon, 2), srd, sreg)
            a("s_mov_b64 exec, -1")
        else: a("buffer_store_dwordx2 %s, off, %s, s%d sc0 sc1", vr(vNon, 2), srd, sreg)
    def signal1():
        a("s_waitcnt vmcnt(0)")
        flagop(sTrig)
        a("global_load_dword v255, v255, s[56:57]")
    def pollop(sline):
        a("v_mov_b32 v4, 0")
        a("v_mov_b32 v5, 0")
        a("buffer_atomic_or_x2 v[4:5], v%d, %s, s%d offen sc0 sc1", vFl, srd, sline)
    def poll(lbl, sline, mask, tmo, slp):
        a("s_mov_b32 s%d, 0", sTmo)
        a.label(lbl)
        pollop(sline)
        a("s_add_u32 s%d, s%d, 1", sTmo, sTmo)
        a("s_waitcnt vmcnt(0)")
        a("v_cmp_eq_u64 vcc, s[%d:%d], v[4:5]", sNon, sNon + 1)
        a("s_cmp_gt_u32 s%d, 0x%x", sTmo, tmo)
        a("s_cbranch_scc1 %s_ok", lbl)
        a("s_andn2_b32 s%d, %s, vcc_lo", sT, mask)
        a("s_cbranch_scc0 %s_ok", lbl)
        a("s_sleep %d", slp)
        a("s_branch %s", lbl)
        a.label(lbl + "_ok")

    a("s_waitcnt lgkmcnt(7)")
    qk1(0, 0); qk2(0, 0); qk1(1, 0); qk2(1, 0)
    rdQ(2); rdQ(3); rdK(1); rdV(1)
    a("v_mov_b32 v%d, 1", vT2)
    a("ds_write_b32 v%d, v%d offset:12", vFo, vT2)
    for i in range(243, 252): a("v_mov_b32 v%d, 0", i)
    st(4, False)
    a("s_cmp_eq_u32 s%d, 0", sQH)
    a("s_cbranch_scc1 L_nosig")
    signal1()
    st(5, False)
    a.label("L_nosig")

    def wo_setup():
        R = 1280
        a("s_mov_b32 s%d, 0", sGo)
        a("s_lshl_b32 s%d, s%d, 10", sLo, sW)
        a("s_add_u32 s%d, s%d, %d", sLo, sLo, WOB)
        a("s_mov_b32 s%d, %d", sGs, 56 * R)
        a("s_mov_b32 s%d, 5120", sLs)
        a("s_mov_b32 s%d, %d", sGd, 24 * R)
        a("s_mov_b32 s%d, %d", sLd, 8 * 5120)
        a("s_mov_b32 s%d, 0", sGx)
        a("s_cmp_lt_u32 s%d, 5", sW)
        a("s_cbranch_scc1 L_wos")
        a("s_lshl_b32 s%d, s%d, 11", sLo, sW)
        a("s_add_u32 s%d, s%d, %d", sLo, sLo, WOB + 16 * 5120 - 5 * 2048)
        a("s_mov_b32 s%d, %d", sGs, 4 * R)
        a("s_mov_b32 s%d, %d", sGx, (4 * R) ^ (316 * R))
        a("s_mov_b32 s%d, 0", sGd)
        a("s_cmp_eq_u32 s%d, 7", sW)
        a("s_cselect_b32 s%d, 0, 1024", sLd)
        a.label("L_wos")
    def all8(lbl, val, n=8):
        a("v_and_b32 v%d, %d, v%d", vT3, n - 1, vLane)
        a("v_lshlrev_b32 v%d, 5, v%d", vT3, vT3)
        a("s_mov_b32 s%d, 0", sTmo)
        a.label(lbl)
        a("ds_read_b32 v%d, v%d offset:12", vT2, vT3)
        a("s_add_u32 s%d, s%d, 1", sTmo, sTmo)
        a("s_waitcnt lgkmcnt(0)")
        a("v_cmp_le_u32 vcc, %d, v%d", val, vT2)
        a("s_cmp_gt_u32 s%d, 0x20000", sTmo)
        a("s_cbranch_scc1 %s_ok", lbl)
        a("s_cmp_eq_u64 vcc, -1")
        a("s_cbranch_scc1 %s_ok", lbl)
        a("s_sleep %d", env("SL8", 2))
        a("s_branch %s", lbl)
        a.label(lbl + "_ok")

    def next_chunk():
        return [lambda: a("s_add_u32 s%d, s%d, 1", sCh, sCh),
                lambda: a("s_xor_b32 s%d, s%d, s%d", sNxt, sCh, sTB),
                lambda: a("s_and_b32 s%d, s%d, 7", sNxt, sNxt),
                lambda: a("s_mul_i32 s%d, s%d, %d", sNxt, sNxt, 4 * BLK),
                lambda: a("s_add_u32 s%d, s%d, s%d", sNxt, sNxt, sKV)]
    N = sNxt
    sched = {
        (0, 1): [("V1a", lambda: kvop("v", 1, N, 0)), ("V1b", lambda: kvop("v", 1, N, 1))],
        (0, 3): [("Wa", lambda: a("buffer_load_dwordx4 v%d, %s, s%d offen lds", vG, sr(WO, 4), sGo)), ("Wb", lambda: a("buffer_load_dwordx4 v%d, %s, s%d offen lds", vGb, sr(WO, 4), sGo))],
        (0, 6): [("K0", lambda: kvop("k", 0, N)), ("R0", lambda: kvop("r", 0, N))],
        (1, 1): [("V0a", lambda: kvop("v", 0, N, 0)), ("V0b", lambda: kvop("v", 0, N, 1))],
        (1, 6): [("K1", lambda: kvop("k", 1, N)), ("R1", lambda: kvop("r", 1, N))],
    }
    order = [(k, n) for k in sorted(sched) for (n, _) in sched[k]]
    def younger(name, pos):
        names = [n for _, n in order]
        i = names.index(name); cnt = 0
        while True:
            i = (i + 1) % len(order)
            if order[i][0] == pos or (order[i][0] > pos and (order[i - 1][0] < pos or i == 0)): return cnt
            cnt += 1
    PA, PB, POLLP = env("PA", 3), env("PB", 5), (1, env("PJ", 4))
    def spin(lbl, word):
        def f():
            a.label(lbl + "_w")
            a("s_add_u32 s%d, s%d, 1", sTmo, sTmo)
            a("s_cmp_gt_u32 s%d, 0x20000", sTmo)
            a("s_cbranch_scc1 %s_ok", lbl)
            a("s_sleep 1")
            a("ds_read_b32 v%d, v%d offset:%d", vT1, vFo, 4 * word)
            a("s_waitcnt lgkmcnt(0)")
            a("v_readfirstlane_b32 s%d, v%d", sT, vT1)
            a("s_cmp_eq_u32 s%d, 0", sT)
            a("s_cbranch_scc1 %s_w", lbl)
            a("s_branch %s", lbl)
        stubs.append(f)
    stubs = []
    def xreads(word, area, n, dst):
        return [lambda: a("ds_read_b32 v%d, v%d offset:%d", vT1, vFo, 4 * word)] + \
               [lambda q=q: a("ds_read_b128 %s, v%d offset:%d", vr(dst + 4 * q, 4), area, q * 1024) for q in range(n)]
    def xcheck(lbl, word, area, n, dst):
        a("s_waitcnt lgkmcnt(%d)", n)
        a("v_readfirstlane_b32 s%d, v%d", sT, vT1)
        a("s_cmp_eq_u32 s%d, 0", sT)
        a("s_cbranch_scc1 %s_w", lbl)
        a.label(lbl + "_ok")
        spin(lbl, word)
        def g():
            a.label(lbl)
            for f in xreads(word, area, n, dst)[1:]: f()
            a("s_branch %s_ok", lbl)
        stubs.append(g)
    def padd(d, x): a("v_pk_add_f32 %s, %s, %s", vr(d, 2), vr(d, 2), vr(x, 2))
    def iteration(first, last=False):
        for tt in range(2):
            for j in range(8):
                pj, pvb = ((7, 1 - tt) if j == 0 else (j - 1, tt))
                nj, nkb = (j + 2) % 8, (tt if j < 6 else 1 - tt)
                slots = [[], [], []]
                lds = [f for _, f in sched.get((tt, j), [])]
                wv = younger("V%db" % tt, (tt, 1)) if j == 0 else None
                wk = younger("R%d" % (1 - tt), (tt, 6)) if j == 6 else None
                if first:
                    if 8 * tt + j == PA:
                        a("s_cmp_eq_u32 s%d, 0", sQH)
                        a("s_cbranch_scc0 L_nosig2")
                        signal1()
                        st(5, False)
                        a.label("L_nosig2")
                    if 8 * tt + j == PB:
                        a("s_cmp_eq_u32 s%d, 0", sQH)
                        a("s_cbranch_scc1 L_nosig3")
                        a("s_setprio 1")
                        a.label("L_nosig3")
                    if (tt, j) == POLLP:
                        wo_setup()
                        all8("L_img", 1)
                        st(6, False)
                        poll("L_poll1", sF1, "s%d" % sMsk, 0x4000, 2)
                        st(7, False)
                        a("s_andn2_b32 s%d, 0xffff, vcc_lo", sMsk)
                        a("s_mov_b32 s%d, 0", sCh)
                        for f in next_chunk(): f()
                        for k in sorted(sched):
                            if k == (0, 3):
                                a("s_mov_b32 m0, s%d", sLo); a("s_nop 0"); sched[k][0][1]()
                                a("s_add_u32 m0, s%d, s%d", sLo, sLd); a("s_add_u32 s%d, s%d, s%d", sGo, sGo, sGd); sched[k][1][1]()
                                a("s_add_u32 s%d, s%d, s%d", sGo, sGo, sGs); a("s_add_u32 s%d, s%d, s%d", sLo, sLo, sLs); a("s_xor_b32 s%d, s%d, s%d", sGs, sGs, sGx)
                            elif (0, 1) < k < POLLP:
                                for _, f in sched[k]: f()
                    if (tt, j) < POLLP: lds = []
                    wv = None
                    if (tt, j) != (1, 6): wk = None
                else:
                    if (tt, j) == (0, 2): slots[2].append(lambda: a("s_mov_b32 m0, s%d", sLo))
                    if (tt, j) == (0, 3):
                        slots[0].append(lds[0]); slots[2].append(lds[1])
                        lds = []
                        slots[1] += [lambda: a("s_add_u32 m0, s%d, s%d", sLo, sLd), lambda: a("s_add_u32 s%d, s%d, s%d", sGo, sGo, sGd)]
                    if (tt, j) == (0, 4):
                        nc = next_chunk()
                        slots[0] += nc[0:2]; slots[1] += nc[2:4]; slots[2] += nc[4:5]
                    if (tt, j) == (0, 5):
                        slots[0] += [lambda: a("s_add_u32 s%d, s%d, s%d", sGo, sGo, sGs), lambda: a("s_add_u32 s%d, s%d, s%d", sLo, sLo, sLs)]
                        slots[1].append(lambda: a("s_xor_b32 s%d, s%d, s%d", sGs, sGs, sGx))
                    if (tt, j) == (1, 7): slots[0].append(lambda: a("s_cmp_lt_u32 s%d, 7", sCh))
                if last:
                    I = lambda f, *x: (lambda: a(f, *x))
                    if (tt, j) >= (0, 4):
                        slots = [[], [], []]; lds = []
                    if (tt, j) == (1, 0): wv = 0
                    if (tt, j) == (1, 6): wk = None
                    if (tt, j) == (0, 4):
                        slots[0] += [I("s_and_b32 s%d, s%d, 3", sT3, sW), I("s_xor_b32 s%d, s%d, 2", sT, sT3)]
                        slots[1] += [I("s_xor_b32 s%d, s%d, 3", sT2, sT3), I("s_mul_i32 s%d, s%d, 12288", sT, sT)]
                        slots[2] += [I("s_mul_i32 s%d, s%d, 12288", sT2, sT2)]
                    if (tt, j) == (0, 5):
                        slots[0] += [I("s_add_u32 s%d, s%d, %d", sCur, sT, CMB), I("s_add_u32 s%d, s%d, %d", sNxt, sT2, CMB)]
                        slots[1] += [I("s_mov_b32 s%d, 0x%x", sT3, f32bits(2.0 ** -30)), I("s_mov_b32 s%d, 0x%x", sT2, f32bits(2.0 ** 60))]
                    if (tt, j) == (0, 7):
                        a("v_and_b32 v%d, 3, v%d", vT3, vLane)
                        a("v_lshlrev_b32 v%d, 5, v%d", vT3, vT3)
                        slots[0] += [I("ds_read_b32 v%d, v%d offset:12", vT2, vT3), I("s_lshl_b32 s%d, s%d, 1", sT, sQH)]
                    if (tt, j) == (1, 1):
                        a("s_waitcnt lgkmcnt(0)")
                        a("v_cmp_le_u32 vcc, s%d, v%d", sT, vT2)
                        a("s_cmp_eq_u64 vcc, -1")
                        a("s_cbranch_scc0 L_afree0")
                        a.label("L_afree_back")
                        def afs():
                            a.label("L_afree0")
                            all8("L_afree", 2, 4)
                            a("s_branch L_afree_back")
                        stubs.append(afs)
                        a("v_add_u32 v%d, s%d, v%d", vT3, sCur, vL16)
                        a("v_add_u32 v%d, s%d, v%d", vT4, sNxt, vL16)
                        a("v_mov_b32 v%d, 1", vT2)
                        a("v_xor_b32 v%d, 64, v%d", vT1, vFo)
                        a("s_mov_b32 s%d, 0", sTmo)
                    if tt == 1 and 2 <= j <= 5:
                        for i in range(3):
                            q = 3 * (j - 2) + i
                            slots[i].append(I("ds_write_b128 v%d, %s offset:%d", vAr, vr(O + 4 * q, 4), q * 1024))
                        if j == 5: slots[2].append(I("ds_write_b32 v%d, v%d", vT1, vT2))
                    if (tt, j) == (1, 6):
                        xr = xreads(0, vT3, 12, O)
                        slots[1] += xr[:7]; slots[2] += xr[7:]
                if wv is not None: slots[2].append(lambda wv=wv: a("s_waitcnt vmcnt(%d)", wv))
                if wk is not None:
                    slots[0].append(lambda wk=wk: a("s_waitcnt vmcnt(%d)", wk))
                    for i, f in enumerate(lds): slots[1 + i].append(f)
                else:
                    for i, f in enumerate(lds): slots[i].append(f)
                regs = [S + 16 * (j % 4) + i for i in range(16)]
                def ex4():
                    for _ in range(4): ex(regs.pop(0))
                if first and (tt, j) == (0, 0):
                    ex4(); ex4(); a("s_waitcnt lgkmcnt(0)")
                else:
                    pv(pj, pvb, 0); [f() for f in slots[0]]; ex4()
                    pv(pj, pvb, 1); [f() for f in slots[1]]; ex4()
                if last and (tt, j) == (1, 7):
                    if DIAG and env("AD", 0): a("s_memtime s[74:75]")
                    if DIAG: a("s_waitcnt lgkmcnt(0)")
                    xcheck("L_cmb", 0, vT3, 12, O)
                    a("s_waitcnt lgkmcnt(6)")
                    for i in range(0, 24, 2): padd(O + 48 + i, O + i)
                    for k in range(6): a("ds_write_b128 v%d, %s offset:%d", vT3, vr(O + 48 + 4 * k, 4), k * 1024)
                    a("v_xor_b32 v%d, 32, v%d", vT1, vFo)
                    a("ds_write_b32 v%d, v%d offset:4", vT1, vT2)
                    ex4(); ex4()
                elif last and (tt, j) == (1, 6):
                    [f() for f in slots[2]]; ex4(); ex4()
                else:
                    qk1(nj, nkb); ex4()
                    qk2(nj, nkb); [f() for f in slots[2]]; ex4()
    iteration(True)
    BLEAD = env("BLEAD", 2)
    a("s_mov_b32 s%d, 3", sTrig)
    if BLEAD:
        a("s_cmp_eq_u32 s%d, 0", sQH)
        a("s_cbranch_scc1 L_nolead")
        a("s_setprio 3")
        a.label("L_nolead")
    st(8, False)
    a.raw(".p2align 6")
    a.label("L_attn")
    if DIAG and env("AD", 0):
        a("s_memtime s[100:101]")
        a("s_waitcnt lgkmcnt(0)")
        for k in range(2, 7):
            a("s_cmp_eq_u32 s%d, %d", sCh, k)
            a("s_cselect_b32 s%d, s100, s%d", 64 + 2 * (8 + k), 64 + 2 * (8 + k))
    a("s_cmp_eq_u32 s%d, s%d", sCh, sTrig)
    a("s_cbranch_scc1 L_mid")
    a.label("L_attn_go")
    iteration(False)
    a("s_cbranch_scc1 L_attn")
    if DIAG and env("AD", 0): a("s_memtime s[94:95]")
    iteration(False, True)
    K0 = O + 72
    xr = xreads(1, vT4, 6, S)
    xr[0](); xr[1]()
    pv(7, 1, 0); pv(7, 1, 1)
    st(9, False)
    for f in xr[2:]: f()
    a("s_waitcnt lgkmcnt(14)")
    for i in range(0, 12, 2): padd(K0 + i, O + 24 + i)
    a("s_mov_b32 s%d, 0", sTmo)
    if DIAG: a("s_waitcnt lgkmcnt(0)")
    xcheck("L_cmb2", 1, vT4, 6, S)
    a("s_waitcnt lgkmcnt(3)")
    for i in range(0, 12, 2): padd(K0 + i, S + i)
    for i in range(12, 24, 2): padd(K0 + i, O + 24 + i)
    a("s_waitcnt lgkmcnt(0)")
    for i in range(12, 24, 2): padd(K0 + i, S + i)
    Z = S + 32
    def get_l():
        for j in range(2):
            a("v_mov_b32 v%d, v%d", Z + 4 + 2 * j, K0 + 12 * j + 8)
            a("v_mov_b32 v%d, v%d", Z + 5 + 2 * j, K0 + 12 * j + 8)
    get_l()
    a("s_mov_b32 s%d, 1", sCh)
    a("v_mov_b32 v%d, 2", vT2)
    for j in range(2): a("v_permlane32_swap_b32 v%d, v%d", Z + 5 + 2 * j, Z + 4 + 2 * j)
    a.label("L_fin")
    for j in range(2): a("v_rcp_f32 v%d, v%d", Z + 2 * j, Z + 4 + 2 * j)
    a("s_nop 0")
    for j in range(2):
        k = K0 + 12 * j
        for i in range(0, 12, 2): a("v_pk_mul_f32 %s, %s, %s op_sel_hi:[1,0]", vr(k + i, 2), vr(k + i, 2), vr(Z + 2 * j, 2))
        for i in range(4): a("v_cvt_pk_bf16_f32 v%d, v%d, v%d", S + 4 * j + i, k + 2 * i, k + 2 * i + 1)
        a("buffer_store_dwordx4 %s, v%d, %s, s%d offen offset:%d sc1", vr(S + 4 * j, 4), vL16, srd, sO, j * 1024)
        for i in range(2): a("v_cvt_pk_bf16_f32 v%d, v%d, v%d", S + 8 + 2 * j + i, k + 8 + 2 * i, k + 9 + 2 * i)
    a("buffer_store_dwordx4 %s, v%d, %s, s%d offen sc1", vr(S + 8, 4), vOr, srd, sO)
    st(16, False)
    if env("EARLY", 1): a("ds_write_b32 v%d, v%d offset:12", vFo, vT2)
    a("s_cmp_eq_u32 s%d, 0", sCh)
    a("s_cbranch_scc1 L_guard_ok")
    a("v_pk_mul_f32 %s, %s, 0", vr(Z, 2), vr(K0, 2))
    a("v_pk_mul_f32 %s, %s, 0", vr(Z + 2, 2), vr(K0 + 12, 2))
    for i in range(2, 12, 2):
        for j in range(2): a("v_pk_fma_f32 %s, %s, 0, %s", vr(Z + 2 * j, 2), vr(K0 + 12 * j + i, 2), vr(Z + 2 * j, 2))
    a("v_cmp_le_f32 s[%d:%d], s%d, v%d", sC, sC + 1, sT3, Z + 4)
    a("v_cmp_le_f32 s[%d:%d], s%d, v%d", sC2, sC2 + 1, sT3, Z + 6)
    a("v_pk_add_f32 %s, %s, %s", vr(Z, 2), vr(Z, 2), vr(Z + 2, 2))
    a("v_cmp_ge_f32 vcc, s%d, v%d", sT2, Z + 4)
    a("s_and_b64 s[%d:%d], s[%d:%d], s[%d:%d]", sC, sC + 1, sC, sC + 1, sC2, sC2 + 1)
    a("v_cmp_ge_f32 s[%d:%d], s%d, v%d", sC2, sC2 + 1, sT2, Z + 6)
    a("s_and_b64 s[%d:%d], s[%d:%d], vcc", sC, sC + 1, sC, sC + 1)
    a("v_cmp_o_f32 vcc, v%d, v%d", Z, Z + 1)
    a("s_and_b64 s[%d:%d], s[%d:%d], s[%d:%d]", sC, sC + 1, sC, sC + 1, sC2, sC2 + 1)
    a("s_and_b64 s[%d:%d], s[%d:%d], vcc", sC, sC + 1, sC, sC + 1)
    a("s_cmp_eq_u64 s[%d:%d], -1", sC, sC + 1)
    a("s_cbranch_scc0 L_slow")
    a.label("L_guard_ok")
    if not env("EARLY", 1): a("ds_write_b32 v%d, v%d offset:12", vFo, vT2)
    a("v_mov_b32 v%d, s%d", vNon, sNon)
    a("v_mov_b32 v%d, s%d", vNon + 1, sNon + 1)
    a("v_lshrrev_b32 v%d, 4, v%d", vT4, vLane)
    a("v_and_b32 v%d, 15, v%d", vT3, vLane)
    a("s_lshl_b32 s%d, s%d, 8", sT, sE)
    a("v_lshl_add_u32 v%d, v%d, 4, s%d", vT1, vT3, sT)
    a("v_lshrrev_b32 v%d, 5, v%d", vT2, vLane)
    a("v_mul_u32_u24 v%d, 2560, v%d", vT2, vT2)
    a("v_and_b32 v%d, 16, v%d", vOa, vLane)
    a("v_lshl_add_u32 v%d, v%d, 5, v%d", vOa, vOa, vT2)
    a("v_add_u32 v%d, v%d, v%d", vOa, vOa, vT1)
    a("v_mul_u32_u24 v%d, %d, v%d", vOb, 2 * OB, vT4)
    a("v_add_u32 v%d, v%d, v%d", vOb, vOb, vT1)
    a("v_add_u32 v%d, 2048, v%d", vOb, vOb)
    a("s_mul_i32 s%d, s%d, %d", sT, sQH, 8 * 5120)
    a("s_add_u32 s%d, s%d, %d", sT, sT, WOB)
    a("v_and_b32 v%d, 31, v%d", vT1, vLane)
    a("v_mul_u32_u24 v%d, 40, v%d", vT1, vT1)
    a("v_add3_u32 v%d, v%d, v%d, s%d", vWa2, vT1, vT2, sT)
    a("s_mul_i32 s%d, s%d, %d", sT, sQH, 7 * 5120)
    a("s_sub_u32 s%d, %d, s%d", sT, 16 * 5120, sT)
    a("v_add_u32 v%d, s%d, v%d", vWa3, sT, vWa2)
    COAL = env("COAL", 1)
    a("v_and_b32 v%d, 4, v%d", vT2, vT3)
    a("v_lshlrev_b32 v%d, %d, v%d", vT2, 1 if COAL else 2, vT2)
    a("v_and_b32 v%d, 8, v%d", vT1, vT3)
    a("v_lshrrev_b32 v%d, 1, v%d", vT1, vT1)
    a("v_and_b32 v%d, 3, v%d", vT3, vT3)
    a("v_or3_b32 v%d, v%d, v%d, v%d", vT2, vT2, vT3, vT1)
    a("v_mul_u32_u24 v%d, %d, v%d", vT2, 176 if COAL else 2560, vT2)
    a("v_mad_u32_u24 v%d, v%d, 40, v%d", vSt, vT4, vT2)
    if COAL:
        a("s_and_b32 s%d, s%d, 3", sT, sW)
        a("s_mul_i32 s%d, s%d, 12288", sT, sT)
        a("s_add_u32 s%d, s%d, %d", sCur, sT, CMB)
        a("v_add_u32 v%d, s%d, v%d", vSt, sCur, vSt)
    a("s_lshl_b32 s%d, s%d, 3", sT, sHH)
    a("s_lshl_b32 s%d, 0xff, s%d", sM2, sT)
    EP = env("EP", 0)
    if EP:
        a("s_cmp_eq_u32 s%d, 0", sQH)
        a("s_cbranch_scc1 L_wdoneB_ok")
        all8("L_wdoneB", 2)
        pollop(sPend)
    a("s_waitcnt vmcnt(%d)", 1 if EP else 0)
    flagop(sF2)
    st(10)
    def wread_ops(s):
        fb, g, i = s % 2, s // 5, s % 5
        base, blk = ((vWb2 if g else vWa2), i) if i < 4 else ((vWb3 if g else vWa3), 0)
        return ["ds_read_b64_tr_b16 %s, v%d offset:%d" % (vr(WF + 20 * fb + 4 * j + 2 * q, 2), base, blk * 5120 + j * 8 + q * 1280) for j in range(5) for q in range(2)]
    def oloads(s):
        b_, i = (sO2 if s >= 5 else sOc), s % 5
        if i < 4:
            return ["s_add_u32 s%d, s%d, %d" % (sNxt, b_, i * 2 * OB)] + \
                   ["buffer_load_dwordx4 %s, v%d, %s, s%d offen offset:%d sc1" % (vr(OF + 8 * s + 4 * j, 4), vOa, srd, sNxt, 1024 * j) for j in range(2)]
        return ["buffer_load_dwordx4 %s, v%d, %s, s%d offen offset:%d sc1" % (vr(OF + 8 * s + 4 * e, 4), vOb, srd, b_, OB * e) for e in range(2)]
    def choose():
        a("s_lshr_b32 s%d, s%d, 15", sT, sM2)
        a("s_xor_b32 s%d, s%d, 1", sT2, sT)
        a("s_mul_i32 s%d, s%d, %d", sO2, sT, 8 * OB)
        a("s_add_u32 s%d, s%d, s%d", sO2, sO2, sOc)
        a("s_mul_i32 s%d, s%d, %d", sT3, sT2, 8 * OB)
        a("s_add_u32 s%d, s%d, s%d", sOc, sOc, sT3)
    def choose2():
        a("s_mul_i32 s%d, s%d, 10240", sT, sT)
        a("s_mul_i32 s%d, s%d, 10240", sT2, sT2)
        a("v_add_u32 v%d, s%d, v%d", vWb3, sT, vWa3)
        a("v_add_u32 v%d, s%d, v%d", vWa3, sT2, vWa3)
        a("v_lshl_add_u32 v%d, s%d, 1, v%d", vWb2, sT, vWa2)
        a("v_lshl_add_u32 v%d, s%d, 1, v%d", vWa2, sT2, vWa2)
    a("s_cmp_eq_u32 s%d, 0", sQH)
    a("s_cbranch_scc1 L_aload")
    if not EP: all8("L_wdoneB", 2)
    a("s_mov_b32 s%d, 0", sTmo)
    if EP:
        a("s_waitcnt vmcnt(1)")
        a("s_branch L_poll2e")
    else: pollop(sPend)
    a.label("L_poll2")
    a("s_add_u32 s%d, s%d, 1", sTmo, sTmo)
    a("s_waitcnt vmcnt(0)")
    a.label("L_poll2e")
    a("v_cmp_eq_u64 vcc, s[%d:%d], v[4:5]", sNon, sNon + 1)
    a("s_cmp_gt_u32 s%d, 0x8000", sTmo)
    a("s_cbranch_scc1 L_first")
    a("s_or_b32 s%d, vcc_lo, s%d", sT, sM2)
    a("s_andn2_b32 s%d, 0xffff, s%d", sT, sT)
    a("s_cbranch_scc0 L_first")
    a("s_xor_b32 s%d, s%d, 0xffff", sM2, sM2)
    a("s_or_b32 s%d, vcc_lo, s%d", sT, sM2)
    a("s_andn2_b32 s%d, 0xffff, s%d", sT, sT)
    a("s_cbranch_scc0 L_first")
    a("s_sleep %d", env("SLP2", 2))
    pollop(sPend)
    a("s_branch L_poll2")
    a.label("L_first")
    st(12)
    if env("RP", 1):
        a("s_andn2_b32 s%d, s%d, vcc_lo", sT, sM2)
        a("s_cbranch_scc0 L_norp")
        pollop(sPend)
        a.label("L_norp")
    choose()
    for s in range(5):
        for x in oloads(s): a(x)
    choose2()
    for x in wread_ops(0): a(x)
    if env("RP", 1): a("s_waitcnt vmcnt(10)")
    a.label("L_chk2")
    a("v_cmp_eq_u64 vcc, s[%d:%d], v[4:5]", sNon, sNon + 1)
    a("s_andn2_b32 s%d, s%d, vcc_lo", sP2, sM2)
    a("s_cbranch_scc1 L_more" if env("P2", 1) else "s_cbranch_scc1 L_aback")
    for s in range(5, 10):
        for x in oloads(s): a(x)
    a.label("L_aback")
    st(13)
    for s in range(10):
        o = OF + 8 * s
        acc = ACC2 if s < 5 else ACC3
        rd = wread_ops(s + 1) if s < 9 else []
        if s <= 5:
            a("s_cmp_eq_u32 s%d, 0", sP2)
            if s < 5:
                a("s_cbranch_scc1 L_both%d", s)
                if s == env("PP", 2): pollop(sPend)
                a("s_waitcnt vmcnt(%d)", 2 * (4 - s) + (1 if s >= env("PP", 2) else 0))
            else:
                a("s_cbranch_scc0 L_second")
            a.label("L_both%d" % s)
        a("s_waitcnt vmcnt(%d) lgkmcnt(0)", 2 * (9 - s))
        if s % 5 == 4:
            a("v_swap_b32 v%d, v%d", o + 2, o + 4)
            a("v_swap_b32 v%d, v%d", o + 3, o + 5)
            a("s_nop 1")
        if s == 7 and COAL:
            R = OF
            rd += ["v_lshrrev_b32 v%d, 3, v%d" % (R + 4, vLane), "v_and_b32 v%d, 7, v%d" % (R + 5, vLane),
                   "v_mul_u32_u24 v%d, 176, v%d" % (R, R + 4), "v_mul_u32_u24 v%d, 2560, v%d" % (R + 1, R + 4),
                   "v_lshl_add_u32 v%d, v%d, 4, v%d" % (R, R + 5, R), "v_lshl_add_u32 v%d, v%d, 4, v%d" % (R + 1, R + 5, R + 1),
                   "v_add_u32 v%d, s%d, v%d" % (R, sCur, R),
                   "v_lshrrev_b32 v%d, 1, v%d" % (R + 4, vLane), "v_and_b32 v%d, 1, v%d" % (R + 5, vLane),
                   "v_mul_u32_u24 v%d, 176, v%d" % (R + 2, R + 4)]
        if s == 8 and COAL:
            rd += ["v_and_b32 v%d, 24, v%d" % (R + 6, R + 4), "v_add_u32 v%d, v%d, v%d" % (R + 4, R + 4, R + 6),
                   "v_mul_u32_u24 v%d, 2560, v%d" % (R + 3, R + 4),
                   "v_lshl_add_u32 v%d, v%d, 4, v%d" % (R + 2, R + 5, R + 2), "v_lshl_add_u32 v%d, v%d, 4, v%d" % (R + 3, R + 5, R + 3),
                   "v_add_u32 v%d, s%d, v%d" % (R + 2, sCur, R + 2)]
        if s == 9:
            xr = xreads(2, vAr, 10, PART)
        for tt in (0, 1):
            for j in range(5):
                d = acc + 4 * (5 * tt + j)
                a("v_mfma_f32_16x16x32_bf16 %s, %s, %s, %s", vr(d, 4), vr(WF + 20 * (s % 2) + 4 * j, 4), vr(o + 4 * tt, 4), vr(d, 4) if s % 5 else "0")
                for _ in range(2):
                    if rd: a(rd.pop(0))
                    elif s == 9 and xr: xr.pop(0)()
    st(14, False)
    a("s_mov_b32 s%d, 0", sTmo)
    a("s_add_u32 s%d, s%d, %d", sT2, sPub, 32 * 2560)
    a("v_mov_b32 v%d, 1", vT2)
    a("s_cmp_eq_u32 s%d, 0", sQH)
    a("s_cbranch_scc0 L_x1")
    for q in range(10):
        for h in range(4): a("v_add_f32 v%d, v%d, v%d", ACC2 + 4 * q + h, ACC2 + 4 * q + h, ACC3 + 4 * q + h)
        a("ds_write_b128 v%d, %s offset:%d", vAr, vr(ACC2 + 4 * q, 4), q * 1024)
    a("ds_write_b32 v%d, v%d offset:%d", vFo, vT2, 128 + 8)
    a("s_waitcnt lgkmcnt(0)")
    a("s_branch L_xdone") if DIAG else a("s_endpgm")
    a.label("L_x1")
    if DIAG: a("s_waitcnt lgkmcnt(0)")
    xcheck("L_xch", 2, vAr, 10, PART)
    if COAL:
        for i in range(0, 40, 2): padd(ACC2 + i, ACC3 + i)
        a("s_waitcnt lgkmcnt(0)")
    for tt in range(2):
        for q in range(5):
            r = ACC2 + 20 * tt + 4 * q
            o = WF + 12 * tt
            if not COAL:
                for h in range(2): padd(r + 2 * h, ACC3 + 20 * tt + 4 * q + 2 * h)
                a("s_waitcnt lgkmcnt(%d)", 9 - 5 * tt - q)
            for h in range(2): padd(r + 2 * h, PART + 20 * tt + 4 * q + 2 * h)
            for h in range(2): a("v_cvt_pk_bf16_f32 v%d, v%d, v%d", o + 2 * q + h, r + 2 * h, r + 2 * h + 1)
            if COAL:
                a("ds_write_b64 v%d, %s offset:%d", vSt, vr(o + 2 * q, 2), tt * 16 * 176 + 8 * q)
            else:
                if q in (1, 3): a("buffer_store_dwordx4 %s, v%d, %s, s%d offen offset:%d", vr(o + 2 * q - 2, 4), vSt, sr(OUT, 4), sT2 if tt else sPub, 8 * (q - 1))
                if q == 4: a("buffer_store_dwordx2 %s, v%d, %s, s%d offen offset:32", vr(o + 8, 2), vSt, sr(OUT, 4), sT2 if tt else sPub)
        if COAL:
            for i in (2 * tt, 2 * tt + 1): a("ds_read_b128 %s, v%d offset:%d", vr(OF + 8 + 4 * i, 4), R, i * 8 * 176)
    if COAL:
        a("ds_read_b128 %s, v%d offset:128", vr(OF + 24, 4), R + 2)
        for i in range(4):
            a("s_add_u32 s%d, s%d, %d", sT2, sPub, i * 16 * 2560)
            a("s_waitcnt lgkmcnt(%d)", (9, 8, 2, 1)[i])
            a("buffer_store_dwordx4 %s, v%d, %s, s%d offen %s", vr(OF + 8 + 4 * i, 4), R + 1, sr(OUT, 4), sT2, os.environ.get("OSC", ""))
        a("s_waitcnt lgkmcnt(0)")
        a("buffer_store_dwordx4 %s, v%d, %s, s%d offen offset:128 %s", vr(OF + 24, 4), R + 3, sr(OUT, 4), sPub, os.environ.get("OSC", ""))
    a.label("L_xdone")
    st(15)
    a.label("L_exit")
    st.flush(sW)
    a.label("L_end")
    a("s_endpgm")
    a.label("L_mid")
    a("s_add_u32 s%d, s%d, 1", sTrig, sTrig)
    a("s_cmp_eq_u32 s%d, 3", sCh)
    a("s_cbranch_scc0 L_mid2")
    a("s_lshl_b32 s%d, s%d, 1", sT3, sTB)
    a("s_add_u32 s%d, s%d, s%d", sT3, sT3, sHH)
    a("s_lshl_b32 s%d, s%d, 1", sT3, sT3)
    a("s_add_u32 s%d, s%d, s%d", sT3, sT3, sKH)
    a("s_lshl_b32 s%d, s%d, 5", sT2, sB)
    a("s_add_u32 s%d, s%d, s%d", sT2, sT2, sT3)
    a("s_lshl_b32 s%d, s%d, 1", sT2, sT2)
    a("s_add_u32 s%d, s%d, s%d", sT2, sT2, sQH)
    a("s_mul_i32 s%d, s%d, %d", sOc, sT2, 16 * OB)
    a("s_add_u32 s%d, s%d, %d", sOc, sOc, O_OFF)
    a("s_lshl_b32 s%d, s%d, 8", sT2, sT2)
    a("s_add_u32 s%d, s%d, %d", sPend, sT2, F2_OFF)
    a("s_lshl_b32 s%d, s%d, 3", sT3, sT3)
    a("s_add_u32 s%d, s%d, s%d", sT3, sT3, sE)
    a("s_mul_i32 s%d, s%d, %d", sPub, sT3, 8 * 2560)
    a("s_mul_i32 s%d, s%d, 1280", sT2, sB)
    a("s_add_u32 s%d, s%d, s%d", sPub, sPub, sT2)
    a("s_and_b32 s%d, s%d, 7", sT2, sHP)
    a("s_mul_i32 s%d, s%d, 160", sT2, sT2)
    a("s_add_u32 s%d, s%d, s%d", sPub, sPub, sT2)
    a("s_cmp_eq_u32 s%d, 0", sMsk)
    a("s_cbranch_scc1 L_poll3_ok")
    poll("L_poll3", sF1, "0xffff", 0x4000, 2)
    a.label("L_mid2")
    a("s_cmp_eq_u32 s%d, 0", sQH)
    a("s_cselect_b32 s%d, 0, s%d", sTrig, sTrig)
    a("s_cbranch_scc1 L_attn_go")
    a("s_cmp_eq_u32 s%d, %d", sCh, max(BLEAD + 1, 3))
    a("s_cbranch_scc0 L_mid3")
    a("s_setprio 1")
    a.label("L_mid3")
    a("s_cmp_ge_u32 s%d, %d", sCh, max(BLEAD + 1, 4))
    a("s_cselect_b32 s%d, 0, s%d", sTrig, sTrig)
    a("s_cmp_eq_u32 s%d, 4", sCh)
    a("s_cbranch_scc0 L_attn_go")
    a("s_cmp_lt_u32 s%d, 5", sW)
    a("s_cbranch_scc1 L_attn_go")
    a("v_mov_b32 v%d, 2.0", vG)
    a("v_mov_b32 v%d, 2.0", vGb)
    a("s_mov_b32 s%d, %d", sLo, CMB + 8 * 7168)
    a("s_mov_b32 s%d, 0", sLs)
    a("s_mov_b32 s%d, 0", sGs)
    a("s_mov_b32 s%d, 0", sGx)
    a("s_mov_b32 s%d, 0", sGo)
    a("s_branch L_attn_go")
    a.label("L_more")
    a("ds_read_b32 v%d, v%d offset:8", vT3, vFo)
    a("s_add_u32 s%d, s%d, 1", sTmo, sTmo)
    a("s_waitcnt lgkmcnt(0)")
    a("v_readfirstlane_b32 s%d, v%d", sT, vT3)
    a("s_cmp_gt_u32 s%d, 0x8000", sTmo)
    a("s_cbranch_scc1 L_aback")
    a("s_cmp_eq_u32 s%d, 0", sT)
    a("s_cbranch_scc0 L_aback")
    pollop(sPend)
    a("s_waitcnt vmcnt(0)")
    a("s_branch L_chk2")
    a.label("L_second")
    if env("PP", 2) < 5:
        a("s_waitcnt vmcnt(0)")
        a("v_cmp_eq_u64 vcc, s[%d:%d], v[4:5]", sNon, sNon + 1)
        a("s_andn2_b32 s%d, s%d, vcc_lo", sT, sM2)
        a("s_cbranch_scc0 L_poll5_ok")
    poll("L_poll5", sPend, "s%d" % sM2, 0x8000, env("SLP2", 2))
    for s_ in range(5, 10):
        for x in oloads(s_): a(x)
    a("s_branch L_both5")
    a.label("L_aload")
    a("s_waitcnt vmcnt(0)")
    poll("L_poll4", sPend, "0xffff", 0x8000, env("SLP2", 2))
    choose(); choose2()
    a("s_mov_b32 s%d, 0", sP2)
    for s_ in range(10):
        for x in oloads(s_): a(x)
        a("s_waitcnt vmcnt(%d)", env("AW", 4))
    if env("ALOW", 0): a("s_setprio 0")
    all8("L_wdone", 2)
    for x in wread_ops(0): a(x)
    a("s_branch L_aback")
    for v in range(2):
        a.label("L_nonce%d" % v)
        a("s_mov_b32 s%d, 0", sT)
        a.label("L_nonce_retry%d" % v)
        a("v_mov_b32 v%d, 0", vT1)
        a("global_load_dwordx2 %s, v%d, s[%d:%d] sc0 sc1", vr(vNon, 2), vT1, sDbg, sDbg + 1)
        a("s_add_u32 s%d, s%d, 1", sT, sT)
        a("s_waitcnt vmcnt(0)")
        a("v_readfirstlane_b32 s%d, v%d", sNon + 1, vNon + 1)
        a("v_readfirstlane_b32 s%d, v%d", sNon, vNon)
        a("s_cmp_gt_u32 s%d, 0x4000", sT)
        a("s_cbranch_scc1 L_nonce_ok%d", v)
        a("s_cmp_eq_u32 s%d, 0", sNon + 1)
        a("s_cbranch_scc1 L_nonce_retry%d", v)
        a("s_branch L_nonce_ok%d", v)
    for f in stubs: f()
    a.label("L_slow")
    C = S
    MX = O
    a("s_waitcnt vmcnt(0)")
    a("s_and_b32 s%d, s%d, 3", sT, sW)
    a("s_mul_i32 s%d, s%d, %d", sT, sT, BLK)
    a("s_sub_u32 s%d, s%d, s%d", sKV, sKV, sT)
    a("s_mov_b32 s%d, s%d", sCur, sKV)
    a("s_add_u32 s%d, s%d, %d", sCh, sKV, KV_PAIR)
    a("v_mov_b32 v%d, 0xff800000", MX)
    a("v_mov_b32 v%d, 0xff800000", MX + 1)
    a.label("L_slow1")
    for b in range(2): kvop("k", b, sCur); kvop("r", b, sCur)
    a("s_waitcnt vmcnt(0)")
    for b in range(2):
        qk1(6, b); qk2(6, b); qk1(7, b); qk2(7, b)
        a("s_nop 15")
        for j in range(2):
            for i in range(8): a("v_max3_f32 v%d, v%d, v%d, v%d", MX + j, MX + j, S + 32 + 16 * j + 2 * i, S + 32 + 16 * j + 2 * i + 1)
    a("s_add_u32 s%d, s%d, %d", sCur, sCur, BLK)
    a("s_cmp_lt_u32 s%d, s%d", sCur, sCh)
    a("s_cbranch_scc1 L_slow1")
    for j in range(2):
        a("v_mov_b32 v%d, v%d", vT1, MX + j)
        a("s_nop 1")
        a("v_permlane32_swap_b32 v%d, v%d", vT1, MX + j)
        a("s_nop 1")
        a("v_max_f32 v%d, v%d, v%d", vT1, vT1, MX + j)
        for i in range(16): a("v_sub_f32 v%d, 0, v%d", C + 16 * j + i, vT1)
    for i in range(24): a("v_mov_b32 v%d, 0", K0 + i)
    a("s_mov_b32 s%d, s%d", sCur, sKV)
    a.label("L_slow2")
    for b in range(2):
        kvop("k", b, sCur); kvop("r", b, sCur); kvop("v", b, sCur, 0); kvop("v", b, sCur, 1)
    a("s_waitcnt vmcnt(0)")
    for b in range(2):
        for j in range(2):
            qk1(6 + j, b, vr(C + 16 * j, 16))
            qk2(6 + j, b)
        a("s_nop 15")
        for i in range(32): ex(S + 32 + i)
        a("s_nop 1")
        pv(6, b, 0); pv(6, b, 1)
        a("s_nop 10")
        pv(7, b, 0); pv(7, b, 1)
    a("s_add_u32 s%d, s%d, %d", sCur, sCur, BLK)
    a("s_cmp_lt_u32 s%d, s%d", sCur, sCh)
    a("s_cbranch_scc1 L_slow2")
    a("s_nop 15")
    get_l()
    a("s_nop 1")
    for j in range(2): a("v_permlane32_swap_b32 v%d, v%d", Z + 5 + 2 * j, Z + 4 + 2 * j)
    a("s_mov_b32 s%d, 0", sCh)
    a("s_branch L_fin")
    a.label("L_code_end")
    return name, NFV, 163840

def gen_spin(a):
    name = "spin_kernel"
    kernel_head(a, name)
    wa, ia, wb, ib, mult, off = [int(x) for x in SPIN.split(",")]
    a("s_cmp_ge_u32 s2, 1")
    a("s_cbranch_scc1 L_spin_end")
    a("s_load_dwordx2 s[4:5], s[0:1], 64")
    a("s_waitcnt lgkmcnt(0)")
    a("s_add_u32 s4, s4, %d", DIAG_OFF)
    a("s_addc_u32 s5, s5, 0")
    if wa >= 0:
        a("v_mov_b32 v1, %d", 4 * ia + 128 * (16 * 8 + wa))
        a("v_mov_b32 v2, %d", 4 * ib + 128 * (16 * 8 + wb))
        a("global_load_dword v3, v1, s[4:5]")
        a("global_load_dword v4, v2, s[4:5]")
        a("s_waitcnt vmcnt(0)")
        a("v_sub_u32 v3, v4, v3")
        a("s_nop 1")
        a("v_readfirstlane_b32 s8, v3")
    else:
        a("v_lshlrev_b32 v1, 11, v0")
        a("v_mov_b32 v2, 0")
        a("global_load_dword v7, v2, s[4:5]")
        for k in range(4):
            a("global_load_dword v%d, v1, s[4:5] offset:%d", 8 + k, 4 * ia + (0 if wa == -1 else 128 * wb))
            a("global_load_dword v%d, v1, s[4:5] offset:%d", 12 + k, 4 * ib + 128 * wb)
            a("v_add_u32 v1, %d, v1", 64 * 2048)
        a("s_waitcnt vmcnt(0)")
        for k in range(8): a("v_sub_u32 v%d, v%d, v7", 8 + k, 8 + k)
        op = "min" if wa == -1 else "max"
        for k in range(1, 4):
            a("v_%s_i32 v8, v8, v%d", op, 8 + k)
            a("v_max_i32 v12, v12, v%d", 12 + k)
        a("s_nop 1")
        a("v_readlane_b32 s20, v8, 0")
        a("v_readlane_b32 s21, v12, 0")
        for l in range(1, 64):
            a("v_readlane_b32 s22, v8, %d", l)
            a("v_readlane_b32 s23, v12, %d", l)
            a("s_%s_i32 s20, s20, s22", op)
            a("s_max_i32 s21, s21, s23")
        a("s_sub_u32 s8, s21, s20")
    a("s_memrealtime s[10:11]")
    a("s_nop 3")
    a("s_max_u32 s8, s8, %d", off)
    a("s_sub_u32 s8, s8, %d", off)
    a("s_min_u32 s8, s8, 20000")
    a("s_mul_i32 s8, s8, %d", mult)
    a("s_waitcnt lgkmcnt(0)")
    a.label("L_spin")
    a("s_memrealtime s[12:13]")
    a("s_waitcnt lgkmcnt(0)")
    a("s_sub_u32 s14, s12, s10")
    a("s_cmp_lt_u32 s14, s8")
    a("s_cbranch_scc1 L_spin")
    a.label("L_spin_end")
    a("s_endpgm")
    return name, 16, 0

def gen_pre(a):
    name = "pre_kernel"
    kernel_head(a, name)
    PRE = env("PREK", 0)
    if PRE == 2:
        a("s_cmp_ge_u32 s2, 256")
        a("s_cbranch_scc1 L_pre_end")
        a("s_bfe_u32 s22, s2, 0x10002")
        a("s_mul_i32 s30, s22, 24")
        a("s_load_dwordx4 s[4:7], s[0:1], s30")
        a("s_lshr_b32 s30, s2, 3")
        a("s_mul_i32 s30, s30, 320")
        a("v_add_u32 v1, s30, v0")
        a("s_bfe_u32 s23, s2, 0x10001")
        a("s_mul_i32 s23, s23, %d", 1024 * 1280)
        a("v_lshl_add_u32 v2, v1, 7, s23")
        a("v_lshrrev_b32 v3, 4, v1")
        a("v_and_b32 v4, 15, v1")
        a("v_min_u32 v4, 14, v4")
        a("v_mul_u32_u24 v5, 13, v4")
        a("v_lshrrev_b32 v5, 6, v5")
        a("v_mul_u32_u24 v5, 640, v5")
        a("v_lshl_add_u32 v4, v4, 7, v5")
        a("v_mul_u32_u24 v3, 3840, v3")
        a("s_and_b32 s24, s2, 1")
        a("s_mul_i32 s24, s24, 640")
        a("v_add3_u32 v3, v3, v4, s24")
        a("s_waitcnt lgkmcnt(0)")
        a("global_load_dword v6, v2, s[4:5]")
        a("global_load_dword v7, v3, s[6:7]")
        a.label("L_pre_end")
    a("s_endpgm")
    return name, 8, 0

def main(out):
    a = A()
    ks = []
    for g, blk in (((gen_pre, 320),) if env("PREK", 0) else ()) + ((gen_fused, 512),) + (((gen_spin, 64),) if SPIN else ()):
        n, nfv, lds = g(a)
        ks.append((n, nfv, lds, blk))
    hdr = """; Two independent MHA blocks (S=2048, D=640, H=32, Dh=20), concatenated on the last axis; one fused kernel.
"""
    if len(ks) == 1 and not env("LIST", 0):
        hdr += "; @launch grid=(256,1,1) block=(%d,1,1) lds=%d\n" % (ks[0][3], ks[0][2])
    else:
        for n, nfv, lds, blk in ks:
            hdr += "; @launch kernel=%s grid=(256,1,1) block=(%d,1,1) lds=%d\n" % (n, blk, lds)
    s = hdr + '.amdgcn_target "amdgcn-amd-amdhsa--gfx950"\n.text\n' + a.text()
    s += '.section .rodata,"a"\n'
    for n, nfv, lds, blk in ks: s += kd(n, nfv)
    open(out, "w").write(s)

if __name__ == "__main__":
    main(sys.argv[1] if len(sys.argv) > 1 else "cdna_kernels/%s.s" % NAME)
```

```python
import math, struct, sys, os

NAME = "concat_heads__mha_block__softmax_full_mha__prompt"
BLK = 12288
KV_PAIR = 32 * BLK
KV_OFF = 0
OB = 2560
O_OFF = KV_OFF + 32 * KV_PAIR
O_BYTES = 32 * 32 * OB
FS = int(os.environ.get("FS", "8576"))
F1_OFF = O_OFF + 2 * O_BYTES
F2_OFF = F1_OFF + 128 * FS
WS_USED = F2_OFF + 128 * FS
CSCALE = math.log2(math.e) / math.sqrt(20.0)
OOB = 0x40000000
DIAG = int(os.environ.get("DIAG", "0"))
DIAG_OFF = 64 << 20
def env(n, d): return int(os.environ.get(n, str(d)))
NT = env("NT", 0)
SKEW = env("SKEW", 2)
HELP = env("HELP", 1)
SPIN = os.environ.get("SPIN", "")

def f32bits(x): return struct.unpack("<I", struct.pack("<f", x))[0]

class A:
    def __init__(self): self.l = []
    def __call__(self, s, *a): self.l.append("    " + (s % a if a else s))
    def label(self, s): self.l.append(s + ":")
    def raw(self, s): self.l.append(s)
    def c(self, s): self.l.append("    ; " + s)
    def text(self): return "\n".join(self.l) + "\n"

def vr(b, n): return "v[%d:%d]" % (b, b + n - 1) if n > 1 else "v%d" % b
def sr(b, n): return "s[%d:%d]" % (b, b + n - 1) if n > 1 else "s%d" % b

def kernel_head(a, name):
    a.raw(".globl %s" % name); a.raw(".p2align 8"); a.raw(".type %s,@function" % name); a.label(name)

def kd(name, nfv, nsg=102):
    acc = (nfv + 3) // 4 * 4
    return """.p2align 6
.amdhsa_kernel %s
  .amdhsa_next_free_vgpr %d
  .amdhsa_next_free_sgpr %d
  .amdhsa_accum_offset %d
  .amdhsa_group_segment_fixed_size 0
  .amdhsa_kernarg_size 72
  .amdhsa_user_sgpr_count 2
  .amdhsa_user_sgpr_kernarg_segment_ptr 1
  .amdhsa_system_sgpr_workgroup_id_x 1
.end_amdhsa_kernel
""" % (name, nfv, nsg, acc)

class Stamps:
    def __init__(self, a):
        self.a = a
        if DIAG:
            for i in range(62, 100): a("s_mov_b32 s%d, 0", i)
            a("s_memrealtime s[60:61]")
    def g(self, i):
        if DIAG and env("GD", 0): self.a("s_mem%stime s[%d:%d]", "real" if DIAG == 1 else "", 64 + 2 * i, 65 + 2 * i)
    def __call__(self, i, wait=True):
        if not DIAG: return
        if env("GD", 0) and 3 <= i <= 16: return
        if env("AD", 0) and i in (1, 2, 3, 5, 10, 11, 12, 13, 14, 15): return
        if DIAG == 1: self.a("s_memrealtime s[%d:%d]", 64 + 2 * i, 65 + 2 * i)
        else: self.a("s_memtime s[%d:%d]", 64 + 2 * i, 65 + 2 * i)
        if wait: self.a("s_waitcnt lgkmcnt(0)")
    def flush(self, swave):
        if not DIAG: return
        a = self.a
        a("s_mov_b64 exec, -1")
        a("s_waitcnt vmcnt(0)")
        self(17)
        a("s_memrealtime s[62:63]")
        a("s_load_dwordx2 s[56:57], s[0:1], 64")
        a("s_lshl_b32 s58, s2, 4")
        a("s_add_u32 s58, s58, s%d", swave)
        a("s_lshl_b32 s58, s58, 7")
        a("s_add_u32 s58, s58, %d", DIAG_OFF)
        a("v_mov_b32 v1, s58")
        a("s_waitcnt lgkmcnt(0)")
        for i in range(20):
            a("v_mov_b32 v2, s%d", 60 + 2 * i)
            a("global_store_dword v1, v2, s[56:57] offset:%d", 4 * i)
        a("s_waitcnt vmcnt(0)")

def gen_fused(a):
    name = NAME + "_kernel"
    kernel_head(a, name)
    WS, XS, WSRD = 8, 12, 16
    sNon = 20
    sB, sTB, sHP, sHH, sW, sE, sKH, sQH = 22, 23, 24, 25, 26, 27, 28, 29
    sT, sT2, sT3 = 30, 31, 32
    sXoff, sWoff, sM0x, sM0w, sIt, sDX, sDW, sSlot, sSx, sSw = 33, 34, 35, 36, 37, 38, 39, 40, 41, 42
    sNxt, sNxt1, sCh, sR, sTmo, sCur = 33, 34, 35, 36, 38, 39
    sDbg = 44
    sC, sC2 = 46, 48
    sKV, sPub, sF1, sO, sF2, sMsk = 50, 51, 52, 53, 54, 55
    sOc, sPend, sTrig = 40, 41, 43
    sLd, sGx = 3, 34
    sGo, sLo, sGs, sLs, sGd = 36, 37, 42, 44, 45
    WO, OUT = WSRD, XS
    ACC2, WF, OF = 16, 56, 96
    PART = 176
    vOa, vOb, vWa2, vWa3, vSt, vWb2, vWb3, vFl2 = 8, 9, 10, 11, 0, 2, 13, 14
    ACC3 = 216
    sO2, sP2, sM2 = 36, 37, 42
    srd = sr(WS, 4)
    vLane, vM, vH, vT1, vT2, vT3, vT4 = 1, 2, 3, 4, 5, 6, 7
    vK, vKr, vV, vIdx, vFl, vL16, vOr, vS1 = 8, 9, 10, 11, 12, 13, 14, 15
    vG, vGb, vFo, vAr = 0, 2, 3, 15
    vNon, vTch = 252, 255
    vXg, vWg, vXa, vWa = 80, 84, 86, 88
    vG0, vG1, vL0, vL1, vSc, vOne = 243, 244, 245, 246, 248, 249
    vRk, vRr, vRv = 247, 250, 251
    F, ACC = 16, 92
    Qm, Qr, Km, Kr, V, S, O = 16, 48, 64, 72, 76, 92, 156
    NFV = 256
    WBASE = 98304
    LFLAG, WOB = 0, 1024
    CMB = WOB + 102400
    IMG = 1024

    a("s_cmp_ge_u32 s2, 256")
    a("s_cbranch_scc1 L_end")
    st = Stamps(a)
    a("s_bfe_u32 s%d, s2, 0x10002", sB)
    a("s_mul_i32 s%d, s%d, 24", sT, sB)
    a("s_load_dwordx4 s[4:7], s[0:1], s%d", sT)
    a("v_lshrrev_b32 v%d, 6, v0", vT1)
    a("v_and_b32 v%d, 63, v0", vLane)
    a("v_readfirstlane_b32 s%d, v%d", sW, vT1)
    a("s_bfe_u32 s%d, s2, 0x10001", sTB)
    a("s_lshl_b32 s%d, s%d, 2", sTB, sTB)
    a("s_bfe_u32 s%d, s2, 0x20003", sT)
    a("s_or_b32 s%d, s%d, s%d", sTB, sTB, sT)
    a("s_and_b32 s%d, s2, 1", sHH)
    a("s_lshl_b32 s%d, s%d, 3", sHP, sHH)
    a("s_lshr_b32 s%d, s2, 5", sT)
    a("s_or_b32 s%d, s%d, s%d", sHP, sHP, sT)
    a("s_lshr_b32 s%d, s2, 7", sT)
    a("s_xor_b32 s%d, s%d, s%d", sHP, sHP, sT)
    a("s_and_b32 s%d, s%d, 1", sE, sW)
    a("v_lshrrev_b32 v%d, 3, v0", vT1)
    a("s_mul_i32 s%d, s%d, 24", sT, sW)
    a("v_add_u32 v%d, s%d, v%d", vT1, sT, vT1)
    a("v_mul_u32_u24 v%d, 1280, v%d", vT1, vT1)
    a("v_lshrrev_b32 v%d, 4, v%d", vT4, vLane)
    a("v_and_b32 v%d, 7, v%d", vT3, vLane)
    a("v_xor_b32 v%d, v%d, v%d", vT2, vT4, vT3)
    a("v_xor_b32 v%d, 4, v%d", vT3, vT2)
    a("v_lshl_add_u32 v%d, v%d, 4, v%d", vXg + 0, vT2, vT1)
    a("v_lshl_add_u32 v%d, v%d, 4, v%d", vXg + 1, vT3, vT1)
    a("v_add_u32 v%d, %d, v%d", vXg + 1, 8 * 1280 - 1024, vXg + 1)
    a("v_add_u32 v%d, %d, v%d", vXg + 2, 16 * 1280 - 2048, vXg + 0)
    a("v_add_u32 v%d, %d, v%d", vXg + 3, 16 * 1280 - 2048, vXg + 1)
    wmark = len(a.l)
    a("s_load_dwordx2 s[%d:%d], s[0:1], 64", WS, WS + 1)
    a("s_load_dwordx2 s[%d:%d], s[0:1], 56", sDbg, sDbg + 1)
    a("s_mul_i32 s%d, s%d, 24", sT, sB)
    a("s_add_u32 s%d, s%d, 16", sT, sT)
    a("s_load_dwordx2 s[56:57], s[0:1], s%d", sT)
    a("s_load_dwordx2 s[58:59], s[0:1], 48")
    a("s_memrealtime s[%d:%d]", sNon, sNon + 1)
    if env("CODEPF", 2) & 2:
        a.label("L_pfbase0")
        a("s_getpc_b64 s[%d:%d]", sC2, sC2 + 1)
        a("s_and_b32 s%d, s2, -8", sT)
        a("s_add_u32 s%d, s%d, s%d", sT, sT, sW)
        a("s_lshl_b32 s%d, s%d, 7", sT, sT)
        a("s_min_u32 s%d, s%d, %s", sT, sT, "L_code_end-L_pfbase0-8")
        a("v_mov_b32 v254, s%d", sT)
        a("global_load_dword v254, v254, s[%d:%d]", sC2, sC2 + 1)
    TAB = [0, 3, 1, 4, 5, 8, 6, 9, 2, 7, 10, 11, 13, 14, 12, 15]
    tab = sum(v << (4 * i) for i, v in enumerate(TAB))
    a("s_lshl_b32 s%d, s%d, 3", sT, sE)
    a("v_lshl_add_u32 v%d, v%d, 1, s%d", vT2, vT4, sT)
    a("v_and_b32 v%d, 15, v%d", vM, vLane)
    a("v_xor_b32 v%d, v%d, v%d", vT2, vT2, vM)
    a("v_lshlrev_b32 v%d, 2, v%d", vT2, vT2)
    a("s_mov_b32 s%d, 0x%x", sC, tab & 0xffffffff)
    a("s_mov_b32 s%d, 0x%x", sC + 1, tab >> 32)
    a("v_lshrrev_b64 v[16:17], v%d, s[%d:%d]", vT2, sC, sC + 1)
    a("v_and_b32 v%d, 15, v16", vT2)
    a("s_lshl_b32 s%d, s%d, 3", sT, sW)
    a("v_add_u32 v%d, s%d, v%d", vT1, sT, vT4)
    a("v_mul_u32_u24 v%d, 3840, v%d", vT1, vT1)
    a("v_mul_u32_u24 v%d, 13, v%d", vT3, vT2)
    a("v_lshrrev_b32 v%d, 6, v%d", vT3, vT3)
    a("v_mul_u32_u24 v%d, %d, v%d", vT3, 1280 - 80, vT3)
    a("v_cmp_eq_u32 vcc, 15, v%d", vT2)
    a("v_lshl_add_u32 v%d, v%d, 4, v%d", vT2, vT2, vT3)
    a("v_mov_b32 v%d, 0x%x", vS1, OOB)
    if HELP:
        a("s_and_b32 s%d, s%d, 7", sT, sHP)
        a("s_mov_b32 s%d, 0x%x", sT2, OOB)
        for hp, sec in ((0, 0), (2, 1), (5, 2)):
            a("s_cmp_eq_u32 s%d, %d", sT, hp)
            a("s_cselect_b32 s%d, %d, s%d", sT2, sec * 1280 + 256 - 80 * hp + (HELP - 1) * 64 * 3840, sT2)
        a("s_bfe_u32 s%d, s%d, 0x10001", sT, sTB)
        a("v_lshrrev_b32 v%d, 1, v%d", vT3, vT4)
        a("v_cmp_eq_u32 s[%d:%d], s%d, v%d", sC, sC + 1, sT, vT3)
        a("v_mov_b32 v%d, s%d", vT3, sT2)
        a("s_nop 0")
        a("v_cndmask_b32 v%d, v%d, v%d, s[%d:%d]", vT3, vS1, vT3, sC, sC + 1)
        a("v_cndmask_b32 v%d, v%d, v%d, vcc", vT2, vT2, vT3)
    else:
        a("v_cndmask_b32 v%d, v%d, v%d, vcc", vT2, vT2, vS1)
    a("v_add_u32 v%d, v%d, v%d", vWg + 0, vT1, vT2)
    a("v_add_u32 v%d, %d, v%d", vWg + 1, 4 * 3840 - 1024, vWg + 0)
    a("s_lshl_b32 s%d, s%d, 11", sM0w, sW)
    a("s_add_u32 s%d, s%d, %d", sM0w, sM0w, WBASE)
    a("s_mov_b32 s%d, 0x20000", WSRD + 3)
    a("s_mul_i32 s%d, s%d, 80", sT2, sHP)
    a("s_sub_u32 s%d, %d, s%d", WSRD + 2, 640 * 3840, sT2)
    a("s_add_u32 s%d, s6, s%d", WSRD, sT2)
    a("s_addc_u32 s%d, s7, 0", WSRD + 1)
    wblk = []
    if True:
        wblk = a.l[wmark:]; del a.l[wmark:]
    a("s_lshr_b32 s%d, s%d, 1", sT, sW)
    a("s_mul_i32 s%d, s%d, 24576", sM0x, sT)
    a("s_lshl_b32 s%d, s%d, 12", sT, sE)
    a("s_add_u32 s%d, s%d, s%d", sM0x, sM0x, sT)
    a("s_mov_b32 s%d, %d", XS + 2, 256 * 1280)
    a("s_mov_b32 s%d, 0x20000", XS + 3)
    if SKEW:
        a("s_xor_b32 s%d, s%d, s%d", sT, sTB, sHP)
        a("s_and_b32 s%d, s%d, 1", sT, sT)
        a("s_mul_i32 s%d, s%d, 5", sT, sT)
        if SKEW > 1:
            a("s_lshr_b32 s%d, s2, 1", sT2)
            a("s_xor_b32 s%d, s%d, s2", sT2, sT2)
            a("s_and_b32 s%d, s%d, 1", sT2, sT2)
            a("s_mul_i32 s%d, s%d, %d", sT2, sT2, SKEW)
            a("s_add_u32 s%d, s%d, s%d", sT, sT, sT2)
        XS1 = env("XS1", 0)
        if XS1:
            a("s_lshr_b32 s%d, s2, 2", sT2)
            a("s_xor_b32 s%d, s%d, s2", sT2, sT2)
            a("s_bfe_u32 s%d, s%d, 0x10004", sT2, sT2)
            if XS1 == 2:
                a("s_bfe_u32 s%d, s2, 0x10005", sC)
                a("s_andn2_b32 s%d, s%d, s%d", sT2, sT2, sC)
            a("s_add_u32 s%d, s%d, s%d", sT, sT, sT2)
        FOL = env("FOL", 1)
        if FOL:
            a("s_bfe_u32 s%d, s2, 0x10005", sT2)
            a("s_mul_i32 s%d, s%d, %d", sT2, sT2, 10 - FOL)
            a("s_add_u32 s%d, s%d, s%d", sT, sT, sT2)
            a("s_cmp_ge_u32 s%d, 10", sT)
            a("s_cselect_b32 s%d, 10, 0", sT2)
            a("s_sub_u32 s%d, s%d, s%d", sT, sT, sT2)
        a("s_lshl_b32 s%d, s%d, 7", sXoff, sT)
        a("s_mul_i32 s%d, s%d, %d", sWoff, sT, 64 * 3840)
    else:
        a("s_mov_b32 s%d, 0", sXoff)
        a("s_mov_b32 s%d, 0", sWoff)
    a("s_mul_i32 s%d, s%d, %d", sT, sTB, 256 * 1280)
    a("s_waitcnt lgkmcnt(0)")
    a("s_add_u32 s%d, s4, s%d", XS, sT)
    a("s_addc_u32 s%d, s5, 0", XS + 1)

    ntx = " nt" if NT & 1 else ""
    ntw = " nt" if NT & 2 else ""
    def dma_ops(slot_x, slot_w):
        ops = []
        def x(i):
            if i == 0:
                a("s_add_u32 m0, s%d, %s", sM0x, slot_x); a("s_nop 0")
            a("buffer_load_dwordx4 v%d, %s, s%d offen offset:%d%s lds", vXg + i, sr(XS, 4), sXoff, 1024 * i, ntx)
        def w(i):
            if i == 0:
                a("s_add_u32 m0, s%d, %s", sM0w, slot_w)
                a("s_add_u32 s%d, s%d, %d", sXoff, sXoff, 0 if env("NOADV", 0) & 1 else 128)
            a("buffer_load_dwordx4 v%d, %s, s%d offen offset:%d%s lds", vWg + i, sr(WSRD, 4), sWoff, 1024 * i, ntw)
            if i == 1:
                a("s_add_u32 s%d, s%d, %d", sWoff, sWoff, 0 if env("NOADV", 0) & 2 else 64 * 3840)
                if SKEW:
                    a("s_cmp_eq_u32 s%d, 1280", sXoff)
                    a("s_cselect_b32 s%d, 0, s%d", sXoff, sXoff)
                    a("s_cselect_b32 s%d, 0, s%d", sWoff, sWoff)
        for i in range(4): ops.append(lambda i=i: x(i))
        for i in range(2): ops.append(lambda i=i: w(i))
        return ops
    for i, op in enumerate(dma_ops("0", "0")):
        if i == 4: a.l += wblk
        op()
    a("s_bfe_u32 s%d, s%d, 0x10001", sKH, sW)
    a("s_lshr_b32 s%d, s%d, 2", sQH, sW)
    a("s_mov_b32 s%d, %d", WS + 2, WS_USED)
    a("s_mov_b32 s%d, 0x20000", WS + 3)
    a("s_and_b32 s%d, s%d, 3", sT3, sW)
    a("v_lshrrev_b32 v%d, 1, v%d", vT1, vM)
    a("v_xor_b32 v%d, v%d, v%d", vT1, vT1, vT4)
    a("s_mul_i32 s%d, s%d, 24576", sT, sT3)
    a("v_lshl_add_u32 v%d, v%d, 7, s%d", vT2, vM, sT)
    a("v_lshl_add_u32 v%d, v%d, 4, v%d", vXa, vT1, vT2)
    a("v_xor_b32 v%d, 64, v%d", vXa + 1, vXa)
    a("v_bfe_u32 v%d, v%d, 2, 2", vT1, vLane)
    a("v_lshl_add_u32 v%d, v%d, 3, v%d", vT2, vT4, vT1)
    a("v_lshlrev_b32 v%d, 8, v%d", vT2, vT2)
    a("v_and_b32 v%d, 3, v%d", vT3, vLane)
    a("v_lshl_add_u32 v%d, v%d, 3, v%d", vT2, vT3, vT2)
    a("v_add_u32 v%d, %d, v%d", vT2, WBASE, vT2)
    a("v_bfe_u32 v%d, v%d, 2, 3", vT1, vLane)
    a("s_lshl_b32 s%d, s%d, 2", sT, sQH)
    a("v_xor_b32 v%d, s%d, v%d", vT1, sT, vT1)
    a("v_lshl_add_u32 v%d, v%d, 5, v%d", vWa, vT1, vT2)
    for xt in range(1, 4): a("v_xor_b32 v%d, %d, v%d", vWa + xt, 32 * xt, vWa)
    mark = len(a.l)
    a("v_lshlrev_b32 v%d, 4, v%d", vL16, vLane)
    a("s_lshl_b32 s%d, s%d, 14", sT, sT3)
    a("s_add_u32 s%d, s%d, %d", sT, sT, IMG)
    a("v_add_u32 v%d, s%d, v%d", vL0, sT, vL16)
    a("v_cmp_lt_u32 vcc, 1, v%d", vT4)
    a("v_lshlrev_b32 v%d, 3, v%d", vT1, vLane)
    a("v_add_u32 v%d, 4096, v%d", vT1, vT1)
    a("v_mov_b32 v%d, 0x%x", vT2, f32bits(CSCALE))
    a("v_cndmask_b32 v%d, v%d, v%d, vcc", vG0, vS1, vT1)
    a("v_cndmask_b32 v%d, v%d, 1.0, vcc", vSc, vT2)
    a("v_and_b32 v%d, 4, v%d", vT1, vM)
    a("v_and_b32 v%d, 8, v%d", vT2, vM)
    a("v_lshlrev_b32 v%d, 5, v%d", vT1, vT1)
    a("v_lshl_add_u32 v%d, v%d, 3, v%d", vT1, vT2, vT1)
    a("v_and_b32 v%d, 0x330, v%d", vT2, vL16)
    a("v_add_u32 v%d, v%d, v%d", vT1, vT1, vT2)
    a("v_add_u32 v%d, 6144, v%d", vG1, vT1)
    a("v_add_u32 v%d, s%d, v%d", vL1, sT, vG1)
    if not env("PEEL", 1):
        for i in range(64): a("v_mov_b32 v%d, 0", ACC + i)
    a("v_and_b32 v%d, 11, v%d", vT1, vM)
    a("v_cmp_eq_u32 vcc, 8, v%d", vT1)
    a("v_mov_b32 v%d, 0x3f803f80", vT1)
    a("v_and_b32 v%d, 31, v0", vM)
    a("v_cndmask_b32 v%d, 0, v%d, vcc", vOne, vT1)
    a("v_bfe_u32 v%d, v0, 5, 1", vH)
    for i in range(O, 243): a("v_mov_b32 v%d, 0", i)
    a("v_mov_b32 v%d, 0xdddddddd", vIdx)
    a("v_and_b32 v%d, 4, v%d", vT1, vM)
    a("v_lshlrev_b32 v%d, 8, v%d", vT1, vT1)
    a("v_and_b32 v%d, 24, v%d", vT2, vM)
    a("v_lshl_add_u32 v%d, v%d, 3, v%d", vT1, vT2, vT1)
    a("v_and_b32 v%d, 3, v%d", vT2, vM)
    a("v_lshl_add_u32 v%d, v%d, 4, v%d", vT1, vT2, vT1)
    a("s_lshl_b32 s%d, s%d, 9", sT, sQH)
    a("v_lshl_add_u32 v%d, v%d, 8, s%d", vT2, vH, sT)
    a("v_add_u32 v%d, v%d, v%d", vK, vT1, vT2)
    a("s_lshl_b32 s%d, s%d, 14", sC, sT3)
    a("v_add_u32 v%d, s%d, v%d", vRk, sC, vK)
    a("s_lshl_b32 s%d, s%d, 8", sT, sQH)
    a("s_add_u32 s%d, s%d, s%d", sT, sT, sC)
    a("v_add_u32 v%d, s%d, v%d", vRr, sT, vT1)
    a("s_lshl_b32 s%d, s%d, 7", sT, sQH)
    a("s_add_u32 s%d, s%d, %d", sT, sT, 4096 + 256)
    a("v_lshrrev_b32 v%d, 1, v%d", vT1, vT1)
    a("v_cmp_eq_u32 vcc, 0, v%d", vH)
    a("v_add_u32 v%d, s%d, v%d", vT1, sT, vT1)
    a("v_add_u32 v%d, 2048, v%d", vT3, vL16)
    a("v_cndmask_b32 v%d, v%d, v%d, vcc", vKr, vS1, vT1)
    a("v_cndmask_b32 v%d, v%d, v%d, vcc", vOr, vS1, vT3)
    a("v_lshlrev_b32 v%d, 3, v%d", vT2, vLane)
    a("v_lshl_or_b32 v%d, v%d, 29, v%d", vFl, vT4, vT2)
    a("v_min_u32 v%d, 21, v%d", vT1, vM)
    a("v_lshlrev_b32 v%d, 4, v%d", vT1, vT1)
    a("v_lshl_add_u32 v%d, v%d, 8, v%d", vT1, vH, vT1)
    a("s_lshl_b32 s%d, s%d, 10", sT, sQH)
    a("s_add_u32 s%d, s%d, 6144", sT, sT)
    a("s_lshl_b32 s%d, s%d, 7", sT2, sQH)
    a("s_add_u32 s%d, s%d, %d", sT2, sT2, 6144 + 2048 - 256)
    a("v_cmp_gt_u32 vcc, 16, v%d", vM)
    a("v_add_u32 v%d, s%d, v%d", vT2, sT, vT1)
    a("v_add_u32 v%d, s%d, v%d", vT3, sT2, vT1)
    a("v_cndmask_b32 v%d, v%d, v%d, vcc", vT1, vT3, vT2)
    a("v_cmp_gt_u32 vcc, 21, v%d", vM)
    a("v_add_u32 v%d, s%d, v%d", vRv, sC, vT1)
    a("s_lshl_b32 s%d, s%d, 2", sT, sTB)
    a("v_cndmask_b32 v%d, v%d, v%d, vcc", vV, vS1, vT1)
    a("s_add_u32 s%d, s%d, s%d", sT, sT, sT3)
    a("s_lshl_b32 s%d, s%d, 5", sC, sB)
    a("s_add_u32 s%d, s%d, s%d", sT2, sT, sC)
    a("s_lshl_b32 s%d, s%d, 1", sT2, sT2)
    a("s_add_u32 s%d, s%d, s%d", sT2, sT2, sQH)
    a("s_lshl_b32 s%d, s%d, 4", sO, sT2)
    a("s_add_u32 s%d, s%d, s%d", sO, sO, sHP)
    a("s_mul_i32 s%d, s%d, %d", sT2, sT2, FS)
    a("s_lshl_b32 s%d, s%d, 3", sF2, sHP)
    a("s_add_u32 s%d, s%d, s%d", sT2, sT2, sF2)
    a("s_add_u32 s%d, s%d, %d", sF2, sT2, F2_OFF)
    a("s_mul_i32 s%d, s%d, %d", sO, sO, OB)
    a("s_add_u32 s%d, s%d, %d", sO, sO, O_OFF)
    a("s_lshl_b32 s%d, s%d, 4", sC, sB)
    a("s_add_u32 s%d, s%d, s%d", sC, sC, sHP)
    a("s_mul_i32 s%d, s%d, %d", sKV, sC, KV_PAIR)
    a("s_mul_i32 s%d, s%d, %d", sPub, sT, BLK)
    a("s_add_u32 s%d, s%d, s%d", sPub, sPub, sKV)
    a("s_mul_i32 s%d, s%d, %d", sT2, sT3, BLK)
    a("s_add_u32 s%d, s%d, s%d", sKV, sKV, sT2)
    a("s_lshl_b32 s%d, s%d, 2", sC, sC)
    a("s_add_u32 s%d, s%d, s%d", sC, sC, sT3)
    a("s_mul_i32 s%d, s%d, %d", sC, sC, FS)
    a("s_add_u32 s%d, s%d, %d", sF1, sC, F1_OFF)
    a("s_and_b32 s%d, s%d, 4", sT, sTB)
    a("s_lshl_b32 s%d, s%d, 1", sT, sT)
    a("s_lshl_b32 s%d, 0xff, s%d", sMsk, sT)
    a("s_mul_i32 s%d, s%d, 12288", sT, sT3)
    a("s_add_u32 s%d, s%d, %d", sT, sT, CMB)
    a("v_add_u32 v%d, s%d, v%d", vAr, sT, vL16)
    a("s_lshl_b32 s%d, s%d, 5", sT, sW)
    a("v_mov_b32 v%d, s%d", vFo, sT)
    a("s_cmp_ge_u32 s%d, 5", sW)
    a("s_cselect_b64 vcc, -1, 0")
    a("s_cselect_b32 s%d, 1, 0", sT2)
    a("s_lshl_b32 s%d, s%d, s%d", sT, sW, sT2)
    a("s_mul_i32 s%d, s%d, 10", sC, sT2)
    a("s_sub_u32 s%d, s%d, s%d", sT, sT, sC)
    a("s_add_u32 s%d, s%d, s%d", sT2, sT2, sT)
    a("s_min_u32 s%d, s%d, 4", sT2, sT2)
    for dst, sp in ((vG, sT), (vGb, sT2)):
        a("s_lshl_b32 s%d, s%d, 6", sC, sp)
        a("v_add_u32 v%d, s%d, v%d", vT1, sC, vLane)
        a("v_mul_u32_u24 v%d, 6554, v%d", vT2, vT1)
        a("v_lshrrev_b32 v%d, 16, v%d", vT2, vT2)
        a("v_mul_u32_u24 v%d, 10, v%d", vT3, vT2)
        a("v_sub_u32 v%d, v%d, v%d", dst, vT1, vT3)
        a("v_and_b32 v%d, 4, v%d", vT1, vT2)
        a("v_lshlrev_b32 v%d, 1, v%d", vT1, vT1)
        a("v_and_b32 v%d, 8, v%d", vT3, vT2)
        a("v_lshrrev_b32 v%d, 1, v%d", vT3, vT3)
        a("v_and_b32 v%d, 0x13, v%d", vT2, vT2)
        a("v_or3_b32 v%d, v%d, v%d, v%d", vT1, vT1, vT2, vT3)
        a("v_lshrrev_b32 v%d, 4, v%d", vT2, vT1)
        a("v_mul_u32_u24 v%d, 24, v%d", vT2, vT2)
        a("v_and_b32 v%d, 28, v%d", vT3, vT1)
        a("v_mad_u32_u24 v%d, v%d, 9, 16", vT3, vT3)
        a("v_cndmask_b32 v%d, v%d, v%d, vcc", vT2, vT2, vT3)
        a("v_add_u32 v%d, v%d, v%d", vT1, vT1, vT2)
        a("v_mul_u32_u24 v%d, 1280, v%d", vT1, vT1)
        a("v_lshl_add_u32 v%d, v%d, 4, v%d", dst, dst, vT1)

    SPLIT = env("SPLIT", 10000) if env("PEEL", 1) else 10000
    part2 = a.l[mark + SPLIT:]
    del a.l[mark + SPLIT:]
    a("s_waitcnt lgkmcnt(0)")
    a("s_barrier")
    a("s_or_b32 s%d, s2, s%d", sDX, sW)
    a("s_cbranch_scc1 L_nononce")
    a("s_or_b32 s%d, s%d, 0x80000000", sNon + 1, sNon + 1)
    a("v_mov_b32 v%d, s%d", vNon, sNon)
    a("v_mov_b32 v%d, s%d", vNon + 1, sNon + 1)
    a("v_mov_b32 v%d, 0", 255)
    a("global_store_dwordx2 v%d, %s, s[%d:%d] sc0 sc1", 255, vr(vNon, 2), sDbg, sDbg + 1)
    a.label("L_nononce")
    d1 = dma_ops("8192", "16384")
    for _ in range(env("D1PRE", 4)): d1.pop(0)()
    PEEL = env("PEEL", 1)
    D1PRE = env("D1PRE", 4)
    if not PEEL:
        for op in d1: op()
    CODEPF = env("CODEPF", 2) & 1
    if CODEPF:
        a.label("L_pfbase")
        a("s_getpc_b64 s[%d:%d]", sC2, sC2 + 1)
        a("v_min_u32 v%d, 21, v%d", 255, vLane)
        a("v_lshlrev_b32 v%d, 7, v%d", 255, 255)
        a("s_mul_i32 s%d, s%d, 2816", sDX, sW)
        a("v_add_u32 v%d, s%d, v%d", 255, sDX, 255)
        a("v_min_u32 v%d, %s, v%d", 255, "L_code_end-L_pfbase-8", 255)
        a("global_load_dword v255, v%d, s[%d:%d]", 255, sC2, sC2 + 1)
    def read_ops(fb, ks):
        f = F + 32 * fb
        ops = []
        for t in range(4):
            ops.append(lambda t=t: a("ds_read_b128 %s, v%d offset:%d", vr(f + 4 * t, 4), vXa + ks, t * 2048))
            for q in range(2):
                ops.append(lambda t=t, q=q: a("ds_read_b64_tr_b16 %s, v%d offset:%d", vr(f + 16 + 4 * t + 2 * q, 2), vWa + t, ks * 8192 + q * 1024))
        return ops
    def reads(fb, ks):
        for op in read_ops(fb, ks): op()
    extra = []
    RPM = env("RPM", 1)
    def mfs(fb, isB, rd, dm, misc, zero=False):
        f = F + 32 * fb
        ABL = env("ABL", 0)
        if ABL & 1: f = F; rd = []
        if ABL & 2: dm = []
        if ABL & 4: rd = rd[:9]
        n = 0
        for (xt, t) in sorted([(x, y) for x in range(4) for y in range(4)], key=lambda p: (max(p), p)):
            d = ACC + 16 * xt + 4 * t
            x, w = vr(f + 4 * t, 4), vr(f + 16 + 4 * xt, 4)
            c = "0" if zero else vr(d, 4)
            if ABL & 16 and not zero: pass
            elif isB and xt > 0: a("v_mfma_f32_16x16x32_bf16 %s, %s, %s, %s", vr(d, 4), x, w, c)
            else:              a("v_mfma_f32_16x16x32_bf16 %s, %s, %s, %s", vr(d, 4), w, x, c)
            n += 1
            DP = env("DP", 3)
            if DP and dm and n % DP == env("DO", 1) and not zero: dm.pop(0)()
            if rd:
                for _ in range(RPM):
                    if rd: rd.pop(0)()
            elif dm and n % 3 == 1: dm.pop(0)()
            elif misc:
                for _ in range(3):
                    if misc: misc.pop(0)()
        for op in rd + dm + misc: op()
    SH = env("SH", 5)
    def stage(kind, isB, ops):
        XE = env("XE", 3)
        if SH: ops = dma_ops("s%d" % sSx, "s%d" % sSw)[(0 if extra else XE):SH] if kind <= 0 else []
        if SH and extra: ops = [extra.pop(0) for _ in range(len(extra))] + ops
        if kind == 1:
            a("v_mov_b32 v%d, 0", vT1)
            a("global_load_dwordx2 %s, v%d, s[%d:%d] sc0 sc1", vr(vNon, 2), vT1, sDbg, sDbg + 1)
        misc = []
        if kind < 2:
            misc = [lambda: (a("s_cmp_eq_u32 s%d, 2", sSlot), a("s_cselect_b32 s%d, -2, 1", sDX)),
                    lambda: a("s_lshl_b32 s%d, s%d, 14", sDW, sDX),
                    lambda: a("s_lshl_b32 s%d, s%d, 13", sT, sDX)]
            misc += [lambda ks=ks: a("v_add_u32 v%d, s%d, v%d", vXa + ks, sT, vXa + ks) for ks in range(2)]
            misc += [lambda ft=ft: a("v_add_u32 v%d, s%d, v%d", vWa + ft, sDW, vWa + ft) for ft in range(4)]
        if kind == 2:
            misc = [lambda: a("v_readfirstlane_b32 s%d, v%d", sNon + 1, vNon + 1),
                    lambda: a("v_readfirstlane_b32 s%d, v%d", sNon, vNon),
                    lambda: a("s_add_u32 s%d, s%d, 3072", sT2, sPub),
                    lambda: a("s_mov_b32 s%d, 0x%x", sC, 0xff00ff00 if isB else f32bits(CSCALE)),
                    lambda: a("s_mov_b32 s%d, s%d", sC + 1, sC),
                    lambda: (a("s_cmp_eq_u32 s%d, 0", sNon + 1), a("s_cbranch_scc1 L_nonce%d", isB), a.label("L_nonce_ok%d" % isB))]
        a("s_waitcnt lgkmcnt(0)")
        mfs(0, isB, read_ops(1, 1), ops, misc)
        nops, rd, misc = [], [], []
        if kind < 2:
            if kind == 0 and not SH:
                a("s_lshl_b32 s%d, s%d, 13", sSx, sSlot)
                a("s_lshl_b32 s%d, s%d, 14", sSw, sSlot)
            a("s_waitcnt vmcnt(%d) lgkmcnt(0)", 0 if kind == 1 else (SH if SH else 6))
            a("s_barrier")
            rd = read_ops(0, 0)
            misc = [lambda: a("s_add_u32 s%d, s%d, s%d", sSlot, sSlot, sDX)]
            if SH and kind <= 0:
                nops = dma_ops("s%d" % sSx, "s%d" % sSw)[SH:]
                nops.append(lambda: (a("s_lshl_b32 s%d, s%d, 13", sSx, sSlot), a("s_lshl_b32 s%d, s%d, 14", sSw, sSlot), a("s_add_u32 s%d, s%d, s%d", sSlot, sSlot, sDX)))
                if kind == 0 and XE:
                    bk = nops.pop(); nx = dma_ops("s%d" % sSx, "s%d" % sSw)[:XE]
                    nops += [lambda: (bk(), nx[0]())] + nx[1:]
                misc = [lambda: a("s_add_u32 s%d, s%d, 1", sIt, sIt)]
            elif kind == 0:
                nops = dma_ops("s%d" % sSx, "s%d" % sSw)[:3]
                misc += [lambda: a("s_add_u32 s%d, s%d, 1", sIt, sIt)]
            if kind == 1:
                I = lambda f, *x: (lambda: a(f, *x))
                misc += [I("s_and_b32 s%d, s2, -8", sT2), I("s_add_u32 s%d, s%d, s%d", sT2, sT2, sW), I("s_mul_i32 s%d, s%d, %d", sT2, sT2, 25 * 128),
                         I("v_min_u32 v255, 24, v%d", vLane), I("v_lshl_add_u32 v255, v255, 7, s%d", sT2),
                         I("s_lshl_b32 s%d, s%d, 1", sT2, sTB), I("s_add_u32 s%d, s%d, s%d", sT2, sT2, sQH), I("s_lshl_b32 s%d, s%d, 3", sT2, sT2),
                         I("s_add_u32 s%d, s%d, s%d", sTrig, sT2, sF1),
                         I("s_and_b32 s%d, s%d, 7", sT3, sHP), I("s_mul_i32 s%d, s%d, 160", sT3, sT3), I("s_sub_u32 s%d, %d, s%d", WO + 2, 640 * 1280, sT3),
                         lambda: (a("s_add_u32 s%d, s56, s%d", WO, sT3), a("s_addc_u32 s%d, s57, 0", WO + 1)),
                         I("s_mov_b32 s%d, %d", OUT + 2, 2048 * 2560), I("s_mov_b64 s[%d:%d], s[58:59]", OUT, OUT + 1)]
        else:
            a("s_waitcnt lgkmcnt(0)")
            a("s_barrier")
            return
        mfs(1, isB, rd, nops, misc)
    if env("IDLE0", 0): a("s_sleep %d", env("IDLE0", 0))
    st(0)
    a("s_waitcnt vmcnt(%d)", (D1PRE if PEEL else 6) + (1 if CODEPF else 0))
    st(1)
    a("s_barrier")
    reads(0, 0)
    if not PEEL:
        a("s_mov_b32 s%d, %d", sSx, 2 * 8192)
        a("s_mov_b32 s%d, %d", sSw, 2 * 16384)
        d2 = dma_ops("s%d" % sSx, "s%d" % sSw)
        for i in range(3): d2.pop(0)()
    if PEEL:
        a("s_cmp_eq_u32 s%d, 0", sQH)
        a("s_cbranch_scc0 L_st0B")
        for isB in (False, True):
            if isB: a.label("L_st0B")
            a("s_waitcnt lgkmcnt(0)")
            D2A, D2B = env("D2A", 0), env("D2B", 0)
            dd = dma_ops("16384", "32768")
            mfs(0, isB, read_ops(1, 1), dma_ops("8192", "16384")[D1PRE:] + dd[:D2A], [], True)
            a("s_waitcnt lgkmcnt(0)")
            misc = [lambda ks=ks: a("v_add_u32 v%d, 8192, v%d", vXa + ks, vXa + ks) for ks in range(2)]
            misc += [lambda ft=ft: a("v_add_u32 v%d, 16384, v%d", vWa + ft, vWa + ft) for ft in range(4)]
            mfs(1, isB, [], dd[D2A:D2A + D2B], misc)
            if not isB: a("s_branch L_st0done")
        a.label("L_st0done")
        d2 = dma_ops("16384", "32768")[D2A + D2B:]
        a.l += part2
        ND2 = env("ND2", 4) if SH else 6
        for op in d2[:ND2 - D2A - D2B]: op()
        a("s_mov_b32 s%d, 1", sSlot)
        a("s_mov_b32 s%d, 1", sIt)
        a("s_mov_b32 s%d, 0", sSx)
        a("s_mov_b32 s%d, 0", sSw)
        st.g(3)
        a("s_waitcnt vmcnt(%d)", ND2)
        a("s_barrier")
        st.g(4)
        reads(0, 0)
    a("s_cmp_eq_u32 s%d, 0", sQH)
    a("s_cbranch_scc0 L_gemmB0")
    CV = F
    for isB in (False, True):
        L = "L_gemmB" if isB else "L_gemmA"
        a.label(L + "0")
        if SH: extra += dma_ops("16384", "32768")[ND2:]
        if PEEL: stage(0, isB, dma_ops("0", "0"))
        a.label(L)
        if DIAG and env("GD", 0):
            for k in range(5):
                st.g(5 + k)
                stage(0, isB, dma_ops("s%d" % sSx, "s%d" % sSw)[3:])
        else:
            stage(0, isB, dma_ops("s%d" % sSx, "s%d" % sSw)[3:])
            a("s_cmp_lt_u32 s%d, 7", sIt)
            a("s_cbranch_scc1 %s", L)
        st.g(10)
        stage(-1, isB, dma_ops("s%d" % sSx, "s%d" % sSw)[3:])
        st.g(11)
        stage(1, isB, [])
        st.g(12)
        stage(2, isB, [])
        st(2, False)
        def cvt(dst, src):
            return ["v_cvt_pk_bf16_f32 v%d, v%d, v%d" % (dst, src, src + 1), "v_cvt_pk_bf16_f32 v%d, v%d, v%d" % (dst + 1, src + 2, src + 3)]
        units, late, pre = [], [], []
        if not isB:
            for t in range(4):
                o = CV + 4 * t
                units.append(([(2, t), (3, t)], cvt(o, ACC + 32 + 4 * t) + cvt(o + 2, ACC + 48 + 4 * t) +
                              ["ds_write_b128 v%d, %s offset:%d" % (vL0, vr(o, 4), t * 1024)]))
                stx = "buffer_store_dwordx4 %s, v%d, %s, s%d offen offset:%d sc1" % (vr(o, 4), vL16, srd, sPub, t * 1024)
                if env("AEARLY", 1): units[-1][1].append(stx)
                else: pre.append(stx)
            for t in range(4):
                o = CV + 16 + 4 * t
                ins = ["v_pk_mul_f32 %s, %s, s[%d:%d]" % (vr(ACC + 16 * xt + 4 * t + 2 * h, 2), vr(ACC + 16 * xt + 4 * t + 2 * h, 2), sC, sC + 1) for xt in range(2) for h in range(2)]
                if env("NOPK", 0) & 1: ins = ["v_mul_f32 v%d, s%d, v%d" % (ACC + 16 * xt + 4 * t + h, sC, ACC + 16 * xt + 4 * t + h) for xt in range(2) for h in range(4)]
                units.append(([(0, t), (1, t)], ins + cvt(o, ACC + 4 * t) + cvt(o + 2, ACC + 16 + 4 * t) +
                              ["ds_write_b128 v%d, %s offset:%d" % (vL0, vr(o, 4), 12288 + t * 1024)]))
        else:
            n = 0
            NPRE = env("NPRE", 2)
            for xt in (1, 2, 3):
                for kt in range(2):
                    o = CV + 4 * n; n += 1
                    ins = cvt(o, ACC + 16 * xt + 8 * kt) + cvt(o + 2, ACC + 16 * xt + 8 * kt + 4)
                    if xt == 3: ins += ["v_cndmask_b32 v%d, v%d, v%d, s[%d:%d]" % (o + i, o + i, vOne, sC, sC + 1) for i in range(4)]
                    ins.append("ds_write_b128 v%d, %s offset:%d" % (vL1, vr(o, 4), kt * 3072 + (xt - 1) * 1024))
                    stx = "buffer_store_dwordx4 %s, v%d, %s, s%d offen offset:%d sc1" % (vr(o, 4), vG1, srd, sT2 if kt else sPub, (xt - 1) * 1024)
                    if n <= env("NIN", 0): ins.append(stx)
                    elif n <= NPRE: pre.append(stx)
                    else: late.append(stx)
                    units.append(([(xt, 2 * kt), (xt, 2 * kt + 1)], ins))
            for q in range(2):
                o = CV + 4 * n; n += 1
                ins = ["v_pk_mul_f32 %s, %s, %s op_sel_hi:[1,0]" % (vr(ACC + 4 * t + 2 * h, 2), vr(ACC + 4 * t + 2 * h, 2), vr(vSc, 2)) for t in (q, q + 2) for h in range(2)]
                if env("NOPK", 0) & 1: ins = ["v_mul_f32 v%d, v%d, v%d" % (ACC + 4 * t + h, vSc, ACC + 4 * t + h) for t in (q, q + 2) for h in range(4)]
                ins += cvt(o, ACC + 4 * q) + cvt(o + 2, ACC + 4 * (q + 2)) + ["ds_write_b128 v%d, %s offset:%d" % (vL0, vr(o, 4), 4096 + q * 1024)]
                for kt in range(2): late.append("buffer_store_dwordx2 %s, v%d, %s, s%d offen offset:%d sc1" % (vr(o + 2 * kt, 2), vG0, srd, sPub, (2 * kt + q) * 512))
                units.append(([(0, q), (0, q + 2)], ins))
        f = F + 32
        cnt, done_at, nxt = 0, [], 0
        def emit(x):
            nonlocal cnt
            a(x); cnt += 1
        LAG = env("LAG", 3)
        for u in range(len(units) + LAG):
            if u < len(units):
                for (xt, t) in units[u][0]:
                    d = ACC + 16 * xt + 4 * t
                    x, w = vr(f + 4 * t, 4), vr(f + 16 + 4 * xt, 4)
                    emit("v_mfma_f32_16x16x32_bf16 %s, %s, %s, %s" % ((vr(d, 4), x, w, vr(d, 4)) if isB and xt > 0 else (vr(d, 4), w, x, vr(d, 4))))
                done_at.append(cnt)
                if u == 0: emit("ds_write_b128 v%d, %s offset:%d" % (vFo, vr(O, 4), LFLAG))
            if u >= LAG:
                gap = cnt - done_at[u - LAG]
                if gap < 8:
                    a("s_nop %d", 7 - gap); cnt += 8 - gap
                for x in units[u - LAG][1]: emit(x)
        for x in pre: a(x)
        a("s_setprio %d", 3 if isB else 2)
        for i in range(16): a("v_mov_b32 v%d, 0", Qr + i)
        a("s_waitcnt lgkmcnt(0)")
        st(3)
        a("s_barrier")
        for x in late: a(x)
        if not isB: a("s_branch L_epi_done")
    a.label("L_epi_done")
    if env("IDLE", 0): a("s_sleep %d", env("IDLE", 0))
    def rdK(b): a("ds_read_b128 %s, v%d offset:%d", vr(Km + 4 * b, 4), vRk, IMG + b * 2048)
    def rdV(b):
        for g in range(2): a("ds_read_b128 %s, v%d offset:%d", vr(V + 8 * b + 4 * g, 4), vRv, IMG + b * 3072 + g * 512)
    def rdQ(p):
        r = vRk
        if p != 3:
            r = vT1; a("v_xor_b32 v%d, %d, v%d", r, (p ^ 3) << 14, vRk)
        for j in range(2): a("ds_read_b128 %s, v%d offset:%d", vr(Qm + 8 * p + 4 * j, 4), r, IMG + 12288 + j * 2048)
    rdK(0)
    a("ds_read_b128 %s, v%d offset:%d", vr(Kr, 4), vRr, IMG + 4096 + 512)
    rdQ(0)
    for p in range(3): a("v_xor_b32 v%d, %d, v%d", vT2 + p, (p ^ 3) << 14, vRr)
    a("s_mov_b32 exec_hi, 0")
    for p in range(4): a("ds_read_b128 %s, v%d offset:%d", vr(Qr + 4 * p, 4), vT2 + p if p < 3 else vRr, IMG + 4096)
    a("s_mov_b32 exec_hi, -1")
    rdQ(1); rdV(0)

    def kvop(what, b, sreg, extra=0):
        if env("NOKV", 0) == 1: return
        if what == "k":   a("buffer_load_dwordx4 %s, v%d, %s, s%d offen offset:%d sc1", vr(Km + 4 * b, 4), vK, srd, sreg, 2048 * b)
        elif what == "r": a("buffer_load_dwordx2 %s, v%d, %s, s%d offen offset:%d sc1", vr(Kr + 2 * b, 2), vKr, srd, sreg, 1024 * b)
        else:             a("buffer_load_dwordx4 %s, v%d, %s, s%d offen offset:%d sc1", vr(V + 8 * b + 4 * extra, 4), vV, srd, sreg, 3072 * b + 512 * extra)
    def qk1(j, kb, c="0"): a("v_mfma_f32_32x32x8_bf16 %s, %s, %s, %s", vr(S + 16 * (j % 4), 16), vr(Kr + 2 * kb, 2), vr(Qr + 2 * j, 2), c)
    def qk2(j, kb): a("v_mfma_f32_32x32x16_bf16 %s, %s, %s, %s", vr(S + 16 * (j % 4), 16), vr(Km + 4 * kb, 4), vr(Qm + 4 * j, 4), vr(S + 16 * (j % 4), 16))
    def pv(j, vb, half): a("v_smfmac_f32_32x32x32_bf16 %s, %s, %s, v%d", vr(O + 12 * j, 16), vr(V + 8 * vb + 4 * half, 4), vr(S + 16 * (j % 4) + 8 * half, 8), vIdx)
    def ex(r): a("v_exp_f32 v%d, v%d", r, r)
    def flagop(sreg):
        if env("FSW", 1):
            a("s_mov_b64 exec, 1")
            a("buffer_atomic_swap_x2 %s, off, %s, s%d sc1", vr(vNon, 2), srd, sreg)
            a("s_mov_b64 exec, -1")
        else: a("buffer_store_dwordx2 %s, off, %s, s%d sc0 sc1", vr(vNon, 2), srd, sreg)
    def signal1():
        a("s_waitcnt vmcnt(0)")
        flagop(sTrig)
        a("global_load_dword v255, v255, s[56:57]")
    def pollop(sline):
        a("v_mov_b32 v4, 0")
        a("v_mov_b32 v5, 0")
        a("buffer_atomic_or_x2 v[4:5], v%d, %s, s%d offen sc0 sc1", vFl, srd, sline)
    def poll(lbl, sline, mask, tmo, slp):
        a("s_mov_b32 s%d, 0", sTmo)
        a.label(lbl)
        pollop(sline)
        a("s_add_u32 s%d, s%d, 1", sTmo, sTmo)
        a("s_waitcnt vmcnt(0)")
        a("v_cmp_eq_u64 vcc, s[%d:%d], v[4:5]", sNon, sNon + 1)
        a("s_cmp_gt_u32 s%d, 0x%x", sTmo, tmo)
        a("s_cbranch_scc1 %s_ok", lbl)
        a("s_andn2_b32 s%d, %s, vcc_lo", sT, mask)
        a("s_cbranch_scc0 %s_ok", lbl)
        a("s_sleep %d", slp)
        a("s_branch %s", lbl)
        a.label(lbl + "_ok")

    a("s_waitcnt lgkmcnt(7)")
    qk1(0, 0); qk2(0, 0); qk1(1, 0); qk2(1, 0)
    rdQ(2); rdQ(3); rdK(1); rdV(1)
    a("v_mov_b32 v%d, 1", vT2)
    a("ds_write_b32 v%d, v%d offset:12", vFo, vT2)
    for i in range(243, 252): a("v_mov_b32 v%d, 0", i)
    st(4, False)
    a("s_cmp_eq_u32 s%d, 0", sQH)
    a("s_cbranch_scc1 L_nosig")
    signal1()
    st(5, False)
    a.label("L_nosig")

    def wo_setup():
        R = 1280
        a("s_mov_b32 s%d, 0", sGo)
        a("s_lshl_b32 s%d, s%d, 10", sLo, sW)
        a("s_add_u32 s%d, s%d, %d", sLo, sLo, WOB)
        a("s_mov_b32 s%d, %d", sGs, 56 * R)
        a("s_mov_b32 s%d, 5120", sLs)
        a("s_mov_b32 s%d, %d", sGd, 24 * R)
        a("s_mov_b32 s%d, %d", sLd, 8 * 5120)
        a("s_mov_b32 s%d, 0", sGx)
        a("s_cmp_lt_u32 s%d, 5", sW)
        a("s_cbranch_scc1 L_wos")
        a("s_lshl_b32 s%d, s%d, 11", sLo, sW)
        a("s_add_u32 s%d, s%d, %d", sLo, sLo, WOB + 16 * 5120 - 5 * 2048)
        a("s_mov_b32 s%d, %d", sGs, 4 * R)
        a("s_mov_b32 s%d, %d", sGx, (4 * R) ^ (316 * R))
        a("s_mov_b32 s%d, 0", sGd)
        a("s_cmp_eq_u32 s%d, 7", sW)
        a("s_cselect_b32 s%d, 0, 1024", sLd)
        a.label("L_wos")
    def all8(lbl, val, n=8):
        a("v_and_b32 v%d, %d, v%d", vT3, n - 1, vLane)
        a("v_lshlrev_b32 v%d, 5, v%d", vT3, vT3)
        a("s_mov_b32 s%d, 0", sTmo)
        a.label(lbl)
        a("ds_read_b32 v%d, v%d offset:12", vT2, vT3)
        a("s_add_u32 s%d, s%d, 1", sTmo, sTmo)
        a("s_waitcnt lgkmcnt(0)")
        a("v_cmp_le_u32 vcc, %d, v%d", val, vT2)
        a("s_cmp_gt_u32 s%d, 0x20000", sTmo)
        a("s_cbranch_scc1 %s_ok", lbl)
        a("s_cmp_eq_u64 vcc, -1")
        a("s_cbranch_scc1 %s_ok", lbl)
        a("s_sleep %d", env("SL8", 2))
        a("s_branch %s", lbl)
        a.label(lbl + "_ok")

    def next_chunk():
        return [lambda: a("s_add_u32 s%d, s%d, 1", sCh, sCh),
                lambda: a("s_xor_b32 s%d, s%d, s%d", sNxt, sCh, sTB),
                lambda: a("s_and_b32 s%d, s%d, 7", sNxt, sNxt),
                lambda: a("s_mul_i32 s%d, s%d, %d", sNxt, sNxt, 4 * BLK),
                lambda: a("s_add_u32 s%d, s%d, s%d", sNxt, sNxt, sKV)]
    N = sNxt
    sched = {
        (0, 1): [("V1a", lambda: kvop("v", 1, N, 0)), ("V1b", lambda: kvop("v", 1, N, 1))],
        (0, 3): [("Wa", lambda: a("buffer_load_dwordx4 v%d, %s, s%d offen lds", vG, sr(WO, 4), sGo)), ("Wb", lambda: a("buffer_load_dwordx4 v%d, %s, s%d offen lds", vGb, sr(WO, 4), sGo))],
        (0, 6): [("K0", lambda: kvop("k", 0, N)), ("R0", lambda: kvop("r", 0, N))],
        (1, 1): [("V0a", lambda: kvop("v", 0, N, 0)), ("V0b", lambda: kvop("v", 0, N, 1))],
        (1, 6): [("K1", lambda: kvop("k", 1, N)), ("R1", lambda: kvop("r", 1, N))],
    }
    order = [(k, n) for k in sorted(sched) for (n, _) in sched[k]]
    def younger(name, pos):
        names = [n for _, n in order]
        i = names.index(name); cnt = 0
        while True:
            i = (i + 1) % len(order)
            if order[i][0] == pos or (order[i][0] > pos and (order[i - 1][0] < pos or i == 0)): return cnt
            cnt += 1
    PA, PB, POLLP = env("PA", 3), env("PB", 5), (1, env("PJ", 4))
    def spin(lbl, word):
        def f():
            a.label(lbl + "_w")
            a("s_add_u32 s%d, s%d, 1", sTmo, sTmo)
            a("s_cmp_gt_u32 s%d, 0x20000", sTmo)
            a("s_cbranch_scc1 %s_ok", lbl)
            a("s_sleep 1")
            a("ds_read_b32 v%d, v%d offset:%d", vT1, vFo, 4 * word)
            a("s_waitcnt lgkmcnt(0)")
            a("v_readfirstlane_b32 s%d, v%d", sT, vT1)
            a("s_cmp_eq_u32 s%d, 0", sT)
            a("s_cbranch_scc1 %s_w", lbl)
            a("s_branch %s", lbl)
        stubs.append(f)
    stubs = []
    def xreads(word, area, n, dst):
        return [lambda: a("ds_read_b32 v%d, v%d offset:%d", vT1, vFo, 4 * word)] + \
               [lambda q=q: a("ds_read_b128 %s, v%d offset:%d", vr(dst + 4 * q, 4), area, q * 1024) for q in range(n)]
    def xcheck(lbl, word, area, n, dst):
        a("s_waitcnt lgkmcnt(%d)", n)
        a("v_readfirstlane_b32 s%d, v%d", sT, vT1)
        a("s_cmp_eq_u32 s%d, 0", sT)
        a("s_cbranch_scc1 %s_w", lbl)
        a.label(lbl + "_ok")
        spin(lbl, word)
        def g():
            a.label(lbl)
            for f in xreads(word, area, n, dst)[1:]: f()
            a("s_branch %s_ok", lbl)
        stubs.append(g)
    def padd(d, x): a("v_pk_add_f32 %s, %s, %s", vr(d, 2), vr(d, 2), vr(x, 2))
    def iteration(first, last=False):
        for tt in range(2):
            for j in range(8):
                pj, pvb = ((7, 1 - tt) if j == 0 else (j - 1, tt))
                nj, nkb = (j + 2) % 8, (tt if j < 6 else 1 - tt)
                slots = [[], [], []]
                lds = [f for _, f in sched.get((tt, j), [])]
                wv = younger("V%db" % tt, (tt, 1)) if j == 0 else None
                wk = younger("R%d" % (1 - tt), (tt, 6)) if j == 6 else None
                if first:
                    if 8 * tt + j == PA:
                        a("s_cmp_eq_u32 s%d, 0", sQH)
                        a("s_cbranch_scc0 L_nosig2")
                        signal1()
                        st(5, False)
                        a.label("L_nosig2")
                    if 8 * tt + j == PB:
                        a("s_cmp_eq_u32 s%d, 0", sQH)
                        a("s_cbranch_scc1 L_nosig3")
                        a("s_setprio 1")
                        a.label("L_nosig3")
                    if (tt, j) == POLLP:
                        wo_setup()
                        all8("L_img", 1)
                        st(6, False)
                        poll("L_poll1", sF1, "s%d" % sMsk, 0x4000, 2)
                        st(7, False)
                        a("s_andn2_b32 s%d, 0xffff, vcc_lo", sMsk)
                        a("s_mov_b32 s%d, 0", sCh)
                        for f in next_chunk(): f()
                        for k in sorted(sched):
                            if k == (0, 3):
                                a("s_mov_b32 m0, s%d", sLo); a("s_nop 0"); sched[k][0][1]()
                                a("s_add_u32 m0, s%d, s%d", sLo, sLd); a("s_add_u32 s%d, s%d, s%d", sGo, sGo, sGd); sched[k][1][1]()
                                a("s_add_u32 s%d, s%d, s%d", sGo, sGo, sGs); a("s_add_u32 s%d, s%d, s%d", sLo, sLo, sLs); a("s_xor_b32 s%d, s%d, s%d", sGs, sGs, sGx)
                            elif (0, 1) < k < POLLP:
                                for _, f in sched[k]: f()
                    if (tt, j) < POLLP: lds = []
                    wv = None
                    if (tt, j) != (1, 6): wk = None
                else:
                    if (tt, j) == (0, 2): slots[2].append(lambda: a("s_mov_b32 m0, s%d", sLo))
                    if (tt, j) == (0, 3):
                        slots[0].append(lds[0]); slots[2].append(lds[1])
                        lds = []
                        slots[1] += [lambda: a("s_add_u32 m0, s%d, s%d", sLo, sLd), lambda: a("s_add_u32 s%d, s%d, s%d", sGo, sGo, sGd)]
                    if (tt, j) == (0, 4):
                        nc = next_chunk()
                        slots[0] += nc[0:2]; slots[1] += nc[2:4]; slots[2] += nc[4:5]
                    if (tt, j) == (0, 5):
                        slots[0] += [lambda: a("s_add_u32 s%d, s%d, s%d", sGo, sGo, sGs), lambda: a("s_add_u32 s%d, s%d, s%d", sLo, sLo, sLs)]
                        slots[1].append(lambda: a("s_xor_b32 s%d, s%d, s%d", sGs, sGs, sGx))
                    if (tt, j) == (1, 7): slots[0].append(lambda: a("s_cmp_lt_u32 s%d, 7", sCh))
                if last:
                    I = lambda f, *x: (lambda: a(f, *x))
                    if (tt, j) >= (0, 4):
                        slots = [[], [], []]; lds = []
                    if (tt, j) == (1, 0): wv = 0
                    if (tt, j) == (1, 6): wk = None
                    if (tt, j) == (0, 4):
                        slots[0] += [I("s_and_b32 s%d, s%d, 3", sT3, sW), I("s_xor_b32 s%d, s%d, 2", sT, sT3)]
                        slots[1] += [I("s_xor_b32 s%d, s%d, 3", sT2, sT3), I("s_mul_i32 s%d, s%d, 12288", sT, sT)]
                        slots[2] += [I("s_mul_i32 s%d, s%d, 12288", sT2, sT2)]
                    if (tt, j) == (0, 5):
                        slots[0] += [I("s_add_u32 s%d, s%d, %d", sCur, sT, CMB), I("s_add_u32 s%d, s%d, %d", sNxt, sT2, CMB)]
                        slots[1] += [I("s_mov_b32 s%d, 0x%x", sT3, f32bits(2.0 ** -30)), I("s_mov_b32 s%d, 0x%x", sT2, f32bits(2.0 ** 60))]
                    if (tt, j) == (0, 7):
                        a("v_and_b32 v%d, 3, v%d", vT3, vLane)
                        a("v_lshlrev_b32 v%d, 5, v%d", vT3, vT3)
                        slots[0] += [I("ds_read_b32 v%d, v%d offset:12", vT2, vT3), I("s_lshl_b32 s%d, s%d, 1", sT, sQH)]
                    if (tt, j) == (1, 1):
                        a("s_waitcnt lgkmcnt(0)")
                        a("v_cmp_le_u32 vcc, s%d, v%d", sT, vT2)
                        a("s_cmp_eq_u64 vcc, -1")
                        a("s_cbranch_scc0 L_afree0")
                        a.label("L_afree_back")
                        def afs():
                            a.label("L_afree0")
                            all8("L_afree", 2, 4)
                            a("s_branch L_afree_back")
                        stubs.append(afs)
                        a("v_add_u32 v%d, s%d, v%d", vT3, sCur, vL16)
                        a("v_add_u32 v%d, s%d, v%d", vT4, sNxt, vL16)
                        a("v_mov_b32 v%d, 1", vT2)
                        a("v_xor_b32 v%d, 64, v%d", vT1, vFo)
                        a("s_mov_b32 s%d, 0", sTmo)
                    if tt == 1 and 2 <= j <= 5:
                        for i in range(3):
                            q = 3 * (j - 2) + i
                            slots[i].append(I("ds_write_b128 v%d, %s offset:%d", vAr, vr(O + 4 * q, 4), q * 1024))
                        if j == 5: slots[2].append(I("ds_write_b32 v%d, v%d", vT1, vT2))
                    if (tt, j) == (1, 6):
                        xr = xreads(0, vT3, 12, O)
                        slots[1] += xr[:7]; slots[2] += xr[7:]
                if wv is not None: slots[2].append(lambda wv=wv: a("s_waitcnt vmcnt(%d)", wv))
                if wk is not None:
                    slots[0].append(lambda wk=wk: a("s_waitcnt vmcnt(%d)", wk))
                    for i, f in enumerate(lds): slots[1 + i].append(f)
                else:
                    for i, f in enumerate(lds): slots[i].append(f)
                regs = [S + 16 * (j % 4) + i for i in range(16)]
                def ex4():
                    for _ in range(4): ex(regs.pop(0))
                if first and (tt, j) == (0, 0):
                    ex4(); ex4(); a("s_waitcnt lgkmcnt(0)")
                else:
                    pv(pj, pvb, 0); [f() for f in slots[0]]; ex4()
                    pv(pj, pvb, 1); [f() for f in slots[1]]; ex4()
                if last and (tt, j) == (1, 7):
                    if DIAG and env("AD", 0): a("s_memtime s[74:75]")
                    if DIAG: a("s_waitcnt lgkmcnt(0)")
                    xcheck("L_cmb", 0, vT3, 12, O)
                    a("s_waitcnt lgkmcnt(6)")
                    for i in range(0, 24, 2): padd(O + 48 + i, O + i)
                    for k in range(6): a("ds_write_b128 v%d, %s offset:%d", vT3, vr(O + 48 + 4 * k, 4), k * 1024)
                    a("v_xor_b32 v%d, 32, v%d", vT1, vFo)
                    a("ds_write_b32 v%d, v%d offset:4", vT1, vT2)
                    ex4(); ex4()
                elif last and (tt, j) == (1, 6):
                    [f() for f in slots[2]]; ex4(); ex4()
                else:
                    qk1(nj, nkb); ex4()
                    qk2(nj, nkb); [f() for f in slots[2]]; ex4()
    iteration(True)
    BLEAD = env("BLEAD", 2)
    a("s_mov_b32 s%d, 3", sTrig)
    if BLEAD:
        a("s_cmp_eq_u32 s%d, 0", sQH)
        a("s_cbranch_scc1 L_nolead")
        a("s_setprio 3")
        a.label("L_nolead")
    st(8, False)
    a.raw(".p2align 6")
    a.label("L_attn")
    if DIAG and env("AD", 0):
        a("s_memtime s[100:101]")
        a("s_waitcnt lgkmcnt(0)")
        for k in range(2, 7):
            a("s_cmp_eq_u32 s%d, %d", sCh, k)
            a("s_cselect_b32 s%d, s100, s%d", 64 + 2 * (8 + k), 64 + 2 * (8 + k))
    a("s_cmp_eq_u32 s%d, s%d", sCh, sTrig)
    a("s_cbranch_scc1 L_mid")
    a.label("L_attn_go")
    iteration(False)
    a("s_cbranch_scc1 L_attn")
    if DIAG and env("AD", 0): a("s_memtime s[94:95]")
    iteration(False, True)
    K0 = O + 72
    xr = xreads(1, vT4, 6, S)
    xr[0](); xr[1]()
    pv(7, 1, 0); pv(7, 1, 1)
    st(9, False)
    for f in xr[2:]: f()
    a("s_waitcnt lgkmcnt(14)")
    for i in range(0, 12, 2): padd(K0 + i, O + 24 + i)
    a("s_mov_b32 s%d, 0", sTmo)
    if DIAG: a("s_waitcnt lgkmcnt(0)")
    xcheck("L_cmb2", 1, vT4, 6, S)
    a("s_waitcnt lgkmcnt(3)")
    for i in range(0, 12, 2): padd(K0 + i, S + i)
    for i in range(12, 24, 2): padd(K0 + i, O + 24 + i)
    a("s_waitcnt lgkmcnt(0)")
    for i in range(12, 24, 2): padd(K0 + i, S + i)
    Z = S + 32
    def get_l():
        for j in range(2):
            a("v_mov_b32 v%d, v%d", Z + 4 + 2 * j, K0 + 12 * j + 8)
            a("v_mov_b32 v%d, v%d", Z + 5 + 2 * j, K0 + 12 * j + 8)
    get_l()
    a("s_mov_b32 s%d, 1", sCh)
    a("v_mov_b32 v%d, 2", vT2)
    for j in range(2): a("v_permlane32_swap_b32 v%d, v%d", Z + 5 + 2 * j, Z + 4 + 2 * j)
    a.label("L_fin")
    for j in range(2): a("v_rcp_f32 v%d, v%d", Z + 2 * j, Z + 4 + 2 * j)
    a("s_nop 0")
    for j in range(2):
        k = K0 + 12 * j
        for i in range(0, 12, 2): a("v_pk_mul_f32 %s, %s, %s op_sel_hi:[1,0]", vr(k + i, 2), vr(k + i, 2), vr(Z + 2 * j, 2))
        for i in range(4): a("v_cvt_pk_bf16_f32 v%d, v%d, v%d", S + 4 * j + i, k + 2 * i, k + 2 * i + 1)
        a("buffer_store_dwordx4 %s, v%d, %s, s%d offen offset:%d sc1", vr(S + 4 * j, 4), vL16, srd, sO, j * 1024)
        for i in range(2): a("v_cvt_pk_bf16_f32 v%d, v%d, v%d", S + 8 + 2 * j + i, k + 8 + 2 * i, k + 9 + 2 * i)
    a("buffer_store_dwordx4 %s, v%d, %s, s%d offen sc1", vr(S + 8, 4), vOr, srd, sO)
    st(16, False)
    if env("EARLY", 1): a("ds_write_b32 v%d, v%d offset:12", vFo, vT2)
    a("s_cmp_eq_u32 s%d, 0", sCh)
    a("s_cbranch_scc1 L_guard_ok")
    a("v_pk_mul_f32 %s, %s, 0", vr(Z, 2), vr(K0, 2))
    a("v_pk_mul_f32 %s, %s, 0", vr(Z + 2, 2), vr(K0 + 12, 2))
    for i in range(2, 12, 2):
        for j in range(2): a("v_pk_fma_f32 %s, %s, 0, %s", vr(Z + 2 * j, 2), vr(K0 + 12 * j + i, 2), vr(Z + 2 * j, 2))
    a("v_cmp_le_f32 s[%d:%d], s%d, v%d", sC, sC + 1, sT3, Z + 4)
    a("v_cmp_le_f32 s[%d:%d], s%d, v%d", sC2, sC2 + 1, sT3, Z + 6)
    a("v_pk_add_f32 %s, %s, %s", vr(Z, 2), vr(Z, 2), vr(Z + 2, 2))
    a("v_cmp_ge_f32 vcc, s%d, v%d", sT2, Z + 4)
    a("s_and_b64 s[%d:%d], s[%d:%d], s[%d:%d]", sC, sC + 1, sC, sC + 1, sC2, sC2 + 1)
    a("v_cmp_ge_f32 s[%d:%d], s%d, v%d", sC2, sC2 + 1, sT2, Z + 6)
    a("s_and_b64 s[%d:%d], s[%d:%d], vcc", sC, sC + 1, sC, sC + 1)
    a("v_cmp_o_f32 vcc, v%d, v%d", Z, Z + 1)
    a("s_and_b64 s[%d:%d], s[%d:%d], s[%d:%d]", sC, sC + 1, sC, sC + 1, sC2, sC2 + 1)
    a("s_and_b64 s[%d:%d], s[%d:%d], vcc", sC, sC + 1, sC, sC + 1)
    a("s_cmp_eq_u64 s[%d:%d], -1", sC, sC + 1)
    a("s_cbranch_scc0 L_slow")
    a.label("L_guard_ok")
    if not env("EARLY", 1): a("ds_write_b32 v%d, v%d offset:12", vFo, vT2)
    a("v_mov_b32 v%d, s%d", vNon, sNon)
    a("v_mov_b32 v%d, s%d", vNon + 1, sNon + 1)
    a("v_lshrrev_b32 v%d, 4, v%d", vT4, vLane)
    a("v_and_b32 v%d, 15, v%d", vT3, vLane)
    a("s_lshl_b32 s%d, s%d, 8", sT, sE)
    a("v_lshl_add_u32 v%d, v%d, 4, s%d", vT1, vT3, sT)
    a("v_lshrrev_b32 v%d, 5, v%d", vT2, vLane)
    a("v_mul_u32_u24 v%d, 2560, v%d", vT2, vT2)
    a("v_and_b32 v%d, 16, v%d", vOa, vLane)
    a("v_lshl_add_u32 v%d, v%d, 5, v%d", vOa, vOa, vT2)
    a("v_add_u32 v%d, v%d, v%d", vOa, vOa, vT1)
    a("v_mul_u32_u24 v%d, %d, v%d", vOb, 2 * OB, vT4)
    a("v_add_u32 v%d, v%d, v%d", vOb, vOb, vT1)
    a("v_add_u32 v%d, 2048, v%d", vOb, vOb)
    a("s_mul_i32 s%d, s%d, %d", sT, sQH, 8 * 5120)
    a("s_add_u32 s%d, s%d, %d", sT, sT, WOB)
    a("v_and_b32 v%d, 31, v%d", vT1, vLane)
    a("v_mul_u32_u24 v%d, 40, v%d", vT1, vT1)
    a("v_add3_u32 v%d, v%d, v%d, s%d", vWa2, vT1, vT2, sT)
    a("s_mul_i32 s%d, s%d, %d", sT, sQH, 7 * 5120)
    a("s_sub_u32 s%d, %d, s%d", sT, 16 * 5120, sT)
    a("v_add_u32 v%d, s%d, v%d", vWa3, sT, vWa2)
    COAL = env("COAL", 1)
    a("v_and_b32 v%d, 4, v%d", vT2, vT3)
    a("v_lshlrev_b32 v%d, %d, v%d", vT2, 1 if COAL else 2, vT2)
    a("v_and_b32 v%d, 8, v%d", vT1, vT3)
    a("v_lshrrev_b32 v%d, 1, v%d", vT1, vT1)
    a("v_and_b32 v%d, 3, v%d", vT3, vT3)
    a("v_or3_b32 v%d, v%d, v%d, v%d", vT2, vT2, vT3, vT1)
    a("v_mul_u32_u24 v%d, %d, v%d", vT2, 176 if COAL else 2560, vT2)
    a("v_mad_u32_u24 v%d, v%d, 40, v%d", vSt, vT4, vT2)
    if COAL:
        a("s_and_b32 s%d, s%d, 3", sT, sW)
        a("s_mul_i32 s%d, s%d, 12288", sT, sT)
        a("s_add_u32 s%d, s%d, %d", sCur, sT, CMB)
        a("v_add_u32 v%d, s%d, v%d", vSt, sCur, vSt)
    a("s_lshl_b32 s%d, s%d, 3", sT, sHH)
    a("s_lshl_b32 s%d, 0xff, s%d", sM2, sT)
    EP = env("EP", 0)
    if EP:
        a("s_cmp_eq_u32 s%d, 0", sQH)
        a("s_cbranch_scc1 L_wdoneB_ok")
        all8("L_wdoneB", 2)
        pollop(sPend)
    a("s_waitcnt vmcnt(%d)", 1 if EP else 0)
    flagop(sF2)
    st(10)
    def wread_ops(s):
        fb, g, i = s % 2, s // 5, s % 5
        base, blk = ((vWb2 if g else vWa2), i) if i < 4 else ((vWb3 if g else vWa3), 0)
        return ["ds_read_b64_tr_b16 %s, v%d offset:%d" % (vr(WF + 20 * fb + 4 * j + 2 * q, 2), base, blk * 5120 + j * 8 + q * 1280) for j in range(5) for q in range(2)]
    def oloads(s):
        b_, i = (sO2 if s >= 5 else sOc), s % 5
        if i < 4:
            return ["s_add_u32 s%d, s%d, %d" % (sNxt, b_, i * 2 * OB)] + \
                   ["buffer_load_dwordx4 %s, v%d, %s, s%d offen offset:%d sc1" % (vr(OF + 8 * s + 4 * j, 4), vOa, srd, sNxt, 1024 * j) for j in range(2)]
        return ["buffer_load_dwordx4 %s, v%d, %s, s%d offen offset:%d sc1" % (vr(OF + 8 * s + 4 * e, 4), vOb, srd, b_, OB * e) for e in range(2)]
    def choose():
        a("s_lshr_b32 s%d, s%d, 15", sT, sM2)
        a("s_xor_b32 s%d, s%d, 1", sT2, sT)
        a("s_mul_i32 s%d, s%d, %d", sO2, sT, 8 * OB)
        a("s_add_u32 s%d, s%d, s%d", sO2, sO2, sOc)
        a("s_mul_i32 s%d, s%d, %d", sT3, sT2, 8 * OB)
        a("s_add_u32 s%d, s%d, s%d", sOc, sOc, sT3)
    def choose2():
        a("s_mul_i32 s%d, s%d, 10240", sT, sT)
        a("s_mul_i32 s%d, s%d, 10240", sT2, sT2)
        a("v_add_u32 v%d, s%d, v%d", vWb3, sT, vWa3)
        a("v_add_u32 v%d, s%d, v%d", vWa3, sT2, vWa3)
        a("v_lshl_add_u32 v%d, s%d, 1, v%d", vWb2, sT, vWa2)
        a("v_lshl_add_u32 v%d, s%d, 1, v%d", vWa2, sT2, vWa2)
    a("s_cmp_eq_u32 s%d, 0", sQH)
    a("s_cbranch_scc1 L_aload")
    if not EP: all8("L_wdoneB", 2)
    a("s_mov_b32 s%d, 0", sTmo)
    if EP:
        a("s_waitcnt vmcnt(1)")
        a("s_branch L_poll2e")
    else: pollop(sPend)
    a.label("L_poll2")
    a("s_add_u32 s%d, s%d, 1", sTmo, sTmo)
    a("s_waitcnt vmcnt(0)")
    a.label("L_poll2e")
    a("v_cmp_eq_u64 vcc, s[%d:%d], v[4:5]", sNon, sNon + 1)
    a("s_cmp_gt_u32 s%d, 0x8000", sTmo)
    a("s_cbranch_scc1 L_first")
    a("s_or_b32 s%d, vcc_lo, s%d", sT, sM2)
    a("s_andn2_b32 s%d, 0xffff, s%d", sT, sT)
    a("s_cbranch_scc0 L_first")
    a("s_xor_b32 s%d, s%d, 0xffff", sM2, sM2)
    a("s_or_b32 s%d, vcc_lo, s%d", sT, sM2)
    a("s_andn2_b32 s%d, 0xffff, s%d", sT, sT)
    a("s_cbranch_scc0 L_first")
    a("s_sleep %d", env("SLP2", 2))
    pollop(sPend)
    a("s_branch L_poll2")
    a.label("L_first")
    st(12)
    if env("RP", 1):
        a("s_andn2_b32 s%d, s%d, vcc_lo", sT, sM2)
        a("s_cbranch_scc0 L_norp")
        pollop(sPend)
        a.label("L_norp")
    choose()
    for s in range(5):
        for x in oloads(s): a(x)
    choose2()
    for x in wread_ops(0): a(x)
    if env("RP", 1): a("s_waitcnt vmcnt(10)")
    a.label("L_chk2")
    a("v_cmp_eq_u64 vcc, s[%d:%d], v[4:5]", sNon, sNon + 1)
    a("s_andn2_b32 s%d, s%d, vcc_lo", sP2, sM2)
    a("s_cbranch_scc1 L_more" if env("P2", 1) else "s_cbranch_scc1 L_aback")
    for s in range(5, 10):
        for x in oloads(s): a(x)
    a.label("L_aback")
    st(13)
    for s in range(10):
        o = OF + 8 * s
        acc = ACC2 if s < 5 else ACC3
        rd = wread_ops(s + 1) if s < 9 else []
        if s <= 5:
            a("s_cmp_eq_u32 s%d, 0", sP2)
            if s < 5:
                a("s_cbranch_scc1 L_both%d", s)
                if s == env("PP", 2): pollop(sPend)
                a("s_waitcnt vmcnt(%d)", 2 * (4 - s) + (1 if s >= env("PP", 2) else 0))
            else:
                a("s_cbranch_scc0 L_second")
            a.label("L_both%d" % s)
        a("s_waitcnt vmcnt(%d) lgkmcnt(0)", 2 * (9 - s))
        if s % 5 == 4:
            a("v_swap_b32 v%d, v%d", o + 2, o + 4)
            a("v_swap_b32 v%d, v%d", o + 3, o + 5)
            a("s_nop 1")
        if s == 7 and COAL:
            R = OF
            rd += ["v_lshrrev_b32 v%d, 3, v%d" % (R + 4, vLane), "v_and_b32 v%d, 7, v%d" % (R + 5, vLane),
                   "v_mul_u32_u24 v%d, 176, v%d" % (R, R + 4), "v_mul_u32_u24 v%d, 2560, v%d" % (R + 1, R + 4),
                   "v_lshl_add_u32 v%d, v%d, 4, v%d" % (R, R + 5, R), "v_lshl_add_u32 v%d, v%d, 4, v%d" % (R + 1, R + 5, R + 1),
                   "v_add_u32 v%d, s%d, v%d" % (R, sCur, R),
                   "v_lshrrev_b32 v%d, 1, v%d" % (R + 4, vLane), "v_and_b32 v%d, 1, v%d" % (R + 5, vLane),
                   "v_mul_u32_u24 v%d, 176, v%d" % (R + 2, R + 4)]
        if s == 8 and COAL:
            rd += ["v_and_b32 v%d, 24, v%d" % (R + 6, R + 4), "v_add_u32 v%d, v%d, v%d" % (R + 4, R + 4, R + 6),
                   "v_mul_u32_u24 v%d, 2560, v%d" % (R + 3, R + 4),
                   "v_lshl_add_u32 v%d, v%d, 4, v%d" % (R + 2, R + 5, R + 2), "v_lshl_add_u32 v%d, v%d, 4, v%d" % (R + 3, R + 5, R + 3),
                   "v_add_u32 v%d, s%d, v%d" % (R + 2, sCur, R + 2)]
        if s == 9:
            xr = xreads(2, vAr, 10, PART)
        for tt in (0, 1):
            for j in range(5):
                d = acc + 4 * (5 * tt + j)
                a("v_mfma_f32_16x16x32_bf16 %s, %s, %s, %s", vr(d, 4), vr(WF + 20 * (s % 2) + 4 * j, 4), vr(o + 4 * tt, 4), vr(d, 4) if s % 5 else "0")
                for _ in range(2):
                    if rd: a(rd.pop(0))
                    elif s == 9 and xr: xr.pop(0)()
    st(14, False)
    a("s_mov_b32 s%d, 0", sTmo)
    a("s_add_u32 s%d, s%d, %d", sT2, sPub, 32 * 2560)
    a("v_mov_b32 v%d, 1", vT2)
    a("s_cmp_eq_u32 s%d, 0", sQH)
    a("s_cbranch_scc0 L_x1")
    for q in range(10):
        for h in range(4): a("v_add_f32 v%d, v%d, v%d", ACC2 + 4 * q + h, ACC2 + 4 * q + h, ACC3 + 4 * q + h)
        a("ds_write_b128 v%d, %s offset:%d", vAr, vr(ACC2 + 4 * q, 4), q * 1024)
    a("ds_write_b32 v%d, v%d offset:%d", vFo, vT2, 128 + 8)
    a("s_waitcnt lgkmcnt(0)")
    a("s_branch L_xdone") if DIAG else a("s_endpgm")
    a.label("L_x1")
    if DIAG: a("s_waitcnt lgkmcnt(0)")
    xcheck("L_xch", 2, vAr, 10, PART)
    if COAL:
        for i in range(0, 40, 2): padd(ACC2 + i, ACC3 + i)
        a("s_waitcnt lgkmcnt(0)")
    for tt in range(2):
        for q in range(5):
            r = ACC2 + 20 * tt + 4 * q
            o = WF + 12 * tt
            if not COAL:
                for h in range(2): padd(r + 2 * h, ACC3 + 20 * tt + 4 * q + 2 * h)
                a("s_waitcnt lgkmcnt(%d)", 9 - 5 * tt - q)
            for h in range(2): padd(r + 2 * h, PART + 20 * tt + 4 * q + 2 * h)
            for h in range(2): a("v_cvt_pk_bf16_f32 v%d, v%d, v%d", o + 2 * q + h, r + 2 * h, r + 2 * h + 1)
            if COAL:
                a("ds_write_b64 v%d, %s offset:%d", vSt, vr(o + 2 * q, 2), tt * 16 * 176 + 8 * q)
            else:
                if q in (1, 3): a("buffer_store_dwordx4 %s, v%d, %s, s%d offen offset:%d", vr(o + 2 * q - 2, 4), vSt, sr(OUT, 4), sT2 if tt else sPub, 8 * (q - 1))
                if q == 4: a("buffer_store_dwordx2 %s, v%d, %s, s%d offen offset:32", vr(o + 8, 2), vSt, sr(OUT, 4), sT2 if tt else sPub)
        if COAL:
            for i in (2 * tt, 2 * tt + 1): a("ds_read_b128 %s, v%d offset:%d", vr(OF + 8 + 4 * i, 4), R, i * 8 * 176)
    if COAL:
        a("ds_read_b128 %s, v%d offset:128", vr(OF + 24, 4), R + 2)
        for i in range(4):
            a("s_add_u32 s%d, s%d, %d", sT2, sPub, i * 16 * 2560)
            a("s_waitcnt lgkmcnt(%d)", (9, 8, 2, 1)[i])
            a("buffer_store_dwordx4 %s, v%d, %s, s%d offen %s", vr(OF + 8 + 4 * i, 4), R + 1, sr(OUT, 4), sT2, os.environ.get("OSC", ""))
        a("s_waitcnt lgkmcnt(0)")
        a("buffer_store_dwordx4 %s, v%d, %s, s%d offen offset:128 %s", vr(OF + 24, 4), R + 3, sr(OUT, 4), sPub, os.environ.get("OSC", ""))
    a.label("L_xdone")
    st(15)
    a.label("L_exit")
    st.flush(sW)
    a.label("L_end")
    a("s_endpgm")
    a.label("L_mid")
    a("s_add_u32 s%d, s%d, 1", sTrig, sTrig)
    a("s_cmp_eq_u32 s%d, 3", sCh)
    a("s_cbranch_scc0 L_mid2")
    a("s_lshl_b32 s%d, s%d, 1", sT3, sTB)
    a("s_add_u32 s%d, s%d, s%d", sT3, sT3, sHH)
    a("s_lshl_b32 s%d, s%d, 1", sT3, sT3)
    a("s_add_u32 s%d, s%d, s%d", sT3, sT3, sKH)
    a("s_lshl_b32 s%d, s%d, 5", sT2, sB)
    a("s_add_u32 s%d, s%d, s%d", sT2, sT2, sT3)
    a("s_lshl_b32 s%d, s%d, 1", sT2, sT2)
    a("s_add_u32 s%d, s%d, s%d", sT2, sT2, sQH)
    a("s_mul_i32 s%d, s%d, %d", sOc, sT2, 16 * OB)
    a("s_add_u32 s%d, s%d, %d", sOc, sOc, O_OFF)
    a("s_mul_i32 s%d, s%d, %d", sT2, sT2, FS)
    a("s_add_u32 s%d, s%d, %d", sPend, sT2, F2_OFF)
    a("s_lshl_b32 s%d, s%d, 3", sT3, sT3)
    a("s_add_u32 s%d, s%d, s%d", sT3, sT3, sE)
    a("s_mul_i32 s%d, s%d, %d", sPub, sT3, 8 * 2560)
    a("s_mul_i32 s%d, s%d, 1280", sT2, sB)
    a("s_add_u32 s%d, s%d, s%d", sPub, sPub, sT2)
    a("s_and_b32 s%d, s%d, 7", sT2, sHP)
    a("s_mul_i32 s%d, s%d, 160", sT2, sT2)
    a("s_add_u32 s%d, s%d, s%d", sPub, sPub, sT2)
    a("s_cmp_eq_u32 s%d, 0", sMsk)
    a("s_cbranch_scc1 L_poll3_ok")
    poll("L_poll3", sF1, "0xffff", 0x4000, 2)
    a.label("L_mid2")
    a("s_cmp_eq_u32 s%d, 0", sQH)
    a("s_cselect_b32 s%d, 0, s%d", sTrig, sTrig)
    a("s_cbranch_scc1 L_attn_go")
    a("s_cmp_eq_u32 s%d, %d", sCh, max(BLEAD + 1, 3))
    a("s_cbranch_scc0 L_mid3")
    a("s_setprio 1")
    a.label("L_mid3")
    a("s_cmp_ge_u32 s%d, %d", sCh, max(BLEAD + 1, 4))
    a("s_cselect_b32 s%d, 0, s%d", sTrig, sTrig)
    a("s_cmp_eq_u32 s%d, 4", sCh)
    a("s_cbranch_scc0 L_attn_go")
    a("s_cmp_lt_u32 s%d, 5", sW)
    a("s_cbranch_scc1 L_attn_go")
    a("v_mov_b32 v%d, 2.0", vG)
    a("v_mov_b32 v%d, 2.0", vGb)
    a("s_mov_b32 s%d, %d", sLo, CMB + 8 * 7168)
    a("s_mov_b32 s%d, 0", sLs)
    a("s_mov_b32 s%d, 0", sGs)
    a("s_mov_b32 s%d, 0", sGx)
    a("s_mov_b32 s%d, 0", sGo)
    a("s_branch L_attn_go")
    a.label("L_more")
    a("ds_read_b32 v%d, v%d offset:8", vT3, vFo)
    a("s_add_u32 s%d, s%d, 1", sTmo, sTmo)
    a("s_waitcnt lgkmcnt(0)")
    a("v_readfirstlane_b32 s%d, v%d", sT, vT3)
    a("s_cmp_gt_u32 s%d, 0x8000", sTmo)
    a("s_cbranch_scc1 L_aback")
    a("s_cmp_eq_u32 s%d, 0", sT)
    a("s_cbranch_scc0 L_aback")
    pollop(sPend)
    a("s_waitcnt vmcnt(0)")
    a("s_branch L_chk2")
    a.label("L_second")
    if env("PP", 2) < 5:
        a("s_waitcnt vmcnt(0)")
        a("v_cmp_eq_u64 vcc, s[%d:%d], v[4:5]", sNon, sNon + 1)
        a("s_andn2_b32 s%d, s%d, vcc_lo", sT, sM2)
        a("s_cbranch_scc0 L_poll5_ok")
    poll("L_poll5", sPend, "s%d" % sM2, 0x8000, env("SLP2", 2))
    for s_ in range(5, 10):
        for x in oloads(s_): a(x)
    a("s_branch L_both5")
    a.label("L_aload")
    a("s_waitcnt vmcnt(0)")
    poll("L_poll4", sPend, "0xffff", 0x8000, env("SLP2", 2))
    choose(); choose2()
    a("s_mov_b32 s%d, 0", sP2)
    for s_ in range(10):
        for x in oloads(s_): a(x)
        a("s_waitcnt vmcnt(%d)", env("AW", 4))
    if env("ALOW", 0): a("s_setprio 0")
    all8("L_wdone", 2)
    for x in wread_ops(0): a(x)
    a("s_branch L_aback")
    for v in range(2):
        a.label("L_nonce%d" % v)
        a("s_mov_b32 s%d, 0", sT)
        a.label("L_nonce_retry%d" % v)
        a("v_mov_b32 v%d, 0", vT1)
        a("global_load_dwordx2 %s, v%d, s[%d:%d] sc0 sc1", vr(vNon, 2), vT1, sDbg, sDbg + 1)
        a("s_add_u32 s%d, s%d, 1", sT, sT)
        a("s_waitcnt vmcnt(0)")
        a("v_readfirstlane_b32 s%d, v%d", sNon + 1, vNon + 1)
        a("v_readfirstlane_b32 s%d, v%d", sNon, vNon)
        a("s_cmp_gt_u32 s%d, 0x4000", sT)
        a("s_cbranch_scc1 L_nonce_ok%d", v)
        a("s_cmp_eq_u32 s%d, 0", sNon + 1)
        a("s_cbranch_scc1 L_nonce_retry%d", v)
        a("s_branch L_nonce_ok%d", v)
    for f in stubs: f()
    a.label("L_slow")
    C = S
    MX = O
    a("s_waitcnt vmcnt(0)")
    a("s_and_b32 s%d, s%d, 3", sT, sW)
    a("s_mul_i32 s%d, s%d, %d", sT, sT, BLK)
    a("s_sub_u32 s%d, s%d, s%d", sKV, sKV, sT)
    a("s_mov_b32 s%d, s%d", sCur, sKV)
    a("s_add_u32 s%d, s%d, %d", sCh, sKV, KV_PAIR)
    a("v_mov_b32 v%d, 0xff800000", MX)
    a("v_mov_b32 v%d, 0xff800000", MX + 1)
    a.label("L_slow1")
    for b in range(2): kvop("k", b, sCur); kvop("r", b, sCur)
    a("s_waitcnt vmcnt(0)")
    for b in range(2):
        qk1(6, b); qk2(6, b); qk1(7, b); qk2(7, b)
        a("s_nop 15")
        for j in range(2):
            for i in range(8): a("v_max3_f32 v%d, v%d, v%d, v%d", MX + j, MX + j, S + 32 + 16 * j + 2 * i, S + 32 + 16 * j + 2 * i + 1)
    a("s_add_u32 s%d, s%d, %d", sCur, sCur, BLK)
    a("s_cmp_lt_u32 s%d, s%d", sCur, sCh)
    a("s_cbranch_scc1 L_slow1")
    for j in range(2):
        a("v_mov_b32 v%d, v%d", vT1, MX + j)
        a("s_nop 1")
        a("v_permlane32_swap_b32 v%d, v%d", vT1, MX + j)
        a("s_nop 1")
        a("v_max_f32 v%d, v%d, v%d", vT1, vT1, MX + j)
        for i in range(16): a("v_sub_f32 v%d, 0, v%d", C + 16 * j + i, vT1)
    for i in range(24): a("v_mov_b32 v%d, 0", K0 + i)
    a("s_mov_b32 s%d, s%d", sCur, sKV)
    a.label("L_slow2")
    for b in range(2):
        kvop("k", b, sCur); kvop("r", b, sCur); kvop("v", b, sCur, 0); kvop("v", b, sCur, 1)
    a("s_waitcnt vmcnt(0)")
    for b in range(2):
        for j in range(2):
            qk1(6 + j, b, vr(C + 16 * j, 16))
            qk2(6 + j, b)
        a("s_nop 15")
        for i in range(32): ex(S + 32 + i)
        a("s_nop 1")
        pv(6, b, 0); pv(6, b, 1)
        a("s_nop 10")
        pv(7, b, 0); pv(7, b, 1)
    a("s_add_u32 s%d, s%d, %d", sCur, sCur, BLK)
    a("s_cmp_lt_u32 s%d, s%d", sCur, sCh)
    a("s_cbranch_scc1 L_slow2")
    a("s_nop 15")
    get_l()
    a("s_nop 1")
    for j in range(2): a("v_permlane32_swap_b32 v%d, v%d", Z + 5 + 2 * j, Z + 4 + 2 * j)
    a("s_mov_b32 s%d, 0", sCh)
    a("s_branch L_fin")
    a.label("L_code_end")
    return name, NFV, 163840

def gen_spin(a):
    name = "spin_kernel"
    kernel_head(a, name)
    wa, ia, wb, ib, mult, off = [int(x) for x in SPIN.split(",")]
    a("s_cmp_ge_u32 s2, 1")
    a("s_cbranch_scc1 L_spin_end")
    a("s_load_dwordx2 s[4:5], s[0:1], 64")
    a("s_waitcnt lgkmcnt(0)")
    a("s_add_u32 s4, s4, %d", DIAG_OFF)
    a("s_addc_u32 s5, s5, 0")
    if wa >= 0:
        a("v_mov_b32 v1, %d", 4 * ia + 128 * (16 * 8 + wa))
        a("v_mov_b32 v2, %d", 4 * ib + 128 * (16 * 8 + wb))
        a("global_load_dword v3, v1, s[4:5]")
        a("global_load_dword v4, v2, s[4:5]")
        a("s_waitcnt vmcnt(0)")
        a("v_sub_u32 v3, v4, v3")
        a("s_nop 1")
        a("v_readfirstlane_b32 s8, v3")
    else:
        a("v_lshlrev_b32 v1, 11, v0")
        a("v_mov_b32 v2, 0")
        a("global_load_dword v7, v2, s[4:5]")
        for k in range(4):
            a("global_load_dword v%d, v1, s[4:5] offset:%d", 8 + k, 4 * ia + (0 if wa == -1 else 128 * wb))
            a("global_load_dword v%d, v1, s[4:5] offset:%d", 12 + k, 4 * ib + 128 * wb)
            a("v_add_u32 v1, %d, v1", 64 * 2048)
        a("s_waitcnt vmcnt(0)")
        for k in range(8): a("v_sub_u32 v%d, v%d, v7", 8 + k, 8 + k)
        op = "min" if wa == -1 else "max"
        for k in range(1, 4):
            a("v_%s_i32 v8, v8, v%d", op, 8 + k)
            a("v_max_i32 v12, v12, v%d", 12 + k)
        a("s_nop 1")
        a("v_readlane_b32 s20, v8, 0")
        a("v_readlane_b32 s21, v12, 0")
        for l in range(1, 64):
            a("v_readlane_b32 s22, v8, %d", l)
            a("v_readlane_b32 s23, v12, %d", l)
            a("s_%s_i32 s20, s20, s22", op)
            a("s_max_i32 s21, s21, s23")
        a("s_sub_u32 s8, s21, s20")
    a("s_memrealtime s[10:11]")
    a("s_nop 3")
    a("s_max_u32 s8, s8, %d", off)
    a("s_sub_u32 s8, s8, %d", off)
    a("s_min_u32 s8, s8, 20000")
    a("s_mul_i32 s8, s8, %d", mult)
    a("s_waitcnt lgkmcnt(0)")
    a.label("L_spin")
    a("s_memrealtime s[12:13]")
    a("s_waitcnt lgkmcnt(0)")
    a("s_sub_u32 s14, s12, s10")
    a("s_cmp_lt_u32 s14, s8")
    a("s_cbranch_scc1 L_spin")
    a.label("L_spin_end")
    a("s_endpgm")
    return name, 16, 0

def gen_pre(a):
    name = "pre_kernel"
    kernel_head(a, name)
    PRE = env("PREK", 0)
    if PRE == 2:
        a("s_cmp_ge_u32 s2, 256")
        a("s_cbranch_scc1 L_pre_end")
        a("s_bfe_u32 s22, s2, 0x10002")
        a("s_mul_i32 s30, s22, 24")
        a("s_load_dwordx4 s[4:7], s[0:1], s30")
        a("s_lshr_b32 s30, s2, 3")
        a("s_mul_i32 s30, s30, 320")
        a("v_add_u32 v1, s30, v0")
        a("s_bfe_u32 s23, s2, 0x10001")
        a("s_mul_i32 s23, s23, %d", 1024 * 1280)
        a("v_lshl_add_u32 v2, v1, 7, s23")
        a("v_lshrrev_b32 v3, 4, v1")
        a("v_and_b32 v4, 15, v1")
        a("v_min_u32 v4, 14, v4")
        a("v_mul_u32_u24 v5, 13, v4")
        a("v_lshrrev_b32 v5, 6, v5")
        a("v_mul_u32_u24 v5, 640, v5")
        a("v_lshl_add_u32 v4, v4, 7, v5")
        a("v_mul_u32_u24 v3, 3840, v3")
        a("s_and_b32 s24, s2, 1")
        a("s_mul_i32 s24, s24, 640")
        a("v_add3_u32 v3, v3, v4, s24")
        a("s_waitcnt lgkmcnt(0)")
        a("global_load_dword v6, v2, s[4:5]")
        a("global_load_dword v7, v3, s[6:7]")
        a.label("L_pre_end")
    a("s_endpgm")
    return name, 8, 0

def main(out):
    a = A()
    ks = []
    for g, blk in (((gen_pre, 320),) if env("PREK", 0) else ()) + ((gen_fused, 512),) + (((gen_spin, 64),) if SPIN else ()):
        n, nfv, lds = g(a)
        ks.append((n, nfv, lds, blk))
    hdr = """; Two independent MHA blocks (S=2048, D=640, H=32, Dh=20), concatenated on the last axis; one fused kernel.
"""
    if len(ks) == 1 and not env("LIST", 0):
        hdr += "; @launch grid=(256,1,1) block=(%d,1,1) lds=%d\n" % (ks[0][3], ks[0][2])
    else:
        for n, nfv, lds, blk in ks:
            hdr += "; @launch kernel=%s grid=(256,1,1) block=(%d,1,1) lds=%d\n" % (n, blk, lds)
    s = hdr + '.amdgcn_target "amdgcn-amd-amdhsa--gfx950"\n.text\n' + a.text()
    s += '.section .rodata,"a"\n'
    for n, nfv, lds, blk in ks: s += kd(n, nfv)
    open(out, "w").write(s)

if __name__ == "__main__":
    main(sys.argv[1] if len(sys.argv) > 1 else "cdna_kernels/%s.s" % NAME)
```

```python
import math, struct, sys, os

NAME = "concat_heads__mha_block__softmax_full_mha__prompt"
BLK = 12288
KV_PAIR = 32 * BLK
KV_OFF = 0
OB = 2560
O_OFF = KV_OFF + 32 * KV_PAIR
O_BYTES = 32 * 32 * OB
FS = int(os.environ.get("FS", "8576"))
F1_OFF = O_OFF + 2 * O_BYTES
F2_OFF = F1_OFF + 128 * FS
WS_USED = F2_OFF + 128 * FS
CSCALE = math.log2(math.e) / math.sqrt(20.0)
OOB = 0x40000000
DIAG = int(os.environ.get("DIAG", "0"))
DIAG_OFF = 64 << 20
def env(n, d): return int(os.environ.get(n, str(d)))
NT = env("NT", 0)
SKEW = env("SKEW", 2)
HELP = env("HELP", 1)
SPIN = os.environ.get("SPIN", "")

def f32bits(x): return struct.unpack("<I", struct.pack("<f", x))[0]

class A:
    def __init__(self): self.l = []
    def __call__(self, s, *a): self.l.append("    " + (s % a if a else s))
    def label(self, s): self.l.append(s + ":")
    def raw(self, s): self.l.append(s)
    def c(self, s): self.l.append("    ; " + s)
    def text(self): return "\n".join(self.l) + "\n"

def vr(b, n): return "v[%d:%d]" % (b, b + n - 1) if n > 1 else "v%d" % b
def sr(b, n): return "s[%d:%d]" % (b, b + n - 1) if n > 1 else "s%d" % b

def kernel_head(a, name):
    a.raw(".globl %s" % name); a.raw(".p2align 8"); a.raw(".type %s,@function" % name); a.label(name)

def kd(name, nfv, nsg=102):
    acc = (nfv + 3) // 4 * 4
    return """.p2align 6
.amdhsa_kernel %s
  .amdhsa_next_free_vgpr %d
  .amdhsa_next_free_sgpr %d
  .amdhsa_accum_offset %d
  .amdhsa_group_segment_fixed_size 0
  .amdhsa_kernarg_size 72
  .amdhsa_user_sgpr_count 2
  .amdhsa_user_sgpr_kernarg_segment_ptr 1
  .amdhsa_system_sgpr_workgroup_id_x 1
.end_amdhsa_kernel
""" % (name, nfv, nsg, acc)

class Stamps:
    def __init__(self, a):
        self.a = a
        if DIAG:
            for i in range(62, 100): a("s_mov_b32 s%d, 0", i)
            a("s_memrealtime s[60:61]")
    def g(self, i):
        if DIAG and env("GD", 0): self.a("s_mem%stime s[%d:%d]", "real" if DIAG == 1 else "", 64 + 2 * i, 65 + 2 * i)
    def __call__(self, i, wait=True):
        if not DIAG: return
        if env("GD", 0) and 3 <= i <= 16: return
        if env("AD", 0) and i in (1, 2, 3, 5, 10, 11, 12, 13, 14, 15): return
        if DIAG == 1: self.a("s_memrealtime s[%d:%d]", 64 + 2 * i, 65 + 2 * i)
        else: self.a("s_memtime s[%d:%d]", 64 + 2 * i, 65 + 2 * i)
        if wait: self.a("s_waitcnt lgkmcnt(0)")
    def flush(self, swave):
        if not DIAG: return
        a = self.a
        a("s_mov_b64 exec, -1")
        a("s_waitcnt vmcnt(0)")
        self(17)
        a("s_memrealtime s[62:63]")
        a("s_load_dwordx2 s[56:57], s[0:1], 64")
        a("s_lshl_b32 s58, s2, 4")
        a("s_add_u32 s58, s58, s%d", swave)
        a("s_lshl_b32 s58, s58, 7")
        a("s_add_u32 s58, s58, %d", DIAG_OFF)
        a("v_mov_b32 v1, s58")
        a("s_waitcnt lgkmcnt(0)")
        for i in range(20):
            a("v_mov_b32 v2, s%d", 60 + 2 * i)
            a("global_store_dword v1, v2, s[56:57] offset:%d", 4 * i)
        a("s_waitcnt vmcnt(0)")

def gen_fused(a):
    name = NAME + "_kernel"
    kernel_head(a, name)
    WS, XS, WSRD = 8, 12, 16
    sNon = 20
    sB, sTB, sHP, sHH, sW, sE, sKH, sQH = 22, 23, 24, 25, 26, 27, 28, 29
    sT, sT2, sT3 = 30, 31, 32
    sXoff, sWoff, sM0x, sM0w, sIt, sDX, sDW, sSlot, sSx, sSw = 33, 34, 35, 36, 37, 38, 39, 40, 41, 42
    sNxt, sNxt1, sCh, sR, sTmo, sCur = 33, 34, 35, 36, 38, 39
    sDbg = 44
    sC, sC2 = 46, 48
    sKV, sPub, sF1, sO, sF2, sMsk = 50, 51, 52, 53, 54, 55
    sOc, sPend, sTrig = 40, 41, 43
    sLd, sGx = 3, 34
    sGo, sLo, sGs, sLs, sGd = 36, 37, 42, 44, 45
    WO, OUT = WSRD, XS
    ACC2, WF, OF = 16, 56, 96
    PART = 176
    vOa, vOb, vWa2, vWa3, vSt, vWb2, vWb3, vFl2 = 8, 9, 10, 11, 0, 2, 13, 14
    ACC3 = 216
    sO2, sP2, sM2 = 36, 37, 42
    srd = sr(WS, 4)
    vLane, vM, vH, vT1, vT2, vT3, vT4 = 1, 2, 3, 4, 5, 6, 7
    vK, vKr, vV, vIdx, vFl, vL16, vOr, vS1 = 8, 9, 10, 11, 12, 13, 14, 15
    vG, vGb, vFo, vAr = 0, 2, 3, 15
    vNon, vTch = 252, 255
    vXg, vWg, vXa, vWa = 80, 84, 86, 88
    vG0, vG1, vL0, vL1, vSc, vOne = 243, 244, 245, 246, 248, 249
    vRk, vRr, vRv = 247, 250, 251
    F, ACC = 16, 92
    Qm, Qr, Km, Kr, V, S, O = 16, 48, 64, 72, 76, 92, 156
    NFV = 256
    WBASE = 98304
    LFLAG, WOB = 0, 1024
    CMB = WOB + 102400
    IMG = 1024

    a("s_cmp_ge_u32 s2, 256")
    a("s_cbranch_scc1 L_end")
    st = Stamps(a)
    a("s_bfe_u32 s%d, s2, 0x10002", sB)
    a("s_mul_i32 s%d, s%d, 24", sT, sB)
    a("s_load_dwordx4 s[4:7], s[0:1], s%d", sT)
    a("v_lshrrev_b32 v%d, 6, v0", vT1)
    a("v_and_b32 v%d, 63, v0", vLane)
    a("v_readfirstlane_b32 s%d, v%d", sW, vT1)
    a("s_bfe_u32 s%d, s2, 0x10001", sTB)
    a("s_lshl_b32 s%d, s%d, 2", sTB, sTB)
    a("s_bfe_u32 s%d, s2, 0x20003", sT)
    a("s_or_b32 s%d, s%d, s%d", sTB, sTB, sT)
    a("s_and_b32 s%d, s2, 1", sHH)
    a("s_lshl_b32 s%d, s%d, 3", sHP, sHH)
    a("s_lshr_b32 s%d, s2, 5", sT)
    a("s_or_b32 s%d, s%d, s%d", sHP, sHP, sT)
    a("s_lshr_b32 s%d, s2, 7", sT)
    a("s_xor_b32 s%d, s%d, s%d", sHP, sHP, sT)
    a("s_and_b32 s%d, s%d, 1", sE, sW)
    a("v_lshrrev_b32 v%d, 3, v0", vT1)
    a("s_mul_i32 s%d, s%d, 24", sT, sW)
    a("v_add_u32 v%d, s%d, v%d", vT1, sT, vT1)
    a("v_mul_u32_u24 v%d, 1280, v%d", vT1, vT1)
    a("v_lshrrev_b32 v%d, 4, v%d", vT4, vLane)
    a("v_and_b32 v%d, 7, v%d", vT3, vLane)
    a("v_xor_b32 v%d, v%d, v%d", vT2, vT4, vT3)
    a("v_xor_b32 v%d, 4, v%d", vT3, vT2)
    a("v_lshl_add_u32 v%d, v%d, 4, v%d", vXg + 0, vT2, vT1)
    a("v_lshl_add_u32 v%d, v%d, 4, v%d", vXg + 1, vT3, vT1)
    a("v_add_u32 v%d, %d, v%d", vXg + 1, 8 * 1280 - 1024, vXg + 1)
    a("v_add_u32 v%d, %d, v%d", vXg + 2, 16 * 1280 - 2048, vXg + 0)
    a("v_add_u32 v%d, %d, v%d", vXg + 3, 16 * 1280 - 2048, vXg + 1)
    wmark = len(a.l)
    a("s_load_dwordx2 s[%d:%d], s[0:1], 64", WS, WS + 1)
    a("s_load_dwordx2 s[%d:%d], s[0:1], 56", sDbg, sDbg + 1)
    a("s_mul_i32 s%d, s%d, 24", sT, sB)
    a("s_add_u32 s%d, s%d, 16", sT, sT)
    a("s_load_dwordx2 s[56:57], s[0:1], s%d", sT)
    a("s_load_dwordx2 s[58:59], s[0:1], 48")
    a("s_memrealtime s[%d:%d]", sNon, sNon + 1)
    if env("CODEPF", 2) & 2:
        a.label("L_pfbase0")
        a("s_getpc_b64 s[%d:%d]", sC2, sC2 + 1)
        a("s_and_b32 s%d, s2, -8", sT)
        a("s_add_u32 s%d, s%d, s%d", sT, sT, sW)
        a("s_lshl_b32 s%d, s%d, 7", sT, sT)
        a("s_min_u32 s%d, s%d, %s", sT, sT, "L_code_end-L_pfbase0-8")
        a("v_mov_b32 v254, s%d", sT)
        a("global_load_dword v254, v254, s[%d:%d]", sC2, sC2 + 1)
    TAB = [0, 3, 1, 4, 5, 8, 6, 9, 2, 7, 10, 11, 13, 14, 12, 15]
    tab = sum(v << (4 * i) for i, v in enumerate(TAB))
    a("s_lshl_b32 s%d, s%d, 3", sT, sE)
    a("v_lshl_add_u32 v%d, v%d, 1, s%d", vT2, vT4, sT)
    a("v_and_b32 v%d, 15, v%d", vM, vLane)
    a("v_xor_b32 v%d, v%d, v%d", vT2, vT2, vM)
    a("v_lshlrev_b32 v%d, 2, v%d", vT2, vT2)
    a("s_mov_b32 s%d, 0x%x", sC, tab & 0xffffffff)
    a("s_mov_b32 s%d, 0x%x", sC + 1, tab >> 32)
    a("v_lshrrev_b64 v[16:17], v%d, s[%d:%d]", vT2, sC, sC + 1)
    a("v_and_b32 v%d, 15, v16", vT2)
    a("s_lshl_b32 s%d, s%d, 3", sT, sW)
    a("v_add_u32 v%d, s%d, v%d", vT1, sT, vT4)
    a("v_mul_u32_u24 v%d, 3840, v%d", vT1, vT1)
    a("v_mul_u32_u24 v%d, 13, v%d", vT3, vT2)
    a("v_lshrrev_b32 v%d, 6, v%d", vT3, vT3)
    a("v_mul_u32_u24 v%d, %d, v%d", vT3, 1280 - 80, vT3)
    a("v_cmp_eq_u32 vcc, 15, v%d", vT2)
    a("v_lshl_add_u32 v%d, v%d, 4, v%d", vT2, vT2, vT3)
    a("v_mov_b32 v%d, 0x%x", vS1, OOB)
    if HELP:
        a("s_and_b32 s%d, s%d, 7", sT, sHP)
        a("s_mov_b32 s%d, 0x%x", sT2, OOB)
        for hp, sec in ((0, 0), (2, 1), (5, 2)):
            a("s_cmp_eq_u32 s%d, %d", sT, hp)
            a("s_cselect_b32 s%d, %d, s%d", sT2, sec * 1280 + 256 - 80 * hp + (HELP - 1) * 64 * 3840, sT2)
        a("s_bfe_u32 s%d, s%d, 0x10001", sT, sTB)
        a("v_lshrrev_b32 v%d, 1, v%d", vT3, vT4)
        a("v_cmp_eq_u32 s[%d:%d], s%d, v%d", sC, sC + 1, sT, vT3)
        a("v_mov_b32 v%d, s%d", vT3, sT2)
        a("s_nop 0")
        a("v_cndmask_b32 v%d, v%d, v%d, s[%d:%d]", vT3, vS1, vT3, sC, sC + 1)
        a("v_cndmask_b32 v%d, v%d, v%d, vcc", vT2, vT2, vT3)
    else:
        a("v_cndmask_b32 v%d, v%d, v%d, vcc", vT2, vT2, vS1)
    a("v_add_u32 v%d, v%d, v%d", vWg + 0, vT1, vT2)
    a("v_add_u32 v%d, %d, v%d", vWg + 1, 4 * 3840 - 1024, vWg + 0)
    a("s_lshl_b32 s%d, s%d, 11", sM0w, sW)
    a("s_add_u32 s%d, s%d, %d", sM0w, sM0w, WBASE)
    a("s_mov_b32 s%d, 0x20000", WSRD + 3)
    a("s_mul_i32 s%d, s%d, 80", sT2, sHP)
    a("s_sub_u32 s%d, %d, s%d", WSRD + 2, 640 * 3840, sT2)
    a("s_add_u32 s%d, s6, s%d", WSRD, sT2)
    a("s_addc_u32 s%d, s7, 0", WSRD + 1)
    wblk = []
    if True:
        wblk = a.l[wmark:]; del a.l[wmark:]
    a("s_lshr_b32 s%d, s%d, 1", sT, sW)
    a("s_mul_i32 s%d, s%d, 24576", sM0x, sT)
    a("s_lshl_b32 s%d, s%d, 12", sT, sE)
    a("s_add_u32 s%d, s%d, s%d", sM0x, sM0x, sT)
    a("s_mov_b32 s%d, %d", XS + 2, 256 * 1280)
    a("s_mov_b32 s%d, 0x20000", XS + 3)
    if SKEW:
        a("s_xor_b32 s%d, s%d, s%d", sT, sTB, sHP)
        a("s_and_b32 s%d, s%d, 1", sT, sT)
        a("s_mul_i32 s%d, s%d, 5", sT, sT)
        if SKEW > 1:
            a("s_lshr_b32 s%d, s2, 1", sT2)
            a("s_xor_b32 s%d, s%d, s2", sT2, sT2)
            a("s_and_b32 s%d, s%d, 1", sT2, sT2)
            a("s_mul_i32 s%d, s%d, %d", sT2, sT2, SKEW)
            a("s_add_u32 s%d, s%d, s%d", sT, sT, sT2)
        XS1 = env("XS1", 0)
        if XS1:
            a("s_lshr_b32 s%d, s2, 2", sT2)
            a("s_xor_b32 s%d, s%d, s2", sT2, sT2)
            a("s_bfe_u32 s%d, s%d, 0x10004", sT2, sT2)
            if XS1 == 2:
                a("s_bfe_u32 s%d, s2, 0x10005", sC)
                a("s_andn2_b32 s%d, s%d, s%d", sT2, sT2, sC)
            a("s_add_u32 s%d, s%d, s%d", sT, sT, sT2)
        FOL = env("FOL", 1)
        if FOL:
            a("s_bfe_u32 s%d, s2, 0x10005", sT2)
            a("s_mul_i32 s%d, s%d, %d", sT2, sT2, 10 - FOL)
            a("s_add_u32 s%d, s%d, s%d", sT, sT, sT2)
            a("s_cmp_ge_u32 s%d, 10", sT)
            a("s_cselect_b32 s%d, 10, 0", sT2)
            a("s_sub_u32 s%d, s%d, s%d", sT, sT, sT2)
        a("s_lshl_b32 s%d, s%d, 7", sXoff, sT)
        a("s_mul_i32 s%d, s%d, %d", sWoff, sT, 64 * 3840)
    else:
        a("s_mov_b32 s%d, 0", sXoff)
        a("s_mov_b32 s%d, 0", sWoff)
    a("s_mul_i32 s%d, s%d, %d", sT, sTB, 256 * 1280)
    a("s_waitcnt lgkmcnt(0)")
    a("s_add_u32 s%d, s4, s%d", XS, sT)
    a("s_addc_u32 s%d, s5, 0", XS + 1)

    ntx = " nt" if NT & 1 else ""
    ntw = " nt" if NT & 2 else ""
    def dma_ops(slot_x, slot_w):
        ops = []
        def x(i):
            if i == 0:
                a("s_add_u32 m0, s%d, %s", sM0x, slot_x); a("s_nop 0")
            a("buffer_load_dwordx4 v%d, %s, s%d offen offset:%d%s lds", vXg + i, sr(XS, 4), sXoff, 1024 * i, ntx)
        def w(i):
            if i == 0:
                a("s_add_u32 m0, s%d, %s", sM0w, slot_w)
                a("s_add_u32 s%d, s%d, %d", sXoff, sXoff, 0 if env("NOADV", 0) & 1 else 128)
            a("buffer_load_dwordx4 v%d, %s, s%d offen offset:%d%s lds", vWg + i, sr(WSRD, 4), sWoff, 1024 * i, ntw)
            if i == 1:
                a("s_add_u32 s%d, s%d, %d", sWoff, sWoff, 0 if env("NOADV", 0) & 2 else 64 * 3840)
                if SKEW:
                    a("s_cmp_eq_u32 s%d, 1280", sXoff)
                    a("s_cselect_b32 s%d, 0, s%d", sXoff, sXoff)
                    a("s_cselect_b32 s%d, 0, s%d", sWoff, sWoff)
        for i in range(4): ops.append(lambda i=i: x(i))
        for i in range(2): ops.append(lambda i=i: w(i))
        return ops
    for i, op in enumerate(dma_ops("0", "0")):
        if i == 4: a.l += wblk
        op()
    a("s_bfe_u32 s%d, s%d, 0x10001", sKH, sW)
    a("s_lshr_b32 s%d, s%d, 2", sQH, sW)
    a("s_mov_b32 s%d, %d", WS + 2, WS_USED)
    a("s_mov_b32 s%d, 0x20000", WS + 3)
    a("s_and_b32 s%d, s%d, 3", sT3, sW)
    a("v_lshrrev_b32 v%d, 1, v%d", vT1, vM)
    a("v_xor_b32 v%d, v%d, v%d", vT1, vT1, vT4)
    a("s_mul_i32 s%d, s%d, 24576", sT, sT3)
    a("v_lshl_add_u32 v%d, v%d, 7, s%d", vT2, vM, sT)
    a("v_lshl_add_u32 v%d, v%d, 4, v%d", vXa, vT1, vT2)
    a("v_xor_b32 v%d, 64, v%d", vXa + 1, vXa)
    a("v_bfe_u32 v%d, v%d, 2, 2", vT1, vLane)
    a("v_lshl_add_u32 v%d, v%d, 3, v%d", vT2, vT4, vT1)
    a("v_lshlrev_b32 v%d, 8, v%d", vT2, vT2)
    a("v_and_b32 v%d, 3, v%d", vT3, vLane)
    a("v_lshl_add_u32 v%d, v%d, 3, v%d", vT2, vT3, vT2)
    a("v_add_u32 v%d, %d, v%d", vT2, WBASE, vT2)
    a("v_bfe_u32 v%d, v%d, 2, 3", vT1, vLane)
    a("s_lshl_b32 s%d, s%d, 2", sT, sQH)
    a("v_xor_b32 v%d, s%d, v%d", vT1, sT, vT1)
    a("v_lshl_add_u32 v%d, v%d, 5, v%d", vWa, vT1, vT2)
    for xt in range(1, 4): a("v_xor_b32 v%d, %d, v%d", vWa + xt, 32 * xt, vWa)
    mark = len(a.l)
    a("v_lshlrev_b32 v%d, 4, v%d", vL16, vLane)
    a("s_lshl_b32 s%d, s%d, 14", sT, sT3)
    a("s_add_u32 s%d, s%d, %d", sT, sT, IMG)
    a("v_add_u32 v%d, s%d, v%d", vL0, sT, vL16)
    a("v_cmp_lt_u32 vcc, 1, v%d", vT4)
    a("v_lshlrev_b32 v%d, 3, v%d", vT1, vLane)
    a("v_add_u32 v%d, 4096, v%d", vT1, vT1)
    a("v_mov_b32 v%d, 0x%x", vT2, f32bits(CSCALE))
    a("v_cndmask_b32 v%d, v%d, v%d, vcc", vG0, vS1, vT1)
    a("v_cndmask_b32 v%d, v%d, 1.0, vcc", vSc, vT2)
    a("v_and_b32 v%d, 4, v%d", vT1, vM)
    a("v_and_b32 v%d, 8, v%d", vT2, vM)
    a("v_lshlrev_b32 v%d, 5, v%d", vT1, vT1)
    a("v_lshl_add_u32 v%d, v%d, 3, v%d", vT1, vT2, vT1)
    a("v_and_b32 v%d, 0x330, v%d", vT2, vL16)
    a("v_add_u32 v%d, v%d, v%d", vT1, vT1, vT2)
    a("v_add_u32 v%d, 6144, v%d", vG1, vT1)
    a("v_add_u32 v%d, s%d, v%d", vL1, sT, vG1)
    if not env("PEEL", 1):
        for i in range(64): a("v_mov_b32 v%d, 0", ACC + i)
    a("v_and_b32 v%d, 11, v%d", vT1, vM)
    a("v_cmp_eq_u32 vcc, 8, v%d", vT1)
    a("v_mov_b32 v%d, 0x3f803f80", vT1)
    a("v_and_b32 v%d, 31, v0", vM)
    a("v_cndmask_b32 v%d, 0, v%d, vcc", vOne, vT1)
    a("v_bfe_u32 v%d, v0, 5, 1", vH)
    for i in range(O, 243): a("v_mov_b32 v%d, 0", i)
    a("v_mov_b32 v%d, 0xdddddddd", vIdx)
    a("v_and_b32 v%d, 4, v%d", vT1, vM)
    a("v_lshlrev_b32 v%d, 8, v%d", vT1, vT1)
    a("v_and_b32 v%d, 24, v%d", vT2, vM)
    a("v_lshl_add_u32 v%d, v%d, 3, v%d", vT1, vT2, vT1)
    a("v_and_b32 v%d, 3, v%d", vT2, vM)
    a("v_lshl_add_u32 v%d, v%d, 4, v%d", vT1, vT2, vT1)
    a("s_lshl_b32 s%d, s%d, 9", sT, sQH)
    a("v_lshl_add_u32 v%d, v%d, 8, s%d", vT2, vH, sT)
    a("v_add_u32 v%d, v%d, v%d", vK, vT1, vT2)
    a("s_lshl_b32 s%d, s%d, 14", sC, sT3)
    a("v_add_u32 v%d, s%d, v%d", vRk, sC, vK)
    a("s_lshl_b32 s%d, s%d, 8", sT, sQH)
    a("s_add_u32 s%d, s%d, s%d", sT, sT, sC)
    a("v_add_u32 v%d, s%d, v%d", vRr, sT, vT1)
    a("s_lshl_b32 s%d, s%d, 7", sT, sQH)
    a("s_add_u32 s%d, s%d, %d", sT, sT, 4096 + 256)
    a("v_lshrrev_b32 v%d, 1, v%d", vT1, vT1)
    a("v_cmp_eq_u32 vcc, 0, v%d", vH)
    a("v_add_u32 v%d, s%d, v%d", vT1, sT, vT1)
    a("v_add_u32 v%d, 2048, v%d", vT3, vL16)
    a("v_cndmask_b32 v%d, v%d, v%d, vcc", vKr, vS1, vT1)
    a("v_cndmask_b32 v%d, v%d, v%d, vcc", vOr, vS1, vT3)
    a("v_lshlrev_b32 v%d, 3, v%d", vT2, vLane)
    a("v_lshl_or_b32 v%d, v%d, 29, v%d", vFl, vT4, vT2)
    a("v_min_u32 v%d, 21, v%d", vT1, vM)
    a("v_lshlrev_b32 v%d, 4, v%d", vT1, vT1)
    a("v_lshl_add_u32 v%d, v%d, 8, v%d", vT1, vH, vT1)
    a("s_lshl_b32 s%d, s%d, 10", sT, sQH)
    a("s_add_u32 s%d, s%d, 6144", sT, sT)
    a("s_lshl_b32 s%d, s%d, 7", sT2, sQH)
    a("s_add_u32 s%d, s%d, %d", sT2, sT2, 6144 + 2048 - 256)
    a("v_cmp_gt_u32 vcc, 16, v%d", vM)
    a("v_add_u32 v%d, s%d, v%d", vT2, sT, vT1)
    a("v_add_u32 v%d, s%d, v%d", vT3, sT2, vT1)
    a("v_cndmask_b32 v%d, v%d, v%d, vcc", vT1, vT3, vT2)
    a("v_cmp_gt_u32 vcc, 21, v%d", vM)
    a("v_add_u32 v%d, s%d, v%d", vRv, sC, vT1)
    a("s_lshl_b32 s%d, s%d, 2", sT, sTB)
    a("v_cndmask_b32 v%d, v%d, v%d, vcc", vV, vS1, vT1)
    a("s_add_u32 s%d, s%d, s%d", sT, sT, sT3)
    a("s_lshl_b32 s%d, s%d, 5", sC, sB)
    a("s_add_u32 s%d, s%d, s%d", sT2, sT, sC)
    a("s_lshl_b32 s%d, s%d, 1", sT2, sT2)
    a("s_add_u32 s%d, s%d, s%d", sT2, sT2, sQH)
    a("s_lshl_b32 s%d, s%d, 4", sO, sT2)
    a("s_add_u32 s%d, s%d, s%d", sO, sO, sHP)
    a("s_mul_i32 s%d, s%d, %d", sT2, sT2, FS)
    a("s_lshl_b32 s%d, s%d, 3", sF2, sHP)
    a("s_add_u32 s%d, s%d, s%d", sT2, sT2, sF2)
    a("s_add_u32 s%d, s%d, %d", sF2, sT2, F2_OFF)
    a("s_mul_i32 s%d, s%d, %d", sO, sO, OB)
    a("s_add_u32 s%d, s%d, %d", sO, sO, O_OFF)
    a("s_lshl_b32 s%d, s%d, 4", sC, sB)
    a("s_add_u32 s%d, s%d, s%d", sC, sC, sHP)
    a("s_mul_i32 s%d, s%d, %d", sKV, sC, KV_PAIR)
    a("s_mul_i32 s%d, s%d, %d", sPub, sT, BLK)
    a("s_add_u32 s%d, s%d, s%d", sPub, sPub, sKV)
    a("s_mul_i32 s%d, s%d, %d", sT2, sT3, BLK)
    a("s_add_u32 s%d, s%d, s%d", sKV, sKV, sT2)
    a("s_lshl_b32 s%d, s%d, 2", sC, sC)
    a("s_add_u32 s%d, s%d, s%d", sC, sC, sT3)
    a("s_mul_i32 s%d, s%d, %d", sC, sC, FS)
    a("s_add_u32 s%d, s%d, %d", sF1, sC, F1_OFF)
    a("s_and_b32 s%d, s%d, 4", sT, sTB)
    a("s_lshl_b32 s%d, s%d, 1", sT, sT)
    a("s_lshl_b32 s%d, 0xff, s%d", sMsk, sT)
    a("s_mul_i32 s%d, s%d, 12288", sT, sT3)
    a("s_add_u32 s%d, s%d, %d", sT, sT, CMB)
    a("v_add_u32 v%d, s%d, v%d", vAr, sT, vL16)
    a("s_lshl_b32 s%d, s%d, 5", sT, sW)
    a("v_mov_b32 v%d, s%d", vFo, sT)
    a("s_cmp_ge_u32 s%d, 5", sW)
    a("s_cselect_b64 vcc, -1, 0")
    a("s_cselect_b32 s%d, 1, 0", sT2)
    a("s_lshl_b32 s%d, s%d, s%d", sT, sW, sT2)
    a("s_mul_i32 s%d, s%d, 10", sC, sT2)
    a("s_sub_u32 s%d, s%d, s%d", sT, sT, sC)
    a("s_add_u32 s%d, s%d, s%d", sT2, sT2, sT)
    a("s_min_u32 s%d, s%d, 4", sT2, sT2)
    for dst, sp in ((vG, sT), (vGb, sT2)):
        a("s_lshl_b32 s%d, s%d, 6", sC, sp)
        a("v_add_u32 v%d, s%d, v%d", vT1, sC, vLane)
        a("v_mul_u32_u24 v%d, 6554, v%d", vT2, vT1)
        a("v_lshrrev_b32 v%d, 16, v%d", vT2, vT2)
        a("v_mul_u32_u24 v%d, 10, v%d", vT3, vT2)
        a("v_sub_u32 v%d, v%d, v%d", dst, vT1, vT3)
        a("v_and_b32 v%d, 4, v%d", vT1, vT2)
        a("v_lshlrev_b32 v%d, 1, v%d", vT1, vT1)
        a("v_and_b32 v%d, 8, v%d", vT3, vT2)
        a("v_lshrrev_b32 v%d, 1, v%d", vT3, vT3)
        a("v_and_b32 v%d, 0x13, v%d", vT2, vT2)
        a("v_or3_b32 v%d, v%d, v%d, v%d", vT1, vT1, vT2, vT3)
        a("v_lshrrev_b32 v%d, 4, v%d", vT2, vT1)
        a("v_mul_u32_u24 v%d, 24, v%d", vT2, vT2)
        a("v_and_b32 v%d, 28, v%d", vT3, vT1)
        a("v_mad_u32_u24 v%d, v%d, 9, 16", vT3, vT3)
        a("v_cndmask_b32 v%d, v%d, v%d, vcc", vT2, vT2, vT3)
        a("v_add_u32 v%d, v%d, v%d", vT1, vT1, vT2)
        a("v_mul_u32_u24 v%d, 1280, v%d", vT1, vT1)
        a("v_lshl_add_u32 v%d, v%d, 4, v%d", dst, dst, vT1)

    SPLIT = env("SPLIT", 10000) if env("PEEL", 1) else 10000
    part2 = a.l[mark + SPLIT:]
    del a.l[mark + SPLIT:]
    a("s_waitcnt lgkmcnt(0)")
    a("s_barrier")
    a("s_or_b32 s%d, s2, s%d", sDX, sW)
    a("s_cbranch_scc1 L_nononce")
    a("s_or_b32 s%d, s%d, 0x80000000", sNon + 1, sNon + 1)
    a("v_mov_b32 v%d, s%d", vNon, sNon)
    a("v_mov_b32 v%d, s%d", vNon + 1, sNon + 1)
    a("v_mov_b32 v%d, 0", 255)
    a("global_store_dwordx2 v%d, %s, s[%d:%d] sc0 sc1", 255, vr(vNon, 2), sDbg, sDbg + 1)
    a.label("L_nononce")
    d1 = dma_ops("8192", "16384")
    for _ in range(env("D1PRE", 4)): d1.pop(0)()
    PEEL = env("PEEL", 1)
    D1PRE = env("D1PRE", 4)
    if not PEEL:
        for op in d1: op()
    CODEPF = env("CODEPF", 2) & 1
    if CODEPF:
        a.label("L_pfbase")
        a("s_getpc_b64 s[%d:%d]", sC2, sC2 + 1)
        a("v_min_u32 v%d, 21, v%d", 255, vLane)
        a("v_lshlrev_b32 v%d, 7, v%d", 255, 255)
        a("s_mul_i32 s%d, s%d, 2816", sDX, sW)
        a("v_add_u32 v%d, s%d, v%d", 255, sDX, 255)
        a("v_min_u32 v%d, %s, v%d", 255, "L_code_end-L_pfbase-8", 255)
        a("global_load_dword v255, v%d, s[%d:%d]", 255, sC2, sC2 + 1)
    def read_ops(fb, ks):
        f = F + 32 * fb
        ops = []
        for t in range(4):
            ops.append(lambda t=t: a("ds_read_b128 %s, v%d offset:%d", vr(f + 4 * t, 4), vXa + ks, t * 2048))
            for q in range(2):
                ops.append(lambda t=t, q=q: a("ds_read_b64_tr_b16 %s, v%d offset:%d", vr(f + 16 + 4 * t + 2 * q, 2), vWa + t, ks * 8192 + q * 1024))
        return ops
    def reads(fb, ks):
        for op in read_ops(fb, ks): op()
    extra = []
    RPM = env("RPM", 1)
    def mfs(fb, isB, rd, dm, misc, zero=False):
        f = F + 32 * fb
        ABL = env("ABL", 0)
        if ABL & 1: f = F; rd = []
        if ABL & 2: dm = []
        if ABL & 4: rd = rd[:9]
        n = 0
        for (xt, t) in sorted([(x, y) for x in range(4) for y in range(4)], key=lambda p: (max(p), p)):
            d = ACC + 16 * xt + 4 * t
            x, w = vr(f + 4 * t, 4), vr(f + 16 + 4 * xt, 4)
            c = "0" if zero else vr(d, 4)
            if ABL & 16 and not zero: pass
            elif isB and xt > 0: a("v_mfma_f32_16x16x32_bf16 %s, %s, %s, %s", vr(d, 4), x, w, c)
            else:              a("v_mfma_f32_16x16x32_bf16 %s, %s, %s, %s", vr(d, 4), w, x, c)
            n += 1
            DP = env("DP", 3)
            if DP and dm and n % DP == env("DO", 1) and not zero: dm.pop(0)()
            if rd:
                for _ in range(RPM):
                    if rd: rd.pop(0)()
            elif dm and n % 3 == 1: dm.pop(0)()
            elif misc:
                for _ in range(3):
                    if misc: misc.pop(0)()
        for op in rd + dm + misc: op()
    SH = env("SH", 5)
    def stage(kind, isB, ops):
        XE = env("XE", 3)
        if SH: ops = dma_ops("s%d" % sSx, "s%d" % sSw)[(0 if extra else XE):SH] if kind <= 0 else []
        if SH and extra: ops = [extra.pop(0) for _ in range(len(extra))] + ops
        if kind == 1:
            a("v_mov_b32 v%d, 0", vT1)
            a("global_load_dwordx2 %s, v%d, s[%d:%d] sc0 sc1", vr(vNon, 2), vT1, sDbg, sDbg + 1)
        misc = []
        if kind < 2:
            misc = [lambda: (a("s_cmp_eq_u32 s%d, 2", sSlot), a("s_cselect_b32 s%d, -2, 1", sDX)),
                    lambda: a("s_lshl_b32 s%d, s%d, 14", sDW, sDX),
                    lambda: a("s_lshl_b32 s%d, s%d, 13", sT, sDX)]
            misc += [lambda ks=ks: a("v_add_u32 v%d, s%d, v%d", vXa + ks, sT, vXa + ks) for ks in range(2)]
            misc += [lambda ft=ft: a("v_add_u32 v%d, s%d, v%d", vWa + ft, sDW, vWa + ft) for ft in range(4)]
        if kind == 2:
            misc = [lambda: a("v_readfirstlane_b32 s%d, v%d", sNon + 1, vNon + 1),
                    lambda: a("v_readfirstlane_b32 s%d, v%d", sNon, vNon),
                    lambda: a("s_add_u32 s%d, s%d, 3072", sT2, sPub),
                    lambda: a("s_mov_b32 s%d, 0x%x", sC, 0xff00ff00 if isB else f32bits(CSCALE)),
                    lambda: a("s_mov_b32 s%d, s%d", sC + 1, sC),
                    lambda: (a("s_cmp_eq_u32 s%d, 0", sNon + 1), a("s_cbranch_scc1 L_nonce%d", isB), a.label("L_nonce_ok%d" % isB))]
        a("s_waitcnt lgkmcnt(0)")
        mfs(0, isB, read_ops(1, 1), ops, misc)
        nops, rd, misc = [], [], []
        if kind < 2:
            if kind == 0 and not SH:
                a("s_lshl_b32 s%d, s%d, 13", sSx, sSlot)
                a("s_lshl_b32 s%d, s%d, 14", sSw, sSlot)
            a("s_waitcnt vmcnt(%d) lgkmcnt(0)", 0 if kind == 1 else (SH if SH else 6))
            a("s_barrier")
            rd = read_ops(0, 0)
            misc = [lambda: a("s_add_u32 s%d, s%d, s%d", sSlot, sSlot, sDX)]
            if SH and kind <= 0:
                nops = dma_ops("s%d" % sSx, "s%d" % sSw)[SH:]
                nops.append(lambda: (a("s_lshl_b32 s%d, s%d, 13", sSx, sSlot), a("s_lshl_b32 s%d, s%d, 14", sSw, sSlot), a("s_add_u32 s%d, s%d, s%d", sSlot, sSlot, sDX)))
                if kind == 0 and XE:
                    bk = nops.pop(); nx = dma_ops("s%d" % sSx, "s%d" % sSw)[:XE]
                    nops += [lambda: (bk(), nx[0]())] + nx[1:]
                misc = [lambda: a("s_add_u32 s%d, s%d, 1", sIt, sIt)]
            elif kind == 0:
                nops = dma_ops("s%d" % sSx, "s%d" % sSw)[:3]
                misc += [lambda: a("s_add_u32 s%d, s%d, 1", sIt, sIt)]
            if kind == 1:
                I = lambda f, *x: (lambda: a(f, *x))
                misc += [I("s_and_b32 s%d, s2, -8", sT2), I("s_add_u32 s%d, s%d, s%d", sT2, sT2, sW), I("s_mul_i32 s%d, s%d, %d", sT2, sT2, 25 * 128),
                         I("v_min_u32 v255, 24, v%d", vLane), I("v_lshl_add_u32 v255, v255, 7, s%d", sT2),
                         I("s_lshl_b32 s%d, s%d, 1", sT2, sTB), I("s_add_u32 s%d, s%d, s%d", sT2, sT2, sQH), I("s_lshl_b32 s%d, s%d, 3", sT2, sT2),
                         I("s_add_u32 s%d, s%d, s%d", sTrig, sT2, sF1),
                         I("s_and_b32 s%d, s%d, 7", sT3, sHP), I("s_mul_i32 s%d, s%d, 160", sT3, sT3), I("s_sub_u32 s%d, %d, s%d", WO + 2, 640 * 1280, sT3),
                         lambda: (a("s_add_u32 s%d, s56, s%d", WO, sT3), a("s_addc_u32 s%d, s57, 0", WO + 1)),
                         I("s_mov_b32 s%d, %d", OUT + 2, 2048 * 2560), I("s_mov_b64 s[%d:%d], s[58:59]", OUT, OUT + 1)]
        else:
            a("s_waitcnt lgkmcnt(0)")
            a("s_barrier")
            return
        mfs(1, isB, rd, nops, misc)
    if env("IDLE0", 0): a("s_sleep %d", env("IDLE0", 0))
    st(0)
    a("s_waitcnt vmcnt(%d)", (D1PRE if PEEL else 6) + (1 if CODEPF else 0))
    st(1)
    a("s_barrier")
    reads(0, 0)
    if not PEEL:
        a("s_mov_b32 s%d, %d", sSx, 2 * 8192)
        a("s_mov_b32 s%d, %d", sSw, 2 * 16384)
        d2 = dma_ops("s%d" % sSx, "s%d" % sSw)
        for i in range(3): d2.pop(0)()
    if PEEL:
        a("s_cmp_eq_u32 s%d, 0", sQH)
        a("s_cbranch_scc0 L_st0B")
        for isB in (False, True):
            if isB: a.label("L_st0B")
            a("s_waitcnt lgkmcnt(0)")
            D2A, D2B = env("D2A", 0), env("D2B", 0)
            dd = dma_ops("16384", "32768")
            mfs(0, isB, read_ops(1, 1), dma_ops("8192", "16384")[D1PRE:] + dd[:D2A], [], True)
            a("s_waitcnt lgkmcnt(0)")
            misc = [lambda ks=ks: a("v_add_u32 v%d, 8192, v%d", vXa + ks, vXa + ks) for ks in range(2)]
            misc += [lambda ft=ft: a("v_add_u32 v%d, 16384, v%d", vWa + ft, vWa + ft) for ft in range(4)]
            mfs(1, isB, [], dd[D2A:D2A + D2B], misc)
            if not isB: a("s_branch L_st0done")
        a.label("L_st0done")
        d2 = dma_ops("16384", "32768")[D2A + D2B:]
        a.l += part2
        ND2 = env("ND2", 4) if SH else 6
        for op in d2[:ND2 - D2A - D2B]: op()
        a("s_mov_b32 s%d, 1", sSlot)
        a("s_mov_b32 s%d, 1", sIt)
        a("s_mov_b32 s%d, 0", sSx)
        a("s_mov_b32 s%d, 0", sSw)
        st.g(3)
        a("s_waitcnt vmcnt(%d)", ND2)
        a("s_barrier")
        st.g(4)
        reads(0, 0)
    a("s_cmp_eq_u32 s%d, 0", sQH)
    a("s_cbranch_scc0 L_gemmB0")
    CV = F
    for isB in (False, True):
        L = "L_gemmB" if isB else "L_gemmA"
        a.label(L + "0")
        if SH: extra += dma_ops("16384", "32768")[ND2:]
        if PEEL: stage(0, isB, dma_ops("0", "0"))
        a.label(L)
        if DIAG and env("GD", 0):
            for k in range(5):
                st.g(5 + k)
                stage(0, isB, dma_ops("s%d" % sSx, "s%d" % sSw)[3:])
        else:
            stage(0, isB, dma_ops("s%d" % sSx, "s%d" % sSw)[3:])
            a("s_cmp_lt_u32 s%d, 7", sIt)
            a("s_cbranch_scc1 %s", L)
        st.g(10)
        stage(-1, isB, dma_ops("s%d" % sSx, "s%d" % sSw)[3:])
        st.g(11)
        stage(1, isB, [])
        st.g(12)
        stage(2, isB, [])
        st(2, False)
        def cvt(dst, src):
            return ["v_cvt_pk_bf16_f32 v%d, v%d, v%d" % (dst, src, src + 1), "v_cvt_pk_bf16_f32 v%d, v%d, v%d" % (dst + 1, src + 2, src + 3)]
        units, late, pre = [], [], []
        if not isB:
            for t in range(4):
                o = CV + 4 * t
                units.append(([(2, t), (3, t)], cvt(o, ACC + 32 + 4 * t) + cvt(o + 2, ACC + 48 + 4 * t) +
                              ["ds_write_b128 v%d, %s offset:%d" % (vL0, vr(o, 4), t * 1024)]))
                stx = "buffer_store_dwordx4 %s, v%d, %s, s%d offen offset:%d sc1" % (vr(o, 4), vL16, srd, sPub, t * 1024)
                if env("AEARLY", 1): units[-1][1].append(stx)
                else: pre.append(stx)
            for t in range(4):
                o = CV + 16 + 4 * t
                ins = ["v_pk_mul_f32 %s, %s, s[%d:%d]" % (vr(ACC + 16 * xt + 4 * t + 2 * h, 2), vr(ACC + 16 * xt + 4 * t + 2 * h, 2), sC, sC + 1) for xt in range(2) for h in range(2)]
                if env("NOPK", 0) & 1: ins = ["v_mul_f32 v%d, s%d, v%d" % (ACC + 16 * xt + 4 * t + h, sC, ACC + 16 * xt + 4 * t + h) for xt in range(2) for h in range(4)]
                units.append(([(0, t), (1, t)], ins + cvt(o, ACC + 4 * t) + cvt(o + 2, ACC + 16 + 4 * t) +
                              ["ds_write_b128 v%d, %s offset:%d" % (vL0, vr(o, 4), 12288 + t * 1024)]))
        else:
            n = 0
            NPRE = env("NPRE", 2)
            for xt in (1, 2, 3):
                for kt in range(2):
                    o = CV + 4 * n; n += 1
                    ins = cvt(o, ACC + 16 * xt + 8 * kt) + cvt(o + 2, ACC + 16 * xt + 8 * kt + 4)
                    if xt == 3: ins += ["v_cndmask_b32 v%d, v%d, v%d, s[%d:%d]" % (o + i, o + i, vOne, sC, sC + 1) for i in range(4)]
                    ins.append("ds_write_b128 v%d, %s offset:%d" % (vL1, vr(o, 4), kt * 3072 + (xt - 1) * 1024))
                    stx = "buffer_store_dwordx4 %s, v%d, %s, s%d offen offset:%d sc1" % (vr(o, 4), vG1, srd, sT2 if kt else sPub, (xt - 1) * 1024)
                    if n <= env("NIN", 0): ins.append(stx)
                    elif n <= NPRE: pre.append(stx)
                    else: late.append(stx)
                    units.append(([(xt, 2 * kt), (xt, 2 * kt + 1)], ins))
            for q in range(2):
                o = CV + 4 * n; n += 1
                ins = ["v_pk_mul_f32 %s, %s, %s op_sel_hi:[1,0]" % (vr(ACC + 4 * t + 2 * h, 2), vr(ACC + 4 * t + 2 * h, 2), vr(vSc, 2)) for t in (q, q + 2) for h in range(2)]
                if env("NOPK", 0) & 1: ins = ["v_mul_f32 v%d, v%d, v%d" % (ACC + 4 * t + h, vSc, ACC + 4 * t + h) for t in (q, q + 2) for h in range(4)]
                ins += cvt(o, ACC + 4 * q) + cvt(o + 2, ACC + 4 * (q + 2)) + ["ds_write_b128 v%d, %s offset:%d" % (vL0, vr(o, 4), 4096 + q * 1024)]
                for kt in range(2): late.append("buffer_store_dwordx2 %s, v%d, %s, s%d offen offset:%d sc1" % (vr(o + 2 * kt, 2), vG0, srd, sPub, (2 * kt + q) * 512))
                units.append(([(0, q), (0, q + 2)], ins))
        f = F + 32
        cnt, done_at, nxt = 0, [], 0
        def emit(x):
            nonlocal cnt
            a(x); cnt += 1
        LAG = env("LAG", 3)
        for u in range(len(units) + LAG):
            if u < len(units):
                for (xt, t) in units[u][0]:
                    d = ACC + 16 * xt + 4 * t
                    x, w = vr(f + 4 * t, 4), vr(f + 16 + 4 * xt, 4)
                    emit("v_mfma_f32_16x16x32_bf16 %s, %s, %s, %s" % ((vr(d, 4), x, w, vr(d, 4)) if isB and xt > 0 else (vr(d, 4), w, x, vr(d, 4))))
                done_at.append(cnt)
                if u == 0: emit("ds_write_b128 v%d, %s offset:%d" % (vFo, vr(O, 4), LFLAG))
            if u >= LAG:
                gap = cnt - done_at[u - LAG]
                if gap < 8:
                    a("s_nop %d", 7 - gap); cnt += 8 - gap
                for x in units[u - LAG][1]: emit(x)
        for x in pre: a(x)
        a("s_setprio %d", 3 if isB else 2)
        for i in range(16): a("v_mov_b32 v%d, 0", Qr + i)
        a("s_waitcnt lgkmcnt(0)")
        st(3)
        a("s_barrier")
        for x in late: a(x)
        if not isB: a("s_branch L_epi_done")
    a.label("L_epi_done")
    if env("IDLE", 0): a("s_sleep %d", env("IDLE", 0))
    def rdK(b): a("ds_read_b128 %s, v%d offset:%d", vr(Km + 4 * b, 4), vRk, IMG + b * 2048)
    def rdV(b):
        for g in range(2): a("ds_read_b128 %s, v%d offset:%d", vr(V + 8 * b + 4 * g, 4), vRv, IMG + b * 3072 + g * 512)
    def rdQ(p):
        r = vRk
        if p != 3:
            r = vT1; a("v_xor_b32 v%d, %d, v%d", r, (p ^ 3) << 14, vRk)
        for j in range(2): a("ds_read_b128 %s, v%d offset:%d", vr(Qm + 8 * p + 4 * j, 4), r, IMG + 12288 + j * 2048)
    rdK(0)
    a("ds_read_b128 %s, v%d offset:%d", vr(Kr, 4), vRr, IMG + 4096 + 512)
    rdQ(0)
    for p in range(3): a("v_xor_b32 v%d, %d, v%d", vT2 + p, (p ^ 3) << 14, vRr)
    a("s_mov_b32 exec_hi, 0")
    for p in range(4): a("ds_read_b128 %s, v%d offset:%d", vr(Qr + 4 * p, 4), vT2 + p if p < 3 else vRr, IMG + 4096)
    a("s_mov_b32 exec_hi, -1")
    rdQ(1); rdV(0)

    def kvop(what, b, sreg, extra=0):
        if env("NOKV", 0) == 1: return
        if what == "k":   a("buffer_load_dwordx4 %s, v%d, %s, s%d offen offset:%d sc1", vr(Km + 4 * b, 4), vK, srd, sreg, 2048 * b)
        elif what == "r": a("buffer_load_dwordx2 %s, v%d, %s, s%d offen offset:%d sc1", vr(Kr + 2 * b, 2), vKr, srd, sreg, 1024 * b)
        else:             a("buffer_load_dwordx4 %s, v%d, %s, s%d offen offset:%d sc1", vr(V + 8 * b + 4 * extra, 4), vV, srd, sreg, 3072 * b + 512 * extra)
    def qk1(j, kb, c="0"): a("v_mfma_f32_32x32x8_bf16 %s, %s, %s, %s", vr(S + 16 * (j % 4), 16), vr(Kr + 2 * kb, 2), vr(Qr + 2 * j, 2), c)
    def qk2(j, kb): a("v_mfma_f32_32x32x16_bf16 %s, %s, %s, %s", vr(S + 16 * (j % 4), 16), vr(Km + 4 * kb, 4), vr(Qm + 4 * j, 4), vr(S + 16 * (j % 4), 16))
    def pv(j, vb, half): a("v_smfmac_f32_32x32x32_bf16 %s, %s, %s, v%d", vr(O + 12 * j, 16), vr(V + 8 * vb + 4 * half, 4), vr(S + 16 * (j % 4) + 8 * half, 8), vIdx)
    def ex(r): a("v_exp_f32 v%d, v%d", r, r)
    def flagop(sreg):
        if env("FSW", 1):
            a("s_mov_b64 exec, 1")
            a("buffer_atomic_swap_x2 %s, off, %s, s%d sc1", vr(vNon, 2), srd, sreg)
            a("s_mov_b64 exec, -1")
        else: a("buffer_store_dwordx2 %s, off, %s, s%d sc0 sc1", vr(vNon, 2), srd, sreg)
    def signal1():
        a("s_waitcnt vmcnt(0)")
        flagop(sTrig)
        a("global_load_dword v255, v255, s[56:57]")
    def pollop(sline):
        a("v_mov_b32 v4, 0")
        a("v_mov_b32 v5, 0")
        a("buffer_atomic_or_x2 v[4:5], v%d, %s, s%d offen sc0 sc1", vFl, srd, sline)
    def poll(lbl, sline, mask, tmo, slp):
        a("s_mov_b32 s%d, 0", sTmo)
        a.label(lbl)
        pollop(sline)
        a("s_add_u32 s%d, s%d, 1", sTmo, sTmo)
        a("s_waitcnt vmcnt(0)")
        a("v_cmp_eq_u64 vcc, s[%d:%d], v[4:5]", sNon, sNon + 1)
        a("s_cmp_gt_u32 s%d, 0x%x", sTmo, tmo)
        a("s_cbranch_scc1 %s_ok", lbl)
        a("s_andn2_b32 s%d, %s, vcc_lo", sT, mask)
        a("s_cbranch_scc0 %s_ok", lbl)
        a("s_sleep %d", slp)
        a("s_branch %s", lbl)
        a.label(lbl + "_ok")

    a("s_waitcnt lgkmcnt(7)")
    qk1(0, 0); qk2(0, 0); qk1(1, 0); qk2(1, 0)
    def late_local():
        rdQ(2); rdQ(3); rdK(1); rdV(1)
        a("v_mov_b32 v%d, 1", vT2)
        a("ds_write_b32 v%d, v%d offset:12", vFo, vT2)
        for i in range(243, 252): a("v_mov_b32 v%d, 0", i)
    DEFER = env("DEFER", 0)
    if DEFER: a("s_nop 7")
    else: late_local()
    st(4, False)
    a("s_cmp_eq_u32 s%d, 0", sQH)
    a("s_cbranch_scc1 L_nosig")
    signal1()
    st(5, False)
    a.label("L_nosig")

    def wo_setup():
        R = 1280
        a("s_mov_b32 s%d, 0", sGo)
        a("s_lshl_b32 s%d, s%d, 10", sLo, sW)
        a("s_add_u32 s%d, s%d, %d", sLo, sLo, WOB)
        a("s_mov_b32 s%d, %d", sGs, 56 * R)
        a("s_mov_b32 s%d, 5120", sLs)
        a("s_mov_b32 s%d, %d", sGd, 24 * R)
        a("s_mov_b32 s%d, %d", sLd, 8 * 5120)
        a("s_mov_b32 s%d, 0", sGx)
        a("s_cmp_lt_u32 s%d, 5", sW)
        a("s_cbranch_scc1 L_wos")
        a("s_lshl_b32 s%d, s%d, 11", sLo, sW)
        a("s_add_u32 s%d, s%d, %d", sLo, sLo, WOB + 16 * 5120 - 5 * 2048)
        a("s_mov_b32 s%d, %d", sGs, 4 * R)
        a("s_mov_b32 s%d, %d", sGx, (4 * R) ^ (316 * R))
        a("s_mov_b32 s%d, 0", sGd)
        a("s_cmp_eq_u32 s%d, 7", sW)
        a("s_cselect_b32 s%d, 0, 1024", sLd)
        a.label("L_wos")
    def all8(lbl, val, n=8):
        a("v_and_b32 v%d, %d, v%d", vT3, n - 1, vLane)
        a("v_lshlrev_b32 v%d, 5, v%d", vT3, vT3)
        a("s_mov_b32 s%d, 0", sTmo)
        a.label(lbl)
        a("ds_read_b32 v%d, v%d offset:12", vT2, vT3)
        a("s_add_u32 s%d, s%d, 1", sTmo, sTmo)
        a("s_waitcnt lgkmcnt(0)")
        a("v_cmp_le_u32 vcc, %d, v%d", val, vT2)
        a("s_cmp_gt_u32 s%d, 0x20000", sTmo)
        a("s_cbranch_scc1 %s_ok", lbl)
        a("s_cmp_eq_u64 vcc, -1")
        a("s_cbranch_scc1 %s_ok", lbl)
        a("s_sleep %d", env("SL8", 2))
        a("s_branch %s", lbl)
        a.label(lbl + "_ok")

    def next_chunk():
        return [lambda: a("s_add_u32 s%d, s%d, 1", sCh, sCh),
                lambda: a("s_xor_b32 s%d, s%d, s%d", sNxt, sCh, sTB),
                lambda: a("s_and_b32 s%d, s%d, 7", sNxt, sNxt),
                lambda: a("s_mul_i32 s%d, s%d, %d", sNxt, sNxt, 4 * BLK),
                lambda: a("s_add_u32 s%d, s%d, s%d", sNxt, sNxt, sKV)]
    N = sNxt
    sched = {
        (0, 1): [("V1a", lambda: kvop("v", 1, N, 0)), ("V1b", lambda: kvop("v", 1, N, 1))],
        (0, 3): [("Wa", lambda: a("buffer_load_dwordx4 v%d, %s, s%d offen lds", vG, sr(WO, 4), sGo)), ("Wb", lambda: a("buffer_load_dwordx4 v%d, %s, s%d offen lds", vGb, sr(WO, 4), sGo))],
        (0, 6): [("K0", lambda: kvop("k", 0, N)), ("R0", lambda: kvop("r", 0, N))],
        (1, 1): [("V0a", lambda: kvop("v", 0, N, 0)), ("V0b", lambda: kvop("v", 0, N, 1))],
        (1, 6): [("K1", lambda: kvop("k", 1, N)), ("R1", lambda: kvop("r", 1, N))],
    }
    order = [(k, n) for k in sorted(sched) for (n, _) in sched[k]]
    def younger(name, pos):
        names = [n for _, n in order]
        i = names.index(name); cnt = 0
        while True:
            i = (i + 1) % len(order)
            if order[i][0] == pos or (order[i][0] > pos and (order[i - 1][0] < pos or i == 0)): return cnt
            cnt += 1
    PA, PB, POLLP = env("PA", 3), env("PB", 5), (1, env("PJ", 4))
    def spin(lbl, word):
        def f():
            a.label(lbl + "_w")
            a("s_add_u32 s%d, s%d, 1", sTmo, sTmo)
            a("s_cmp_gt_u32 s%d, 0x20000", sTmo)
            a("s_cbranch_scc1 %s_ok", lbl)
            a("s_sleep 1")
            a("ds_read_b32 v%d, v%d offset:%d", vT1, vFo, 4 * word)
            a("s_waitcnt lgkmcnt(0)")
            a("v_readfirstlane_b32 s%d, v%d", sT, vT1)
            a("s_cmp_eq_u32 s%d, 0", sT)
            a("s_cbranch_scc1 %s_w", lbl)
            a("s_branch %s", lbl)
        stubs.append(f)
    stubs = []
    def xreads(word, area, n, dst):
        return [lambda: a("ds_read_b32 v%d, v%d offset:%d", vT1, vFo, 4 * word)] + \
               [lambda q=q: a("ds_read_b128 %s, v%d offset:%d", vr(dst + 4 * q, 4), area, q * 1024) for q in range(n)]
    def xcheck(lbl, word, area, n, dst):
        a("s_waitcnt lgkmcnt(%d)", n)
        a("v_readfirstlane_b32 s%d, v%d", sT, vT1)
        a("s_cmp_eq_u32 s%d, 0", sT)
        a("s_cbranch_scc1 %s_w", lbl)
        a.label(lbl + "_ok")
        spin(lbl, word)
        def g():
            a.label(lbl)
            for f in xreads(word, area, n, dst)[1:]: f()
            a("s_branch %s_ok", lbl)
        stubs.append(g)
    def padd(d, x): a("v_pk_add_f32 %s, %s, %s", vr(d, 2), vr(d, 2), vr(x, 2))
    def iteration(first, last=False):
        for tt in range(2):
            for j in range(8):
                pj, pvb = ((7, 1 - tt) if j == 0 else (j - 1, tt))
                nj, nkb = (j + 2) % 8, (tt if j < 6 else 1 - tt)
                slots = [[], [], []]
                lds = [f for _, f in sched.get((tt, j), [])]
                wv = younger("V%db" % tt, (tt, 1)) if j == 0 else None
                wk = younger("R%d" % (1 - tt), (tt, 6)) if j == 6 else None
                if first:
                    if 8 * tt + j == PA:
                        a("s_cmp_eq_u32 s%d, 0", sQH)
                        a("s_cbranch_scc0 L_nosig2")
                        signal1()
                        st(5, False)
                        a.label("L_nosig2")
                    if 8 * tt + j == PB:
                        a("s_cmp_eq_u32 s%d, 0", sQH)
                        a("s_cbranch_scc1 L_nosig3")
                        a("s_setprio 1")
                        a.label("L_nosig3")
                    if (tt, j) == POLLP:
                        wo_setup()
                        all8("L_img", 1)
                        st(6, False)
                        poll("L_poll1", sF1, "s%d" % sMsk, 0x4000, 2)
                        st(7, False)
                        a("s_andn2_b32 s%d, 0xffff, vcc_lo", sMsk)
                        a("s_mov_b32 s%d, 0", sCh)
                        for f in next_chunk(): f()
                        for k in sorted(sched):
                            if k == (0, 3):
                                a("s_mov_b32 m0, s%d", sLo); a("s_nop 0"); sched[k][0][1]()
                                a("s_add_u32 m0, s%d, s%d", sLo, sLd); a("s_add_u32 s%d, s%d, s%d", sGo, sGo, sGd); sched[k][1][1]()
                                a("s_add_u32 s%d, s%d, s%d", sGo, sGo, sGs); a("s_add_u32 s%d, s%d, s%d", sLo, sLo, sLs); a("s_xor_b32 s%d, s%d, s%d", sGs, sGs, sGx)
                            elif (0, 1) < k < POLLP:
                                for _, f in sched[k]: f()
                    if (tt, j) < POLLP: lds = []
                    wv = None
                    if (tt, j) != (1, 6): wk = None
                else:
                    if (tt, j) == (0, 2): slots[2].append(lambda: a("s_mov_b32 m0, s%d", sLo))
                    if (tt, j) == (0, 3):
                        slots[0].append(lds[0]); slots[2].append(lds[1])
                        lds = []
                        slots[1] += [lambda: a("s_add_u32 m0, s%d, s%d", sLo, sLd), lambda: a("s_add_u32 s%d, s%d, s%d", sGo, sGo, sGd)]
                    if (tt, j) == (0, 4):
                        nc = next_chunk()
                        slots[0] += nc[0:2]; slots[1] += nc[2:4]; slots[2] += nc[4:5]
                    if (tt, j) == (0, 5):
                        slots[0] += [lambda: a("s_add_u32 s%d, s%d, s%d", sGo, sGo, sGs), lambda: a("s_add_u32 s%d, s%d, s%d", sLo, sLo, sLs)]
                        slots[1].append(lambda: a("s_xor_b32 s%d, s%d, s%d", sGs, sGs, sGx))
                    if (tt, j) == (1, 7): slots[0].append(lambda: a("s_cmp_lt_u32 s%d, 7", sCh))
                if last:
                    I = lambda f, *x: (lambda: a(f, *x))
                    if (tt, j) >= (0, 4):
                        slots = [[], [], []]; lds = []
                    if (tt, j) == (1, 0): wv = 0
                    if (tt, j) == (1, 6): wk = None
                    if (tt, j) == (0, 4):
                        slots[0] += [I("s_and_b32 s%d, s%d, 3", sT3, sW), I("s_xor_b32 s%d, s%d, 2", sT, sT3)]
                        slots[1] += [I("s_xor_b32 s%d, s%d, 3", sT2, sT3), I("s_mul_i32 s%d, s%d, 12288", sT, sT)]
                        slots[2] += [I("s_mul_i32 s%d, s%d, 12288", sT2, sT2)]
                    if (tt, j) == (0, 5):
                        slots[0] += [I("s_add_u32 s%d, s%d, %d", sCur, sT, CMB), I("s_add_u32 s%d, s%d, %d", sNxt, sT2, CMB)]
                        slots[1] += [I("s_mov_b32 s%d, 0x%x", sT3, f32bits(2.0 ** -30)), I("s_mov_b32 s%d, 0x%x", sT2, f32bits(2.0 ** 60))]
                    if (tt, j) == (0, 7):
                        a("v_and_b32 v%d, 3, v%d", vT3, vLane)
                        a("v_lshlrev_b32 v%d, 5, v%d", vT3, vT3)
                        slots[0] += [I("ds_read_b32 v%d, v%d offset:12", vT2, vT3), I("s_lshl_b32 s%d, s%d, 1", sT, sQH)]
                    if (tt, j) == (1, 1):
                        a("s_waitcnt lgkmcnt(0)")
                        a("v_cmp_le_u32 vcc, s%d, v%d", sT, vT2)
                        a("s_cmp_eq_u64 vcc, -1")
                        a("s_cbranch_scc0 L_afree0")
                        a.label("L_afree_back")
                        def afs():
                            a.label("L_afree0")
                            all8("L_afree", 2, 4)
                            a("s_branch L_afree_back")
                        stubs.append(afs)
                        a("v_add_u32 v%d, s%d, v%d", vT3, sCur, vL16)
                        a("v_add_u32 v%d, s%d, v%d", vT4, sNxt, vL16)
                        a("v_mov_b32 v%d, 1", vT2)
                        a("v_xor_b32 v%d, 64, v%d", vT1, vFo)
                        a("s_mov_b32 s%d, 0", sTmo)
                    if tt == 1 and 2 <= j <= 5:
                        for i in range(3):
                            q = 3 * (j - 2) + i
                            slots[i].append(I("ds_write_b128 v%d, %s offset:%d", vAr, vr(O + 4 * q, 4), q * 1024))
                        if j == 5: slots[2].append(I("ds_write_b32 v%d, v%d", vT1, vT2))
                    if (tt, j) == (1, 6):
                        xr = xreads(0, vT3, 12, O)
                        slots[1] += xr[:7]; slots[2] += xr[7:]
                if wv is not None: slots[2].append(lambda wv=wv: a("s_waitcnt vmcnt(%d)", wv))
                if wk is not None:
                    slots[0].append(lambda wk=wk: a("s_waitcnt vmcnt(%d)", wk))
                    for i, f in enumerate(lds): slots[1 + i].append(f)
                else:
                    for i, f in enumerate(lds): slots[i].append(f)
                regs = [S + 16 * (j % 4) + i for i in range(16)]
                def ex4():
                    for _ in range(4): ex(regs.pop(0))
                if first and (tt, j) == (0, 0):
                    ex4(); ex4(); a("s_waitcnt lgkmcnt(0)")
                    if DEFER: slots[2].append(late_local)
                elif first and (tt, j) == (0, 2) and DEFER:
                    pv(pj, pvb, 0); ex4(); pv(pj, pvb, 1); a("s_waitcnt lgkmcnt(0)"); ex4()
                else:
                    pv(pj, pvb, 0); [f() for f in slots[0]]; ex4()
                    pv(pj, pvb, 1); [f() for f in slots[1]]; ex4()
                if last and (tt, j) == (1, 7):
                    if DIAG and env("AD", 0): a("s_memtime s[74:75]")
                    if DIAG: a("s_waitcnt lgkmcnt(0)")
                    xcheck("L_cmb", 0, vT3, 12, O)
                    a("s_waitcnt lgkmcnt(6)")
                    for i in range(0, 24, 2): padd(O + 48 + i, O + i)
                    for k in range(6): a("ds_write_b128 v%d, %s offset:%d", vT3, vr(O + 48 + 4 * k, 4), k * 1024)
                    a("v_xor_b32 v%d, 32, v%d", vT1, vFo)
                    a("ds_write_b32 v%d, v%d offset:4", vT1, vT2)
                    ex4(); ex4()
                elif last and (tt, j) == (1, 6):
                    [f() for f in slots[2]]; ex4(); ex4()
                else:
                    qk1(nj, nkb); ex4()
                    qk2(nj, nkb); [f() for f in slots[2]]; ex4()
    iteration(True)
    BLEAD = env("BLEAD", 3)
    a("s_mov_b32 s%d, 3", sTrig)
    if BLEAD:
        a("s_cmp_eq_u32 s%d, 0", sQH)
        a("s_cbranch_scc1 L_nolead")
        a("s_setprio 3")
        a.label("L_nolead")
    st(8, False)
    a.raw(".p2align 6")
    a.label("L_attn")
    if DIAG and env("AD", 0):
        a("s_memtime s[100:101]")
        a("s_waitcnt lgkmcnt(0)")
        for k in range(2, 7):
            a("s_cmp_eq_u32 s%d, %d", sCh, k)
            a("s_cselect_b32 s%d, s100, s%d", 64 + 2 * (8 + k), 64 + 2 * (8 + k))
    a("s_cmp_eq_u32 s%d, s%d", sCh, sTrig)
    a("s_cbranch_scc1 L_mid")
    a.label("L_attn_go")
    iteration(False)
    a("s_cbranch_scc1 L_attn")
    if DIAG and env("AD", 0): a("s_memtime s[94:95]")
    iteration(False, True)
    K0 = O + 72
    xr = xreads(1, vT4, 6, S)
    xr[0](); xr[1]()
    pv(7, 1, 0); pv(7, 1, 1)
    st(9, False)
    for f in xr[2:]: f()
    a("s_waitcnt lgkmcnt(14)")
    for i in range(0, 12, 2): padd(K0 + i, O + 24 + i)
    a("s_mov_b32 s%d, 0", sTmo)
    if DIAG: a("s_waitcnt lgkmcnt(0)")
    xcheck("L_cmb2", 1, vT4, 6, S)
    a("s_waitcnt lgkmcnt(3)")
    for i in range(0, 12, 2): padd(K0 + i, S + i)
    for i in range(12, 24, 2): padd(K0 + i, O + 24 + i)
    a("s_waitcnt lgkmcnt(0)")
    for i in range(12, 24, 2): padd(K0 + i, S + i)
    Z = S + 32
    def get_l():
        for j in range(2):
            a("v_mov_b32 v%d, v%d", Z + 4 + 2 * j, K0 + 12 * j + 8)
            a("v_mov_b32 v%d, v%d", Z + 5 + 2 * j, K0 + 12 * j + 8)
    get_l()
    a("s_mov_b32 s%d, 1", sCh)
    a("v_mov_b32 v%d, 2", vT2)
    for j in range(2): a("v_permlane32_swap_b32 v%d, v%d", Z + 5 + 2 * j, Z + 4 + 2 * j)
    a.label("L_fin")
    for j in range(2): a("v_rcp_f32 v%d, v%d", Z + 2 * j, Z + 4 + 2 * j)
    a("s_nop 0")
    for j in range(2):
        k = K0 + 12 * j
        for i in range(0, 12, 2): a("v_pk_mul_f32 %s, %s, %s op_sel_hi:[1,0]", vr(k + i, 2), vr(k + i, 2), vr(Z + 2 * j, 2))
        for i in range(4): a("v_cvt_pk_bf16_f32 v%d, v%d, v%d", S + 4 * j + i, k + 2 * i, k + 2 * i + 1)
        a("buffer_store_dwordx4 %s, v%d, %s, s%d offen offset:%d sc1", vr(S + 4 * j, 4), vL16, srd, sO, j * 1024)
        for i in range(2): a("v_cvt_pk_bf16_f32 v%d, v%d, v%d", S + 8 + 2 * j + i, k + 8 + 2 * i, k + 9 + 2 * i)
    a("buffer_store_dwordx4 %s, v%d, %s, s%d offen sc1", vr(S + 8, 4), vOr, srd, sO)
    st(16, False)
    if env("EARLY", 1): a("ds_write_b32 v%d, v%d offset:12", vFo, vT2)
    a("s_cmp_eq_u32 s%d, 0", sCh)
    a("s_cbranch_scc1 L_guard_ok")
    a("v_pk_mul_f32 %s, %s, 0", vr(Z, 2), vr(K0, 2))
    a("v_pk_mul_f32 %s, %s, 0", vr(Z + 2, 2), vr(K0 + 12, 2))
    for i in range(2, 12, 2):
        for j in range(2): a("v_pk_fma_f32 %s, %s, 0, %s", vr(Z + 2 * j, 2), vr(K0 + 12 * j + i, 2), vr(Z + 2 * j, 2))
    a("v_cmp_le_f32 s[%d:%d], s%d, v%d", sC, sC + 1, sT3, Z + 4)
    a("v_cmp_le_f32 s[%d:%d], s%d, v%d", sC2, sC2 + 1, sT3, Z + 6)
    a("v_pk_add_f32 %s, %s, %s", vr(Z, 2), vr(Z, 2), vr(Z + 2, 2))
    a("v_cmp_ge_f32 vcc, s%d, v%d", sT2, Z + 4)
    a("s_and_b64 s[%d:%d], s[%d:%d], s[%d:%d]", sC, sC + 1, sC, sC + 1, sC2, sC2 + 1)
    a("v_cmp_ge_f32 s[%d:%d], s%d, v%d", sC2, sC2 + 1, sT2, Z + 6)
    a("s_and_b64 s[%d:%d], s[%d:%d], vcc", sC, sC + 1, sC, sC + 1)
    a("v_cmp_o_f32 vcc, v%d, v%d", Z, Z + 1)
    a("s_and_b64 s[%d:%d], s[%d:%d], s[%d:%d]", sC, sC + 1, sC, sC + 1, sC2, sC2 + 1)
    a("s_and_b64 s[%d:%d], s[%d:%d], vcc", sC, sC + 1, sC, sC + 1)
    a("s_cmp_eq_u64 s[%d:%d], -1", sC, sC + 1)
    a("s_cbranch_scc0 L_slow")
    a.label("L_guard_ok")
    if not env("EARLY", 1): a("ds_write_b32 v%d, v%d offset:12", vFo, vT2)
    a("v_mov_b32 v%d, s%d", vNon, sNon)
    a("v_mov_b32 v%d, s%d", vNon + 1, sNon + 1)
    a("v_lshrrev_b32 v%d, 4, v%d", vT4, vLane)
    a("v_and_b32 v%d, 15, v%d", vT3, vLane)
    a("s_lshl_b32 s%d, s%d, 8", sT, sE)
    a("v_lshl_add_u32 v%d, v%d, 4, s%d", vT1, vT3, sT)
    a("v_lshrrev_b32 v%d, 5, v%d", vT2, vLane)
    a("v_mul_u32_u24 v%d, 2560, v%d", vT2, vT2)
    a("v_and_b32 v%d, 16, v%d", vOa, vLane)
    a("v_lshl_add_u32 v%d, v%d, 5, v%d", vOa, vOa, vT2)
    a("v_add_u32 v%d, v%d, v%d", vOa, vOa, vT1)
    a("v_mul_u32_u24 v%d, %d, v%d", vOb, 2 * OB, vT4)
    a("v_add_u32 v%d, v%d, v%d", vOb, vOb, vT1)
    a("v_add_u32 v%d, 2048, v%d", vOb, vOb)
    a("s_mul_i32 s%d, s%d, %d", sT, sQH, 8 * 5120)
    a("s_add_u32 s%d, s%d, %d", sT, sT, WOB)
    a("v_and_b32 v%d, 31, v%d", vT1, vLane)
    a("v_mul_u32_u24 v%d, 40, v%d", vT1, vT1)
    a("v_add3_u32 v%d, v%d, v%d, s%d", vWa2, vT1, vT2, sT)
    a("s_mul_i32 s%d, s%d, %d", sT, sQH, 7 * 5120)
    a("s_sub_u32 s%d, %d, s%d", sT, 16 * 5120, sT)
    a("v_add_u32 v%d, s%d, v%d", vWa3, sT, vWa2)
    COAL = env("COAL", 1)
    a("v_and_b32 v%d, 4, v%d", vT2, vT3)
    a("v_lshlrev_b32 v%d, %d, v%d", vT2, 1 if COAL else 2, vT2)
    a("v_and_b32 v%d, 8, v%d", vT1, vT3)
    a("v_lshrrev_b32 v%d, 1, v%d", vT1, vT1)
    a("v_and_b32 v%d, 3, v%d", vT3, vT3)
    a("v_or3_b32 v%d, v%d, v%d, v%d", vT2, vT2, vT3, vT1)
    a("v_mul_u32_u24 v%d, %d, v%d", vT2, 176 if COAL else 2560, vT2)
    a("v_mad_u32_u24 v%d, v%d, 40, v%d", vSt, vT4, vT2)
    if COAL:
        a("s_and_b32 s%d, s%d, 3", sT, sW)
        a("s_mul_i32 s%d, s%d, 12288", sT, sT)
        a("s_add_u32 s%d, s%d, %d", sCur, sT, CMB)
        a("v_add_u32 v%d, s%d, v%d", vSt, sCur, vSt)
    a("s_lshl_b32 s%d, s%d, 3", sT, sHH)
    a("s_lshl_b32 s%d, 0xff, s%d", sM2, sT)
    EP = env("EP", 0)
    if EP:
        a("s_cmp_eq_u32 s%d, 0", sQH)
        a("s_cbranch_scc1 L_wdoneB_ok")
        all8("L_wdoneB", 2)
        pollop(sPend)
    a("s_waitcnt vmcnt(%d)", 1 if EP else 0)
    flagop(sF2)
    st(10)
    def wread_ops(s):
        fb, g, i = s % 2, s // 5, s % 5
        base, blk = ((vWb2 if g else vWa2), i) if i < 4 else ((vWb3 if g else vWa3), 0)
        return ["ds_read_b64_tr_b16 %s, v%d offset:%d" % (vr(WF + 20 * fb + 4 * j + 2 * q, 2), base, blk * 5120 + j * 8 + q * 1280) for j in range(5) for q in range(2)]
    def oloads(s):
        b_, i = (sO2 if s >= 5 else sOc), s % 5
        if i < 4:
            return ["s_add_u32 s%d, s%d, %d" % (sNxt, b_, i * 2 * OB)] + \
                   ["buffer_load_dwordx4 %s, v%d, %s, s%d offen offset:%d sc1" % (vr(OF + 8 * s + 4 * j, 4), vOa, srd, sNxt, 1024 * j) for j in range(2)]
        return ["buffer_load_dwordx4 %s, v%d, %s, s%d offen offset:%d sc1" % (vr(OF + 8 * s + 4 * e, 4), vOb, srd, b_, OB * e) for e in range(2)]
    def choose():
        a("s_lshr_b32 s%d, s%d, 15", sT, sM2)
        a("s_xor_b32 s%d, s%d, 1", sT2, sT)
        a("s_mul_i32 s%d, s%d, %d", sO2, sT, 8 * OB)
        a("s_add_u32 s%d, s%d, s%d", sO2, sO2, sOc)
        a("s_mul_i32 s%d, s%d, %d", sT3, sT2, 8 * OB)
        a("s_add_u32 s%d, s%d, s%d", sOc, sOc, sT3)
    def choose2():
        a("s_mul_i32 s%d, s%d, 10240", sT, sT)
        a("s_mul_i32 s%d, s%d, 10240", sT2, sT2)
        a("v_add_u32 v%d, s%d, v%d", vWb3, sT, vWa3)
        a("v_add_u32 v%d, s%d, v%d", vWa3, sT2, vWa3)
        a("v_lshl_add_u32 v%d, s%d, 1, v%d", vWb2, sT, vWa2)
        a("v_lshl_add_u32 v%d, s%d, 1, v%d", vWa2, sT2, vWa2)
    a("s_cmp_eq_u32 s%d, 0", sQH)
    a("s_cbranch_scc1 L_aload")
    if not EP: all8("L_wdoneB", 2)
    a("s_mov_b32 s%d, 0", sTmo)
    if EP:
        a("s_waitcnt vmcnt(1)")
        a("s_branch L_poll2e")
    else: pollop(sPend)
    a.label("L_poll2")
    a("s_add_u32 s%d, s%d, 1", sTmo, sTmo)
    a("s_waitcnt vmcnt(0)")
    a.label("L_poll2e")
    a("v_cmp_eq_u64 vcc, s[%d:%d], v[4:5]", sNon, sNon + 1)
    a("s_cmp_gt_u32 s%d, 0x8000", sTmo)
    a("s_cbranch_scc1 L_first")
    a("s_or_b32 s%d, vcc_lo, s%d", sT, sM2)
    a("s_andn2_b32 s%d, 0xffff, s%d", sT, sT)
    a("s_cbranch_scc0 L_first")
    a("s_xor_b32 s%d, s%d, 0xffff", sM2, sM2)
    a("s_or_b32 s%d, vcc_lo, s%d", sT, sM2)
    a("s_andn2_b32 s%d, 0xffff, s%d", sT, sT)
    a("s_cbranch_scc0 L_first")
    a("s_sleep %d", env("SLP2", 2))
    pollop(sPend)
    a("s_branch L_poll2")
    a.label("L_first")
    st(12)
    if env("RP", 1):
        a("s_andn2_b32 s%d, s%d, vcc_lo", sT, sM2)
        a("s_cbranch_scc0 L_norp")
        pollop(sPend)
        a.label("L_norp")
    choose()
    for s in range(5):
        for x in oloads(s): a(x)
    choose2()
    for x in wread_ops(0): a(x)
    if env("RP", 1): a("s_waitcnt vmcnt(10)")
    a.label("L_chk2")
    a("v_cmp_eq_u64 vcc, s[%d:%d], v[4:5]", sNon, sNon + 1)
    a("s_andn2_b32 s%d, s%d, vcc_lo", sP2, sM2)
    a("s_cbranch_scc1 L_more" if env("P2", 1) else "s_cbranch_scc1 L_aback")
    for s in range(5, 10):
        for x in oloads(s): a(x)
    a.label("L_aback")
    st(13)
    for s in range(10):
        o = OF + 8 * s
        acc = ACC2 if s < 5 else ACC3
        rd = wread_ops(s + 1) if s < 9 else []
        if s <= 5:
            a("s_cmp_eq_u32 s%d, 0", sP2)
            if s < 5:
                a("s_cbranch_scc1 L_both%d", s)
                if s == env("PP", 2): pollop(sPend)
                a("s_waitcnt vmcnt(%d)", 2 * (4 - s) + (1 if s >= env("PP", 2) else 0))
            else:
                a("s_cbranch_scc0 L_second")
            a.label("L_both%d" % s)
        a("s_waitcnt vmcnt(%d) lgkmcnt(0)", 2 * (9 - s))
        if s % 5 == 4:
            a("v_swap_b32 v%d, v%d", o + 2, o + 4)
            a("v_swap_b32 v%d, v%d", o + 3, o + 5)
            a("s_nop 1")
        if s == 7 and COAL:
            R = OF
            rd += ["v_lshrrev_b32 v%d, 3, v%d" % (R + 4, vLane), "v_and_b32 v%d, 7, v%d" % (R + 5, vLane),
                   "v_mul_u32_u24 v%d, 176, v%d" % (R, R + 4), "v_mul_u32_u24 v%d, 2560, v%d" % (R + 1, R + 4),
                   "v_lshl_add_u32 v%d, v%d, 4, v%d" % (R, R + 5, R), "v_lshl_add_u32 v%d, v%d, 4, v%d" % (R + 1, R + 5, R + 1),
                   "v_add_u32 v%d, s%d, v%d" % (R, sCur, R),
                   "v_lshrrev_b32 v%d, 1, v%d" % (R + 4, vLane), "v_and_b32 v%d, 1, v%d" % (R + 5, vLane),
                   "v_mul_u32_u24 v%d, 176, v%d" % (R + 2, R + 4)]
        if s == 8 and COAL:
            rd += ["v_and_b32 v%d, 24, v%d" % (R + 6, R + 4), "v_add_u32 v%d, v%d, v%d" % (R + 4, R + 4, R + 6),
                   "v_mul_u32_u24 v%d, 2560, v%d" % (R + 3, R + 4),
                   "v_lshl_add_u32 v%d, v%d, 4, v%d" % (R + 2, R + 5, R + 2), "v_lshl_add_u32 v%d, v%d, 4, v%d" % (R + 3, R + 5, R + 3),
                   "v_add_u32 v%d, s%d, v%d" % (R + 2, sCur, R + 2)]
        if s == 9:
            xr = xreads(2, vAr, 10, PART)
        for tt in (0, 1):
            for j in range(5):
                d = acc + 4 * (5 * tt + j)
                a("v_mfma_f32_16x16x32_bf16 %s, %s, %s, %s", vr(d, 4), vr(WF + 20 * (s % 2) + 4 * j, 4), vr(o + 4 * tt, 4), vr(d, 4) if s % 5 else "0")
                for _ in range(2):
                    if rd: a(rd.pop(0))
                    elif s == 9 and xr: xr.pop(0)()
    st(14, False)
    a("s_mov_b32 s%d, 0", sTmo)
    a("s_add_u32 s%d, s%d, %d", sT2, sPub, 32 * 2560)
    a("v_mov_b32 v%d, 1", vT2)
    a("s_cmp_eq_u32 s%d, 0", sQH)
    a("s_cbranch_scc0 L_x1")
    for q in range(10):
        for h in range(4): a("v_add_f32 v%d, v%d, v%d", ACC2 + 4 * q + h, ACC2 + 4 * q + h, ACC3 + 4 * q + h)
        a("ds_write_b128 v%d, %s offset:%d", vAr, vr(ACC2 + 4 * q, 4), q * 1024)
    a("ds_write_b32 v%d, v%d offset:%d", vFo, vT2, 128 + 8)
    a("s_waitcnt lgkmcnt(0)")
    a("s_branch L_xdone") if DIAG else a("s_endpgm")
    a.label("L_x1")
    if DIAG: a("s_waitcnt lgkmcnt(0)")
    xcheck("L_xch", 2, vAr, 10, PART)
    if COAL:
        for i in range(0, 40, 2): padd(ACC2 + i, ACC3 + i)
        a("s_waitcnt lgkmcnt(0)")
    for tt in range(2):
        for q in range(5):
            r = ACC2 + 20 * tt + 4 * q
            o = WF + 12 * tt
            if not COAL:
                for h in range(2): padd(r + 2 * h, ACC3 + 20 * tt + 4 * q + 2 * h)
                a("s_waitcnt lgkmcnt(%d)", 9 - 5 * tt - q)
            for h in range(2): padd(r + 2 * h, PART + 20 * tt + 4 * q + 2 * h)
            for h in range(2): a("v_cvt_pk_bf16_f32 v%d, v%d, v%d", o + 2 * q + h, r + 2 * h, r + 2 * h + 1)
            if COAL:
                a("ds_write_b64 v%d, %s offset:%d", vSt, vr(o + 2 * q, 2), tt * 16 * 176 + 8 * q)
            else:
                if q in (1, 3): a("buffer_store_dwordx4 %s, v%d, %s, s%d offen offset:%d", vr(o + 2 * q - 2, 4), vSt, sr(OUT, 4), sT2 if tt else sPub, 8 * (q - 1))
                if q == 4: a("buffer_store_dwordx2 %s, v%d, %s, s%d offen offset:32", vr(o + 8, 2), vSt, sr(OUT, 4), sT2 if tt else sPub)
        if COAL:
            for i in (2 * tt, 2 * tt + 1): a("ds_read_b128 %s, v%d offset:%d", vr(OF + 8 + 4 * i, 4), R, i * 8 * 176)
    if COAL:
        a("ds_read_b128 %s, v%d offset:128", vr(OF + 24, 4), R + 2)
        for i in range(4):
            a("s_add_u32 s%d, s%d, %d", sT2, sPub, i * 16 * 2560)
            a("s_waitcnt lgkmcnt(%d)", (9, 8, 2, 1)[i])
            a("buffer_store_dwordx4 %s, v%d, %s, s%d offen %s", vr(OF + 8 + 4 * i, 4), R + 1, sr(OUT, 4), sT2, os.environ.get("OSC", ""))
        a("s_waitcnt lgkmcnt(0)")
        a("buffer_store_dwordx4 %s, v%d, %s, s%d offen offset:128 %s", vr(OF + 24, 4), R + 3, sr(OUT, 4), sPub, os.environ.get("OSC", ""))
    a.label("L_xdone")
    st(15)
    a.label("L_exit")
    st.flush(sW)
    a.label("L_end")
    a("s_endpgm")
    a.label("L_mid")
    a("s_add_u32 s%d, s%d, 1", sTrig, sTrig)
    a("s_cmp_eq_u32 s%d, 3", sCh)
    a("s_cbranch_scc0 L_mid2")
    a("s_lshl_b32 s%d, s%d, 1", sT3, sTB)
    a("s_add_u32 s%d, s%d, s%d", sT3, sT3, sHH)
    a("s_lshl_b32 s%d, s%d, 1", sT3, sT3)
    a("s_add_u32 s%d, s%d, s%d", sT3, sT3, sKH)
    a("s_lshl_b32 s%d, s%d, 5", sT2, sB)
    a("s_add_u32 s%d, s%d, s%d", sT2, sT2, sT3)
    a("s_lshl_b32 s%d, s%d, 1", sT2, sT2)
    a("s_add_u32 s%d, s%d, s%d", sT2, sT2, sQH)
    a("s_mul_i32 s%d, s%d, %d", sOc, sT2, 16 * OB)
    a("s_add_u32 s%d, s%d, %d", sOc, sOc, O_OFF)
    a("s_mul_i32 s%d, s%d, %d", sT2, sT2, FS)
    a("s_add_u32 s%d, s%d, %d", sPend, sT2, F2_OFF)
    a("s_lshl_b32 s%d, s%d, 3", sT3, sT3)
    a("s_add_u32 s%d, s%d, s%d", sT3, sT3, sE)
    a("s_mul_i32 s%d, s%d, %d", sPub, sT3, 8 * 2560)
    a("s_mul_i32 s%d, s%d, 1280", sT2, sB)
    a("s_add_u32 s%d, s%d, s%d", sPub, sPub, sT2)
    a("s_and_b32 s%d, s%d, 7", sT2, sHP)
    a("s_mul_i32 s%d, s%d, 160", sT2, sT2)
    a("s_add_u32 s%d, s%d, s%d", sPub, sPub, sT2)
    a("s_cmp_eq_u32 s%d, 0", sMsk)
    a("s_cbranch_scc1 L_poll3_ok")
    poll("L_poll3", sF1, "0xffff", 0x4000, 2)
    a.label("L_mid2")
    a("s_cmp_eq_u32 s%d, 0", sQH)
    a("s_cselect_b32 s%d, 0, s%d", sTrig, sTrig)
    a("s_cbranch_scc1 L_attn_go")
    a("s_cmp_eq_u32 s%d, %d", sCh, max(BLEAD + 1, 3))
    a("s_cbranch_scc0 L_mid3")
    a("s_setprio 1")
    a.label("L_mid3")
    a("s_cmp_ge_u32 s%d, %d", sCh, max(BLEAD + 1, 4))
    a("s_cselect_b32 s%d, 0, s%d", sTrig, sTrig)
    a("s_cmp_eq_u32 s%d, 4", sCh)
    a("s_cbranch_scc0 L_attn_go")
    a("s_cmp_lt_u32 s%d, 5", sW)
    a("s_cbranch_scc1 L_attn_go")
    a("v_mov_b32 v%d, 2.0", vG)
    a("v_mov_b32 v%d, 2.0", vGb)
    a("s_mov_b32 s%d, %d", sLo, CMB + 8 * 7168)
    a("s_mov_b32 s%d, 0", sLs)
    a("s_mov_b32 s%d, 0", sGs)
    a("s_mov_b32 s%d, 0", sGx)
    a("s_mov_b32 s%d, 0", sGo)
    a("s_branch L_attn_go")
    a.label("L_more")
    a("ds_read_b32 v%d, v%d offset:8", vT3, vFo)
    a("s_add_u32 s%d, s%d, 1", sTmo, sTmo)
    a("s_waitcnt lgkmcnt(0)")
    a("v_readfirstlane_b32 s%d, v%d", sT, vT3)
    a("s_cmp_gt_u32 s%d, 0x8000", sTmo)
    a("s_cbranch_scc1 L_aback")
    a("s_cmp_eq_u32 s%d, 0", sT)
    a("s_cbranch_scc0 L_aback")
    pollop(sPend)
    a("s_waitcnt vmcnt(0)")
    a("s_branch L_chk2")
    a.label("L_second")
    if env("PP", 2) < 5:
        a("s_waitcnt vmcnt(0)")
        a("v_cmp_eq_u64 vcc, s[%d:%d], v[4:5]", sNon, sNon + 1)
        a("s_andn2_b32 s%d, s%d, vcc_lo", sT, sM2)
        a("s_cbranch_scc0 L_poll5_ok")
    poll("L_poll5", sPend, "s%d" % sM2, 0x8000, env("SLP2", 2))
    for s_ in range(5, 10):
        for x in oloads(s_): a(x)
    a("s_branch L_both5")
    a.label("L_aload")
    a("s_waitcnt vmcnt(0)")
    poll("L_poll4", sPend, "0xffff", 0x8000, env("SLP2", 2))
    choose(); choose2()
    a("s_mov_b32 s%d, 0", sP2)
    for s_ in range(10):
        for x in oloads(s_): a(x)
        a("s_waitcnt vmcnt(%d)", env("AW", 4))
    a("s_setprio 0")
    all8("L_wdone", 2)
    a("s_setprio 2")
    for x in wread_ops(0): a(x)
    a("s_branch L_aback")
    for v in range(2):
        a.label("L_nonce%d" % v)
        a("s_mov_b32 s%d, 0", sT)
        a.label("L_nonce_retry%d" % v)
        a("v_mov_b32 v%d, 0", vT1)
        a("global_load_dwordx2 %s, v%d, s[%d:%d] sc0 sc1", vr(vNon, 2), vT1, sDbg, sDbg + 1)
        a("s_add_u32 s%d, s%d, 1", sT, sT)
        a("s_waitcnt vmcnt(0)")
        a("v_readfirstlane_b32 s%d, v%d", sNon + 1, vNon + 1)
        a("v_readfirstlane_b32 s%d, v%d", sNon, vNon)
        a("s_cmp_gt_u32 s%d, 0x4000", sT)
        a("s_cbranch_scc1 L_nonce_ok%d", v)
        a("s_cmp_eq_u32 s%d, 0", sNon + 1)
        a("s_cbranch_scc1 L_nonce_retry%d", v)
        a("s_branch L_nonce_ok%d", v)
    for f in stubs: f()
    a.label("L_slow")
    C = S
    MX = O
    a("s_waitcnt vmcnt(0)")
    a("s_and_b32 s%d, s%d, 3", sT, sW)
    a("s_mul_i32 s%d, s%d, %d", sT, sT, BLK)
    a("s_sub_u32 s%d, s%d, s%d", sKV, sKV, sT)
    a("s_mov_b32 s%d, s%d", sCur, sKV)
    a("s_add_u32 s%d, s%d, %d", sCh, sKV, KV_PAIR)
    a("v_mov_b32 v%d, 0xff800000", MX)
    a("v_mov_b32 v%d, 0xff800000", MX + 1)
    a.label("L_slow1")
    for b in range(2): kvop("k", b, sCur); kvop("r", b, sCur)
    a("s_waitcnt vmcnt(0)")
    for b in range(2):
        qk1(6, b); qk2(6, b); qk1(7, b); qk2(7, b)
        a("s_nop 15")
        for j in range(2):
            for i in range(8): a("v_max3_f32 v%d, v%d, v%d, v%d", MX + j, MX + j, S + 32 + 16 * j + 2 * i, S + 32 + 16 * j + 2 * i + 1)
    a("s_add_u32 s%d, s%d, %d", sCur, sCur, BLK)
    a("s_cmp_lt_u32 s%d, s%d", sCur, sCh)
    a("s_cbranch_scc1 L_slow1")
    for j in range(2):
        a("v_mov_b32 v%d, v%d", vT1, MX + j)
        a("s_nop 1")
        a("v_permlane32_swap_b32 v%d, v%d", vT1, MX + j)
        a("s_nop 1")
        a("v_max_f32 v%d, v%d, v%d", vT1, vT1, MX + j)
        for i in range(16): a("v_sub_f32 v%d, 0, v%d", C + 16 * j + i, vT1)
    for i in range(24): a("v_mov_b32 v%d, 0", K0 + i)
    a("s_mov_b32 s%d, s%d", sCur, sKV)
    a.label("L_slow2")
    for b in range(2):
        kvop("k", b, sCur); kvop("r", b, sCur); kvop("v", b, sCur, 0); kvop("v", b, sCur, 1)
    a("s_waitcnt vmcnt(0)")
    for b in range(2):
        for j in range(2):
            qk1(6 + j, b, vr(C + 16 * j, 16))
            qk2(6 + j, b)
        a("s_nop 15")
        for i in range(32): ex(S + 32 + i)
        a("s_nop 1")
        pv(6, b, 0); pv(6, b, 1)
        a("s_nop 10")
        pv(7, b, 0); pv(7, b, 1)
    a("s_add_u32 s%d, s%d, %d", sCur, sCur, BLK)
    a("s_cmp_lt_u32 s%d, s%d", sCur, sCh)
    a("s_cbranch_scc1 L_slow2")
    a("s_nop 15")
    get_l()
    a("s_nop 1")
    for j in range(2): a("v_permlane32_swap_b32 v%d, v%d", Z + 5 + 2 * j, Z + 4 + 2 * j)
    a("s_mov_b32 s%d, 0", sCh)
    a("s_branch L_fin")
    a.label("L_code_end")
    return name, NFV, 163840

def gen_spin(a):
    name = "spin_kernel"
    kernel_head(a, name)
    wa, ia, wb, ib, mult, off = [int(x) for x in SPIN.split(",")]
    a("s_cmp_ge_u32 s2, 1")
    a("s_cbranch_scc1 L_spin_end")
    a("s_load_dwordx2 s[4:5], s[0:1], 64")
    a("s_waitcnt lgkmcnt(0)")
    a("s_add_u32 s4, s4, %d", DIAG_OFF)
    a("s_addc_u32 s5, s5, 0")
    if wa >= 0:
        a("v_mov_b32 v1, %d", 4 * ia + 128 * (16 * 8 + wa))
        a("v_mov_b32 v2, %d", 4 * ib + 128 * (16 * 8 + wb))
        a("global_load_dword v3, v1, s[4:5]")
        a("global_load_dword v4, v2, s[4:5]")
        a("s_waitcnt vmcnt(0)")
        a("v_sub_u32 v3, v4, v3")
        a("s_nop 1")
        a("v_readfirstlane_b32 s8, v3")
    else:
        a("v_lshlrev_b32 v1, 11, v0")
        a("v_mov_b32 v2, 0")
        a("global_load_dword v7, v2, s[4:5]")
        for k in range(4):
            a("global_load_dword v%d, v1, s[4:5] offset:%d", 8 + k, 4 * ia + (0 if wa == -1 else 128 * wb))
            a("global_load_dword v%d, v1, s[4:5] offset:%d", 12 + k, 4 * ib + 128 * wb)
            a("v_add_u32 v1, %d, v1", 64 * 2048)
        a("s_waitcnt vmcnt(0)")
        for k in range(8): a("v_sub_u32 v%d, v%d, v7", 8 + k, 8 + k)
        op = "min" if wa == -1 else "max"
        for k in range(1, 4):
            a("v_%s_i32 v8, v8, v%d", op, 8 + k)
            a("v_max_i32 v12, v12, v%d", 12 + k)
        a("s_nop 1")
        a("v_readlane_b32 s20, v8, 0")
        a("v_readlane_b32 s21, v12, 0")
        for l in range(1, 64):
            a("v_readlane_b32 s22, v8, %d", l)
            a("v_readlane_b32 s23, v12, %d", l)
            a("s_%s_i32 s20, s20, s22", op)
            a("s_max_i32 s21, s21, s23")
        a("s_sub_u32 s8, s21, s20")
    a("s_memrealtime s[10:11]")
    a("s_nop 3")
    a("s_max_u32 s8, s8, %d", off)
    a("s_sub_u32 s8, s8, %d", off)
    a("s_min_u32 s8, s8, 20000")
    a("s_mul_i32 s8, s8, %d", mult)
    a("s_waitcnt lgkmcnt(0)")
    a.label("L_spin")
    a("s_memrealtime s[12:13]")
    a("s_waitcnt lgkmcnt(0)")
    a("s_sub_u32 s14, s12, s10")
    a("s_cmp_lt_u32 s14, s8")
    a("s_cbranch_scc1 L_spin")
    a.label("L_spin_end")
    a("s_endpgm")
    return name, 16, 0

def gen_pre(a):
    name = "pre_kernel"
    kernel_head(a, name)
    PRE = env("PREK", 0)
    if PRE == 2:
        a("s_cmp_ge_u32 s2, 256")
        a("s_cbranch_scc1 L_pre_end")
        a("s_bfe_u32 s22, s2, 0x10002")
        a("s_mul_i32 s30, s22, 24")
        a("s_load_dwordx4 s[4:7], s[0:1], s30")
        a("s_lshr_b32 s30, s2, 3")
        a("s_mul_i32 s30, s30, 320")
        a("v_add_u32 v1, s30, v0")
        a("s_bfe_u32 s23, s2, 0x10001")
        a("s_mul_i32 s23, s23, %d", 1024 * 1280)
        a("v_lshl_add_u32 v2, v1, 7, s23")
        a("v_lshrrev_b32 v3, 4, v1")
        a("v_and_b32 v4, 15, v1")
        a("v_min_u32 v4, 14, v4")
        a("v_mul_u32_u24 v5, 13, v4")
        a("v_lshrrev_b32 v5, 6, v5")
        a("v_mul_u32_u24 v5, 640, v5")
        a("v_lshl_add_u32 v4, v4, 7, v5")
        a("v_mul_u32_u24 v3, 3840, v3")
        a("s_and_b32 s24, s2, 1")
        a("s_mul_i32 s24, s24, 640")
        a("v_add3_u32 v3, v3, v4, s24")
        a("s_waitcnt lgkmcnt(0)")
        a("global_load_dword v6, v2, s[4:5]")
        a("global_load_dword v7, v3, s[6:7]")
        a.label("L_pre_end")
    a("s_endpgm")
    return name, 8, 0

def main(out):
    a = A()
    ks = []
    for g, blk in (((gen_pre, 320),) if env("PREK", 0) else ()) + ((gen_fused, 512),) + (((gen_spin, 64),) if SPIN else ()):
        n, nfv, lds = g(a)
        ks.append((n, nfv, lds, blk))
    hdr = """; Two independent MHA blocks (S=2048, D=640, H=32, Dh=20), concatenated on the last axis; one fused kernel.
"""
    if len(ks) == 1 and not env("LIST", 0):
        hdr += "; @launch grid=(256,1,1) block=(%d,1,1) lds=%d\n" % (ks[0][3], ks[0][2])
    else:
        for n, nfv, lds, blk in ks:
            hdr += "; @launch kernel=%s grid=(256,1,1) block=(%d,1,1) lds=%d\n" % (n, blk, lds)
    s = hdr + '.amdgcn_target "amdgcn-amd-amdhsa--gfx950"\n.text\n' + a.text()
    s += '.section .rodata,"a"\n'
    for n, nfv, lds, blk in ks: s += kd(n, nfv)
    open(out, "w").write(s)

if __name__ == "__main__":
    main(sys.argv[1] if len(sys.argv) > 1 else "cdna_kernels/%s.s" % NAME)
```

```python
import math, struct, sys, os

NAME = "concat_heads__mha_block__softmax_full_mha__prompt"
BLK = 12288
KV_PAIR = 32 * BLK
KV_OFF = 0
OB = 2560
O_OFF = KV_OFF + 32 * KV_PAIR
O_BYTES = 32 * 32 * OB
FS = int(os.environ.get("FS", "8576"))
F1_OFF = O_OFF + 2 * O_BYTES
F2_OFF = F1_OFF + 128 * FS
WS_USED = F2_OFF + 128 * FS
CSCALE = math.log2(math.e) / math.sqrt(20.0)
OOB = 0x40000000
DIAG = int(os.environ.get("DIAG", "0"))
DIAG_OFF = 64 << 20
def env(n, d): return int(os.environ.get(n, str(d)))
NT = env("NT", 0)
SKEW = env("SKEW", 2)
HELP = env("HELP", 1)
SPIN = os.environ.get("SPIN", "")

def f32bits(x): return struct.unpack("<I", struct.pack("<f", x))[0]

class A:
    def __init__(self): self.l = []
    def __call__(self, s, *a): self.l.append("    " + (s % a if a else s))
    def label(self, s): self.l.append(s + ":")
    def raw(self, s): self.l.append(s)
    def c(self, s): self.l.append("    ; " + s)
    def text(self): return "\n".join(self.l) + "\n"

def vr(b, n): return "v[%d:%d]" % (b, b + n - 1) if n > 1 else "v%d" % b
def sr(b, n): return "s[%d:%d]" % (b, b + n - 1) if n > 1 else "s%d" % b

def kernel_head(a, name):
    a.raw(".globl %s" % name); a.raw(".p2align 8"); a.raw(".type %s,@function" % name); a.label(name)

def kd(name, nfv, nsg=102):
    acc = (nfv + 3) // 4 * 4
    return """.p2align 6
.amdhsa_kernel %s
  .amdhsa_next_free_vgpr %d
  .amdhsa_next_free_sgpr %d
  .amdhsa_accum_offset %d
  .amdhsa_group_segment_fixed_size 0
  .amdhsa_kernarg_size 72
  .amdhsa_user_sgpr_count 2
  .amdhsa_user_sgpr_kernarg_segment_ptr 1
  .amdhsa_system_sgpr_workgroup_id_x 1
.end_amdhsa_kernel
""" % (name, nfv, nsg, acc)

class Stamps:
    def __init__(self, a):
        self.a = a
        if DIAG:
            for i in range(62, 100): a("s_mov_b32 s%d, 0", i)
            a("s_memrealtime s[60:61]")
    def g(self, i):
        if DIAG and env("GD", 0): self.a("s_mem%stime s[%d:%d]", "real" if DIAG == 1 else "", 64 + 2 * i, 65 + 2 * i)
    def __call__(self, i, wait=True):
        if not DIAG: return
        if env("GD", 0) and 3 <= i <= 16: return
        if env("AD", 0) and i in (1, 2, 3, 5, 10, 11, 12, 13, 14, 15): return
        if DIAG == 1: self.a("s_memrealtime s[%d:%d]", 64 + 2 * i, 65 + 2 * i)
        else: self.a("s_memtime s[%d:%d]", 64 + 2 * i, 65 + 2 * i)
        if wait: self.a("s_waitcnt lgkmcnt(0)")
    def flush(self, swave):
        if not DIAG: return
        a = self.a
        a("s_mov_b64 exec, -1")
        a("s_waitcnt vmcnt(0)")
        self(17)
        a("s_memrealtime s[62:63]")
        a("s_load_dwordx2 s[56:57], s[0:1], 64")
        a("s_lshl_b32 s58, s2, 4")
        a("s_add_u32 s58, s58, s%d", swave)
        a("s_lshl_b32 s58, s58, 7")
        a("s_add_u32 s58, s58, %d", DIAG_OFF)
        a("v_mov_b32 v1, s58")
        a("s_waitcnt lgkmcnt(0)")
        for i in range(20):
            a("v_mov_b32 v2, s%d", 60 + 2 * i)
            a("global_store_dword v1, v2, s[56:57] offset:%d", 4 * i)
        a("s_waitcnt vmcnt(0)")

def gen_fused(a):
    name = NAME + "_kernel"
    kernel_head(a, name)
    WS, XS, WSRD = 8, 12, 16
    sNon = 20
    sB, sTB, sHP, sHH, sW, sE, sKH, sQH = 22, 23, 24, 25, 26, 27, 28, 29
    sT, sT2, sT3 = 30, 31, 32
    sXoff, sWoff, sM0x, sM0w, sIt, sDX, sDW, sSlot, sSx, sSw = 33, 34, 35, 36, 37, 38, 39, 40, 41, 42
    sNxt, sNxt1, sCh, sR, sTmo, sCur = 33, 34, 35, 36, 38, 39
    sDbg = 44
    sC, sC2 = 46, 48
    sKV, sPub, sF1, sO, sF2, sMsk = 50, 51, 52, 53, 54, 55
    sOc, sPend, sTrig = 40, 41, 43
    sLd, sGx = 3, 34
    sGo, sLo, sGs, sLs, sGd = 36, 37, 42, 44, 45
    WO, OUT = WSRD, XS
    ACC2, WF, OF = 16, 56, 96
    PART = 176
    vOa, vOb, vWa2, vWa3, vSt, vWb2, vWb3, vFl2 = 8, 9, 10, 11, 0, 2, 13, 14
    ACC3 = 216
    sO2, sP2, sM2 = 36, 37, 42
    srd = sr(WS, 4)
    vLane, vM, vH, vT1, vT2, vT3, vT4 = 1, 2, 3, 4, 5, 6, 7
    vK, vKr, vV, vIdx, vFl, vL16, vOr, vS1 = 8, 9, 10, 11, 12, 13, 14, 15
    vG, vGb, vFo, vAr = 0, 2, 3, 15
    vNon, vTch = 252, 255
    vXg, vWg, vXa, vWa = 80, 84, 86, 88
    vG0, vG1, vL0, vL1, vSc, vOne = 243, 244, 245, 246, 248, 249
    vRk, vRr, vRv = 247, 250, 251
    F, ACC = 16, 92
    Qm, Qr, Km, Kr, V, S, O = 16, 48, 64, 72, 76, 92, 156
    NFV = 256
    WBASE = 98304
    LFLAG, WOB = 0, 1024
    CMB = WOB + 102400
    IMG = 1024

    a("s_cmp_ge_u32 s2, 256")
    a("s_cbranch_scc1 L_end")
    st = Stamps(a)
    a("s_bfe_u32 s%d, s2, 0x10002", sB)
    a("s_mul_i32 s%d, s%d, 24", sT, sB)
    a("s_load_dwordx4 s[4:7], s[0:1], s%d", sT)
    a("v_lshrrev_b32 v%d, 6, v0", vT1)
    a("v_and_b32 v%d, 63, v0", vLane)
    a("v_readfirstlane_b32 s%d, v%d", sW, vT1)
    a("s_bfe_u32 s%d, s2, 0x10001", sTB)
    a("s_lshl_b32 s%d, s%d, 2", sTB, sTB)
    a("s_bfe_u32 s%d, s2, 0x20003", sT)
    a("s_or_b32 s%d, s%d, s%d", sTB, sTB, sT)
    a("s_and_b32 s%d, s2, 1", sHH)
    a("s_lshl_b32 s%d, s%d, 3", sHP, sHH)
    a("s_lshr_b32 s%d, s2, 5", sT)
    a("s_or_b32 s%d, s%d, s%d", sHP, sHP, sT)
    a("s_lshr_b32 s%d, s2, 7", sT)
    a("s_xor_b32 s%d, s%d, s%d", sHP, sHP, sT)
    a("s_and_b32 s%d, s%d, 1", sE, sW)
    a("v_lshrrev_b32 v%d, 3, v0", vT1)
    a("s_mul_i32 s%d, s%d, 24", sT, sW)
    a("v_add_u32 v%d, s%d, v%d", vT1, sT, vT1)
    a("v_mul_u32_u24 v%d, 1280, v%d", vT1, vT1)
    a("v_lshrrev_b32 v%d, 4, v%d", vT4, vLane)
    a("v_and_b32 v%d, 7, v%d", vT3, vLane)
    a("v_xor_b32 v%d, v%d, v%d", vT2, vT4, vT3)
    a("v_xor_b32 v%d, 4, v%d", vT3, vT2)
    a("v_lshl_add_u32 v%d, v%d, 4, v%d", vXg + 0, vT2, vT1)
    a("v_lshl_add_u32 v%d, v%d, 4, v%d", vXg + 1, vT3, vT1)
    a("v_add_u32 v%d, %d, v%d", vXg + 1, 8 * 1280 - 1024, vXg + 1)
    a("v_add_u32 v%d, %d, v%d", vXg + 2, 16 * 1280 - 2048, vXg + 0)
    a("v_add_u32 v%d, %d, v%d", vXg + 3, 16 * 1280 - 2048, vXg + 1)
    wmark = len(a.l)
    a("s_load_dwordx2 s[%d:%d], s[0:1], 64", WS, WS + 1)
    a("s_load_dwordx2 s[%d:%d], s[0:1], 56", sDbg, sDbg + 1)
    a("s_mul_i32 s%d, s%d, 24", sT, sB)
    a("s_add_u32 s%d, s%d, 16", sT, sT)
    a("s_load_dwordx2 s[56:57], s[0:1], s%d", sT)
    a("s_load_dwordx2 s[58:59], s[0:1], 48")
    a("s_memrealtime s[%d:%d]", sNon, sNon + 1)
    if env("CODEPF", 2) & 2:
        a.label("L_pfbase0")
        a("s_getpc_b64 s[%d:%d]", sC2, sC2 + 1)
        a("s_and_b32 s%d, s2, -8", sT)
        a("s_add_u32 s%d, s%d, s%d", sT, sT, sW)
        a("s_lshl_b32 s%d, s%d, 7", sT, sT)
        a("s_min_u32 s%d, s%d, %s", sT, sT, "L_code_end-L_pfbase0-8")
        a("v_mov_b32 v254, s%d", sT)
        a("global_load_dword v254, v254, s[%d:%d]", sC2, sC2 + 1)
    TAB = [0, 3, 1, 4, 5, 8, 6, 9, 2, 7, 10, 11, 13, 14, 12, 15]
    tab = sum(v << (4 * i) for i, v in enumerate(TAB))
    a("s_lshl_b32 s%d, s%d, 3", sT, sE)
    a("v_lshl_add_u32 v%d, v%d, 1, s%d", vT2, vT4, sT)
    a("v_and_b32 v%d, 15, v%d", vM, vLane)
    a("v_xor_b32 v%d, v%d, v%d", vT2, vT2, vM)
    a("v_lshlrev_b32 v%d, 2, v%d", vT2, vT2)
    a("s_mov_b32 s%d, 0x%x", sC, tab & 0xffffffff)
    a("s_mov_b32 s%d, 0x%x", sC + 1, tab >> 32)
    a("v_lshrrev_b64 v[16:17], v%d, s[%d:%d]", vT2, sC, sC + 1)
    a("v_and_b32 v%d, 15, v16", vT2)
    a("s_lshl_b32 s%d, s%d, 3", sT, sW)
    a("v_add_u32 v%d, s%d, v%d", vT1, sT, vT4)
    a("v_mul_u32_u24 v%d, 3840, v%d", vT1, vT1)
    a("v_mul_u32_u24 v%d, 13, v%d", vT3, vT2)
    a("v_lshrrev_b32 v%d, 6, v%d", vT3, vT3)
    a("v_mul_u32_u24 v%d, %d, v%d", vT3, 1280 - 80, vT3)
    a("v_cmp_eq_u32 vcc, 15, v%d", vT2)
    a("v_lshl_add_u32 v%d, v%d, 4, v%d", vT2, vT2, vT3)
    a("v_mov_b32 v%d, 0x%x", vS1, OOB)
    if HELP:
        a("s_and_b32 s%d, s%d, 7", sT, sHP)
        a("s_mov_b32 s%d, 0x%x", sT2, OOB)
        for hp, sec in ((0, 0), (2, 1), (5, 2)):
            a("s_cmp_eq_u32 s%d, %d", sT, hp)
            a("s_cselect_b32 s%d, %d, s%d", sT2, sec * 1280 + 256 - 80 * hp + (HELP - 1) * 64 * 3840, sT2)
        a("s_bfe_u32 s%d, s%d, 0x10001", sT, sTB)
        a("v_lshrrev_b32 v%d, 1, v%d", vT3, vT4)
        a("v_cmp_eq_u32 s[%d:%d], s%d, v%d", sC, sC + 1, sT, vT3)
        a("v_mov_b32 v%d, s%d", vT3, sT2)
        a("s_nop 0")
        a("v_cndmask_b32 v%d, v%d, v%d, s[%d:%d]", vT3, vS1, vT3, sC, sC + 1)
        a("v_cndmask_b32 v%d, v%d, v%d, vcc", vT2, vT2, vT3)
    else:
        a("v_cndmask_b32 v%d, v%d, v%d, vcc", vT2, vT2, vS1)
    a("v_add_u32 v%d, v%d, v%d", vWg + 0, vT1, vT2)
    a("v_add_u32 v%d, %d, v%d", vWg + 1, 4 * 3840 - 1024, vWg + 0)
    a("s_lshl_b32 s%d, s%d, 11", sM0w, sW)
    a("s_add_u32 s%d, s%d, %d", sM0w, sM0w, WBASE)
    a("s_mov_b32 s%d, 0x20000", WSRD + 3)
    a("s_mul_i32 s%d, s%d, 80", sT2, sHP)
    a("s_sub_u32 s%d, %d, s%d", WSRD + 2, 640 * 3840, sT2)
    a("s_add_u32 s%d, s6, s%d", WSRD, sT2)
    a("s_addc_u32 s%d, s7, 0", WSRD + 1)
    wblk = []
    if True:
        wblk = a.l[wmark:]; del a.l[wmark:]
    a("s_lshr_b32 s%d, s%d, 1", sT, sW)
    a("s_mul_i32 s%d, s%d, 24576", sM0x, sT)
    a("s_lshl_b32 s%d, s%d, 12", sT, sE)
    a("s_add_u32 s%d, s%d, s%d", sM0x, sM0x, sT)
    a("s_mov_b32 s%d, %d", XS + 2, 256 * 1280)
    a("s_mov_b32 s%d, 0x20000", XS + 3)
    if SKEW:
        a("s_xor_b32 s%d, s%d, s%d", sT, sTB, sHP)
        a("s_and_b32 s%d, s%d, 1", sT, sT)
        a("s_mul_i32 s%d, s%d, 5", sT, sT)
        if SKEW > 1:
            a("s_lshr_b32 s%d, s2, 1", sT2)
            a("s_xor_b32 s%d, s%d, s2", sT2, sT2)
            a("s_and_b32 s%d, s%d, 1", sT2, sT2)
            a("s_mul_i32 s%d, s%d, %d", sT2, sT2, SKEW)
            a("s_add_u32 s%d, s%d, s%d", sT, sT, sT2)
        XS1 = env("XS1", 0)
        if XS1:
            a("s_lshr_b32 s%d, s2, 2", sT2)
            a("s_xor_b32 s%d, s%d, s2", sT2, sT2)
            a("s_bfe_u32 s%d, s%d, 0x10004", sT2, sT2)
            if XS1 == 2:
                a("s_bfe_u32 s%d, s2, 0x10005", sC)
                a("s_andn2_b32 s%d, s%d, s%d", sT2, sT2, sC)
            a("s_add_u32 s%d, s%d, s%d", sT, sT, sT2)
        FOL = env("FOL", 1)
        if FOL:
            a("s_bfe_u32 s%d, s2, 0x10005", sT2)
            a("s_mul_i32 s%d, s%d, %d", sT2, sT2, 10 - FOL)
            a("s_add_u32 s%d, s%d, s%d", sT, sT, sT2)
            a("s_cmp_ge_u32 s%d, 10", sT)
            a("s_cselect_b32 s%d, 10, 0", sT2)
            a("s_sub_u32 s%d, s%d, s%d", sT, sT, sT2)
        a("s_lshl_b32 s%d, s%d, 7", sXoff, sT)
        a("s_mul_i32 s%d, s%d, %d", sWoff, sT, 64 * 3840)
    else:
        a("s_mov_b32 s%d, 0", sXoff)
        a("s_mov_b32 s%d, 0", sWoff)
    a("s_mul_i32 s%d, s%d, %d", sT, sTB, 256 * 1280)
    a("s_waitcnt lgkmcnt(0)")
    a("s_add_u32 s%d, s4, s%d", XS, sT)
    a("s_addc_u32 s%d, s5, 0", XS + 1)

    ntx = " nt" if NT & 1 else ""
    ntw = " nt" if NT & 2 else ""
    def dma_ops(slot_x, slot_w):
        ops = []
        def x(i):
            if i == 0:
                a("s_add_u32 m0, s%d, %s", sM0x, slot_x); a("s_nop 0")
            a("buffer_load_dwordx4 v%d, %s, s%d offen offset:%d%s lds", vXg + i, sr(XS, 4), sXoff, 1024 * i, ntx)
        def w(i):
            if i == 0:
                a("s_add_u32 m0, s%d, %s", sM0w, slot_w)
                a("s_add_u32 s%d, s%d, %d", sXoff, sXoff, 0 if env("NOADV", 0) & 1 else 128)
            a("buffer_load_dwordx4 v%d, %s, s%d offen offset:%d%s lds", vWg + i, sr(WSRD, 4), sWoff, 1024 * i, ntw)
            if i == 1:
                a("s_add_u32 s%d, s%d, %d", sWoff, sWoff, 0 if env("NOADV", 0) & 2 else 64 * 3840)
                if SKEW:
                    a("s_cmp_eq_u32 s%d, 1280", sXoff)
                    a("s_cselect_b32 s%d, 0, s%d", sXoff, sXoff)
                    a("s_cselect_b32 s%d, 0, s%d", sWoff, sWoff)
        for i in range(4): ops.append(lambda i=i: x(i))
        for i in range(2): ops.append(lambda i=i: w(i))
        return ops
    for i, op in enumerate(dma_ops("0", "0")):
        if i == 4: a.l += wblk
        op()
    a("s_bfe_u32 s%d, s%d, 0x10001", sKH, sW)
    a("s_lshr_b32 s%d, s%d, 2", sQH, sW)
    a("s_mov_b32 s%d, %d", WS + 2, WS_USED)
    a("s_mov_b32 s%d, 0x20000", WS + 3)
    a("s_and_b32 s%d, s%d, 3", sT3, sW)
    a("v_lshrrev_b32 v%d, 1, v%d", vT1, vM)
    a("v_xor_b32 v%d, v%d, v%d", vT1, vT1, vT4)
    a("s_mul_i32 s%d, s%d, 24576", sT, sT3)
    a("v_lshl_add_u32 v%d, v%d, 7, s%d", vT2, vM, sT)
    a("v_lshl_add_u32 v%d, v%d, 4, v%d", vXa, vT1, vT2)
    a("v_xor_b32 v%d, 64, v%d", vXa + 1, vXa)
    a("v_bfe_u32 v%d, v%d, 2, 2", vT1, vLane)
    a("v_lshl_add_u32 v%d, v%d, 3, v%d", vT2, vT4, vT1)
    a("v_lshlrev_b32 v%d, 8, v%d", vT2, vT2)
    a("v_and_b32 v%d, 3, v%d", vT3, vLane)
    a("v_lshl_add_u32 v%d, v%d, 3, v%d", vT2, vT3, vT2)
    a("v_add_u32 v%d, %d, v%d", vT2, WBASE, vT2)
    a("v_bfe_u32 v%d, v%d, 2, 3", vT1, vLane)
    a("s_lshl_b32 s%d, s%d, 2", sT, sQH)
    a("v_xor_b32 v%d, s%d, v%d", vT1, sT, vT1)
    a("v_lshl_add_u32 v%d, v%d, 5, v%d", vWa, vT1, vT2)
    for xt in range(1, 4): a("v_xor_b32 v%d, %d, v%d", vWa + xt, 32 * xt, vWa)
    mark = len(a.l)
    a("v_lshlrev_b32 v%d, 4, v%d", vL16, vLane)
    a("s_lshl_b32 s%d, s%d, 14", sT, sT3)
    a("s_add_u32 s%d, s%d, %d", sT, sT, IMG)
    a("v_add_u32 v%d, s%d, v%d", vL0, sT, vL16)
    a("v_cmp_lt_u32 vcc, 1, v%d", vT4)
    a("v_lshlrev_b32 v%d, 3, v%d", vT1, vLane)
    a("v_add_u32 v%d, 4096, v%d", vT1, vT1)
    a("v_mov_b32 v%d, 0x%x", vT2, f32bits(CSCALE))
    a("v_cndmask_b32 v%d, v%d, v%d, vcc", vG0, vS1, vT1)
    a("v_cndmask_b32 v%d, v%d, 1.0, vcc", vSc, vT2)
    a("v_and_b32 v%d, 4, v%d", vT1, vM)
    a("v_and_b32 v%d, 8, v%d", vT2, vM)
    a("v_lshlrev_b32 v%d, 5, v%d", vT1, vT1)
    a("v_lshl_add_u32 v%d, v%d, 3, v%d", vT1, vT2, vT1)
    a("v_and_b32 v%d, 0x330, v%d", vT2, vL16)
    a("v_add_u32 v%d, v%d, v%d", vT1, vT1, vT2)
    a("v_add_u32 v%d, 6144, v%d", vG1, vT1)
    a("v_add_u32 v%d, s%d, v%d", vL1, sT, vG1)
    if not env("PEEL", 1):
        for i in range(64): a("v_mov_b32 v%d, 0", ACC + i)
    a("v_and_b32 v%d, 11, v%d", vT1, vM)
    a("v_cmp_eq_u32 vcc, 8, v%d", vT1)
    a("v_mov_b32 v%d, 0x3f803f80", vT1)
    a("v_and_b32 v%d, 31, v0", vM)
    a("v_cndmask_b32 v%d, 0, v%d, vcc", vOne, vT1)
    a("v_bfe_u32 v%d, v0, 5, 1", vH)
    for i in range(O, 243): a("v_mov_b32 v%d, 0", i)
    a("v_mov_b32 v%d, 0xdddddddd", vIdx)
    a("v_and_b32 v%d, 4, v%d", vT1, vM)
    a("v_lshlrev_b32 v%d, 8, v%d", vT1, vT1)
    a("v_and_b32 v%d, 24, v%d", vT2, vM)
    a("v_lshl_add_u32 v%d, v%d, 3, v%d", vT1, vT2, vT1)
    a("v_and_b32 v%d, 3, v%d", vT2, vM)
    a("v_lshl_add_u32 v%d, v%d, 4, v%d", vT1, vT2, vT1)
    a("s_lshl_b32 s%d, s%d, 9", sT, sQH)
    a("v_lshl_add_u32 v%d, v%d, 8, s%d", vT2, vH, sT)
    a("v_add_u32 v%d, v%d, v%d", vK, vT1, vT2)
    a("s_lshl_b32 s%d, s%d, 14", sC, sT3)
    a("v_add_u32 v%d, s%d, v%d", vRk, sC, vK)
    a("s_lshl_b32 s%d, s%d, 8", sT, sQH)
    a("s_add_u32 s%d, s%d, s%d", sT, sT, sC)
    a("v_add_u32 v%d, s%d, v%d", vRr, sT, vT1)
    a("s_lshl_b32 s%d, s%d, 7", sT, sQH)
    a("s_add_u32 s%d, s%d, %d", sT, sT, 4096 + 256)
    a("v_lshrrev_b32 v%d, 1, v%d", vT1, vT1)
    a("v_cmp_eq_u32 vcc, 0, v%d", vH)
    a("v_add_u32 v%d, s%d, v%d", vT1, sT, vT1)
    a("v_add_u32 v%d, 2048, v%d", vT3, vL16)
    a("v_mov_b32 v%d, v%d", vKr, vT1)
    a("v_cndmask_b32 v%d, v%d, v%d, vcc", vOr, vS1, vT3)
    a("v_lshlrev_b32 v%d, 3, v%d", vT2, vLane)
    a("v_lshl_or_b32 v%d, v%d, 29, v%d", vFl, vT4, vT2)
    a("v_min_u32 v%d, 21, v%d", vT1, vM)
    a("v_lshlrev_b32 v%d, 4, v%d", vT1, vT1)
    a("v_lshl_add_u32 v%d, v%d, 8, v%d", vT1, vH, vT1)
    a("s_lshl_b32 s%d, s%d, 10", sT, sQH)
    a("s_add_u32 s%d, s%d, 6144", sT, sT)
    a("s_lshl_b32 s%d, s%d, 7", sT2, sQH)
    a("s_add_u32 s%d, s%d, %d", sT2, sT2, 6144 + 2048 - 256)
    a("v_cmp_gt_u32 vcc, 16, v%d", vM)
    a("v_add_u32 v%d, s%d, v%d", vT2, sT, vT1)
    a("v_add_u32 v%d, s%d, v%d", vT3, sT2, vT1)
    a("v_cndmask_b32 v%d, v%d, v%d, vcc", vT1, vT3, vT2)
    a("v_cmp_gt_u32 vcc, 21, v%d", vM)
    a("v_add_u32 v%d, s%d, v%d", vRv, sC, vT1)
    a("s_lshl_b32 s%d, s%d, 2", sT, sTB)
    a("v_cndmask_b32 v%d, v%d, v%d, vcc", vV, vS1, vT1)
    a("s_add_u32 s%d, s%d, s%d", sT, sT, sT3)
    a("s_lshl_b32 s%d, s%d, 5", sC, sB)
    a("s_add_u32 s%d, s%d, s%d", sT2, sT, sC)
    a("s_lshl_b32 s%d, s%d, 1", sT2, sT2)
    a("s_add_u32 s%d, s%d, s%d", sT2, sT2, sQH)
    a("s_lshl_b32 s%d, s%d, 4", sO, sT2)
    a("s_add_u32 s%d, s%d, s%d", sO, sO, sHP)
    a("s_mul_i32 s%d, s%d, %d", sT2, sT2, FS)
    a("s_lshl_b32 s%d, s%d, 3", sF2, sHP)
    a("s_add_u32 s%d, s%d, s%d", sT2, sT2, sF2)
    a("s_add_u32 s%d, s%d, %d", sF2, sT2, F2_OFF)
    a("s_mul_i32 s%d, s%d, %d", sO, sO, OB)
    a("s_add_u32 s%d, s%d, %d", sO, sO, O_OFF)
    a("s_lshl_b32 s%d, s%d, 4", sC, sB)
    a("s_add_u32 s%d, s%d, s%d", sC, sC, sHP)
    a("s_mul_i32 s%d, s%d, %d", sKV, sC, KV_PAIR)
    a("s_mul_i32 s%d, s%d, %d", sPub, sT, BLK)
    a("s_add_u32 s%d, s%d, s%d", sPub, sPub, sKV)
    a("s_mul_i32 s%d, s%d, %d", sT2, sT3, BLK)
    a("s_add_u32 s%d, s%d, s%d", sKV, sKV, sT2)
    a("s_lshl_b32 s%d, s%d, 2", sC, sC)
    a("s_add_u32 s%d, s%d, s%d", sC, sC, sT3)
    a("s_mul_i32 s%d, s%d, %d", sC, sC, FS)
    a("s_add_u32 s%d, s%d, %d", sF1, sC, F1_OFF)
    a("s_and_b32 s%d, s%d, 4", sT, sTB)
    a("s_lshl_b32 s%d, s%d, 1", sT, sT)
    a("s_lshl_b32 s%d, 0xff, s%d", sMsk, sT)
    a("s_mul_i32 s%d, s%d, 12288", sT, sT3)
    a("s_add_u32 s%d, s%d, %d", sT, sT, CMB)
    a("v_add_u32 v%d, s%d, v%d", vAr, sT, vL16)
    a("s_lshl_b32 s%d, s%d, 5", sT, sW)
    a("v_mov_b32 v%d, s%d", vFo, sT)
    a("s_cmp_ge_u32 s%d, 5", sW)
    a("s_cselect_b64 vcc, -1, 0")
    a("s_cselect_b32 s%d, 1, 0", sT2)
    a("s_lshl_b32 s%d, s%d, s%d", sT, sW, sT2)
    a("s_mul_i32 s%d, s%d, 10", sC, sT2)
    a("s_sub_u32 s%d, s%d, s%d", sT, sT, sC)
    a("s_add_u32 s%d, s%d, s%d", sT2, sT2, sT)
    a("s_min_u32 s%d, s%d, 4", sT2, sT2)
    for dst, sp in ((vG, sT), (vGb, sT2)):
        a("s_lshl_b32 s%d, s%d, 6", sC, sp)
        a("v_add_u32 v%d, s%d, v%d", vT1, sC, vLane)
        a("v_mul_u32_u24 v%d, 6554, v%d", vT2, vT1)
        a("v_lshrrev_b32 v%d, 16, v%d", vT2, vT2)
        a("v_mul_u32_u24 v%d, 10, v%d", vT3, vT2)
        a("v_sub_u32 v%d, v%d, v%d", dst, vT1, vT3)
        a("v_and_b32 v%d, 4, v%d", vT1, vT2)
        a("v_lshlrev_b32 v%d, 1, v%d", vT1, vT1)
        a("v_and_b32 v%d, 8, v%d", vT3, vT2)
        a("v_lshrrev_b32 v%d, 1, v%d", vT3, vT3)
        a("v_and_b32 v%d, 0x13, v%d", vT2, vT2)
        a("v_or3_b32 v%d, v%d, v%d, v%d", vT1, vT1, vT2, vT3)
        a("v_lshrrev_b32 v%d, 4, v%d", vT2, vT1)
        a("v_mul_u32_u24 v%d, 24, v%d", vT2, vT2)
        a("v_and_b32 v%d, 28, v%d", vT3, vT1)
        a("v_mad_u32_u24 v%d, v%d, 9, 16", vT3, vT3)
        a("v_cndmask_b32 v%d, v%d, v%d, vcc", vT2, vT2, vT3)
        a("v_add_u32 v%d, v%d, v%d", vT1, vT1, vT2)
        a("v_mul_u32_u24 v%d, 1280, v%d", vT1, vT1)
        a("v_lshl_add_u32 v%d, v%d, 4, v%d", dst, dst, vT1)

    SPLIT = env("SPLIT", 10000) if env("PEEL", 1) else 10000
    part2 = a.l[mark + SPLIT:]
    del a.l[mark + SPLIT:]
    a("s_waitcnt lgkmcnt(0)")
    a("s_barrier")
    a("s_or_b32 s%d, s2, s%d", sDX, sW)
    a("s_cbranch_scc1 L_nononce")
    a("s_or_b32 s%d, s%d, 0x80000000", sNon + 1, sNon + 1)
    a("v_mov_b32 v%d, s%d", vNon, sNon)
    a("v_mov_b32 v%d, s%d", vNon + 1, sNon + 1)
    a("v_mov_b32 v%d, 0", 255)
    a("global_store_dwordx2 v%d, %s, s[%d:%d] sc0 sc1", 255, vr(vNon, 2), sDbg, sDbg + 1)
    a.label("L_nononce")
    d1 = dma_ops("8192", "16384")
    for _ in range(env("D1PRE", 4)): d1.pop(0)()
    PEEL = env("PEEL", 1)
    D1PRE = env("D1PRE", 4)
    if not PEEL:
        for op in d1: op()
    CODEPF = env("CODEPF", 2) & 1
    if CODEPF:
        a.label("L_pfbase")
        a("s_getpc_b64 s[%d:%d]", sC2, sC2 + 1)
        a("v_min_u32 v%d, 21, v%d", 255, vLane)
        a("v_lshlrev_b32 v%d, 7, v%d", 255, 255)
        a("s_mul_i32 s%d, s%d, 2816", sDX, sW)
        a("v_add_u32 v%d, s%d, v%d", 255, sDX, 255)
        a("v_min_u32 v%d, %s, v%d", 255, "L_code_end-L_pfbase-8", 255)
        a("global_load_dword v255, v%d, s[%d:%d]", 255, sC2, sC2 + 1)
    def read_ops(fb, ks):
        f = F + 32 * fb
        ops = []
        for t in range(4):
            ops.append(lambda t=t: a("ds_read_b128 %s, v%d offset:%d", vr(f + 4 * t, 4), vXa + ks, t * 2048))
            for q in range(2):
                ops.append(lambda t=t, q=q: a("ds_read_b64_tr_b16 %s, v%d offset:%d", vr(f + 16 + 4 * t + 2 * q, 2), vWa + t, ks * 8192 + q * 1024))
        return ops
    def reads(fb, ks):
        for op in read_ops(fb, ks): op()
    extra = []
    RPM = env("RPM", 1)
    def mfs(fb, isB, rd, dm, misc, zero=False):
        f = F + 32 * fb
        ABL = env("ABL", 0)
        if ABL & 1: f = F; rd = []
        if ABL & 2: dm = []
        if ABL & 4: rd = rd[:9]
        n = 0
        for (xt, t) in sorted([(x, y) for x in range(4) for y in range(4)], key=lambda p: (max(p), p)):
            d = ACC + 16 * xt + 4 * t
            x, w = vr(f + 4 * t, 4), vr(f + 16 + 4 * xt, 4)
            c = "0" if zero else vr(d, 4)
            if ABL & 16 and not zero: pass
            elif isB and xt > 0: a("v_mfma_f32_16x16x32_bf16 %s, %s, %s, %s", vr(d, 4), x, w, c)
            else:              a("v_mfma_f32_16x16x32_bf16 %s, %s, %s, %s", vr(d, 4), w, x, c)
            n += 1
            DP = env("DP", 3)
            if DP and dm and n % DP == env("DO", 1) and not zero: dm.pop(0)()
            if rd:
                for _ in range(RPM):
                    if rd: rd.pop(0)()
            elif dm and n % 3 == 1: dm.pop(0)()
            elif misc:
                for _ in range(3):
                    if misc: misc.pop(0)()
        for op in rd + dm + misc: op()
    SH = env("SH", 5)
    def stage(kind, isB, ops):
        XE = env("XE", 3)
        if SH: ops = dma_ops("s%d" % sSx, "s%d" % sSw)[(0 if extra else XE):SH] if kind <= 0 else []
        if SH and extra: ops = [extra.pop(0) for _ in range(len(extra))] + ops
        if kind == 1:
            a("v_mov_b32 v%d, 0", vT1)
            a("global_load_dwordx2 %s, v%d, s[%d:%d] sc0 sc1", vr(vNon, 2), vT1, sDbg, sDbg + 1)
        misc = []
        if kind < 2:
            misc = [lambda: (a("s_cmp_eq_u32 s%d, 2", sSlot), a("s_cselect_b32 s%d, -2, 1", sDX)),
                    lambda: a("s_lshl_b32 s%d, s%d, 14", sDW, sDX),
                    lambda: a("s_lshl_b32 s%d, s%d, 13", sT, sDX)]
            misc += [lambda ks=ks: a("v_add_u32 v%d, s%d, v%d", vXa + ks, sT, vXa + ks) for ks in range(2)]
            misc += [lambda ft=ft: a("v_add_u32 v%d, s%d, v%d", vWa + ft, sDW, vWa + ft) for ft in range(4)]
        if kind == 2:
            misc = [lambda: a("v_readfirstlane_b32 s%d, v%d", sNon + 1, vNon + 1),
                    lambda: a("v_readfirstlane_b32 s%d, v%d", sNon, vNon),
                    lambda: a("s_add_u32 s%d, s%d, 3072", sT2, sPub),
                    lambda: a("s_mov_b32 s%d, 0x%x", sC, 0xff00ff00 if isB else f32bits(CSCALE)),
                    lambda: a("s_mov_b32 s%d, s%d", sC + 1, sC),
                    lambda: (a("s_cmp_eq_u32 s%d, 0", sNon + 1), a("s_cbranch_scc1 L_nonce%d", isB), a.label("L_nonce_ok%d" % isB))]
        a("s_waitcnt lgkmcnt(0)")
        mfs(0, isB, read_ops(1, 1), ops, misc)
        nops, rd, misc = [], [], []
        if kind < 2:
            if kind == 0 and not SH:
                a("s_lshl_b32 s%d, s%d, 13", sSx, sSlot)
                a("s_lshl_b32 s%d, s%d, 14", sSw, sSlot)
            a("s_waitcnt vmcnt(%d) lgkmcnt(0)", 0 if kind == 1 else (SH if SH else 6))
            a("s_barrier")
            rd = read_ops(0, 0)
            misc = [lambda: a("s_add_u32 s%d, s%d, s%d", sSlot, sSlot, sDX)]
            if SH and kind <= 0:
                nops = dma_ops("s%d" % sSx, "s%d" % sSw)[SH:]
                nops.append(lambda: (a("s_lshl_b32 s%d, s%d, 13", sSx, sSlot), a("s_lshl_b32 s%d, s%d, 14", sSw, sSlot), a("s_add_u32 s%d, s%d, s%d", sSlot, sSlot, sDX)))
                if kind == 0 and XE:
                    bk = nops.pop(); nx = dma_ops("s%d" % sSx, "s%d" % sSw)[:XE]
                    nops += [lambda: (bk(), nx[0]())] + nx[1:]
                misc = [lambda: a("s_add_u32 s%d, s%d, 1", sIt, sIt)]
            elif kind == 0:
                nops = dma_ops("s%d" % sSx, "s%d" % sSw)[:3]
                misc += [lambda: a("s_add_u32 s%d, s%d, 1", sIt, sIt)]
            if kind == 1:
                I = lambda f, *x: (lambda: a(f, *x))
                misc += [I("s_and_b32 s%d, s2, -8", sT2), I("s_add_u32 s%d, s%d, s%d", sT2, sT2, sW), I("s_mul_i32 s%d, s%d, %d", sT2, sT2, 25 * 128),
                         I("v_min_u32 v255, 24, v%d", vLane), I("v_lshl_add_u32 v255, v255, 7, s%d", sT2),
                         I("s_lshl_b32 s%d, s%d, 1", sT2, sTB), I("s_add_u32 s%d, s%d, s%d", sT2, sT2, sQH), I("s_lshl_b32 s%d, s%d, 3", sT2, sT2),
                         I("s_add_u32 s%d, s%d, s%d", sTrig, sT2, sF1),
                         I("s_and_b32 s%d, s%d, 7", sT3, sHP), I("s_mul_i32 s%d, s%d, 160", sT3, sT3), I("s_sub_u32 s%d, %d, s%d", WO + 2, 640 * 1280, sT3),
                         lambda: (a("s_add_u32 s%d, s56, s%d", WO, sT3), a("s_addc_u32 s%d, s57, 0", WO + 1)),
                         I("s_mov_b32 s%d, %d", OUT + 2, 2048 * 2560), I("s_mov_b64 s[%d:%d], s[58:59]", OUT, OUT + 1)]
        else:
            a("s_waitcnt lgkmcnt(0)")
            a("s_barrier")
            return
        mfs(1, isB, rd, nops, misc)
    if env("IDLE0", 0): a("s_sleep %d", env("IDLE0", 0))
    st(0)
    a("s_waitcnt vmcnt(%d)", (D1PRE if PEEL else 6) + (1 if CODEPF else 0))
    st(1)
    a("s_barrier")
    reads(0, 0)
    if not PEEL:
        a("s_mov_b32 s%d, %d", sSx, 2 * 8192)
        a("s_mov_b32 s%d, %d", sSw, 2 * 16384)
        d2 = dma_ops("s%d" % sSx, "s%d" % sSw)
        for i in range(3): d2.pop(0)()
    if PEEL:
        a("s_cmp_eq_u32 s%d, 0", sQH)
        a("s_cbranch_scc0 L_st0B")
        for isB in (False, True):
            if isB: a.label("L_st0B")
            a("s_waitcnt lgkmcnt(0)")
            D2A, D2B = env("D2A", 0), env("D2B", 0)
            dd = dma_ops("16384", "32768")
            mfs(0, isB, read_ops(1, 1), dma_ops("8192", "16384")[D1PRE:] + dd[:D2A], [], True)
            a("s_waitcnt lgkmcnt(0)")
            misc = [lambda ks=ks: a("v_add_u32 v%d, 8192, v%d", vXa + ks, vXa + ks) for ks in range(2)]
            misc += [lambda ft=ft: a("v_add_u32 v%d, 16384, v%d", vWa + ft, vWa + ft) for ft in range(4)]
            mfs(1, isB, [], dd[D2A:D2A + D2B], misc)
            if not isB: a("s_branch L_st0done")
        a.label("L_st0done")
        d2 = dma_ops("16384", "32768")[D2A + D2B:]
        a.l += part2
        ND2 = env("ND2", 4) if SH else 6
        for op in d2[:ND2 - D2A - D2B]: op()
        a("s_mov_b32 s%d, 1", sSlot)
        a("s_mov_b32 s%d, 1", sIt)
        a("s_mov_b32 s%d, 0", sSx)
        a("s_mov_b32 s%d, 0", sSw)
        st.g(3)
        a("s_waitcnt vmcnt(%d)", ND2)
        a("s_barrier")
        st.g(4)
        reads(0, 0)
    a("s_cmp_eq_u32 s%d, 0", sQH)
    a("s_cbranch_scc0 L_gemmB0")
    CV = F
    for isB in (False, True):
        L = "L_gemmB" if isB else "L_gemmA"
        a.label(L + "0")
        if SH: extra += dma_ops("16384", "32768")[ND2:]
        if PEEL: stage(0, isB, dma_ops("0", "0"))
        a.label(L)
        if DIAG and env("GD", 0):
            for k in range(5):
                st.g(5 + k)
                stage(0, isB, dma_ops("s%d" % sSx, "s%d" % sSw)[3:])
        else:
            stage(0, isB, dma_ops("s%d" % sSx, "s%d" % sSw)[3:])
            a("s_cmp_lt_u32 s%d, 7", sIt)
            a("s_cbranch_scc1 %s", L)
        st.g(10)
        stage(-1, isB, dma_ops("s%d" % sSx, "s%d" % sSw)[3:])
        st.g(11)
        stage(1, isB, [])
        st.g(12)
        stage(2, isB, [])
        st(2, False)
        def cvt(dst, src):
            return ["v_cvt_pk_bf16_f32 v%d, v%d, v%d" % (dst, src, src + 1), "v_cvt_pk_bf16_f32 v%d, v%d, v%d" % (dst + 1, src + 2, src + 3)]
        units, late, pre = [], [], []
        if not isB:
            for t in range(4):
                o = CV + 4 * t
                units.append(([(2, t), (3, t)], cvt(o, ACC + 32 + 4 * t) + cvt(o + 2, ACC + 48 + 4 * t) +
                              ["ds_write_b128 v%d, %s offset:%d" % (vL0, vr(o, 4), t * 1024)]))
                stx = "buffer_store_dwordx4 %s, v%d, %s, s%d offen offset:%d sc1" % (vr(o, 4), vL16, srd, sPub, t * 1024)
                if env("AEARLY", 1): units[-1][1].append(stx)
                else: pre.append(stx)
            for t in range(4):
                o = CV + 16 + 4 * t
                ins = ["v_pk_mul_f32 %s, %s, s[%d:%d]" % (vr(ACC + 16 * xt + 4 * t + 2 * h, 2), vr(ACC + 16 * xt + 4 * t + 2 * h, 2), sC, sC + 1) for xt in range(2) for h in range(2)]
                if env("NOPK", 0) & 1: ins = ["v_mul_f32 v%d, s%d, v%d" % (ACC + 16 * xt + 4 * t + h, sC, ACC + 16 * xt + 4 * t + h) for xt in range(2) for h in range(4)]
                units.append(([(0, t), (1, t)], ins + cvt(o, ACC + 4 * t) + cvt(o + 2, ACC + 16 + 4 * t) +
                              ["ds_write_b128 v%d, %s offset:%d" % (vL0, vr(o, 4), 12288 + t * 1024)]))
        else:
            n = 0
            NPRE = env("NPRE", 2)
            for xt in (1, 2, 3):
                for kt in range(2):
                    o = CV + 4 * n; n += 1
                    ins = cvt(o, ACC + 16 * xt + 8 * kt) + cvt(o + 2, ACC + 16 * xt + 8 * kt + 4)
                    if xt == 3: ins += ["v_cndmask_b32 v%d, v%d, v%d, s[%d:%d]" % (o + i, o + i, vOne, sC, sC + 1) for i in range(4)]
                    ins.append("ds_write_b128 v%d, %s offset:%d" % (vL1, vr(o, 4), kt * 3072 + (xt - 1) * 1024))
                    stx = "buffer_store_dwordx4 %s, v%d, %s, s%d offen offset:%d sc1" % (vr(o, 4), vG1, srd, sT2 if kt else sPub, (xt - 1) * 1024)
                    if n <= env("NIN", 0): ins.append(stx)
                    elif n <= NPRE: pre.append(stx)
                    else: late.append(stx)
                    units.append(([(xt, 2 * kt), (xt, 2 * kt + 1)], ins))
            for q in range(2):
                o = CV + 4 * n; n += 1
                ins = ["v_pk_mul_f32 %s, %s, %s op_sel_hi:[1,0]" % (vr(ACC + 4 * t + 2 * h, 2), vr(ACC + 4 * t + 2 * h, 2), vr(vSc, 2)) for t in (q, q + 2) for h in range(2)]
                if env("NOPK", 0) & 1: ins = ["v_mul_f32 v%d, v%d, v%d" % (ACC + 4 * t + h, vSc, ACC + 4 * t + h) for t in (q, q + 2) for h in range(4)]
                ins += cvt(o, ACC + 4 * q) + cvt(o + 2, ACC + 4 * (q + 2)) + ["ds_write_b128 v%d, %s offset:%d" % (vL0, vr(o, 4), 4096 + q * 1024)]
                for kt in range(2): late.append("buffer_store_dwordx2 %s, v%d, %s, s%d offen offset:%d sc1" % (vr(o + 2 * kt, 2), vG0, srd, sPub, (2 * kt + q) * 512))
                units.append(([(0, q), (0, q + 2)], ins))
        f = F + 32
        cnt, done_at, nxt = 0, [], 0
        def emit(x):
            nonlocal cnt
            a(x); cnt += 1
        LAG = env("LAG", 3)
        for u in range(len(units) + LAG):
            if u < len(units):
                for (xt, t) in units[u][0]:
                    d = ACC + 16 * xt + 4 * t
                    x, w = vr(f + 4 * t, 4), vr(f + 16 + 4 * xt, 4)
                    emit("v_mfma_f32_16x16x32_bf16 %s, %s, %s, %s" % ((vr(d, 4), x, w, vr(d, 4)) if isB and xt > 0 else (vr(d, 4), w, x, vr(d, 4))))
                done_at.append(cnt)
                if u == 0: emit("ds_write_b128 v%d, %s offset:%d" % (vFo, vr(O, 4), LFLAG))
            if u >= LAG:
                gap = cnt - done_at[u - LAG]
                if gap < 8:
                    a("s_nop %d", 7 - gap); cnt += 8 - gap
                for x in units[u - LAG][1]: emit(x)
        for x in pre: a(x)
        a("s_setprio %d", 3 if isB else 2)
        a("s_waitcnt lgkmcnt(0)")
        st(3)
        a("s_barrier")
        for x in late: a(x)
        if not isB: a("s_branch L_epi_done")
    a.label("L_epi_done")
    if env("IDLE", 0): a("s_sleep %d", env("IDLE", 0))
    def rdK(b): a("ds_read_b128 %s, v%d offset:%d", vr(Km + 4 * b, 4), vRk, IMG + b * 2048)
    def rdV(b):
        for g in range(2): a("ds_read_b128 %s, v%d offset:%d", vr(V + 8 * b + 4 * g, 4), vRv, IMG + b * 3072 + g * 512)
    def rdQ(p):
        r = vRk
        if p != 3:
            r = vT1; a("v_xor_b32 v%d, %d, v%d", r, (p ^ 3) << 14, vRk)
        for j in range(2): a("ds_read_b128 %s, v%d offset:%d", vr(Qm + 8 * p + 4 * j, 4), r, IMG + 12288 + j * 2048)
    rdK(0)
    a("ds_read_b128 %s, v%d offset:%d", vr(Kr, 4), vRr, IMG + 4096 + 512)
    rdQ(0)
    a("v_lshrrev_b32 v%d, 2, v%d", vT2, vLane)
    a("v_and_b32 v%d, 8, v%d", vT2, vT2)
    a("v_add_u32 v%d, v%d, v%d", vRr, vRr, vT2)
    for p in range(3): a("v_xor_b32 v%d, %d, v%d", vT2 + p, (p ^ 3) << 14, vRr)
    for p in range(4): a("ds_read_b64 %s, v%d offset:%d", vr(Qr + 2 * p, 2), vT2 + p if p < 3 else vRr, IMG + 4096)
    rdQ(1); rdV(0)

    def kvop(what, b, sreg, extra=0):
        if env("NOKV", 0) == 1: return
        if what == "k":   a("buffer_load_dwordx4 %s, v%d, %s, s%d offen offset:%d sc1", vr(Km + 4 * b, 4), vK, srd, sreg, 2048 * b)
        elif what == "r": a("buffer_load_dwordx2 %s, v%d, %s, s%d offen offset:%d sc1", vr(Kr + 2 * b, 2), vKr, srd, sreg, 1024 * b)
        else:             a("buffer_load_dwordx4 %s, v%d, %s, s%d offen offset:%d sc1", vr(V + 8 * b + 4 * extra, 4), vV, srd, sreg, 3072 * b + 512 * extra)
    def qk1(j, kb, c="0"): a("v_mfma_f32_32x32x4_2b_bf16 %s, %s, %s, %s", vr(S + 16 * (j % 4), 32), vr(Kr + 2 * kb, 2), vr(Qr + j, 2), c)
    def qk2(j, kb): a("v_mfma_f32_32x32x16_bf16 %s, %s, %s, %s", vr(S + 16 * (j % 4), 16), vr(Km + 4 * kb, 4), vr(Qm + 4 * j, 4), vr(S + 16 * (j % 4), 16))
    def pv(j, vb, half): a("v_smfmac_f32_32x32x32_bf16 %s, %s, %s, v%d", vr(O + 12 * j, 16), vr(V + 8 * vb + 4 * half, 4), vr(S + 16 * (j % 4) + 8 * half, 8), vIdx)
    def ex(r): a("v_exp_f32 v%d, v%d", r, r)
    def flagop(sreg):
        if env("FSW", 1):
            a("s_mov_b64 exec, 1")
            a("buffer_atomic_swap_x2 %s, off, %s, s%d sc1", vr(vNon, 2), srd, sreg)
            a("s_mov_b64 exec, -1")
        else: a("buffer_store_dwordx2 %s, off, %s, s%d sc0 sc1", vr(vNon, 2), srd, sreg)
    def signal1():
        a("s_waitcnt vmcnt(0)")
        flagop(sTrig)
        a("global_load_dword v255, v255, s[56:57]")
    def pollop(sline):
        a("v_mov_b32 v4, 0")
        a("v_mov_b32 v5, 0")
        a("buffer_atomic_or_x2 v[4:5], v%d, %s, s%d offen sc0 sc1", vFl, srd, sline)
    def poll(lbl, sline, mask, tmo, slp):
        a("s_mov_b32 s%d, 0", sTmo)
        a.label(lbl)
        pollop(sline)
        a("s_add_u32 s%d, s%d, 1", sTmo, sTmo)
        a("s_waitcnt vmcnt(0)")
        a("v_cmp_eq_u64 vcc, s[%d:%d], v[4:5]", sNon, sNon + 1)
        a("s_cmp_gt_u32 s%d, 0x%x", sTmo, tmo)
        a("s_cbranch_scc1 %s_ok", lbl)
        a("s_andn2_b32 s%d, %s, vcc_lo", sT, mask)
        a("s_cbranch_scc0 %s_ok", lbl)
        a("s_sleep %d", slp)
        a("s_branch %s", lbl)
        a.label(lbl + "_ok")

    a("s_waitcnt lgkmcnt(7)")
    qk1(0, 0)
    rdQ(2); rdQ(3); rdK(1); rdV(1)
    a("v_mov_b32 v%d, 1", vT2)
    a("ds_write_b32 v%d, v%d offset:12", vFo, vT2)
    for i in range(243, 252): a("v_mov_b32 v%d, 0", i)
    qk2(0, 0); qk2(1, 0)
    a("s_nop 8")
    st(4, False)
    a("s_cmp_eq_u32 s%d, 0", sQH)
    a("s_cbranch_scc1 L_nosig")
    signal1()
    st(5, False)
    a.label("L_nosig")

    def wo_setup():
        R = 1280
        a("s_mov_b32 s%d, 0", sGo)
        a("s_lshl_b32 s%d, s%d, 10", sLo, sW)
        a("s_add_u32 s%d, s%d, %d", sLo, sLo, WOB)
        a("s_mov_b32 s%d, %d", sGs, 56 * R)
        a("s_mov_b32 s%d, 5120", sLs)
        a("s_mov_b32 s%d, %d", sGd, 24 * R)
        a("s_mov_b32 s%d, %d", sLd, 8 * 5120)
        a("s_mov_b32 s%d, 0", sGx)
        a("s_cmp_lt_u32 s%d, 5", sW)
        a("s_cbranch_scc1 L_wos")
        a("s_lshl_b32 s%d, s%d, 11", sLo, sW)
        a("s_add_u32 s%d, s%d, %d", sLo, sLo, WOB + 16 * 5120 - 5 * 2048)
        a("s_mov_b32 s%d, %d", sGs, 4 * R)
        a("s_mov_b32 s%d, %d", sGx, (4 * R) ^ (316 * R))
        a("s_mov_b32 s%d, 0", sGd)
        a("s_cmp_eq_u32 s%d, 7", sW)
        a("s_cselect_b32 s%d, 0, 1024", sLd)
        a.label("L_wos")
    def all8(lbl, val, n=8):
        a("v_and_b32 v%d, %d, v%d", vT3, n - 1, vLane)
        a("v_lshlrev_b32 v%d, 5, v%d", vT3, vT3)
        a("s_mov_b32 s%d, 0", sTmo)
        a.label(lbl)
        a("ds_read_b32 v%d, v%d offset:12", vT2, vT3)
        a("s_add_u32 s%d, s%d, 1", sTmo, sTmo)
        a("s_waitcnt lgkmcnt(0)")
        a("v_cmp_le_u32 vcc, %d, v%d", val, vT2)
        a("s_cmp_gt_u32 s%d, 0x20000", sTmo)
        a("s_cbranch_scc1 %s_ok", lbl)
        a("s_cmp_eq_u64 vcc, -1")
        a("s_cbranch_scc1 %s_ok", lbl)
        a("s_sleep %d", env("SL8", 2))
        a("s_branch %s", lbl)
        a.label(lbl + "_ok")

    def next_chunk():
        return [lambda: a("s_add_u32 s%d, s%d, 1", sCh, sCh),
                lambda: a("s_xor_b32 s%d, s%d, s%d", sNxt, sCh, sTB),
                lambda: a("s_and_b32 s%d, s%d, 7", sNxt, sNxt),
                lambda: a("s_mul_i32 s%d, s%d, %d", sNxt, sNxt, 4 * BLK),
                lambda: a("s_add_u32 s%d, s%d, s%d", sNxt, sNxt, sKV)]
    N = sNxt
    sched = {
        (0, 1): [("V1a", lambda: kvop("v", 1, N, 0)), ("V1b", lambda: kvop("v", 1, N, 1))],
        (0, 3): [("Wa", lambda: a("buffer_load_dwordx4 v%d, %s, s%d offen lds", vG, sr(WO, 4), sGo)), ("Wb", lambda: a("buffer_load_dwordx4 v%d, %s, s%d offen lds", vGb, sr(WO, 4), sGo))],
        (0, 6): [("K0", lambda: kvop("k", 0, N)), ("R0", lambda: kvop("r", 0, N))],
        (1, 1): [("V0a", lambda: kvop("v", 0, N, 0)), ("V0b", lambda: kvop("v", 0, N, 1))],
        (1, 6): [("K1", lambda: kvop("k", 1, N)), ("R1", lambda: kvop("r", 1, N))],
    }
    order = [(k, n) for k in sorted(sched) for (n, _) in sched[k]]
    def younger(name, pos):
        names = [n for _, n in order]
        i = names.index(name); cnt = 0
        while True:
            i = (i + 1) % len(order)
            if order[i][0] == pos or (order[i][0] > pos and (order[i - 1][0] < pos or i == 0)): return cnt
            cnt += 1
    PA, PB, POLLP = env("PA", 3), env("PB", 5), (1, env("PJ", 4))
    def spin(lbl, word):
        def f():
            a.label(lbl + "_w")
            a("s_add_u32 s%d, s%d, 1", sTmo, sTmo)
            a("s_cmp_gt_u32 s%d, 0x20000", sTmo)
            a("s_cbranch_scc1 %s_ok", lbl)
            a("s_sleep 1")
            a("ds_read_b32 v%d, v%d offset:%d", vT1, vFo, 4 * word)
            a("s_waitcnt lgkmcnt(0)")
            a("v_readfirstlane_b32 s%d, v%d", sT, vT1)
            a("s_cmp_eq_u32 s%d, 0", sT)
            a("s_cbranch_scc1 %s_w", lbl)
            a("s_branch %s", lbl)
        stubs.append(f)
    stubs = []
    def xreads(word, area, n, dst):
        return [lambda: a("ds_read_b32 v%d, v%d offset:%d", vT1, vFo, 4 * word)] + \
               [lambda q=q: a("ds_read_b128 %s, v%d offset:%d", vr(dst + 4 * q, 4), area, q * 1024) for q in range(n)]
    def xcheck(lbl, word, area, n, dst):
        a("s_waitcnt lgkmcnt(%d)", n)
        a("v_readfirstlane_b32 s%d, v%d", sT, vT1)
        a("s_cmp_eq_u32 s%d, 0", sT)
        a("s_cbranch_scc1 %s_w", lbl)
        a.label(lbl + "_ok")
        spin(lbl, word)
        def g():
            a.label(lbl)
            for f in xreads(word, area, n, dst)[1:]: f()
            a("s_branch %s_ok", lbl)
        stubs.append(g)
    def padd(d, x): a("v_pk_add_f32 %s, %s, %s", vr(d, 2), vr(d, 2), vr(x, 2))
    def iteration(first, last=False):
        for tt in range(2):
            for j in range(8):
                pj, pvb = ((7, 1 - tt) if j == 0 else (j - 1, tt))
                nj, nkb = (j + 2) % 8, (tt if j < 6 else 1 - tt)
                slots = [[], [], [], []]
                lds = [f for _, f in sched.get((tt, j), [])]
                wv = younger("V%db" % tt, (tt, 1)) if j == 0 else None
                wk = younger("R%d" % (1 - tt), (tt, 6)) if j == 6 else None
                if first:
                    if 8 * tt + j == PA:
                        a("s_cmp_eq_u32 s%d, 0", sQH)
                        a("s_cbranch_scc0 L_nosig2")
                        signal1()
                        st(5, False)
                        a.label("L_nosig2")
                    if 8 * tt + j == PB:
                        a("s_cmp_eq_u32 s%d, 0", sQH)
                        a("s_cbranch_scc1 L_nosig3")
                        a("s_setprio 1")
                        a.label("L_nosig3")
                    if (tt, j) == POLLP:
                        wo_setup()
                        all8("L_img", 1)
                        st(6, False)
                        poll("L_poll1", sF1, "s%d" % sMsk, 0x4000, 2)
                        st(7, False)
                        a("s_andn2_b32 s%d, 0xffff, vcc_lo", sMsk)
                        a("s_mov_b32 s%d, 0", sCh)
                        for f in next_chunk(): f()
                        for k in sorted(sched):
                            if k == (0, 3):
                                a("s_mov_b32 m0, s%d", sLo); a("s_nop 0"); sched[k][0][1]()
                                a("s_add_u32 m0, s%d, s%d", sLo, sLd); a("s_add_u32 s%d, s%d, s%d", sGo, sGo, sGd); sched[k][1][1]()
                                a("s_add_u32 s%d, s%d, s%d", sGo, sGo, sGs); a("s_add_u32 s%d, s%d, s%d", sLo, sLo, sLs); a("s_xor_b32 s%d, s%d, s%d", sGs, sGs, sGx)
                            elif (0, 1) < k < POLLP:
                                for _, f in sched[k]: f()
                    if (tt, j) < POLLP: lds = []
                    wv = None
                    if (tt, j) != (1, 6): wk = None
                else:
                    if (tt, j) == (0, 2): slots[1].append(lambda: a("s_mov_b32 m0, s%d", sLo))
                    if (tt, j) == (0, 3):
                        slots[0].append(lds[0]); slots[2].append(lds[1])
                        lds = []
                        slots[1] += [lambda: a("s_add_u32 m0, s%d, s%d", sLo, sLd), lambda: a("s_add_u32 s%d, s%d, s%d", sGo, sGo, sGd)]
                    if (tt, j) == (0, 4):
                        nc = next_chunk()
                        slots[0] += nc[0:2]; slots[1] += nc[2:4]
                    if (tt, j) == (0, 5):
                        slots[0] += [lambda: a("s_add_u32 s%d, s%d, s%d", sGo, sGo, sGs), lambda: a("s_add_u32 s%d, s%d, s%d", sLo, sLo, sLs)]
                        slots[1].append(lambda: a("s_xor_b32 s%d, s%d, s%d", sGs, sGs, sGx))
                        slots[2] += nc[4:5]
                    if (tt, j) == (1, 7): slots[0].append(lambda: a("s_cmp_lt_u32 s%d, 7", sCh))
                if last:
                    I = lambda f, *x: (lambda: a(f, *x))
                    if (tt, j) >= (0, 4):
                        slots = [[], [], [], []]; lds = []
                    if (tt, j) == (1, 0): wv = 0
                    if (tt, j) == (1, 6): wk = None
                    if (tt, j) == (0, 4):
                        slots[0] += [I("s_and_b32 s%d, s%d, 3", sT3, sW), I("s_xor_b32 s%d, s%d, 2", sT, sT3)]
                        slots[1] += [I("s_xor_b32 s%d, s%d, 3", sT2, sT3), I("s_mul_i32 s%d, s%d, 12288", sT, sT)]
                        slots[2] += [I("s_mul_i32 s%d, s%d, 12288", sT2, sT2)]
                    if (tt, j) == (0, 5):
                        slots[0] += [I("s_add_u32 s%d, s%d, %d", sCur, sT, CMB), I("s_add_u32 s%d, s%d, %d", sNxt, sT2, CMB)]
                        slots[1] += [I("s_mov_b32 s%d, 0x%x", sT3, f32bits(2.0 ** -30)), I("s_mov_b32 s%d, 0x%x", sT2, f32bits(2.0 ** 60))]
                    if (tt, j) == (0, 7):
                        a("v_and_b32 v%d, 3, v%d", vT3, vLane)
                        a("v_lshlrev_b32 v%d, 5, v%d", vT3, vT3)
                        slots[0] += [I("ds_read_b32 v%d, v%d offset:12", vT2, vT3), I("s_lshl_b32 s%d, s%d, 1", sT, sQH)]
                    if (tt, j) == (1, 1):
                        a("s_waitcnt lgkmcnt(0)")
                        a("v_cmp_le_u32 vcc, s%d, v%d", sT, vT2)
                        a("s_cmp_eq_u64 vcc, -1")
                        a("s_cbranch_scc0 L_afree0")
                        a.label("L_afree_back")
                        def afs():
                            a.label("L_afree0")
                            all8("L_afree", 2, 4)
                            a("s_branch L_afree_back")
                        stubs.append(afs)
                        a("v_add_u32 v%d, s%d, v%d", vT3, sCur, vL16)
                        a("v_add_u32 v%d, s%d, v%d", vT4, sNxt, vL16)
                        a("v_mov_b32 v%d, 1", vT2)
                        a("v_xor_b32 v%d, 64, v%d", vT1, vFo)
                        a("s_mov_b32 s%d, 0", sTmo)
                    if tt == 1 and 2 <= j <= 5:
                        for i in range(3):
                            q = 3 * (j - 2) + i
                            slots[i].append(I("ds_write_b128 v%d, %s offset:%d", vAr, vr(O + 4 * q, 4), q * 1024))
                        if j == 5: slots[2].append(I("ds_write_b32 v%d, v%d", vT1, vT2))
                    if (tt, j) == (1, 6):
                        xr = xreads(0, vT3, 12, O)
                        slots[1] += xr[:7]; slots[2] += xr[7:]
                if wv is not None: slots[1].append(lambda wv=wv: a("s_waitcnt vmcnt(%d)", wv))
                if wk is not None:
                    slots[0].append(lambda wk=wk: a("s_waitcnt vmcnt(%d)", wk))
                    for i, f in enumerate(lds): slots[i].append(f)
                else:
                    for i, f in enumerate(lds): slots[i].append(f)
                regs = [S + 16 * (j % 4) + i for i in range(16)]
                def exn(n):
                    for _ in range(n): ex(regs.pop(0))
                if first and (tt, j) == (0, 0):
                    exn(6); a("s_waitcnt lgkmcnt(0)")
                else:
                    pv(pj, pvb, 0); [f() for f in slots[0]]; exn(3)
                    pv(pj, pvb, 1); [f() for f in slots[1]]; exn(3)
                if last and (tt, j) == (1, 7):
                    exn(2)
                    if DIAG and env("AD", 0): a("s_memtime s[74:75]")
                    if DIAG: a("s_waitcnt lgkmcnt(0)")
                    xcheck("L_cmb", 0, vT3, 12, O)
                    a("s_waitcnt lgkmcnt(6)")
                    for i in range(0, 24, 2): padd(O + 48 + i, O + i)
                    for k in range(6): a("ds_write_b128 v%d, %s offset:%d", vT3, vr(O + 48 + 4 * k, 4), k * 1024)
                    a("v_xor_b32 v%d, 32, v%d", vT1, vFo)
                    a("ds_write_b32 v%d, v%d offset:4", vT1, vT2)
                    exn(8)
                elif last and (tt, j) == (1, 6):
                    [f() for f in slots[2]]; exn(10)
                elif j % 2 == 0:
                    qk1(nj, nkb); [f() for f in slots[2]]; exn(10)
                else:
                    qk2(nj - 1, nkb); [f() for f in slots[2]]; exn(3)
                    qk2(nj, nkb); [f() for f in slots[3]]; exn(7)
    iteration(True)
    BLEAD = env("BLEAD", 3)
    a("s_mov_b32 s%d, 3", sTrig)
    if BLEAD:
        a("s_cmp_eq_u32 s%d, 0", sQH)
        a("s_cbranch_scc1 L_nolead")
        a("s_setprio 3")
        a.label("L_nolead")
    st(8, False)
    a.raw(".p2align 6")
    a.label("L_attn")
    if DIAG and env("AD", 0):
        a("s_memtime s[100:101]")
        a("s_waitcnt lgkmcnt(0)")
        for k in range(2, 7):
            a("s_cmp_eq_u32 s%d, %d", sCh, k)
            a("s_cselect_b32 s%d, s100, s%d", 64 + 2 * (8 + k), 64 + 2 * (8 + k))
    a("s_cmp_eq_u32 s%d, s%d", sCh, sTrig)
    a("s_cbranch_scc1 L_mid")
    a.label("L_attn_go")
    iteration(False)
    a("s_cbranch_scc1 L_attn")
    if DIAG and env("AD", 0): a("s_memtime s[94:95]")
    iteration(False, True)
    K0 = O + 72
    xr = xreads(1, vT4, 6, S)
    xr[0](); xr[1]()
    pv(7, 1, 0); pv(7, 1, 1)
    st(9, False)
    for f in xr[2:]: f()
    a("s_waitcnt lgkmcnt(14)")
    for i in range(0, 12, 2): padd(K0 + i, O + 24 + i)
    a("s_mov_b32 s%d, 0", sTmo)
    if DIAG: a("s_waitcnt lgkmcnt(0)")
    xcheck("L_cmb2", 1, vT4, 6, S)
    a("s_waitcnt lgkmcnt(3)")
    for i in range(0, 12, 2): padd(K0 + i, S + i)
    for i in range(12, 24, 2): padd(K0 + i, O + 24 + i)
    a("s_waitcnt lgkmcnt(0)")
    for i in range(12, 24, 2): padd(K0 + i, S + i)
    Z = S + 32
    def get_l():
        for j in range(2):
            a("v_mov_b32 v%d, v%d", Z + 4 + 2 * j, K0 + 12 * j + 8)
            a("v_mov_b32 v%d, v%d", Z + 5 + 2 * j, K0 + 12 * j + 8)
    get_l()
    a("s_mov_b32 s%d, 1", sCh)
    a("v_mov_b32 v%d, 2", vT2)
    for j in range(2): a("v_permlane32_swap_b32 v%d, v%d", Z + 5 + 2 * j, Z + 4 + 2 * j)
    a.label("L_fin")
    for j in range(2): a("v_rcp_f32 v%d, v%d", Z + 2 * j, Z + 4 + 2 * j)
    a("s_nop 0")
    for j in range(2):
        k = K0 + 12 * j
        for i in range(0, 12, 2): a("v_pk_mul_f32 %s, %s, %s op_sel_hi:[1,0]", vr(k + i, 2), vr(k + i, 2), vr(Z + 2 * j, 2))
        for i in range(4): a("v_cvt_pk_bf16_f32 v%d, v%d, v%d", S + 4 * j + i, k + 2 * i, k + 2 * i + 1)
        a("buffer_store_dwordx4 %s, v%d, %s, s%d offen offset:%d sc1", vr(S + 4 * j, 4), vL16, srd, sO, j * 1024)
        for i in range(2): a("v_cvt_pk_bf16_f32 v%d, v%d, v%d", S + 8 + 2 * j + i, k + 8 + 2 * i, k + 9 + 2 * i)
    a("buffer_store_dwordx4 %s, v%d, %s, s%d offen sc1", vr(S + 8, 4), vOr, srd, sO)
    st(16, False)
    if env("EARLY", 1): a("ds_write_b32 v%d, v%d offset:12", vFo, vT2)
    a("s_cmp_eq_u32 s%d, 0", sCh)
    a("s_cbranch_scc1 L_guard_ok")
    a("v_pk_mul_f32 %s, %s, 0", vr(Z, 2), vr(K0, 2))
    a("v_pk_mul_f32 %s, %s, 0", vr(Z + 2, 2), vr(K0 + 12, 2))
    for i in range(2, 12, 2):
        for j in range(2): a("v_pk_fma_f32 %s, %s, 0, %s", vr(Z + 2 * j, 2), vr(K0 + 12 * j + i, 2), vr(Z + 2 * j, 2))
    a("v_cmp_le_f32 s[%d:%d], s%d, v%d", sC, sC + 1, sT3, Z + 4)
    a("v_cmp_le_f32 s[%d:%d], s%d, v%d", sC2, sC2 + 1, sT3, Z + 6)
    a("v_pk_add_f32 %s, %s, %s", vr(Z, 2), vr(Z, 2), vr(Z + 2, 2))
    a("v_cmp_ge_f32 vcc, s%d, v%d", sT2, Z + 4)
    a("s_and_b64 s[%d:%d], s[%d:%d], s[%d:%d]", sC, sC + 1, sC, sC + 1, sC2, sC2 + 1)
    a("v_cmp_ge_f32 s[%d:%d], s%d, v%d", sC2, sC2 + 1, sT2, Z + 6)
    a("s_and_b64 s[%d:%d], s[%d:%d], vcc", sC, sC + 1, sC, sC + 1)
    a("v_cmp_o_f32 vcc, v%d, v%d", Z, Z + 1)
    a("s_and_b64 s[%d:%d], s[%d:%d], s[%d:%d]", sC, sC + 1, sC, sC + 1, sC2, sC2 + 1)
    a("s_and_b64 s[%d:%d], s[%d:%d], vcc", sC, sC + 1, sC, sC + 1)
    a("s_cmp_eq_u64 s[%d:%d], -1", sC, sC + 1)
    a("s_cbranch_scc0 L_slow")
    a.label("L_guard_ok")
    if not env("EARLY", 1): a("ds_write_b32 v%d, v%d offset:12", vFo, vT2)
    a("v_mov_b32 v%d, s%d", vNon, sNon)
    a("v_mov_b32 v%d, s%d", vNon + 1, sNon + 1)
    a("v_lshrrev_b32 v%d, 4, v%d", vT4, vLane)
    a("v_and_b32 v%d, 15, v%d", vT3, vLane)
    a("s_lshl_b32 s%d, s%d, 8", sT, sE)
    a("v_lshl_add_u32 v%d, v%d, 4, s%d", vT1, vT3, sT)
    a("v_lshrrev_b32 v%d, 5, v%d", vT2, vLane)
    a("v_mul_u32_u24 v%d, 2560, v%d", vT2, vT2)
    a("v_and_b32 v%d, 16, v%d", vOa, vLane)
    a("v_lshl_add_u32 v%d, v%d, 5, v%d", vOa, vOa, vT2)
    a("v_add_u32 v%d, v%d, v%d", vOa, vOa, vT1)
    a("v_mul_u32_u24 v%d, %d, v%d", vOb, 2 * OB, vT4)
    a("v_add_u32 v%d, v%d, v%d", vOb, vOb, vT1)
    a("v_add_u32 v%d, 2048, v%d", vOb, vOb)
    a("s_mul_i32 s%d, s%d, %d", sT, sQH, 8 * 5120)
    a("s_add_u32 s%d, s%d, %d", sT, sT, WOB)
    a("v_and_b32 v%d, 31, v%d", vT1, vLane)
    a("v_mul_u32_u24 v%d, 40, v%d", vT1, vT1)
    a("v_add3_u32 v%d, v%d, v%d, s%d", vWa2, vT1, vT2, sT)
    a("s_mul_i32 s%d, s%d, %d", sT, sQH, 7 * 5120)
    a("s_sub_u32 s%d, %d, s%d", sT, 16 * 5120, sT)
    a("v_add_u32 v%d, s%d, v%d", vWa3, sT, vWa2)
    COAL = env("COAL", 1)
    a("v_and_b32 v%d, 4, v%d", vT2, vT3)
    a("v_lshlrev_b32 v%d, %d, v%d", vT2, 1 if COAL else 2, vT2)
    a("v_and_b32 v%d, 8, v%d", vT1, vT3)
    a("v_lshrrev_b32 v%d, 1, v%d", vT1, vT1)
    a("v_and_b32 v%d, 3, v%d", vT3, vT3)
    a("v_or3_b32 v%d, v%d, v%d, v%d", vT2, vT2, vT3, vT1)
    a("v_mul_u32_u24 v%d, %d, v%d", vT2, 176 if COAL else 2560, vT2)
    a("v_mad_u32_u24 v%d, v%d, 40, v%d", vSt, vT4, vT2)
    if COAL:
        a("s_and_b32 s%d, s%d, 3", sT, sW)
        a("s_mul_i32 s%d, s%d, 12288", sT, sT)
        a("s_add_u32 s%d, s%d, %d", sCur, sT, CMB)
        a("v_add_u32 v%d, s%d, v%d", vSt, sCur, vSt)
    a("s_lshl_b32 s%d, s%d, 3", sT, sHH)
    a("s_lshl_b32 s%d, 0xff, s%d", sM2, sT)
    EP = env("EP", 0)
    if EP:
        a("s_cmp_eq_u32 s%d, 0", sQH)
        a("s_cbranch_scc1 L_wdoneB_ok")
        all8("L_wdoneB", 2)
        pollop(sPend)
    a("s_waitcnt vmcnt(%d)", 1 if EP else 0)
    flagop(sF2)
    st(10)
    def wread_ops(s):
        fb, g, i = s % 2, s // 5, s % 5
        base, blk = ((vWb2 if g else vWa2), i) if i < 4 else ((vWb3 if g else vWa3), 0)
        return ["ds_read_b64_tr_b16 %s, v%d offset:%d" % (vr(WF + 20 * fb + 4 * j + 2 * q, 2), base, blk * 5120 + j * 8 + q * 1280) for j in range(5) for q in range(2)]
    def oloads(s):
        b_, i = (sO2 if s >= 5 else sOc), s % 5
        if i < 4:
            return ["s_add_u32 s%d, s%d, %d" % (sNxt, b_, i * 2 * OB)] + \
                   ["buffer_load_dwordx4 %s, v%d, %s, s%d offen offset:%d sc1" % (vr(OF + 8 * s + 4 * j, 4), vOa, srd, sNxt, 1024 * j) for j in range(2)]
        return ["buffer_load_dwordx4 %s, v%d, %s, s%d offen offset:%d sc1" % (vr(OF + 8 * s + 4 * e, 4), vOb, srd, b_, OB * e) for e in range(2)]
    def choose():
        a("s_lshr_b32 s%d, s%d, 15", sT, sM2)
        a("s_xor_b32 s%d, s%d, 1", sT2, sT)
        a("s_mul_i32 s%d, s%d, %d", sO2, sT, 8 * OB)
        a("s_add_u32 s%d, s%d, s%d", sO2, sO2, sOc)
        a("s_mul_i32 s%d, s%d, %d", sT3, sT2, 8 * OB)
        a("s_add_u32 s%d, s%d, s%d", sOc, sOc, sT3)
    def choose2():
        a("s_mul_i32 s%d, s%d, 10240", sT, sT)
        a("s_mul_i32 s%d, s%d, 10240", sT2, sT2)
        a("v_add_u32 v%d, s%d, v%d", vWb3, sT, vWa3)
        a("v_add_u32 v%d, s%d, v%d", vWa3, sT2, vWa3)
        a("v_lshl_add_u32 v%d, s%d, 1, v%d", vWb2, sT, vWa2)
        a("v_lshl_add_u32 v%d, s%d, 1, v%d", vWa2, sT2, vWa2)
    a("s_cmp_eq_u32 s%d, 0", sQH)
    a("s_cbranch_scc1 L_aload")
    if not EP: all8("L_wdoneB", 2)
    a("s_mov_b32 s%d, 0", sTmo)
    if EP:
        a("s_waitcnt vmcnt(1)")
        a("s_branch L_poll2e")
    else: pollop(sPend)
    a.label("L_poll2")
    a("s_add_u32 s%d, s%d, 1", sTmo, sTmo)
    a("s_waitcnt vmcnt(0)")
    a.label("L_poll2e")
    a("v_cmp_eq_u64 vcc, s[%d:%d], v[4:5]", sNon, sNon + 1)
    a("s_cmp_gt_u32 s%d, 0x8000", sTmo)
    a("s_cbranch_scc1 L_first")
    a("s_or_b32 s%d, vcc_lo, s%d", sT, sM2)
    a("s_andn2_b32 s%d, 0xffff, s%d", sT, sT)
    a("s_cbranch_scc0 L_first")
    a("s_xor_b32 s%d, s%d, 0xffff", sM2, sM2)
    a("s_or_b32 s%d, vcc_lo, s%d", sT, sM2)
    a("s_andn2_b32 s%d, 0xffff, s%d", sT, sT)
    a("s_cbranch_scc0 L_first")
    a("s_sleep %d", env("SLP2", 2))
    pollop(sPend)
    a("s_branch L_poll2")
    a.label("L_first")
    st(12)
    if env("RP", 1):
        a("s_andn2_b32 s%d, s%d, vcc_lo", sT, sM2)
        a("s_cbranch_scc0 L_norp")
        pollop(sPend)
        a.label("L_norp")
    choose()
    for s in range(5):
        for x in oloads(s): a(x)
    choose2()
    for x in wread_ops(0): a(x)
    if env("RP", 1): a("s_waitcnt vmcnt(10)")
    a.label("L_chk2")
    a("v_cmp_eq_u64 vcc, s[%d:%d], v[4:5]", sNon, sNon + 1)
    a("s_andn2_b32 s%d, s%d, vcc_lo", sP2, sM2)
    a("s_cbranch_scc1 L_more" if env("P2", 1) else "s_cbranch_scc1 L_aback")
    for s in range(5, 10):
        for x in oloads(s): a(x)
    a.label("L_aback")
    st(13)
    for s in range(10):
        o = OF + 8 * s
        acc = ACC2 if s < 5 else ACC3
        rd = wread_ops(s + 1) if s < 9 else []
        if s <= 5:
            a("s_cmp_eq_u32 s%d, 0", sP2)
            if s < 5:
                a("s_cbranch_scc1 L_both%d", s)
                if s == env("PP", 2): pollop(sPend)
                a("s_waitcnt vmcnt(%d)", 2 * (4 - s) + (1 if s >= env("PP", 2) else 0))
            else:
                a("s_cbranch_scc0 L_second")
            a.label("L_both%d" % s)
        a("s_waitcnt vmcnt(%d) lgkmcnt(0)", 2 * (9 - s))
        if s % 5 == 4:
            a("v_swap_b32 v%d, v%d", o + 2, o + 4)
            a("v_swap_b32 v%d, v%d", o + 3, o + 5)
            a("s_nop 1")
        if s == 7 and COAL:
            R = OF
            rd += ["v_lshrrev_b32 v%d, 3, v%d" % (R + 4, vLane), "v_and_b32 v%d, 7, v%d" % (R + 5, vLane),
                   "v_mul_u32_u24 v%d, 176, v%d" % (R, R + 4), "v_mul_u32_u24 v%d, 2560, v%d" % (R + 1, R + 4),
                   "v_lshl_add_u32 v%d, v%d, 4, v%d" % (R, R + 5, R), "v_lshl_add_u32 v%d, v%d, 4, v%d" % (R + 1, R + 5, R + 1),
                   "v_add_u32 v%d, s%d, v%d" % (R, sCur, R),
                   "v_lshrrev_b32 v%d, 1, v%d" % (R + 4, vLane), "v_and_b32 v%d, 1, v%d" % (R + 5, vLane),
                   "v_mul_u32_u24 v%d, 176, v%d" % (R + 2, R + 4)]
        if s == 8 and COAL:
            rd += ["v_and_b32 v%d, 24, v%d" % (R + 6, R + 4), "v_add_u32 v%d, v%d, v%d" % (R + 4, R + 4, R + 6),
                   "v_mul_u32_u24 v%d, 2560, v%d" % (R + 3, R + 4),
                   "v_lshl_add_u32 v%d, v%d, 4, v%d" % (R + 2, R + 5, R + 2), "v_lshl_add_u32 v%d, v%d, 4, v%d" % (R + 3, R + 5, R + 3),
                   "v_add_u32 v%d, s%d, v%d" % (R + 2, sCur, R + 2)]
        if s == 9:
            xr = xreads(2, vAr, 10, PART)
        for tt in (0, 1):
            for j in range(5):
                d = acc + 4 * (5 * tt + j)
                a("v_mfma_f32_16x16x32_bf16 %s, %s, %s, %s", vr(d, 4), vr(WF + 20 * (s % 2) + 4 * j, 4), vr(o + 4 * tt, 4), vr(d, 4) if s % 5 else "0")
                for _ in range(2):
                    if rd: a(rd.pop(0))
                    elif s == 9 and xr: xr.pop(0)()
    st(14, False)
    a("s_mov_b32 s%d, 0", sTmo)
    a("s_add_u32 s%d, s%d, %d", sT2, sPub, 32 * 2560)
    a("v_mov_b32 v%d, 1", vT2)
    a("s_cmp_eq_u32 s%d, 0", sQH)
    a("s_cbranch_scc0 L_x1")
    for q in range(10):
        for h in range(4): a("v_add_f32 v%d, v%d, v%d", ACC2 + 4 * q + h, ACC2 + 4 * q + h, ACC3 + 4 * q + h)
        a("ds_write_b128 v%d, %s offset:%d", vAr, vr(ACC2 + 4 * q, 4), q * 1024)
    a("ds_write_b32 v%d, v%d offset:%d", vFo, vT2, 128 + 8)
    a("s_waitcnt lgkmcnt(0)")
    a("s_branch L_xdone") if DIAG else a("s_endpgm")
    a.label("L_x1")
    if DIAG: a("s_waitcnt lgkmcnt(0)")
    xcheck("L_xch", 2, vAr, 10, PART)
    if COAL:
        for i in range(0, 40, 2): padd(ACC2 + i, ACC3 + i)
        a("s_waitcnt lgkmcnt(0)")
    for tt in range(2):
        for q in range(5):
            r = ACC2 + 20 * tt + 4 * q
            o = WF + 12 * tt
            if not COAL:
                for h in range(2): padd(r + 2 * h, ACC3 + 20 * tt + 4 * q + 2 * h)
                a("s_waitcnt lgkmcnt(%d)", 9 - 5 * tt - q)
            for h in range(2): padd(r + 2 * h, PART + 20 * tt + 4 * q + 2 * h)
            for h in range(2): a("v_cvt_pk_bf16_f32 v%d, v%d, v%d", o + 2 * q + h, r + 2 * h, r + 2 * h + 1)
            if COAL:
                a("ds_write_b64 v%d, %s offset:%d", vSt, vr(o + 2 * q, 2), tt * 16 * 176 + 8 * q)
            else:
                if q in (1, 3): a("buffer_store_dwordx4 %s, v%d, %s, s%d offen offset:%d", vr(o + 2 * q - 2, 4), vSt, sr(OUT, 4), sT2 if tt else sPub, 8 * (q - 1))
                if q == 4: a("buffer_store_dwordx2 %s, v%d, %s, s%d offen offset:32", vr(o + 8, 2), vSt, sr(OUT, 4), sT2 if tt else sPub)
        if COAL:
            for i in (2 * tt, 2 * tt + 1): a("ds_read_b128 %s, v%d offset:%d", vr(OF + 8 + 4 * i, 4), R, i * 8 * 176)
    if COAL:
        a("ds_read_b128 %s, v%d offset:128", vr(OF + 24, 4), R + 2)
        for i in range(4):
            a("s_add_u32 s%d, s%d, %d", sT2, sPub, i * 16 * 2560)
            a("s_waitcnt lgkmcnt(%d)", (9, 8, 2, 1)[i])
            a("buffer_store_dwordx4 %s, v%d, %s, s%d offen %s", vr(OF + 8 + 4 * i, 4), R + 1, sr(OUT, 4), sT2, os.environ.get("OSC", ""))
        a("s_waitcnt lgkmcnt(0)")
        a("buffer_store_dwordx4 %s, v%d, %s, s%d offen offset:128 %s", vr(OF + 24, 4), R + 3, sr(OUT, 4), sPub, os.environ.get("OSC", ""))
    a.label("L_xdone")
    st(15)
    a.label("L_exit")
    st.flush(sW)
    a.label("L_end")
    a("s_endpgm")
    a.label("L_mid")
    a("s_add_u32 s%d, s%d, 1", sTrig, sTrig)
    a("s_cmp_eq_u32 s%d, 3", sCh)
    a("s_cbranch_scc0 L_mid2")
    a("s_lshl_b32 s%d, s%d, 1", sT3, sTB)
    a("s_add_u32 s%d, s%d, s%d", sT3, sT3, sHH)
    a("s_lshl_b32 s%d, s%d, 1", sT3, sT3)
    a("s_add_u32 s%d, s%d, s%d", sT3, sT3, sKH)
    a("s_lshl_b32 s%d, s%d, 5", sT2, sB)
    a("s_add_u32 s%d, s%d, s%d", sT2, sT2, sT3)
    a("s_lshl_b32 s%d, s%d, 1", sT2, sT2)
    a("s_add_u32 s%d, s%d, s%d", sT2, sT2, sQH)
    a("s_mul_i32 s%d, s%d, %d", sOc, sT2, 16 * OB)
    a("s_add_u32 s%d, s%d, %d", sOc, sOc, O_OFF)
    a("s_mul_i32 s%d, s%d, %d", sT2, sT2, FS)
    a("s_add_u32 s%d, s%d, %d", sPend, sT2, F2_OFF)
    a("s_lshl_b32 s%d, s%d, 3", sT3, sT3)
    a("s_add_u32 s%d, s%d, s%d", sT3, sT3, sE)
    a("s_mul_i32 s%d, s%d, %d", sPub, sT3, 8 * 2560)
    a("s_mul_i32 s%d, s%d, 1280", sT2, sB)
    a("s_add_u32 s%d, s%d, s%d", sPub, sPub, sT2)
    a("s_and_b32 s%d, s%d, 7", sT2, sHP)
    a("s_mul_i32 s%d, s%d, 160", sT2, sT2)
    a("s_add_u32 s%d, s%d, s%d", sPub, sPub, sT2)
    a("s_cmp_eq_u32 s%d, 0", sMsk)
    a("s_cbranch_scc1 L_poll3_ok")
    poll("L_poll3", sF1, "0xffff", 0x4000, 2)
    a.label("L_mid2")
    a("s_cmp_eq_u32 s%d, 0", sQH)
    a("s_cselect_b32 s%d, 0, s%d", sTrig, sTrig)
    a("s_cbranch_scc1 L_attn_go")
    a("s_cmp_eq_u32 s%d, %d", sCh, max(BLEAD + 1, 3))
    a("s_cbranch_scc0 L_mid3")
    a("s_setprio 1")
    a.label("L_mid3")
    a("s_cmp_ge_u32 s%d, %d", sCh, max(BLEAD + 1, 4))
    a("s_cselect_b32 s%d, 0, s%d", sTrig, sTrig)
    a("s_cmp_eq_u32 s%d, 4", sCh)
    a("s_cbranch_scc0 L_attn_go")
    a("s_cmp_lt_u32 s%d, 5", sW)
    a("s_cbranch_scc1 L_attn_go")
    a("v_mov_b32 v%d, 2.0", vG)
    a("v_mov_b32 v%d, 2.0", vGb)
    a("s_mov_b32 s%d, %d", sLo, CMB + 8 * 7168)
    a("s_mov_b32 s%d, 0", sLs)
    a("s_mov_b32 s%d, 0", sGs)
    a("s_mov_b32 s%d, 0", sGx)
    a("s_mov_b32 s%d, 0", sGo)
    a("s_branch L_attn_go")
    a.label("L_more")
    a("ds_read_b32 v%d, v%d offset:8", vT3, vFo)
    a("s_add_u32 s%d, s%d, 1", sTmo, sTmo)
    a("s_waitcnt lgkmcnt(0)")
    a("v_readfirstlane_b32 s%d, v%d", sT, vT3)
    a("s_cmp_gt_u32 s%d, 0x8000", sTmo)
    a("s_cbranch_scc1 L_aback")
    a("s_cmp_eq_u32 s%d, 0", sT)
    a("s_cbranch_scc0 L_aback")
    pollop(sPend)
    a("s_waitcnt vmcnt(0)")
    a("s_branch L_chk2")
    a.label("L_second")
    if env("PP", 2) < 5:
        a("s_waitcnt vmcnt(0)")
        a("v_cmp_eq_u64 vcc, s[%d:%d], v[4:5]", sNon, sNon + 1)
        a("s_andn2_b32 s%d, s%d, vcc_lo", sT, sM2)
        a("s_cbranch_scc0 L_poll5_ok")
    poll("L_poll5", sPend, "s%d" % sM2, 0x8000, env("SLP2", 2))
    for s_ in range(5, 10):
        for x in oloads(s_): a(x)
    a("s_branch L_both5")
    a.label("L_aload")
    a("s_waitcnt vmcnt(0)")
    poll("L_poll4", sPend, "0xffff", 0x8000, env("SLP2", 2))
    choose(); choose2()
    a("s_mov_b32 s%d, 0", sP2)
    for s_ in range(10):
        for x in oloads(s_): a(x)
        a("s_waitcnt vmcnt(%d)", env("AW", 4))
    a("s_setprio 0")
    all8("L_wdone", 2)
    a("s_setprio 2")
    for x in wread_ops(0): a(x)
    a("s_branch L_aback")
    for v in range(2):
        a.label("L_nonce%d" % v)
        a("s_mov_b32 s%d, 0", sT)
        a.label("L_nonce_retry%d" % v)
        a("v_mov_b32 v%d, 0", vT1)
        a("global_load_dwordx2 %s, v%d, s[%d:%d] sc0 sc1", vr(vNon, 2), vT1, sDbg, sDbg + 1)
        a("s_add_u32 s%d, s%d, 1", sT, sT)
        a("s_waitcnt vmcnt(0)")
        a("v_readfirstlane_b32 s%d, v%d", sNon + 1, vNon + 1)
        a("v_readfirstlane_b32 s%d, v%d", sNon, vNon)
        a("s_cmp_gt_u32 s%d, 0x4000", sT)
        a("s_cbranch_scc1 L_nonce_ok%d", v)
        a("s_cmp_eq_u32 s%d, 0", sNon + 1)
        a("s_cbranch_scc1 L_nonce_retry%d", v)
        a("s_branch L_nonce_ok%d", v)
    for f in stubs: f()
    a.label("L_slow")
    C = S
    MX = O
    a("s_waitcnt vmcnt(0)")
    a("s_and_b32 s%d, s%d, 3", sT, sW)
    a("s_mul_i32 s%d, s%d, %d", sT, sT, BLK)
    a("s_sub_u32 s%d, s%d, s%d", sKV, sKV, sT)
    a("s_mov_b32 s%d, s%d", sCur, sKV)
    a("s_add_u32 s%d, s%d, %d", sCh, sKV, KV_PAIR)
    a("v_mov_b32 v%d, 0xff800000", MX)
    a("v_mov_b32 v%d, 0xff800000", MX + 1)
    a.label("L_slow1")
    for b in range(2): kvop("k", b, sCur); kvop("r", b, sCur)
    a("s_waitcnt vmcnt(0)")
    for b in range(2):
        qk1(6, b); a("s_nop 15"); a("s_nop 1"); qk2(6, b); qk2(7, b)
        a("s_nop 15")
        for j in range(2):
            for i in range(8): a("v_max3_f32 v%d, v%d, v%d, v%d", MX + j, MX + j, S + 32 + 16 * j + 2 * i, S + 32 + 16 * j + 2 * i + 1)
    a("s_add_u32 s%d, s%d, %d", sCur, sCur, BLK)
    a("s_cmp_lt_u32 s%d, s%d", sCur, sCh)
    a("s_cbranch_scc1 L_slow1")
    for j in range(2):
        a("v_mov_b32 v%d, v%d", vT1, MX + j)
        a("s_nop 1")
        a("v_permlane32_swap_b32 v%d, v%d", vT1, MX + j)
        a("s_nop 1")
        a("v_max_f32 v%d, v%d, v%d", vT1, vT1, MX + j)
        for i in range(16): a("v_sub_f32 v%d, 0, v%d", C + 16 * j + i, vT1)
    for i in range(24): a("v_mov_b32 v%d, 0", K0 + i)
    a("s_mov_b32 s%d, s%d", sCur, sKV)
    a.label("L_slow2")
    for b in range(2):
        kvop("k", b, sCur); kvop("r", b, sCur); kvop("v", b, sCur, 0); kvop("v", b, sCur, 1)
    a("s_waitcnt vmcnt(0)")
    for b in range(2):
        qk1(6, b, vr(C, 32)); a("s_nop 15"); a("s_nop 1"); qk2(6, b); qk2(7, b)
        a("s_nop 15")
        for i in range(32): ex(S + 32 + i)
        a("s_nop 1")
        pv(6, b, 0); pv(6, b, 1)
        a("s_nop 10")
        pv(7, b, 0); pv(7, b, 1)
    a("s_add_u32 s%d, s%d, %d", sCur, sCur, BLK)
    a("s_cmp_lt_u32 s%d, s%d", sCur, sCh)
    a("s_cbranch_scc1 L_slow2")
    a("s_nop 15")
    get_l()
    a("s_nop 1")
    for j in range(2): a("v_permlane32_swap_b32 v%d, v%d", Z + 5 + 2 * j, Z + 4 + 2 * j)
    a("s_mov_b32 s%d, 0", sCh)
    a("s_branch L_fin")
    a.label("L_code_end")
    return name, NFV, 163840

def gen_spin(a):
    name = "spin_kernel"
    kernel_head(a, name)
    wa, ia, wb, ib, mult, off = [int(x) for x in SPIN.split(",")]
    a("s_cmp_ge_u32 s2, 1")
    a("s_cbranch_scc1 L_spin_end")
    a("s_load_dwordx2 s[4:5], s[0:1], 64")
    a("s_waitcnt lgkmcnt(0)")
    a("s_add_u32 s4, s4, %d", DIAG_OFF)
    a("s_addc_u32 s5, s5, 0")
    if wa >= 0:
        a("v_mov_b32 v1, %d", 4 * ia + 128 * (16 * 8 + wa))
        a("v_mov_b32 v2, %d", 4 * ib + 128 * (16 * 8 + wb))
        a("global_load_dword v3, v1, s[4:5]")
        a("global_load_dword v4, v2, s[4:5]")
        a("s_waitcnt vmcnt(0)")
        a("v_sub_u32 v3, v4, v3")
        a("s_nop 1")
        a("v_readfirstlane_b32 s8, v3")
    else:
        a("v_lshlrev_b32 v1, 11, v0")
        a("v_mov_b32 v2, 0")
        a("global_load_dword v7, v2, s[4:5]")
        for k in range(4):
            a("global_load_dword v%d, v1, s[4:5] offset:%d", 8 + k, 4 * ia + (0 if wa == -1 else 128 * wb))
            a("global_load_dword v%d, v1, s[4:5] offset:%d", 12 + k, 4 * ib + 128 * wb)
            a("v_add_u32 v1, %d, v1", 64 * 2048)
        a("s_waitcnt vmcnt(0)")
        for k in range(8): a("v_sub_u32 v%d, v%d, v7", 8 + k, 8 + k)
        op = "min" if wa == -1 else "max"
        for k in range(1, 4):
            a("v_%s_i32 v8, v8, v%d", op, 8 + k)
            a("v_max_i32 v12, v12, v%d", 12 + k)
        a("s_nop 1")
        a("v_readlane_b32 s20, v8, 0")
        a("v_readlane_b32 s21, v12, 0")
        for l in range(1, 64):
            a("v_readlane_b32 s22, v8, %d", l)
            a("v_readlane_b32 s23, v12, %d", l)
            a("s_%s_i32 s20, s20, s22", op)
            a("s_max_i32 s21, s21, s23")
        a("s_sub_u32 s8, s21, s20")
    a("s_memrealtime s[10:11]")
    a("s_nop 3")
    a("s_max_u32 s8, s8, %d", off)
    a("s_sub_u32 s8, s8, %d", off)
    a("s_min_u32 s8, s8, 20000")
    a("s_mul_i32 s8, s8, %d", mult)
    a("s_waitcnt lgkmcnt(0)")
    a.label("L_spin")
    a("s_memrealtime s[12:13]")
    a("s_waitcnt lgkmcnt(0)")
    a("s_sub_u32 s14, s12, s10")
    a("s_cmp_lt_u32 s14, s8")
    a("s_cbranch_scc1 L_spin")
    a.label("L_spin_end")
    a("s_endpgm")
    return name, 16, 0

def gen_pre(a):
    name = "pre_kernel"
    kernel_head(a, name)
    PRE = env("PREK", 0)
    if PRE == 2:
        a("s_cmp_ge_u32 s2, 256")
        a("s_cbranch_scc1 L_pre_end")
        a("s_bfe_u32 s22, s2, 0x10002")
        a("s_mul_i32 s30, s22, 24")
        a("s_load_dwordx4 s[4:7], s[0:1], s30")
        a("s_lshr_b32 s30, s2, 3")
        a("s_mul_i32 s30, s30, 320")
        a("v_add_u32 v1, s30, v0")
        a("s_bfe_u32 s23, s2, 0x10001")
        a("s_mul_i32 s23, s23, %d", 1024 * 1280)
        a("v_lshl_add_u32 v2, v1, 7, s23")
        a("v_lshrrev_b32 v3, 4, v1")
        a("v_and_b32 v4, 15, v1")
        a("v_min_u32 v4, 14, v4")
        a("v_mul_u32_u24 v5, 13, v4")
        a("v_lshrrev_b32 v5, 6, v5")
        a("v_mul_u32_u24 v5, 640, v5")
        a("v_lshl_add_u32 v4, v4, 7, v5")
        a("v_mul_u32_u24 v3, 3840, v3")
        a("s_and_b32 s24, s2, 1")
        a("s_mul_i32 s24, s24, 640")
        a("v_add3_u32 v3, v3, v4, s24")
        a("s_waitcnt lgkmcnt(0)")
        a("global_load_dword v6, v2, s[4:5]")
        a("global_load_dword v7, v3, s[6:7]")
        a.label("L_pre_end")
    a("s_endpgm")
    return name, 8, 0

def main(out):
    a = A()
    ks = []
    for g, blk in (((gen_pre, 320),) if env("PREK", 0) else ()) + ((gen_fused, 512),) + (((gen_spin, 64),) if SPIN else ()):
        n, nfv, lds = g(a)
        ks.append((n, nfv, lds, blk))
    hdr = """; Two independent MHA blocks (S=2048, D=640, H=32, Dh=20), concatenated on the last axis; one fused kernel.
"""
    if len(ks) == 1 and not env("LIST", 0):
        hdr += "; @launch grid=(256,1,1) block=(%d,1,1) lds=%d\n" % (ks[0][3], ks[0][2])
    else:
        for n, nfv, lds, blk in ks:
            hdr += "; @launch kernel=%s grid=(256,1,1) block=(%d,1,1) lds=%d\n" % (n, blk, lds)
    s = hdr + '.amdgcn_target "amdgcn-amd-amdhsa--gfx950"\n.text\n' + a.text()
    s += '.section .rodata,"a"\n'
    for n, nfv, lds, blk in ks: s += kd(n, nfv)
    open(out, "w").write(s)

if __name__ == "__main__":
    main(sys.argv[1] if len(sys.argv) > 1 else "cdna_kernels/%s.s" % NAME)
```

```python
import math, struct, sys, os

NAME = "concat_heads__mha_block__softmax_full_mha__prompt"
BLK = 12288
KV_PAIR = 32 * BLK
KV_OFF = 0
OB = 2560
O_OFF = KV_OFF + 32 * KV_PAIR
O_BYTES = 32 * 32 * OB
FS = int(os.environ.get("FS", "8576"))
F1_OFF = O_OFF + 2 * O_BYTES
F2_OFF = F1_OFF + 128 * FS
WS_USED = F2_OFF + 128 * FS
CSCALE = math.log2(math.e) / math.sqrt(20.0)
OOB = 0x40000000
DIAG = int(os.environ.get("DIAG", "0"))
DIAG_OFF = 64 << 20
def env(n, d): return int(os.environ.get(n, str(d)))
NT = env("NT", 0)
SKEW = env("SKEW", 2)
HELP = env("HELP", 1)
SPIN = os.environ.get("SPIN", "")

def f32bits(x): return struct.unpack("<I", struct.pack("<f", x))[0]

class A:
    def __init__(self): self.l = []
    def __call__(self, s, *a): self.l.append("    " + (s % a if a else s))
    def label(self, s): self.l.append(s + ":")
    def raw(self, s): self.l.append(s)
    def c(self, s): self.l.append("    ; " + s)
    def text(self): return "\n".join(self.l) + "\n"

def vr(b, n): return "v[%d:%d]" % (b, b + n - 1) if n > 1 else "v%d" % b
def sr(b, n): return "s[%d:%d]" % (b, b + n - 1) if n > 1 else "s%d" % b

def kernel_head(a, name):
    a.raw(".globl %s" % name); a.raw(".p2align 8"); a.raw(".type %s,@function" % name); a.label(name)

def kd(name, nfv, nsg=102):
    acc = (nfv + 3) // 4 * 4
    return """.p2align 6
.amdhsa_kernel %s
  .amdhsa_next_free_vgpr %d
  .amdhsa_next_free_sgpr %d
  .amdhsa_accum_offset %d
  .amdhsa_group_segment_fixed_size 0
  .amdhsa_kernarg_size 72
  .amdhsa_user_sgpr_count 2
  .amdhsa_user_sgpr_kernarg_segment_ptr 1
  .amdhsa_system_sgpr_workgroup_id_x 1
.end_amdhsa_kernel
""" % (name, nfv, nsg, acc)

class Stamps:
    def __init__(self, a):
        self.a = a
        if DIAG:
            for i in range(62, 100): a("s_mov_b32 s%d, 0", i)
            a("s_memrealtime s[60:61]")
    def g(self, i):
        if DIAG and env("GD", 0): self.a("s_mem%stime s[%d:%d]", "real" if DIAG == 1 else "", 64 + 2 * i, 65 + 2 * i)
    def __call__(self, i, wait=True):
        if not DIAG: return
        if env("GD", 0) and 3 <= i <= 16: return
        if env("AD", 0) and i in (1, 2, 3, 5, 10, 11, 12, 13, 14, 15): return
        if DIAG == 1: self.a("s_memrealtime s[%d:%d]", 64 + 2 * i, 65 + 2 * i)
        else: self.a("s_memtime s[%d:%d]", 64 + 2 * i, 65 + 2 * i)
        if wait: self.a("s_waitcnt lgkmcnt(0)")
    def flush(self, swave):
        if not DIAG: return
        a = self.a
        a("s_mov_b64 exec, -1")
        a("s_waitcnt vmcnt(0)")
        self(17)
        a("s_memrealtime s[62:63]")
        a("s_load_dwordx2 s[56:57], s[0:1], 64")
        a("s_lshl_b32 s58, s2, 4")
        a("s_add_u32 s58, s58, s%d", swave)
        a("s_lshl_b32 s58, s58, 7")
        a("s_add_u32 s58, s58, %d", DIAG_OFF)
        a("v_mov_b32 v1, s58")
        a("s_waitcnt lgkmcnt(0)")
        for i in range(20):
            a("v_mov_b32 v2, s%d", 60 + 2 * i)
            a("global_store_dword v1, v2, s[56:57] offset:%d", 4 * i)
        a("s_waitcnt vmcnt(0)")

def gen_fused(a):
    name = NAME + "_kernel"
    kernel_head(a, name)
    WS, XS, WSRD = 8, 12, 16
    sNon = 20
    sB, sTB, sHP, sHH, sW, sE, sKH, sQH = 22, 23, 24, 25, 26, 27, 28, 29
    sT, sT2, sT3 = 30, 31, 32
    sXoff, sWoff, sM0x, sM0w, sIt, sDX, sDW, sSlot, sSx, sSw = 33, 34, 35, 36, 37, 38, 39, 40, 41, 42
    sNxt, sNxt1, sCh, sR, sTmo, sCur = 33, 34, 35, 36, 38, 39
    sDbg = 44
    sC, sC2 = 46, 48
    sKV, sPub, sF1, sO, sF2, sMsk = 50, 51, 52, 53, 54, 55
    sOc, sPend, sTrig = 40, 41, 43
    sLd, sGx = 3, 34
    sGo, sLo, sGs, sLs, sGd = 36, 37, 42, 44, 45
    WO, OUT = WSRD, XS
    ACC2, WF, OF = 16, 56, 96
    PART = 176
    vOa, vOb, vWa2, vWa3, vSt, vWb2, vWb3, vFl2 = 8, 9, 10, 11, 0, 2, 13, 14
    ACC3 = 216
    sO2, sP2, sM2 = 36, 37, 42
    srd = sr(WS, 4)
    vLane, vM, vH, vT1, vT2, vT3, vT4 = 1, 2, 3, 4, 5, 6, 7
    vK, vKr, vV, vIdx, vFl, vL16, vOr, vS1 = 8, 9, 10, 11, 12, 13, 14, 15
    vG, vGb, vFo, vAr = 0, 2, 3, 15
    vNon, vTch = 252, 255
    vXg, vWg, vXa, vWa = 80, 84, 86, 88
    vG0, vG1, vL0, vL1, vSc, vOne = 243, 244, 245, 246, 248, 249
    vRk, vRr, vRv = 247, 250, 251
    F, ACC = 16, 92
    Qm, Qr, Km, Kr, V, S, O = 16, 48, 64, 72, 76, 92, 156
    NFV = 256
    WBASE = 98304
    LFLAG, WOB = 0, 1024
    CMB = WOB + 102400
    IMG = 1024

    a("s_cmp_ge_u32 s2, 256")
    a("s_cbranch_scc1 L_end")
    st = Stamps(a)
    a("s_bfe_u32 s%d, s2, 0x10002", sB)
    a("s_mul_i32 s%d, s%d, 24", sT, sB)
    a("s_load_dwordx4 s[4:7], s[0:1], s%d", sT)
    a("v_lshrrev_b32 v%d, 6, v0", vT1)
    a("v_and_b32 v%d, 63, v0", vLane)
    a("v_readfirstlane_b32 s%d, v%d", sW, vT1)
    a("s_bfe_u32 s%d, s2, 0x10001", sTB)
    a("s_lshl_b32 s%d, s%d, 2", sTB, sTB)
    a("s_bfe_u32 s%d, s2, 0x20003", sT)
    a("s_or_b32 s%d, s%d, s%d", sTB, sTB, sT)
    if env("HX", 1):
        a("s_lshr_b32 s%d, s2, 1", sHH)
        a("s_xor_b32 s%d, s%d, s2", sHH, sHH)
        a("s_and_b32 s%d, s%d, 1", sHH, sHH)
    else: a("s_and_b32 s%d, s2, 1", sHH)
    a("s_lshl_b32 s%d, s%d, 3", sHP, sHH)
    a("s_lshr_b32 s%d, s2, 5", sT)
    a("s_or_b32 s%d, s%d, s%d", sHP, sHP, sT)
    a("s_lshr_b32 s%d, s2, 7", sT)
    a("s_xor_b32 s%d, s%d, s%d", sHP, sHP, sT)
    a("s_and_b32 s%d, s%d, 1", sE, sW)
    a("v_lshrrev_b32 v%d, 3, v0", vT1)
    a("s_mul_i32 s%d, s%d, 24", sT, sW)
    a("v_add_u32 v%d, s%d, v%d", vT1, sT, vT1)
    a("v_mul_u32_u24 v%d, 1280, v%d", vT1, vT1)
    a("v_lshrrev_b32 v%d, 4, v%d", vT4, vLane)
    a("v_and_b32 v%d, 7, v%d", vT3, vLane)
    a("v_xor_b32 v%d, v%d, v%d", vT2, vT4, vT3)
    a("v_xor_b32 v%d, 4, v%d", vT3, vT2)
    a("v_lshl_add_u32 v%d, v%d, 4, v%d", vXg + 0, vT2, vT1)
    a("v_lshl_add_u32 v%d, v%d, 4, v%d", vXg + 1, vT3, vT1)
    a("v_add_u32 v%d, %d, v%d", vXg + 1, 8 * 1280 - 1024, vXg + 1)
    a("v_add_u32 v%d, %d, v%d", vXg + 2, 16 * 1280 - 2048, vXg + 0)
    a("v_add_u32 v%d, %d, v%d", vXg + 3, 16 * 1280 - 2048, vXg + 1)
    wmark = len(a.l)
    a("s_load_dwordx2 s[%d:%d], s[0:1], 64", WS, WS + 1)
    a("s_load_dwordx2 s[%d:%d], s[0:1], 56", sDbg, sDbg + 1)
    a("s_mul_i32 s%d, s%d, 24", sT, sB)
    a("s_add_u32 s%d, s%d, 16", sT, sT)
    a("s_load_dwordx2 s[56:57], s[0:1], s%d", sT)
    a("s_load_dwordx2 s[58:59], s[0:1], 48")
    a("s_memrealtime s[%d:%d]", sNon, sNon + 1)
    if env("CODEPF", 2) & 2:
        a.label("L_pfbase0")
        a("s_getpc_b64 s[%d:%d]", sC2, sC2 + 1)
        a("s_and_b32 s%d, s2, -8", sT)
        a("s_add_u32 s%d, s%d, s%d", sT, sT, sW)
        a("s_lshl_b32 s%d, s%d, 7", sT, sT)
        a("s_min_u32 s%d, s%d, %s", sT, sT, "L_code_end-L_pfbase0-8")
        a("v_mov_b32 v254, s%d", sT)
        a("global_load_dword v254, v254, s[%d:%d]", sC2, sC2 + 1)
    TAB = [0, 3, 1, 4, 5, 8, 6, 9, 2, 7, 10, 11, 13, 14, 12, 15]
    tab = sum(v << (4 * i) for i, v in enumerate(TAB))
    a("s_lshl_b32 s%d, s%d, 3", sT, sE)
    a("v_lshl_add_u32 v%d, v%d, 1, s%d", vT2, vT4, sT)
    a("v_and_b32 v%d, 15, v%d", vM, vLane)
    a("v_xor_b32 v%d, v%d, v%d", vT2, vT2, vM)
    a("v_lshlrev_b32 v%d, 2, v%d", vT2, vT2)
    a("s_mov_b32 s%d, 0x%x", sC, tab & 0xffffffff)
    a("s_mov_b32 s%d, 0x%x", sC + 1, tab >> 32)
    a("v_lshrrev_b64 v[16:17], v%d, s[%d:%d]", vT2, sC, sC + 1)
    a("v_and_b32 v%d, 15, v16", vT2)
    a("s_lshl_b32 s%d, s%d, 3", sT, sW)
    a("v_add_u32 v%d, s%d, v%d", vT1, sT, vT4)
    a("v_mul_u32_u24 v%d, 3840, v%d", vT1, vT1)
    a("v_mul_u32_u24 v%d, 13, v%d", vT3, vT2)
    a("v_lshrrev_b32 v%d, 6, v%d", vT3, vT3)
    a("v_mul_u32_u24 v%d, %d, v%d", vT3, 1280 - 80, vT3)
    a("v_cmp_eq_u32 vcc, 15, v%d", vT2)
    a("v_lshl_add_u32 v%d, v%d, 4, v%d", vT2, vT2, vT3)
    a("v_mov_b32 v%d, 0x%x", vS1, OOB)
    if HELP:
        a("s_and_b32 s%d, s%d, 7", sT, sHP)
        a("s_mov_b32 s%d, 0x%x", sT2, OOB)
        for hp, sec in ((0, 0), (2, 1), (5, 2)):
            a("s_cmp_eq_u32 s%d, %d", sT, hp)
            a("s_cselect_b32 s%d, %d, s%d", sT2, sec * 1280 + 256 - 80 * hp + (HELP - 1) * 64 * 3840, sT2)
        a("s_bfe_u32 s%d, s%d, 0x10001", sT, sTB)
        a("v_lshrrev_b32 v%d, 1, v%d", vT3, vT4)
        a("v_cmp_eq_u32 s[%d:%d], s%d, v%d", sC, sC + 1, sT, vT3)
        a("v_mov_b32 v%d, s%d", vT3, sT2)
        a("s_nop 0")
        a("v_cndmask_b32 v%d, v%d, v%d, s[%d:%d]", vT3, vS1, vT3, sC, sC + 1)
        a("v_cndmask_b32 v%d, v%d, v%d, vcc", vT2, vT2, vT3)
    else:
        a("v_cndmask_b32 v%d, v%d, v%d, vcc", vT2, vT2, vS1)
    a("v_add_u32 v%d, v%d, v%d", vWg + 0, vT1, vT2)
    a("v_add_u32 v%d, %d, v%d", vWg + 1, 4 * 3840 - 1024, vWg + 0)
    a("s_lshl_b32 s%d, s%d, 11", sM0w, sW)
    a("s_add_u32 s%d, s%d, %d", sM0w, sM0w, WBASE)
    a("s_mov_b32 s%d, 0x20000", WSRD + 3)
    a("s_mul_i32 s%d, s%d, 80", sT2, sHP)
    a("s_sub_u32 s%d, %d, s%d", WSRD + 2, 640 * 3840, sT2)
    a("s_add_u32 s%d, s6, s%d", WSRD, sT2)
    a("s_addc_u32 s%d, s7, 0", WSRD + 1)
    wblk = []
    if True:
        wblk = a.l[wmark:]; del a.l[wmark:]
    a("s_lshr_b32 s%d, s%d, 1", sT, sW)
    a("s_mul_i32 s%d, s%d, 24576", sM0x, sT)
    a("s_lshl_b32 s%d, s%d, 12", sT, sE)
    a("s_add_u32 s%d, s%d, s%d", sM0x, sM0x, sT)
    a("s_mov_b32 s%d, %d", XS + 2, 256 * 1280)
    a("s_mov_b32 s%d, 0x20000", XS + 3)
    if SKEW:
        a("s_xor_b32 s%d, s%d, s%d", sT, sTB, sHP)
        a("s_and_b32 s%d, s%d, 1", sT, sT)
        a("s_mul_i32 s%d, s%d, 5", sT, sT)
        if SKEW > 1:
            TY = env("TY", 1)
            if TY == 0:
                a("s_lshr_b32 s%d, s2, 1", sT2)
                a("s_xor_b32 s%d, s%d, s2", sT2, sT2)
            elif TY == 1: a("s_xor_b32 s%d, s2, 1", sT2)
            else: a("s_mov_b32 s%d, s2", sT2)
            a("s_and_b32 s%d, s%d, 1", sT2, sT2)
            a("s_mul_i32 s%d, s%d, %d", sT2, sT2, SKEW)
            a("s_add_u32 s%d, s%d, s%d", sT, sT, sT2)
        XS1 = env("XS1", 0)
        if XS1:
            a("s_lshr_b32 s%d, s2, 2", sT2)
            a("s_xor_b32 s%d, s%d, s2", sT2, sT2)
            a("s_bfe_u32 s%d, s%d, 0x10004", sT2, sT2)
            if XS1 == 2:
                a("s_bfe_u32 s%d, s2, 0x10005", sC)
                a("s_andn2_b32 s%d, s%d, s%d", sT2, sT2, sC)
            a("s_add_u32 s%d, s%d, s%d", sT, sT, sT2)
        FOL = env("FOL", 1)
        if FOL:
            a("s_bfe_u32 s%d, s2, 0x10005", sT2)
            a("s_mul_i32 s%d, s%d, %d", sT2, sT2, 10 - FOL)
            a("s_add_u32 s%d, s%d, s%d", sT, sT, sT2)
            a("s_cmp_ge_u32 s%d, 10", sT)
            a("s_cselect_b32 s%d, 10, 0", sT2)
            a("s_sub_u32 s%d, s%d, s%d", sT, sT, sT2)
        a("s_lshl_b32 s%d, s%d, 7", sXoff, sT)
        a("s_mul_i32 s%d, s%d, %d", sWoff, sT, 64 * 3840)
    else:
        a("s_mov_b32 s%d, 0", sXoff)
        a("s_mov_b32 s%d, 0", sWoff)
    a("s_mul_i32 s%d, s%d, %d", sT, sTB, 256 * 1280)
    a("s_waitcnt lgkmcnt(0)")
    a("s_add_u32 s%d, s4, s%d", XS, sT)
    a("s_addc_u32 s%d, s5, 0", XS + 1)

    ntx = " nt" if NT & 1 else ""
    ntw = " nt" if NT & 2 else ""
    def dma_ops(slot_x, slot_w):
        ops = []
        def x(i):
            if i == 0:
                a("s_add_u32 m0, s%d, %s", sM0x, slot_x); a("s_nop 0")
            a("buffer_load_dwordx4 v%d, %s, s%d offen offset:%d%s lds", vXg + i, sr(XS, 4), sXoff, 1024 * i, ntx)
        def w(i):
            if i == 0:
                a("s_add_u32 m0, s%d, %s", sM0w, slot_w)
                a("s_add_u32 s%d, s%d, %d", sXoff, sXoff, 0 if env("NOADV", 0) & 1 else 128)
            a("buffer_load_dwordx4 v%d, %s, s%d offen offset:%d%s lds", vWg + i, sr(WSRD, 4), sWoff, 1024 * i, ntw)
            if i == 1:
                a("s_add_u32 s%d, s%d, %d", sWoff, sWoff, 0 if env("NOADV", 0) & 2 else 64 * 3840)
                if SKEW:
                    a("s_cmp_eq_u32 s%d, 1280", sXoff)
                    a("s_cselect_b32 s%d, 0, s%d", sXoff, sXoff)
                    a("s_cselect_b32 s%d, 0, s%d", sWoff, sWoff)
        for i in range(4): ops.append(lambda i=i: x(i))
        for i in range(2): ops.append(lambda i=i: w(i))
        return ops
    for i, op in enumerate(dma_ops("0", "0")):
        if i == 4: a.l += wblk
        op()
    a("s_bfe_u32 s%d, s%d, 0x10001", sKH, sW)
    a("s_lshr_b32 s%d, s%d, 2", sQH, sW)
    a("s_mov_b32 s%d, %d", WS + 2, WS_USED)
    a("s_mov_b32 s%d, 0x20000", WS + 3)
    a("s_and_b32 s%d, s%d, 3", sT3, sW)
    a("v_lshrrev_b32 v%d, 1, v%d", vT1, vM)
    a("v_xor_b32 v%d, v%d, v%d", vT1, vT1, vT4)
    a("s_mul_i32 s%d, s%d, 24576", sT, sT3)
    a("v_lshl_add_u32 v%d, v%d, 7, s%d", vT2, vM, sT)
    a("v_lshl_add_u32 v%d, v%d, 4, v%d", vXa, vT1, vT2)
    a("v_xor_b32 v%d, 64, v%d", vXa + 1, vXa)
    a("v_bfe_u32 v%d, v%d, 2, 2", vT1, vLane)
    a("v_lshl_add_u32 v%d, v%d, 3, v%d", vT2, vT4, vT1)
    a("v_lshlrev_b32 v%d, 8, v%d", vT2, vT2)
    a("v_and_b32 v%d, 3, v%d", vT3, vLane)
    a("v_lshl_add_u32 v%d, v%d, 3, v%d", vT2, vT3, vT2)
    a("v_add_u32 v%d, %d, v%d", vT2, WBASE, vT2)
    a("v_bfe_u32 v%d, v%d, 2, 3", vT1, vLane)
    a("s_lshl_b32 s%d, s%d, 2", sT, sQH)
    a("v_xor_b32 v%d, s%d, v%d", vT1, sT, vT1)
    a("v_lshl_add_u32 v%d, v%d, 5, v%d", vWa, vT1, vT2)
    for xt in range(1, 4): a("v_xor_b32 v%d, %d, v%d", vWa + xt, 32 * xt, vWa)
    mark = len(a.l)
    a("v_lshlrev_b32 v%d, 4, v%d", vL16, vLane)
    a("s_lshl_b32 s%d, s%d, 14", sT, sT3)
    a("s_add_u32 s%d, s%d, %d", sT, sT, IMG)
    a("v_add_u32 v%d, s%d, v%d", vL0, sT, vL16)
    a("v_cmp_lt_u32 vcc, 1, v%d", vT4)
    a("v_lshlrev_b32 v%d, 3, v%d", vT1, vLane)
    a("v_add_u32 v%d, 4096, v%d", vT1, vT1)
    a("v_mov_b32 v%d, 0x%x", vT2, f32bits(CSCALE))
    a("v_cndmask_b32 v%d, v%d, v%d, vcc", vG0, vS1, vT1)
    a("v_cndmask_b32 v%d, v%d, 1.0, vcc", vSc, vT2)
    a("v_and_b32 v%d, 4, v%d", vT1, vM)
    a("v_and_b32 v%d, 8, v%d", vT2, vM)
    a("v_lshlrev_b32 v%d, 5, v%d", vT1, vT1)
    a("v_lshl_add_u32 v%d, v%d, 3, v%d", vT1, vT2, vT1)
    a("v_and_b32 v%d, 0x330, v%d", vT2, vL16)
    a("v_add_u32 v%d, v%d, v%d", vT1, vT1, vT2)
    a("v_add_u32 v%d, 6144, v%d", vG1, vT1)
    a("v_add_u32 v%d, s%d, v%d", vL1, sT, vG1)
    if not env("PEEL", 1):
        for i in range(64): a("v_mov_b32 v%d, 0", ACC + i)
    a("v_and_b32 v%d, 11, v%d", vT1, vM)
    a("v_cmp_eq_u32 vcc, 8, v%d", vT1)
    a("v_mov_b32 v%d, 0x3f803f80", vT1)
    a("v_and_b32 v%d, 31, v0", vM)
    a("v_cndmask_b32 v%d, 0, v%d, vcc", vOne, vT1)
    a("v_bfe_u32 v%d, v0, 5, 1", vH)
    for i in range(O, 243): a("v_mov_b32 v%d, 0", i)
    a("v_mov_b32 v%d, 0xdddddddd", vIdx)
    a("v_and_b32 v%d, 4, v%d", vT1, vM)
    a("v_lshlrev_b32 v%d, 8, v%d", vT1, vT1)
    a("v_and_b32 v%d, 24, v%d", vT2, vM)
    a("v_lshl_add_u32 v%d, v%d, 3, v%d", vT1, vT2, vT1)
    a("v_and_b32 v%d, 3, v%d", vT2, vM)
    a("v_lshl_add_u32 v%d, v%d, 4, v%d", vT1, vT2, vT1)
    a("s_lshl_b32 s%d, s%d, 9", sT, sQH)
    a("v_lshl_add_u32 v%d, v%d, 8, s%d", vT2, vH, sT)
    a("v_add_u32 v%d, v%d, v%d", vK, vT1, vT2)
    a("s_lshl_b32 s%d, s%d, 14", sC, sT3)
    a("v_add_u32 v%d, s%d, v%d", vRk, sC, vK)
    a("s_lshl_b32 s%d, s%d, 8", sT, sQH)
    a("s_add_u32 s%d, s%d, s%d", sT, sT, sC)
    a("v_add_u32 v%d, s%d, v%d", vRr, sT, vT1)
    a("s_lshl_b32 s%d, s%d, 7", sT, sQH)
    a("s_add_u32 s%d, s%d, %d", sT, sT, 4096 + 256)
    a("v_lshrrev_b32 v%d, 1, v%d", vT1, vT1)
    a("v_cmp_eq_u32 vcc, 0, v%d", vH)
    a("v_add_u32 v%d, s%d, v%d", vT1, sT, vT1)
    a("v_add_u32 v%d, 2048, v%d", vT3, vL16)
    a("v_mov_b32 v%d, v%d", vKr, vT1)
    a("v_cndmask_b32 v%d, v%d, v%d, vcc", vOr, vS1, vT3)
    a("v_lshlrev_b32 v%d, 3, v%d", vT2, vLane)
    a("v_lshl_or_b32 v%d, v%d, 29, v%d", vFl, vT4, vT2)
    a("v_min_u32 v%d, 21, v%d", vT1, vM)
    a("v_lshlrev_b32 v%d, 4, v%d", vT1, vT1)
    a("v_lshl_add_u32 v%d, v%d, 8, v%d", vT1, vH, vT1)
    a("s_lshl_b32 s%d, s%d, 10", sT, sQH)
    a("s_add_u32 s%d, s%d, 6144", sT, sT)
    a("s_lshl_b32 s%d, s%d, 7", sT2, sQH)
    a("s_add_u32 s%d, s%d, %d", sT2, sT2, 6144 + 2048 - 256)
    a("v_cmp_gt_u32 vcc, 16, v%d", vM)
    a("v_add_u32 v%d, s%d, v%d", vT2, sT, vT1)
    a("v_add_u32 v%d, s%d, v%d", vT3, sT2, vT1)
    a("v_cndmask_b32 v%d, v%d, v%d, vcc", vT1, vT3, vT2)
    a("v_cmp_gt_u32 vcc, 21, v%d", vM)
    a("v_add_u32 v%d, s%d, v%d", vRv, sC, vT1)
    a("s_lshl_b32 s%d, s%d, 2", sT, sTB)
    a("v_cndmask_b32 v%d, v%d, v%d, vcc", vV, vS1, vT1)
    a("s_add_u32 s%d, s%d, s%d", sT, sT, sT3)
    a("s_lshl_b32 s%d, s%d, 5", sC, sB)
    a("s_add_u32 s%d, s%d, s%d", sT2, sT, sC)
    a("s_lshl_b32 s%d, s%d, 1", sT2, sT2)
    a("s_add_u32 s%d, s%d, s%d", sT2, sT2, sQH)
    a("s_lshl_b32 s%d, s%d, 4", sO, sT2)
    a("s_add_u32 s%d, s%d, s%d", sO, sO, sHP)
    a("s_mul_i32 s%d, s%d, %d", sT2, sT2, FS)
    a("s_lshl_b32 s%d, s%d, 3", sF2, sHP)
    a("s_add_u32 s%d, s%d, s%d", sT2, sT2, sF2)
    a("s_add_u32 s%d, s%d, %d", sF2, sT2, F2_OFF)
    a("s_mul_i32 s%d, s%d, %d", sO, sO, OB)
    a("s_add_u32 s%d, s%d, %d", sO, sO, O_OFF)
    a("s_lshl_b32 s%d, s%d, 4", sC, sB)
    a("s_add_u32 s%d, s%d, s%d", sC, sC, sHP)
    a("s_mul_i32 s%d, s%d, %d", sKV, sC, KV_PAIR)
    a("s_mul_i32 s%d, s%d, %d", sPub, sT, BLK)
    a("s_add_u32 s%d, s%d, s%d", sPub, sPub, sKV)
    a("s_mul_i32 s%d, s%d, %d", sT2, sT3, BLK)
    a("s_add_u32 s%d, s%d, s%d", sKV, sKV, sT2)
    a("s_lshl_b32 s%d, s%d, 2", sC, sC)
    a("s_add_u32 s%d, s%d, s%d", sC, sC, sT3)
    a("s_mul_i32 s%d, s%d, %d", sC, sC, FS)
    a("s_add_u32 s%d, s%d, %d", sF1, sC, F1_OFF)
    a("s_and_b32 s%d, s%d, 4", sT, sTB)
    a("s_lshl_b32 s%d, s%d, 1", sT, sT)
    a("s_lshl_b32 s%d, 0xff, s%d", sMsk, sT)
    a("s_mul_i32 s%d, s%d, 12288", sT, sT3)
    a("s_add_u32 s%d, s%d, %d", sT, sT, CMB)
    a("v_add_u32 v%d, s%d, v%d", vAr, sT, vL16)
    a("s_lshl_b32 s%d, s%d, 5", sT, sW)
    a("v_mov_b32 v%d, s%d", vFo, sT)
    a("s_cmp_ge_u32 s%d, 5", sW)
    a("s_cselect_b64 vcc, -1, 0")
    a("s_cselect_b32 s%d, 1, 0", sT2)
    a("s_lshl_b32 s%d, s%d, s%d", sT, sW, sT2)
    a("s_mul_i32 s%d, s%d, 10", sC, sT2)
    a("s_sub_u32 s%d, s%d, s%d", sT, sT, sC)
    a("s_add_u32 s%d, s%d, s%d", sT2, sT2, sT)
    a("s_min_u32 s%d, s%d, 4", sT2, sT2)
    for dst, sp in ((vG, sT), (vGb, sT2)):
        a("s_lshl_b32 s%d, s%d, 6", sC, sp)
        a("v_add_u32 v%d, s%d, v%d", vT1, sC, vLane)
        a("v_mul_u32_u24 v%d, 6554, v%d", vT2, vT1)
        a("v_lshrrev_b32 v%d, 16, v%d", vT2, vT2)
        a("v_mul_u32_u24 v%d, 10, v%d", vT3, vT2)
        a("v_sub_u32 v%d, v%d, v%d", dst, vT1, vT3)
        a("v_and_b32 v%d, 4, v%d", vT1, vT2)
        a("v_lshlrev_b32 v%d, 1, v%d", vT1, vT1)
        a("v_and_b32 v%d, 8, v%d", vT3, vT2)
        a("v_lshrrev_b32 v%d, 1, v%d", vT3, vT3)
        a("v_and_b32 v%d, 0x13, v%d", vT2, vT2)
        a("v_or3_b32 v%d, v%d, v%d, v%d", vT1, vT1, vT2, vT3)
        a("v_lshrrev_b32 v%d, 4, v%d", vT2, vT1)
        a("v_mul_u32_u24 v%d, 24, v%d", vT2, vT2)
        a("v_and_b32 v%d, 28, v%d", vT3, vT1)
        a("v_mad_u32_u24 v%d, v%d, 9, 16", vT3, vT3)
        a("v_cndmask_b32 v%d, v%d, v%d, vcc", vT2, vT2, vT3)
        a("v_add_u32 v%d, v%d, v%d", vT1, vT1, vT2)
        a("v_mul_u32_u24 v%d, 1280, v%d", vT1, vT1)
        a("v_lshl_add_u32 v%d, v%d, 4, v%d", dst, dst, vT1)

    SPLIT = env("SPLIT", 10000) if env("PEEL", 1) else 10000
    part2 = a.l[mark + SPLIT:]
    del a.l[mark + SPLIT:]
    a("s_waitcnt lgkmcnt(0)")
    a("s_barrier")
    a("s_or_b32 s%d, s2, s%d", sDX, sW)
    a("s_cbranch_scc1 L_nononce")
    a("s_or_b32 s%d, s%d, 0x80000000", sNon + 1, sNon + 1)
    a("v_mov_b32 v%d, s%d", vNon, sNon)
    a("v_mov_b32 v%d, s%d", vNon + 1, sNon + 1)
    a("v_mov_b32 v%d, 0", 255)
    a("global_store_dwordx2 v%d, %s, s[%d:%d] sc0 sc1", 255, vr(vNon, 2), sDbg, sDbg + 1)
    a.label("L_nononce")
    d1 = dma_ops("8192", "16384")
    for _ in range(env("D1PRE", 4)): d1.pop(0)()
    PEEL = env("PEEL", 1)
    D1PRE = env("D1PRE", 4)
    if not PEEL:
        for op in d1: op()
    CODEPF = env("CODEPF", 2) & 1
    if CODEPF:
        a.label("L_pfbase")
        a("s_getpc_b64 s[%d:%d]", sC2, sC2 + 1)
        a("v_min_u32 v%d, 21, v%d", 255, vLane)
        a("v_lshlrev_b32 v%d, 7, v%d", 255, 255)
        a("s_mul_i32 s%d, s%d, 2816", sDX, sW)
        a("v_add_u32 v%d, s%d, v%d", 255, sDX, 255)
        a("v_min_u32 v%d, %s, v%d", 255, "L_code_end-L_pfbase-8", 255)
        a("global_load_dword v255, v%d, s[%d:%d]", 255, sC2, sC2 + 1)
    def read_ops(fb, ks):
        f = F + 32 * fb
        ops = []
        for t in range(4):
            ops.append(lambda t=t: a("ds_read_b128 %s, v%d offset:%d", vr(f + 4 * t, 4), vXa + ks, t * 2048))
            for q in range(2):
                ops.append(lambda t=t, q=q: a("ds_read_b64_tr_b16 %s, v%d offset:%d", vr(f + 16 + 4 * t + 2 * q, 2), vWa + t, ks * 8192 + q * 1024))
        return ops
    def reads(fb, ks):
        for op in read_ops(fb, ks): op()
    extra = []
    lblc = [0]
    if env("TH", -1) >= 0:
        a("s_and_b32 s%d, s2, 33", sTrig)
        a("s_cmp_eq_u32 s%d, 1", sTrig)
        a("s_cselect_b32 s%d, %d, 16", sTrig, env("TF", 3))
    RPM = env("RPM", 1)
    def mfs(fb, isB, rd, dm, misc, zero=False):
        f = F + 32 * fb
        ABL = env("ABL", 0)
        if ABL & 1: f = F; rd = []
        if ABL & 2: dm = []
        if ABL & 4: rd = rd[:9]
        n = 0
        for (xt, t) in sorted([(x, y) for x in range(4) for y in range(4)], key=lambda p: (max(p), p)):
            d = ACC + 16 * xt + 4 * t
            x, w = vr(f + 4 * t, 4), vr(f + 16 + 4 * xt, 4)
            c = "0" if zero else vr(d, 4)
            if ABL & 16 and not zero: pass
            elif isB and xt > 0: a("v_mfma_f32_16x16x32_bf16 %s, %s, %s, %s", vr(d, 4), x, w, c)
            else:              a("v_mfma_f32_16x16x32_bf16 %s, %s, %s, %s", vr(d, 4), w, x, c)
            n += 1
            DP = env("DP", 3)
            if DP and dm and n % DP == env("DO", 1) and not zero: dm.pop(0)()
            if rd:
                for _ in range(RPM):
                    if rd: rd.pop(0)()
            elif dm and n % 3 == 1: dm.pop(0)()
            elif misc:
                for _ in range(3):
                    if misc: misc.pop(0)()
        for op in rd + dm + misc: op()
    SH = env("SH", 5)
    def stage(kind, isB, ops):
        XE = env("XE", 3)
        if SH: ops = dma_ops("s%d" % sSx, "s%d" % sSw)[(0 if extra else XE):SH] if kind <= 0 else []
        if SH and extra: ops = [extra.pop(0) for _ in range(len(extra))] + ops
        if kind == 1:
            a("v_mov_b32 v%d, 0", vT1)
            a("global_load_dwordx2 %s, v%d, s[%d:%d] sc0 sc1", vr(vNon, 2), vT1, sDbg, sDbg + 1)
        misc = []
        if kind < 2:
            misc = [lambda: (a("s_cmp_eq_u32 s%d, 2", sSlot), a("s_cselect_b32 s%d, -2, 1", sDX)),
                    lambda: a("s_lshl_b32 s%d, s%d, 14", sDW, sDX),
                    lambda: a("s_lshl_b32 s%d, s%d, 13", sT, sDX)]
            misc += [lambda ks=ks: a("v_add_u32 v%d, s%d, v%d", vXa + ks, sT, vXa + ks) for ks in range(2)]
            misc += [lambda ft=ft: a("v_add_u32 v%d, s%d, v%d", vWa + ft, sDW, vWa + ft) for ft in range(4)]
        if kind == 2:
            misc = [lambda: a("v_readfirstlane_b32 s%d, v%d", sNon + 1, vNon + 1),
                    lambda: a("v_readfirstlane_b32 s%d, v%d", sNon, vNon),
                    lambda: a("s_add_u32 s%d, s%d, 3072", sT2, sPub),
                    lambda: a("s_mov_b32 s%d, 0x%x", sC, 0xff00ff00 if isB else f32bits(CSCALE)),
                    lambda: a("s_mov_b32 s%d, s%d", sC + 1, sC),
                    lambda: (a("s_cmp_eq_u32 s%d, 0", sNon + 1), a("s_cbranch_scc1 L_nonce%d", isB), a.label("L_nonce_ok%d" % isB))]
        a("s_waitcnt lgkmcnt(0)")
        mfs(0, isB, read_ops(1, 1), ops, misc)
        nops, rd, misc = [], [], []
        if kind < 2:
            if kind == 0 and not SH:
                a("s_lshl_b32 s%d, s%d, 13", sSx, sSlot)
                a("s_lshl_b32 s%d, s%d, 14", sSw, sSlot)
            TH = env("TH", -1)
            if TH >= 0 and kind <= 0:
                lblc[0] += 1
                a("s_cmp_lt_u32 s%d, s%d", sIt, sTrig)
                a("s_cbranch_scc1 L_th%d", lblc[0])
                a("s_waitcnt vmcnt(%d)", TH)
                a.label("L_th%d" % lblc[0])
            a("s_waitcnt vmcnt(%d) lgkmcnt(0)", 0 if kind == 1 else (SH if SH else 6))
            a("s_barrier")
            rd = read_ops(0, 0)
            misc = [lambda: a("s_add_u32 s%d, s%d, s%d", sSlot, sSlot, sDX)]
            if SH and kind <= 0:
                nops = dma_ops("s%d" % sSx, "s%d" % sSw)[SH:]
                nops.append(lambda: (a("s_lshl_b32 s%d, s%d, 13", sSx, sSlot), a("s_lshl_b32 s%d, s%d, 14", sSw, sSlot), a("s_add_u32 s%d, s%d, s%d", sSlot, sSlot, sDX)))
                if kind == 0 and XE:
                    bk = nops.pop(); nx = dma_ops("s%d" % sSx, "s%d" % sSw)[:XE]
                    nops += [lambda: (bk(), nx[0]())] + nx[1:]
                misc = [lambda: a("s_add_u32 s%d, s%d, 1", sIt, sIt)]
            elif kind == 0:
                nops = dma_ops("s%d" % sSx, "s%d" % sSw)[:3]
                misc += [lambda: a("s_add_u32 s%d, s%d, 1", sIt, sIt)]
            if kind == 1:
                I = lambda f, *x: (lambda: a(f, *x))
                misc += [I("s_and_b32 s%d, s2, -8", sT2), I("s_add_u32 s%d, s%d, s%d", sT2, sT2, sW), I("s_mul_i32 s%d, s%d, %d", sT2, sT2, 25 * 128),
                         I("v_min_u32 v255, 24, v%d", vLane), I("v_lshl_add_u32 v255, v255, 7, s%d", sT2),
                         I("s_lshl_b32 s%d, s%d, 1", sT2, sTB), I("s_add_u32 s%d, s%d, s%d", sT2, sT2, sQH), I("s_lshl_b32 s%d, s%d, 3", sT2, sT2),
                         I("s_add_u32 s%d, s%d, s%d", sTrig, sT2, sF1),
                         I("s_and_b32 s%d, s%d, 7", sT3, sHP), I("s_mul_i32 s%d, s%d, 160", sT3, sT3), I("s_sub_u32 s%d, %d, s%d", WO + 2, 640 * 1280, sT3),
                         lambda: (a("s_add_u32 s%d, s56, s%d", WO, sT3), a("s_addc_u32 s%d, s57, 0", WO + 1)),
                         I("s_mov_b32 s%d, %d", OUT + 2, 2048 * 2560), I("s_mov_b64 s[%d:%d], s[58:59]", OUT, OUT + 1)]
        else:
            a("s_waitcnt lgkmcnt(0)")
            a("s_barrier")
            return
        mfs(1, isB, rd, nops, misc)
    if env("IDLE0", 0): a("s_sleep %d", env("IDLE0", 0))
    st(0)
    a("s_waitcnt vmcnt(%d)", (D1PRE if PEEL else 6) + (1 if CODEPF else 0))
    st(1)
    a("s_barrier")
    reads(0, 0)
    if not PEEL:
        a("s_mov_b32 s%d, %d", sSx, 2 * 8192)
        a("s_mov_b32 s%d, %d", sSw, 2 * 16384)
        d2 = dma_ops("s%d" % sSx, "s%d" % sSw)
        for i in range(3): d2.pop(0)()
    if PEEL:
        a("s_cmp_eq_u32 s%d, 0", sQH)
        a("s_cbranch_scc0 L_st0B")
        for isB in (False, True):
            if isB: a.label("L_st0B")
            a("s_waitcnt lgkmcnt(0)")
            D2A, D2B = env("D2A", 0), env("D2B", 0)
            dd = dma_ops("16384", "32768")
            mfs(0, isB, read_ops(1, 1), dma_ops("8192", "16384")[D1PRE:] + dd[:D2A], [], True)
            a("s_waitcnt lgkmcnt(0)")
            misc = [lambda ks=ks: a("v_add_u32 v%d, 8192, v%d", vXa + ks, vXa + ks) for ks in range(2)]
            misc += [lambda ft=ft: a("v_add_u32 v%d, 16384, v%d", vWa + ft, vWa + ft) for ft in range(4)]
            mfs(1, isB, [], dd[D2A:D2A + D2B], misc)
            if not isB: a("s_branch L_st0done")
        a.label("L_st0done")
        d2 = dma_ops("16384", "32768")[D2A + D2B:]
        a.l += part2
        ND2 = env("ND2", 4) if SH else 6
        for op in d2[:ND2 - D2A - D2B]: op()
        a("s_mov_b32 s%d, 1", sSlot)
        a("s_mov_b32 s%d, 1", sIt)
        a("s_mov_b32 s%d, 0", sSx)
        a("s_mov_b32 s%d, 0", sSw)
        st.g(3)
        a("s_waitcnt vmcnt(%d)", ND2)
        a("s_barrier")
        st.g(4)
        reads(0, 0)
    a("s_cmp_eq_u32 s%d, 0", sQH)
    a("s_cbranch_scc0 L_gemmB0")
    CV = F
    for isB in (False, True):
        L = "L_gemmB" if isB else "L_gemmA"
        a.label(L + "0")
        if SH: extra += dma_ops("16384", "32768")[ND2:]
        if PEEL: stage(0, isB, dma_ops("0", "0"))
        a.label(L)
        if DIAG and env("GD", 0):
            for k in range(5):
                st.g(5 + k)
                stage(0, isB, dma_ops("s%d" % sSx, "s%d" % sSw)[3:])
        else:
            stage(0, isB, dma_ops("s%d" % sSx, "s%d" % sSw)[3:])
            a("s_cmp_lt_u32 s%d, 7", sIt)
            a("s_cbranch_scc1 %s", L)
        st.g(10)
        stage(-1, isB, dma_ops("s%d" % sSx, "s%d" % sSw)[3:])
        st.g(11)
        stage(1, isB, [])
        st.g(12)
        stage(2, isB, [])
        st(2, False)
        def cvt(dst, src):
            return ["v_cvt_pk_bf16_f32 v%d, v%d, v%d" % (dst, src, src + 1), "v_cvt_pk_bf16_f32 v%d, v%d, v%d" % (dst + 1, src + 2, src + 3)]
        units, late, pre = [], [], []
        if not isB:
            for t in range(4):
                o = CV + 4 * t
                units.append(([(2, t), (3, t)], cvt(o, ACC + 32 + 4 * t) + cvt(o + 2, ACC + 48 + 4 * t) +
                              ["ds_write_b128 v%d, %s offset:%d" % (vL0, vr(o, 4), t * 1024)]))
                stx = "buffer_store_dwordx4 %s, v%d, %s, s%d offen offset:%d sc1" % (vr(o, 4), vL16, srd, sPub, t * 1024)
                if env("AEARLY", 1): units[-1][1].append(stx)
                else: pre.append(stx)
            for t in range(4):
                o = CV + 16 + 4 * t
                ins = ["v_pk_mul_f32 %s, %s, s[%d:%d]" % (vr(ACC + 16 * xt + 4 * t + 2 * h, 2), vr(ACC + 16 * xt + 4 * t + 2 * h, 2), sC, sC + 1) for xt in range(2) for h in range(2)]
                if env("NOPK", 0) & 1: ins = ["v_mul_f32 v%d, s%d, v%d" % (ACC + 16 * xt + 4 * t + h, sC, ACC + 16 * xt + 4 * t + h) for xt in range(2) for h in range(4)]
                units.append(([(0, t), (1, t)], ins + cvt(o, ACC + 4 * t) + cvt(o + 2, ACC + 16 + 4 * t) +
                              ["ds_write_b128 v%d, %s offset:%d" % (vL0, vr(o, 4), 12288 + t * 1024)]))
        else:
            n = 0
            NPRE = env("NPRE", 2)
            for xt in (1, 2, 3):
                for kt in range(2):
                    o = CV + 4 * n; n += 1
                    ins = cvt(o, ACC + 16 * xt + 8 * kt) + cvt(o + 2, ACC + 16 * xt + 8 * kt + 4)
                    if xt == 3: ins += ["v_cndmask_b32 v%d, v%d, v%d, s[%d:%d]" % (o + i, o + i, vOne, sC, sC + 1) for i in range(4)]
                    ins.append("ds_write_b128 v%d, %s offset:%d" % (vL1, vr(o, 4), kt * 3072 + (xt - 1) * 1024))
                    stx = "buffer_store_dwordx4 %s, v%d, %s, s%d offen offset:%d sc1" % (vr(o, 4), vG1, srd, sT2 if kt else sPub, (xt - 1) * 1024)
                    if n <= env("NIN", 0): ins.append(stx)
                    elif n <= NPRE: pre.append(stx)
                    else: late.append(stx)
                    units.append(([(xt, 2 * kt), (xt, 2 * kt + 1)], ins))
            for q in range(2):
                o = CV + 4 * n; n += 1
                ins = ["v_pk_mul_f32 %s, %s, %s op_sel_hi:[1,0]" % (vr(ACC + 4 * t + 2 * h, 2), vr(ACC + 4 * t + 2 * h, 2), vr(vSc, 2)) for t in (q, q + 2) for h in range(2)]
                if env("NOPK", 0) & 1: ins = ["v_mul_f32 v%d, v%d, v%d" % (ACC + 4 * t + h, vSc, ACC + 4 * t + h) for t in (q, q + 2) for h in range(4)]
                ins += cvt(o, ACC + 4 * q) + cvt(o + 2, ACC + 4 * (q + 2)) + ["ds_write_b128 v%d, %s offset:%d" % (vL0, vr(o, 4), 4096 + q * 1024)]
                for kt in range(2): late.append("buffer_store_dwordx2 %s, v%d, %s, s%d offen offset:%d sc1" % (vr(o + 2 * kt, 2), vG0, srd, sPub, (2 * kt + q) * 512))
                units.append(([(0, q), (0, q + 2)], ins))
        f = F + 32
        cnt, done_at, nxt = 0, [], 0
        def emit(x):
            nonlocal cnt
            a(x); cnt += 1
        LAG = env("LAG", 3)
        for u in range(len(units) + LAG):
            if u < len(units):
                for (xt, t) in units[u][0]:
                    d = ACC + 16 * xt + 4 * t
                    x, w = vr(f + 4 * t, 4), vr(f + 16 + 4 * xt, 4)
                    emit("v_mfma_f32_16x16x32_bf16 %s, %s, %s, %s" % ((vr(d, 4), x, w, vr(d, 4)) if isB and xt > 0 else (vr(d, 4), w, x, vr(d, 4))))
                done_at.append(cnt)
                if u == 0: emit("ds_write_b128 v%d, %s offset:%d" % (vFo, vr(O, 4), LFLAG))
            if u >= LAG:
                gap = cnt - done_at[u - LAG]
                if gap < 8:
                    a("s_nop %d", 7 - gap); cnt += 8 - gap
                for x in units[u - LAG][1]: emit(x)
        for x in pre: a(x)
        a("s_setprio %d", 3 if isB else 2)
        a("s_waitcnt lgkmcnt(0)")
        st(3)
        a("s_barrier")
        for x in late: a(x)
        if not isB: a("s_branch L_epi_done")
    a.label("L_epi_done")
    if env("IDLE", 0): a("s_sleep %d", env("IDLE", 0))
    def rdK(b): a("ds_read_b128 %s, v%d offset:%d", vr(Km + 4 * b, 4), vRk, IMG + b * 2048)
    def rdV(b):
        for g in range(2): a("ds_read_b128 %s, v%d offset:%d", vr(V + 8 * b + 4 * g, 4), vRv, IMG + b * 3072 + g * 512)
    def rdQ(p):
        r = vRk
        if p != 3:
            r = vT1; a("v_xor_b32 v%d, %d, v%d", r, (p ^ 3) << 14, vRk)
        for j in range(2): a("ds_read_b128 %s, v%d offset:%d", vr(Qm + 8 * p + 4 * j, 4), r, IMG + 12288 + j * 2048)
    rdK(0)
    a("ds_read_b128 %s, v%d offset:%d", vr(Kr, 4), vRr, IMG + 4096 + 512)
    rdQ(0)
    a("v_lshrrev_b32 v%d, 2, v%d", vT2, vLane)
    a("v_and_b32 v%d, 8, v%d", vT2, vT2)
    a("v_add_u32 v%d, v%d, v%d", vRr, vRr, vT2)
    for p in range(3): a("v_xor_b32 v%d, %d, v%d", vT2 + p, (p ^ 3) << 14, vRr)
    for p in range(4): a("ds_read_b64 %s, v%d offset:%d", vr(Qr + 2 * p, 2), vT2 + p if p < 3 else vRr, IMG + 4096)
    rdQ(1); rdV(0)

    def kvop(what, b, sreg, extra=0):
        if env("NOKV", 0) == 1: return
        if what == "k":   a("buffer_load_dwordx4 %s, v%d, %s, s%d offen offset:%d sc1", vr(Km + 4 * b, 4), vK, srd, sreg, 2048 * b)
        elif what == "r": a("buffer_load_dwordx2 %s, v%d, %s, s%d offen offset:%d sc1", vr(Kr + 2 * b, 2), vKr, srd, sreg, 1024 * b)
        else:             a("buffer_load_dwordx4 %s, v%d, %s, s%d offen offset:%d sc1", vr(V + 8 * b + 4 * extra, 4), vV, srd, sreg, 3072 * b + 512 * extra)
    def qk1(j, kb, c="0"): a("v_mfma_f32_32x32x4_2b_bf16 %s, %s, %s, %s", vr(S + 16 * (j % 4), 32), vr(Kr + 2 * kb, 2), vr(Qr + j, 2), c)
    def qk2(j, kb): a("v_mfma_f32_32x32x16_bf16 %s, %s, %s, %s", vr(S + 16 * (j % 4), 16), vr(Km + 4 * kb, 4), vr(Qm + 4 * j, 4), vr(S + 16 * (j % 4), 16))
    def pv(j, vb, half): a("v_smfmac_f32_32x32x32_bf16 %s, %s, %s, v%d", vr(O + 12 * j, 16), vr(V + 8 * vb + 4 * half, 4), vr(S + 16 * (j % 4) + 8 * half, 8), vIdx)
    def ex(r): a("v_exp_f32 v%d, v%d", r, r)
    def flagop(sreg):
        if env("FSW", 1):
            a("s_mov_b64 exec, 1")
            a("buffer_atomic_swap_x2 %s, off, %s, s%d sc1", vr(vNon, 2), srd, sreg)
            a("s_mov_b64 exec, -1")
        else: a("buffer_store_dwordx2 %s, off, %s, s%d sc0 sc1", vr(vNon, 2), srd, sreg)
    def signal1():
        a("s_waitcnt vmcnt(0)")
        flagop(sTrig)
        a("global_load_dword v255, v255, s[56:57]")
    def pollop(sline):
        a("v_mov_b32 v4, 0")
        a("v_mov_b32 v5, 0")
        a("buffer_atomic_or_x2 v[4:5], v%d, %s, s%d offen sc0 sc1", vFl, srd, sline)
    def poll(lbl, sline, mask, tmo, slp):
        a("s_mov_b32 s%d, 0", sTmo)
        a.label(lbl)
        pollop(sline)
        a("s_add_u32 s%d, s%d, 1", sTmo, sTmo)
        a("s_waitcnt vmcnt(0)")
        a("v_cmp_eq_u64 vcc, s[%d:%d], v[4:5]", sNon, sNon + 1)
        a("s_cmp_gt_u32 s%d, 0x%x", sTmo, tmo)
        a("s_cbranch_scc1 %s_ok", lbl)
        a("s_andn2_b32 s%d, %s, vcc_lo", sT, mask)
        a("s_cbranch_scc0 %s_ok", lbl)
        a("s_sleep %d", slp)
        a("s_branch %s", lbl)
        a.label(lbl + "_ok")

    a("s_waitcnt lgkmcnt(7)")
    qk1(0, 0)
    rdQ(2); rdQ(3); rdK(1); rdV(1)
    a("v_mov_b32 v%d, 1", vT2)
    a("ds_write_b32 v%d, v%d offset:12", vFo, vT2)
    for i in range(243, 252): a("v_mov_b32 v%d, 0", i)
    qk2(0, 0); qk2(1, 0)
    a("s_nop 8")
    st(4, False)
    a("s_cmp_eq_u32 s%d, 0", sQH)
    a("s_cbranch_scc1 L_nosig")
    signal1()
    st(5, False)
    a.label("L_nosig")

    def wo_setup():
        R = 1280
        a("s_mov_b32 s%d, 0", sGo)
        a("s_lshl_b32 s%d, s%d, 10", sLo, sW)
        a("s_add_u32 s%d, s%d, %d", sLo, sLo, WOB)
        a("s_mov_b32 s%d, %d", sGs, 56 * R)
        a("s_mov_b32 s%d, 5120", sLs)
        a("s_mov_b32 s%d, %d", sGd, 24 * R)
        a("s_mov_b32 s%d, %d", sLd, 8 * 5120)
        a("s_mov_b32 s%d, 0", sGx)
        a("s_cmp_lt_u32 s%d, 5", sW)
        a("s_cbranch_scc1 L_wos")
        a("s_lshl_b32 s%d, s%d, 11", sLo, sW)
        a("s_add_u32 s%d, s%d, %d", sLo, sLo, WOB + 16 * 5120 - 5 * 2048)
        a("s_mov_b32 s%d, %d", sGs, 4 * R)
        a("s_mov_b32 s%d, %d", sGx, (4 * R) ^ (316 * R))
        a("s_mov_b32 s%d, 0", sGd)
        a("s_cmp_eq_u32 s%d, 7", sW)
        a("s_cselect_b32 s%d, 0, 1024", sLd)
        a.label("L_wos")
    def all8(lbl, val, n=8):
        a("v_and_b32 v%d, %d, v%d", vT3, n - 1, vLane)
        a("v_lshlrev_b32 v%d, 5, v%d", vT3, vT3)
        a("s_mov_b32 s%d, 0", sTmo)
        a.label(lbl)
        a("ds_read_b32 v%d, v%d offset:12", vT2, vT3)
        a("s_add_u32 s%d, s%d, 1", sTmo, sTmo)
        a("s_waitcnt lgkmcnt(0)")
        a("v_cmp_le_u32 vcc, %d, v%d", val, vT2)
        a("s_cmp_gt_u32 s%d, 0x20000", sTmo)
        a("s_cbranch_scc1 %s_ok", lbl)
        a("s_cmp_eq_u64 vcc, -1")
        a("s_cbranch_scc1 %s_ok", lbl)
        a("s_sleep %d", env("SL8", 2))
        a("s_branch %s", lbl)
        a.label(lbl + "_ok")

    def next_chunk():
        return [lambda: a("s_add_u32 s%d, s%d, 1", sCh, sCh),
                lambda: a("s_xor_b32 s%d, s%d, s%d", sNxt, sCh, sTB),
                lambda: a("s_and_b32 s%d, s%d, 7", sNxt, sNxt),
                lambda: a("s_mul_i32 s%d, s%d, %d", sNxt, sNxt, 4 * BLK),
                lambda: a("s_add_u32 s%d, s%d, s%d", sNxt, sNxt, sKV)]
    N = sNxt
    sched = {
        (0, 1): [("V1a", lambda: kvop("v", 1, N, 0)), ("V1b", lambda: kvop("v", 1, N, 1))],
        (0, 3): [("Wa", lambda: a("buffer_load_dwordx4 v%d, %s, s%d offen lds", vG, sr(WO, 4), sGo)), ("Wb", lambda: a("buffer_load_dwordx4 v%d, %s, s%d offen lds", vGb, sr(WO, 4), sGo))],
        (0, 6): [("K0", lambda: kvop("k", 0, N)), ("R0", lambda: kvop("r", 0, N))],
        (1, 1): [("V0a", lambda: kvop("v", 0, N, 0)), ("V0b", lambda: kvop("v", 0, N, 1))],
        (1, 6): [("K1", lambda: kvop("k", 1, N)), ("R1", lambda: kvop("r", 1, N))],
    }
    order = [(k, n) for k in sorted(sched) for (n, _) in sched[k]]
    def younger(name, pos):
        names = [n for _, n in order]
        i = names.index(name); cnt = 0
        while True:
            i = (i + 1) % len(order)
            if order[i][0] == pos or (order[i][0] > pos and (order[i - 1][0] < pos or i == 0)): return cnt
            cnt += 1
    PA, PB, POLLP = env("PA", 3), env("PB", 5), (1, env("PJ", 4))
    def spin(lbl, word):
        def f():
            a.label(lbl + "_w")
            a("s_add_u32 s%d, s%d, 1", sTmo, sTmo)
            a("s_cmp_gt_u32 s%d, 0x20000", sTmo)
            a("s_cbranch_scc1 %s_ok", lbl)
            a("s_sleep 1")
            a("ds_read_b32 v%d, v%d offset:%d", vT1, vFo, 4 * word)
            a("s_waitcnt lgkmcnt(0)")
            a("v_readfirstlane_b32 s%d, v%d", sT, vT1)
            a("s_cmp_eq_u32 s%d, 0", sT)
            a("s_cbranch_scc1 %s_w", lbl)
            a("s_branch %s", lbl)
        stubs.append(f)
    stubs = []
    def xreads(word, area, n, dst):
        return [lambda: a("ds_read_b32 v%d, v%d offset:%d", vT1, vFo, 4 * word)] + \
               [lambda q=q: a("ds_read_b128 %s, v%d offset:%d", vr(dst + 4 * q, 4), area, q * 1024) for q in range(n)]
    def xcheck(lbl, word, area, n, dst):
        a("s_waitcnt lgkmcnt(%d)", n)
        a("v_readfirstlane_b32 s%d, v%d", sT, vT1)
        a("s_cmp_eq_u32 s%d, 0", sT)
        a("s_cbranch_scc1 %s_w", lbl)
        a.label(lbl + "_ok")
        spin(lbl, word)
        def g():
            a.label(lbl)
            for f in xreads(word, area, n, dst)[1:]: f()
            a("s_branch %s_ok", lbl)
        stubs.append(g)
    def padd(d, x): a("v_pk_add_f32 %s, %s, %s", vr(d, 2), vr(d, 2), vr(x, 2))
    def iteration(first, last=False):
        for tt in range(2):
            for j in range(8):
                pj, pvb = ((7, 1 - tt) if j == 0 else (j - 1, tt))
                nj, nkb = (j + 2) % 8, (tt if j < 6 else 1 - tt)
                slots = [[], [], [], []]
                lds = [f for _, f in sched.get((tt, j), [])]
                wv = younger("V%db" % tt, (tt, 1)) if j == 0 else None
                wk = younger("R%d" % (1 - tt), (tt, 6)) if j == 6 else None
                if first:
                    if 8 * tt + j == PA:
                        a("s_cmp_eq_u32 s%d, 0", sQH)
                        a("s_cbranch_scc0 L_nosig2")
                        signal1()
                        st(5, False)
                        a.label("L_nosig2")
                    if 8 * tt + j == PB:
                        a("s_cmp_eq_u32 s%d, 0", sQH)
                        a("s_cbranch_scc1 L_nosig3")
                        a("s_setprio 1")
                        a.label("L_nosig3")
                    if (tt, j) == POLLP:
                        wo_setup()
                        all8("L_img", 1)
                        st(6, False)
                        poll("L_poll1", sF1, "s%d" % sMsk, 0x4000, 2)
                        st(7, False)
                        a("s_andn2_b32 s%d, 0xffff, vcc_lo", sMsk)
                        a("s_mov_b32 s%d, 0", sCh)
                        for f in next_chunk(): f()
                        for k in sorted(sched):
                            if k == (0, 3):
                                a("s_mov_b32 m0, s%d", sLo); a("s_nop 0"); sched[k][0][1]()
                                a("s_add_u32 m0, s%d, s%d", sLo, sLd); a("s_add_u32 s%d, s%d, s%d", sGo, sGo, sGd); sched[k][1][1]()
                                a("s_add_u32 s%d, s%d, s%d", sGo, sGo, sGs); a("s_add_u32 s%d, s%d, s%d", sLo, sLo, sLs); a("s_xor_b32 s%d, s%d, s%d", sGs, sGs, sGx)
                            elif (0, 1) < k < POLLP:
                                for _, f in sched[k]: f()
                    if (tt, j) < POLLP: lds = []
                    wv = None
                    if (tt, j) != (1, 6): wk = None
                else:
                    if (tt, j) == (0, 2): slots[1].append(lambda: a("s_mov_b32 m0, s%d", sLo))
                    if (tt, j) == (0, 3):
                        slots[0].append(lds[0]); slots[2].append(lds[1])
                        lds = []
                        slots[1] += [lambda: a("s_add_u32 m0, s%d, s%d", sLo, sLd), lambda: a("s_add_u32 s%d, s%d, s%d", sGo, sGo, sGd)]
                    if (tt, j) == (0, 4):
                        nc = next_chunk()
                        slots[0] += nc[0:2]; slots[1] += nc[2:4]
                    if (tt, j) == (0, 5):
                        slots[0] += [lambda: a("s_add_u32 s%d, s%d, s%d", sGo, sGo, sGs), lambda: a("s_add_u32 s%d, s%d, s%d", sLo, sLo, sLs)]
                        slots[1].append(lambda: a("s_xor_b32 s%d, s%d, s%d", sGs, sGs, sGx))
                        slots[2] += nc[4:5]
                    if (tt, j) == (1, 7): slots[0].append(lambda: a("s_cmp_lt_u32 s%d, 7", sCh))
                if last:
                    I = lambda f, *x: (lambda: a(f, *x))
                    if (tt, j) >= (0, 4):
                        slots = [[], [], [], []]; lds = []
                    if (tt, j) == (1, 0): wv = 0
                    if (tt, j) == (1, 6): wk = None
                    if (tt, j) == (0, 4):
                        slots[0] += [I("s_and_b32 s%d, s%d, 3", sT3, sW), I("s_xor_b32 s%d, s%d, 2", sT, sT3)]
                        slots[1] += [I("s_xor_b32 s%d, s%d, 3", sT2, sT3), I("s_mul_i32 s%d, s%d, 12288", sT, sT)]
                        slots[2] += [I("s_mul_i32 s%d, s%d, 12288", sT2, sT2)]
                    if (tt, j) == (0, 5):
                        slots[0] += [I("s_add_u32 s%d, s%d, %d", sCur, sT, CMB), I("s_add_u32 s%d, s%d, %d", sNxt, sT2, CMB)]
                        slots[1] += [I("s_mov_b32 s%d, 0x%x", sT3, f32bits(2.0 ** -30)), I("s_mov_b32 s%d, 0x%x", sT2, f32bits(2.0 ** 60))]
                    if (tt, j) == (0, 7):
                        a("v_and_b32 v%d, 3, v%d", vT3, vLane)
                        a("v_lshlrev_b32 v%d, 5, v%d", vT3, vT3)
                        slots[0] += [I("ds_read_b32 v%d, v%d offset:12", vT2, vT3), I("s_lshl_b32 s%d, s%d, 1", sT, sQH)]
                    if (tt, j) == (1, 1):
                        a("s_waitcnt lgkmcnt(0)")
                        a("v_cmp_le_u32 vcc, s%d, v%d", sT, vT2)
                        a("s_cmp_eq_u64 vcc, -1")
                        a("s_cbranch_scc0 L_afree0")
                        a.label("L_afree_back")
                        def afs():
                            a.label("L_afree0")
                            all8("L_afree", 2, 4)
                            a("s_branch L_afree_back")
                        stubs.append(afs)
                        a("v_add_u32 v%d, s%d, v%d", vT3, sCur, vL16)
                        a("v_add_u32 v%d, s%d, v%d", vT4, sNxt, vL16)
                        a("v_mov_b32 v%d, 1", vT2)
                        a("v_xor_b32 v%d, 64, v%d", vT1, vFo)
                        a("s_mov_b32 s%d, 0", sTmo)
                    if tt == 1 and 2 <= j <= 5:
                        for i in range(3):
                            q = 3 * (j - 2) + i
                            slots[i].append(I("ds_write_b128 v%d, %s offset:%d", vAr, vr(O + 4 * q, 4), q * 1024))
                        if j == 5: slots[2].append(I("ds_write_b32 v%d, v%d", vT1, vT2))
                    if (tt, j) == (1, 6):
                        xr = xreads(0, vT3, 12, O)
                        slots[1] += xr[:7]; slots[2] += xr[7:]
                if wv is not None: slots[1].append(lambda wv=wv: a("s_waitcnt vmcnt(%d)", wv))
                if wk is not None:
                    slots[0].append(lambda wk=wk: a("s_waitcnt vmcnt(%d)", wk))
                    for i, f in enumerate(lds): slots[i].append(f)
                else:
                    for i, f in enumerate(lds): slots[i].append(f)
                regs = [S + 16 * (j % 4) + i for i in range(16)]
                def exn(n):
                    for _ in range(n): ex(regs.pop(0))
                if first and (tt, j) == (0, 0):
                    exn(6); a("s_waitcnt lgkmcnt(0)")
                else:
                    pv(pj, pvb, 0); [f() for f in slots[0]]; exn(3)
                    pv(pj, pvb, 1); [f() for f in slots[1]]; exn(3)
                if last and (tt, j) == (1, 7):
                    exn(2)
                    if DIAG and env("AD", 0): a("s_memtime s[74:75]")
                    if DIAG: a("s_waitcnt lgkmcnt(0)")
                    xcheck("L_cmb", 0, vT3, 12, O)
                    a("s_waitcnt lgkmcnt(6)")
                    for i in range(0, 24, 2): padd(O + 48 + i, O + i)
                    for k in range(6): a("ds_write_b128 v%d, %s offset:%d", vT3, vr(O + 48 + 4 * k, 4), k * 1024)
                    a("v_xor_b32 v%d, 32, v%d", vT1, vFo)
                    a("ds_write_b32 v%d, v%d offset:4", vT1, vT2)
                    exn(8)
                elif last and (tt, j) == (1, 6):
                    [f() for f in slots[2]]; exn(10)
                elif j % 2 == 0:
                    qk1(nj, nkb); [f() for f in slots[2]]; exn(10)
                else:
                    qk2(nj - 1, nkb); [f() for f in slots[2]]; exn(3)
                    qk2(nj, nkb); [f() for f in slots[3]]; exn(7)
    iteration(True)
    BLEAD = env("BLEAD", 3)
    a("s_mov_b32 s%d, 3", sTrig)
    if BLEAD:
        a("s_cmp_eq_u32 s%d, 0", sQH)
        a("s_cbranch_scc1 L_nolead")
        a("s_setprio 3")
        a.label("L_nolead")
    st(8, False)
    a.raw(".p2align 6")
    a.label("L_attn")
    if DIAG and env("AD", 0):
        a("s_memtime s[100:101]")
        a("s_waitcnt lgkmcnt(0)")
        for k in range(2, 7):
            a("s_cmp_eq_u32 s%d, %d", sCh, k)
            a("s_cselect_b32 s%d, s100, s%d", 64 + 2 * (8 + k), 64 + 2 * (8 + k))
    a("s_cmp_eq_u32 s%d, s%d", sCh, sTrig)
    a("s_cbranch_scc1 L_mid")
    a.label("L_attn_go")
    iteration(False)
    a("s_cbranch_scc1 L_attn")
    if DIAG and env("AD", 0): a("s_memtime s[94:95]")
    iteration(False, True)
    K0 = O + 72
    xr = xreads(1, vT4, 6, S)
    xr[0](); xr[1]()
    pv(7, 1, 0); pv(7, 1, 1)
    st(9, False)
    for f in xr[2:]: f()
    a("s_waitcnt lgkmcnt(14)")
    for i in range(0, 12, 2): padd(K0 + i, O + 24 + i)
    a("s_mov_b32 s%d, 0", sTmo)
    if DIAG: a("s_waitcnt lgkmcnt(0)")
    xcheck("L_cmb2", 1, vT4, 6, S)
    a("s_waitcnt lgkmcnt(3)")
    for i in range(0, 12, 2): padd(K0 + i, S + i)
    for i in range(12, 24, 2): padd(K0 + i, O + 24 + i)
    a("s_waitcnt lgkmcnt(0)")
    for i in range(12, 24, 2): padd(K0 + i, S + i)
    Z = S + 32
    def get_l():
        for j in range(2):
            a("v_mov_b32 v%d, v%d", Z + 4 + 2 * j, K0 + 12 * j + 8)
            a("v_mov_b32 v%d, v%d", Z + 5 + 2 * j, K0 + 12 * j + 8)
    get_l()
    a("s_mov_b32 s%d, 1", sCh)
    a("v_mov_b32 v%d, 2", vT2)
    for j in range(2): a("v_permlane32_swap_b32 v%d, v%d", Z + 5 + 2 * j, Z + 4 + 2 * j)
    a.label("L_fin")
    for j in range(2): a("v_rcp_f32 v%d, v%d", Z + 2 * j, Z + 4 + 2 * j)
    a("s_nop 0")
    for j in range(2):
        k = K0 + 12 * j
        for i in range(0, 12, 2): a("v_pk_mul_f32 %s, %s, %s op_sel_hi:[1,0]", vr(k + i, 2), vr(k + i, 2), vr(Z + 2 * j, 2))
        for i in range(4): a("v_cvt_pk_bf16_f32 v%d, v%d, v%d", S + 4 * j + i, k + 2 * i, k + 2 * i + 1)
        a("buffer_store_dwordx4 %s, v%d, %s, s%d offen offset:%d sc1", vr(S + 4 * j, 4), vL16, srd, sO, j * 1024)
        for i in range(2): a("v_cvt_pk_bf16_f32 v%d, v%d, v%d", S + 8 + 2 * j + i, k + 8 + 2 * i, k + 9 + 2 * i)
    a("buffer_store_dwordx4 %s, v%d, %s, s%d offen sc1", vr(S + 8, 4), vOr, srd, sO)
    st(16, False)
    if env("EARLY", 1): a("ds_write_b32 v%d, v%d offset:12", vFo, vT2)
    a("s_cmp_eq_u32 s%d, 0", sCh)
    a("s_cbranch_scc1 L_guard_ok")
    a("v_pk_mul_f32 %s, %s, 0", vr(Z, 2), vr(K0, 2))
    a("v_pk_mul_f32 %s, %s, 0", vr(Z + 2, 2), vr(K0 + 12, 2))
    for i in range(2, 12, 2):
        for j in range(2): a("v_pk_fma_f32 %s, %s, 0, %s", vr(Z + 2 * j, 2), vr(K0 + 12 * j + i, 2), vr(Z + 2 * j, 2))
    a("v_cmp_le_f32 s[%d:%d], s%d, v%d", sC, sC + 1, sT3, Z + 4)
    a("v_cmp_le_f32 s[%d:%d], s%d, v%d", sC2, sC2 + 1, sT3, Z + 6)
    a("v_pk_add_f32 %s, %s, %s", vr(Z, 2), vr(Z, 2), vr(Z + 2, 2))
    a("v_cmp_ge_f32 vcc, s%d, v%d", sT2, Z + 4)
    a("s_and_b64 s[%d:%d], s[%d:%d], s[%d:%d]", sC, sC + 1, sC, sC + 1, sC2, sC2 + 1)
    a("v_cmp_ge_f32 s[%d:%d], s%d, v%d", sC2, sC2 + 1, sT2, Z + 6)
    a("s_and_b64 s[%d:%d], s[%d:%d], vcc", sC, sC + 1, sC, sC + 1)
    a("v_cmp_o_f32 vcc, v%d, v%d", Z, Z + 1)
    a("s_and_b64 s[%d:%d], s[%d:%d], s[%d:%d]", sC, sC + 1, sC, sC + 1, sC2, sC2 + 1)
    a("s_and_b64 s[%d:%d], s[%d:%d], vcc", sC, sC + 1, sC, sC + 1)
    a("s_cmp_eq_u64 s[%d:%d], -1", sC, sC + 1)
    a("s_cbranch_scc0 L_slow")
    a.label("L_guard_ok")
    if not env("EARLY", 1): a("ds_write_b32 v%d, v%d offset:12", vFo, vT2)
    a("v_mov_b32 v%d, s%d", vNon, sNon)
    a("v_mov_b32 v%d, s%d", vNon + 1, sNon + 1)
    a("v_lshrrev_b32 v%d, 4, v%d", vT4, vLane)
    a("v_and_b32 v%d, 15, v%d", vT3, vLane)
    a("s_lshl_b32 s%d, s%d, 8", sT, sE)
    a("v_lshl_add_u32 v%d, v%d, 4, s%d", vT1, vT3, sT)
    a("v_lshrrev_b32 v%d, 5, v%d", vT2, vLane)
    a("v_mul_u32_u24 v%d, 2560, v%d", vT2, vT2)
    a("v_and_b32 v%d, 16, v%d", vOa, vLane)
    a("v_lshl_add_u32 v%d, v%d, 5, v%d", vOa, vOa, vT2)
    a("v_add_u32 v%d, v%d, v%d", vOa, vOa, vT1)
    a("v_mul_u32_u24 v%d, %d, v%d", vOb, 2 * OB, vT4)
    a("v_add_u32 v%d, v%d, v%d", vOb, vOb, vT1)
    a("v_add_u32 v%d, 2048, v%d", vOb, vOb)
    a("s_mul_i32 s%d, s%d, %d", sT, sQH, 8 * 5120)
    a("s_add_u32 s%d, s%d, %d", sT, sT, WOB)
    a("v_and_b32 v%d, 31, v%d", vT1, vLane)
    a("v_mul_u32_u24 v%d, 40, v%d", vT1, vT1)
    a("v_add3_u32 v%d, v%d, v%d, s%d", vWa2, vT1, vT2, sT)
    a("s_mul_i32 s%d, s%d, %d", sT, sQH, 7 * 5120)
    a("s_sub_u32 s%d, %d, s%d", sT, 16 * 5120, sT)
    a("v_add_u32 v%d, s%d, v%d", vWa3, sT, vWa2)
    COAL = env("COAL", 1)
    a("v_and_b32 v%d, 4, v%d", vT2, vT3)
    a("v_lshlrev_b32 v%d, %d, v%d", vT2, 1 if COAL else 2, vT2)
    a("v_and_b32 v%d, 8, v%d", vT1, vT3)
    a("v_lshrrev_b32 v%d, 1, v%d", vT1, vT1)
    a("v_and_b32 v%d, 3, v%d", vT3, vT3)
    a("v_or3_b32 v%d, v%d, v%d, v%d", vT2, vT2, vT3, vT1)
    a("v_mul_u32_u24 v%d, %d, v%d", vT2, 176 if COAL else 2560, vT2)
    a("v_mad_u32_u24 v%d, v%d, 40, v%d", vSt, vT4, vT2)
    if COAL:
        a("s_and_b32 s%d, s%d, 3", sT, sW)
        a("s_mul_i32 s%d, s%d, 12288", sT, sT)
        a("s_add_u32 s%d, s%d, %d", sCur, sT, CMB)
        a("v_add_u32 v%d, s%d, v%d", vSt, sCur, vSt)
    a("s_lshl_b32 s%d, s%d, 3", sT, sHH)
    a("s_lshl_b32 s%d, 0xff, s%d", sM2, sT)
    EP = env("EP", 0)
    if EP:
        a("s_cmp_eq_u32 s%d, 0", sQH)
        a("s_cbranch_scc1 L_wdoneB_ok")
        all8("L_wdoneB", 2)
        pollop(sPend)
    a("s_waitcnt vmcnt(%d)", 1 if EP else 0)
    flagop(sF2)
    st(10)
    def wread_ops(s):
        fb, g, i = s % 2, s // 5, s % 5
        base, blk = ((vWb2 if g else vWa2), i) if i < 4 else ((vWb3 if g else vWa3), 0)
        return ["ds_read_b64_tr_b16 %s, v%d offset:%d" % (vr(WF + 20 * fb + 4 * j + 2 * q, 2), base, blk * 5120 + j * 8 + q * 1280) for j in range(5) for q in range(2)]
    def oloads(s):
        b_, i = (sO2 if s >= 5 else sOc), s % 5
        if i < 4:
            return ["s_add_u32 s%d, s%d, %d" % (sNxt, b_, i * 2 * OB)] + \
                   ["buffer_load_dwordx4 %s, v%d, %s, s%d offen offset:%d sc1" % (vr(OF + 8 * s + 4 * j, 4), vOa, srd, sNxt, 1024 * j) for j in range(2)]
        return ["buffer_load_dwordx4 %s, v%d, %s, s%d offen offset:%d sc1" % (vr(OF + 8 * s + 4 * e, 4), vOb, srd, b_, OB * e) for e in range(2)]
    def choose():
        a("s_lshr_b32 s%d, s%d, 15", sT, sM2)
        a("s_xor_b32 s%d, s%d, 1", sT2, sT)
        a("s_mul_i32 s%d, s%d, %d", sO2, sT, 8 * OB)
        a("s_add_u32 s%d, s%d, s%d", sO2, sO2, sOc)
        a("s_mul_i32 s%d, s%d, %d", sT3, sT2, 8 * OB)
        a("s_add_u32 s%d, s%d, s%d", sOc, sOc, sT3)
    def choose2():
        a("s_mul_i32 s%d, s%d, 10240", sT, sT)
        a("s_mul_i32 s%d, s%d, 10240", sT2, sT2)
        a("v_add_u32 v%d, s%d, v%d", vWb3, sT, vWa3)
        a("v_add_u32 v%d, s%d, v%d", vWa3, sT2, vWa3)
        a("v_lshl_add_u32 v%d, s%d, 1, v%d", vWb2, sT, vWa2)
        a("v_lshl_add_u32 v%d, s%d, 1, v%d", vWa2, sT2, vWa2)
    a("s_cmp_eq_u32 s%d, 0", sQH)
    a("s_cbranch_scc1 L_aload")
    if not EP: all8("L_wdoneB", 2)
    a("s_mov_b32 s%d, 0", sTmo)
    if EP:
        a("s_waitcnt vmcnt(1)")
        a("s_branch L_poll2e")
    else: pollop(sPend)
    a.label("L_poll2")
    a("s_add_u32 s%d, s%d, 1", sTmo, sTmo)
    a("s_waitcnt vmcnt(0)")
    a.label("L_poll2e")
    a("v_cmp_eq_u64 vcc, s[%d:%d], v[4:5]", sNon, sNon + 1)
    a("s_cmp_gt_u32 s%d, 0x8000", sTmo)
    a("s_cbranch_scc1 L_first")
    a("s_or_b32 s%d, vcc_lo, s%d", sT, sM2)
    a("s_andn2_b32 s%d, 0xffff, s%d", sT, sT)
    a("s_cbranch_scc0 L_first")
    a("s_xor_b32 s%d, s%d, 0xffff", sM2, sM2)
    a("s_or_b32 s%d, vcc_lo, s%d", sT, sM2)
    a("s_andn2_b32 s%d, 0xffff, s%d", sT, sT)
    a("s_cbranch_scc0 L_first")
    a("s_sleep %d", env("SLP2", 2))
    pollop(sPend)
    a("s_branch L_poll2")
    a.label("L_first")
    st(12)
    if env("RP", 1):
        a("s_andn2_b32 s%d, s%d, vcc_lo", sT, sM2)
        a("s_cbranch_scc0 L_norp")
        pollop(sPend)
        a.label("L_norp")
    choose()
    for s in range(5):
        for x in oloads(s): a(x)
    choose2()
    for x in wread_ops(0): a(x)
    if env("RP", 1): a("s_waitcnt vmcnt(10)")
    a.label("L_chk2")
    a("v_cmp_eq_u64 vcc, s[%d:%d], v[4:5]", sNon, sNon + 1)
    a("s_andn2_b32 s%d, s%d, vcc_lo", sP2, sM2)
    a("s_cbranch_scc1 L_more" if env("P2", 1) else "s_cbranch_scc1 L_aback")
    for s in range(5, 10):
        for x in oloads(s): a(x)
    a.label("L_aback")
    st(13)
    for s in range(10):
        o = OF + 8 * s
        acc = ACC2 if s < 5 else ACC3
        rd = wread_ops(s + 1) if s < 9 else []
        if s <= 5:
            a("s_cmp_eq_u32 s%d, 0", sP2)
            if s < 5:
                a("s_cbranch_scc1 L_both%d", s)
                if s == env("PP", 2): pollop(sPend)
                a("s_waitcnt vmcnt(%d)", 2 * (4 - s) + (1 if s >= env("PP", 2) else 0))
            else:
                a("s_cbranch_scc0 L_second")
            a.label("L_both%d" % s)
        a("s_waitcnt vmcnt(%d) lgkmcnt(0)", 2 * (9 - s))
        if s % 5 == 4:
            a("v_swap_b32 v%d, v%d", o + 2, o + 4)
            a("v_swap_b32 v%d, v%d", o + 3, o + 5)
            a("s_nop 1")
        if s == 7 and COAL:
            R = OF
            rd += ["v_lshrrev_b32 v%d, 3, v%d" % (R + 4, vLane), "v_and_b32 v%d, 7, v%d" % (R + 5, vLane),
                   "v_mul_u32_u24 v%d, 176, v%d" % (R, R + 4), "v_mul_u32_u24 v%d, 2560, v%d" % (R + 1, R + 4),
                   "v_lshl_add_u32 v%d, v%d, 4, v%d" % (R, R + 5, R), "v_lshl_add_u32 v%d, v%d, 4, v%d" % (R + 1, R + 5, R + 1),
                   "v_add_u32 v%d, s%d, v%d" % (R, sCur, R),
                   "v_lshrrev_b32 v%d, 1, v%d" % (R + 4, vLane), "v_and_b32 v%d, 1, v%d" % (R + 5, vLane),
                   "v_mul_u32_u24 v%d, 176, v%d" % (R + 2, R + 4)]
        if s == 8 and COAL:
            rd += ["v_and_b32 v%d, 24, v%d" % (R + 6, R + 4), "v_add_u32 v%d, v%d, v%d" % (R + 4, R + 4, R + 6),
                   "v_mul_u32_u24 v%d, 2560, v%d" % (R + 3, R + 4),
                   "v_lshl_add_u32 v%d, v%d, 4, v%d" % (R + 2, R + 5, R + 2), "v_lshl_add_u32 v%d, v%d, 4, v%d" % (R + 3, R + 5, R + 3),
                   "v_add_u32 v%d, s%d, v%d" % (R + 2, sCur, R + 2)]
        if s == 9:
            xr = xreads(2, vAr, 10, PART)
        for tt in (0, 1):
            for j in range(5):
                d = acc + 4 * (5 * tt + j)
                a("v_mfma_f32_16x16x32_bf16 %s, %s, %s, %s", vr(d, 4), vr(WF + 20 * (s % 2) + 4 * j, 4), vr(o + 4 * tt, 4), vr(d, 4) if s % 5 else "0")
                for _ in range(2):
                    if rd: a(rd.pop(0))
                    elif s == 9 and xr: xr.pop(0)()
    st(14, False)
    a("s_mov_b32 s%d, 0", sTmo)
    a("s_add_u32 s%d, s%d, %d", sT2, sPub, 32 * 2560)
    a("v_mov_b32 v%d, 1", vT2)
    a("s_cmp_eq_u32 s%d, 0", sQH)
    a("s_cbranch_scc0 L_x1")
    for q in range(10):
        for h in range(4): a("v_add_f32 v%d, v%d, v%d", ACC2 + 4 * q + h, ACC2 + 4 * q + h, ACC3 + 4 * q + h)
        a("ds_write_b128 v%d, %s offset:%d", vAr, vr(ACC2 + 4 * q, 4), q * 1024)
    a("ds_write_b32 v%d, v%d offset:%d", vFo, vT2, 128 + 8)
    a("s_waitcnt lgkmcnt(0)")
    a("s_branch L_xdone") if DIAG else a("s_endpgm")
    a.label("L_x1")
    if DIAG: a("s_waitcnt lgkmcnt(0)")
    xcheck("L_xch", 2, vAr, 10, PART)
    if COAL:
        for i in range(0, 40, 2): padd(ACC2 + i, ACC3 + i)
        a("s_waitcnt lgkmcnt(0)")
    for tt in range(2):
        for q in range(5):
            r = ACC2 + 20 * tt + 4 * q
            o = WF + 12 * tt
            if not COAL:
                for h in range(2): padd(r + 2 * h, ACC3 + 20 * tt + 4 * q + 2 * h)
                a("s_waitcnt lgkmcnt(%d)", 9 - 5 * tt - q)
            for h in range(2): padd(r + 2 * h, PART + 20 * tt + 4 * q + 2 * h)
            for h in range(2): a("v_cvt_pk_bf16_f32 v%d, v%d, v%d", o + 2 * q + h, r + 2 * h, r + 2 * h + 1)
            if COAL:
                a("ds_write_b64 v%d, %s offset:%d", vSt, vr(o + 2 * q, 2), tt * 16 * 176 + 8 * q)
            else:
                if q in (1, 3): a("buffer_store_dwordx4 %s, v%d, %s, s%d offen offset:%d", vr(o + 2 * q - 2, 4), vSt, sr(OUT, 4), sT2 if tt else sPub, 8 * (q - 1))
                if q == 4: a("buffer_store_dwordx2 %s, v%d, %s, s%d offen offset:32", vr(o + 8, 2), vSt, sr(OUT, 4), sT2 if tt else sPub)
        if COAL:
            for i in (2 * tt, 2 * tt + 1): a("ds_read_b128 %s, v%d offset:%d", vr(OF + 8 + 4 * i, 4), R, i * 8 * 176)
    if COAL:
        a("ds_read_b128 %s, v%d offset:128", vr(OF + 24, 4), R + 2)
        for i in range(4):
            a("s_add_u32 s%d, s%d, %d", sT2, sPub, i * 16 * 2560)
            a("s_waitcnt lgkmcnt(%d)", (9, 8, 2, 1)[i])
            a("buffer_store_dwordx4 %s, v%d, %s, s%d offen %s", vr(OF + 8 + 4 * i, 4), R + 1, sr(OUT, 4), sT2, os.environ.get("OSC", ""))
        a("s_waitcnt lgkmcnt(0)")
        a("buffer_store_dwordx4 %s, v%d, %s, s%d offen offset:128 %s", vr(OF + 24, 4), R + 3, sr(OUT, 4), sPub, os.environ.get("OSC", ""))
    a.label("L_xdone")
    st(15)
    a.label("L_exit")
    st.flush(sW)
    a.label("L_end")
    a("s_endpgm")
    a.label("L_mid")
    a("s_add_u32 s%d, s%d, 1", sTrig, sTrig)
    a("s_cmp_eq_u32 s%d, 3", sCh)
    a("s_cbranch_scc0 L_mid2")
    a("s_lshl_b32 s%d, s%d, 1", sT3, sTB)
    a("s_add_u32 s%d, s%d, s%d", sT3, sT3, sHH)
    a("s_lshl_b32 s%d, s%d, 1", sT3, sT3)
    a("s_add_u32 s%d, s%d, s%d", sT3, sT3, sKH)
    a("s_lshl_b32 s%d, s%d, 5", sT2, sB)
    a("s_add_u32 s%d, s%d, s%d", sT2, sT2, sT3)
    a("s_lshl_b32 s%d, s%d, 1", sT2, sT2)
    a("s_add_u32 s%d, s%d, s%d", sT2, sT2, sQH)
    a("s_mul_i32 s%d, s%d, %d", sOc, sT2, 16 * OB)
    a("s_add_u32 s%d, s%d, %d", sOc, sOc, O_OFF)
    a("s_mul_i32 s%d, s%d, %d", sT2, sT2, FS)
    a("s_add_u32 s%d, s%d, %d", sPend, sT2, F2_OFF)
    a("s_lshl_b32 s%d, s%d, 3", sT3, sT3)
    a("s_add_u32 s%d, s%d, s%d", sT3, sT3, sE)
    a("s_mul_i32 s%d, s%d, %d", sPub, sT3, 8 * 2560)
    a("s_mul_i32 s%d, s%d, 1280", sT2, sB)
    a("s_add_u32 s%d, s%d, s%d", sPub, sPub, sT2)
    a("s_and_b32 s%d, s%d, 7", sT2, sHP)
    a("s_mul_i32 s%d, s%d, 160", sT2, sT2)
    a("s_add_u32 s%d, s%d, s%d", sPub, sPub, sT2)
    a("s_cmp_eq_u32 s%d, 0", sMsk)
    a("s_cbranch_scc1 L_poll3_ok")
    poll("L_poll3", sF1, "0xffff", 0x4000, 2)
    a.label("L_mid2")
    a("s_cmp_eq_u32 s%d, 0", sQH)
    a("s_cselect_b32 s%d, 0, s%d", sTrig, sTrig)
    a("s_cbranch_scc1 L_attn_go")
    a("s_cmp_eq_u32 s%d, %d", sCh, max(BLEAD + 1, 3))
    a("s_cbranch_scc0 L_mid3")
    a("s_setprio 1")
    a.label("L_mid3")
    a("s_cmp_ge_u32 s%d, %d", sCh, max(BLEAD + 1, 4))
    a("s_cselect_b32 s%d, 0, s%d", sTrig, sTrig)
    a("s_cmp_eq_u32 s%d, 4", sCh)
    a("s_cbranch_scc0 L_attn_go")
    a("s_cmp_lt_u32 s%d, 5", sW)
    a("s_cbranch_scc1 L_attn_go")
    a("v_mov_b32 v%d, 2.0", vG)
    a("v_mov_b32 v%d, 2.0", vGb)
    a("s_mov_b32 s%d, %d", sLo, CMB + 8 * 7168)
    a("s_mov_b32 s%d, 0", sLs)
    a("s_mov_b32 s%d, 0", sGs)
    a("s_mov_b32 s%d, 0", sGx)
    a("s_mov_b32 s%d, 0", sGo)
    a("s_branch L_attn_go")
    a.label("L_more")
    a("ds_read_b32 v%d, v%d offset:8", vT3, vFo)
    a("s_add_u32 s%d, s%d, 1", sTmo, sTmo)
    a("s_waitcnt lgkmcnt(0)")
    a("v_readfirstlane_b32 s%d, v%d", sT, vT3)
    a("s_cmp_gt_u32 s%d, 0x8000", sTmo)
    a("s_cbranch_scc1 L_aback")
    a("s_cmp_eq_u32 s%d, 0", sT)
    a("s_cbranch_scc0 L_aback")
    pollop(sPend)
    a("s_waitcnt vmcnt(0)")
    a("s_branch L_chk2")
    a.label("L_second")
    if env("PP", 2) < 5:
        a("s_waitcnt vmcnt(0)")
        a("v_cmp_eq_u64 vcc, s[%d:%d], v[4:5]", sNon, sNon + 1)
        a("s_andn2_b32 s%d, s%d, vcc_lo", sT, sM2)
        a("s_cbranch_scc0 L_poll5_ok")
    poll("L_poll5", sPend, "s%d" % sM2, 0x8000, env("SLP2", 2))
    for s_ in range(5, 10):
        for x in oloads(s_): a(x)
    a("s_branch L_both5")
    a.label("L_aload")
    a("s_waitcnt vmcnt(0)")
    poll("L_poll4", sPend, "0xffff", 0x8000, env("SLP2", 2))
    st(11)
    choose(); choose2()
    a("s_mov_b32 s%d, 0", sP2)
    for s_ in range(10):
        for x in oloads(s_): a(x)
        a("s_waitcnt vmcnt(%d)", env("AW", 4))
    st(12)
    a("s_setprio 0")
    all8("L_wdone", 2)
    a("s_setprio 2")
    for x in wread_ops(0): a(x)
    a("s_branch L_aback")
    for v in range(2):
        a.label("L_nonce%d" % v)
        a("s_mov_b32 s%d, 0", sT)
        a.label("L_nonce_retry%d" % v)
        a("v_mov_b32 v%d, 0", vT1)
        a("global_load_dwordx2 %s, v%d, s[%d:%d] sc0 sc1", vr(vNon, 2), vT1, sDbg, sDbg + 1)
        a("s_add_u32 s%d, s%d, 1", sT, sT)
        a("s_waitcnt vmcnt(0)")
        a("v_readfirstlane_b32 s%d, v%d", sNon + 1, vNon + 1)
        a("v_readfirstlane_b32 s%d, v%d", sNon, vNon)
        a("s_cmp_gt_u32 s%d, 0x4000", sT)
        a("s_cbranch_scc1 L_nonce_ok%d", v)
        a("s_cmp_eq_u32 s%d, 0", sNon + 1)
        a("s_cbranch_scc1 L_nonce_retry%d", v)
        a("s_branch L_nonce_ok%d", v)
    for f in stubs: f()
    a.label("L_slow")
    C = S
    MX = O
    a("s_waitcnt vmcnt(0)")
    a("s_and_b32 s%d, s%d, 3", sT, sW)
    a("s_mul_i32 s%d, s%d, %d", sT, sT, BLK)
    a("s_sub_u32 s%d, s%d, s%d", sKV, sKV, sT)
    a("s_mov_b32 s%d, s%d", sCur, sKV)
    a("s_add_u32 s%d, s%d, %d", sCh, sKV, KV_PAIR)
    a("v_mov_b32 v%d, 0xff800000", MX)
    a("v_mov_b32 v%d, 0xff800000", MX + 1)
    a.label("L_slow1")
    for b in range(2): kvop("k", b, sCur); kvop("r", b, sCur)
    a("s_waitcnt vmcnt(0)")
    for b in range(2):
        qk1(6, b); a("s_nop 15"); a("s_nop 1"); qk2(6, b); qk2(7, b)
        a("s_nop 15")
        for j in range(2):
            for i in range(8): a("v_max3_f32 v%d, v%d, v%d, v%d", MX + j, MX + j, S + 32 + 16 * j + 2 * i, S + 32 + 16 * j + 2 * i + 1)
    a("s_add_u32 s%d, s%d, %d", sCur, sCur, BLK)
    a("s_cmp_lt_u32 s%d, s%d", sCur, sCh)
    a("s_cbranch_scc1 L_slow1")
    for j in range(2):
        a("v_mov_b32 v%d, v%d", vT1, MX + j)
        a("s_nop 1")
        a("v_permlane32_swap_b32 v%d, v%d", vT1, MX + j)
        a("s_nop 1")
        a("v_max_f32 v%d, v%d, v%d", vT1, vT1, MX + j)
        for i in range(16): a("v_sub_f32 v%d, 0, v%d", C + 16 * j + i, vT1)
    for i in range(24): a("v_mov_b32 v%d, 0", K0 + i)
    a("s_mov_b32 s%d, s%d", sCur, sKV)
    a.label("L_slow2")
    for b in range(2):
        kvop("k", b, sCur); kvop("r", b, sCur); kvop("v", b, sCur, 0); kvop("v", b, sCur, 1)
    a("s_waitcnt vmcnt(0)")
    for b in range(2):
        qk1(6, b, vr(C, 32)); a("s_nop 15"); a("s_nop 1"); qk2(6, b); qk2(7, b)
        a("s_nop 15")
        for i in range(32): ex(S + 32 + i)
        a("s_nop 1")
        pv(6, b, 0); pv(6, b, 1)
        a("s_nop 10")
        pv(7, b, 0); pv(7, b, 1)
    a("s_add_u32 s%d, s%d, %d", sCur, sCur, BLK)
    a("s_cmp_lt_u32 s%d, s%d", sCur, sCh)
    a("s_cbranch_scc1 L_slow2")
    a("s_nop 15")
    get_l()
    a("s_nop 1")
    for j in range(2): a("v_permlane32_swap_b32 v%d, v%d", Z + 5 + 2 * j, Z + 4 + 2 * j)
    a("s_mov_b32 s%d, 0", sCh)
    a("s_branch L_fin")
    a.label("L_code_end")
    return name, NFV, 163840

def gen_spin(a):
    name = "spin_kernel"
    kernel_head(a, name)
    wa, ia, wb, ib, mult, off = [int(x) for x in SPIN.split(",")]
    a("s_cmp_ge_u32 s2, 1")
    a("s_cbranch_scc1 L_spin_end")
    a("s_load_dwordx2 s[4:5], s[0:1], 64")
    a("s_waitcnt lgkmcnt(0)")
    a("s_add_u32 s4, s4, %d", DIAG_OFF)
    a("s_addc_u32 s5, s5, 0")
    if wa >= 0:
        a("v_mov_b32 v1, %d", 4 * ia + 128 * (16 * 8 + wa))
        a("v_mov_b32 v2, %d", 4 * ib + 128 * (16 * 8 + wb))
        a("global_load_dword v3, v1, s[4:5]")
        a("global_load_dword v4, v2, s[4:5]")
        a("s_waitcnt vmcnt(0)")
        a("v_sub_u32 v3, v4, v3")
        a("s_nop 1")
        a("v_readfirstlane_b32 s8, v3")
    else:
        a("v_lshlrev_b32 v1, 11, v0")
        a("v_mov_b32 v2, 0")
        a("global_load_dword v7, v2, s[4:5]")
        for k in range(4):
            a("global_load_dword v%d, v1, s[4:5] offset:%d", 8 + k, 4 * ia + (0 if wa == -1 else 128 * wb))
            a("global_load_dword v%d, v1, s[4:5] offset:%d", 12 + k, 4 * ib + 128 * wb)
            a("v_add_u32 v1, %d, v1", 64 * 2048)
        a("s_waitcnt vmcnt(0)")
        for k in range(8): a("v_sub_u32 v%d, v%d, v7", 8 + k, 8 + k)
        op = "min" if wa == -1 else "max"
        for k in range(1, 4):
            a("v_%s_i32 v8, v8, v%d", op, 8 + k)
            a("v_max_i32 v12, v12, v%d", 12 + k)
        a("s_nop 1")
        a("v_readlane_b32 s20, v8, 0")
        a("v_readlane_b32 s21, v12, 0")
        for l in range(1, 64):
            a("v_readlane_b32 s22, v8, %d", l)
            a("v_readlane_b32 s23, v12, %d", l)
            a("s_%s_i32 s20, s20, s22", op)
            a("s_max_i32 s21, s21, s23")
        a("s_sub_u32 s8, s21, s20")
    a("s_memrealtime s[10:11]")
    a("s_nop 3")
    a("s_max_u32 s8, s8, %d", off)
    a("s_sub_u32 s8, s8, %d", off)
    a("s_min_u32 s8, s8, 20000")
    a("s_mul_i32 s8, s8, %d", mult)
    a("s_waitcnt lgkmcnt(0)")
    a.label("L_spin")
    a("s_memrealtime s[12:13]")
    a("s_waitcnt lgkmcnt(0)")
    a("s_sub_u32 s14, s12, s10")
    a("s_cmp_lt_u32 s14, s8")
    a("s_cbranch_scc1 L_spin")
    a.label("L_spin_end")
    a("s_endpgm")
    return name, 16, 0

def gen_pre(a):
    name = "pre_kernel"
    kernel_head(a, name)
    PRE = env("PREK", 0)
    if PRE == 2:
        a("s_cmp_ge_u32 s2, 256")
        a("s_cbranch_scc1 L_pre_end")
        a("s_bfe_u32 s22, s2, 0x10002")
        a("s_mul_i32 s30, s22, 24")
        a("s_load_dwordx4 s[4:7], s[0:1], s30")
        a("s_lshr_b32 s30, s2, 3")
        a("s_mul_i32 s30, s30, 320")
        a("v_add_u32 v1, s30, v0")
        a("s_bfe_u32 s23, s2, 0x10001")
        a("s_mul_i32 s23, s23, %d", 1024 * 1280)
        a("v_lshl_add_u32 v2, v1, 7, s23")
        a("v_lshrrev_b32 v3, 4, v1")
        a("v_and_b32 v4, 15, v1")
        a("v_min_u32 v4, 14, v4")
        a("v_mul_u32_u24 v5, 13, v4")
        a("v_lshrrev_b32 v5, 6, v5")
        a("v_mul_u32_u24 v5, 640, v5")
        a("v_lshl_add_u32 v4, v4, 7, v5")
        a("v_mul_u32_u24 v3, 3840, v3")
        a("s_and_b32 s24, s2, 1")
        a("s_mul_i32 s24, s24, 640")
        a("v_add3_u32 v3, v3, v4, s24")
        a("s_waitcnt lgkmcnt(0)")
        a("global_load_dword v6, v2, s[4:5]")
        a("global_load_dword v7, v3, s[6:7]")
        a.label("L_pre_end")
    a("s_endpgm")
    return name, 8, 0

def main(out):
    a = A()
    ks = []
    for g, blk in (((gen_pre, 320),) if env("PREK", 0) else ()) + ((gen_fused, 512),) + (((gen_spin, 64),) if SPIN else ()):
        n, nfv, lds = g(a)
        ks.append((n, nfv, lds, blk))
    hdr = """; Two independent MHA blocks (S=2048, D=640, H=32, Dh=20), concatenated on the last axis; one fused kernel.
"""
    if len(ks) == 1 and not env("LIST", 0):
        hdr += "; @launch grid=(256,1,1) block=(%d,1,1) lds=%d\n" % (ks[0][3], ks[0][2])
    else:
        for n, nfv, lds, blk in ks:
            hdr += "; @launch kernel=%s grid=(256,1,1) block=(%d,1,1) lds=%d\n" % (n, blk, lds)
    s = hdr + '.amdgcn_target "amdgcn-amd-amdhsa--gfx950"\n.text\n' + a.text()
    s += '.section .rodata,"a"\n'
    for n, nfv, lds, blk in ks: s += kd(n, nfv)
    open(out, "w").write(s)

if __name__ == "__main__":
    main(sys.argv[1] if len(sys.argv) > 1 else "cdna_kernels/%s.s" % NAME)
```
